```python
import torch

def _softmax(x, axis=-1):
    return torch.softmax(x, dim=axis)

def _gelu(x):
    return torch.nn.functional.gelu(x, approximate='tanh')

def _silu(x):
    return torch.nn.functional.silu(x)

def _sigmoid(x):
    return torch.sigmoid(x)

def _layernorm(x, axis=-1, eps=1e-05):
    m = x.mean(dim=axis, keepdim=True)
    v = x.var(dim=axis, keepdim=True, unbiased=False)
    return (x - m) / torch.sqrt(v + eps)

def _scatter_add(tgt, idx, src, axis=0):
    return tgt.clone().index_add_(axis, idx, src)

def _segment_sum(src, seg, n):
    out = torch.zeros((n,) + src.shape[1:], dtype=src.dtype)
    return out.index_add_(0, seg, src)

def _pad(x, pw):
    flat = tuple((v for pair in reversed(pw) for v in pair))
    return torch.nn.functional.pad(x, flat)
kernel_name = 'adaLN_cond__ssm_conv_s4__dense_activation_squared_relu__prompt'

def setup_inputs():

    _w = lambda a: (lambda t: t.to(torch.bfloat16) if t.is_floating_point() else t)(torch.as_tensor(a))

    def _A_setup():
        B, L, D, N = (1, 2048, 512, 128)
        A_re = -(lambda _x: torch.exp(torch.as_tensor(_x)))((lambda *s: torch.randn(*s, dtype=torch.bfloat16) * 3.2)(D, N))
        A_im = torch.pi * (lambda *s: torch.randn(*s, dtype=torch.bfloat16) * 0.1)(D, N)
        B_re = (lambda *s: torch.randn(*s, dtype=torch.bfloat16) * 0.2)(D, N)
        B_im = (lambda *s: torch.randn(*s, dtype=torch.bfloat16) * 0.2)(D, N)
        C_re = (lambda *s: torch.randn(*s, dtype=torch.bfloat16) * 0.2)(D, N)
        C_im = (lambda *s: torch.randn(*s, dtype=torch.bfloat16) * 0.2)(D, N)
        log_dt = (lambda *s: torch.randn(*s, dtype=torch.bfloat16) * 0.1)(D) * 0.5 - 4.0
        Dskip = (lambda *s: torch.randn(*s, dtype=torch.bfloat16) * 0.2)(D)
        return {'u': _w((lambda *s: torch.randn(*s, dtype=torch.bfloat16) * 0.05)(B, L, D)), 'A_re': _w(A_re), 'A_im': _w(A_im), 'B_re': _w(B_re), 'B_im': _w(B_im), 'C_re': _w(C_re), 'C_im': _w(C_im), 'log_dt': _w(log_dt), 'Dskip': _w(Dskip)}
    _A_in = _A_setup()

    def _B_setup():
        B, S, D, F = (1, 2048, 512, 1376)
        return {'x': _w((lambda *s: torch.randn(*s, dtype=torch.bfloat16) * 0.05)(B, S, D)), 'w1': _w((lambda *s: torch.randn(*s, dtype=torch.bfloat16) * 0.05)(D, F)), 'b1': _w((lambda *s: torch.randn(*s, dtype=torch.bfloat16) * 0.4)(F)), 'w2': _w((lambda *s: torch.randn(*s, dtype=torch.bfloat16) * 0.05)(F, D)), 'b2': _w((lambda *s: torch.randn(*s, dtype=torch.bfloat16) * 3.2)(D))}
    _B_in = _B_setup()
    return {'A_u': _A_in['u'], 'A_A_re': _A_in['A_re'], 'A_A_im': _A_in['A_im'], 'A_B_re': _A_in['B_re'], 'A_B_im': _A_in['B_im'], 'A_C_re': _A_in['C_re'], 'A_C_im': _A_in['C_im'], 'A_log_dt': _A_in['log_dt'], 'A_Dskip': _A_in['Dskip'], 'B_x': _B_in['x'], 'B_w1': _B_in['w1'], 'B_b1': _B_in['b1'], 'B_w2': _B_in['w2'], 'B_b2': _B_in['b2'], 'c': _w((lambda *s: torch.randn(*s, dtype=torch.bfloat16) * 0.1)(1, 512) * 8.0), 'w_mod': _w((lambda *s: torch.randn(*s, dtype=torch.bfloat16) * 0.1)(512, 6 * 512) * 512 ** (-0.5) * 8.0)}

def reference(A_u, A_A_re, A_A_im, A_B_re, A_B_im, A_C_re, A_C_im, A_log_dt, A_Dskip, B_x, B_w1, B_b1, B_w2, B_b2, c, w_mod):

    def _A_ref(u, A_re, A_im, B_re, B_im, C_re, C_im, log_dt, Dskip):
        Bsz, L, D = u.shape
        dt = torch.exp(log_dt)[:, None]
        A = A_re + 1j * A_im
        Bc = B_re + 1j * B_im
        Cc = C_re + 1j * C_im
        logdA = dt * A
        dB = dt * Bc
        l = (lambda x, dt: x.to(dt))(torch.arange(L), A_re.dtype)
        P = torch.exp(logdA[:, :, None] * l[None, None, :])
        K = torch.einsum('dn,dnl,dn->dl', Cc, P, dB).real
        L2 = 2 * L
        Kp = _pad(K, ((0, 0), (0, L)))
        up = (lambda x, *d: x.permute(*d))(u, 0, 2, 1)
        up = _pad(up, ((0, 0), (0, 0), (0, L)))
        Kf = (lambda x, axes=(-2, -1): torch.fft.rfft2(x.float(), dim=axes))(Kp[:, None, :], axes=(-2, -1))
        Uf = (lambda x, axes=(-2, -1): torch.fft.rfft2(x.float(), dim=axes))(up[:, :, None, :], axes=(-2, -1))
        Yf = Uf * Kf[None, :, :, :]
        y = (lambda x, s, axes=(-2, -1): torch.fft.irfft2(x, s=s, dim=axes).to(torch.bfloat16))(Yf, (1, L2), axes=(-2, -1))[:, :, 0, :L]
        y = (lambda x, *d: x.permute(*d))(y, 0, 2, 1) + u * Dskip[None, None, :]
        return y

    def _B_ref(x, w1, b1, w2, b2):
        h = torch.einsum('bsd,df->bsf', x, w1) + b1
        zero = torch.zeros_like(h)
        r = torch.where(h > zero, h, zero)
        h = r * r
        out = torch.einsum('bsf,fd->bsd', h, w2) + b2
        return out
    x = A_u
    mod = (_silu(c) @ w_mod).reshape(c.shape[0], 6, 1, -1)
    sa, ca, ga, sb, cb, gb = (mod[:, 0].clone(), mod[:, 1].clone(), mod[:, 2].clone(), mod[:, 3].clone(), mod[:, 4].clone(), mod[:, 5].clone())
    h = _layernorm(x, axis=-1) * (1 + ca) + sa
    x = x + ga * _A_ref(h, A_A_re, A_A_im, A_B_re, A_B_im, A_C_re, A_C_im, A_log_dt, A_Dskip)
    h = _layernorm(x, axis=-1) * (1 + cb) + sb
    x = x + gb * _B_ref(h, B_w1, B_b1, B_w2, B_b2)
    return x
```

```python
from gen import *

def srd_ws(a, s):
    a(f"""
    s_mov_b32 s{s}, s20
    s_mov_b32 s{s+1}, s21
    s_mov_b32 s{s+2}, {WS_SIZE}
    s_mov_b32 s{s+3}, 0x00020000
    """)

class LdsTracker:
    def __init__(self, a):
        self.a = a; self.issued = 0; self.done = 0; self.tag = {}
    def issue(self, text, tags):
        self.a(text)
        for t in tags: self.tag[t] = self.issued
        self.issued += 1
    def need(self, tags):
        idx = max(self.tag[t] for t in tags)
        if idx < self.done: return
        n = self.issued - idx - 1
        n = min(n, 15)
        self.a(f"s_waitcnt lgkmcnt({n})")
        self.done = self.issued - n
    def drain(self):
        self.a("s_waitcnt lgkmcnt(0)"); self.done = self.issued

NCONV, NW1 = 256, 43
B_GRID = NCONV + NW1
KCP = 4160
KCHL = 4 * KCP
H_OFF = 2 * KCHL
HCH = 4608
RED_OFF = H_OFF + 2 * HCH
B_LDS = RED_OFF + 16384

def gen_conv(a):
    VA, VB, VY = 64, 96, 128
    a(f"""
    conv:
    s_load_dwordx2 s[20:21], s[0:1], 144
    v_lshrrev_b32 v3, 6, v0
    v_and_b32 v1, 63, v0
    s_nop 0
    v_readfirstlane_b32 s26, v3              ; wave
    s_lshr_b32 s27, s26, 1                   ; ch
    s_and_b32 s28, s26, 1                    ; hf
    s_lshl_b32 s29, s2, 1                    ; d0
    s_add_u32 s30, s29, s27                  ; d = d0 + ch
    s_waitcnt lgkmcnt(0)
    """)
    srd_ws(a, 8)
    a(f"""
    s_lshl_b32 s31, s29, 2
    s_add_u32 s4, s20, s31
    s_addc_u32 s5, s21, 0
    s_load_dwordx2 s[12:13], s[4:5], {WS_MOD}
    s_load_dwordx2 s[14:15], s[4:5], {WS_MOD + 2048}     ; ca
    s_load_dwordx2 s[16:17], s[4:5], {WS_MOD + 4096}     ; ga
    v_lshlrev_b32 v4, 4, v1                  ; lane*16
    s_mul_i32 s32, s30, {KCH}
    s_add_u32 s32, s32, {WS_KE}
    s_lshl_b32 s33, s28, 2
    s_add_u32 s32, s32, s33
    s_mul_i32 s33, s27, {KCHL}
    s_mul_i32 s34, s28, {2*KCP}
    s_add_u32 s33, s33, s34
    s_mov_b32 m0, s33
    s_add_u32 s35, s32, 4112
    """)
    for i in range(4):
        a(f"buffer_load_dwordx4 v4, s[8:11], s32 offen offset:{1024*i} lds")
    a(f"s_add_u32 m0, s33, {KCP}")
    a("s_nop 0")
    for i in range(4):
        a(f"buffer_load_dwordx4 v4, s[8:11], s35 offen offset:{1024*i} lds")
    a(f"""
    v_lshlrev_b32 v5, 4, v0                  ; tid*16
    s_lshl_b32 s36, s29, 12
    s_add_u32 s36, s36, {WS_XT}              ; x^T row d0
    s_add_u32 s37, s36, 4096
    buffer_load_dwordx4 v[8:11], v5, s[8:11], s36 offen
    buffer_load_dwordx4 v[12:15], v5, s[8:11], s37 offen
    v_lshlrev_b32 v6, 6, v0                  ; tid*64
    s_mov_b32 s38, {WS_ST1}
    buffer_load_dwordx4 v[16:19], v6, s[8:11], s38 offen
    buffer_load_dwordx4 v[20:23], v6, s[8:11], s38 offen offset:16
    buffer_load_dwordx4 v[24:27], v6, s[8:11], s38 offen offset:32
    buffer_load_dwordx4 v[28:31], v6, s[8:11], s38 offen offset:48
    v_and_b32 v7, 15, v1                     ; j / i
    v_lshrrev_b32 v2, 4, v1                  ; G / g
    v_lshlrev_b32 v32, 5, v7
    v_lshl_add_u32 v32, v2, 3, v32           ; 32j + 8G
    s_lshl_b32 s39, s30, 12
    s_lshl_b32 s40, s28, 11
    s_add_u32 s39, s39, s40                  ; d*4096 + hf*2048
    s_add_u32 s41, s39, {WS_XT}
    s_add_u32 s42, s39, {WS_X2T}
    """)
    for i in range(4):
        a(f"buffer_load_dwordx2 v[{48+2*i}:{49+2*i}], v32, s[8:11], s41 offen offset:{512*i}")
    a(f"""
    v_mov_b32 v36, 0
    v_mov_b32 v37, 0
    v_mov_b32 v38, 0
    v_mov_b32 v39, 0
    v_lshrrev_b32 v33, 1, v0
    v_mul_u32_u24 v33, {KCP}, v33
    v_and_b32 v34, 1, v0
    v_lshl_add_u32 v33, v34, 4, v33
    v_add_u32 v33, 4096, v33
    v_bfe_u32 v34, v0, 5, 1
    v_mul_u32_u24 v34, {HCH}, v34
    v_and_b32 v35, 31, v0
    v_lshl_add_u32 v34, v35, 4, v34
    v_add_u32 v34, {H_OFF}, v34
    v_cmp_gt_u32 vcc, 16, v0
    s_cmp_eq_u32 s26, 1
    s_cbranch_scc1 conv_padh
    s_cmp_eq_u32 s26, 0
    s_cbranch_scc0 conv_pad_done
    s_and_saveexec_b64 s[44:45], vcc
    ds_write_b128 v33, v[36:39]
    s_mov_b64 exec, s[44:45]
    s_branch conv_pad_done
    conv_padh:
    ds_write_b128 v34, v[36:39]
    conv_pad_done:
    v_sub_u32 v33, 3, v7
    v_and_b32 v33, 3, v33                    ; c
    v_mul_u32_u24 v34, {KCP - 2}, v33        ; c*KCP - 2c
    v_lshlrev_b32 v35, 1, v7
    v_sub_u32 v34, v34, v35                  ; - 2i
    v_lshl_add_u32 v34, v2, 4, v34           ; + 16g
    s_mul_i32 s43, s27, {KCHL}
    s_lshl_b32 s44, s28, 8                   ; 2*32*4*hf
    s_sub_u32 s43, s43, s44
    s_add_u32 s43, s43, {2*(2031 - 32*59)}
    v_add_u32 v40, s43, v34                  ; v40 = A base
    v_lshlrev_b32 v41, 5, v7
    v_lshl_add_u32 v41, v2, 4, v41
    s_mul_i32 s43, s27, {HCH}
    s_sub_u32 s43, s43, s44
    s_add_u32 s43, s43, {H_OFF + 2*(240 - 96)}
    v_add_u32 v41, s43, v41                  ; v41 = B base
    v_add_u32 v42, {H_OFF + 512}, v5
    s_waitcnt lgkmcnt(0)
    v_add_f32 v44, 1.0, s14
    v_add_f32 v45, 1.0, s15
    v_cvt_pk_bf16_f32 v44, v44, v45
    v_mov_b32 v46, s12                       ; sa0
    v_mov_b32 v47, s13                       ; sa1
    v_and_b32 v45, 0xffff0000, v44           ; gamma1
    v_lshlrev_b32 v44, 16, v44               ; gamma0
    s_cmp_eq_u32 s27, 0
    s_cselect_b32 s46, s16, s17
    """)
    for t in range(8):
        for r in range(4): a(f"v_mov_b32 v{VY+4*t+r}, 0")
    a("s_waitcnt vmcnt(4)")
    for ch in range(2):
        src = 8 + 4 * ch; gam = 44 + ch; sa = 46 + ch
        for e in range(8):
            if e % 2 == 0: a(f"v_lshlrev_b32 v{56+e}, 16, v{src + e//2}")
            else: a(f"v_and_b32 v{56+e}, 0xffff0000, v{src + e//2}")
        for e in range(8): a(f"v_fma_f32 v{56+e}, v{56+e}, v{16+2*e}, v{17+2*e}")
        for e in range(8): a(f"v_fma_f32 v{56+e}, v{56+e}, v{gam}, v{sa}")
        for p in range(4): a(f"v_cvt_pk_bf16_f32 v{src+p}, v{56+2*p}, v{57+2*p}")
        a(f"ds_write_b128 v42, v[{src}:{src+3}] offset:{ch*HCH}")
    a("""
    s_waitcnt vmcnt(4) lgkmcnt(0)
    """)
    a("s_barrier")
    T = LdsTracker(a)
    def ldA(p, r):
        off = 512 * (7 - p) + 64 * (3 - r)
        T.issue(f"ds_read_b64 v[{VA+4*p}:{VA+4*p+1}], v40 offset:{off}", [f"A{p}"])
        T.issue(f"ds_read_b64 v[{VA+4*p+2}:{VA+4*p+3}], v40 offset:{off+8}", [f"A{p}"])
    def ldB(k, r):
        off = 512 * k + 64 * (3 - r)
        T.issue(f"ds_read_b128 v[{VB+4*k}:{VB+4*k+3}], v41 offset:{off}", [f"B{k}"])
    for p in range(8):
        ldB(7 - p, 0); ldA(p, 0)
    for r in range(4):
        for p in range(8):
            for t in range(7, p - 1, -1):
                k = t - p
                T.need([f"A{p}", f"B{k}"])
                a(f"v_mfma_f32_16x16x32_bf16 v[{VY+4*t}:{VY+4*t+3}], v[{VA+4*p}:{VA+4*p+3}], v[{VB+4*k}:{VB+4*k+3}], v[{VY+4*t}:{VY+4*t+3}]")
                if t == 7 and r < 3: ldB(7 - p, r + 1)
            if r < 3: ldA(p, r + 1)
    a(f"""
    s_lshl_b32 s43, s26, 12
    s_add_u32 s43, s43, {RED_OFF}
    v_lshlrev_b32 v33, 4, v1
    v_add_u32 v34, s43, v33
    s_xor_b32 s43, s26, 1
    s_lshl_b32 s43, s43, 12
    s_add_u32 s43, s43, {RED_OFF}
    v_add_u32 v35, s43, v33
    s_cmp_eq_u32 s28, 1
    s_cbranch_scc1 conv_hf1
    """)
    def tail(hf):
        keep, send = 4 * hf, 4 * (1 - hf)
        a("s_nop 3")
        for i in range(4):
            t = send + i
            a(f"ds_write_b128 v34, v[{VY+4*t}:{VY+4*t+3}] offset:{1024*i}")
        a("s_waitcnt lgkmcnt(0)")
        a("s_barrier")
        for i in range(4):
            a(f"ds_read_b128 v[{64+4*i}:{67+4*i}], v35 offset:{1024*i}")
        a("s_waitcnt vmcnt(0)")
        for i in range(4):
            t = keep + i
            a(f"s_waitcnt lgkmcnt({3-i})")
            for r in range(4): a(f"v_add_f32 v{VY+4*t+r}, v{VY+4*t+r}, v{64+4*i+r}")
            x0, x1 = 48 + 2 * i, 49 + 2 * i
            a(f"v_lshlrev_b32 v80, 16, v{x0}")
            a(f"v_and_b32 v81, 0xffff0000, v{x0}")
            a(f"v_lshlrev_b32 v82, 16, v{x1}")
            a(f"v_and_b32 v83, 0xffff0000, v{x1}")
            for r in range(4): a(f"v_fma_f32 v{80+r}, s46, v{VY+4*t+r}, v{80+r}")
            a(f"v_cvt_pk_bf16_f32 v{84+2*i}, v80, v81")
            a(f"v_cvt_pk_bf16_f32 v{85+2*i}, v82, v83")
            a(f"buffer_store_dwordx2 v[{84+2*i}:{85+2*i}], v32, s[8:11], s42 offen offset:{512*i}")
        a("s_endpgm")
    tail(0)
    a("conv_hf1:")
    tail(1)

def gen_w1p(a):
    FR = 0; RED1 = 32768; RED2 = RED1 + 9216; RED3 = RED2 + 9216
    a(f"""
    w1p:
    s_load_dwordx4 s[4:7], s[0:1], 80        ; w1, b1
    s_load_dwordx2 s[20:21], s[0:1], 144
    s_sub_u32 s3, s2, {NCONV}                ; fblk
    v_lshrrev_b32 v3, 2, v0                  ; rg
    v_and_b32 v4, 3, v0                      ; cc
    v_mul_u32_u24 v5, {8*2752}, v3
    v_lshl_add_u32 v5, v4, 4, v5
    s_lshl_b32 s9, s3, 6
    v_add_u32 v5, s9, v5
    v_lshlrev_b32 v6, 5, v3
    s_waitcnt lgkmcnt(0)
    s_add_u32 s12, s20, {WS_MOD + 3*2048}
    s_addc_u32 s13, s21, 0
    global_load_dwordx4 v[8:11], v6, s[12:13]              ; sb
    global_load_dwordx4 v[12:15], v6, s[12:13] offset:16
    global_load_dwordx4 v[16:19], v6, s[12:13] offset:2048 ; cb
    global_load_dwordx4 v[20:23], v6, s[12:13] offset:2064
    """)
    for i in range(8):
        if i: a("v_add_u32 v5, 2752, v5")
        a(f"global_load_dwordx4 v[{24+4*i}:{27+4*i}], v5, s[4:5]")
    a(f"""
    v_and_b32 v7, 31, v0
    v_lshlrev_b32 v7, 1, v7
    s_lshl_b32 s9, s3, 6
    v_add_u32 v7, s9, v7
    global_load_ushort v56, v7, s[6:7]
    v_mov_b32 v57, 0x3f803f80
    s_waitcnt vmcnt(9)
    """)
    for i in range(8): a(f"v_add_f32 v{16+i}, 1.0, v{16+i}")
    for i in range(4): a(f"v_cvt_pk_bf16_f32 v{58+i}, v{16+2*i}, v{17+2*i}")
    for i in range(8):
        if i % 2 == 0: a(f"v_lshlrev_b32 v{16+i}, 16, v{58+i//2}")
        else: a(f"v_and_b32 v{16+i}, 0xffff0000, v{58+i//2}")
    for e in range(16): a(f"v_mov_b32 v{96+e}, 0")
    for u in range(4):
        a(f"s_waitcnt vmcnt({1 + 6 - 2*u})")
        for h in range(2):
            i = 2 * u + h
            for e in range(8):
                src = 24 + 4 * i + e // 2
                if e % 2 == 0: a(f"v_lshlrev_b32 v{112+8*h+e}, 16, v{src}")
                else: a(f"v_and_b32 v{112+8*h+e}, 0xffff0000, v{src}")
            for e in range(8): a(f"v_fmac_f32 v{104+e}, v{8+i}, v{112+8*h+e}")
            for e in range(8): a(f"v_mul_f32 v{112+8*h+e}, v{16+i}, v{112+8*h+e}")
        for e in range(8): a(f"v_cvt_pk_bf16_f32 v{64+4*e+u}, v{112+e}, v{120+e}")
        for e in range(8): a(f"v_dot2_f32_bf16 v{96+e}, v{64+4*e+u}, v57, v{96+e}")
    a(f"""
    s_waitcnt vmcnt(0)
    v_lshrrev_b32 v5, 1, v3
    v_lshlrev_b32 v5, 10, v5
    v_and_b32 v6, 1, v3
    v_lshl_add_u32 v5, v6, 9, v5
    v_lshl_add_u32 v5, v4, 7, v5
    v_lshl_add_u32 v6, v6, 2, v4
    """)
    for e in range(8):
        a(f"v_xor_b32 v7, {e}, v6")
        a(f"v_lshl_add_u32 v7, v7, 4, v5")
        a(f"ds_write_b128 v7, v[{64+4*e}:{67+4*e}] offset:{FR}")
    a(f"""
    v_mul_u32_u24 v5, 144, v3
    v_lshl_add_u32 v5, v4, 5, v5
    ds_write_b128 v5, v[96:99] offset:{RED1}
    ds_write_b128 v5, v[100:103] offset:{RED1+16}
    ds_write_b128 v5, v[104:107] offset:{RED2}
    ds_write_b128 v5, v[108:111] offset:{RED2+16}
    v_and_b32 v1, 63, v0
    v_lshrrev_b32 v2, 6, v0                  ; wave
    v_lshrrev_b32 v6, 5, v1                  ; g
    v_bfe_u32 v7, v1, 3, 2                   ; cc
    v_and_b32 v8, 7, v1                      ; e
    v_lshl_add_u32 v9, v6, 2, v7             ; 4g+cc
    v_xor_b32 v8, v8, v9
    v_lshl_add_u32 v8, v7, 3, v8             ; slot
    v_lshlrev_b32 v8, 4, v8
    v_lshl_add_u32 v8, v6, 9, v8
    v_lshl_add_u32 v8, v2, 13, v8
    v_lshlrev_b32 v9, 4, v1
    v_lshl_add_u32 v9, v2, 13, v9
    s_lshl_b32 s9, s3, 15
    s_add_u32 s9, s9, {WS_W1F}
    v_add_u32 v9, s9, v9
    v_and_b32 v6, 31, v0
    v_lshrrev_b32 v7, 5, v0
    v_mul_u32_u24 v7, {8*144}, v7
    v_lshl_add_u32 v7, v6, 2, v7
    s_waitcnt lgkmcnt(0)
    s_barrier
    """)
    for s in range(8): a(f"ds_read_b128 v[{64+4*s}:{67+4*s}], v8 offset:{FR + 1024*s}")
    for i in range(8): a(f"ds_read_b32 v{16+i}, v7 offset:{RED1 + 144*i}")
    for s in range(8):
        a(f"s_waitcnt lgkmcnt({15-s})")
        a(f"global_store_dwordx4 v9, v[{64+4*s}:{67+4*s}], s[20:21] offset:{1024*(s%4)}")
        if s == 3: a("v_add_u32 v9, 4096, v9")
    for i in range(8): a(f"ds_read_b32 v{24+i}, v7 offset:{RED2 + 144*i}")
    a("s_waitcnt lgkmcnt(0)")
    for b in (16, 24):
        a(f"""
        v_add_f32 v{b}, v{b}, v{b+1}
        v_add_f32 v{b+2}, v{b+2}, v{b+3}
        v_add_f32 v{b+4}, v{b+4}, v{b+5}
        v_add_f32 v{b+6}, v{b+6}, v{b+7}
        v_add_f32 v{b}, v{b}, v{b+2}
        v_add_f32 v{b+4}, v{b+4}, v{b+6}
        v_add_f32 v{b}, v{b}, v{b+4}
        """)
    a(f"""
    v_lshlrev_b32 v5, 2, v0
    ds_write_b32 v5, v16 offset:{RED3}
    ds_write_b32 v5, v24 offset:{RED3+1024}
    s_waitcnt lgkmcnt(0)
    s_barrier
    v_cmp_gt_u32 vcc, 32, v0
    s_and_saveexec_b64 s[30:31], vcc
    s_cbranch_execz w1p_end
    """)
    for i in range(8): a(f"ds_read_b32 v{16+i}, v5 offset:{RED3 + 128*i}")
    for i in range(8): a(f"ds_read_b32 v{24+i}, v5 offset:{RED3 + 1024 + 128*i}")
    a("s_waitcnt lgkmcnt(0)")
    for b in (16, 24):
        a(f"""
        v_add_f32 v{b}, v{b}, v{b+1}
        v_add_f32 v{b+2}, v{b+2}, v{b+3}
        v_add_f32 v{b+4}, v{b+4}, v{b+5}
        v_add_f32 v{b+6}, v{b+6}, v{b+7}
        v_add_f32 v{b}, v{b}, v{b+2}
        v_add_f32 v{b+4}, v{b+4}, v{b+6}
        v_add_f32 v{b}, v{b}, v{b+4}
        """)
    a(f"""
    v_lshlrev_b32 v56, 16, v56
    v_add_f32 v24, v24, v56
    s_lshl_b32 s9, s3, 7
    s_add_u32 s10, s9, {WS_CS}
    v_add_u32 v6, s10, v5
    s_add_u32 s10, s9, {WS_B1P}
    v_add_u32 v7, s10, v5
    global_store_dword v6, v16, s[20:21]
    global_store_dword v7, v24, s[20:21]
    w1p_end:
    s_endpgm
    """)

def gen_B(a):
    a(f"""
    s_cmp_lt_u32 s2, {NCONV}
    s_cbranch_scc1 conv
    s_cmp_lt_u32 s2, {B_GRID}
    s_cbranch_scc1 w1p
    s_endpgm
    """)
    gen_w1p(a); gen_conv(a)

C_GRID = 240
C_SLOT = 28672
C_NS = 5
C_TAB = C_NS * C_SLOT
C_LDS = C_TAB + 768

def gen_C(a):
    ACC, AQ, AS, FB = 64, 112, 120, 128
    a(f"""
    s_cmp_ge_u32 s2, {C_GRID}
    s_cbranch_scc1 c_end
    s_load_dwordx2 s[20:21], s[0:1], 144
    v_lshrrev_b32 v3, 6, v0
    v_and_b32 v1, 63, v0
    s_and_b32 s4, s2, 7
    s_lshl_b32 s4, s4, 1
    s_bfe_u32 s5, s2, 0x10003
    s_add_u32 s4, s4, s5                     ; lt
    s_lshr_b32 s5, s2, 4                     ; fg
    v_readfirstlane_b32 s26, v3              ; wave
    v_lshlrev_b32 v4, 4, v1
    v_lshrrev_b32 v5, 4, v1
    v_lshlrev_b32 v6, 2, v5
    v_and_b32 v7, 15, v1
    v_xor_b32 v6, v6, v7
    v_lshlrev_b32 v6, 4, v6
    v_lshl_add_u32 v5, v5, 12, v6
    s_waitcnt lgkmcnt(0)
    """)
    srd_ws(a, 8)
    a(f"""
    s_mul_i32 s6, s5, {3*32*1024}
    s_add_u32 s6, s6, {WS_W1F}
    s_mul_i32 s7, s26, 3
    """)
    for i in range(3):
        a(f"""
        s_add_u32 s12, s7, {i}
        s_lshr_b32 s13, s12, 2
        s_and_b32 s12, s12, 3
        s_lshl_b32 s13, s13, 15
        s_lshl_b32 s12, s12, 10
        s_add_u32 s12, s12, s13
        s_add_u32 s{30+i}, s12, s6
        """)
    a(f"""
    s_lshl_b32 s12, s26, 16
    s_lshl_b32 s13, s4, 8
    s_add_u32 s12, s12, s13
    s_add_u32 s33, s12, {WS_X2T}
    s_mul_i32 s34, s26, 3072
    s_lshl_b32 s35, s26, 12
    s_add_u32 s35, s35, 12288
    v_lshlrev_b32 v8, 2, v0
    s_mul_i32 s12, s5, 384
    s_add_u32 s13, s12, {WS_CS}
    s_add_u32 s12, s12, {WS_B1P}
    buffer_load_dword v10, v8, s[8:11], s13 offen
    buffer_load_dword v11, v8, s[8:11], s12 offen
    """)
    def dma(c):
        slot = (c % C_NS) * C_SLOT
        for i in range(3):
            a(f"s_add_u32 m0, s34, {slot + 1024*i}")
            a(f"s_add_u32 s12, s{30+i}, {4096*c}")
            a(f"buffer_load_dwordx4 v4, s[8:11], s12 offen lds")
        for i in range(4):
            a(f"s_add_u32 m0, s35, {slot + 1024*i}")
            a(f"s_add_u32 s12, s33, {262144*c + 16384*i}")
            a(f"buffer_load_dwordx4 v5, s[8:11], s12 offen lds")
    for c in range(C_NS): dma(c)
    a(f"""
    v_and_b32 v6, 15, v1
    v_lshrrev_b32 v7, 2, v6                  ; r
    v_and_b32 v6, 3, v6                      ; c
    v_lshrrev_b32 v9, 5, v1                  ; g
    v_lshl_add_u32 v12, v9, 3, v7            ; 8g + r
    v_lshlrev_b32 v12, 8, v12
    v_bfe_u32 v13, v1, 4, 1                  ; lhalf
    v_lshlrev_b32 v13, 1, v13
    v_lshl_add_u32 v13, v3, 2, v13           ; 4w + 2 lhalf
    v_lshrrev_b32 v14, 1, v6
    v_add_u32 v13, v13, v14
    v_lshlrev_b32 v14, 2, v7
    v_xor_b32 v13, v13, v14
    v_lshl_add_u32 v12, v13, 4, v12
    v_and_b32 v6, 1, v6
    v_lshl_add_u32 v12, v6, 3, v12
    v_add_u32 v16, 12288, v12
    v_add_u32 v17, {2*C_SLOT}, v16
    v_add_u32 v18, {4*C_SLOT}, v16
    v_mov_b32 v19, v4                        ; v19,v20,v21 : A bases
    v_add_u32 v20, {2*C_SLOT}, v4
    v_add_u32 v21, {4*C_SLOT}, v4
    v_mov_b32 v22, 0x3f803f80
    v_mov_b32 v23, 0x3f803f80
    """)
    for r in range(ACC, FB): a(f"v_mov_b32 v{r}, 0")
    a(f"""
    v_add_u32 v9, {C_TAB}, v8
    s_waitcnt vmcnt({7*C_NS})
    v_cmp_gt_u32 vcc, 96, v0
    s_and_saveexec_b64 s[14:15], vcc
    ds_write_b32 v9, v10
    ds_write_b32 v9, v11 offset:384
    s_mov_b64 exec, s[14:15]
    """)
    T = LdsTracker(a)
    def reads(c, s, buf):
        slot = c % C_NS
        grp = slot // 2; so = (slot % 2) * C_SLOT
        fb = FB + 16 * buf
        T.issue(f"ds_read_b64_tr_b16 v[{fb+12}:{fb+13}], v{16+grp} offset:{so + s*4096}", [f"x{buf}"])
        T.issue(f"ds_read_b64_tr_b16 v[{fb+14}:{fb+15}], v{16+grp} offset:{so + s*4096 + 1024}", [f"x{buf}"])
        for b in range(3):
            T.issue(f"ds_read_b128 v[{fb+4*b}:{fb+4*b+3}], v{19+grp} offset:{so + (b*4+s)*1024}", [f"w{buf}{b}"])
    for c in range(8):
        issued_after = min(7, c + C_NS - 1 if c >= 1 else C_NS - 1) - c
        last = max(C_NS - 1, c + C_NS - 2); last = min(last, 7)
        a(f"s_waitcnt vmcnt({7*(last - c)})")
        T.drain()
        a("s_barrier")
        if c >= 1 and c + C_NS - 1 <= 7: dma(c + C_NS - 1)
        reads(c, 0, 0); reads(c, 1, 1)
        for s in range(4):
            buf = s % 2; fb = FB + 16 * buf
            T.need([f"x{buf}"])
            a(f"v_mfma_f32_4x4x4_16b_bf16 v[{AQ}:{AQ+3}], v[{fb+12}:{fb+13}], v[{fb+12}:{fb+13}], v[{AQ}:{AQ+3}]")
            a(f"v_mfma_f32_4x4x4_16b_bf16 v[{AS}:{AS+3}], v[22:23], v[{fb+12}:{fb+13}], v[{AS}:{AS+3}]")
            a(f"v_mfma_f32_4x4x4_16b_bf16 v[{AQ+4}:{AQ+7}], v[{fb+14}:{fb+15}], v[{fb+14}:{fb+15}], v[{AQ+4}:{AQ+7}]")
            a(f"v_mfma_f32_4x4x4_16b_bf16 v[{AS+4}:{AS+7}], v[22:23], v[{fb+14}:{fb+15}], v[{AS+4}:{AS+7}]")
            for b in range(3):
                T.need([f"w{buf}{b}"])
                a(f"v_mfma_f32_32x32x16_bf16 v[{ACC+16*b}:{ACC+16*b+15}], v[{fb+4*b}:{fb+4*b+3}], v[{fb+12}:{fb+15}], v[{ACC+16*b}:{ACC+16*b+15}]")
            if s + 2 < 4: reads(c, s + 2, buf)
    a(f"""
    s_nop 7
    v_and_b32 v6, 3, v1
    v_add_f32 v{AQ}, v{AQ}, v{AQ+4}
    v_add_f32 v{AQ+1}, v{AQ+1}, v{AQ+5}
    v_add_f32 v{AQ+2}, v{AQ+2}, v{AQ+6}
    v_add_f32 v{AQ+3}, v{AQ+3}, v{AQ+7}
    v_add_f32 v{AS}, v{AS}, v{AS+4}
    v_cmp_eq_u32 s[12:13], 1, v6
    v_cmp_eq_u32 s[14:15], 2, v6
    v_cmp_eq_u32 s[16:17], 3, v6
    s_nop 1
    v_cndmask_b32 v{AQ}, v{AQ}, v{AQ+1}, s[12:13]
    v_cndmask_b32 v{AQ}, v{AQ}, v{AQ+2}, s[14:15]
    v_cndmask_b32 v{AQ}, v{AQ}, v{AQ+3}, s[16:17]
    v_mov_b32 v24, v{AQ}
    v_mov_b32 v25, v{AS}
    s_nop 1
    v_permlane32_swap_b32 v24, v{AQ}
    v_permlane32_swap_b32 v25, v{AS}
    s_nop 1
    v_add_f32 v24, v24, v{AQ}                ; sum x^2
    v_add_f32 v25, v25, v{AS}                ; sum x
    v_mul_f32 v25, {fx(1.0/512)}, v25        ; mean
    v_mul_f32 v24, {fx(1.0/512)}, v24
    v_fma_f32 v24, -v25, v25, v24
    v_max_f32 v24, 0, v24
    v_add_f32 v24, {fx(1e-5)}, v24
    v_rsq_f32 v24, v24                       ; r
    s_nop 0
    v_mul_f32 v25, -v25, v24                 ; -mean*r
    v_lshrrev_b32 v6, 5, v1
    v_lshlrev_b32 v6, 4, v6
    v_add_u32 v6, {C_TAB}, v6
    s_lshl_b32 s12, s4, 2
    s_add_u32 s12, s12, s26
    s_mul_i32 s12, s12, 86
    s_mul_i32 s13, s5, 6
    s_add_u32 s12, s12, s13
    s_lshl_b32 s12, s12, 10
    s_add_u32 s12, s12, {WS_HID}
    """)
    for b in range(3):
        if b > 0:
            a(f"s_cmp_eq_u32 s5, 14\ns_cbranch_scc1 c_end")
        for q in range(4):
            a(f"ds_read_b128 v[{28+4*q}:{31+4*q}], v6 offset:{(32*b + 8*q)*4}")
            a(f"ds_read_b128 v[{44+4*q}:{47+4*q}], v6 offset:{384 + (32*b + 8*q)*4}")
        a("s_waitcnt lgkmcnt(0)")
        for j in range(16):
            a(f"v_fma_f32 v{44+j}, v25, v{28+j}, v{44+j}")
        for j in range(16):
            a(f"v_fma_f32 v{44+j}, v24, v{ACC+16*b+j}, v{44+j}")
        for j in range(16):
            a(f"v_max_f32 v{44+j}, 0, v{44+j}")
        for j in range(16):
            a(f"v_mul_f32 v{44+j}, v{44+j}, v{44+j}")
        for j in range(8):
            a(f"v_cvt_pk_bf16_f32 v{28+j}, v{44+2*j}, v{45+2*j}")
        a("s_nop 1")
        a("v_permlane32_swap_b32 v28, v30")
        a("v_permlane32_swap_b32 v29, v31")
        a("v_permlane32_swap_b32 v32, v34")
        a("v_permlane32_swap_b32 v33, v35")
        a("buffer_store_dwordx4 v[28:31], v4, s[8:11], s12 offen")
        a("buffer_store_dwordx4 v[32:35], v4, s[8:11], s12 offen offset:1024")
        a("s_add_u32 s12, s12, 2048")
    a("c_end:")
    a("s_endpgm")

D_GRID = 256
D_SLOT = 32768
D_NS = 4
D_LDS = D_NS * D_SLOT
D_NCH = 11

def gen_D(a):
    ACC, FB = 64, 80
    a(f"""
    s_cmp_ge_u32 s2, {D_GRID}
    s_cbranch_scc1 d_end
    s_load_dwordx2 s[20:21], s[0:1], 144
    s_load_dwordx2 s[22:23], s[0:1], 104     ; b2
    s_load_dwordx2 s[24:25], s[0:1], 128     ; out
    v_lshrrev_b32 v3, 6, v0
    v_and_b32 v1, 63, v0
    s_and_b32 s4, s2, 7
    s_lshl_b32 s4, s4, 2
    s_bfe_u32 s5, s2, 0x20003
    s_add_u32 s4, s4, s5
    s_lshr_b32 s5, s2, 5
    v_readfirstlane_b32 s26, v3              ; wave
    v_lshlrev_b32 v4, 4, v1                  ; lane*16
    s_and_b32 s27, s26, 1                    ; wm
    s_lshr_b32 s28, s26, 1                   ; wn
    s_waitcnt lgkmcnt(0)
    """)
    srd_ws(a, 8)
    a(f"""
    s_lshl_b32 s6, s5, 1
    s_add_u32 s6, s6, s27
    s_mul_i32 s6, s6, {86*1024}
    s_add_u32 s6, s6, {WS_W2F}
    s_lshl_b32 s7, s4, 1
    s_add_u32 s7, s7, s27
    s_mul_i32 s7, s7, {86*1024}
    s_add_u32 s7, s7, {WS_HID}
    s_cmp_eq_u32 s28, 0
    s_cselect_b32 s30, s6, s7
    s_lshl_b32 s31, s26, 13
    """)
    def dma(c):
        slot = (c % D_NS) * D_SLOT
        n = 8 if c < 10 else 6
        for h in range(2):
            a(f"s_add_u32 m0, s31, {slot + 4096*h}")
            a(f"s_add_u32 s12, s30, {8192*c + 4096*h}")
            for i in range(4):
                if 4 * h + i < n:
                    a(f"buffer_load_dwordx4 v4, s[8:11], s12 offen offset:{1024*i} lds")
        return n
    a(f"""
    v_and_b32 v5, 31, v1
    v_lshrrev_b32 v6, 5, v1                  ; h
    v_lshlrev_b32 v7, 14, v6                 ; 4h*4096
    v_lshl_add_u32 v7, v5, 1, v7
    s_lshl_b32 s12, s5, 1
    s_add_u32 s12, s12, s27                  ; mblk
    s_lshl_b32 s13, s12, 17                  ; *32*4096
    s_lshl_b32 s14, s4, 1
    s_add_u32 s14, s14, s28                  ; lblk
    s_lshl_b32 s15, s14, 6
    s_add_u32 s13, s13, s15
    s_add_u32 s13, s13, {WS_X2T}
    """)
    for q in range(4):
        for r in range(4):
            a(f"s_add_u32 s16, s13, {(8*q + r)*4096}")
            a(f"buffer_load_ushort v{24+4*q+r}, v7, s[8:11], s16 offen")
    a(f"""
    v_lshlrev_b32 v8, 4, v6                  ; 4h*4
    s_lshl_b32 s15, s12, 7
    s_add_u32 s15, s15, {WS_MOD + 5*2048}
    v_lshlrev_b32 v9, 3, v6                  ; 4h*2
    s_lshl_b32 s16, s12, 6
    v_add_u32 v9, s16, v9
    """)
    for q in range(4):
        a(f"buffer_load_dwordx4 v[{40+4*q}:{43+4*q}], v8, s[8:11], s15 offen offset:{32*q}")
    for q in range(4):
        a(f"global_load_dwordx2 v[{56+2*q}:{57+2*q}], v9, s[22:23] offset:{16*q}")
    NEPI = 24
    counts = []
    for c in range(D_NS): counts.append(dma(c))
    a(f"""
    s_lshl_b32 s12, s27, 13
    v_add_u32 v10, s12, v4
    v_add_u32 v11, 65536, v10
    s_lshl_b32 s12, s28, 13
    s_add_u32 s12, s12, 16384
    v_add_u32 v12, s12, v4
    v_add_u32 v13, 65536, v12
    """)
    for r in range(16): a(f"v_mov_b32 v{ACC+r}, 0")
    T = LdsTracker(a)
    NB = 4
    def reads(c, s):
        slot = c % D_NS
        grp = slot // 2; so = (slot % 2) * D_SLOT
        fb = FB + 8 * (s % NB)
        T.issue(f"ds_read_b128 v[{fb}:{fb+3}], v{10+grp} offset:{so + s*1024}", [f"a{s%NB}"])
        T.issue(f"ds_read_b128 v[{fb+4}:{fb+7}], v{12+grp} offset:{so + s*1024}", [f"b{s%NB}"])
    issued = D_NS
    for c in range(D_NCH):
        n = 8 if c < 10 else 6
        later = sum(counts[c+1:issued])
        a(f"s_waitcnt vmcnt({later})")
        T.drain()
        a("s_barrier")
        if c >= 1 and issued < D_NCH:
            counts.append(dma(issued)); issued += 1
        for s in range(min(NB - 1, n)): reads(c, s)
        for s in range(n):
            fb = FB + 8 * (s % NB)
            T.need([f"a{s%NB}", f"b{s%NB}"])
            a(f"v_mfma_f32_32x32x16_bf16 v[{ACC}:{ACC+15}], v[{fb}:{fb+3}], v[{fb+4}:{fb+7}], v[{ACC}:{ACC+15}]")
            if s + NB - 1 < n: reads(c, s + NB - 1)
    a(f"""
    v_lshlrev_b32 v14, 10, v5
    v_lshl_add_u32 v14, v6, 4, v14
    s_lshl_b32 s12, s4, 1
    s_add_u32 s12, s12, s28
    s_lshl_b32 s12, s12, 15
    s_lshl_b32 s13, s5, 1
    s_add_u32 s13, s13, s27
    s_lshl_b32 s13, s13, 6
    s_add_u32 s12, s12, s13
    v_add_u32 v14, s12, v14
    """)
    for q in range(4):
        a(f"v_lshlrev_b32 v{16}, 16, v{56+2*q}")
        a(f"v_and_b32 v{17}, 0xffff0000, v{56+2*q}")
        a(f"v_lshlrev_b32 v{18}, 16, v{57+2*q}")
        a(f"v_and_b32 v{19}, 0xffff0000, v{57+2*q}")
        for r in range(4): a(f"v_add_f32 v{16+r}, v{16+r}, v{ACC+4*q+r}")
        for r in range(4): a(f"v_lshlrev_b32 v{24+4*q+r}, 16, v{24+4*q+r}")
        for r in range(4): a(f"v_fma_f32 v{16+r}, v{16+r}, v{40+4*q+r}, v{24+4*q+r}")
        a(f"v_cvt_pk_bf16_f32 v{FB+2*q}, v16, v17")
        a(f"v_cvt_pk_bf16_f32 v{FB+2*q+1}, v18, v19")
    a(f"""
    s_nop 1
    v_permlane32_swap_b32 v{FB}, v{FB+2}
    v_permlane32_swap_b32 v{FB+1}, v{FB+3}
    v_permlane32_swap_b32 v{FB+4}, v{FB+6}
    v_permlane32_swap_b32 v{FB+5}, v{FB+7}
    global_store_dwordx4 v14, v[{FB}:{FB+3}], s[24:25]
    global_store_dwordx4 v14, v[{FB+4}:{FB+7}], s[24:25] offset:32
    d_end:
    s_endpgm
    """)

def kernels():
    return [("conv_kernel", gen_B, 168, B_GRID, 256, B_LDS),
            ("gemm1_kernel", gen_C, 168, C_GRID, 256, C_LDS),
            ("gemm2_kernel", gen_D, 128, D_GRID, 256, D_LDS)]
```

```python
import sys, struct

NAME = "adaLN_cond__ssm_conv_s4__dense_activation_squared_relu__prompt"

WS_MOD  = 0x0000
WS_ST1  = 0x4000
WS_CS   = 0x8000
WS_B1P  = 0xA000
WS_XT   = 0x100000
WS_KE   = 0x300000
KCH     = 8224
WS_W2F  = 0x800000
WS_W1F  = 0xA00000
WS_X2T  = 0xC00000
WS_HID  = 0x1000000
WS_SIZE = 268435456

def f2u(x):
    return struct.unpack("<I", struct.pack("<f", x))[0]
def fx(x):
    return "0x%08x" % f2u(x)

class Asm:
    def __init__(self):
        self.l = []
    def __call__(self, s):
        for line in s.strip("\n").split("\n"):
            line = line.strip()
            if not line: continue
            if line.endswith(":"):
                self.l.append(line)
            else:
                self.l.append("    " + line)
    def text(self):
        return "\n".join(self.l) + "\n"

def cmul(a, d, x, y, t):
    a(f"v_pk_mul_f32 v[{t}:{t+1}], v[{x}:{x+1}], v[{y}:{y+1}] op_sel:[0,0] op_sel_hi:[0,1]")
    a(f"v_pk_fma_f32 v[{d}:{d+1}], v[{x}:{x+1}], v[{y}:{y+1}], v[{t}:{t+1}] op_sel:[1,1,0] op_sel_hi:[1,0,1] neg_lo:[1,0,0]")

NK, NLN, NMOD, NW2 = 512, 256, 96, 86
A_GRID = NK + NLN + NMOD + NW2
TROW = 544
QROW = 41
KC_OFF = 57 * TROW
A_LDS = KC_OFF + 768 * 4

def gen_kgen(a):
    a(f"""
    kgen:
    s_load_dwordx4 s[4:7], s[0:1], 8
    s_load_dwordx4 s[8:11], s[0:1], 24
    s_load_dwordx4 s[12:15], s[0:1], 40
    s_load_dwordx4 s[16:19], s[0:1], 56
    s_load_dwordx2 s[20:21], s[0:1], 144
    v_and_b32 v1, 127, v0
    v_lshlrev_b32 v2, 2, v1
    v_lshlrev_b32 v1, 1, v1
    s_lshl_b32 s3, s2, 8
    v_add_u32 v1, s3, v1                    ; (d*128+n)*2
    s_lshl_b32 s22, s2, 1
    s_and_b32 s22, s22, 0xfffffffc
    s_and_b32 s23, s2, 1
    s_lshl_b32 s23, s23, 4                  ; 0 / 16
    v_lshrrev_b32 v3, 6, v0
    s_waitcnt lgkmcnt(0)
    global_load_ushort v10, v1, s[4:5]
    global_load_ushort v11, v1, s[6:7]
    global_load_ushort v12, v1, s[8:9]
    global_load_ushort v13, v1, s[10:11]
    global_load_ushort v14, v1, s[12:13]
    global_load_ushort v15, v1, s[14:15]
    s_load_dword s24, s[16:17], s22
    s_load_dword s25, s[18:19], s22
    v_readfirstlane_b32 s26, v3
    """)
    a("""
    v_lshlrev_b32 v4, 3, v0
    v_sub_u32 v4, 2047, v4                  ; lbase
    """)
    for e in range(0, 9):
        a(f"v_subrev_u32 v{30+e}, {e}, v4")
    a("v_max_i32 v38, 0, v38")
    for e in range(0, 9):
        a(f"v_cvt_f32_u32 v{40+e}, v{30+e}")
    a("v_mov_b32 v49, 0")
    for p in range(5):
        a(f"v_cvt_pk_bf16_f32 v{50+p}, v{40+2*p}, v{41+2*p}")
    a(f"s_mov_b32 s27, {KC_OFF - 0x10A00}")
    for e in range(9):
        p = e // 2
        if e % 2 == 0:
            a(f"v_and_b32 v{40+e}, 0xffff, v{50+p}")
        else:
            a(f"v_lshrrev_b32 v{40+e}, 16, v{50+p}")
    for e in range(9):
        a(f"v_lshl_add_u32 v{40+e}, v{40+e}, 2, s27")
    for e in range(9):
        a(f"v_cmp_gt_u32 vcc, 128, v{30+e}")
        a(f"v_lshlrev_b32 v{30+e}, 2, v{30+e}")
        a(f"v_add_u32 v{30+e}, {KC_OFF}, v{30+e}")
        a(f"v_cndmask_b32 v{40+e}, v{40+e}, v{30+e}, vcc")
    a(f"""
    s_waitcnt lgkmcnt(0)
    s_lshr_b32 s24, s24, s23
    s_lshl_b32 s24, s24, 16
    s_lshr_b32 s25, s25, s23
    s_lshl_b32 s25, s25, 16
    v_mov_b32 v5, s24
    v_mul_f32 v6, 0x3fb8aa3b, v5            ; t
    s_mov_b32 s28, 0x3fb8aa3b
    v_fma_f32 v7, v5, s28, -v6              ; e
    v_fmac_f32 v7, 0x32a5705f, v5
    v_exp_f32 v6, v6
    v_mul_f32 v7, {fx(0.6931471805599453)}, v7
    v_fmac_f32 v6, v6, v7
    v_cvt_pk_bf16_f32 v6, v6, v6
    v_lshlrev_b32 v6, 16, v6
    s_waitcnt vmcnt(0)
    v_lshlrev_b32 v10, 16, v10
    v_lshlrev_b32 v11, 16, v11
    v_mul_f32 v10, v6, v10                  ; dt*A_re
    v_mul_f32 v11, v6, v11                  ; dt*A_im
    v_mul_f32 v10, 0x3fb8aa3b, v10          ; *log2e
    v_mul_f32 v11, {fx(0.15915494309189535)}, v11   ; /(2pi)
    """)
    def direct(dst, l, t):
        a(f"""
        v_mul_f32 v{t}, {fx(float(l))}, v10
        v_mul_f32 v{t+1}, {fx(float(l))}, v11
        v_exp_f32 v{t}, v{t}
        v_fract_f32 v{t+1}, v{t+1}
        v_cos_f32 v{dst}, v{t+1}
        v_sin_f32 v{dst+1}, v{t+1}
        s_nop 0
        v_mul_f32 v{dst}, v{t}, v{dst}
        v_mul_f32 v{dst+1}, v{t}, v{dst+1}
        """)
    def wr(row, src, tmp, neg=False):
        a(f"v_cvt_pk_bf16_f32 v{tmp}, v{src}, {'-' if neg else ''}v{src+1}")
        a(f"ds_write_b32 v2, v{tmp} offset:{row*TROW}")
    a("""
    s_cmp_ge_u32 s26, 2
    s_cbranch_scc1 kgen_setY
    """)
    E8, E128, Q, R, T0, T1 = 20, 22, 24, 26, 28, 60
    direct(E8, 1, 28)
    direct(E128, 128, 28)
    a("""
    v_lshlrev_b32 v12, 16, v12
    v_lshlrev_b32 v13, 16, v13
    v_lshlrev_b32 v14, 16, v14
    v_lshlrev_b32 v15, 16, v15
    v_mul_f32 v12, v6, v12
    v_mul_f32 v13, v6, v13
    """)
    cmul(a, Q, 14, 12, T0)
    cmul(a, R, E128, E128, T1)
    cmul(a, E8, E8, E8, T0)
    cmul(a, R, R, R, T1)
    cmul(a, E8, E8, E8, T0)
    cmul(a, R, R, R, T1)
    cmul(a, E8, E8, E8, T0)
    for i in range(16):
        wr(QROW + i, Q, 62, neg=True)
        if i < 15: cmul(a, Q, Q, E8, T0)
        if i < 9:
            wr(32 + i, R, 63)
            if i < 8: cmul(a, R, R, E128, T1)
    a("s_branch kgen_tables_done")
    a("kgen_setY:")
    E = [None, 20, 22, 24, 26, 16, 18, 64]
    E128, X, Y2, T0, T1 = 66, 68, 70, 28, 60
    direct(E[1], 1, 28)
    direct(E128, 128, 28)
    a("v_mov_b32 v62, 0x3f80")
    a(f"ds_write_b32 v2, v62 offset:0")
    cmul(a, E[2], E[1], E[1], T0); wr(1, E[1], 63)
    cmul(a, E[3], E[2], E[1], T1); wr(2, E[2], 62)
    cmul(a, E[4], E[2], E[2], T0); wr(3, E[3], 63)
    cmul(a, E[5], E[4], E[1], T1); wr(4, E[4], 62)
    cmul(a, E[6], E[3], E[3], T0); wr(5, E[5], 63)
    cmul(a, E[7], E[4], E[3], T1); wr(6, E[6], 62)
    cmul(a, X, E128, E128, T0);    wr(7, E[7], 63)
    wr(8, E128, 62)
    for r in range(1, 8):
        cmul(a, Y2, E128, E[r], T1 if r % 2 else T0)
        wr(8 + r, Y2, 62 + (r % 2))
    S = [72, 74, 76, 78]
    a(f"v_mov_b64 v[{S[0]}:{S[0]+1}], v[{X}:{X+1}]")
    cmul(a, S[1], X, E[2], T0)
    cmul(a, S[2], X, E[4], T1)
    cmul(a, S[3], X, E[6], T0)
    cmul(a, X, X, X, T1)
    for r in range(4):
        wr(16 + r, S[r], 62 + (r % 2))
        cmul(a, S[r], S[r], E128, T0 if r % 2 else T1)
    cmul(a, Y2, X, E[4], T0)
    for r in range(4):
        wr(20 + r, S[r], 62 + (r % 2))
    for p in range(4):
        wr(24 + 2 * p, X, 62)
        wr(25 + 2 * p, Y2, 63)
        if p < 3:
            cmul(a, X, X, E128, T0)
            cmul(a, Y2, Y2, E128, T1)
    a(f"""
    kgen_tables_done:
    s_waitcnt lgkmcnt(0)
    s_barrier
    s_cmp_ge_u32 s26, 3
    s_cbranch_scc1 kgen_mfma_done
    v_and_b32 v4, 15, v0                     ; i / j / q
    v_bfe_u32 v5, v0, 4, 2                   ; g / G
    v_lshlrev_b32 v7, 4, v5                  ; g*16
    v_mul_u32_u24 v8, {TROW}, v4
    v_add_u32 v8, v8, v7                     ; i*544 + g*16
    s_mul_i32 s27, s26, {16*TROW}
    v_add_u32 v9, s27, v8                    ; A address
    v_add_u32 v8, {QROW*TROW}, v8            ; B address
    """)
    a("""
    v_mov_b32 v20, 0
    v_mov_b32 v21, 0
    v_mov_b32 v22, 0
    v_mov_b32 v23, 0
    """)
    for s in range(8):
        a(f"ds_read_b128 v[{64+8*s}:{67+8*s}], v9 offset:{64*s}")
        a(f"ds_read_b128 v[{68+8*s}:{71+8*s}], v8 offset:{64*s}")
    for s in range(8):
        a(f"s_waitcnt lgkmcnt({14-2*s})")
        a(f"v_mfma_f32_16x16x32_bf16 v[20:23], v[{64+8*s}:{67+8*s}], v[{68+8*s}:{71+8*s}], v[20:23]")
    a(f"""
    s_cmp_eq_u32 s26, 1
    s_cbranch_scc1 kgen_t1
    s_cmp_eq_u32 s26, 2
    s_cbranch_scc1 kgen_t2
    v_and_b32 v7, 1, v5
    v_lshlrev_b32 v7, 2, v7
    v_lshrrev_b32 v8, 1, v5
    v_lshl_add_u32 v7, v8, 7, v7
    v_lshl_add_u32 v7, v4, 3, v7
    v_lshlrev_b32 v7, 2, v7
    v_add_u32 v7, {KC_OFF}, v7
    v_add_u32 v8, 8, v7
    v_cmp_eq_u32 vcc, 0, v0
    v_mov_b32 v9, s25
    s_nop 0
    v_cndmask_b32 v9, 0, v9, vcc
    s_nop 4
    v_add_f32 v20, v20, v9                   ; K[0] += Dskip
    ds_write_b32 v7, v20
    ds_write_b32 v7, v21 offset:4
    ds_write_b32 v8, v22
    ds_write_b32 v8, v23 offset:4
    s_branch kgen_mfma_done
    kgen_t1:
    v_cmp_gt_u32 vcc, 2, v5
    v_lshlrev_b32 v7, 6, v5                  ; 64G
    v_add_u32 v7, 256, v7                    ; 256+64G (for G>=2: 384+64(G-2) = 256+64G)
    v_lshlrev_b32 v8, 2, v4                  ; 4q
    v_lshlrev_b32 v9, 1, v4                  ; 2q
    v_cndmask_b32 v8, v9, v8, vcc
    v_add_u32 v7, v7, v8
    v_lshlrev_b32 v7, 2, v7
    v_add_u32 v7, {KC_OFF}, v7
    v_mov_b32 v8, 128
    v_cndmask_b32 v8, v8, 8, vcc
    v_add_u32 v8, v7, v8
    s_nop 4
    ds_write_b32 v7, v20
    ds_write_b32 v7, v21 offset:4
    ds_write_b32 v8, v22
    ds_write_b32 v8, v23 offset:4
    s_branch kgen_mfma_done
    kgen_t2:
    v_lshl_add_u32 v7, v5, 6, v4
    v_lshlrev_b32 v7, 2, v7
    v_add_u32 v7, {KC_OFF + 512*4}, v7
    s_nop 7
    ds_write_b32 v7, v20
    ds_write_b32 v7, v21 offset:64
    ds_write_b32 v7, v22 offset:128
    ds_write_b32 v7, v23 offset:192
    kgen_mfma_done:
    s_waitcnt lgkmcnt(0)
    s_barrier
    """)
    for e in range(9):
        a(f"ds_read_b32 v{30+e}, v{40+e}")
    a(f"""
    s_mul_i32 s27, s2, {KCH}
    s_add_u32 s27, s27, {WS_KE}
    v_lshlrev_b32 v4, 4, v0
    v_add_u32 v4, s27, v4
    v_cmp_eq_u32 vcc, 255, v0
    s_waitcnt lgkmcnt(0)
    v_cndmask_b32 v38, v38, 0, vcc
    """)
    for p in range(4):
        a(f"v_cvt_pk_bf16_f32 v{52+p}, v{30+2*p}, v{31+2*p}")
    for p in range(4):
        a(f"v_cvt_pk_bf16_f32 v{56+p}, v{31+2*p}, v{32+2*p}")
    a(f"""
    global_store_dwordx4 v4, v[52:55], s[20:21]
    v_add_u32 v5, 4112, v4
    global_store_dwordx4 v5, v[56:59], s[20:21]
    v_cmp_gt_u32 vcc, 2, v0
    s_and_saveexec_b64 s[30:31], vcc
    s_cbranch_execz kgen_end
    v_mul_u32_u24 v6, 4112, v0
    v_add_u32 v6, s27, v6
    v_add_u32 v6, 4096, v6
    v_mov_b32 v60, 0
    v_mov_b32 v61, 0
    v_mov_b32 v62, 0
    v_mov_b32 v63, 0
    global_store_dwordx4 v6, v[60:63], s[20:21]
    kgen_end:
    s_endpgm
    """)

def gen_ln1(a):
    RS = 1088
    a(f"""
    ln1:
    s_load_dwordx2 s[4:5], s[0:1], 0
    s_load_dwordx2 s[20:21], s[0:1], 144
    s_sub_u32 s3, s2, {NK}
    s_and_b32 s6, s3, 7
    s_lshl_b32 s6, s6, 5
    s_lshr_b32 s7, s3, 3
    s_add_u32 s6, s6, s7
    v_lshrrev_b32 v3, 6, v0                  ; wave
    v_and_b32 v1, 63, v0                     ; lane
    v_lshlrev_b32 v4, 11, v3
    v_lshl_add_u32 v4, v1, 4, v4
    s_lshl_b32 s7, s6, 13                    ; rb*8*1024
    v_add_u32 v4, s7, v4
    v_readfirstlane_b32 s26, v3
    s_waitcnt lgkmcnt(0)
    global_load_dwordx4 v[8:11], v4, s[4:5]
    global_load_dwordx4 v[12:15], v4, s[4:5] offset:1024
    v_mul_u32_u24 v5, {2*RS}, v3
    v_lshl_add_u32 v5, v1, 4, v5
    v_mov_b32 v6, 0x3f803f80
    v_and_b32 v7, 15, v1
    v_lshrrev_b32 v16, 2, v7                 ; r
    v_and_b32 v7, 3, v7                      ; c
    v_mul_u32_u24 v16, {RS}, v16
    v_lshl_add_u32 v16, v7, 3, v16           ; r*RS + c*8
    v_lshrrev_b32 v7, 4, v1                  ; G
    v_lshl_add_u32 v16, v7, 5, v16           ; + G*32
    v_lshl_add_u32 v16, v3, 8, v16
    v_lshl_add_u32 v17, v3, 7, v1
    v_lshlrev_b32 v17, 12, v17
    s_lshl_b32 s7, s6, 4
    s_add_u32 s7, s7, {WS_XT}
    v_add_u32 v17, s7, v17
    s_waitcnt vmcnt(1)
    ds_write_b128 v5, v[8:11]
    v_dot2_f32_bf16 v20, v8, v6, 0
    v_dot2_f32_bf16 v21, v8, v8, 0
    v_dot2_f32_bf16 v20, v9, v6, v20
    v_dot2_f32_bf16 v21, v9, v9, v21
    v_dot2_f32_bf16 v20, v10, v6, v20
    v_dot2_f32_bf16 v21, v10, v10, v21
    v_dot2_f32_bf16 v20, v11, v6, v20
    v_dot2_f32_bf16 v21, v11, v11, v21
    s_waitcnt vmcnt(0)
    ds_write_b128 v5, v[12:15] offset:{RS}
    v_dot2_f32_bf16 v22, v12, v6, 0
    v_dot2_f32_bf16 v23, v12, v12, 0
    v_dot2_f32_bf16 v22, v13, v6, v22
    v_dot2_f32_bf16 v23, v13, v13, v23
    v_dot2_f32_bf16 v22, v14, v6, v22
    v_dot2_f32_bf16 v23, v14, v14, v23
    v_dot2_f32_bf16 v22, v15, v6, v22
    v_dot2_f32_bf16 v23, v15, v15, v23
    s_waitcnt lgkmcnt(0)
    s_barrier
    ds_read_b64_tr_b16 v[24:25], v16
    ds_read_b64_tr_b16 v[26:27], v16 offset:{4*RS}
    ds_read_b64_tr_b16 v[28:29], v16 offset:128
    ds_read_b64_tr_b16 v[30:31], v16 offset:{4*RS+128}
    """)
    for dpp in ["row_shr:1", "row_shr:2", "row_shr:4", "row_shr:8", "row_bcast:15 row_mask:0xa", "row_bcast:31 row_mask:0xc"]:
        m = "" if "row_mask" in dpp else " row_mask:0xf"
        for r in range(20, 24):
            a(f"v_add_f32_dpp v{r}, v{r}, v{r} {dpp}{m} bank_mask:0xf")
    a(f"""
    s_waitcnt lgkmcnt(0)
    global_store_dwordx4 v17, v[24:27], s[20:21]
    v_add_u32 v18, {64*4096}, v17
    global_store_dwordx4 v18, v[28:31], s[20:21]
    v_readlane_b32 s8, v20, 63
    v_readlane_b32 s9, v21, 63
    v_readlane_b32 s10, v22, 63
    v_readlane_b32 s11, v23, 63
    s_nop 1
    v_mov_b32 v32, {fx(1.0/512)}
    v_mul_f32 v33, s8, v32                   ; mean0
    v_mul_f32 v34, s9, v32                   ; E[x^2]
    v_mul_f32 v35, s10, v32
    v_mul_f32 v36, s11, v32
    v_fma_f32 v34, -v33, v33, v34            ; var0
    v_fma_f32 v36, -v35, v35, v36
    v_max_f32 v34, 0, v34
    v_max_f32 v36, 0, v36
    v_add_f32 v34, {fx(1e-5)}, v34
    v_add_f32 v36, {fx(1e-5)}, v36
    v_rsq_f32 v40, v34
    v_rsq_f32 v42, v36
    s_nop 0
    v_mul_f32 v41, -v33, v40
    v_mul_f32 v43, -v35, v42
    s_lshl_b32 s7, s6, 6
    s_lshl_b32 s8, s26, 4
    s_add_u32 s7, s7, s8
    s_add_u32 s7, s7, {WS_ST1}
    v_mov_b32 v44, s7
    v_cmp_eq_u32 vcc, 0, v1
    s_and_saveexec_b64 s[30:31], vcc
    s_cbranch_execz ln1_end
    global_store_dwordx4 v44, v[40:43], s[20:21]
    ln1_end:
    s_endpgm
    """)

def colsum_reduce(a, accs, red_base, out_code):
    pass

def gen_mod(a):
    a(f"""
    modr:
    s_load_dwordx4 s[4:7], s[0:1], 112       ; c, w_mod
    s_load_dwordx2 s[20:21], s[0:1], 144
    s_sub_u32 s3, s2, {NK+NLN}
    s_and_b32 s8, s3, 7
    s_mul_i32 s8, s8, 12
    s_lshr_b32 s9, s3, 3
    s_add_u32 s8, s8, s9
    v_lshrrev_b32 v3, 2, v0                  ; rg
    v_and_b32 v4, 3, v0                      ; cc
    v_mul_u32_u24 v5, {8*6144}, v3
    v_lshl_add_u32 v5, v4, 4, v5
    s_lshl_b32 s9, s8, 6
    v_add_u32 v5, s9, v5
    v_lshlrev_b32 v6, 4, v3                  ; c offset
    s_waitcnt lgkmcnt(0)
    global_load_dwordx4 v[8:11], v6, s[4:5]
    """)
    for i in range(8):
        if i: a(f"v_add_u32 v5, 6144, v5")
        a(f"global_load_dwordx4 v[{16+4*i}:{19+4*i}], v5, s[6:7]")
    a("s_waitcnt vmcnt(8)")
    for i in range(8):
        src = 8 + i // 2
        if i % 2 == 0: a(f"v_lshlrev_b32 v{48+i}, 16, v{src}")
        else: a(f"v_and_b32 v{48+i}, 0xffff0000, v{src}")
    for i in range(8): a(f"v_mul_f32 v{56+i}, {fx(-1.4426950408889634)}, v{48+i}")
    for i in range(8): a(f"v_exp_f32 v{56+i}, v{56+i}")
    for i in range(8): a(f"v_add_f32 v{56+i}, 1.0, v{56+i}")
    for i in range(8): a(f"v_rcp_f32 v{56+i}, v{56+i}")
    for i in range(8): a(f"v_mul_f32 v{48+i}, v{48+i}, v{56+i}")
    for i in range(8):
        a(f"v_cvt_pk_bf16_f32 v{56+i}, v{48+i}, 0")
        a(f"v_cvt_pk_bf16_f32 v{64+i}, 0, v{48+i}")
    for c in range(8): a(f"v_mov_b32 v{72+c}, 0")
    for i in range(8):
        a(f"s_waitcnt vmcnt({7-i})")
        for m in range(4):
            a(f"v_dot2_f32_bf16 v{72+2*m}, v{16+4*i+m}, v{56+i}, v{72+2*m}")
            a(f"v_dot2_f32_bf16 v{73+2*m}, v{16+4*i+m}, v{64+i}, v{73+2*m}")
    a(f"""
    v_mul_u32_u24 v5, 144, v3
    v_lshl_add_u32 v5, v4, 5, v5
    s_nop 1
    ds_write_b128 v5, v[72:75]
    ds_write_b128 v5, v[76:79] offset:16
    v_and_b32 v6, 31, v0                     ; column
    v_lshrrev_b32 v7, 5, v0                  ; part 0..7
    v_mul_u32_u24 v7, {8*144}, v7
    v_lshl_add_u32 v7, v6, 2, v7
    s_waitcnt lgkmcnt(0)
    s_barrier
    """)
    for i in range(8): a(f"ds_read_b32 v{16+i}, v7 offset:{144*i}")
    a("s_waitcnt lgkmcnt(0)")
    a("""
    v_add_f32 v16, v16, v17
    v_add_f32 v18, v18, v19
    v_add_f32 v20, v20, v21
    v_add_f32 v22, v22, v23
    v_add_f32 v16, v16, v18
    v_add_f32 v20, v20, v22
    v_add_f32 v16, v16, v20
    v_lshlrev_b32 v5, 2, v0
    ds_write_b32 v5, v16 offset:9216
    s_waitcnt lgkmcnt(0)
    s_barrier
    v_cmp_gt_u32 vcc, 32, v0
    s_and_saveexec_b64 s[30:31], vcc
    s_cbranch_execz mod_end
    """)
    for i in range(8): a(f"ds_read_b32 v{16+i}, v5 offset:{9216+128*i}")
    a(f"""
    s_waitcnt lgkmcnt(0)
    v_add_f32 v16, v16, v17
    v_add_f32 v18, v18, v19
    v_add_f32 v20, v20, v21
    v_add_f32 v22, v22, v23
    v_add_f32 v16, v16, v18
    v_add_f32 v20, v20, v22
    v_add_f32 v16, v16, v20
    v_cvt_pk_bf16_f32 v16, v16, v16
    v_lshlrev_b32 v16, 16, v16
    s_lshl_b32 s9, s8, 7
    s_add_u32 s9, s9, {WS_MOD}
    v_add_u32 v5, s9, v5
    global_store_dword v5, v16, s[20:21]
    mod_end:
    s_endpgm
    """)

def gen_w2f(a):
    RS = 1088
    a(f"""
    w2f:
    s_load_dwordx2 s[4:5], s[0:1], 96
    s_load_dwordx2 s[20:21], s[0:1], 144
    s_sub_u32 s3, s2, {NK+NLN+NMOD}          ; k step s
    v_lshrrev_b32 v3, 6, v0
    v_and_b32 v1, 63, v0
    v_lshlrev_b32 v4, 12, v3
    v_lshl_add_u32 v4, v1, 4, v4
    s_lshl_b32 s7, s3, 14                    ; s*16 rows*1024
    v_add_u32 v4, s7, v4
    s_waitcnt lgkmcnt(0)
    global_load_dwordx4 v[8:11], v4, s[4:5]
    global_load_dwordx4 v[12:15], v4, s[4:5] offset:1024
    global_load_dwordx4 v[16:19], v4, s[4:5] offset:2048
    global_load_dwordx4 v[20:23], v4, s[4:5] offset:3072
    v_mul_u32_u24 v5, {4*RS}, v3
    v_lshl_add_u32 v5, v1, 4, v5
    v_and_b32 v7, 15, v1
    v_lshrrev_b32 v6, 2, v7                  ; r
    v_and_b32 v7, 3, v7                      ; c
    v_lshrrev_b32 v24, 5, v1                 ; g
    v_lshl_add_u32 v6, v24, 3, v6            ; 8g + r
    v_mul_u32_u24 v6, {RS}, v6
    v_lshl_add_u32 v6, v7, 3, v6
    v_bfe_u32 v7, v1, 4, 1
    v_lshl_add_u32 v6, v7, 5, v6
    v_lshl_add_u32 v6, v3, 8, v6
    v_mul_u32_u24 v25, {4*86*1024}, v3
    v_lshl_add_u32 v25, v1, 4, v25
    s_lshl_b32 s7, s3, 10
    s_add_u32 s7, s7, {WS_W2F}
    v_add_u32 v25, s7, v25
    s_waitcnt vmcnt(3)
    ds_write_b128 v5, v[8:11]
    s_waitcnt vmcnt(2)
    ds_write_b128 v5, v[12:15] offset:{RS}
    s_waitcnt vmcnt(1)
    ds_write_b128 v5, v[16:19] offset:{2*RS}
    s_waitcnt vmcnt(0)
    ds_write_b128 v5, v[20:23] offset:{3*RS}
    s_waitcnt lgkmcnt(0)
    s_barrier
    """)
    for m in range(4):
        a(f"ds_read_b64_tr_b16 v[{28+4*m}:{29+4*m}], v6 offset:{64*m}")
        a(f"ds_read_b64_tr_b16 v[{30+4*m}:{31+4*m}], v6 offset:{64*m+4*RS}")
    for m in range(4):
        a(f"s_waitcnt lgkmcnt({6-2*m})")
        a(f"global_store_dwordx4 v25, v[{28+4*m}:{31+4*m}], s[20:21]")
        if m < 3: a(f"v_add_u32 v25, {86*1024}, v25")
    a("s_endpgm")

def gen_A(a):
    a(f"""
    s_cmp_lt_u32 s2, {NK}
    s_cbranch_scc1 kgen
    s_cmp_lt_u32 s2, {NK+NLN}
    s_cbranch_scc1 ln1
    s_cmp_lt_u32 s2, {NK+NLN+NMOD}
    s_cbranch_scc1 modr
    s_cmp_lt_u32 s2, {A_GRID}
    s_cbranch_scc1 w2f
    s_endpgm
    """)
    gen_ln1(a); gen_mod(a); gen_w2f(a); gen_kgen(a)

def kernel(name, body, vgpr, sgpr=96):
    a = Asm()
    body(a)
    code = f""".globl {name}
.p2align 8
.type {name},@function
{name}:
{a.text()}"""
    desc = f""".amdhsa_kernel {name}
  .amdhsa_next_free_vgpr {vgpr}
  .amdhsa_next_free_sgpr {sgpr}
  .amdhsa_accum_offset {((vgpr + 3) // 4) * 4}
  .amdhsa_group_segment_fixed_size 0
  .amdhsa_kernarg_size 152
  .amdhsa_user_sgpr_count 2
  .amdhsa_user_sgpr_kernarg_segment_ptr 1
  .amdhsa_system_sgpr_workgroup_id_x 1
  .amdhsa_float_denorm_mode_32 3
.end_amdhsa_kernel
"""
    return code, desc

def build(kernels):
    hdr = "; generated by dev/gen.py (hand-written generator)\n"
    for (name, body, vgpr, grid, block, lds) in kernels:
        hdr += f"; @launch kernel={name} grid=({grid},1,1) block=({block},1,1) lds={lds}\n"
    out = hdr + '.amdgcn_target "amdgcn-amd-amdhsa--gfx950"\n.text\n'
    descs = ""
    for (name, body, vgpr, grid, block, lds) in kernels:
        c, d = kernel(name, body, vgpr)
        out += c
        descs += ".p2align 6\n" + d
    out += '.section .rodata,"a"\n' + descs
    return out

if __name__ == "__main__":
    ks = [("prep_kernel", gen_A, 128, A_GRID, 256, A_LDS)]
    try:
        import gen2
        ks += gen2.kernels()
    except ImportError:
        pass
    s = build(ks)
    path = sys.argv[1] if len(sys.argv) > 1 else "out.s"
    open(path, "w").write(s)
    print("wrote", path, len(s))
```

```python
from g2 import *
import g2

NCONV, NCS = 256, 43
B_GRID = NCONV + NCS
KCP = 4160
KCHL = 4 * KCP
H_OFF = 2 * KCHL
HCH = 4608
RED_OFF = H_OFF + 2 * HCH
B_LDS = RED_OFF + 16384

def gen_conv(a):
    VA, VB, VY = 64, 96, 128
    a(f"""
    conv:
    s_load_dwordx2 s[20:21], s[0:1], 144
    v_lshrrev_b32 v3, 6, v0
    v_and_b32 v1, 63, v0
    v_lshlrev_b32 v5, 4, v0                  ; tid*16
    v_readfirstlane_b32 s26, v3              ; wave
    s_lshl_b32 s29, s2, 1                    ; d0
    s_mul_i32 s32, s29, {KCH}
    s_add_u32 s32, s32, {WS_KE}
    s_add_u32 s33, s32, {KCH}
    s_lshl_b32 s36, s29, 12
    s_add_u32 s36, s36, {WS_XT}
    s_add_u32 s37, s36, 4096
    v_lshlrev_b32 v6, 5, v0
    s_mov_b32 s38, {WS_ST1}
    s_lshr_b32 s27, s26, 1                   ; ch
    s_and_b32 s28, s26, 1                    ; hf
    s_add_u32 s30, s29, s27                  ; d
    s_waitcnt lgkmcnt(0)
    """)
    srd(a, 8, 20, WS_SIZE)
    a.stamp(0)
    a(f"""
    buffer_load_dwordx4 v[8:11], v5, s[8:11], s36 offen          ; x ch0
    buffer_load_dwordx4 v[12:15], v5, s[8:11], s37 offen         ; x ch1
    buffer_load_dwordx4 v[16:19], v6, s[8:11], s38 offen         ; stats
    buffer_load_dwordx4 v[20:23], v6, s[8:11], s38 offen offset:16
    buffer_load_dwordx4 v[24:27], v5, s[8:11], s32 offen         ; K ch0
    buffer_load_dwordx2 v[28:29], v5, s[8:11], s32 offen offset:16
    buffer_load_dwordx4 v[32:35], v5, s[8:11], s33 offen         ; K ch1
    buffer_load_dwordx2 v[36:37], v5, s[8:11], s33 offen offset:16
    s_lshl_b32 s31, s29, 2
    s_add_u32 s4, s20, s31
    s_addc_u32 s5, s21, 0
    s_load_dwordx2 s[12:13], s[4:5], {WS_MOD}            ; sa
    s_load_dwordx2 s[14:15], s[4:5], {WS_MOD + 2048}     ; ca
    s_load_dwordx2 s[16:17], s[4:5], {WS_MOD + 4096}     ; ga
    """)
    a.stamp(1)
    a(f"""
    v_and_b32 v7, 15, v1                     ; j / i
    v_lshrrev_b32 v2, 4, v1                  ; G / g
    v_lshlrev_b32 v4, 5, v7
    v_lshl_add_u32 v4, v2, 3, v4
    s_lshl_b32 s39, s30, 12
    s_lshl_b32 s40, s28, 11
    s_add_u32 s39, s39, s40
    s_add_u32 s41, s39, {WS_XT}
    s_add_u32 s42, s39, {WS_X2T}
    v_mov_b32 v56, 0
    v_mov_b32 v57, 0
    v_mov_b32 v58, 0
    v_mov_b32 v59, 0
    v_lshrrev_b32 v60, 1, v0
    v_mul_u32_u24 v60, {KCP}, v60
    v_and_b32 v61, 1, v0
    v_lshl_add_u32 v60, v61, 4, v60
    v_add_u32 v60, 4096, v60
    v_bfe_u32 v61, v0, 5, 1
    v_mul_u32_u24 v61, {HCH}, v61
    v_and_b32 v62, 31, v0
    v_lshl_add_u32 v61, v62, 4, v61
    v_add_u32 v61, {H_OFF}, v61
    v_cmp_gt_u32 vcc, 16, v0
    s_cmp_eq_u32 s26, 1
    s_cbranch_scc1 conv_padh
    s_cmp_eq_u32 s26, 0
    s_cbranch_scc0 conv_pad_done
    s_and_saveexec_b64 s[44:45], vcc
    ds_write_b128 v60, v[56:59]
    s_mov_b64 exec, s[44:45]
    s_branch conv_pad_done
    conv_padh:
    ds_write_b128 v61, v[56:59]
    conv_pad_done:
    v_sub_u32 v60, 3, v7
    v_and_b32 v60, 3, v60                    ; c
    v_mul_u32_u24 v61, {KCP - 2}, v60
    v_lshlrev_b32 v62, 1, v7
    v_sub_u32 v61, v61, v62
    v_lshl_add_u32 v61, v2, 4, v61
    s_mul_i32 s43, s27, {KCHL}
    s_lshl_b32 s44, s28, 8
    s_sub_u32 s43, s43, s44
    s_add_u32 s43, s43, {2*(2031 - 32*59)}
    v_add_u32 v40, s43, v61                  ; v40 = A base
    v_lshlrev_b32 v41, 5, v7
    v_lshl_add_u32 v41, v2, 4, v41
    s_mul_i32 s43, s27, {HCH}
    s_sub_u32 s43, s43, s44
    s_add_u32 s43, s43, {H_OFF + 2*(240 - 96)}
    v_add_u32 v41, s43, v41                  ; v41 = B base
    v_add_u32 v42, {H_OFF + 512}, v5
    """)
    for t in range(8):
        for r in range(4): a(f"v_mov_b32 v{VY+4*t+r}, 0")
    a(f"""
    s_waitcnt lgkmcnt(0)
    v_add_f32 v44, 1.0, s14
    v_add_f32 v45, 1.0, s15
    v_cvt_pk_bf16_f32 v44, v44, v45
    v_mov_b32 v46, s12
    v_mov_b32 v47, s13
    v_and_b32 v45, 0xffff0000, v44
    v_lshlrev_b32 v44, 16, v44
    s_cmp_eq_u32 s27, 0
    s_cselect_b32 s46, s16, s17
    s_waitcnt vmcnt(4)
    """)
    a.stamp(2)
    for e in range(8):
        a(f"v_lshlrev_b32 v{64+e}, 16, v{16+e}")
        a(f"v_and_b32 v{72+e}, 0xffff0000, v{16+e}")
    for ch in range(2):
        src = 8 + 4 * ch; gam = 44 + ch; sa = 46 + ch
        for e in range(8):
            a(f"v_lshlrev_b32 v{80+e}, 16, v{src + e//2}" if e % 2 == 0 else f"v_and_b32 v{80+e}, 0xffff0000, v{src + e//2}")
        for e in range(8): a(f"v_fma_f32 v{80+e}, v{80+e}, v{64+e}, v{72+e}")
        for e in range(8): a(f"v_fma_f32 v{80+e}, v{80+e}, v{gam}, v{sa}")
        for p in range(4): a(f"v_cvt_pk_bf16_f32 v{src+p}, v{80+2*p}, v{81+2*p}")
        a(f"ds_write_b128 v42, v[{src}:{src+3}] offset:{ch*HCH}")
    for ch in range(2):
        D = 24 + 8 * ch
        a(f"s_waitcnt vmcnt({2 - 2*ch})")
        base = ch * KCHL
        a(f"ds_write_b128 v5, v[{D}:{D+3}] offset:{base}")
        for k in range(4): a(f"v_alignbit_b32 v{88+k}, v{D+k+1}, v{D+k}, 16")
        a(f"ds_write_b128 v5, v[88:91] offset:{base + KCP}")
        a(f"v_mov_b64 v[92:93], v[{D+2}:{D+3}]" if False else f"v_mov_b32 v92, v{D+1}")
        a(f"v_mov_b32 v93, v{D+2}")
        a(f"v_mov_b32 v94, v{D+3}")
        a(f"v_mov_b32 v95, v{D+4}")
        a(f"ds_write_b128 v5, v[92:95] offset:{base + 2*KCP}")
        a(f"v_mov_b32 v48, v89")
        a(f"v_mov_b32 v49, v90")
        a(f"v_mov_b32 v50, v91")
        a(f"v_alignbit_b32 v51, v{D+5}, v{D+4}, 16")
        a(f"ds_write_b128 v5, v[48:51] offset:{base + 3*KCP}")
    a("s_waitcnt lgkmcnt(0)")
    a.stamp(3)
    a("s_barrier")
    a.stamp(4)
    T = LdsTracker(a)
    def ldA(p, r):
        off = 512 * (7 - p) + 64 * (3 - r)
        T.issue(f"ds_read_b64 v[{VA+4*p}:{VA+4*p+1}], v40 offset:{off}", [f"A{p}"])
        T.issue(f"ds_read_b64 v[{VA+4*p+2}:{VA+4*p+3}], v40 offset:{off+8}", [f"A{p}"])
    def ldB(k, r):
        off = 512 * k + 64 * (3 - r)
        T.issue(f"ds_read_b128 v[{VB+4*k}:{VB+4*k+3}], v41 offset:{off}", [f"B{k}"])
    for p in range(8):
        ldB(7 - p, 0); ldA(p, 0)
    for i in range(4):
        a(f"buffer_load_dwordx2 v[{48+2*i}:{49+2*i}], v4, s[8:11], s41 offen offset:{512*i}")
    a(f"""
    s_lshr_b32 s47, s2, 3
    s_mul_i32 s47, s47, 44032
    s_add_u32 s47, s47, {WS_W1F}
    v_lshlrev_b32 v8, 6, v0                  ; tid*64
    buffer_load_dword v9, v8, s[8:11], s47 offen
    s_add_u32 s47, s47, 16384
    buffer_load_dword v10, v8, s[8:11], s47 offen
    s_add_u32 s47, s47, 16384
    v_min_u32 v8, {175*64}, v8
    buffer_load_dword v11, v8, s[8:11], s47 offen
    """)
    for r in range(4):
        for p in range(8):
            for t in range(7, p - 1, -1):
                k = t - p
                T.need([f"A{p}", f"B{k}"])
                a(f"v_mfma_f32_16x16x32_bf16 v[{VY+4*t}:{VY+4*t+3}], v[{VA+4*p}:{VA+4*p+3}], v[{VB+4*k}:{VB+4*k+3}], v[{VY+4*t}:{VY+4*t+3}]")
                if t == 7 and r < 3: ldB(7 - p, r + 1)
            if r < 3: ldA(p, r + 1)
    a.stamp(5)
    a(f"""
    s_lshl_b32 s43, s26, 12
    s_add_u32 s43, s43, {RED_OFF}
    v_lshlrev_b32 v33, 4, v1
    v_add_u32 v34, s43, v33
    s_xor_b32 s43, s26, 1
    s_lshl_b32 s43, s43, 12
    s_add_u32 s43, s43, {RED_OFF}
    v_add_u32 v35, s43, v33
    s_cmp_eq_u32 s28, 1
    s_cbranch_scc1 conv_hf1
    """)
    def tail(hf):
        keep, send = 4 * hf, 4 * (1 - hf)
        a("s_nop 1")
        for i in range(4):
            t = send + i
            a(f"ds_write_b128 v34, v[{VY+4*t}:{VY+4*t+3}] offset:{1024*i}")
        a("s_waitcnt vmcnt(3)")
        for i in range(4):
            x0, x1 = 48 + 2 * i, 49 + 2 * i
            a(f"v_lshlrev_b32 v{80+4*i}, 16, v{x0}")
            a(f"v_and_b32 v{81+4*i}, 0xffff0000, v{x0}")
            a(f"v_lshlrev_b32 v{82+4*i}, 16, v{x1}")
            a(f"v_and_b32 v{83+4*i}, 0xffff0000, v{x1}")
        for i in range(4):
            for r in range(4): a(f"v_fma_f32 v{80+4*i+r}, s46, v{VY+4*(keep+i)+r}, v{80+4*i+r}")
        a("s_waitcnt lgkmcnt(0)")
        a("s_barrier")
        for i in range(4): a(f"ds_read_b128 v[{64+4*i}:{67+4*i}], v35 offset:{1024*i}")
        for i in range(4):
            a(f"s_waitcnt lgkmcnt({3-i})")
            for r in range(4): a(f"v_fma_f32 v{80+4*i+r}, s46, v{64+4*i+r}, v{80+4*i+r}")
            a(f"v_cvt_pk_bf16_f32 v{12+2*i}, v{80+4*i}, v{81+4*i}")
            a(f"v_cvt_pk_bf16_f32 v{13+2*i}, v{82+4*i}, v{83+4*i}")
            a(f"buffer_store_dwordx2 v[{12+2*i}:{13+2*i}], v4, s[8:11], s42 offen offset:{512*i}{SC}")
        a("s_endpgm")
    tail(0)
    a("conv_hf1:")
    tail(1)

def gen_cs(a):
    RED1 = 0; RED2 = 9216; RED3 = 2 * 9216
    a(f"""
    csr:
    s_load_dwordx4 s[4:7], s[0:1], 80        ; w1, b1
    s_load_dwordx2 s[20:21], s[0:1], 144
    s_sub_u32 s3, s2, {NCONV}                ; fblk
    v_lshrrev_b32 v3, 2, v0                  ; rg
    v_and_b32 v4, 3, v0                      ; cc
    v_mul_u32_u24 v5, {8*2752}, v3
    v_lshl_add_u32 v5, v4, 4, v5
    s_lshl_b32 s9, s3, 6
    v_add_u32 v5, s9, v5
    v_lshlrev_b32 v6, 5, v3
    s_waitcnt lgkmcnt(0)
    s_add_u32 s12, s20, {WS_MOD + 3*2048}
    s_addc_u32 s13, s21, 0
    global_load_dwordx4 v[8:11], v6, s[12:13]
    global_load_dwordx4 v[12:15], v6, s[12:13] offset:16
    global_load_dwordx4 v[16:19], v6, s[12:13] offset:2048
    global_load_dwordx4 v[20:23], v6, s[12:13] offset:2064
    """)
    for i in range(8):
        if i: a("v_add_u32 v5, 2752, v5")
        a(f"global_load_dwordx4 v[{24+4*i}:{27+4*i}], v5, s[4:5]")
    a(f"""
    v_and_b32 v7, 31, v0
    v_lshlrev_b32 v7, 1, v7
    s_lshl_b32 s9, s3, 6
    v_add_u32 v7, s9, v7
    global_load_ushort v56, v7, s[6:7]
    v_mov_b32 v57, 0x3f803f80
    s_waitcnt vmcnt(9)
    """)
    for i in range(8): a(f"v_add_f32 v{16+i}, 1.0, v{16+i}")
    for i in range(4): a(f"v_cvt_pk_bf16_f32 v{58+i}, v{16+2*i}, v{17+2*i}")
    for i in range(8):
        a(f"v_lshlrev_b32 v{16+i}, 16, v{58+i//2}" if i % 2 == 0 else f"v_and_b32 v{16+i}, 0xffff0000, v{58+i//2}")
    for e in range(16): a(f"v_mov_b32 v{96+e}, 0")
    for u in range(4):
        a(f"s_waitcnt vmcnt({1 + 6 - 2*u})")
        for h in range(2):
            i = 2 * u + h
            for e in range(8):
                src = 24 + 4 * i + e // 2
                a(f"v_lshlrev_b32 v{112+8*h+e}, 16, v{src}" if e % 2 == 0 else f"v_and_b32 v{112+8*h+e}, 0xffff0000, v{src}")
            for e in range(8): a(f"v_fmac_f32 v{104+e}, v{8+i}, v{112+8*h+e}")
            for e in range(8): a(f"v_mul_f32 v{112+8*h+e}, v{16+i}, v{112+8*h+e}")
        for e in range(8): a(f"v_cvt_pk_bf16_f32 v{64+e}, v{112+e}, v{120+e}")
        for e in range(8): a(f"v_dot2_f32_bf16 v{96+e}, v{64+e}, v57, v{96+e}")
    a(f"""
    v_mul_u32_u24 v5, 144, v3
    v_lshl_add_u32 v5, v4, 5, v5
    s_nop 1
    ds_write_b128 v5, v[96:99] offset:{RED1}
    ds_write_b128 v5, v[100:103] offset:{RED1+16}
    ds_write_b128 v5, v[104:107] offset:{RED2}
    ds_write_b128 v5, v[108:111] offset:{RED2+16}
    v_and_b32 v6, 31, v0
    v_lshrrev_b32 v7, 5, v0
    v_mul_u32_u24 v7, {8*144}, v7
    v_lshl_add_u32 v7, v6, 2, v7
    s_waitcnt lgkmcnt(0)
    s_barrier
    """)
    for i in range(8): a(f"ds_read_b32 v{16+i}, v7 offset:{RED1 + 144*i}")
    for i in range(8): a(f"ds_read_b32 v{24+i}, v7 offset:{RED2 + 144*i}")
    a("s_waitcnt lgkmcnt(0)")
    def tree(b):
        a(f"""
        v_add_f32 v{b}, v{b}, v{b+1}
        v_add_f32 v{b+2}, v{b+2}, v{b+3}
        v_add_f32 v{b+4}, v{b+4}, v{b+5}
        v_add_f32 v{b+6}, v{b+6}, v{b+7}
        v_add_f32 v{b}, v{b}, v{b+2}
        v_add_f32 v{b+4}, v{b+4}, v{b+6}
        v_add_f32 v{b}, v{b}, v{b+4}
        """)
    tree(16); tree(24)
    a(f"""
    v_lshlrev_b32 v5, 2, v0
    ds_write_b32 v5, v16 offset:{RED3}
    ds_write_b32 v5, v24 offset:{RED3+1024}
    s_waitcnt vmcnt(0) lgkmcnt(0)
    s_barrier
    v_cmp_gt_u32 vcc, 32, v0
    s_and_saveexec_b64 s[30:31], vcc
    s_cbranch_execz cs_end
    """)
    for i in range(8): a(f"ds_read_b32 v{16+i}, v5 offset:{RED3 + 128*i}")
    for i in range(8): a(f"ds_read_b32 v{24+i}, v5 offset:{RED3 + 1024 + 128*i}")
    a("s_waitcnt lgkmcnt(0)")
    tree(16); tree(24)
    a(f"""
    v_lshlrev_b32 v56, 16, v56
    v_add_f32 v24, v24, v56
    s_lshl_b32 s9, s3, 7
    s_add_u32 s10, s9, {WS_CS}
    v_add_u32 v6, s10, v5
    s_add_u32 s10, s9, {WS_B1P}
    v_add_u32 v7, s10, v5
    global_store_dword v6, v16, s[20:21]{SC}
    global_store_dword v7, v24, s[20:21]{SC}
    cs_end:
    s_endpgm
    """)

def gen_B(a):
    a(f"""
    s_cmp_lt_u32 s2, {NCONV}
    s_cbranch_scc1 conv
    s_cmp_lt_u32 s2, {B_GRID}
    s_cbranch_scc1 csr
    s_endpgm
    """)
    gen_cs(a); gen_conv(a)

C_GRID = 240
C_SLOT = 28672
C_NS = 4
C_TAB = C_NS * C_SLOT
C_LDS = C_TAB + 768

def gen_C(a):
    ACC, AQ, AS, FB = 64, 112, 120, 128
    a(f"""
    s_cmp_ge_u32 s2, {C_GRID}
    s_cbranch_scc1 c_end
    s_load_dwordx2 s[20:21], s[0:1], 144
    s_load_dwordx2 s[22:23], s[0:1], 96
    v_lshrrev_b32 v3, 6, v0
    v_and_b32 v1, 63, v0
    s_and_b32 s4, s2, 7
    s_lshl_b32 s4, s4, 1
    s_bfe_u32 s5, s2, 0x10003
    s_add_u32 s4, s4, s5                     ; lt
    s_lshr_b32 s5, s2, 4                     ; fg
    v_readfirstlane_b32 s26, v3              ; wave
    v_lshlrev_b32 v4, 4, v1                  ; lane*16
    v_lshrrev_b32 v5, 4, v1
    v_lshlrev_b32 v6, 2, v5
    v_and_b32 v7, 15, v1
    v_xor_b32 v6, v6, v7
    v_lshlrev_b32 v6, 4, v6
    v_lshl_add_u32 v5, v5, 12, v6
    s_mul_i32 s6, s5, {3*32*1024}
    s_add_u32 s6, s6, {WS_W1F}
    s_mul_i32 s7, s26, 3
    """)
    for i in range(3):
        a(f"""
        s_add_u32 s12, s7, {i}
        s_lshr_b32 s13, s12, 2
        s_and_b32 s12, s12, 3
        s_lshl_b32 s13, s13, 15
        s_lshl_b32 s12, s12, 10
        s_add_u32 s12, s12, s13
        s_add_u32 s{30+i}, s12, s6
        """)
    a(f"""
    s_lshl_b32 s12, s26, 16
    s_lshl_b32 s13, s4, 8
    s_add_u32 s12, s12, s13
    s_add_u32 s33, s12, {WS_X2T}
    s_mul_i32 s34, s26, 3072
    s_lshl_b32 s35, s26, 12
    s_add_u32 s35, s35, 12288
    s_and_b32 s36, s5, 7
    s_waitcnt lgkmcnt(0)
    """)
    srd(a, 8, 20, WS_SIZE)
    a.stamp(0)
    def dma_setup(c):
        a(f"s_add_u32 s37, s36, {c}\ns_and_b32 s37, s37, 7\ns_lshl_b32 s38, s37, 18\ns_lshl_b32 s37, s37, 12")
    def dma_one(c, i):
        slot = (c % C_NS) * C_SLOT
        if i < 3:
            a(f"s_add_u32 m0, s34, {slot + 1024*i}")
            a(f"s_add_u32 s12, s{30+i}, s37")
            a(f"buffer_load_dwordx4 v4, s[8:11], s12 offen lds")
        else:
            j = i - 3
            a(f"s_add_u32 m0, s35, {slot + 1024*j}")
            a(f"s_add_u32 s12, s33, s38")
            if j: a(f"s_add_u32 s12, s12, {16384*j}")
            a(f"buffer_load_dwordx4 v5, s[8:11], s12 offen lds")
    for c in range(2):
        dma_setup(c)
        for i in range(7): dma_one(c, i)
    a(f"""
    v_lshlrev_b32 v8, 2, v0
    s_mul_i32 s12, s5, 384
    s_add_u32 s13, s12, {WS_CS}
    s_add_u32 s12, s12, {WS_B1P}
    buffer_load_dword v10, v8, s[8:11], s13 offen
    buffer_load_dword v11, v8, s[8:11], s12 offen
    """)
    dma_setup(2)
    for i in range(7): dma_one(2, i)
    a.stamp(1)
    a(f"""
    v_and_b32 v6, 15, v1
    v_lshrrev_b32 v7, 2, v6                  ; r
    v_and_b32 v6, 3, v6                      ; c
    v_lshrrev_b32 v9, 5, v1                  ; g
    v_lshl_add_u32 v12, v9, 3, v7
    v_lshlrev_b32 v12, 8, v12
    v_bfe_u32 v13, v1, 4, 1
    v_lshlrev_b32 v13, 1, v13
    v_lshl_add_u32 v13, v3, 2, v13
    v_lshrrev_b32 v14, 1, v6
    v_add_u32 v13, v13, v14
    v_lshlrev_b32 v14, 2, v7
    v_xor_b32 v13, v13, v14
    v_lshl_add_u32 v12, v13, 4, v12
    v_and_b32 v6, 1, v6
    v_lshl_add_u32 v12, v6, 3, v12
    v_add_u32 v16, 12288, v12
    v_add_u32 v17, {2*C_SLOT}, v16
    v_mov_b32 v19, v4
    v_add_u32 v20, {2*C_SLOT}, v4
    v_mov_b32 v22, 0x3f803f80
    v_mov_b32 v23, 0x3f803f80
    v_add_u32 v9, {C_TAB}, v8
    """)
    for r in range(ACC, FB): a(f"v_mov_b32 v{r}, 0")
    T = LdsTracker(a)
    def reads(c, s):
        slot = c % C_NS
        grp = slot // 2; so = (slot % 2) * C_SLOT
        buf = (4 * c + s) % 3
        fb = FB + 16 * buf
        T.issue(f"ds_read_b64_tr_b16 v[{fb+12}:{fb+13}], v{16+grp} offset:{so + s*4096}", [f"x{buf}"])
        T.issue(f"ds_read_b64_tr_b16 v[{fb+14}:{fb+15}], v{16+grp} offset:{so + s*4096 + 1024}", [f"x{buf}"])
        for b in range(3):
            T.issue(f"ds_read_b128 v[{fb+4*b}:{fb+4*b+3}], v{19+grp} offset:{so + (b*4+s)*1024}", [f"w{buf}{b}"])
    def mfmas(c, s, dmas):
        buf = (4 * c + s) % 3; fb = FB + 16 * buf
        T.need([f"x{buf}"])
        a(f"v_mfma_f32_4x4x4_16b_bf16 v[{AQ}:{AQ+3}], v[{fb+12}:{fb+13}], v[{fb+12}:{fb+13}], v[{AQ}:{AQ+3}]")
        a(f"v_mfma_f32_4x4x4_16b_bf16 v[{AS}:{AS+3}], v[22:23], v[{fb+12}:{fb+13}], v[{AS}:{AS+3}]")
        a(f"v_mfma_f32_4x4x4_16b_bf16 v[{AQ+4}:{AQ+7}], v[{fb+14}:{fb+15}], v[{fb+14}:{fb+15}], v[{AQ+4}:{AQ+7}]")
        a(f"v_mfma_f32_4x4x4_16b_bf16 v[{AS+4}:{AS+7}], v[22:23], v[{fb+14}:{fb+15}], v[{AS+4}:{AS+7}]")
        for b in range(3):
            T.need([f"w{buf}{b}"])
            a(f"v_mfma_f32_32x32x16_bf16 v[{ACC+16*b}:{ACC+16*b+15}], v[{fb+4*b}:{fb+4*b+3}], v[{fb+12}:{fb+15}], v[{ACC+16*b}:{ACC+16*b+15}]")
            if b < len(dmas): dmas[b]()
    for c in range(8):
        if c == 0: n = 7 + 2 + 7
        elif c == 1: n = 7
        else: n = 7 if c + 1 <= 7 else 0
        a(f"s_waitcnt vmcnt({n})")
        if c == 1:
            a("""
            v_cmp_gt_u32 vcc, 96, v0
            s_and_saveexec_b64 s[14:15], vcc
            ds_write_b32 v9, v10
            ds_write_b32 v9, v11 offset:384
            s_mov_b64 exec, s[14:15]
            """)
            T.issued += 2
        T.drain()
        a("s_barrier")
        if c in (0, 1): a.stamp(3 + c)
        k = c + 2
        todo = []
        if 3 <= k <= 7:
            dma_setup(k)
            todo = [(lambda kk=k, ii=i: dma_one(kk, ii)) for i in range(7)]
        reads(c, 0); reads(c, 1)
        if c > 0: mfmas(c - 1, 3, todo[0:2])
        else: pass
        mfmas(c, 0, todo[2:4]); reads(c, 2)
        mfmas(c, 1, todo[4:6]); reads(c, 3)
        mfmas(c, 2, todo[6:7])
    mfmas(7, 3, [])
    a.stamp(5)
    a(f"""
    s_lshr_b32 s12, s2, 3
    s_mul_i32 s12, s12, 47104
    v_lshlrev_b32 v6, 6, v0
    v_add_u32 v6, s12, v6
    s_mov_b32 s40, s22
    s_mov_b32 s41, s23
    s_mov_b32 s42, {1376*512*2}
    s_mov_b32 s43, 0x00020000
    buffer_load_dword v21, v6, s[40:43], 0 offen
    v_add_u32 v6, 16384, v6
    buffer_load_dword v21, v6, s[40:43], 0 offen
    v_add_u32 v6, 16384, v6
    buffer_load_dword v21, v6, s[40:43], 0 offen
    """)
    a(f"""
    v_and_b32 v6, 3, v1
    v_add_f32 v{AQ}, v{AQ}, v{AQ+4}
    v_add_f32 v{AQ+1}, v{AQ+1}, v{AQ+5}
    v_add_f32 v{AQ+2}, v{AQ+2}, v{AQ+6}
    v_add_f32 v{AQ+3}, v{AQ+3}, v{AQ+7}
    v_add_f32 v{AS}, v{AS}, v{AS+4}
    v_cmp_eq_u32 s[12:13], 1, v6
    v_cmp_eq_u32 s[14:15], 2, v6
    v_cmp_eq_u32 s[16:17], 3, v6
    v_lshrrev_b32 v6, 5, v1
    v_lshlrev_b32 v6, 4, v6
    v_add_u32 v6, {C_TAB}, v6
    v_cndmask_b32 v{AQ}, v{AQ}, v{AQ+1}, s[12:13]
    v_cndmask_b32 v{AQ}, v{AQ}, v{AQ+2}, s[14:15]
    v_cndmask_b32 v{AQ}, v{AQ}, v{AQ+3}, s[16:17]
    """)
    for q in range(4):
        a(f"ds_read_b128 v[{28+4*q}:{31+4*q}], v6 offset:{(8*q)*4}")
        a(f"ds_read_b128 v[{44+4*q}:{47+4*q}], v6 offset:{384 + (8*q)*4}")
    a(f"""
    v_mov_b32 v24, v{AQ}
    v_mov_b32 v25, v{AS}
    s_nop 1
    v_permlane32_swap_b32 v24, v{AQ}
    v_permlane32_swap_b32 v25, v{AS}
    s_nop 1
    v_add_f32 v24, v24, v{AQ}
    v_add_f32 v25, v25, v{AS}
    v_mul_f32 v25, {fx(1.0/512)}, v25
    v_mul_f32 v24, {fx(1.0/512)}, v24
    v_fma_f32 v24, -v25, v25, v24
    v_max_f32 v24, 0, v24
    v_add_f32 v24, {fx(1e-5)}, v24
    v_rsq_f32 v24, v24                       ; r
    s_lshl_b32 s12, s4, 2
    v_mul_f32 v26, -v25, v24
    s_add_u32 s12, s12, s26
    s_mul_i32 s12, s12, {HS}
    v_mov_b32 v25, v24
    v_mov_b32 v27, v26
    s_mul_i32 s13, s5, 6
    s_add_u32 s12, s12, s13
    s_lshl_b32 s12, s12, 10
    s_add_u32 s12, s12, {WS_HID}
    """)
    for b in range(3):
        if b > 0:
            for q in range(4):
                a(f"ds_read_b128 v[{28+4*q}:{31+4*q}], v6 offset:{(32*b + 8*q)*4}")
                a(f"ds_read_b128 v[{44+4*q}:{47+4*q}], v6 offset:{384 + (32*b + 8*q)*4}")
        a("s_waitcnt lgkmcnt(0)")
        for j in range(8):
            a(f"v_pk_fma_f32 v[{44+2*j}:{45+2*j}], v[26:27], v[{28+2*j}:{29+2*j}], v[{44+2*j}:{45+2*j}]")
        for j in range(8):
            a(f"v_pk_fma_f32 v[{44+2*j}:{45+2*j}], v[24:25], v[{ACC+16*b+2*j}:{ACC+16*b+2*j+1}], v[{44+2*j}:{45+2*j}]")
        for j in range(16): a(f"v_max_f32 v{44+j}, 0, v{44+j}")
        for j in range(8): a(f"v_pk_mul_f32 v[{44+2*j}:{45+2*j}], v[{44+2*j}:{45+2*j}], v[{44+2*j}:{45+2*j}]")
        o = 144 + 8 * b
        for j in range(8): a(f"v_cvt_pk_bf16_f32 v{o+j}, v{44+2*j}, v{45+2*j}")
        a("s_nop 1")
        a(f"v_permlane32_swap_b32 v{o}, v{o+2}")
        a(f"v_permlane32_swap_b32 v{o+1}, v{o+3}")
        a(f"v_permlane32_swap_b32 v{o+4}, v{o+6}")
        a(f"v_permlane32_swap_b32 v{o+5}, v{o+7}")
        a(f"buffer_store_dwordx4 v[{o}:{o+3}], v4, s[8:11], s12 offen{SC}")
        a(f"buffer_store_dwordx4 v[{o+4}:{o+7}], v4, s[8:11], s12 offen offset:1024{SC}")
        a("s_add_u32 s12, s12, 2048")
        if b == 0:
            a(f"""
            s_cmp_eq_u32 s5, 14
            s_cbranch_scc0 c_more
            v_mov_b32 v28, 0
            v_mov_b32 v29, 0
            v_mov_b32 v30, 0
            v_mov_b32 v31, 0
            buffer_store_dwordx4 v[28:31], v4, s[8:11], s12 offen{SC}
            buffer_store_dwordx4 v[28:31], v4, s[8:11], s12 offen offset:1024{SC}
            s_endpgm
            c_more:
            """)
    a("c_end:\ns_endpgm")

D_GRID = 256
D_SLOT = 32768
D_NS = 3
D_X2 = D_NS * D_SLOT
D_TAB = D_X2 + 8192
D_LDS = D_TAB + 512
D_NCH = 11

def gen_D(a):
    ACC, FB = 64, 80
    a(f"""
    s_cmp_ge_u32 s2, {D_GRID}
    s_cbranch_scc1 d_end
    s_load_dwordx2 s[20:21], s[0:1], 144
    s_load_dwordx4 s[16:19], s[0:1], 96      ; w2, b2
    s_load_dwordx2 s[24:25], s[0:1], 128     ; out
    v_lshrrev_b32 v3, 6, v0
    v_and_b32 v1, 63, v0
    s_and_b32 s4, s2, 7
    s_lshl_b32 s4, s4, 2
    s_bfe_u32 s5, s2, 0x20003
    s_add_u32 s4, s4, s5
    s_lshr_b32 s5, s2, 5
    v_readfirstlane_b32 s26, v3              ; wave
    v_lshlrev_b32 v4, 4, v1                  ; lane*16
    v_lshrrev_b32 v5, 3, v1
    v_bfe_u32 v6, v1, 4, 1
    v_lshlrev_b32 v6, 2, v6
    v_and_b32 v7, 7, v1
    v_xor_b32 v6, v6, v7
    v_lshlrev_b32 v6, 4, v6
    v_lshl_add_u32 v5, v5, 10, v6
    s_and_b32 s27, s26, 1                    ; wm
    s_lshr_b32 s28, s26, 1
    s_mul_i32 s36, s5, 11
    s_lshr_b32 s36, s36, 3                   ; rotation
    s_waitcnt lgkmcnt(0)
    """)
    a(f"""
    s_cmp_eq_u32 s28, 0
    s_cbranch_scc0 d_hidrole
    s_mov_b32 s8, s16
    s_mov_b32 s9, s17
    s_mov_b32 s10, {1376*512*2}
    s_mov_b32 s11, 0x00020000
    s_lshl_b32 s30, s27, 16                  ; 64 rows * 1024
    s_lshl_b32 s12, s5, 7
    s_add_u32 s30, s30, s12                  ; + dt*128 B
    s_mov_b32 s32, 8192
    s_mov_b32 s33, 131072
    v_mov_b32 v8, v5
    s_branch d_roledone
    d_hidrole:
    s_mov_b32 s8, s20
    s_mov_b32 s9, s21
    s_mov_b32 s10, {WS_SIZE}
    s_mov_b32 s11, 0x00020000
    s_lshl_b32 s30, s4, 1
    s_add_u32 s30, s30, s27
    s_mul_i32 s30, s30, {HS*1024}
    s_add_u32 s30, s30, {WS_HID}
    s_mov_b32 s32, 1024
    s_mov_b32 s33, 8192
    v_mov_b32 v8, v4
    d_roledone:
    s_lshl_b32 s31, s26, 13
    """)
    srd(a, 40, 20, WS_SIZE)
    a.stamp(0)
    def dma_setup(c):
        a(f"""
        s_add_u32 s34, s36, {c}
        s_sub_u32 s35, s34, 11
        s_cmp_ge_u32 s34, 11
        s_cselect_b32 s34, s35, s34
        s_mul_i32 s34, s34, s33
        s_add_u32 s34, s34, s30
        """)
    def dma_one(c, i):
        slot = (c % D_NS) * D_SLOT
        a(f"s_add_u32 m0, s31, {slot + 1024*i}")
        a(f"buffer_load_dwordx4 v8, s[8:11], s34 offen lds")
        if i < 7: a(f"s_add_u32 s34, s34, s32")
    for c in range(2):
        dma_setup(c)
        for i in range(8): dma_one(c, i)
    a(f"""
    v_lshrrev_b32 v9, 3, v1
    v_lshl_add_u32 v9, v9, 12, v6
    s_lshl_b32 s12, s5, 6
    s_lshl_b32 s13, s26, 4
    s_add_u32 s12, s12, s13
    s_lshl_b32 s12, s12, 12
    s_lshl_b32 s13, s4, 7
    s_add_u32 s12, s12, s13
    s_add_u32 s12, s12, {WS_X2T}
    s_lshl_b32 s13, s26, 11
    s_add_u32 m0, s13, {D_X2}
    s_add_u32 s14, s12, {8*4096}
    buffer_load_dwordx4 v9, s[40:43], s12 offen lds
    s_add_u32 m0, m0, 1024
    s_nop 0
    buffer_load_dwordx4 v9, s[40:43], s14 offen lds
    v_lshlrev_b32 v10, 2, v0
    s_lshl_b32 s12, s5, 8
    s_add_u32 s12, s12, {WS_MOD + 5*2048}
    buffer_load_dword v14, v10, s[40:43], s12 offen
    v_lshlrev_b32 v11, 1, v0
    s_lshl_b32 s12, s5, 7
    v_add_u32 v11, s12, v11
    v_min_u32 v11, 1022, v11
    global_load_ushort v15, v11, s[18:19]
    """)
    a.stamp(1)
    a(f"""
    v_and_b32 v6, 15, v1
    v_lshrrev_b32 v7, 2, v6                  ; r
    v_and_b32 v6, 3, v6                      ; c
    v_lshrrev_b32 v12, 5, v1                 ; g
    v_lshl_add_u32 v12, v12, 3, v7
    v_lshlrev_b32 v12, 7, v12
    v_bfe_u32 v13, v1, 4, 1
    v_lshlrev_b32 v13, 1, v13
    s_lshl_b32 s12, s27, 2
    v_add_u32 v13, s12, v13
    v_lshrrev_b32 v16, 1, v6
    v_add_u32 v13, v13, v16
    v_lshrrev_b32 v7, 1, v7
    v_lshlrev_b32 v7, 2, v7
    v_xor_b32 v13, v13, v7
    v_lshl_add_u32 v12, v13, 4, v12
    v_and_b32 v6, 1, v6
    v_lshl_add_u32 v16, v6, 3, v12
    v_add_u32 v17, {2*D_SLOT}, v16
    s_lshl_b32 s12, s28, 13
    s_add_u32 s12, s12, 16384
    v_add_u32 v18, s12, v4
    v_add_u32 v19, {2*D_SLOT}, v18
    v_add_u32 v10, {D_TAB}, v10
    """)
    for r in range(16): a(f"v_mov_b32 v{ACC+r}, 0")
    T = LdsTracker(a)
    NB = 4
    def reads(c, s):
        slot = c % D_NS
        grp = slot // 2; so = (slot % 2) * D_SLOT
        g = (8 * c + s) % NB
        fb = FB + 8 * g
        T.issue(f"ds_read_b64_tr_b16 v[{fb}:{fb+1}], v{16+grp} offset:{so + s*2048}", [f"a{g}"])
        T.issue(f"ds_read_b64_tr_b16 v[{fb+2}:{fb+3}], v{16+grp} offset:{so + s*2048 + 512}", [f"a{g}"])
        T.issue(f"ds_read_b128 v[{fb+4}:{fb+7}], v{18+grp} offset:{so + s*1024}", [f"b{g}"])
    def mfma(c, s):
        g = (8 * c + s) % NB; fb = FB + 8 * g
        T.need([f"a{g}", f"b{g}"])
        a(f"v_mfma_f32_32x32x16_bf16 v[{ACC}:{ACC+15}], v[{fb}:{fb+3}], v[{fb+4}:{fb+7}], v[{ACC}:{ACC+15}]")
    for c in range(D_NCH):
        if c == 0: n = 8 + 4
        elif c == 1: n = 8
        else: n = 8 if c + 1 < D_NCH else 0
        a(f"s_waitcnt vmcnt({n})")
        if c == 1:
            a(f"""
            v_lshlrev_b32 v15, 16, v15
            v_cmp_gt_u32 vcc, 64, v0
            s_and_saveexec_b64 s[14:15], vcc
            ds_write_b32 v10, v14
            ds_write_b32 v10, v15 offset:256
            s_mov_b64 exec, s[14:15]
            """)
            T.issued += 2
        T.drain()
        a("s_barrier")
        if c in (0, 1, 10): a.stamp(2 + (0, 1, 10).index(c))
        k = c + 2
        if k < D_NCH: dma_setup(k)
        reads(c, 0); reads(c, 1); reads(c, 2)
        if c > 0:
            mfma(c - 1, 7)
        if k < D_NCH: dma_one(k, 0)
        for s in range(7):
            mfma(c, s)
            if s + 3 < 8: reads(c, s + 3)
            if k < D_NCH: dma_one(k, s + 1)
    mfma(D_NCH - 1, 7)
    a.stamp(5)
    a(f"""
    v_and_b32 v6, 15, v1
    v_lshrrev_b32 v7, 2, v6                  ; r
    v_and_b32 v6, 3, v6                      ; c
    v_lshrrev_b32 v12, 5, v1                 ; h
    v_lshl_add_u32 v13, v12, 2, v7           ; 4h + r
    s_lshl_b32 s12, s27, 5
    v_add_u32 v13, s12, v13
    v_lshlrev_b32 v13, 7, v13
    v_bfe_u32 v14, v1, 4, 1
    v_lshlrev_b32 v14, 1, v14
    s_lshl_b32 s12, s28, 2
    v_add_u32 v14, s12, v14
    v_lshrrev_b32 v15, 1, v6
    v_add_u32 v14, v14, v15
    v_lshrrev_b32 v7, 1, v7
    v_lshlrev_b32 v7, 2, v7
    v_xor_b32 v14, v14, v7
    v_lshl_add_u32 v13, v14, 4, v13
    v_and_b32 v6, 1, v6
    v_lshl_add_u32 v13, v6, 3, v13
    v_add_u32 v13, {D_X2}, v13
    v_lshlrev_b32 v14, 4, v12
    s_lshl_b32 s12, s27, 7
    s_add_u32 s12, s12, {D_TAB}
    v_add_u32 v14, s12, v14
    """)
    for q in range(4):
        a(f"ds_read_b64_tr_b16 v[{24+2*q}:{25+2*q}], v13 offset:{1024*q}")
        a(f"ds_read_b128 v[{32+4*q}:{35+4*q}], v14 offset:{32*q}")
        a(f"ds_read_b128 v[{48+4*q}:{51+4*q}], v14 offset:{256+32*q}")
    a(f"""
    v_and_b32 v5, 31, v1
    v_lshlrev_b32 v20, 10, v5
    v_lshl_add_u32 v20, v12, 4, v20
    s_lshl_b32 s12, s4, 1
    s_add_u32 s12, s12, s28
    s_lshl_b32 s12, s12, 15
    s_lshl_b32 s13, s5, 1
    s_add_u32 s13, s13, s27
    s_lshl_b32 s13, s13, 6
    s_add_u32 s12, s12, s13
    v_add_u32 v20, s12, v20
    """)
    for q in range(4):
        a(f"s_waitcnt lgkmcnt({3*(3-q)})")
        a(f"v_lshlrev_b32 v8, 16, v{24+2*q}")
        a(f"v_and_b32 v9, 0xffff0000, v{24+2*q}")
        a(f"v_lshlrev_b32 v10, 16, v{25+2*q}")
        a(f"v_and_b32 v11, 0xffff0000, v{25+2*q}")
        for r in range(4): a(f"v_add_f32 v{48+4*q+r}, v{48+4*q+r}, v{ACC+4*q+r}")
        for r in range(4): a(f"v_fma_f32 v{8+r}, v{48+4*q+r}, v{32+4*q+r}, v{8+r}")
        a(f"v_cvt_pk_bf16_f32 v{FB+2*q}, v8, v9")
        a(f"v_cvt_pk_bf16_f32 v{FB+2*q+1}, v10, v11")
    a(f"""
    s_nop 1
    v_permlane32_swap_b32 v{FB}, v{FB+2}
    v_permlane32_swap_b32 v{FB+1}, v{FB+3}
    v_permlane32_swap_b32 v{FB+4}, v{FB+6}
    v_permlane32_swap_b32 v{FB+5}, v{FB+7}
    global_store_dwordx4 v20, v[{FB}:{FB+3}], s[24:25]
    global_store_dwordx4 v20, v[{FB+4}:{FB+7}], s[24:25] offset:32
    d_end:
    s_endpgm
    """)

def kernels():
    return [("conv_kernel", gen_B, 168, B_GRID, 256, B_LDS),
            ("gemm1_kernel", gen_C, 176, C_GRID, 256, C_LDS),
            ("gemm2_kernel", gen_D, 128, D_GRID, 256, D_LDS)]
```

```python
import sys, struct, os

NAME = "adaLN_cond__ssm_conv_s4__dense_activation_squared_relu__prompt"
TS = bool(os.environ.get("TS"))
SC = os.environ.get("SC", " sc0 sc1")

WS_MOD  = 0x0000
WS_ST1  = 0x4000
WS_CS   = 0x8000
WS_B1P  = 0xA000
WS_XT   = 0x100000
WS_KE   = 0x300000
KCH     = 4112
WS_W1F  = 0xA00000
WS_X2T  = 0xC00000
WS_HID  = 0x1000000
HS      = 88
WS_SIZE = 268435456
WS_TS   = 0x8000000

def f2u(x): return struct.unpack("<I", struct.pack("<f", x))[0]
def fx(x): return "0x%08x" % f2u(x)

class Asm:
    def __init__(self): self.l = []
    def __call__(self, s):
        for line in s.strip("\n").split("\n"):
            line = line.strip()
            if not line: continue
            self.l.append(line if line.endswith(":") else "    " + line)
    def stamp(self, i):
        if TS: self(f"s_memtime s[{70+2*i}:{71+2*i}]")
    def text(self): return "\n".join(self.l) + "\n"

class LdsTracker:
    def __init__(self, a): self.a = a; self.issued = 0; self.done = 0; self.tag = {}
    def issue(self, text, tags):
        self.a(text)
        for t in tags: self.tag[t] = self.issued
        self.issued += 1
    def need(self, tags):
        idx = max(self.tag[t] for t in tags)
        if idx < self.done: return
        n = min(self.issued - idx - 1, 15)
        self.a(f"s_waitcnt lgkmcnt({n})")
        self.done = self.issued - n
    def drain(self):
        if self.done < self.issued: self.a("s_waitcnt lgkmcnt(0)")
        self.done = self.issued

def cmul(a, d, x, y, t):
    a(f"v_pk_mul_f32 v[{t}:{t+1}], v[{x}:{x+1}], v[{y}:{y+1}] op_sel:[0,0] op_sel_hi:[0,1]")
    a(f"v_pk_fma_f32 v[{d}:{d+1}], v[{x}:{x+1}], v[{y}:{y+1}], v[{t}:{t+1}] op_sel:[1,1,0] op_sel_hi:[1,0,1] neg_lo:[1,0,0]")

def srd(a, s, lo, size):
    a(f"""
    s_mov_b32 s{s}, s{lo}
    s_mov_b32 s{s+1}, s{lo+1}
    s_mov_b32 s{s+2}, {size}
    s_mov_b32 s{s+3}, 0x00020000
    """)

NMOD, NW1, NK, NLN = 160, 128, 512, 64
A_GRID = NMOD + NW1 + NK + NLN
ID_W1, ID_K, ID_LN = NMOD, NMOD + NW1, NMOD + NW1 + NK
TROW = 544; QROW = 41
KC_OFF = 57 * TROW
RS = 1088
A_LDS = max(KC_OFF + 768 * 4, 32 * RS)

def gen_kgen(a):
    a(f"""
    kgen:
    s_load_dwordx4 s[4:7], s[0:1], 8
    s_load_dwordx4 s[8:11], s[0:1], 24
    s_load_dwordx4 s[12:15], s[0:1], 40
    s_load_dwordx4 s[16:19], s[0:1], 56
    s_load_dwordx2 s[20:21], s[0:1], 144
    s_sub_u32 s2, s2, {ID_K}                ; channel d
    v_and_b32 v1, 127, v0
    v_lshlrev_b32 v2, 2, v1
    v_lshlrev_b32 v1, 1, v1
    s_lshl_b32 s3, s2, 8
    v_add_u32 v1, s3, v1                    ; (d*128+n)*2
    s_lshl_b32 s22, s2, 1
    s_and_b32 s22, s22, 0xfffffffc
    s_and_b32 s23, s2, 1
    s_lshl_b32 s23, s23, 4
    v_lshrrev_b32 v3, 6, v0
    s_waitcnt lgkmcnt(0)
    global_load_ushort v10, v1, s[4:5]
    global_load_ushort v11, v1, s[6:7]
    global_load_ushort v12, v1, s[8:9]
    global_load_ushort v13, v1, s[10:11]
    global_load_ushort v14, v1, s[12:13]
    global_load_ushort v15, v1, s[14:15]
    s_load_dword s24, s[16:17], s22
    s_load_dword s25, s[18:19], s22
    v_readfirstlane_b32 s26, v3
    v_lshlrev_b32 v4, 3, v0
    v_sub_u32 v4, 2047, v4                  ; lbase
    """)
    for e in range(8): a(f"v_subrev_u32 v{30+e}, {e}, v4")
    for e in range(8): a(f"v_cvt_f32_u32 v{40+e}, v{30+e}")
    for p in range(4): a(f"v_cvt_pk_bf16_f32 v{50+p}, v{40+2*p}, v{41+2*p}")
    a(f"s_mov_b32 s27, {KC_OFF - 0x10A00}")
    for e in range(8):
        p = e // 2
        a(f"v_and_b32 v{40+e}, 0xffff, v{50+p}" if e % 2 == 0 else f"v_lshrrev_b32 v{40+e}, 16, v{50+p}")
    for e in range(8): a(f"v_lshl_add_u32 v{40+e}, v{40+e}, 2, s27")
    for e in range(8):
        a(f"v_cmp_gt_u32 vcc, 128, v{30+e}")
        a(f"v_lshlrev_b32 v{30+e}, 2, v{30+e}")
        a(f"v_add_u32 v{30+e}, {KC_OFF}, v{30+e}")
        a(f"v_cndmask_b32 v{40+e}, v{40+e}, v{30+e}, vcc")
    a(f"""
    s_waitcnt lgkmcnt(0)
    s_lshr_b32 s24, s24, s23
    s_lshl_b32 s24, s24, 16
    s_lshr_b32 s25, s25, s23
    s_lshl_b32 s25, s25, 16
    v_mov_b32 v5, s24
    v_mul_f32 v6, 0x3fb8aa3b, v5
    s_mov_b32 s28, 0x3fb8aa3b
    v_fma_f32 v7, v5, s28, -v6
    v_fmac_f32 v7, 0x32a5705f, v5
    v_exp_f32 v6, v6
    v_mul_f32 v7, {fx(0.6931471805599453)}, v7
    v_fmac_f32 v6, v6, v7
    v_cvt_pk_bf16_f32 v6, v6, v6
    v_lshlrev_b32 v6, 16, v6                ; dt
    s_waitcnt vmcnt(4)
    v_lshlrev_b32 v10, 16, v10
    v_lshlrev_b32 v11, 16, v11
    v_mul_f32 v10, v6, v10
    v_mul_f32 v11, v6, v11
    v_mul_f32 v10, 0x3fb8aa3b, v10
    v_mul_f32 v11, {fx(0.15915494309189535)}, v11
    """)
    def direct(dst, l, t):
        a(f"""
        v_mul_f32 v{t}, {fx(float(l))}, v10
        v_mul_f32 v{t+1}, {fx(float(l))}, v11
        v_exp_f32 v{t}, v{t}
        v_fract_f32 v{t+1}, v{t+1}
        v_cos_f32 v{dst}, v{t+1}
        v_sin_f32 v{dst+1}, v{t+1}
        s_nop 0
        v_mul_f32 v{dst}, v{t}, v{dst}
        v_mul_f32 v{dst+1}, v{t}, v{dst+1}
        """)
    def wr(row, src, tmp, neg=False):
        a(f"v_cvt_pk_bf16_f32 v{tmp}, v{src}, {'-' if neg else ''}v{src+1}")
        a(f"ds_write_b32 v2, v{tmp} offset:{row*TROW}")
    a.stamp(0)
    a("s_cmp_ge_u32 s26, 2\ns_cbranch_scc1 kgen_setY")
    E8, E128, Q, R, T0, T1 = 20, 22, 24, 26, 28, 60
    direct(E8, 1, 28)
    direct(E128, 128, 28)
    cmul(a, R, E128, E128, T1)
    cmul(a, E8, E8, E8, T0)
    cmul(a, R, R, R, T1)
    cmul(a, E8, E8, E8, T0)
    cmul(a, R, R, R, T1)
    cmul(a, E8, E8, E8, T0)
    a("""
    s_waitcnt vmcnt(0)
    v_lshlrev_b32 v12, 16, v12
    v_lshlrev_b32 v13, 16, v13
    v_lshlrev_b32 v14, 16, v14
    v_lshlrev_b32 v15, 16, v15
    v_mul_f32 v12, v6, v12
    v_mul_f32 v13, v6, v13
    """)
    cmul(a, Q, 14, 12, T0)
    for i in range(16):
        if i < 9:
            wr(32 + i, R, 63)
            if i < 8: cmul(a, R, R, E128, T1)
        wr(QROW + i, Q, 62, neg=True)
        if i < 15: cmul(a, Q, Q, E8, T0)
    a("s_branch kgen_tables_done")
    a("kgen_setY:")
    E = [None, 20, 22, 24, 26, 16, 18, 64]
    E128, X, Y2, T0, T1 = 66, 68, 70, 28, 60
    direct(E[1], 1, 28)
    direct(E128, 128, 28)
    a("v_mov_b32 v62, 0x3f80")
    a(f"ds_write_b32 v2, v62 offset:0")
    cmul(a, E[2], E[1], E[1], T0); wr(1, E[1], 63)
    cmul(a, E[3], E[2], E[1], T1); wr(2, E[2], 62)
    cmul(a, E[4], E[2], E[2], T0); wr(3, E[3], 63)
    cmul(a, E[5], E[4], E[1], T1); wr(4, E[4], 62)
    cmul(a, E[6], E[3], E[3], T0); wr(5, E[5], 63)
    cmul(a, E[7], E[4], E[3], T1); wr(6, E[6], 62)
    cmul(a, X, E128, E128, T0);    wr(7, E[7], 63)
    wr(8, E128, 62)
    for r in range(1, 8):
        cmul(a, Y2, E128, E[r], T1 if r % 2 else T0)
        wr(8 + r, Y2, 62 + (r % 2))
    S = [72, 74, 76, 78]
    a(f"v_mov_b64 v[{S[0]}:{S[0]+1}], v[{X}:{X+1}]")
    cmul(a, S[1], X, E[2], T0)
    cmul(a, S[2], X, E[4], T1)
    cmul(a, S[3], X, E[6], T0)
    cmul(a, X, X, X, T1)
    for r in range(4):
        wr(16 + r, S[r], 62 + (r % 2))
        cmul(a, S[r], S[r], E128, T0 if r % 2 else T1)
    cmul(a, Y2, X, E[4], T0)
    for r in range(4): wr(20 + r, S[r], 62 + (r % 2))
    for p in range(4):
        wr(24 + 2 * p, X, 62)
        wr(25 + 2 * p, Y2, 63)
        if p < 3:
            cmul(a, X, X, E128, T0)
            cmul(a, Y2, Y2, E128, T1)
    a(f"""
    kgen_tables_done:
    v_and_b32 v4, 15, v0                     ; i / j / q
    v_bfe_u32 v5, v0, 4, 2                   ; g / G
    v_lshlrev_b32 v7, 4, v5
    v_mul_u32_u24 v8, {TROW}, v4
    v_add_u32 v8, v8, v7                     ; i*544 + g*16
    s_mul_i32 s27, s26, {16*TROW}
    v_add_u32 v9, s27, v8                    ; A address
    v_add_u32 v8, {QROW*TROW}, v8            ; B address
    v_mov_b32 v20, 0
    v_mov_b32 v21, 0
    v_mov_b32 v22, 0
    v_mov_b32 v23, 0
    v_mov_b32 v24, 0
    v_mov_b32 v25, 0
    v_mov_b32 v26, 0
    v_mov_b32 v27, 0
    s_waitcnt lgkmcnt(0)
    """)
    a.stamp(1)
    a("""
    s_barrier
    s_cmp_ge_u32 s26, 3
    s_cbranch_scc1 kgen_mfma_done
    """)
    for s in range(8):
        a(f"ds_read_b128 v[{64+8*s}:{67+8*s}], v9 offset:{64*s}")
        a(f"ds_read_b128 v[{68+8*s}:{71+8*s}], v8 offset:{64*s}")
    a(f"""
    s_cmp_eq_u32 s26, 1
    s_cbranch_scc1 kgen_t1
    s_cmp_eq_u32 s26, 2
    s_cbranch_scc1 kgen_t2
    v_and_b32 v7, 1, v5
    v_lshlrev_b32 v7, 2, v7
    v_lshrrev_b32 v16, 1, v5
    v_lshl_add_u32 v7, v16, 7, v7
    v_lshl_add_u32 v7, v4, 3, v7
    v_lshlrev_b32 v7, 2, v7
    v_add_u32 v16, {KC_OFF}, v7
    v_add_u32 v17, 8, v16
    v_mov_b32 v18, 4
    s_branch kgen_addr_done
    kgen_t1:
    v_cmp_gt_u32 vcc, 2, v5
    v_lshlrev_b32 v7, 6, v5
    v_add_u32 v7, 256, v7
    v_lshlrev_b32 v16, 2, v4
    v_lshlrev_b32 v17, 1, v4
    v_cndmask_b32 v16, v17, v16, vcc
    v_add_u32 v7, v7, v16
    v_lshlrev_b32 v7, 2, v7
    v_add_u32 v16, {KC_OFF}, v7
    v_mov_b32 v17, 128
    v_cndmask_b32 v17, v17, 8, vcc
    v_add_u32 v17, v16, v17
    v_mov_b32 v18, 4
    s_branch kgen_addr_done
    kgen_t2:
    v_lshl_add_u32 v7, v5, 6, v4
    v_lshlrev_b32 v7, 2, v7
    v_add_u32 v16, {KC_OFF + 512*4}, v7
    v_add_u32 v17, 128, v16
    v_mov_b32 v18, 64
    kgen_addr_done:
    v_add_u32 v19, v17, v18
    v_add_u32 v18, v16, v18
    v_cmp_eq_u32 vcc, 0, v0
    v_mov_b32 v7, s25
    s_nop 0
    v_cndmask_b32 v7, 0, v7, vcc
    """)
    for s in range(8):
        a(f"s_waitcnt lgkmcnt({14-2*s})")
        acc = 20 + 4 * (s % 2)
        a(f"v_mfma_f32_16x16x32_bf16 v[{acc}:{acc+3}], v[{64+8*s}:{67+8*s}], v[{68+8*s}:{71+8*s}], v[{acc}:{acc+3}]")
    a(f"""
    s_nop 7
    v_add_f32 v20, v20, v24
    v_add_f32 v21, v21, v25
    v_add_f32 v22, v22, v26
    v_add_f32 v23, v23, v27
    v_add_f32 v20, v20, v7
    ds_write_b32 v16, v20
    ds_write_b32 v18, v21
    ds_write_b32 v17, v22
    ds_write_b32 v19, v23
    kgen_mfma_done:
    s_waitcnt lgkmcnt(0)
    s_barrier
    """)
    a.stamp(2)
    for e in range(8): a(f"ds_read_b32 v{30+e}, v{40+e}")
    a(f"""
    s_mul_i32 s27, s2, {KCH}
    s_add_u32 s27, s27, {WS_KE}
    v_lshlrev_b32 v4, 4, v0
    v_add_u32 v4, s27, v4
    """)
    for p in range(4):
        a(f"s_waitcnt lgkmcnt({6-2*p})")
        a(f"v_cvt_pk_bf16_f32 v{52+p}, v{30+2*p}, v{31+2*p}")
    a(f"""
    global_store_dwordx4 v4, v[52:55], s[20:21]{SC}
    v_cmp_eq_u32 vcc, 0, v0
    s_and_saveexec_b64 s[30:31], vcc
    s_cbranch_execz kgen_end
    v_mov_b32 v6, s27
    v_add_u32 v6, 4096, v6
    v_mov_b32 v60, 0
    v_mov_b32 v61, 0
    v_mov_b32 v62, 0
    v_mov_b32 v63, 0
    global_store_dwordx4 v6, v[60:63], s[20:21]{SC}
    kgen_end:
    s_endpgm
    """)

def gen_ln1(a):
    a(f"""
    ln1:
    s_load_dwordx2 s[4:5], s[0:1], 0
    s_load_dwordx2 s[20:21], s[0:1], 144
    s_sub_u32 s3, s2, {ID_LN}
    s_and_b32 s6, s3, 7
    s_lshl_b32 s6, s6, 3
    s_lshr_b32 s7, s3, 3
    s_add_u32 s6, s6, s7
    v_lshrrev_b32 v3, 6, v0                  ; wave
    v_and_b32 v1, 63, v0                     ; lane
    v_lshlrev_b32 v4, 13, v3
    v_lshl_add_u32 v4, v1, 4, v4
    s_lshl_b32 s7, s6, 15
    v_add_u32 v4, s7, v4
    v_readfirstlane_b32 s26, v3
    s_waitcnt lgkmcnt(0)
    """)
    for r in range(8):
        if r == 4: a("v_add_u32 v4, 4096, v4")
        a(f"global_load_dwordx4 v[{8+4*r}:{11+4*r}], v4, s[4:5] offset:{1024*(r%4)}")
    a(f"""
    v_mul_u32_u24 v5, {8*RS}, v3
    v_lshl_add_u32 v5, v1, 4, v5
    v_mov_b32 v6, 0x3f803f80
    v_and_b32 v7, 15, v1
    v_lshrrev_b32 v2, 2, v7                  ; r
    v_and_b32 v7, 3, v7                      ; c
    v_mul_u32_u24 v2, {RS}, v2
    v_lshl_add_u32 v2, v7, 3, v2
    v_lshrrev_b32 v7, 4, v1
    v_lshl_add_u32 v2, v7, 5, v2
    v_lshl_add_u32 v2, v3, 8, v2
    v_lshl_add_u32 v7, v3, 7, v1
    v_lshlrev_b32 v7, 12, v7
    s_lshl_b32 s7, s6, 6
    s_add_u32 s7, s7, {WS_XT}
    v_add_u32 v7, s7, v7
    """)
    for r in range(8):
        b = 8 + 4 * r
        a(f"s_waitcnt vmcnt({7-r})")
        a(f"ds_write_b128 v5, v[{b}:{b+3}] offset:{RS*r}")
        a(f"v_dot2_f32_bf16 v{40+2*r}, v{b}, v6, 0")
        a(f"v_dot2_f32_bf16 v{41+2*r}, v{b}, v{b}, 0")
        for k in range(1, 4):
            a(f"v_dot2_f32_bf16 v{40+2*r}, v{b+k}, v6, v{40+2*r}")
            a(f"v_dot2_f32_bf16 v{41+2*r}, v{b+k}, v{b+k}, v{41+2*r}")
    a("s_waitcnt lgkmcnt(0)\ns_barrier")
    for db in range(2):
        for lg in range(8):
            a(f"ds_read_b64_tr_b16 v[{64+16*db+2*lg}:{65+16*db+2*lg}], v2 offset:{128*db + 4*RS*lg}")
    for dpp in ["row_shr:1", "row_shr:2", "row_shr:4", "row_shr:8", "row_bcast:15 row_mask:0xa", "row_bcast:31 row_mask:0xc"]:
        m = "" if "row_mask" in dpp else " row_mask:0xf"
        for r in range(40, 56): a(f"v_add_f32_dpp v{r}, v{r}, v{r} {dpp}{m} bank_mask:0xf")
    for db in range(2):
        a(f"s_waitcnt lgkmcnt({8*(1-db)})")
        if db == 1: a(f"v_add_u32 v7, {64*4096}, v7")
        for i in range(4):
            a(f"global_store_dwordx4 v7, v[{64+16*db+4*i}:{67+16*db+4*i}], s[20:21] offset:{16*i}{SC}")
    for r in range(8):
        a(f"v_readlane_b32 s{32+2*r}, v{40+2*r}, 63")
        a(f"v_readlane_b32 s{33+2*r}, v{41+2*r}, 63")
    a("s_nop 1")
    for r in range(8):
        a(f"v_writelane_b32 v56, s{32+2*r}, {r}")
        a(f"v_writelane_b32 v57, s{33+2*r}, {r}")
    a(f"""
    s_nop 1
    v_mul_f32 v56, {fx(1.0/512)}, v56        ; mean
    v_mul_f32 v57, {fx(1.0/512)}, v57
    v_fma_f32 v57, -v56, v56, v57
    v_max_f32 v57, 0, v57
    v_add_f32 v57, {fx(1e-5)}, v57
    v_rsq_f32 v57, v57
    s_nop 0
    v_mul_f32 v56, -v56, v57
    v_cvt_pk_bf16_f32 v56, v57, v56          ; (r, -mean*r)
    s_lshl_b32 s7, s6, 7
    s_lshl_b32 s8, s26, 5
    s_add_u32 s7, s7, s8
    s_add_u32 s7, s7, {WS_ST1}
    v_lshlrev_b32 v58, 2, v1
    v_add_u32 v58, s7, v58
    v_cmp_gt_u32 vcc, 8, v1
    s_and_saveexec_b64 s[30:31], vcc
    s_cbranch_execz ln1_end
    global_store_dword v58, v56, s[20:21]{SC}
    ln1_end:
    s_endpgm
    """)

def gen_mod16(a, tag):
    a(f"""
    v_lshrrev_b32 v3, 1, v0                  ; rg
    v_and_b32 v4, 1, v0                      ; cc
    v_mul_u32_u24 v5, {4*6144}, v3
    v_lshl_add_u32 v5, v4, 4, v5
    s_lshl_b32 s9, s8, 5
    v_add_u32 v5, s9, v5
    v_lshlrev_b32 v6, 3, v3
    s_waitcnt lgkmcnt(0)
    global_load_dwordx2 v[8:9], v6, s[4:5]
    """)
    for i in range(4):
        if i: a("v_add_u32 v5, 6144, v5")
        a(f"global_load_dwordx4 v[{16+4*i}:{19+4*i}], v5, s[6:7]")

def gen_mod16_compute(a, nlater):
    a(f"s_waitcnt vmcnt({4+nlater})")
    for i in range(4):
        src = 8 + i // 2
        a(f"v_lshlrev_b32 v{10+i}, 16, v{src}" if i % 2 == 0 else f"v_and_b32 v{10+i}, 0xffff0000, v{src}")
    for i in range(4): a(f"v_mul_f32 v{32+i}, {fx(-1.4426950408889634)}, v{10+i}")
    for i in range(4): a(f"v_exp_f32 v{32+i}, v{32+i}")
    for i in range(4): a(f"v_add_f32 v{32+i}, 1.0, v{32+i}")
    for i in range(4): a(f"v_rcp_f32 v{32+i}, v{32+i}")
    a("s_nop 0")
    for i in range(4): a(f"v_mul_f32 v{10+i}, v{10+i}, v{32+i}")
    for i in range(4):
        a(f"v_cvt_pk_bf16_f32 v{32+i}, v{10+i}, 0")
        a(f"v_cvt_pk_bf16_f32 v{36+i}, 0, v{10+i}")
    for i in range(4):
        a(f"s_waitcnt vmcnt({3-i+nlater})")
        for m in range(4):
            c0 = "0" if i == 0 else f"v{40+2*m}"; c1 = "0" if i == 0 else f"v{41+2*m}"
            a(f"v_dot2_f32_bf16 v{40+2*m}, v{16+4*i+m}, v{32+i}, {c0}")
            a(f"v_dot2_f32_bf16 v{41+2*m}, v{16+4*i+m}, v{36+i}, {c1}")
    a("s_nop 2")
    for dpp in ["row_shr:2", "row_shr:4", "row_shr:8"]:
        for r in range(40, 48): a(f"v_add_f32_dpp v{r}, v{r}, v{r} {dpp} row_mask:0xf bank_mask:0xf")
    a(f"""
    v_lshrrev_b32 v5, 4, v0
    v_mul_u32_u24 v5, 80, v5
    v_lshl_add_u32 v5, v4, 5, v5
    v_and_b32 v6, 15, v0
    v_cmp_lt_u32 vcc, 13, v6
    s_and_saveexec_b64 s[30:31], vcc
    ds_write_b128 v5, v[40:43]
    ds_write_b128 v5, v[44:47] offset:16
    s_mov_b64 exec, s[30:31]
    v_lshlrev_b32 v5, 2, v6
    s_waitcnt lgkmcnt(0)
    s_barrier
    """)
    for i in range(16): a(f"ds_read_b32 v{16+i}, v5 offset:{80*i}")
    a("s_waitcnt lgkmcnt(0)")
    for st in (1, 2, 4, 8):
        for i in range(0, 16, 2 * st): a(f"v_add_f32 v{16+i}, v{16+i}, v{16+i+st}")
    a("v_cvt_pk_bf16_f32 v16, v16, v16\nv_lshlrev_b32 v16, 16, v16")

def gen_mod(a):
    a(f"""
    modr:
    s_load_dwordx4 s[4:7], s[0:1], 112       ; c, w_mod
    s_load_dwordx2 s[20:21], s[0:1], 144
    s_and_b32 s8, s2, 7
    s_mul_i32 s8, s8, 20
    s_lshr_b32 s9, s2, 3
    s_add_u32 s8, s8, s9                     ; logical
    s_add_u32 s9, s8, 32
    s_cmp_lt_u32 s8, 128
    s_cselect_b32 s8, s8, s9
    """)
    gen_mod16(a, "m"); gen_mod16_compute(a, 0)
    a(f"""
    s_lshl_b32 s9, s8, 6
    s_add_u32 s9, s9, {WS_MOD}
    v_lshlrev_b32 v5, 2, v0
    v_add_u32 v5, s9, v5
    v_cmp_gt_u32 vcc, 16, v0
    s_and_saveexec_b64 s[30:31], vcc
    s_cbranch_execz mod_end
    global_store_dword v5, v16, s[20:21]{SC}
    mod_end:
    s_endpgm
    """)

def gen_w1f(a):
    a(f"""
    w1f:
    s_load_dwordx4 s[4:7], s[0:1], 112       ; c, w_mod
    s_load_dwordx2 s[20:21], s[0:1], 144
    s_load_dwordx2 s[22:23], s[0:1], 80      ; w1
    s_sub_u32 s3, s2, {ID_W1}
    s_and_b32 s10, s3, 7
    s_lshl_b32 s10, s10, 4
    s_lshr_b32 s11, s3, 3
    s_add_u32 s10, s10, s11                  ; logical
    s_lshr_b32 s11, s10, 2
    s_and_b32 s10, s10, 3                    ; quarter
    s_add_u32 s8, s11, 128
    """)
    gen_mod16(a, "w")
    a(f"""
    v_cmp_le_u32 vcc, 44, v0
    v_mov_b32 v48, 0
    v_mov_b32 v49, 44
    v_cndmask_b32 v50, 0, 1, vcc             ; g
    v_cndmask_b32 v51, v48, v49, vcc
    v_sub_u32 v51, v0, v51                   ; ch8
    s_mul_i32 s12, s10, 44
    v_add_u32 v52, s12, v51
    s_lshl_b32 s13, s11, 4
    v_lshl_add_u32 v53, v50, 3, s13
    v_mul_u32_u24 v53, 2752, v53
    v_lshl_add_u32 v53, v52, 4, v53
    v_cmp_gt_u32 vcc, 88, v0
    s_mov_b32 s17, 172
    v_cmp_gt_u32 s[14:15], s17, v52
    s_and_b64 s[14:15], s[14:15], vcc
    s_cbranch_scc0 w1f_noload
    s_mov_b64 exec, s[14:15]
    """)
    for i in range(8):
        if i: a("v_add_u32 v53, 2752, v53")
        a(f"global_load_dwordx4 v[{64+4*i}:{67+4*i}], v53, s[22:23]")
    a("""
    s_mov_b64 exec, -1
    s_mov_b32 s16, 1
    s_branch w1f_loaded
    w1f_noload:
    s_mov_b32 s16, 0
    w1f_loaded:
    """)
    a("s_cmp_eq_u32 s16, 1\ns_cbranch_scc1 w1f_cA")
    gen_mod16_compute(a, 0)
    a("s_branch w1f_cD\nw1f_cA:")
    gen_mod16_compute(a, 8)
    a(f"""
    w1f_cD:
    v_add_f32 v17, 1.0, v16
    v_cvt_pk_bf16_f32 v17, v17, v17
    v_lshlrev_b32 v17, 16, v17
    v_lshlrev_b32 v5, 2, v0
    v_cmp_gt_u32 vcc, 16, v0
    s_and_saveexec_b64 s[30:31], vcc
    s_cbranch_execz w1f_nopub
    ds_write_b32 v5, v17 offset:2048
    s_cmp_eq_u32 s10, 0
    s_cbranch_scc0 w1f_nopub
    s_lshl_b32 s9, s8, 6
    s_add_u32 s9, s9, {WS_MOD}
    v_add_u32 v6, s9, v5
    global_store_dword v6, v16, s[20:21]{SC}
    w1f_nopub:
    s_mov_b64 exec, s[30:31]
    s_waitcnt lgkmcnt(0)
    s_barrier
    s_cmp_eq_u32 s16, 0
    s_cbranch_scc1 w1f_end
    s_mov_b64 exec, s[14:15]
    v_lshlrev_b32 v5, 5, v50                 ; g*8 floats
    ds_read_b128 v[8:11], v5 offset:2048
    ds_read_b128 v[12:15], v5 offset:2064
    v_lshrrev_b32 v6, 2, v52
    v_lshlrev_b32 v6, 15, v6
    v_and_b32 v7, 3, v52
    v_lshl_add_u32 v6, v7, 7, v6
    v_lshl_add_u32 v6, v50, 9, v6
    s_lshl_b32 s9, s11, 10
    s_add_u32 s9, s9, {WS_W1F}
    v_add_u32 v6, s9, v6
    s_waitcnt vmcnt(0) lgkmcnt(0)
    """)
    for u in range(4):
        for h in range(2):
            i = 2 * u + h
            for e in range(8):
                src = 64 + 4 * i + e // 2
                a(f"v_lshlrev_b32 v{16+8*h+e}, 16, v{src}" if e % 2 == 0 else f"v_and_b32 v{16+8*h+e}, 0xffff0000, v{src}")
            for e in range(8): a(f"v_mul_f32 v{16+8*h+e}, v{8+i}, v{16+8*h+e}")
        for e in range(8): a(f"v_cvt_pk_bf16_f32 v{96+4*e+u}, v{16+e}, v{24+e}")
    for e in range(8):
        a(f"global_store_dwordx4 v6, v[{96+4*e}:{99+4*e}], s[20:21] offset:{16*e}{SC}")
    a("w1f_end:\ns_endpgm")

def gen_A(a):
    a(f"""
    s_cmp_lt_u32 s2, {ID_W1}
    s_cbranch_scc1 modr
    s_cmp_lt_u32 s2, {ID_K}
    s_cbranch_scc1 w1f
    s_cmp_lt_u32 s2, {ID_LN}
    s_cbranch_scc1 kgen
    s_cmp_lt_u32 s2, {A_GRID}
    s_cbranch_scc1 ln1
    s_endpgm
    """)
    gen_mod(a); gen_w1f(a); gen_ln1(a); gen_kgen(a)

def kernel(name, body, vgpr, kidx, sgpr=96):
    a = Asm()
    if TS:
        a("""
        s_memrealtime s[90:91]
        s_memtime s[84:85]
        s_mov_b32 s89, s2
        s_mov_b32 s86, s0
        s_mov_b32 s87, s1
        v_lshrrev_b32 v1, 6, v0
        s_nop 0
        v_readfirstlane_b32 s88, v1
        """)
    body(a)
    if TS:
        a.l = [("    s_branch ts_end_%d" % kidx) if l.strip() == "s_endpgm" else l for l in a.l]
        a(f"""
        ts_end_{kidx}:
        s_waitcnt vmcnt(0) lgkmcnt(0)
        s_memrealtime s[92:93]
        s_memtime s[82:83]
        s_load_dwordx2 s[94:95], s[86:87], 144
        s_mov_b64 exec, 1
        s_lshl_b32 s89, s89, 2
        s_add_u32 s89, s89, s88
        s_lshl_b32 s89, s89, 6
        s_add_u32 s89, s89, {WS_TS + kidx * 0x80000}
        v_mov_b32 v4, s89
        s_waitcnt lgkmcnt(0)
        v_mov_b32 v0, s90
        v_mov_b32 v1, s91
        v_mov_b32 v2, s92
        v_mov_b32 v3, s93
        global_store_dwordx4 v4, v[0:3], s[94:95]
        v_mov_b32 v8, s84
        v_mov_b32 v9, s82
        v_mov_b32 v10, s70
        v_mov_b32 v11, s72
        global_store_dwordx4 v4, v[8:11], s[94:95] offset:16
        v_mov_b32 v12, s74
        v_mov_b32 v13, s76
        v_mov_b32 v14, s78
        v_mov_b32 v15, s80
        global_store_dwordx4 v4, v[12:15], s[94:95] offset:32
        s_endpgm
        """)
    code = f".globl {name}\n.p2align 8\n.type {name},@function\n{name}:\n{a.text()}"
    desc = f""".amdhsa_kernel {name}
  .amdhsa_next_free_vgpr {vgpr}
  .amdhsa_next_free_sgpr {sgpr}
  .amdhsa_accum_offset {((vgpr + 3) // 4) * 4}
  .amdhsa_group_segment_fixed_size 0
  .amdhsa_kernarg_size 152
  .amdhsa_user_sgpr_count 2
  .amdhsa_user_sgpr_kernarg_segment_ptr 1
  .amdhsa_system_sgpr_workgroup_id_x 1
  .amdhsa_float_denorm_mode_32 3
.end_amdhsa_kernel
"""
    return code, desc

def build(kernels):
    hdr = "; adaLN + S4 long convolution + squared-ReLU MLP, gfx950.  Generated by a hand-written generator (dev/g2.py).\n"
    for (name, body, vgpr, grid, block, lds) in kernels:
        hdr += f"; @launch kernel={name} grid=({grid},1,1) block=({block},1,1) lds={lds}\n"
    out = hdr + '.amdgcn_target "amdgcn-amd-amdhsa--gfx950"\n.text\n'
    descs = ""
    for i, (name, body, vgpr, grid, block, lds) in enumerate(kernels):
        c, d = kernel(name, body, vgpr, i)
        out += c
        descs += ".p2align 6\n" + d
    return out + '.section .rodata,"a"\n' + descs

if __name__ == "__main__":
    import g2b
    ks = [("prep_kernel", gen_A, 128, A_GRID, 256, A_LDS)] + g2b.kernels()
    s = build(ks)
    path = sys.argv[1] if len(sys.argv) > 1 else "out.s"
    open(path, "w").write(s)
    print("wrote", path, len(s))
```

```python
from g3 import *
import g3

NCONV, NW1 = 256, 43
B_GRID = NCONV + NW1
KCP = 4160
KCHL = 4 * KCP
H_OFF = 2 * KCHL
HCH = 4608
RED_OFF = H_OFF + 2 * HCH
B_LDS = RED_OFF + 16384

def gen_conv(a):
    VA, VB, VY = 64, 96, 128
    a(f"""
    conv:
    s_load_dwordx2 s[20:21], s[0:1], 144
    s_load_dwordx2 s[48:49], s[0:1], 96
    v_lshrrev_b32 v3, 6, v0
    v_and_b32 v1, 63, v0
    v_lshlrev_b32 v5, 4, v0                  ; tid*16
    v_readfirstlane_b32 s26, v3              ; wave
    s_lshl_b32 s29, s2, 1                    ; d0
    s_mul_i32 s32, s29, {KCH}
    s_add_u32 s32, s32, {WS_KE}
    s_add_u32 s33, s32, {KCH}
    s_lshl_b32 s36, s29, 12
    s_add_u32 s36, s36, {WS_XT}
    s_add_u32 s37, s36, 4096
    v_lshlrev_b32 v6, 5, v0
    s_mov_b32 s38, {WS_ST1}
    s_lshr_b32 s27, s26, 1                   ; ch
    s_and_b32 s28, s26, 1                    ; hf
    s_add_u32 s30, s29, s27                  ; d
    s_waitcnt lgkmcnt(0)
    """)
    srd(a, 8, 20, WS_SIZE)
    a.stamp(0)
    a(f"""
    buffer_load_dwordx4 v[8:11], v5, s[8:11], s36 offen          ; x ch0
    buffer_load_dwordx4 v[12:15], v5, s[8:11], s37 offen         ; x ch1
    buffer_load_dwordx4 v[16:19], v6, s[8:11], s38 offen         ; stats
    buffer_load_dwordx4 v[20:23], v6, s[8:11], s38 offen offset:16
    buffer_load_dwordx4 v[24:27], v5, s[8:11], s32 offen         ; K ch0
    buffer_load_dwordx2 v[28:29], v5, s[8:11], s32 offen offset:16
    buffer_load_dwordx4 v[32:35], v5, s[8:11], s33 offen         ; K ch1
    buffer_load_dwordx2 v[36:37], v5, s[8:11], s33 offen offset:16
    s_lshl_b32 s31, s29, 2
    s_add_u32 s4, s20, s31
    s_addc_u32 s5, s21, 0
    s_load_dwordx2 s[12:13], s[4:5], {WS_MOD}            ; sa
    s_load_dwordx2 s[14:15], s[4:5], {WS_MOD + 2048}     ; ca
    s_load_dwordx2 s[16:17], s[4:5], {WS_MOD + 4096}     ; ga
    """)
    a.stamp(1)
    a(f"""
    v_and_b32 v7, 15, v1                     ; j / i
    v_lshrrev_b32 v2, 4, v1                  ; G / g
    v_lshlrev_b32 v4, 5, v7
    v_lshl_add_u32 v4, v2, 3, v4
    s_lshl_b32 s39, s30, 12
    s_lshl_b32 s40, s28, 11
    s_add_u32 s39, s39, s40
    s_add_u32 s41, s39, {WS_XT}
    s_add_u32 s42, s39, {WS_X2T}
    v_mov_b32 v56, 0
    v_mov_b32 v57, 0
    v_mov_b32 v58, 0
    v_mov_b32 v59, 0
    v_lshrrev_b32 v60, 1, v0
    v_mul_u32_u24 v60, {KCP}, v60
    v_and_b32 v61, 1, v0
    v_lshl_add_u32 v60, v61, 4, v60
    v_add_u32 v60, 4096, v60
    v_bfe_u32 v61, v0, 5, 1
    v_mul_u32_u24 v61, {HCH}, v61
    v_and_b32 v62, 31, v0
    v_lshl_add_u32 v61, v62, 4, v61
    v_add_u32 v61, {H_OFF}, v61
    v_cmp_gt_u32 vcc, 16, v0
    s_cmp_eq_u32 s26, 1
    s_cbranch_scc1 conv_padh
    s_cmp_eq_u32 s26, 0
    s_cbranch_scc0 conv_pad_done
    s_and_saveexec_b64 s[44:45], vcc
    ds_write_b128 v60, v[56:59]
    s_mov_b64 exec, s[44:45]
    s_branch conv_pad_done
    conv_padh:
    ds_write_b128 v61, v[56:59]
    conv_pad_done:
    v_sub_u32 v60, 3, v7
    v_and_b32 v60, 3, v60                    ; c
    v_mul_u32_u24 v61, {KCP - 2}, v60
    v_lshlrev_b32 v62, 1, v7
    v_sub_u32 v61, v61, v62
    v_lshl_add_u32 v61, v2, 4, v61
    s_mul_i32 s43, s27, {KCHL}
    s_lshl_b32 s44, s28, 8
    s_sub_u32 s43, s43, s44
    s_add_u32 s43, s43, {2*(2031 - 32*59)}
    v_add_u32 v40, s43, v61                  ; v40 = A base
    v_lshlrev_b32 v41, 5, v7
    v_lshl_add_u32 v41, v2, 4, v41
    s_mul_i32 s43, s27, {HCH}
    s_sub_u32 s43, s43, s44
    s_add_u32 s43, s43, {H_OFF + 2*(240 - 96)}
    v_add_u32 v41, s43, v41                  ; v41 = B base
    v_add_u32 v42, {H_OFF + 512}, v5
    """)
    for t in range(8):
        for r in range(4): a(f"v_mov_b32 v{VY+4*t+r}, 0")
    a(f"""
    s_waitcnt lgkmcnt(0)
    v_add_f32 v44, 1.0, s14
    v_add_f32 v45, 1.0, s15
    v_cvt_pk_bf16_f32 v44, v44, v45
    v_mov_b32 v46, s12
    v_mov_b32 v47, s13
    v_and_b32 v45, 0xffff0000, v44
    v_lshlrev_b32 v44, 16, v44
    s_cmp_eq_u32 s27, 0
    s_cselect_b32 s46, s16, s17
    s_waitcnt vmcnt(4)
    """)
    a.stamp(2)
    for e in range(8):
        a(f"v_lshlrev_b32 v{64+e}, 16, v{16+e}")
        a(f"v_and_b32 v{72+e}, 0xffff0000, v{16+e}")
    for ch in range(2):
        src = 8 + 4 * ch; gam = 44 + ch; sa = 46 + ch
        for e in range(8):
            a(f"v_lshlrev_b32 v{80+e}, 16, v{src + e//2}" if e % 2 == 0 else f"v_and_b32 v{80+e}, 0xffff0000, v{src + e//2}")
        for e in range(8): a(f"v_fma_f32 v{80+e}, v{80+e}, v{64+e}, v{72+e}")
        for e in range(8): a(f"v_fma_f32 v{80+e}, v{80+e}, v{gam}, v{sa}")
        for p in range(4): a(f"v_cvt_pk_bf16_f32 v{src+p}, v{80+2*p}, v{81+2*p}")
        a(f"ds_write_b128 v42, v[{src}:{src+3}] offset:{ch*HCH}")
    for ch in range(2):
        D = 24 + 8 * ch
        a(f"s_waitcnt vmcnt({2 - 2*ch})")
        base = ch * KCHL
        a(f"ds_write_b128 v5, v[{D}:{D+3}] offset:{base}")
        for k in range(4): a(f"v_alignbit_b32 v{88+k}, v{D+k+1}, v{D+k}, 16")
        a(f"ds_write_b128 v5, v[88:91] offset:{base + KCP}")
        a(f"v_mov_b64 v[92:93], v[{D+2}:{D+3}]" if False else f"v_mov_b32 v92, v{D+1}")
        a(f"v_mov_b32 v93, v{D+2}")
        a(f"v_mov_b32 v94, v{D+3}")
        a(f"v_mov_b32 v95, v{D+4}")
        a(f"ds_write_b128 v5, v[92:95] offset:{base + 2*KCP}")
        a(f"v_mov_b32 v48, v89")
        a(f"v_mov_b32 v49, v90")
        a(f"v_mov_b32 v50, v91")
        a(f"v_alignbit_b32 v51, v{D+5}, v{D+4}, 16")
        a(f"ds_write_b128 v5, v[48:51] offset:{base + 3*KCP}")
    a("s_waitcnt lgkmcnt(0)")
    a.stamp(3)
    a("s_barrier")
    a.stamp(4)
    T = LdsTracker(a)
    def ldA(p, r):
        off = 512 * (7 - p) + 64 * (3 - r)
        T.issue(f"ds_read_b64 v[{VA+4*p}:{VA+4*p+1}], v40 offset:{off}", [f"A{p}"])
        T.issue(f"ds_read_b64 v[{VA+4*p+2}:{VA+4*p+3}], v40 offset:{off+8}", [f"A{p}"])
    def ldB(k, r):
        off = 512 * k + 64 * (3 - r)
        T.issue(f"ds_read_b128 v[{VB+4*k}:{VB+4*k+3}], v41 offset:{off}", [f"B{k}"])
    for p in range(8):
        ldB(7 - p, 0); ldA(p, 0)
    for i in range(4):
        a(f"buffer_load_dwordx2 v[{48+2*i}:{49+2*i}], v4, s[8:11], s41 offen offset:{512*i}")
    a(f"""
    s_lshr_b32 s47, s2, 3
    s_mul_i32 s47, s47, 44032
    v_lshlrev_b32 v8, 6, v0                  ; tid*64
    v_add_u32 v8, s47, v8
    global_load_dword v9, v8, s[48:49]
    v_add_u32 v8, 16384, v8
    global_load_dword v10, v8, s[48:49]
    s_add_u32 s47, s47, {32768 + 175*64}
    v_add_u32 v8, 16384, v8
    v_min_u32 v8, s47, v8
    global_load_dword v11, v8, s[48:49]
    """)
    for r in range(4):
        for p in range(8):
            for t in range(7, p - 1, -1):
                k = t - p
                T.need([f"A{p}", f"B{k}"])
                a(f"v_mfma_f32_16x16x32_bf16 v[{VY+4*t}:{VY+4*t+3}], v[{VA+4*p}:{VA+4*p+3}], v[{VB+4*k}:{VB+4*k+3}], v[{VY+4*t}:{VY+4*t+3}]")
                if t == 7 and r < 3: ldB(7 - p, r + 1)
            if r < 3: ldA(p, r + 1)
    a.stamp(5)
    a(f"""
    s_lshl_b32 s43, s26, 12
    s_add_u32 s43, s43, {RED_OFF}
    v_lshlrev_b32 v33, 4, v1
    v_add_u32 v34, s43, v33
    s_xor_b32 s43, s26, 1
    s_lshl_b32 s43, s43, 12
    s_add_u32 s43, s43, {RED_OFF}
    v_add_u32 v35, s43, v33
    s_cmp_eq_u32 s28, 1
    s_cbranch_scc1 conv_hf1
    """)
    def tail(hf):
        keep, send = 4 * hf, 4 * (1 - hf)
        a("s_nop 1")
        for i in range(4):
            t = send + i
            a(f"ds_write_b128 v34, v[{VY+4*t}:{VY+4*t+3}] offset:{1024*i}")
        a("s_waitcnt vmcnt(3)")
        for i in range(4):
            x0, x1 = 48 + 2 * i, 49 + 2 * i
            a(f"v_lshlrev_b32 v{80+4*i}, 16, v{x0}")
            a(f"v_and_b32 v{81+4*i}, 0xffff0000, v{x0}")
            a(f"v_lshlrev_b32 v{82+4*i}, 16, v{x1}")
            a(f"v_and_b32 v{83+4*i}, 0xffff0000, v{x1}")
        for i in range(4):
            for r in range(4): a(f"v_fma_f32 v{80+4*i+r}, s46, v{VY+4*(keep+i)+r}, v{80+4*i+r}")
        a("s_waitcnt lgkmcnt(0)")
        a("s_barrier")
        for i in range(4): a(f"ds_read_b128 v[{64+4*i}:{67+4*i}], v35 offset:{1024*i}")
        for i in range(4):
            a(f"s_waitcnt lgkmcnt({3-i})")
            for r in range(4): a(f"v_fma_f32 v{80+4*i+r}, s46, v{64+4*i+r}, v{80+4*i+r}")
            a(f"v_cvt_pk_bf16_f32 v{12+2*i}, v{80+4*i}, v{81+4*i}")
            a(f"v_cvt_pk_bf16_f32 v{13+2*i}, v{82+4*i}, v{83+4*i}")
            a(f"buffer_store_dwordx2 v[{12+2*i}:{13+2*i}], v4, s[8:11], s42 offen offset:{512*i}{SC}")
        a("s_endpgm")
    tail(0)
    a("conv_hf1:")
    tail(1)

def gen_w1p(a):
    FR = 0; RED1 = 32768; RED2 = RED1 + 9216; RED3 = RED2 + 9216
    a(f"""
    w1p:
    s_load_dwordx4 s[4:7], s[0:1], 80        ; w1, b1
    s_load_dwordx2 s[20:21], s[0:1], 144
    s_sub_u32 s3, s2, {NCONV}                ; fblk
    v_lshrrev_b32 v3, 2, v0                  ; rg
    v_and_b32 v4, 3, v0                      ; cc
    v_mul_u32_u24 v5, {8*2752}, v3
    v_lshl_add_u32 v5, v4, 4, v5
    s_lshl_b32 s9, s3, 6
    v_add_u32 v5, s9, v5
    v_lshlrev_b32 v6, 5, v3
    s_waitcnt lgkmcnt(0)
    s_add_u32 s12, s20, {WS_MOD + 3*2048}
    s_addc_u32 s13, s21, 0
    global_load_dwordx4 v[8:11], v6, s[12:13]              ; sb
    global_load_dwordx4 v[12:15], v6, s[12:13] offset:16
    global_load_dwordx4 v[16:19], v6, s[12:13] offset:2048 ; cb
    global_load_dwordx4 v[20:23], v6, s[12:13] offset:2064
    """)
    for i in range(8):
        if i: a("v_add_u32 v5, 2752, v5")
        a(f"global_load_dwordx4 v[{24+4*i}:{27+4*i}], v5, s[4:5]")
    a(f"""
    v_and_b32 v7, 31, v0
    v_lshlrev_b32 v7, 1, v7
    s_lshl_b32 s9, s3, 6
    v_add_u32 v7, s9, v7
    global_load_ushort v56, v7, s[6:7]
    v_mov_b32 v57, 0x3f803f80
    s_waitcnt vmcnt(9)
    """)
    for i in range(8): a(f"v_add_f32 v{16+i}, 1.0, v{16+i}")
    for i in range(4): a(f"v_cvt_pk_bf16_f32 v{58+i}, v{16+2*i}, v{17+2*i}")
    for i in range(8):
        if i % 2 == 0: a(f"v_lshlrev_b32 v{16+i}, 16, v{58+i//2}")
        else: a(f"v_and_b32 v{16+i}, 0xffff0000, v{58+i//2}")
    for e in range(16): a(f"v_mov_b32 v{96+e}, 0")
    for u in range(4):
        a(f"s_waitcnt vmcnt({1 + 6 - 2*u})")
        for h in range(2):
            i = 2 * u + h
            for e in range(8):
                src = 24 + 4 * i + e // 2
                if e % 2 == 0: a(f"v_lshlrev_b32 v{112+8*h+e}, 16, v{src}")
                else: a(f"v_and_b32 v{112+8*h+e}, 0xffff0000, v{src}")
            for e in range(8): a(f"v_fmac_f32 v{104+e}, v{8+i}, v{112+8*h+e}")
            for e in range(8): a(f"v_mul_f32 v{112+8*h+e}, v{16+i}, v{112+8*h+e}")
        for e in range(8): a(f"v_cvt_pk_bf16_f32 v{64+4*e+u}, v{112+e}, v{120+e}")
        for e in range(8): a(f"v_dot2_f32_bf16 v{96+e}, v{64+4*e+u}, v57, v{96+e}")
    a(f"""
    s_waitcnt vmcnt(0)
    s_waitcnt vmcnt(0)
    v_lshrrev_b32 v5, 1, v3
    v_lshlrev_b32 v5, 10, v5
    v_and_b32 v6, 1, v3
    v_lshl_add_u32 v5, v6, 9, v5
    v_lshl_add_u32 v5, v4, 7, v5
    v_lshl_add_u32 v6, v6, 2, v4
    """)
    for e in range(8):
        a(f"v_xor_b32 v7, {e}, v6")
        a(f"v_lshl_add_u32 v7, v7, 4, v5")
        a(f"ds_write_b128 v7, v[{64+4*e}:{67+4*e}] offset:{FR}")
    a(f"""
    v_mul_u32_u24 v5, 144, v3
    v_lshl_add_u32 v5, v4, 5, v5
    ds_write_b128 v5, v[96:99] offset:{RED1}
    ds_write_b128 v5, v[100:103] offset:{RED1+16}
    ds_write_b128 v5, v[104:107] offset:{RED2}
    ds_write_b128 v5, v[108:111] offset:{RED2+16}
    v_and_b32 v1, 63, v0
    v_lshrrev_b32 v2, 6, v0                  ; wave
    v_lshrrev_b32 v6, 5, v1                  ; g
    v_bfe_u32 v7, v1, 3, 2                   ; cc
    v_and_b32 v8, 7, v1                      ; e
    v_lshl_add_u32 v9, v6, 2, v7             ; 4g+cc
    v_xor_b32 v8, v8, v9
    v_lshl_add_u32 v8, v7, 3, v8             ; slot
    v_lshlrev_b32 v8, 4, v8
    v_lshl_add_u32 v8, v6, 9, v8
    v_lshl_add_u32 v8, v2, 13, v8
    v_lshlrev_b32 v9, 4, v1
    v_lshl_add_u32 v9, v2, 13, v9
    s_lshl_b32 s9, s3, 15
    s_add_u32 s9, s9, {WS_W1F}
    v_add_u32 v9, s9, v9
    v_and_b32 v6, 31, v0
    v_lshrrev_b32 v7, 5, v0
    v_mul_u32_u24 v7, {8*144}, v7
    v_lshl_add_u32 v7, v6, 2, v7
    s_waitcnt lgkmcnt(0)
    s_barrier
    """)
    for s in range(8): a(f"ds_read_b128 v[{64+4*s}:{67+4*s}], v8 offset:{FR + 1024*s}")
    for i in range(8): a(f"ds_read_b32 v{16+i}, v7 offset:{RED1 + 144*i}")
    for s in range(8):
        a(f"s_waitcnt lgkmcnt({15-s})")
        a(f"global_store_dwordx4 v9, v[{64+4*s}:{67+4*s}], s[20:21] offset:{1024*(s%4)}{SC}")
        if s == 3: a("v_add_u32 v9, 4096, v9")
    for i in range(8): a(f"ds_read_b32 v{24+i}, v7 offset:{RED2 + 144*i}")
    a("s_waitcnt lgkmcnt(0)")
    for b in (16, 24):
        a(f"""
        v_add_f32 v{b}, v{b}, v{b+1}
        v_add_f32 v{b+2}, v{b+2}, v{b+3}
        v_add_f32 v{b+4}, v{b+4}, v{b+5}
        v_add_f32 v{b+6}, v{b+6}, v{b+7}
        v_add_f32 v{b}, v{b}, v{b+2}
        v_add_f32 v{b+4}, v{b+4}, v{b+6}
        v_add_f32 v{b}, v{b}, v{b+4}
        """)
    a(f"""
    v_lshlrev_b32 v5, 2, v0
    ds_write_b32 v5, v16 offset:{RED3}
    ds_write_b32 v5, v24 offset:{RED3+1024}
    s_waitcnt lgkmcnt(0)
    s_barrier
    v_cmp_gt_u32 vcc, 32, v0
    s_and_saveexec_b64 s[30:31], vcc
    s_cbranch_execz w1p_end
    """)
    for i in range(8): a(f"ds_read_b32 v{16+i}, v5 offset:{RED3 + 128*i}")
    for i in range(8): a(f"ds_read_b32 v{24+i}, v5 offset:{RED3 + 1024 + 128*i}")
    a("s_waitcnt lgkmcnt(0)")
    for b in (16, 24):
        a(f"""
        v_add_f32 v{b}, v{b}, v{b+1}
        v_add_f32 v{b+2}, v{b+2}, v{b+3}
        v_add_f32 v{b+4}, v{b+4}, v{b+5}
        v_add_f32 v{b+6}, v{b+6}, v{b+7}
        v_add_f32 v{b}, v{b}, v{b+2}
        v_add_f32 v{b+4}, v{b+4}, v{b+6}
        v_add_f32 v{b}, v{b}, v{b+4}
        """)
    a(f"""
    v_lshlrev_b32 v56, 16, v56
    v_add_f32 v24, v24, v56
    s_lshl_b32 s9, s3, 7
    s_add_u32 s10, s9, {WS_CS}
    v_add_u32 v6, s10, v5
    s_add_u32 s10, s9, {WS_B1P}
    v_add_u32 v7, s10, v5
    global_store_dword v6, v16, s[20:21]
    global_store_dword v7, v24, s[20:21]
    w1p_end:
    s_endpgm
    """)

def gen_B(a):
    a(f"""
    s_cmp_lt_u32 s2, {NCONV}
    s_cbranch_scc1 conv
    s_cmp_lt_u32 s2, {B_GRID}
    s_cbranch_scc1 w1p
    s_endpgm
    """)
    gen_conv(a); gen_w1p(a)

C_GRID = 256
C_SLOT = 28672
C_NS = 4
C_TAB = C_NS * C_SLOT
C_LDS = C_TAB + 768

def gen_C(a):
    ACC, AQ, AS, FB = 64, 112, 120, 128
    a(f"""
    s_and_b32 s6, s2, 7
    s_lshr_b32 s7, s2, 3                     ; j
    s_and_b32 s4, s6, 3
    s_lshl_b32 s4, s4, 2
    s_and_b32 s12, s7, 3
    s_add_u32 s4, s4, s12                    ; lt = 4(k&3) + (j&3)
    s_lshr_b32 s5, s6, 2
    s_lshl_b32 s5, s5, 3
    s_lshr_b32 s13, s7, 2
    s_add_u32 s5, s5, s13                    ; fg = 8(k>>2) + (j>>2)
    s_cmp_ge_u32 s2, {C_GRID}
    s_cbranch_scc1 c_end
    s_cmp_ge_u32 s5, 15
    s_cbranch_scc1 c_end
    s_load_dwordx2 s[20:21], s[0:1], 144
    s_lshl_b32 s12, s12, 1
    s_add_u32 s36, s12, s13
    v_lshrrev_b32 v3, 6, v0
    v_and_b32 v1, 63, v0
    v_lshlrev_b32 v4, 4, v1                  ; lane*16
    v_readfirstlane_b32 s26, v3              ; wave
    s_cmp_lt_u32 s26, 4
    s_cbranch_scc1 c_compute
    s_sub_u32 s26, s26, 4
    v_lshrrev_b32 v5, 4, v1
    v_lshlrev_b32 v6, 2, v5
    v_and_b32 v7, 15, v1
    v_xor_b32 v6, v6, v7
    v_lshlrev_b32 v6, 4, v6
    v_lshl_add_u32 v5, v5, 12, v6
    s_mul_i32 s6, s5, {3*32*1024}
    s_add_u32 s6, s6, {WS_W1F}
    s_mul_i32 s7, s26, 3
    """)
    for i in range(3):
        a(f"""
        s_add_u32 s12, s7, {i}
        s_lshr_b32 s13, s12, 2
        s_and_b32 s12, s12, 3
        s_lshl_b32 s13, s13, 15
        s_lshl_b32 s12, s12, 10
        s_add_u32 s12, s12, s13
        s_add_u32 s{30+i}, s12, s6
        """)
    a(f"""
    s_lshl_b32 s12, s26, 16
    s_lshl_b32 s13, s4, 8
    s_add_u32 s12, s12, s13
    s_add_u32 s33, s12, {WS_X2T}
    s_mul_i32 s34, s26, 3072
    s_lshl_b32 s35, s26, 12
    s_add_u32 s35, s35, 12288
    s_waitcnt lgkmcnt(0)
    """)
    srd(a, 8, 20, WS_SIZE)
    a.stamp(0)
    def dma(c):
        slot = (c % C_NS) * C_SLOT
        a(f"s_add_u32 s37, s36, {c}\ns_and_b32 s37, s37, 7\ns_lshl_b32 s38, s37, 18\ns_lshl_b32 s37, s37, 12\ns_add_u32 s38, s38, s33")
        for j in range(4):
            a(f"s_add_u32 m0, s35, {slot + 1024*j}")
            if j: a(f"s_add_u32 s38, s38, 16384")
            else: a("s_nop 0")
            a(f"buffer_load_dwordx4 v5, s[8:11], s38 offen lds")
        for i in range(3):
            a(f"s_add_u32 m0, s34, {slot + 1024*i}")
            a(f"s_add_u32 s12, s{30+i}, s37")
            a(f"buffer_load_dwordx4 v4, s[8:11], s12 offen lds")
    for c in range(C_NS - 1): dma(c)
    a.stamp(1)
    for c in range(8):
        last = min(7, c + C_NS - 2)
        a(f"s_waitcnt vmcnt({7*(last - c)})")
        a("s_barrier")
        if c in (0, 1): a.stamp(3 + c)
        if c + C_NS - 1 <= 7: dma(c + C_NS - 1)
    a.stamp(5)
    a("s_endpgm")
    a(f"""
    c_compute:
    v_lshlrev_b32 v8, 2, v0
    s_mul_i32 s12, s5, 384
    s_add_u32 s13, s12, {WS_CS}
    s_add_u32 s12, s12, {WS_B1P}
    v_and_b32 v6, 15, v1
    v_lshrrev_b32 v7, 2, v6                  ; r
    v_and_b32 v6, 3, v6                      ; c
    v_lshrrev_b32 v9, 5, v1                  ; g
    v_lshl_add_u32 v12, v9, 3, v7
    v_lshlrev_b32 v12, 8, v12
    v_bfe_u32 v13, v1, 4, 1
    v_lshlrev_b32 v13, 1, v13
    v_lshl_add_u32 v13, v3, 2, v13
    v_lshrrev_b32 v14, 1, v6
    v_add_u32 v13, v13, v14
    v_lshlrev_b32 v14, 2, v7
    v_xor_b32 v13, v13, v14
    v_lshl_add_u32 v12, v13, 4, v12
    v_and_b32 v6, 1, v6
    v_lshl_add_u32 v12, v6, 3, v12
    v_add_u32 v16, 12288, v12
    v_add_u32 v17, {2*C_SLOT}, v16
    v_mov_b32 v19, v4
    v_add_u32 v20, {2*C_SLOT}, v4
    v_mov_b32 v22, 0x3f803f80
    v_mov_b32 v23, 0x3f803f80
    v_add_u32 v9, {C_TAB}, v8
    s_waitcnt lgkmcnt(0)
    """)
    srd(a, 8, 20, WS_SIZE)
    a.stamp(0)
    a("""
    buffer_load_dword v10, v8, s[8:11], s13 offen
    buffer_load_dword v11, v8, s[8:11], s12 offen
    """)
    for r in range(ACC, FB): a(f"v_mov_b32 v{r}, 0")
    T = LdsTracker(a)
    def reads(c, s):
        slot = c % C_NS
        grp = slot // 2; so = (slot % 2) * C_SLOT
        buf = (4 * c + s) % 3
        fb = FB + 16 * buf
        T.issue(f"ds_read_b64_tr_b16 v[{fb+12}:{fb+13}], v{16+grp} offset:{so + s*4096}", [f"x{buf}"])
        T.issue(f"ds_read_b64_tr_b16 v[{fb+14}:{fb+15}], v{16+grp} offset:{so + s*4096 + 1024}", [f"x{buf}"])
        for b in range(3):
            T.issue(f"ds_read_b128 v[{fb+4*b}:{fb+4*b+3}], v{19+grp} offset:{so + (b*4+s)*1024}", [f"w{buf}{b}"])
    def mfmas(c, s):
        buf = (4 * c + s) % 3; fb = FB + 16 * buf
        T.need([f"x{buf}"])
        a(f"v_mfma_f32_4x4x4_16b_bf16 v[{AQ}:{AQ+3}], v[{fb+12}:{fb+13}], v[{fb+12}:{fb+13}], v[{AQ}:{AQ+3}]")
        a(f"v_mfma_f32_4x4x4_16b_bf16 v[{AS}:{AS+3}], v[22:23], v[{fb+12}:{fb+13}], v[{AS}:{AS+3}]")
        a(f"v_mfma_f32_4x4x4_16b_bf16 v[{AQ+4}:{AQ+7}], v[{fb+14}:{fb+15}], v[{fb+14}:{fb+15}], v[{AQ+4}:{AQ+7}]")
        a(f"v_mfma_f32_4x4x4_16b_bf16 v[{AS+4}:{AS+7}], v[22:23], v[{fb+14}:{fb+15}], v[{AS+4}:{AS+7}]")
        for b in range(3):
            T.need([f"w{buf}{b}"])
            a(f"v_mfma_f32_32x32x16_bf16 v[{ACC+16*b}:{ACC+16*b+15}], v[{fb+4*b}:{fb+4*b+3}], v[{fb+12}:{fb+15}], v[{ACC+16*b}:{ACC+16*b+15}]")
    for c in range(8):
        if c == 1:
            a("""
            s_waitcnt vmcnt(0)
            v_cmp_gt_u32 vcc, 96, v0
            s_and_saveexec_b64 s[14:15], vcc
            ds_write_b32 v9, v10
            ds_write_b32 v9, v11 offset:384
            s_mov_b64 exec, s[14:15]
            """)
            T.issued += 2
        T.drain()
        a("s_barrier")
        if c in (0, 1): a.stamp(3 + c)
        reads(c, 0); reads(c, 1)
        if c > 0: mfmas(c - 1, 3)
        mfmas(c, 0); reads(c, 2)
        mfmas(c, 1); reads(c, 3)
        mfmas(c, 2)
    mfmas(7, 3)
    a.stamp(5)
    a(f"""
    v_and_b32 v6, 3, v1
    v_cmp_eq_u32 s[12:13], 1, v6
    v_cmp_eq_u32 s[14:15], 2, v6
    v_cmp_eq_u32 s[16:17], 3, v6
    v_lshrrev_b32 v6, 5, v1
    v_lshlrev_b32 v6, 4, v6
    v_add_u32 v6, {C_TAB}, v6
    """)
    for q in range(4):
        a(f"ds_read_b128 v[{28+4*q}:{31+4*q}], v6 offset:{(8*q)*4}")
        a(f"ds_read_b128 v[{44+4*q}:{47+4*q}], v6 offset:{384 + (8*q)*4}")
    a(f"""
    v_add_f32 v{AQ}, v{AQ}, v{AQ+4}
    v_add_f32 v{AQ+1}, v{AQ+1}, v{AQ+5}
    v_add_f32 v{AQ+2}, v{AQ+2}, v{AQ+6}
    v_add_f32 v{AQ+3}, v{AQ+3}, v{AQ+7}
    v_add_f32 v{AS}, v{AS}, v{AS+4}
    v_cndmask_b32 v{AQ}, v{AQ}, v{AQ+1}, s[12:13]
    v_cndmask_b32 v{AQ}, v{AQ}, v{AQ+2}, s[14:15]
    v_cndmask_b32 v{AQ}, v{AQ}, v{AQ+3}, s[16:17]
    v_mov_b32 v25, v{AS}
    v_mov_b32 v24, v{AQ}
    s_nop 1
    v_permlane32_swap_b32 v25, v{AS}
    v_permlane32_swap_b32 v24, v{AQ}
    s_nop 1
    v_add_f32 v25, v25, v{AS}
    v_add_f32 v24, v24, v{AQ}
    v_mul_f32 v25, {fx(1.0/512)}, v25
    v_mul_f32 v24, {fx(1.0/512)}, v24
    v_fma_f32 v24, -v25, v25, v24
    v_max_f32 v24, 0, v24
    v_add_f32 v24, {fx(1e-5)}, v24
    v_rsq_f32 v24, v24                       ; r
    s_lshl_b32 s12, s4, 2
    v_mul_f32 v26, -v25, v24                 ; -mean*r
    s_add_u32 s12, s12, s26
    s_mul_i32 s12, s12, {HS}
    v_mov_b32 v25, v24
    v_mov_b32 v27, v26
    s_mul_i32 s13, s5, 6
    s_add_u32 s12, s12, s13
    s_lshl_b32 s12, s12, 10
    s_add_u32 s12, s12, {WS_HID}
    """)
    for b in range(3):
        cs, bb = (28, 44) if b % 2 == 0 else (144, 160)
        a("s_waitcnt lgkmcnt(0)")
        if b < 2:
            cs2, bb2 = (144, 160) if b % 2 == 0 else (28, 44)
            if b == 1:
                a("s_nop 0")
            for q in range(4):
                a(f"ds_read_b128 v[{cs2+4*q}:{cs2+4*q+3}], v6 offset:{(32*(b+1) + 8*q)*4}")
                a(f"ds_read_b128 v[{bb2+4*q}:{bb2+4*q+3}], v6 offset:{384 + (32*(b+1) + 8*q)*4}")
        for j in range(8):
            a(f"v_pk_fma_f32 v[{bb+2*j}:{bb+2*j+1}], v[26:27], v[{cs+2*j}:{cs+2*j+1}], v[{bb+2*j}:{bb+2*j+1}]")
        for j in range(8):
            a(f"v_pk_fma_f32 v[{bb+2*j}:{bb+2*j+1}], v[24:25], v[{ACC+16*b+2*j}:{ACC+16*b+2*j+1}], v[{bb+2*j}:{bb+2*j+1}]")
        for j in range(16): a(f"v_max_f32 v{bb+j}, 0, v{bb+j}")
        for j in range(8): a(f"v_pk_mul_f32 v[{bb+2*j}:{bb+2*j+1}], v[{bb+2*j}:{bb+2*j+1}], v[{bb+2*j}:{bb+2*j+1}]")
        o = ACC + 16 * b
        for j in range(8): a(f"v_cvt_pk_bf16_f32 v{o+j}, v{bb+2*j}, v{bb+2*j+1}")
        a("s_nop 1")
        a(f"v_permlane32_swap_b32 v{o}, v{o+2}")
        a(f"v_permlane32_swap_b32 v{o+1}, v{o+3}")
        a(f"v_permlane32_swap_b32 v{o+4}, v{o+6}")
        a(f"v_permlane32_swap_b32 v{o+5}, v{o+7}")
        a(f"buffer_store_dwordx4 v[{o}:{o+3}], v4, s[8:11], s12 offen{SC}")
        a(f"buffer_store_dwordx4 v[{o+4}:{o+7}], v4, s[8:11], s12 offen offset:1024{SC}")
        a("s_add_u32 s12, s12, 2048")
        if b == 0:
            a(f"""
            s_cmp_eq_u32 s5, 14
            s_cbranch_scc0 c_more
            v_mov_b32 v28, 0
            v_mov_b32 v29, 0
            v_mov_b32 v30, 0
            v_mov_b32 v31, 0
            buffer_store_dwordx4 v[28:31], v4, s[8:11], s12 offen{SC}
            buffer_store_dwordx4 v[28:31], v4, s[8:11], s12 offen offset:1024{SC}
            s_endpgm
            c_more:
            """)
    a("c_end:\ns_endpgm")

D_GRID = 256
D_SLOT = 32768
D_NS = 4
D_X2 = D_NS * D_SLOT
D_TAB = D_X2 + 8192
D_LDS = D_TAB + 512
D_NCH = 11

def gen_D(a):
    ACC, FB = 64, 80
    a(f"""
    s_cmp_ge_u32 s2, {D_GRID}
    s_cbranch_scc1 d_end
    s_load_dwordx2 s[20:21], s[0:1], 144
    s_load_dwordx4 s[16:19], s[0:1], 96      ; w2, b2
    s_load_dwordx2 s[24:25], s[0:1], 128     ; out
    v_lshrrev_b32 v3, 6, v0
    v_and_b32 v1, 63, v0
    s_and_b32 s4, s2, 7
    s_lshl_b32 s4, s4, 2
    s_bfe_u32 s6, s2, 0x20003
    s_add_u32 s4, s4, s6
    s_lshr_b32 s5, s2, 5
    v_readfirstlane_b32 s26, v3              ; wave
    v_lshlrev_b32 v4, 4, v1                  ; lane*16
    s_lshl_b32 s6, s6, 1
    s_add_u32 s36, s6, s5
    s_and_b32 s36, s36, 7
    s_mul_i32 s36, s36, 11
    s_lshr_b32 s36, s36, 3                   ; rotation
    s_and_b32 s27, s26, 1                    ; wm
    s_bfe_u32 s28, s26, 0x10001              ; wn
    s_cmp_lt_u32 s26, 4
    s_cbranch_scc1 d_compute
    s_sub_u32 s26, s26, 4
    v_lshrrev_b32 v5, 3, v1
    v_bfe_u32 v6, v1, 4, 1
    v_lshlrev_b32 v6, 2, v6
    v_and_b32 v7, 7, v1
    v_xor_b32 v6, v6, v7
    v_lshlrev_b32 v6, 4, v6
    v_lshl_add_u32 v5, v5, 10, v6
    v_lshrrev_b32 v9, 3, v1
    v_lshl_add_u32 v9, v9, 12, v6
    s_waitcnt lgkmcnt(0)
    s_cmp_eq_u32 s28, 0
    s_cbranch_scc0 d_hidrole
    s_mov_b32 s8, s16
    s_mov_b32 s9, s17
    s_mov_b32 s10, {1376*512*2}
    s_mov_b32 s11, 0x00020000
    s_lshl_b32 s30, s27, 16
    s_lshl_b32 s12, s5, 7
    s_add_u32 s30, s30, s12
    s_mov_b32 s32, 8192
    s_mov_b32 s33, 131072
    v_mov_b32 v8, v5
    s_branch d_roledone
    d_hidrole:
    s_mov_b32 s8, s20
    s_mov_b32 s9, s21
    s_mov_b32 s10, {WS_SIZE}
    s_mov_b32 s11, 0x00020000
    s_lshl_b32 s30, s4, 1
    s_add_u32 s30, s30, s27
    s_mul_i32 s30, s30, {HS*1024}
    s_add_u32 s30, s30, {WS_HID}
    s_mov_b32 s32, 1024
    s_mov_b32 s33, 8192
    v_mov_b32 v8, v4
    d_roledone:
    s_lshl_b32 s31, s26, 13
    """)
    srd(a, 40, 20, WS_SIZE)
    a.stamp(0)
    def dma(c):
        slot = (c % D_NS) * D_SLOT
        a(f"""
        s_add_u32 s34, s36, {c}
        s_sub_u32 s35, s34, 11
        s_cmp_ge_u32 s34, 11
        s_cselect_b32 s34, s35, s34
        s_mul_i32 s34, s34, s33
        s_add_u32 s34, s34, s30
        """)
        for i in range(8):
            a(f"s_add_u32 m0, s31, {slot + 1024*i}")
            a(f"s_add_u32 s34, s34, s32" if i else "s_nop 0")
            a(f"buffer_load_dwordx4 v8, s[8:11], s34 offen lds")
    dma(0); dma(1)
    a(f"""
    s_lshl_b32 s12, s5, 6
    s_lshl_b32 s13, s26, 4
    s_add_u32 s12, s12, s13
    s_lshl_b32 s12, s12, 12
    s_lshl_b32 s13, s4, 7
    s_add_u32 s12, s12, s13
    s_add_u32 s12, s12, {WS_X2T}
    s_lshl_b32 s13, s26, 11
    s_add_u32 m0, s13, {D_X2}
    s_add_u32 s14, s12, {8*4096}
    buffer_load_dwordx4 v9, s[40:43], s12 offen lds
    s_add_u32 m0, m0, 1024
    s_nop 0
    buffer_load_dwordx4 v9, s[40:43], s14 offen lds
    """)
    dma(2)
    a.stamp(1)
    for c in range(D_NCH):
        last = min(D_NCH - 1, c + D_NS - 2)
        n = 8 * (last - c)
        if c == 0: n += 2
        a(f"s_waitcnt vmcnt({n})")
        a("s_barrier")
        if c in (0, 1, 10): a.stamp(2 + (0, 1, 10).index(c))
        if c + D_NS - 1 < D_NCH: dma(c + D_NS - 1)
    a("s_endpgm")
    a(f"""
    d_compute:
    v_lshlrev_b32 v10, 2, v0
    v_lshlrev_b32 v11, 1, v0
    s_lshl_b32 s12, s5, 7
    v_add_u32 v11, s12, v11
    v_min_u32 v11, 1022, v11
    v_and_b32 v6, 15, v1
    v_lshrrev_b32 v7, 2, v6                  ; r
    v_and_b32 v6, 3, v6                      ; c
    v_lshrrev_b32 v12, 5, v1                 ; g
    v_lshl_add_u32 v12, v12, 3, v7
    v_lshlrev_b32 v12, 7, v12
    v_bfe_u32 v13, v1, 4, 1
    v_lshlrev_b32 v13, 1, v13
    s_lshl_b32 s12, s27, 2
    v_add_u32 v13, s12, v13
    v_lshrrev_b32 v16, 1, v6
    v_add_u32 v13, v13, v16
    v_lshrrev_b32 v7, 1, v7
    v_lshlrev_b32 v7, 2, v7
    v_xor_b32 v13, v13, v7
    v_lshl_add_u32 v12, v13, 4, v12
    v_and_b32 v6, 1, v6
    v_lshl_add_u32 v16, v6, 3, v12
    v_add_u32 v17, {2*D_SLOT}, v16
    s_lshl_b32 s12, s28, 13
    s_add_u32 s12, s12, 16384
    v_add_u32 v18, s12, v4
    v_add_u32 v19, {2*D_SLOT}, v18
    s_waitcnt lgkmcnt(0)
    """)
    srd(a, 40, 20, WS_SIZE)
    a.stamp(0)
    a(f"""
    s_lshl_b32 s12, s5, 8
    s_add_u32 s12, s12, {WS_MOD + 5*2048}
    buffer_load_dword v14, v10, s[40:43], s12 offen
    global_load_ushort v15, v11, s[18:19]
    v_add_u32 v10, {D_TAB}, v10
    """)
    for r in range(16): a(f"v_mov_b32 v{ACC+r}, 0")
    T = LdsTracker(a)
    NB = 4
    def reads(c, s):
        slot = c % D_NS
        grp = slot // 2; so = (slot % 2) * D_SLOT
        g = (8 * c + s) % NB
        fb = FB + 8 * g
        T.issue(f"ds_read_b64_tr_b16 v[{fb}:{fb+1}], v{16+grp} offset:{so + s*2048}", [f"a{g}"])
        T.issue(f"ds_read_b64_tr_b16 v[{fb+2}:{fb+3}], v{16+grp} offset:{so + s*2048 + 512}", [f"a{g}"])
        T.issue(f"ds_read_b128 v[{fb+4}:{fb+7}], v{18+grp} offset:{so + s*1024}", [f"b{g}"])
    def mfma(c, s):
        g = (8 * c + s) % NB; fb = FB + 8 * g
        T.need([f"a{g}", f"b{g}"])
        a(f"v_mfma_f32_32x32x16_bf16 v[{ACC}:{ACC+15}], v[{fb}:{fb+3}], v[{fb+4}:{fb+7}], v[{ACC}:{ACC+15}]")
    for c in range(D_NCH):
        if c == 1:
            a(f"""
            s_waitcnt vmcnt(0)
            v_lshlrev_b32 v15, 16, v15
            v_cmp_gt_u32 vcc, 64, v0
            s_and_saveexec_b64 s[14:15], vcc
            ds_write_b32 v10, v14
            ds_write_b32 v10, v15 offset:256
            s_mov_b64 exec, s[14:15]
            """)
            T.issued += 2
        T.drain()
        a("s_barrier")
        if c in (0, 1, 10): a.stamp(2 + (0, 1, 10).index(c))
        reads(c, 0); reads(c, 1); reads(c, 2)
        if c > 0: mfma(c - 1, 7)
        for s in range(7):
            mfma(c, s)
            if s + 3 < 8: reads(c, s + 3)
    mfma(D_NCH - 1, 7)
    a.stamp(5)
    a(f"""
    v_and_b32 v6, 15, v1
    v_lshrrev_b32 v7, 2, v6
    v_and_b32 v6, 3, v6
    v_lshrrev_b32 v12, 5, v1                 ; h
    v_lshl_add_u32 v13, v12, 2, v7
    s_lshl_b32 s12, s27, 5
    v_add_u32 v13, s12, v13
    v_lshlrev_b32 v13, 7, v13
    v_bfe_u32 v14, v1, 4, 1
    v_lshlrev_b32 v14, 1, v14
    s_lshl_b32 s12, s28, 2
    v_add_u32 v14, s12, v14
    v_lshrrev_b32 v15, 1, v6
    v_add_u32 v14, v14, v15
    v_lshrrev_b32 v7, 1, v7
    v_lshlrev_b32 v7, 2, v7
    v_xor_b32 v14, v14, v7
    v_lshl_add_u32 v13, v14, 4, v13
    v_and_b32 v6, 1, v6
    v_lshl_add_u32 v13, v6, 3, v13
    v_add_u32 v13, {D_X2}, v13
    v_lshlrev_b32 v14, 4, v12
    s_lshl_b32 s12, s27, 7
    s_add_u32 s12, s12, {D_TAB}
    v_add_u32 v14, s12, v14
    """)
    for q in range(4):
        a(f"ds_read_b64_tr_b16 v[{24+2*q}:{25+2*q}], v13 offset:{1024*q}")
        a(f"ds_read_b128 v[{32+4*q}:{35+4*q}], v14 offset:{32*q}")
        a(f"ds_read_b128 v[{48+4*q}:{51+4*q}], v14 offset:{256+32*q}")
    a(f"""
    v_and_b32 v5, 31, v1
    v_lshlrev_b32 v20, 10, v5
    v_lshl_add_u32 v20, v12, 4, v20
    s_lshl_b32 s12, s4, 1
    s_add_u32 s12, s12, s28
    s_lshl_b32 s12, s12, 15
    s_lshl_b32 s13, s5, 1
    s_add_u32 s13, s13, s27
    s_lshl_b32 s13, s13, 6
    s_add_u32 s12, s12, s13
    v_add_u32 v20, s12, v20
    """)
    for q in range(4):
        a(f"s_waitcnt lgkmcnt({3*(3-q)})")
        a(f"v_lshlrev_b32 v8, 16, v{24+2*q}")
        a(f"v_and_b32 v9, 0xffff0000, v{24+2*q}")
        a(f"v_lshlrev_b32 v10, 16, v{25+2*q}")
        a(f"v_and_b32 v11, 0xffff0000, v{25+2*q}")
        for r in range(4): a(f"v_add_f32 v{48+4*q+r}, v{48+4*q+r}, v{ACC+4*q+r}")
        for r in range(4): a(f"v_fma_f32 v{8+r}, v{48+4*q+r}, v{32+4*q+r}, v{8+r}")
        a(f"v_cvt_pk_bf16_f32 v{FB+2*q}, v8, v9")
        a(f"v_cvt_pk_bf16_f32 v{FB+2*q+1}, v10, v11")
    a(f"""
    s_nop 1
    v_permlane32_swap_b32 v{FB}, v{FB+2}
    v_permlane32_swap_b32 v{FB+1}, v{FB+3}
    v_permlane32_swap_b32 v{FB+4}, v{FB+6}
    v_permlane32_swap_b32 v{FB+5}, v{FB+7}
    global_store_dwordx4 v20, v[{FB}:{FB+3}], s[24:25]
    global_store_dwordx4 v20, v[{FB+4}:{FB+7}], s[24:25] offset:32
    d_end:
    s_endpgm
    """)

def kernels():
    return [("conv_kernel", gen_B, 168, B_GRID, 256, B_LDS),
            ("gemm1_kernel", gen_C, 176, C_GRID, 512, C_LDS),
            ("gemm2_kernel", gen_D, 128, D_GRID, 512, D_LDS)]
```

```python
import sys, struct, os

NAME = "adaLN_cond__ssm_conv_s4__dense_activation_squared_relu__prompt"
TS = bool(os.environ.get("TS"))
SC = os.environ.get("SC", "")

WS_MOD  = 0x0000
WS_ST1  = 0x4000
WS_CS   = 0x8000
WS_B1P  = 0xA000
WS_XT   = 0x100000
WS_KE   = 0x300000
KCH     = 4112
WS_W1F  = 0xA00000
WS_X2T  = 0xC00000
WS_HID  = 0x1000000
HS      = 88
WS_SIZE = 268435456
WS_TS   = 0x8000000

def f2u(x): return struct.unpack("<I", struct.pack("<f", x))[0]
def fx(x): return "0x%08x" % f2u(x)

class Asm:
    def __init__(self): self.l = []
    def __call__(self, s):
        for line in s.strip("\n").split("\n"):
            line = line.strip()
            if not line: continue
            self.l.append(line if line.endswith(":") else "    " + line)
    def stamp(self, i):
        if TS: self(f"s_memtime s[{70+2*i}:{71+2*i}]")
    def text(self): return "\n".join(self.l) + "\n"

class LdsTracker:
    def __init__(self, a): self.a = a; self.issued = 0; self.done = 0; self.tag = {}
    def issue(self, text, tags):
        self.a(text)
        for t in tags: self.tag[t] = self.issued
        self.issued += 1
    def need(self, tags):
        idx = max(self.tag[t] for t in tags)
        if idx < self.done: return
        n = min(self.issued - idx - 1, 15)
        self.a(f"s_waitcnt lgkmcnt({n})")
        self.done = self.issued - n
    def drain(self):
        if self.done < self.issued: self.a("s_waitcnt lgkmcnt(0)")
        self.done = self.issued

def cmul(a, d, x, y, t):
    a(f"v_pk_mul_f32 v[{t}:{t+1}], v[{x}:{x+1}], v[{y}:{y+1}] op_sel:[0,0] op_sel_hi:[0,1]")
    a(f"v_pk_fma_f32 v[{d}:{d+1}], v[{x}:{x+1}], v[{y}:{y+1}], v[{t}:{t+1}] op_sel:[1,1,0] op_sel_hi:[1,0,1] neg_lo:[1,0,0]")

def srd(a, s, lo, size):
    a(f"""
    s_mov_b32 s{s}, s{lo}
    s_mov_b32 s{s+1}, s{lo+1}
    s_mov_b32 s{s+2}, {size}
    s_mov_b32 s{s+3}, 0x00020000
    """)

NK, NMOD, NLN = 512, 192, 64
A_GRID = NK + NMOD + NLN
ID_K, ID_MOD, ID_LN = 0, NK, NK + NMOD
TROW = 544; QROW = 41
KC_OFF = 57 * TROW
RS = 1088
A_LDS = max(KC_OFF + 768 * 4, 32 * RS)

def gen_kgen(a):
    a(f"""
    kgen:
    s_load_dwordx4 s[4:7], s[0:1], 8
    s_load_dwordx4 s[8:11], s[0:1], 24
    s_load_dwordx4 s[12:15], s[0:1], 40
    s_load_dwordx4 s[16:19], s[0:1], 56
    s_load_dwordx2 s[20:21], s[0:1], 144
    s_sub_u32 s2, s2, {ID_K}                ; channel d
    v_and_b32 v1, 127, v0
    v_lshlrev_b32 v2, 2, v1
    v_lshlrev_b32 v1, 1, v1
    s_lshl_b32 s3, s2, 8
    v_add_u32 v1, s3, v1                    ; (d*128+n)*2
    s_lshl_b32 s22, s2, 1
    s_and_b32 s22, s22, 0xfffffffc
    s_and_b32 s23, s2, 1
    s_lshl_b32 s23, s23, 4
    v_lshrrev_b32 v3, 6, v0
    s_waitcnt lgkmcnt(0)
    global_load_ushort v10, v1, s[4:5]
    global_load_ushort v11, v1, s[6:7]
    global_load_ushort v12, v1, s[8:9]
    global_load_ushort v13, v1, s[10:11]
    global_load_ushort v14, v1, s[12:13]
    global_load_ushort v15, v1, s[14:15]
    s_load_dword s24, s[16:17], s22
    s_load_dword s25, s[18:19], s22
    v_readfirstlane_b32 s26, v3
    v_lshlrev_b32 v4, 3, v0
    v_sub_u32 v4, 2047, v4                  ; lbase
    """)
    for e in range(8): a(f"v_subrev_u32 v{30+e}, {e}, v4")
    for e in range(8): a(f"v_cvt_f32_u32 v{40+e}, v{30+e}")
    for p in range(4): a(f"v_cvt_pk_bf16_f32 v{50+p}, v{40+2*p}, v{41+2*p}")
    a(f"s_mov_b32 s27, {KC_OFF - 0x10A00}")
    for e in range(8):
        p = e // 2
        a(f"v_and_b32 v{40+e}, 0xffff, v{50+p}" if e % 2 == 0 else f"v_lshrrev_b32 v{40+e}, 16, v{50+p}")
    for e in range(8): a(f"v_lshl_add_u32 v{40+e}, v{40+e}, 2, s27")
    for e in range(8):
        a(f"v_cmp_gt_u32 vcc, 128, v{30+e}")
        a(f"v_lshlrev_b32 v{30+e}, 2, v{30+e}")
        a(f"v_add_u32 v{30+e}, {KC_OFF}, v{30+e}")
        a(f"v_cndmask_b32 v{40+e}, v{40+e}, v{30+e}, vcc")
    a(f"""
    s_waitcnt lgkmcnt(0)
    s_lshr_b32 s24, s24, s23
    s_lshl_b32 s24, s24, 16
    s_lshr_b32 s25, s25, s23
    s_lshl_b32 s25, s25, 16
    v_mov_b32 v5, s24
    v_mul_f32 v6, 0x3fb8aa3b, v5
    s_mov_b32 s28, 0x3fb8aa3b
    v_fma_f32 v7, v5, s28, -v6
    v_fmac_f32 v7, 0x32a5705f, v5
    v_exp_f32 v6, v6
    v_mul_f32 v7, {fx(0.6931471805599453)}, v7
    v_fmac_f32 v6, v6, v7
    v_cvt_pk_bf16_f32 v6, v6, v6
    v_lshlrev_b32 v6, 16, v6                ; dt
    s_waitcnt vmcnt(4)
    v_lshlrev_b32 v10, 16, v10
    v_lshlrev_b32 v11, 16, v11
    v_mul_f32 v10, v6, v10
    v_mul_f32 v11, v6, v11
    v_mul_f32 v10, 0x3fb8aa3b, v10
    v_mul_f32 v11, {fx(0.15915494309189535)}, v11
    """)
    def direct(dst, l, t):
        a(f"""
        v_mul_f32 v{t}, {fx(float(l))}, v10
        v_mul_f32 v{t+1}, {fx(float(l))}, v11
        v_exp_f32 v{t}, v{t}
        v_fract_f32 v{t+1}, v{t+1}
        v_cos_f32 v{dst}, v{t+1}
        v_sin_f32 v{dst+1}, v{t+1}
        s_nop 0
        v_mul_f32 v{dst}, v{t}, v{dst}
        v_mul_f32 v{dst+1}, v{t}, v{dst+1}
        """)
    def wr(row, src, tmp, neg=False):
        a(f"v_cvt_pk_bf16_f32 v{tmp}, v{src}, {'-' if neg else ''}v{src+1}")
        a(f"ds_write_b32 v2, v{tmp} offset:{row*TROW}")
    a.stamp(0)
    a("s_cmp_ge_u32 s26, 2\ns_cbranch_scc1 kgen_setY")
    E8, E128, Q, R, T0, T1 = 20, 22, 24, 26, 28, 60
    direct(E8, 1, 28)
    direct(E128, 128, 28)
    cmul(a, R, E128, E128, T1)
    cmul(a, E8, E8, E8, T0)
    cmul(a, R, R, R, T1)
    cmul(a, E8, E8, E8, T0)
    cmul(a, R, R, R, T1)
    cmul(a, E8, E8, E8, T0)
    a("""
    s_waitcnt vmcnt(0)
    v_lshlrev_b32 v12, 16, v12
    v_lshlrev_b32 v13, 16, v13
    v_lshlrev_b32 v14, 16, v14
    v_lshlrev_b32 v15, 16, v15
    v_mul_f32 v12, v6, v12
    v_mul_f32 v13, v6, v13
    """)
    cmul(a, Q, 14, 12, T0)
    for i in range(16):
        if i < 9:
            wr(32 + i, R, 63)
            if i < 8: cmul(a, R, R, E128, T1)
        wr(QROW + i, Q, 62, neg=True)
        if i < 15: cmul(a, Q, Q, E8, T0)
    a("s_branch kgen_tables_done")
    a("kgen_setY:")
    E = [None, 20, 22, 24, 26, 16, 18, 64]
    E128, X, Y2, T0, T1 = 66, 68, 70, 28, 60
    direct(E[1], 1, 28)
    direct(E128, 128, 28)
    a("v_mov_b32 v62, 0x3f80")
    a(f"ds_write_b32 v2, v62 offset:0")
    cmul(a, E[2], E[1], E[1], T0); wr(1, E[1], 63)
    cmul(a, E[3], E[2], E[1], T1); wr(2, E[2], 62)
    cmul(a, E[4], E[2], E[2], T0); wr(3, E[3], 63)
    cmul(a, E[5], E[4], E[1], T1); wr(4, E[4], 62)
    cmul(a, E[6], E[3], E[3], T0); wr(5, E[5], 63)
    cmul(a, E[7], E[4], E[3], T1); wr(6, E[6], 62)
    cmul(a, X, E128, E128, T0);    wr(7, E[7], 63)
    wr(8, E128, 62)
    for r in range(1, 8):
        cmul(a, Y2, E128, E[r], T1 if r % 2 else T0)
        wr(8 + r, Y2, 62 + (r % 2))
    S = [72, 74, 76, 78]
    a(f"v_mov_b64 v[{S[0]}:{S[0]+1}], v[{X}:{X+1}]")
    cmul(a, S[1], X, E[2], T0)
    cmul(a, S[2], X, E[4], T1)
    cmul(a, S[3], X, E[6], T0)
    cmul(a, X, X, X, T1)
    for r in range(4):
        wr(16 + r, S[r], 62 + (r % 2))
        cmul(a, S[r], S[r], E128, T0 if r % 2 else T1)
    cmul(a, Y2, X, E[4], T0)
    for r in range(4): wr(20 + r, S[r], 62 + (r % 2))
    for p in range(4):
        wr(24 + 2 * p, X, 62)
        wr(25 + 2 * p, Y2, 63)
        if p < 3:
            cmul(a, X, X, E128, T0)
            cmul(a, Y2, Y2, E128, T1)
    a(f"""
    kgen_tables_done:
    v_and_b32 v4, 15, v0                     ; i / j / q
    v_bfe_u32 v5, v0, 4, 2                   ; g / G
    v_lshlrev_b32 v7, 4, v5
    v_mul_u32_u24 v8, {TROW}, v4
    v_add_u32 v8, v8, v7                     ; i*544 + g*16
    s_mul_i32 s27, s26, {16*TROW}
    v_add_u32 v9, s27, v8                    ; A address
    v_add_u32 v8, {QROW*TROW}, v8            ; B address
    v_mov_b32 v20, 0
    v_mov_b32 v21, 0
    v_mov_b32 v22, 0
    v_mov_b32 v23, 0
    v_mov_b32 v24, 0
    v_mov_b32 v25, 0
    v_mov_b32 v26, 0
    v_mov_b32 v27, 0
    s_waitcnt lgkmcnt(0)
    """)
    a.stamp(1)
    a("s_barrier")
    a.stamp(3)
    a("""
    s_cmp_ge_u32 s26, 3
    s_cbranch_scc1 kgen_mfma_done
    """)
    for s in range(8):
        a(f"ds_read_b128 v[{64+8*s}:{67+8*s}], v9 offset:{64*s}")
        a(f"ds_read_b128 v[{68+8*s}:{71+8*s}], v8 offset:{64*s}")
    a(f"""
    s_cmp_eq_u32 s26, 1
    s_cbranch_scc1 kgen_t1
    s_cmp_eq_u32 s26, 2
    s_cbranch_scc1 kgen_t2
    v_and_b32 v7, 1, v5
    v_lshlrev_b32 v7, 2, v7
    v_lshrrev_b32 v16, 1, v5
    v_lshl_add_u32 v7, v16, 7, v7
    v_lshl_add_u32 v7, v4, 3, v7
    v_lshlrev_b32 v7, 2, v7
    v_add_u32 v16, {KC_OFF}, v7
    v_add_u32 v17, 8, v16
    v_mov_b32 v18, 4
    s_branch kgen_addr_done
    kgen_t1:
    v_cmp_gt_u32 vcc, 2, v5
    v_lshlrev_b32 v7, 6, v5
    v_add_u32 v7, 256, v7
    v_lshlrev_b32 v16, 2, v4
    v_lshlrev_b32 v17, 1, v4
    v_cndmask_b32 v16, v17, v16, vcc
    v_add_u32 v7, v7, v16
    v_lshlrev_b32 v7, 2, v7
    v_add_u32 v16, {KC_OFF}, v7
    v_mov_b32 v17, 128
    v_cndmask_b32 v17, v17, 8, vcc
    v_add_u32 v17, v16, v17
    v_mov_b32 v18, 4
    s_branch kgen_addr_done
    kgen_t2:
    v_lshl_add_u32 v7, v5, 6, v4
    v_lshlrev_b32 v7, 2, v7
    v_add_u32 v16, {KC_OFF + 512*4}, v7
    v_add_u32 v17, 128, v16
    v_mov_b32 v18, 64
    kgen_addr_done:
    v_add_u32 v19, v17, v18
    v_add_u32 v18, v16, v18
    v_cmp_eq_u32 vcc, 0, v0
    v_mov_b32 v7, s25
    s_nop 0
    v_cndmask_b32 v7, 0, v7, vcc
    """)
    a.stamp(4)
    for s in range(8):
        a(f"s_waitcnt lgkmcnt({14-2*s})")
        acc = 20 + 4 * (s % 2)
        a(f"v_mfma_f32_16x16x32_bf16 v[{acc}:{acc+3}], v[{64+8*s}:{67+8*s}], v[{68+8*s}:{71+8*s}], v[{acc}:{acc+3}]")
    a.stamp(5)
    a(f"""
    s_nop 7
    v_add_f32 v20, v20, v24
    v_add_f32 v21, v21, v25
    v_add_f32 v22, v22, v26
    v_add_f32 v23, v23, v27
    v_add_f32 v20, v20, v7
    ds_write_b32 v16, v20
    ds_write_b32 v18, v21
    ds_write_b32 v17, v22
    ds_write_b32 v19, v23
    kgen_mfma_done:
    s_waitcnt lgkmcnt(0)
    s_barrier
    """)
    a.stamp(2)
    for e in range(8): a(f"ds_read_b32 v{30+e}, v{40+e}")
    a(f"""
    s_mul_i32 s27, s2, {KCH}
    s_add_u32 s27, s27, {WS_KE}
    v_lshlrev_b32 v4, 4, v0
    v_add_u32 v4, s27, v4
    """)
    for p in range(4):
        a(f"s_waitcnt lgkmcnt({6-2*p})")
        a(f"v_cvt_pk_bf16_f32 v{52+p}, v{30+2*p}, v{31+2*p}")
    a(f"""
    global_store_dwordx4 v4, v[52:55], s[20:21]{SC}
    v_cmp_eq_u32 vcc, 0, v0
    s_and_saveexec_b64 s[30:31], vcc
    s_cbranch_execz kgen_end
    v_mov_b32 v6, s27
    v_add_u32 v6, 4096, v6
    v_mov_b32 v60, 0
    v_mov_b32 v61, 0
    v_mov_b32 v62, 0
    v_mov_b32 v63, 0
    global_store_dwordx4 v6, v[60:63], s[20:21]{SC}
    kgen_end:
    s_endpgm
    """)

def gen_ln1(a):
    a(f"""
    ln1:
    s_load_dwordx2 s[4:5], s[0:1], 0
    s_load_dwordx2 s[20:21], s[0:1], 144
    s_sub_u32 s3, s2, {ID_LN}
    s_and_b32 s6, s3, 7
    s_lshl_b32 s6, s6, 3
    s_lshr_b32 s7, s3, 3
    s_add_u32 s6, s6, s7
    v_lshrrev_b32 v3, 6, v0                  ; wave
    v_and_b32 v1, 63, v0                     ; lane
    v_lshlrev_b32 v4, 13, v3
    v_lshl_add_u32 v4, v1, 4, v4
    s_lshl_b32 s7, s6, 15
    v_add_u32 v4, s7, v4
    v_readfirstlane_b32 s26, v3
    s_waitcnt lgkmcnt(0)
    """)
    for r in range(8):
        if r == 4: a("v_add_u32 v4, 4096, v4")
        a(f"global_load_dwordx4 v[{8+4*r}:{11+4*r}], v4, s[4:5] offset:{1024*(r%4)}")
    a(f"""
    v_mul_u32_u24 v5, {8*RS}, v3
    v_lshl_add_u32 v5, v1, 4, v5
    v_mov_b32 v6, 0x3f803f80
    v_and_b32 v7, 15, v1
    v_lshrrev_b32 v2, 2, v7                  ; r
    v_and_b32 v7, 3, v7                      ; c
    v_mul_u32_u24 v2, {RS}, v2
    v_lshl_add_u32 v2, v7, 3, v2
    v_lshrrev_b32 v7, 4, v1
    v_lshl_add_u32 v2, v7, 5, v2
    v_lshl_add_u32 v2, v3, 8, v2
    s_lshl_b32 s7, s6, 6
    s_add_u32 s7, s7, {WS_XT}
    """)
    for r in range(8):
        b = 8 + 4 * r
        a(f"s_waitcnt vmcnt({7-r})")
        a(f"ds_write_b128 v5, v[{b}:{b+3}] offset:{RS*r}")
        a(f"v_dot2_f32_bf16 v{40+2*r}, v{b}, v6, 0")
        a(f"v_dot2_f32_bf16 v{41+2*r}, v{b}, v{b}, 0")
        for k in range(1, 4):
            a(f"v_dot2_f32_bf16 v{40+2*r}, v{b+k}, v6, v{40+2*r}")
            a(f"v_dot2_f32_bf16 v{41+2*r}, v{b+k}, v{b+k}, v{41+2*r}")
    a("s_waitcnt lgkmcnt(0)\ns_barrier")
    for db in range(2):
        for lg in range(8):
            a(f"ds_read_b64_tr_b16 v[{64+16*db+2*lg}:{65+16*db+2*lg}], v2 offset:{128*db + 4*RS*lg}")
    for dpp in ["row_shr:1", "row_shr:2", "row_shr:4"]:
        for r in range(40, 56): a(f"v_add_f32_dpp v{r}, v{r}, v{r} {dpp} row_mask:0xf bank_mask:0xf")
    a(f"""
    v_bfe_u32 v8, v1, 1, 2                   ; (d>>1)&3
    v_lshlrev_b32 v9, 6, v1                  ; d*64
    v_lshl_add_u32 v9, v3, 13, v9
    v_lshrrev_b32 v10, 2, v1
    v_and_b32 v11, 3, v1                     ; c
    v_bfe_u32 v12, v1, 3, 2                  ; (d>>1)&3
    v_xor_b32 v12, v12, v11
    v_lshlrev_b32 v12, 4, v12
    v_lshl_add_u32 v12, v10, 6, v12
    v_lshl_add_u32 v12, v3, 13, v12
    v_lshl_add_u32 v7, v3, 7, v10
    v_lshlrev_b32 v7, 12, v7
    v_lshl_add_u32 v7, v11, 4, v7
    v_add_u32 v7, s7, v7
    s_waitcnt lgkmcnt(0)
    s_barrier
    """)
    for c in range(4):
        a(f"v_xor_b32 v13, {c}, v8")
        a(f"v_lshl_add_u32 v13, v13, 4, v9")
        a(f"ds_write_b128 v13, v[{64+4*c}:{67+4*c}]")
        a(f"ds_write_b128 v13, v[{80+4*c}:{83+4*c}] offset:4096")
    for dpp in ["row_shr:8", "row_bcast:15 row_mask:0xa", "row_bcast:31 row_mask:0xc"]:
        m = "" if "row_mask" in dpp else " row_mask:0xf"
        for r in range(40, 56): a(f"v_add_f32_dpp v{r}, v{r}, v{r} {dpp}{m} bank_mask:0xf")
    a("s_waitcnt lgkmcnt(0)")
    for m_ in range(8):
        a(f"ds_read_b128 v[{64+4*m_}:{67+4*m_}], v12 offset:{1024*m_}")
    for m_ in range(8):
        a(f"s_waitcnt lgkmcnt({7-m_})")
        a(f"global_store_dwordx4 v7, v[{64+4*m_}:{67+4*m_}], s[20:21]{SC}")
        if m_ < 7: a(f"v_add_u32 v7, {16*4096}, v7")
    for r in range(8):
        a(f"v_readlane_b32 s{32+2*r}, v{40+2*r}, 63")
        a(f"v_readlane_b32 s{33+2*r}, v{41+2*r}, 63")
    a("s_nop 1")
    for r in range(8):
        a(f"v_writelane_b32 v56, s{32+2*r}, {r}")
        a(f"v_writelane_b32 v57, s{33+2*r}, {r}")
    a(f"""
    s_nop 1
    v_mul_f32 v56, {fx(1.0/512)}, v56        ; mean
    v_mul_f32 v57, {fx(1.0/512)}, v57
    v_fma_f32 v57, -v56, v56, v57
    v_max_f32 v57, 0, v57
    v_add_f32 v57, {fx(1e-5)}, v57
    v_rsq_f32 v57, v57
    s_nop 0
    v_mul_f32 v56, -v56, v57
    v_cvt_pk_bf16_f32 v56, v57, v56          ; (r, -mean*r)
    s_lshl_b32 s7, s6, 7
    s_lshl_b32 s8, s26, 5
    s_add_u32 s7, s7, s8
    s_add_u32 s7, s7, {WS_ST1}
    v_lshlrev_b32 v58, 2, v1
    v_add_u32 v58, s7, v58
    v_cmp_gt_u32 vcc, 8, v1
    s_and_saveexec_b64 s[30:31], vcc
    s_cbranch_execz ln1_end
    global_store_dword v58, v56, s[20:21]{SC}
    ln1_end:
    s_endpgm
    """)

def gen_mod16(a, tag):
    a(f"""
    v_lshrrev_b32 v3, 1, v0                  ; rg
    v_and_b32 v4, 1, v0                      ; cc
    v_mul_u32_u24 v5, {4*6144}, v3
    v_lshl_add_u32 v5, v4, 4, v5
    s_lshl_b32 s9, s8, 5
    v_add_u32 v5, s9, v5
    v_lshlrev_b32 v6, 3, v3
    s_waitcnt lgkmcnt(0)
    global_load_dwordx2 v[8:9], v6, s[4:5]
    """)
    for i in range(4):
        if i: a("v_add_u32 v5, 6144, v5")
        a(f"global_load_dwordx4 v[{16+4*i}:{19+4*i}], v5, s[6:7]")

def gen_mod16_compute(a, nlater):
    a(f"s_waitcnt vmcnt({4+nlater})")
    for i in range(4):
        src = 8 + i // 2
        a(f"v_lshlrev_b32 v{10+i}, 16, v{src}" if i % 2 == 0 else f"v_and_b32 v{10+i}, 0xffff0000, v{src}")
    for i in range(4): a(f"v_mul_f32 v{32+i}, {fx(-1.4426950408889634)}, v{10+i}")
    for i in range(4): a(f"v_exp_f32 v{32+i}, v{32+i}")
    for i in range(4): a(f"v_add_f32 v{32+i}, 1.0, v{32+i}")
    for i in range(4): a(f"v_rcp_f32 v{32+i}, v{32+i}")
    a("s_nop 0")
    for i in range(4): a(f"v_mul_f32 v{10+i}, v{10+i}, v{32+i}")
    for i in range(4):
        a(f"v_cvt_pk_bf16_f32 v{32+i}, v{10+i}, 0")
        a(f"v_cvt_pk_bf16_f32 v{36+i}, 0, v{10+i}")
    for i in range(4):
        a(f"s_waitcnt vmcnt({3-i+nlater})")
        for m in range(4):
            c0 = "0" if i == 0 else f"v{40+2*m}"; c1 = "0" if i == 0 else f"v{41+2*m}"
            a(f"v_dot2_f32_bf16 v{40+2*m}, v{16+4*i+m}, v{32+i}, {c0}")
            a(f"v_dot2_f32_bf16 v{41+2*m}, v{16+4*i+m}, v{36+i}, {c1}")
    a("s_nop 2")
    for dpp in ["row_shr:2", "row_shr:4", "row_shr:8"]:
        for r in range(40, 48): a(f"v_add_f32_dpp v{r}, v{r}, v{r} {dpp} row_mask:0xf bank_mask:0xf")
    a(f"""
    v_lshrrev_b32 v5, 4, v0
    v_mul_u32_u24 v5, 80, v5
    v_lshl_add_u32 v5, v4, 5, v5
    v_and_b32 v6, 15, v0
    v_cmp_lt_u32 vcc, 13, v6
    s_and_saveexec_b64 s[30:31], vcc
    ds_write_b128 v5, v[40:43]
    ds_write_b128 v5, v[44:47] offset:16
    s_mov_b64 exec, s[30:31]
    v_lshlrev_b32 v5, 2, v6
    s_waitcnt lgkmcnt(0)
    s_barrier
    """)
    for i in range(16): a(f"ds_read_b32 v{16+i}, v5 offset:{80*i}")
    a("s_waitcnt lgkmcnt(0)")
    for st in (1, 2, 4, 8):
        for i in range(0, 16, 2 * st): a(f"v_add_f32 v{16+i}, v{16+i}, v{16+i+st}")
    a("v_cvt_pk_bf16_f32 v16, v16, v16\nv_lshlrev_b32 v16, 16, v16")

def gen_mod(a):
    a(f"""
    modr:
    s_load_dwordx4 s[4:7], s[0:1], 112       ; c, w_mod
    s_load_dwordx2 s[20:21], s[0:1], 144
    s_sub_u32 s3, s2, {ID_MOD}
    s_and_b32 s8, s3, 7
    s_mul_i32 s8, s8, 24
    s_lshr_b32 s9, s3, 3
    s_add_u32 s8, s8, s9
    """)
    gen_mod16(a, "m"); gen_mod16_compute(a, 0)
    a(f"""
    s_lshl_b32 s9, s8, 6
    s_add_u32 s9, s9, {WS_MOD}
    v_lshlrev_b32 v5, 2, v0
    v_add_u32 v5, s9, v5
    v_cmp_gt_u32 vcc, 16, v0
    s_and_saveexec_b64 s[30:31], vcc
    s_cbranch_execz mod_end
    global_store_dword v5, v16, s[20:21]{SC}
    mod_end:
    s_endpgm
    """)

def gen_A(a):
    a(f"""
    s_cmp_ge_u32 s2, {ID_MOD}
    s_cbranch_scc1 a_other
    """)
    roles = os.environ.get("ROLES", "mlk")
    if "k" in roles: gen_kgen(a)
    else: a("kgen:\ns_endpgm")
    a(f"""
    a_other:
    s_cmp_lt_u32 s2, {ID_LN}
    s_cbranch_scc1 modr
    s_cmp_lt_u32 s2, {A_GRID}
    s_cbranch_scc1 ln1
    s_endpgm
    """)
    for ch, lab, fn in (("m", "modr", gen_mod), ("l", "ln1", gen_ln1)):
        if ch in roles: fn(a)
        else: a(f"{lab}:\ns_endpgm")

def kernel(name, body, vgpr, kidx, sgpr=96):
    a = Asm()
    if TS:
        a("""
        s_memrealtime s[90:91]
        s_memtime s[84:85]
        s_mov_b32 s89, s2
        s_mov_b32 s86, s0
        s_mov_b32 s87, s1
        v_lshrrev_b32 v1, 6, v0
        s_nop 0
        v_readfirstlane_b32 s88, v1
        """)
    if os.environ.get("DBG"):
        a(f"""
        s_cmp_eq_u32 s2, 0
        s_cbranch_scc0 dbg_skip_{kidx}
        s_memrealtime s[90:91]
        s_load_dwordx2 s[94:95], s[0:1], 136
        s_waitcnt lgkmcnt(0)
        v_mov_b32 v4, s90
        v_mov_b32 v5, {kidx+1}
        v_mov_b32 v6, {8*kidx}
        global_store_dwordx2 v6, v[4:5], s[94:95]
        s_waitcnt vmcnt(0)
        dbg_skip_{kidx}:
        """)
    body(a)
    if TS:
        a.l = [("    s_branch ts_end_%d" % kidx) if l.strip() == "s_endpgm" else l for l in a.l]
        a(f"""
        ts_end_{kidx}:
        s_waitcnt vmcnt(0) lgkmcnt(0)
        s_memrealtime s[92:93]
        s_memtime s[82:83]
        s_load_dwordx2 s[94:95], s[86:87], 144
        s_mov_b64 exec, 1
        s_lshl_b32 s89, s89, 3
        s_add_u32 s89, s89, s88
        s_lshl_b32 s89, s89, 6
        s_add_u32 s89, s89, {WS_TS + kidx * 0x80000}
        v_mov_b32 v4, s89
        s_waitcnt lgkmcnt(0)
        v_mov_b32 v0, s90
        v_mov_b32 v1, s91
        v_mov_b32 v2, s92
        v_mov_b32 v3, s93
        global_store_dwordx4 v4, v[0:3], s[94:95]
        v_mov_b32 v8, s84
        v_mov_b32 v9, s82
        v_mov_b32 v10, s70
        v_mov_b32 v11, s72
        global_store_dwordx4 v4, v[8:11], s[94:95] offset:16
        v_mov_b32 v12, s74
        v_mov_b32 v13, s76
        v_mov_b32 v14, s78
        v_mov_b32 v15, s80
        global_store_dwordx4 v4, v[12:15], s[94:95] offset:32
        s_endpgm
        """)
    code = f".globl {name}\n.p2align 8\n.type {name},@function\n{name}:\n{a.text()}"
    desc = f""".amdhsa_kernel {name}
  .amdhsa_next_free_vgpr {vgpr}
  .amdhsa_next_free_sgpr {sgpr}
  .amdhsa_accum_offset {((vgpr + 3) // 4) * 4}
  .amdhsa_group_segment_fixed_size 0
  .amdhsa_kernarg_size 152
  .amdhsa_user_sgpr_count 2
  .amdhsa_user_sgpr_kernarg_segment_ptr 1
  .amdhsa_system_sgpr_workgroup_id_x 1
  .amdhsa_float_denorm_mode_32 3
.end_amdhsa_kernel
"""
    return code, desc

def build(kernels):
    hdr = "; adaLN + S4 long convolution + squared-ReLU MLP, gfx950.  Generated by a hand-written generator (dev/g3.py).\n"
    for (name, body, vgpr, grid, block, lds) in kernels:
        hdr += f"; @launch kernel={name} grid=({grid},1,1) block=({block},1,1) lds={lds}\n"
    out = hdr + '.amdgcn_target "amdgcn-amd-amdhsa--gfx950"\n.text\n'
    descs = ""
    for i, (name, body, vgpr, grid, block, lds) in enumerate(kernels):
        c, d = kernel(name, body, vgpr, i)
        out += c
        descs += ".p2align 6\n" + d
    return out + '.section .rodata,"a"\n' + descs

if __name__ == "__main__":
    import g3b
    ks = [("prep_kernel", gen_A, 128, A_GRID, 256, A_LDS)] + g3b.kernels()
    s = build(ks)
    path = sys.argv[1] if len(sys.argv) > 1 else "out.s"
    open(path, "w").write(s)
    print("wrote", path, len(s))
```

```python
import sys, struct, os

NAME = "adaLN_cond__ssm_conv_s4__dense_activation_squared_relu__prompt"
TS = bool(os.environ.get("TS"))
SC = os.environ.get("SC", "")

WS_MOD  = 0x0000
WS_ST1  = 0x4000
WS_CS   = 0x8000
WS_B1P  = 0xA000
WS_XT   = 0x100000
WS_KE   = 0x300000
KCH     = 4112
WS_W1F  = 0xA00000
WS_X2T  = 0xC00000
WS_HID  = 0x1000000
HS      = 88
WS_SIZE = 268435456
WS_TS   = 0x8000000

def f2u(x): return struct.unpack("<I", struct.pack("<f", x))[0]
def fx(x): return "0x%08x" % f2u(x)

class Asm:
    def __init__(self): self.l = []
    def __call__(self, s):
        for line in s.strip("\n").split("\n"):
            line = line.strip()
            if not line: continue
            self.l.append(line if line.endswith(":") else "    " + line)
    def stamp(self, i):
        if TS: self(f"s_memtime s[{70+2*i}:{71+2*i}]")
    def text(self): return "\n".join(self.l) + "\n"

class LdsTracker:
    def __init__(self, a): self.a = a; self.issued = 0; self.done = 0; self.tag = {}
    def issue(self, text, tags):
        self.a(text)
        for t in tags: self.tag[t] = self.issued
        self.issued += 1
    def need(self, tags):
        idx = max(self.tag[t] for t in tags)
        if idx < self.done: return
        n = min(self.issued - idx - 1, 15)
        self.a(f"s_waitcnt lgkmcnt({n})")
        self.done = self.issued - n
    def drain(self):
        if self.done < self.issued: self.a("s_waitcnt lgkmcnt(0)")
        self.done = self.issued

def cmul(a, d, x, y, t):
    a(f"v_pk_mul_f32 v[{t}:{t+1}], v[{x}:{x+1}], v[{y}:{y+1}] op_sel:[0,0] op_sel_hi:[0,1]")
    a(f"v_pk_fma_f32 v[{d}:{d+1}], v[{x}:{x+1}], v[{y}:{y+1}], v[{t}:{t+1}] op_sel:[1,1,0] op_sel_hi:[1,0,1] neg_lo:[1,0,0]")

def srd(a, s, lo, size):
    a(f"""
    s_mov_b32 s{s}, s{lo}
    s_mov_b32 s{s+1}, s{lo+1}
    s_mov_b32 s{s+2}, {size}
    s_mov_b32 s{s+3}, 0x00020000
    """)

NK, NMOD, NLN = 512, 192, 64
A_GRID = NK + NMOD + NLN
ID_K, ID_MOD, ID_LN = 0, NK, NK + NMOD
TROW = 544; QROW = 41
KC_OFF = 57 * TROW
RS = 1088
A_LDS = max(KC_OFF + 768 * 4, 32 * RS)

def gen_kgen(a):
    a(f"""
    kgen:
    s_load_dwordx4 s[4:7], s[0:1], 8
    s_load_dwordx4 s[8:11], s[0:1], 24
    s_load_dwordx4 s[12:15], s[0:1], 40
    s_load_dwordx4 s[16:19], s[0:1], 56
    s_load_dwordx2 s[20:21], s[0:1], 144
    s_sub_u32 s2, s2, {ID_K}                ; channel d
    v_and_b32 v1, 127, v0
    v_lshlrev_b32 v2, 2, v1
    v_lshlrev_b32 v1, 1, v1
    s_lshl_b32 s3, s2, 8
    v_add_u32 v1, s3, v1                    ; (d*128+n)*2
    s_lshl_b32 s22, s2, 1
    s_and_b32 s22, s22, 0xfffffffc
    s_and_b32 s23, s2, 1
    s_lshl_b32 s23, s23, 4
    v_lshrrev_b32 v3, 6, v0
    s_waitcnt lgkmcnt(0)
    global_load_ushort v10, v1, s[4:5]
    global_load_ushort v11, v1, s[6:7]
    global_load_ushort v12, v1, s[8:9]
    global_load_ushort v13, v1, s[10:11]
    global_load_ushort v14, v1, s[12:13]
    global_load_ushort v15, v1, s[14:15]
    s_load_dword s24, s[16:17], s22
    s_load_dword s25, s[18:19], s22
    v_readfirstlane_b32 s26, v3
    v_lshlrev_b32 v4, 3, v0
    v_sub_u32 v4, 2047, v4                  ; lbase
    """)
    for e in range(8): a(f"v_subrev_u32 v{30+e}, {e}, v4")
    for e in range(8): a(f"v_cvt_f32_u32 v{40+e}, v{30+e}")
    for p in range(4): a(f"v_cvt_pk_bf16_f32 v{50+p}, v{40+2*p}, v{41+2*p}")
    a(f"s_mov_b32 s27, {KC_OFF - 0x10A00}")
    for e in range(8):
        p = e // 2
        a(f"v_and_b32 v{40+e}, 0xffff, v{50+p}" if e % 2 == 0 else f"v_lshrrev_b32 v{40+e}, 16, v{50+p}")
    for e in range(8): a(f"v_lshl_add_u32 v{40+e}, v{40+e}, 2, s27")
    for e in range(8):
        a(f"v_cmp_gt_u32 vcc, 128, v{30+e}")
        a(f"v_lshlrev_b32 v{30+e}, 2, v{30+e}")
        a(f"v_add_u32 v{30+e}, {KC_OFF}, v{30+e}")
        a(f"v_cndmask_b32 v{40+e}, v{40+e}, v{30+e}, vcc")
    a(f"""
    s_waitcnt lgkmcnt(0)
    s_lshr_b32 s24, s24, s23
    s_lshl_b32 s24, s24, 16
    s_lshr_b32 s25, s25, s23
    s_lshl_b32 s25, s25, 16
    v_mov_b32 v5, s24
    v_mul_f32 v6, 0x3fb8aa3b, v5
    s_mov_b32 s28, 0x3fb8aa3b
    v_fma_f32 v7, v5, s28, -v6
    v_fmac_f32 v7, 0x32a5705f, v5
    v_exp_f32 v6, v6
    v_mul_f32 v7, {fx(0.6931471805599453)}, v7
    v_fmac_f32 v6, v6, v7
    v_cvt_pk_bf16_f32 v6, v6, v6
    v_lshlrev_b32 v6, 16, v6                ; dt
    s_waitcnt vmcnt(4)
    v_lshlrev_b32 v10, 16, v10
    v_lshlrev_b32 v11, 16, v11
    v_mul_f32 v10, v6, v10
    v_mul_f32 v11, v6, v11
    v_mul_f32 v10, 0x3fb8aa3b, v10
    v_mul_f32 v11, {fx(0.15915494309189535)}, v11
    """)
    def direct(dst, l, t):
        a(f"""
        v_mul_f32 v{t}, {fx(float(l))}, v10
        v_mul_f32 v{t+1}, {fx(float(l))}, v11
        v_exp_f32 v{t}, v{t}
        v_fract_f32 v{t+1}, v{t+1}
        v_cos_f32 v{dst}, v{t+1}
        v_sin_f32 v{dst+1}, v{t+1}
        s_nop 0
        v_mul_f32 v{dst}, v{t}, v{dst}
        v_mul_f32 v{dst+1}, v{t}, v{dst+1}
        """)
    def wr(row, src, tmp, neg=False):
        a(f"v_cvt_pk_bf16_f32 v{tmp}, v{src}, {'-' if neg else ''}v{src+1}")
        a(f"ds_write_b32 v2, v{tmp} offset:{row*TROW}")
    a.stamp(0)
    a("s_cmp_ge_u32 s26, 2\ns_cbranch_scc1 kgen_setY")
    E8, E128, Q, R, T0, T1 = 20, 22, 24, 26, 28, 60
    direct(E8, 1, 28)
    direct(E128, 128, 28)
    cmul(a, R, E128, E128, T1)
    cmul(a, E8, E8, E8, T0)
    cmul(a, R, R, R, T1)
    cmul(a, E8, E8, E8, T0)
    cmul(a, R, R, R, T1)
    cmul(a, E8, E8, E8, T0)
    a("""
    s_waitcnt vmcnt(0)
    v_lshlrev_b32 v12, 16, v12
    v_lshlrev_b32 v13, 16, v13
    v_lshlrev_b32 v14, 16, v14
    v_lshlrev_b32 v15, 16, v15
    v_mul_f32 v12, v6, v12
    v_mul_f32 v13, v6, v13
    """)
    cmul(a, Q, 14, 12, T0)
    for i in range(16):
        if i < 9:
            wr(32 + i, R, 63)
            if i < 8: cmul(a, R, R, E128, T1)
        wr(QROW + i, Q, 62, neg=True)
        if i < 15: cmul(a, Q, Q, E8, T0)
    a("s_branch kgen_tables_done")
    a("kgen_setY:")
    E = [None, 20, 22, 24, 26, 16, 18, 64]
    E128, X, Y2, T0, T1 = 66, 68, 70, 28, 60
    direct(E[1], 1, 28)
    direct(E128, 128, 28)
    a("v_mov_b32 v62, 0x3f80")
    a(f"ds_write_b32 v2, v62 offset:0")
    cmul(a, E[2], E[1], E[1], T0); wr(1, E[1], 63)
    cmul(a, E[3], E[2], E[1], T1); wr(2, E[2], 62)
    cmul(a, E[4], E[2], E[2], T0); wr(3, E[3], 63)
    cmul(a, E[5], E[4], E[1], T1); wr(4, E[4], 62)
    cmul(a, E[6], E[3], E[3], T0); wr(5, E[5], 63)
    cmul(a, E[7], E[4], E[3], T1); wr(6, E[6], 62)
    cmul(a, X, E128, E128, T0);    wr(7, E[7], 63)
    wr(8, E128, 62)
    for r in range(1, 8):
        cmul(a, Y2, E128, E[r], T1 if r % 2 else T0)
        wr(8 + r, Y2, 62 + (r % 2))
    S = [72, 74, 76, 78]
    a(f"v_mov_b64 v[{S[0]}:{S[0]+1}], v[{X}:{X+1}]")
    cmul(a, S[1], X, E[2], T0)
    cmul(a, S[2], X, E[4], T1)
    cmul(a, S[3], X, E[6], T0)
    cmul(a, X, X, X, T1)
    for r in range(4):
        wr(16 + r, S[r], 62 + (r % 2))
        cmul(a, S[r], S[r], E128, T0 if r % 2 else T1)
    cmul(a, Y2, X, E[4], T0)
    for r in range(4): wr(20 + r, S[r], 62 + (r % 2))
    for p in range(4):
        wr(24 + 2 * p, X, 62)
        wr(25 + 2 * p, Y2, 63)
        if p < 3:
            cmul(a, X, X, E128, T0)
            cmul(a, Y2, Y2, E128, T1)
    a(f"""
    kgen_tables_done:
    v_and_b32 v4, 15, v0                     ; i / j / q
    v_bfe_u32 v5, v0, 4, 2                   ; g / G
    v_lshlrev_b32 v7, 4, v5
    v_mul_u32_u24 v8, {TROW}, v4
    v_add_u32 v8, v8, v7                     ; i*544 + g*16
    s_mul_i32 s27, s26, {16*TROW}
    v_add_u32 v9, s27, v8                    ; A address
    v_add_u32 v8, {QROW*TROW}, v8            ; B address
    v_mov_b32 v20, 0
    v_mov_b32 v21, 0
    v_mov_b32 v22, 0
    v_mov_b32 v23, 0
    v_mov_b32 v24, 0
    v_mov_b32 v25, 0
    v_mov_b32 v26, 0
    v_mov_b32 v27, 0
    s_waitcnt lgkmcnt(0)
    """)
    a.stamp(1)
    a("s_barrier")
    a.stamp(3)
    a("""
    s_cmp_ge_u32 s26, 3
    s_cbranch_scc1 kgen_mfma_done
    """)
    for s in range(8):
        a(f"ds_read_b128 v[{64+8*s}:{67+8*s}], v9 offset:{64*s}")
        a(f"ds_read_b128 v[{68+8*s}:{71+8*s}], v8 offset:{64*s}")
    a(f"""
    s_cmp_eq_u32 s26, 1
    s_cbranch_scc1 kgen_t1
    s_cmp_eq_u32 s26, 2
    s_cbranch_scc1 kgen_t2
    v_and_b32 v7, 1, v5
    v_lshlrev_b32 v7, 2, v7
    v_lshrrev_b32 v16, 1, v5
    v_lshl_add_u32 v7, v16, 7, v7
    v_lshl_add_u32 v7, v4, 3, v7
    v_lshlrev_b32 v7, 2, v7
    v_add_u32 v16, {KC_OFF}, v7
    v_add_u32 v17, 8, v16
    v_mov_b32 v18, 4
    s_branch kgen_addr_done
    kgen_t1:
    v_cmp_gt_u32 vcc, 2, v5
    v_lshlrev_b32 v7, 6, v5
    v_add_u32 v7, 256, v7
    v_lshlrev_b32 v16, 2, v4
    v_lshlrev_b32 v17, 1, v4
    v_cndmask_b32 v16, v17, v16, vcc
    v_add_u32 v7, v7, v16
    v_lshlrev_b32 v7, 2, v7
    v_add_u32 v16, {KC_OFF}, v7
    v_mov_b32 v17, 128
    v_cndmask_b32 v17, v17, 8, vcc
    v_add_u32 v17, v16, v17
    v_mov_b32 v18, 4
    s_branch kgen_addr_done
    kgen_t2:
    v_lshl_add_u32 v7, v5, 6, v4
    v_lshlrev_b32 v7, 2, v7
    v_add_u32 v16, {KC_OFF + 512*4}, v7
    v_add_u32 v17, 128, v16
    v_mov_b32 v18, 64
    kgen_addr_done:
    v_add_u32 v19, v17, v18
    v_add_u32 v18, v16, v18
    v_cmp_eq_u32 vcc, 0, v0
    v_mov_b32 v7, s25
    s_nop 0
    v_cndmask_b32 v7, 0, v7, vcc
    """)
    a.stamp(4)
    for s in range(8):
        a(f"s_waitcnt lgkmcnt({14-2*s})")
        acc = 20 + 4 * (s % 2)
        a(f"v_mfma_f32_16x16x32_bf16 v[{acc}:{acc+3}], v[{64+8*s}:{67+8*s}], v[{68+8*s}:{71+8*s}], v[{acc}:{acc+3}]")
    a.stamp(5)
    a(f"""
    s_nop 7
    v_add_f32 v20, v20, v24
    v_add_f32 v21, v21, v25
    v_add_f32 v22, v22, v26
    v_add_f32 v23, v23, v27
    v_add_f32 v20, v20, v7
    ds_write_b32 v16, v20
    ds_write_b32 v18, v21
    ds_write_b32 v17, v22
    ds_write_b32 v19, v23
    kgen_mfma_done:
    s_waitcnt lgkmcnt(0)
    s_barrier
    """)
    a.stamp(2)
    for e in range(8): a(f"ds_read_b32 v{30+e}, v{40+e}")
    a(f"""
    s_mul_i32 s27, s2, {KCH}
    s_add_u32 s27, s27, {WS_KE}
    v_lshlrev_b32 v4, 4, v0
    v_add_u32 v4, s27, v4
    """)
    for p in range(4):
        a(f"s_waitcnt lgkmcnt({6-2*p})")
        a(f"v_cvt_pk_bf16_f32 v{52+p}, v{30+2*p}, v{31+2*p}")
    a(f"""
    global_store_dwordx4 v4, v[52:55], s[20:21]{SC}
    v_cmp_eq_u32 vcc, 0, v0
    s_and_saveexec_b64 s[30:31], vcc
    s_cbranch_execz kgen_end
    v_mov_b32 v6, s27
    v_add_u32 v6, 4096, v6
    v_mov_b32 v60, 0
    v_mov_b32 v61, 0
    v_mov_b32 v62, 0
    v_mov_b32 v63, 0
    global_store_dwordx4 v6, v[60:63], s[20:21]{SC}
    kgen_end:
    s_endpgm
    """)

def gen_ln1(a):
    a(f"""
    ln1:
    s_load_dwordx2 s[4:5], s[0:1], 0
    s_load_dwordx2 s[20:21], s[0:1], 144
    s_sub_u32 s3, s2, {ID_LN}
    s_and_b32 s6, s3, 7
    s_lshl_b32 s6, s6, 3
    s_lshr_b32 s7, s3, 3
    s_add_u32 s6, s6, s7
    v_lshrrev_b32 v3, 6, v0                  ; wave
    v_and_b32 v1, 63, v0                     ; lane
    v_lshlrev_b32 v4, 13, v3
    v_lshl_add_u32 v4, v1, 4, v4
    s_lshl_b32 s7, s6, 15
    v_add_u32 v4, s7, v4
    v_readfirstlane_b32 s26, v3
    s_waitcnt lgkmcnt(0)
    """)
    for r in range(8):
        if r == 4: a("v_add_u32 v4, 4096, v4")
        a(f"global_load_dwordx4 v[{8+4*r}:{11+4*r}], v4, s[4:5] offset:{1024*(r%4)}")
    a(f"""
    v_mul_u32_u24 v5, {8*RS}, v3
    v_lshl_add_u32 v5, v1, 4, v5
    v_mov_b32 v6, 0x3f803f80
    v_and_b32 v7, 15, v1
    v_lshrrev_b32 v2, 2, v7                  ; r
    v_and_b32 v7, 3, v7                      ; c
    v_mul_u32_u24 v2, {RS}, v2
    v_lshl_add_u32 v2, v7, 3, v2
    v_lshrrev_b32 v7, 4, v1
    v_lshl_add_u32 v2, v7, 5, v2
    v_lshl_add_u32 v2, v3, 8, v2
    s_lshl_b32 s7, s6, 6
    s_add_u32 s7, s7, {WS_XT}
    """)
    for r in range(8):
        b = 8 + 4 * r
        a(f"s_waitcnt vmcnt({7-r})")
        a(f"ds_write_b128 v5, v[{b}:{b+3}] offset:{RS*r}")
        a(f"v_dot2_f32_bf16 v{40+2*r}, v{b}, v6, 0")
        a(f"v_dot2_f32_bf16 v{41+2*r}, v{b}, v{b}, 0")
        for k in range(1, 4):
            a(f"v_dot2_f32_bf16 v{40+2*r}, v{b+k}, v6, v{40+2*r}")
            a(f"v_dot2_f32_bf16 v{41+2*r}, v{b+k}, v{b+k}, v{41+2*r}")
    a("s_waitcnt lgkmcnt(0)\ns_barrier")
    for db in range(2):
        for lg in range(8):
            a(f"ds_read_b64_tr_b16 v[{64+16*db+2*lg}:{65+16*db+2*lg}], v2 offset:{128*db + 4*RS*lg}")
    for dpp in ["row_shr:1", "row_shr:2", "row_shr:4"]:
        for r in range(40, 56): a(f"v_add_f32_dpp v{r}, v{r}, v{r} {dpp} row_mask:0xf bank_mask:0xf")
    a(f"""
    v_bfe_u32 v8, v1, 1, 2                   ; (d>>1)&3
    v_lshlrev_b32 v9, 6, v1                  ; d*64
    v_lshl_add_u32 v9, v3, 13, v9
    v_lshrrev_b32 v10, 2, v1
    v_and_b32 v11, 3, v1                     ; c
    v_bfe_u32 v12, v1, 3, 2                  ; (d>>1)&3
    v_xor_b32 v12, v12, v11
    v_lshlrev_b32 v12, 4, v12
    v_lshl_add_u32 v12, v10, 6, v12
    v_lshl_add_u32 v12, v3, 13, v12
    v_lshl_add_u32 v7, v3, 7, v10
    v_lshlrev_b32 v7, 12, v7
    v_lshl_add_u32 v7, v11, 4, v7
    v_add_u32 v7, s7, v7
    s_waitcnt lgkmcnt(0)
    s_barrier
    """)
    for c in range(4):
        a(f"v_xor_b32 v13, {c}, v8")
        a(f"v_lshl_add_u32 v13, v13, 4, v9")
        a(f"ds_write_b128 v13, v[{64+4*c}:{67+4*c}]")
        a(f"ds_write_b128 v13, v[{80+4*c}:{83+4*c}] offset:4096")
    for dpp in ["row_shr:8", "row_bcast:15 row_mask:0xa", "row_bcast:31 row_mask:0xc"]:
        m = "" if "row_mask" in dpp else " row_mask:0xf"
        for r in range(40, 56): a(f"v_add_f32_dpp v{r}, v{r}, v{r} {dpp}{m} bank_mask:0xf")
    a("s_waitcnt lgkmcnt(0)")
    for m_ in range(8):
        a(f"ds_read_b128 v[{64+4*m_}:{67+4*m_}], v12 offset:{1024*m_}")
    for m_ in range(8):
        a(f"s_waitcnt lgkmcnt({7-m_})")
        a(f"global_store_dwordx4 v7, v[{64+4*m_}:{67+4*m_}], s[20:21]{SC}")
        if m_ < 7: a(f"v_add_u32 v7, {16*4096}, v7")
    for r in range(8):
        a(f"v_readlane_b32 s{32+2*r}, v{40+2*r}, 63")
        a(f"v_readlane_b32 s{33+2*r}, v{41+2*r}, 63")
    a("s_nop 1")
    for r in range(8):
        a(f"v_writelane_b32 v56, s{32+2*r}, {r}")
        a(f"v_writelane_b32 v57, s{33+2*r}, {r}")
    a(f"""
    s_nop 1
    v_mul_f32 v56, {fx(1.0/512)}, v56        ; mean
    v_mul_f32 v57, {fx(1.0/512)}, v57
    v_fma_f32 v57, -v56, v56, v57
    v_max_f32 v57, 0, v57
    v_add_f32 v57, {fx(1e-5)}, v57
    v_rsq_f32 v57, v57
    s_nop 0
    v_mul_f32 v56, -v56, v57
    v_cvt_pk_bf16_f32 v56, v57, v56          ; (r, -mean*r)
    s_lshl_b32 s7, s6, 7
    s_lshl_b32 s8, s26, 5
    s_add_u32 s7, s7, s8
    s_add_u32 s7, s7, {WS_ST1}
    v_lshlrev_b32 v58, 2, v1
    v_add_u32 v58, s7, v58
    v_cmp_gt_u32 vcc, 8, v1
    s_and_saveexec_b64 s[30:31], vcc
    s_cbranch_execz ln1_end
    global_store_dword v58, v56, s[20:21]{SC}
    ln1_end:
    s_endpgm
    """)

def gen_mod16(a, tag):
    a(f"""
    v_lshrrev_b32 v3, 1, v0                  ; rg
    v_and_b32 v4, 1, v0                      ; cc
    v_mul_u32_u24 v5, {4*6144}, v3
    v_lshl_add_u32 v5, v4, 4, v5
    s_lshl_b32 s9, s8, 5
    v_add_u32 v5, s9, v5
    v_lshlrev_b32 v6, 3, v3
    s_waitcnt lgkmcnt(0)
    global_load_dwordx2 v[8:9], v6, s[4:5]
    """)
    for i in range(4):
        if i: a("v_add_u32 v5, 6144, v5")
        a(f"global_load_dwordx4 v[{16+4*i}:{19+4*i}], v5, s[6:7]")

def gen_mod16_compute(a, nlater):
    a(f"s_waitcnt vmcnt({4+nlater})")
    for i in range(4):
        src = 8 + i // 2
        a(f"v_lshlrev_b32 v{10+i}, 16, v{src}" if i % 2 == 0 else f"v_and_b32 v{10+i}, 0xffff0000, v{src}")
    for i in range(4): a(f"v_mul_f32 v{32+i}, {fx(-1.4426950408889634)}, v{10+i}")
    for i in range(4): a(f"v_exp_f32 v{32+i}, v{32+i}")
    for i in range(4): a(f"v_add_f32 v{32+i}, 1.0, v{32+i}")
    for i in range(4): a(f"v_rcp_f32 v{32+i}, v{32+i}")
    a("s_nop 0")
    for i in range(4): a(f"v_mul_f32 v{10+i}, v{10+i}, v{32+i}")
    for i in range(4):
        a(f"v_cvt_pk_bf16_f32 v{32+i}, v{10+i}, 0")
        a(f"v_cvt_pk_bf16_f32 v{36+i}, 0, v{10+i}")
    for i in range(4):
        a(f"s_waitcnt vmcnt({3-i+nlater})")
        for m in range(4):
            c0 = "0" if i == 0 else f"v{40+2*m}"; c1 = "0" if i == 0 else f"v{41+2*m}"
            a(f"v_dot2_f32_bf16 v{40+2*m}, v{16+4*i+m}, v{32+i}, {c0}")
            a(f"v_dot2_f32_bf16 v{41+2*m}, v{16+4*i+m}, v{36+i}, {c1}")
    a("s_nop 2")
    for dpp in ["row_shr:2", "row_shr:4", "row_shr:8"]:
        for r in range(40, 48): a(f"v_add_f32_dpp v{r}, v{r}, v{r} {dpp} row_mask:0xf bank_mask:0xf")
    a(f"""
    v_lshrrev_b32 v5, 4, v0
    v_mul_u32_u24 v5, 80, v5
    v_lshl_add_u32 v5, v4, 5, v5
    v_and_b32 v6, 15, v0
    v_cmp_lt_u32 vcc, 13, v6
    s_and_saveexec_b64 s[30:31], vcc
    ds_write_b128 v5, v[40:43]
    ds_write_b128 v5, v[44:47] offset:16
    s_mov_b64 exec, s[30:31]
    v_lshlrev_b32 v5, 2, v6
    s_waitcnt lgkmcnt(0)
    s_barrier
    """)
    for i in range(16): a(f"ds_read_b32 v{16+i}, v5 offset:{80*i}")
    a("s_waitcnt lgkmcnt(0)")
    for st in (1, 2, 4, 8):
        for i in range(0, 16, 2 * st): a(f"v_add_f32 v{16+i}, v{16+i}, v{16+i+st}")
    a("v_cvt_pk_bf16_f32 v16, v16, v16\nv_lshlrev_b32 v16, 16, v16")

def gen_mod(a):
    a(f"""
    modr:
    s_load_dwordx4 s[4:7], s[0:1], 112       ; c, w_mod
    s_load_dwordx2 s[20:21], s[0:1], 144
    s_sub_u32 s3, s2, {ID_MOD}
    s_and_b32 s8, s3, 7
    s_mul_i32 s8, s8, 24
    s_lshr_b32 s9, s3, 3
    s_add_u32 s8, s8, s9
    """)
    gen_mod16(a, "m"); gen_mod16_compute(a, 0)
    a(f"""
    s_lshl_b32 s9, s8, 6
    s_add_u32 s9, s9, {WS_MOD}
    v_lshlrev_b32 v5, 2, v0
    v_add_u32 v5, s9, v5
    v_cmp_gt_u32 vcc, 16, v0
    s_and_saveexec_b64 s[30:31], vcc
    s_cbranch_execz mod_end
    global_store_dword v5, v16, s[20:21]{SC}
    mod_end:
    s_endpgm
    """)

def gen_A(a):
    a(f"""
    s_cmp_ge_u32 s2, {ID_MOD}
    s_cbranch_scc1 a_other
    """)
    roles = os.environ.get("ROLES", "mlk")
    if "k" in roles: gen_kgen(a)
    else: a("kgen:\ns_endpgm")
    a(f"""
    a_other:
    s_cmp_lt_u32 s2, {ID_LN}
    s_cbranch_scc1 modr
    s_cmp_lt_u32 s2, {A_GRID}
    s_cbranch_scc1 ln1
    s_endpgm
    """)
    for ch, lab, fn in (("m", "modr", gen_mod), ("l", "ln1", gen_ln1)):
        if ch in roles: fn(a)
        else: a(f"{lab}:\ns_endpgm")

def kernel(name, body, vgpr, kidx, sgpr=96):
    a = Asm()
    if TS:
        a("""
        s_memrealtime s[90:91]
        s_memtime s[84:85]
        s_mov_b32 s89, s2
        s_mov_b32 s86, s0
        s_mov_b32 s87, s1
        v_lshrrev_b32 v1, 6, v0
        s_nop 0
        v_readfirstlane_b32 s88, v1
        """)
    if os.environ.get("DBG"):
        a(f"""
        s_cmp_eq_u32 s2, 0
        s_cbranch_scc0 dbg_skip_{kidx}
        s_memrealtime s[90:91]
        s_load_dwordx2 s[94:95], s[0:1], 144
        s_load_dwordx2 s[92:93], s[0:1], 136
        s_waitcnt lgkmcnt(0)
        v_mov_b32 v4, s90
        v_mov_b32 v6, {WS_TS + 4*kidx}
        global_store_dword v6, v4, s[94:95]
        s_waitcnt vmcnt(0)
        """)
        if kidx == 3:
            a(f"""
            v_mov_b32 v6, {WS_TS}
            global_load_dwordx4 v[8:11], v6, s[94:95] sc0 sc1
            s_waitcnt vmcnt(0)
            v_sub_u32 v9, v9, v8
            v_sub_u32 v10, v10, v8
            v_sub_u32 v11, v11, v8
            v_mov_b32 v6, 0
            global_store_dwordx4 v6, v[8:11], s[92:93]
            s_waitcnt vmcnt(0)
            """)
        a(f"dbg_skip_{kidx}:")
    body(a)
    if TS:
        a.l = [("    s_branch ts_end_%d" % kidx) if l.strip() == "s_endpgm" else l for l in a.l]
        a(f"""
        ts_end_{kidx}:
        s_waitcnt vmcnt(0) lgkmcnt(0)
        s_memrealtime s[92:93]
        s_memtime s[82:83]
        s_load_dwordx2 s[94:95], s[86:87], 144
        s_mov_b64 exec, 1
        s_lshl_b32 s89, s89, 3
        s_add_u32 s89, s89, s88
        s_lshl_b32 s89, s89, 6
        s_add_u32 s89, s89, {WS_TS + kidx * 0x80000}
        v_mov_b32 v4, s89
        s_waitcnt lgkmcnt(0)
        v_mov_b32 v0, s90
        v_mov_b32 v1, s91
        v_mov_b32 v2, s92
        v_mov_b32 v3, s93
        global_store_dwordx4 v4, v[0:3], s[94:95]
        v_mov_b32 v8, s84
        v_mov_b32 v9, s82
        v_mov_b32 v10, s70
        v_mov_b32 v11, s72
        global_store_dwordx4 v4, v[8:11], s[94:95] offset:16
        v_mov_b32 v12, s74
        v_mov_b32 v13, s76
        v_mov_b32 v14, s78
        v_mov_b32 v15, s80
        global_store_dwordx4 v4, v[12:15], s[94:95] offset:32
        s_endpgm
        """)
    code = f".globl {name}\n.p2align 8\n.type {name},@function\n{name}:\n{a.text()}"
    desc = f""".amdhsa_kernel {name}
  .amdhsa_next_free_vgpr {vgpr}
  .amdhsa_next_free_sgpr {sgpr}
  .amdhsa_accum_offset {((vgpr + 3) // 4) * 4}
  .amdhsa_group_segment_fixed_size 0
  .amdhsa_kernarg_size 152
  .amdhsa_user_sgpr_count 2
  .amdhsa_user_sgpr_kernarg_segment_ptr 1
  .amdhsa_system_sgpr_workgroup_id_x 1
  .amdhsa_float_denorm_mode_32 3
.end_amdhsa_kernel
"""
    return code, desc

def build(kernels):
    hdr = "; adaLN + S4 long convolution + squared-ReLU MLP, gfx950.  Generated by a hand-written generator (dev/g3.py).\n"
    for (name, body, vgpr, grid, block, lds) in kernels:
        hdr += f"; @launch kernel={name} grid=({grid},1,1) block=({block},1,1) lds={lds}\n"
    out = hdr + '.amdgcn_target "amdgcn-amd-amdhsa--gfx950"\n.text\n'
    descs = ""
    for i, (name, body, vgpr, grid, block, lds) in enumerate(kernels):
        c, d = kernel(name, body, vgpr, i)
        out += c
        descs += ".p2align 6\n" + d
    return out + '.section .rodata,"a"\n' + descs

if __name__ == "__main__":
    import g3b
    ks = [("prep_kernel", gen_A, 128, A_GRID, 256, A_LDS)] + g3b.kernels()
    s = build(ks)
    path = sys.argv[1] if len(sys.argv) > 1 else "out.s"
    open(path, "w").write(s)
    print("wrote", path, len(s))
```

```python
from g3 import *
import g3

NCONV, NW1 = 256, 43
B_GRID = NCONV + NW1
KCP = 4160
KCHL = 4 * KCP
H_OFF = 2 * KCHL
HCH = 4608
RED_OFF = H_OFF + 2 * HCH
B_LDS = RED_OFF + 16384

def gen_conv(a):
    VA, VB, VY = 64, 96, 128
    a(f"""
    conv:
    s_load_dwordx2 s[20:21], s[0:1], 144
    s_load_dwordx2 s[48:49], s[0:1], 96
    v_lshrrev_b32 v3, 6, v0
    v_and_b32 v1, 63, v0
    v_lshlrev_b32 v5, 4, v0                  ; tid*16
    v_readfirstlane_b32 s26, v3              ; wave
    s_lshl_b32 s29, s2, 1                    ; d0
    s_mul_i32 s32, s29, {KCH}
    s_add_u32 s32, s32, {WS_KE}
    s_add_u32 s33, s32, {KCH}
    s_lshl_b32 s36, s29, 12
    s_add_u32 s36, s36, {WS_XT}
    s_add_u32 s37, s36, 4096
    v_lshlrev_b32 v6, 5, v0
    s_mov_b32 s38, {WS_ST1}
    s_lshr_b32 s27, s26, 1                   ; ch
    s_and_b32 s28, s26, 1                    ; hf
    s_add_u32 s30, s29, s27                  ; d
    s_waitcnt lgkmcnt(0)
    """)
    srd(a, 8, 20, WS_SIZE)
    a.stamp(0)
    a(f"""
    buffer_load_dwordx4 v[8:11], v5, s[8:11], s36 offen          ; x ch0
    buffer_load_dwordx4 v[12:15], v5, s[8:11], s37 offen         ; x ch1
    buffer_load_dwordx4 v[16:19], v6, s[8:11], s38 offen         ; stats
    buffer_load_dwordx4 v[20:23], v6, s[8:11], s38 offen offset:16
    buffer_load_dwordx4 v[24:27], v5, s[8:11], s32 offen         ; K ch0
    buffer_load_dwordx2 v[28:29], v5, s[8:11], s32 offen offset:16
    buffer_load_dwordx4 v[32:35], v5, s[8:11], s33 offen         ; K ch1
    buffer_load_dwordx2 v[36:37], v5, s[8:11], s33 offen offset:16
    s_lshl_b32 s31, s29, 2
    s_add_u32 s4, s20, s31
    s_addc_u32 s5, s21, 0
    s_load_dwordx2 s[12:13], s[4:5], {WS_MOD}            ; sa
    s_load_dwordx2 s[14:15], s[4:5], {WS_MOD + 2048}     ; ca
    s_load_dwordx2 s[16:17], s[4:5], {WS_MOD + 4096}     ; ga
    """)
    a.stamp(1)
    a(f"""
    v_and_b32 v7, 15, v1                     ; j / i
    v_lshrrev_b32 v2, 4, v1                  ; G / g
    v_lshlrev_b32 v4, 5, v7
    v_lshl_add_u32 v4, v2, 3, v4
    s_lshl_b32 s39, s30, 12
    s_lshl_b32 s40, s28, 11
    s_add_u32 s39, s39, s40
    s_add_u32 s41, s39, {WS_XT}
    s_add_u32 s42, s39, {WS_X2T}
    v_mov_b32 v56, 0
    v_mov_b32 v57, 0
    v_mov_b32 v58, 0
    v_mov_b32 v59, 0
    v_lshrrev_b32 v60, 1, v0
    v_mul_u32_u24 v60, {KCP}, v60
    v_and_b32 v61, 1, v0
    v_lshl_add_u32 v60, v61, 4, v60
    v_add_u32 v60, 4096, v60
    v_bfe_u32 v61, v0, 5, 1
    v_mul_u32_u24 v61, {HCH}, v61
    v_and_b32 v62, 31, v0
    v_lshl_add_u32 v61, v62, 4, v61
    v_add_u32 v61, {H_OFF}, v61
    v_cmp_gt_u32 vcc, 16, v0
    s_cmp_eq_u32 s26, 1
    s_cbranch_scc1 conv_padh
    s_cmp_eq_u32 s26, 0
    s_cbranch_scc0 conv_pad_done
    s_and_saveexec_b64 s[44:45], vcc
    ds_write_b128 v60, v[56:59]
    s_mov_b64 exec, s[44:45]
    s_branch conv_pad_done
    conv_padh:
    ds_write_b128 v61, v[56:59]
    conv_pad_done:
    v_sub_u32 v60, 3, v7
    v_and_b32 v60, 3, v60                    ; c
    v_mul_u32_u24 v61, {KCP - 2}, v60
    v_lshlrev_b32 v62, 1, v7
    v_sub_u32 v61, v61, v62
    v_lshl_add_u32 v61, v2, 4, v61
    s_mul_i32 s43, s27, {KCHL}
    s_lshl_b32 s44, s28, 8
    s_sub_u32 s43, s43, s44
    s_add_u32 s43, s43, {2*(2031 - 32*59)}
    v_add_u32 v40, s43, v61                  ; v40 = A base
    v_lshlrev_b32 v41, 5, v7
    v_lshl_add_u32 v41, v2, 4, v41
    s_mul_i32 s43, s27, {HCH}
    s_sub_u32 s43, s43, s44
    s_add_u32 s43, s43, {H_OFF + 2*(240 - 96)}
    v_add_u32 v41, s43, v41                  ; v41 = B base
    v_add_u32 v42, {H_OFF + 512}, v5
    """)
    for t in range(8):
        for r in range(4): a(f"v_mov_b32 v{VY+4*t+r}, 0")
    a(f"""
    s_waitcnt lgkmcnt(0)
    v_add_f32 v44, 1.0, s14
    v_add_f32 v45, 1.0, s15
    v_cvt_pk_bf16_f32 v44, v44, v45
    v_mov_b32 v46, s12
    v_mov_b32 v47, s13
    v_and_b32 v45, 0xffff0000, v44
    v_lshlrev_b32 v44, 16, v44
    s_cmp_eq_u32 s27, 0
    s_cselect_b32 s46, s16, s17
    s_waitcnt vmcnt(4)
    """)
    a.stamp(2)
    for e in range(8):
        a(f"v_lshlrev_b32 v{64+e}, 16, v{16+e}")
        a(f"v_and_b32 v{72+e}, 0xffff0000, v{16+e}")
    for ch in range(2):
        src = 8 + 4 * ch; gam = 44 + ch; sa = 46 + ch
        for e in range(8):
            a(f"v_lshlrev_b32 v{80+e}, 16, v{src + e//2}" if e % 2 == 0 else f"v_and_b32 v{80+e}, 0xffff0000, v{src + e//2}")
        for e in range(8): a(f"v_fma_f32 v{80+e}, v{80+e}, v{64+e}, v{72+e}")
        for e in range(8): a(f"v_fma_f32 v{80+e}, v{80+e}, v{gam}, v{sa}")
        for p in range(4): a(f"v_cvt_pk_bf16_f32 v{src+p}, v{80+2*p}, v{81+2*p}")
        a(f"ds_write_b128 v42, v[{src}:{src+3}] offset:{ch*HCH}")
    for ch in range(2):
        D = 24 + 8 * ch
        a(f"s_waitcnt vmcnt({2 - 2*ch})")
        base = ch * KCHL
        a(f"ds_write_b128 v5, v[{D}:{D+3}] offset:{base}")
        for k in range(4): a(f"v_alignbit_b32 v{88+k}, v{D+k+1}, v{D+k}, 16")
        a(f"ds_write_b128 v5, v[88:91] offset:{base + KCP}")
        a(f"v_mov_b64 v[92:93], v[{D+2}:{D+3}]" if False else f"v_mov_b32 v92, v{D+1}")
        a(f"v_mov_b32 v93, v{D+2}")
        a(f"v_mov_b32 v94, v{D+3}")
        a(f"v_mov_b32 v95, v{D+4}")
        a(f"ds_write_b128 v5, v[92:95] offset:{base + 2*KCP}")
        a(f"v_mov_b32 v48, v89")
        a(f"v_mov_b32 v49, v90")
        a(f"v_mov_b32 v50, v91")
        a(f"v_alignbit_b32 v51, v{D+5}, v{D+4}, 16")
        a(f"ds_write_b128 v5, v[48:51] offset:{base + 3*KCP}")
    a("s_waitcnt lgkmcnt(0)")
    a.stamp(3)
    a("s_barrier")
    a.stamp(4)
    T = LdsTracker(a)
    def ldA(p, r):
        off = 512 * (7 - p) + 64 * (3 - r)
        T.issue(f"ds_read_b64 v[{VA+4*p}:{VA+4*p+1}], v40 offset:{off}", [f"A{p}"])
        T.issue(f"ds_read_b64 v[{VA+4*p+2}:{VA+4*p+3}], v40 offset:{off+8}", [f"A{p}"])
    def ldB(k, r):
        off = 512 * k + 64 * (3 - r)
        T.issue(f"ds_read_b128 v[{VB+4*k}:{VB+4*k+3}], v41 offset:{off}", [f"B{k}"])
    for p in range(8):
        ldB(7 - p, 0); ldA(p, 0)
    for i in range(4):
        a(f"buffer_load_dwordx2 v[{48+2*i}:{49+2*i}], v4, s[8:11], s41 offen offset:{512*i}")
    a(f"""
    s_lshr_b32 s47, s2, 3
    s_mul_i32 s47, s47, 44032
    v_lshlrev_b32 v8, 6, v0                  ; tid*64
    v_add_u32 v8, s47, v8
    global_load_dword v9, v8, s[48:49]
    v_add_u32 v8, 16384, v8
    global_load_dword v10, v8, s[48:49]
    s_add_u32 s47, s47, {32768 + 175*64}
    v_add_u32 v8, 16384, v8
    v_min_u32 v8, s47, v8
    global_load_dword v11, v8, s[48:49]
    """)
    for r in range(4):
        for p in range(8):
            for t in range(7, p - 1, -1):
                k = t - p
                T.need([f"A{p}", f"B{k}"])
                a(f"v_mfma_f32_16x16x32_bf16 v[{VY+4*t}:{VY+4*t+3}], v[{VA+4*p}:{VA+4*p+3}], v[{VB+4*k}:{VB+4*k+3}], v[{VY+4*t}:{VY+4*t+3}]")
                if t == 7 and r < 3: ldB(7 - p, r + 1)
            if r < 3: ldA(p, r + 1)
    a.stamp(5)
    a(f"""
    s_lshl_b32 s43, s26, 12
    s_add_u32 s43, s43, {RED_OFF}
    v_lshlrev_b32 v33, 4, v1
    v_add_u32 v34, s43, v33
    s_xor_b32 s43, s26, 1
    s_lshl_b32 s43, s43, 12
    s_add_u32 s43, s43, {RED_OFF}
    v_add_u32 v35, s43, v33
    s_cmp_eq_u32 s28, 1
    s_cbranch_scc1 conv_hf1
    """)
    def tail(hf):
        keep, send = 4 * hf, 4 * (1 - hf)
        a("s_nop 1")
        for i in range(4):
            t = send + i
            a(f"ds_write_b128 v34, v[{VY+4*t}:{VY+4*t+3}] offset:{1024*i}")
        a("s_waitcnt vmcnt(3)")
        for i in range(4):
            x0, x1 = 48 + 2 * i, 49 + 2 * i
            a(f"v_lshlrev_b32 v{80+4*i}, 16, v{x0}")
            a(f"v_and_b32 v{81+4*i}, 0xffff0000, v{x0}")
            a(f"v_lshlrev_b32 v{82+4*i}, 16, v{x1}")
            a(f"v_and_b32 v{83+4*i}, 0xffff0000, v{x1}")
        for i in range(4):
            for r in range(4): a(f"v_fma_f32 v{80+4*i+r}, s46, v{VY+4*(keep+i)+r}, v{80+4*i+r}")
        a("s_waitcnt lgkmcnt(0)")
        a("s_barrier")
        for i in range(4): a(f"ds_read_b128 v[{64+4*i}:{67+4*i}], v35 offset:{1024*i}")
        for i in range(4):
            a(f"s_waitcnt lgkmcnt({3-i})")
            for r in range(4): a(f"v_fma_f32 v{80+4*i+r}, s46, v{64+4*i+r}, v{80+4*i+r}")
            a(f"v_cvt_pk_bf16_f32 v{12+2*i}, v{80+4*i}, v{81+4*i}")
            a(f"v_cvt_pk_bf16_f32 v{13+2*i}, v{82+4*i}, v{83+4*i}")
            a(f"buffer_store_dwordx2 v[{12+2*i}:{13+2*i}], v4, s[8:11], s42 offen offset:{512*i}{SC}")
        a("s_endpgm")
    tail(0)
    a("conv_hf1:")
    tail(1)

def gen_w1p(a):
    FR = 0; RED1 = 32768; RED2 = RED1 + 9216; RED3 = RED2 + 9216
    a(f"""
    w1p:
    s_load_dwordx4 s[4:7], s[0:1], 80        ; w1, b1
    s_load_dwordx2 s[20:21], s[0:1], 144
    s_sub_u32 s3, s2, {NCONV}                ; fblk
    v_lshrrev_b32 v3, 2, v0                  ; rg
    v_and_b32 v4, 3, v0                      ; cc
    v_mul_u32_u24 v5, {8*2752}, v3
    v_lshl_add_u32 v5, v4, 4, v5
    s_lshl_b32 s9, s3, 6
    v_add_u32 v5, s9, v5
    v_lshlrev_b32 v6, 5, v3
    s_waitcnt lgkmcnt(0)
    s_add_u32 s12, s20, {WS_MOD + 3*2048}
    s_addc_u32 s13, s21, 0
    global_load_dwordx4 v[8:11], v6, s[12:13]              ; sb
    global_load_dwordx4 v[12:15], v6, s[12:13] offset:16
    global_load_dwordx4 v[16:19], v6, s[12:13] offset:2048 ; cb
    global_load_dwordx4 v[20:23], v6, s[12:13] offset:2064
    """)
    for i in range(8):
        if i: a("v_add_u32 v5, 2752, v5")
        a(f"global_load_dwordx4 v[{24+4*i}:{27+4*i}], v5, s[4:5]")
    a(f"""
    v_and_b32 v7, 31, v0
    v_lshlrev_b32 v7, 1, v7
    s_lshl_b32 s9, s3, 6
    v_add_u32 v7, s9, v7
    global_load_ushort v56, v7, s[6:7]
    v_mov_b32 v57, 0x3f803f80
    s_waitcnt vmcnt(9)
    """)
    for i in range(8): a(f"v_add_f32 v{16+i}, 1.0, v{16+i}")
    for i in range(4): a(f"v_cvt_pk_bf16_f32 v{58+i}, v{16+2*i}, v{17+2*i}")
    for i in range(8):
        if i % 2 == 0: a(f"v_lshlrev_b32 v{16+i}, 16, v{58+i//2}")
        else: a(f"v_and_b32 v{16+i}, 0xffff0000, v{58+i//2}")
    for e in range(16): a(f"v_mov_b32 v{96+e}, 0")
    for u in range(4):
        a(f"s_waitcnt vmcnt({1 + 6 - 2*u})")
        for h in range(2):
            i = 2 * u + h
            for e in range(8):
                src = 24 + 4 * i + e // 2
                if e % 2 == 0: a(f"v_lshlrev_b32 v{112+8*h+e}, 16, v{src}")
                else: a(f"v_and_b32 v{112+8*h+e}, 0xffff0000, v{src}")
            for e in range(8): a(f"v_fmac_f32 v{104+e}, v{8+i}, v{112+8*h+e}")
            for e in range(8): a(f"v_mul_f32 v{112+8*h+e}, v{16+i}, v{112+8*h+e}")
        for e in range(8): a(f"v_cvt_pk_bf16_f32 v{64+4*e+u}, v{112+e}, v{120+e}")
        for e in range(8): a(f"v_dot2_f32_bf16 v{96+e}, v{64+4*e+u}, v57, v{96+e}")
    a(f"""
    s_waitcnt vmcnt(0)
    s_waitcnt vmcnt(0)
    v_lshrrev_b32 v5, 1, v3
    v_lshlrev_b32 v5, 10, v5
    v_and_b32 v6, 1, v3
    v_lshl_add_u32 v5, v6, 9, v5
    v_lshl_add_u32 v5, v4, 7, v5
    v_lshl_add_u32 v6, v6, 2, v4
    """)
    for e in range(8):
        a(f"v_xor_b32 v7, {e}, v6")
        a(f"v_lshl_add_u32 v7, v7, 4, v5")
        a(f"ds_write_b128 v7, v[{64+4*e}:{67+4*e}] offset:{FR}")
    a(f"""
    v_mul_u32_u24 v5, 144, v3
    v_lshl_add_u32 v5, v4, 5, v5
    ds_write_b128 v5, v[96:99] offset:{RED1}
    ds_write_b128 v5, v[100:103] offset:{RED1+16}
    ds_write_b128 v5, v[104:107] offset:{RED2}
    ds_write_b128 v5, v[108:111] offset:{RED2+16}
    v_and_b32 v1, 63, v0
    v_lshrrev_b32 v2, 6, v0                  ; wave
    v_lshrrev_b32 v6, 5, v1                  ; g
    v_bfe_u32 v7, v1, 3, 2                   ; cc
    v_and_b32 v8, 7, v1                      ; e
    v_lshl_add_u32 v9, v6, 2, v7             ; 4g+cc
    v_xor_b32 v8, v8, v9
    v_lshl_add_u32 v8, v7, 3, v8             ; slot
    v_lshlrev_b32 v8, 4, v8
    v_lshl_add_u32 v8, v6, 9, v8
    v_lshl_add_u32 v8, v2, 13, v8
    v_lshlrev_b32 v9, 4, v1
    v_lshl_add_u32 v9, v2, 13, v9
    s_lshl_b32 s9, s3, 15
    s_add_u32 s9, s9, {WS_W1F}
    v_add_u32 v9, s9, v9
    v_and_b32 v6, 31, v0
    v_lshrrev_b32 v7, 5, v0
    v_mul_u32_u24 v7, {8*144}, v7
    v_lshl_add_u32 v7, v6, 2, v7
    s_waitcnt lgkmcnt(0)
    s_barrier
    """)
    for s in range(8): a(f"ds_read_b128 v[{64+4*s}:{67+4*s}], v8 offset:{FR + 1024*s}")
    for i in range(8): a(f"ds_read_b32 v{16+i}, v7 offset:{RED1 + 144*i}")
    for s in range(8):
        a(f"s_waitcnt lgkmcnt({15-s})")
        a(f"global_store_dwordx4 v9, v[{64+4*s}:{67+4*s}], s[20:21] offset:{1024*(s%4)}{SC}")
        if s == 3: a("v_add_u32 v9, 4096, v9")
    for i in range(8): a(f"ds_read_b32 v{24+i}, v7 offset:{RED2 + 144*i}")
    a("s_waitcnt lgkmcnt(0)")
    for b in (16, 24):
        a(f"""
        v_add_f32 v{b}, v{b}, v{b+1}
        v_add_f32 v{b+2}, v{b+2}, v{b+3}
        v_add_f32 v{b+4}, v{b+4}, v{b+5}
        v_add_f32 v{b+6}, v{b+6}, v{b+7}
        v_add_f32 v{b}, v{b}, v{b+2}
        v_add_f32 v{b+4}, v{b+4}, v{b+6}
        v_add_f32 v{b}, v{b}, v{b+4}
        """)
    a(f"""
    v_lshlrev_b32 v5, 2, v0
    ds_write_b32 v5, v16 offset:{RED3}
    ds_write_b32 v5, v24 offset:{RED3+1024}
    s_waitcnt lgkmcnt(0)
    s_barrier
    v_cmp_gt_u32 vcc, 32, v0
    s_and_saveexec_b64 s[30:31], vcc
    s_cbranch_execz w1p_end
    """)
    for i in range(8): a(f"ds_read_b32 v{16+i}, v5 offset:{RED3 + 128*i}")
    for i in range(8): a(f"ds_read_b32 v{24+i}, v5 offset:{RED3 + 1024 + 128*i}")
    a("s_waitcnt lgkmcnt(0)")
    for b in (16, 24):
        a(f"""
        v_add_f32 v{b}, v{b}, v{b+1}
        v_add_f32 v{b+2}, v{b+2}, v{b+3}
        v_add_f32 v{b+4}, v{b+4}, v{b+5}
        v_add_f32 v{b+6}, v{b+6}, v{b+7}
        v_add_f32 v{b}, v{b}, v{b+2}
        v_add_f32 v{b+4}, v{b+4}, v{b+6}
        v_add_f32 v{b}, v{b}, v{b+4}
        """)
    a(f"""
    v_lshlrev_b32 v56, 16, v56
    v_add_f32 v24, v24, v56
    s_lshl_b32 s9, s3, 7
    s_add_u32 s10, s9, {WS_CS}
    v_add_u32 v6, s10, v5
    s_add_u32 s10, s9, {WS_B1P}
    v_add_u32 v7, s10, v5
    global_store_dword v6, v16, s[20:21]
    global_store_dword v7, v24, s[20:21]
    w1p_end:
    s_endpgm
    """)

def gen_B(a):
    a(f"""
    s_cmp_lt_u32 s2, {NCONV}
    s_cbranch_scc1 conv
    s_cmp_lt_u32 s2, {B_GRID}
    s_cbranch_scc1 w1p
    s_endpgm
    """)
    gen_conv(a); gen_w1p(a)

C_GRID = 256
C_SLOT = 28672
C_NS = 4
C_TAB = C_NS * C_SLOT
C_LDS = C_TAB + 768

def gen_C(a):
    ACC, AQ, AS, FB = 64, 112, 120, 128
    a(f"""
    s_and_b32 s6, s2, 7
    s_lshr_b32 s7, s2, 3                     ; j
    s_and_b32 s4, s6, 3
    s_lshl_b32 s4, s4, 2
    s_and_b32 s12, s7, 3
    s_add_u32 s4, s4, s12                    ; lt = 4(k&3) + (j&3)
    s_lshr_b32 s5, s6, 2
    s_lshl_b32 s5, s5, 3
    s_lshr_b32 s13, s7, 2
    s_add_u32 s5, s5, s13                    ; fg = 8(k>>2) + (j>>2)
    s_cmp_ge_u32 s2, {C_GRID}
    s_cbranch_scc1 c_end
    s_cmp_ge_u32 s5, 15
    s_cbranch_scc1 c_end
    s_load_dwordx2 s[20:21], s[0:1], 144
    s_lshl_b32 s12, s12, 1
    s_add_u32 s36, s12, s13
    s_and_b32 s36, s36, {((8 - 8 // int(os.environ.get("C_ROT", 1))) & 7)}
    v_lshrrev_b32 v3, 6, v0
    v_and_b32 v1, 63, v0
    v_lshlrev_b32 v4, 4, v1                  ; lane*16
    v_readfirstlane_b32 s26, v3              ; wave
    s_cmp_lt_u32 s26, 4
    s_cbranch_scc1 c_compute
    s_sub_u32 s26, s26, 4
    v_lshrrev_b32 v5, 4, v1
    v_lshlrev_b32 v6, 2, v5
    v_and_b32 v7, 15, v1
    v_xor_b32 v6, v6, v7
    v_lshlrev_b32 v6, 4, v6
    v_lshl_add_u32 v5, v5, 12, v6
    s_mul_i32 s6, s5, {3*32*1024}
    s_add_u32 s6, s6, {WS_W1F}
    s_mul_i32 s7, s26, 3
    """)
    for i in range(3):
        a(f"""
        s_add_u32 s12, s7, {i}
        s_lshr_b32 s13, s12, 2
        s_and_b32 s12, s12, 3
        s_lshl_b32 s13, s13, 15
        s_lshl_b32 s12, s12, 10
        s_add_u32 s12, s12, s13
        s_add_u32 s{30+i}, s12, s6
        """)
    a(f"""
    s_lshl_b32 s12, s26, 16
    s_lshl_b32 s13, s4, 8
    s_add_u32 s12, s12, s13
    s_add_u32 s33, s12, {WS_X2T}
    s_mul_i32 s34, s26, 3072
    s_lshl_b32 s35, s26, 12
    s_add_u32 s35, s35, 12288
    s_waitcnt lgkmcnt(0)
    """)
    srd(a, 8, 20, WS_SIZE)
    a.stamp(0)
    def dma(c):
        slot = (c % C_NS) * C_SLOT
        a(f"s_add_u32 s37, s36, {c}\ns_and_b32 s37, s37, 7\ns_lshl_b32 s38, s37, 18\ns_lshl_b32 s37, s37, 12\ns_add_u32 s38, s38, s33")
        for j in range(4):
            a(f"s_add_u32 m0, s35, {slot + 1024*j}")
            if j: a(f"s_add_u32 s38, s38, 16384")
            else: a("s_nop 0")
            a(f"buffer_load_dwordx4 v5, s[8:11], s38 offen lds")
        for i in range(3):
            a(f"s_add_u32 m0, s34, {slot + 1024*i}")
            a(f"s_add_u32 s12, s{30+i}, s37")
            a(f"buffer_load_dwordx4 v4, s[8:11], s12 offen lds")
    LA = int(os.environ.get("C_LA", 2))
    for c in range(LA): dma(c)
    for c in range(8):
        last = min(7, c + LA - 1)
        if c == 4: a.stamp(1)
        a(f"s_waitcnt vmcnt({7*(last - c) if not os.environ.get('C_NODMA') else 0})")
        if c == 4: a.stamp(2)
        a("s_barrier")
        if c in (0, 4): a.stamp(3 + c // 4)
        if c + LA <= 7 and not os.environ.get("C_NODMA"): dma(c + LA)
    a.stamp(5)
    a("s_endpgm")
    a(f"""
    c_compute:
    v_lshlrev_b32 v8, 2, v0
    s_mul_i32 s12, s5, 384
    s_add_u32 s13, s12, {WS_CS}
    s_add_u32 s12, s12, {WS_B1P}
    v_and_b32 v6, 15, v1
    v_lshrrev_b32 v7, 2, v6                  ; r
    v_and_b32 v6, 3, v6                      ; c
    v_lshrrev_b32 v9, 5, v1                  ; g
    v_lshl_add_u32 v12, v9, 3, v7
    v_lshlrev_b32 v12, 8, v12
    v_bfe_u32 v13, v1, 4, 1
    v_lshlrev_b32 v13, 1, v13
    v_lshl_add_u32 v13, v3, 2, v13
    v_lshrrev_b32 v14, 1, v6
    v_add_u32 v13, v13, v14
    v_lshlrev_b32 v14, 2, v7
    v_xor_b32 v13, v13, v14
    v_lshl_add_u32 v12, v13, 4, v12
    v_and_b32 v6, 1, v6
    v_lshl_add_u32 v12, v6, 3, v12
    v_add_u32 v16, 12288, v12
    v_add_u32 v17, {2*C_SLOT}, v16
    v_mov_b32 v19, v4
    v_add_u32 v20, {2*C_SLOT}, v4
    v_mov_b32 v22, 0x3f803f80
    v_mov_b32 v23, 0x3f803f80
    v_add_u32 v9, {C_TAB}, v8
    s_waitcnt lgkmcnt(0)
    """)
    srd(a, 8, 20, WS_SIZE)
    a.stamp(0)
    a("""
    buffer_load_dword v10, v8, s[8:11], s13 offen
    buffer_load_dword v11, v8, s[8:11], s12 offen
    """)
    for r in range(ACC, FB): a(f"v_mov_b32 v{r}, 0")
    T = LdsTracker(a)
    def reads(c, s):
        slot = c % C_NS
        grp = slot // 2; so = (slot % 2) * C_SLOT
        buf = (4 * c + s) % 3
        fb = FB + 16 * buf
        T.issue(f"ds_read_b64_tr_b16 v[{fb+12}:{fb+13}], v{16+grp} offset:{so + s*4096}", [f"x{buf}"])
        T.issue(f"ds_read_b64_tr_b16 v[{fb+14}:{fb+15}], v{16+grp} offset:{so + s*4096 + 1024}", [f"x{buf}"])
        for b in range(3):
            T.issue(f"ds_read_b128 v[{fb+4*b}:{fb+4*b+3}], v{19+grp} offset:{so + (b*4+s)*1024}", [f"w{buf}{b}"])
    def read_list(c, s):
        slot = c % C_NS
        grp = slot // 2; so = (slot % 2) * C_SLOT
        buf = (4 * c + s) % 3
        fb = FB + 16 * buf
        L = [(f"ds_read_b64_tr_b16 v[{fb+12}:{fb+13}], v{16+grp} offset:{so + s*4096}", [f"x{buf}"]),
             (f"ds_read_b64_tr_b16 v[{fb+14}:{fb+15}], v{16+grp} offset:{so + s*4096 + 1024}", [f"x{buf}"])]
        for b in range(3):
            L.append((f"ds_read_b128 v[{fb+4*b}:{fb+4*b+3}], v{19+grp} offset:{so + (b*4+s)*1024}", [f"w{buf}{b}"]))
        return L
    def mfmas(c, s, rd=()):
        rd = list(rd)
        def pop(n):
            for _ in range(n):
                if rd: T.issue(*rd.pop(0))
        buf = (4 * c + s) % 3; fb = FB + 16 * buf
        T.need([f"x{buf}", f"w{buf}0", f"w{buf}1", f"w{buf}2"])
        per = (len(rd) + 2) // 3
        for b in range(3):
            a(f"v_mfma_f32_32x32x16_bf16 v[{ACC+16*b}:{ACC+16*b+15}], v[{fb+4*b}:{fb+4*b+3}], v[{fb+12}:{fb+15}], v[{ACC+16*b}:{ACC+16*b+15}]")
            pop(per)
            if not os.environ.get("C_NOSTAT"):
                if b == 0:
                    a(f"v_mfma_f32_4x4x4_16b_bf16 v[{AQ}:{AQ+3}], v[{fb+12}:{fb+13}], v[{fb+12}:{fb+13}], v[{AQ}:{AQ+3}]")
                    a(f"v_mfma_f32_4x4x4_16b_bf16 v[{AS}:{AS+3}], v[22:23], v[{fb+12}:{fb+13}], v[{AS}:{AS+3}]")
                if b == 1:
                    a(f"v_mfma_f32_4x4x4_16b_bf16 v[{AQ+4}:{AQ+7}], v[{fb+14}:{fb+15}], v[{fb+14}:{fb+15}], v[{AQ+4}:{AQ+7}]")
                    a(f"v_mfma_f32_4x4x4_16b_bf16 v[{AS+4}:{AS+7}], v[22:23], v[{fb+14}:{fb+15}], v[{AS+4}:{AS+7}]")
        pop(99)
    for c in range(8):
        if c == 1:
            a("""
            s_waitcnt vmcnt(0)
            v_cmp_gt_u32 vcc, 96, v0
            s_and_saveexec_b64 s[14:15], vcc
            ds_write_b32 v9, v10
            ds_write_b32 v9, v11 offset:384
            s_mov_b64 exec, s[14:15]
            """)
            T.issued += 2
        if c == 4: a.stamp(1)
        T.drain()
        if c == 4: a.stamp(2)
        a("s_barrier")
        if c in (0, 4): a.stamp(3 + c // 4)
        if c > 0:
            mfmas(c - 1, 3, read_list(c, 0) + read_list(c, 1))
        else:
            for x in read_list(c, 0) + read_list(c, 1): T.issue(*x)
        mfmas(c, 0, read_list(c, 2))
        mfmas(c, 1, read_list(c, 3))
        mfmas(c, 2)
    mfmas(7, 3)
    a.stamp(5)
    a(f"""
    v_and_b32 v6, 3, v1
    v_cmp_eq_u32 s[12:13], 1, v6
    v_cmp_eq_u32 s[14:15], 2, v6
    v_cmp_eq_u32 s[16:17], 3, v6
    v_lshrrev_b32 v6, 5, v1
    v_lshlrev_b32 v6, 4, v6
    v_add_u32 v6, {C_TAB}, v6
    """)
    for q in range(4):
        a(f"ds_read_b128 v[{28+4*q}:{31+4*q}], v6 offset:{(8*q)*4}")
        a(f"ds_read_b128 v[{44+4*q}:{47+4*q}], v6 offset:{384 + (8*q)*4}")
    a(f"""
    v_add_f32 v{AQ}, v{AQ}, v{AQ+4}
    v_add_f32 v{AQ+1}, v{AQ+1}, v{AQ+5}
    v_add_f32 v{AQ+2}, v{AQ+2}, v{AQ+6}
    v_add_f32 v{AQ+3}, v{AQ+3}, v{AQ+7}
    v_add_f32 v{AS}, v{AS}, v{AS+4}
    v_cndmask_b32 v{AQ}, v{AQ}, v{AQ+1}, s[12:13]
    v_cndmask_b32 v{AQ}, v{AQ}, v{AQ+2}, s[14:15]
    v_cndmask_b32 v{AQ}, v{AQ}, v{AQ+3}, s[16:17]
    v_mov_b32 v25, v{AS}
    v_mov_b32 v24, v{AQ}
    s_nop 1
    v_permlane32_swap_b32 v25, v{AS}
    v_permlane32_swap_b32 v24, v{AQ}
    s_nop 1
    v_add_f32 v25, v25, v{AS}
    v_add_f32 v24, v24, v{AQ}
    v_mul_f32 v25, {fx(1.0/512)}, v25
    v_mul_f32 v24, {fx(1.0/512)}, v24
    v_fma_f32 v24, -v25, v25, v24
    v_max_f32 v24, 0, v24
    v_add_f32 v24, {fx(1e-5)}, v24
    v_rsq_f32 v24, v24                       ; r
    s_lshl_b32 s12, s4, 2
    v_mul_f32 v26, -v25, v24                 ; -mean*r
    s_add_u32 s12, s12, s26
    s_mul_i32 s12, s12, {HS}
    v_mov_b32 v25, v24
    v_mov_b32 v27, v26
    s_mul_i32 s13, s5, 6
    s_add_u32 s12, s12, s13
    s_lshl_b32 s12, s12, 10
    s_add_u32 s12, s12, {WS_HID}
    """)
    for b in range(3):
        cs, bb = (28, 44) if b % 2 == 0 else (144, 160)
        a("s_waitcnt lgkmcnt(0)")
        if b < 2:
            cs2, bb2 = (144, 160) if b % 2 == 0 else (28, 44)
            if b == 1:
                a("s_nop 0")
            for q in range(4):
                a(f"ds_read_b128 v[{cs2+4*q}:{cs2+4*q+3}], v6 offset:{(32*(b+1) + 8*q)*4}")
                a(f"ds_read_b128 v[{bb2+4*q}:{bb2+4*q+3}], v6 offset:{384 + (32*(b+1) + 8*q)*4}")
        for j in range(8):
            a(f"v_pk_fma_f32 v[{bb+2*j}:{bb+2*j+1}], v[26:27], v[{cs+2*j}:{cs+2*j+1}], v[{bb+2*j}:{bb+2*j+1}]")
        for j in range(8):
            a(f"v_pk_fma_f32 v[{bb+2*j}:{bb+2*j+1}], v[24:25], v[{ACC+16*b+2*j}:{ACC+16*b+2*j+1}], v[{bb+2*j}:{bb+2*j+1}]")
        for j in range(16): a(f"v_max_f32 v{bb+j}, 0, v{bb+j}")
        for j in range(8): a(f"v_pk_mul_f32 v[{bb+2*j}:{bb+2*j+1}], v[{bb+2*j}:{bb+2*j+1}], v[{bb+2*j}:{bb+2*j+1}]")
        o = ACC + 16 * b
        for j in range(8): a(f"v_cvt_pk_bf16_f32 v{o+j}, v{bb+2*j}, v{bb+2*j+1}")
        a("s_nop 1")
        a(f"v_permlane32_swap_b32 v{o}, v{o+2}")
        a(f"v_permlane32_swap_b32 v{o+1}, v{o+3}")
        a(f"v_permlane32_swap_b32 v{o+4}, v{o+6}")
        a(f"v_permlane32_swap_b32 v{o+5}, v{o+7}")
        a(f"buffer_store_dwordx4 v[{o}:{o+3}], v4, s[8:11], s12 offen{SC}")
        a(f"buffer_store_dwordx4 v[{o+4}:{o+7}], v4, s[8:11], s12 offen offset:1024{SC}")
        a("s_add_u32 s12, s12, 2048")
        if b == 0:
            a(f"""
            s_cmp_eq_u32 s5, 14
            s_cbranch_scc0 c_more
            v_mov_b32 v28, 0
            v_mov_b32 v29, 0
            v_mov_b32 v30, 0
            v_mov_b32 v31, 0
            buffer_store_dwordx4 v[28:31], v4, s[8:11], s12 offen{SC}
            buffer_store_dwordx4 v[28:31], v4, s[8:11], s12 offen offset:1024{SC}
            s_endpgm
            c_more:
            """)
    a("c_end:\ns_endpgm")

D_GRID = 256
D_SLOT = 32768
D_NS = 4
D_X2 = D_NS * D_SLOT
D_TAB = D_X2 + 8192
D_LDS = D_TAB + 512
D_NCH = 11

def gen_D(a):
    ACC, FB = 64, 80
    a(f"""
    s_cmp_ge_u32 s2, {D_GRID}
    s_cbranch_scc1 d_end
    s_load_dwordx2 s[20:21], s[0:1], 144
    s_load_dwordx4 s[16:19], s[0:1], 96      ; w2, b2
    s_load_dwordx2 s[24:25], s[0:1], 128     ; out
    v_lshrrev_b32 v3, 6, v0
    v_and_b32 v1, 63, v0
    s_and_b32 s4, s2, 7
    s_lshl_b32 s4, s4, 2
    s_bfe_u32 s6, s2, 0x20003
    s_add_u32 s4, s4, s6
    s_lshr_b32 s5, s2, 5
    v_readfirstlane_b32 s26, v3              ; wave
    v_lshlrev_b32 v4, 4, v1                  ; lane*16
    s_lshl_b32 s6, s6, 1
    s_add_u32 s36, s6, s5
    s_and_b32 s36, s36, {((8 - 8 // int(os.environ.get("D_ROT", 4))) & 7)}
    s_mul_i32 s36, s36, 11
    s_lshr_b32 s36, s36, 3                   ; rotation
    s_and_b32 s27, s26, 1                    ; wm
    s_bfe_u32 s28, s26, 0x10001              ; wn
    s_cmp_lt_u32 s26, 4
    s_cbranch_scc1 d_compute
    s_sub_u32 s26, s26, 4
    v_lshrrev_b32 v5, 3, v1
    v_bfe_u32 v6, v1, 4, 1
    v_lshlrev_b32 v6, 2, v6
    v_and_b32 v7, 7, v1
    v_xor_b32 v6, v6, v7
    v_lshlrev_b32 v6, 4, v6
    v_lshl_add_u32 v5, v5, 10, v6
    v_lshrrev_b32 v9, 3, v1
    v_lshl_add_u32 v9, v9, 12, v6
    s_waitcnt lgkmcnt(0)
    s_cmp_eq_u32 s28, 0
    s_cbranch_scc0 d_hidrole
    s_mov_b32 s8, s16
    s_mov_b32 s9, s17
    s_mov_b32 s10, {1376*512*2}
    s_mov_b32 s11, 0x00020000
    s_lshl_b32 s30, s27, 16
    s_lshl_b32 s12, s5, 7
    s_add_u32 s30, s30, s12
    s_mov_b32 s32, 8192
    s_mov_b32 s33, 131072
    v_mov_b32 v8, v5
    s_branch d_roledone
    d_hidrole:
    s_mov_b32 s8, s20
    s_mov_b32 s9, s21
    s_mov_b32 s10, {WS_SIZE}
    s_mov_b32 s11, 0x00020000
    s_lshl_b32 s30, s4, 1
    s_add_u32 s30, s30, s27
    s_mul_i32 s30, s30, {HS*1024}
    s_add_u32 s30, s30, {WS_HID}
    s_mov_b32 s32, 1024
    s_mov_b32 s33, 8192
    v_mov_b32 v8, v4
    d_roledone:
    s_lshl_b32 s31, s26, 13
    """)
    srd(a, 40, 20, WS_SIZE)
    a.stamp(0)
    def dma(c):
        slot = (c % D_NS) * D_SLOT
        a(f"""
        s_add_u32 s34, s36, {c}
        s_sub_u32 s35, s34, 11
        s_cmp_ge_u32 s34, 11
        s_cselect_b32 s34, s35, s34
        s_mul_i32 s34, s34, s33
        s_add_u32 s34, s34, s30
        """)
        for i in range(8):
            a(f"s_add_u32 m0, s31, {slot + 1024*i}")
            a(f"s_add_u32 s34, s34, s32" if i else "s_nop 0")
            a(f"buffer_load_dwordx4 v8, s[8:11], s34 offen lds")
    dma(0)
    a(f"""
    s_lshl_b32 s12, s5, 6
    s_lshl_b32 s13, s26, 4
    s_add_u32 s12, s12, s13
    s_lshl_b32 s12, s12, 12
    s_lshl_b32 s13, s4, 7
    s_add_u32 s12, s12, s13
    s_add_u32 s12, s12, {WS_X2T}
    s_lshl_b32 s13, s26, 11
    s_add_u32 m0, s13, {D_X2}
    s_add_u32 s14, s12, {8*4096}
    buffer_load_dwordx4 v9, s[40:43], s12 offen lds
    s_add_u32 m0, m0, 1024
    s_nop 0
    buffer_load_dwordx4 v9, s[40:43], s14 offen lds
    """)
    dma(1)
    LA = 2
    for c in range(D_NCH):
        last = min(D_NCH - 1, c + LA - 1)
        n = 8 * (last - c)
        if c == 0: n += 2
        if c == 5: a.stamp(1)
        a(f"s_waitcnt vmcnt({n})")
        if c == 5: a.stamp(2)
        a("s_barrier")
        if c in (0, 5, 10): a.stamp(3 + (0, 5, 10).index(c))
        if c + LA < D_NCH: dma(c + LA)
    a("s_endpgm")
    a(f"""
    d_compute:
    v_lshlrev_b32 v10, 2, v0
    v_lshlrev_b32 v11, 1, v0
    s_lshl_b32 s12, s5, 7
    v_add_u32 v11, s12, v11
    v_min_u32 v11, 1022, v11
    v_and_b32 v6, 15, v1
    v_lshrrev_b32 v7, 2, v6                  ; r
    v_and_b32 v6, 3, v6                      ; c
    v_lshrrev_b32 v12, 5, v1                 ; g
    v_lshl_add_u32 v12, v12, 3, v7
    v_lshlrev_b32 v12, 7, v12
    v_bfe_u32 v13, v1, 4, 1
    v_lshlrev_b32 v13, 1, v13
    s_lshl_b32 s12, s27, 2
    v_add_u32 v13, s12, v13
    v_lshrrev_b32 v16, 1, v6
    v_add_u32 v13, v13, v16
    v_lshrrev_b32 v7, 1, v7
    v_lshlrev_b32 v7, 2, v7
    v_xor_b32 v13, v13, v7
    v_lshl_add_u32 v12, v13, 4, v12
    v_and_b32 v6, 1, v6
    v_lshl_add_u32 v16, v6, 3, v12
    v_add_u32 v17, {2*D_SLOT}, v16
    s_lshl_b32 s12, s28, 13
    s_add_u32 s12, s12, 16384
    v_add_u32 v18, s12, v4
    v_add_u32 v19, {2*D_SLOT}, v18
    s_waitcnt lgkmcnt(0)
    """)
    srd(a, 40, 20, WS_SIZE)
    a.stamp(0)
    a(f"""
    s_lshl_b32 s12, s5, 8
    s_add_u32 s12, s12, {WS_MOD + 5*2048}
    buffer_load_dword v14, v10, s[40:43], s12 offen
    global_load_ushort v15, v11, s[18:19]
    v_add_u32 v10, {D_TAB}, v10
    """)
    for r in range(16): a(f"v_mov_b32 v{ACC+r}, 0")
    T = LdsTracker(a)
    NB = 5
    def reads(c, s):
        slot = c % D_NS
        grp = slot // 2; so = (slot % 2) * D_SLOT
        g = (8 * c + s) % NB
        fb = FB + 8 * g
        T.issue(f"ds_read_b64_tr_b16 v[{fb}:{fb+1}], v{16+grp} offset:{so + s*2048}", [f"a{g}"])
        T.issue(f"ds_read_b64_tr_b16 v[{fb+2}:{fb+3}], v{16+grp} offset:{so + s*2048 + 512}", [f"a{g}"])
        T.issue(f"ds_read_b128 v[{fb+4}:{fb+7}], v{18+grp} offset:{so + s*1024}", [f"b{g}"])
    def mfma(c, s):
        g = (8 * c + s) % NB; fb = FB + 8 * g
        T.need([f"a{g}", f"b{g}"])
        a(f"v_mfma_f32_32x32x16_bf16 v[{ACC}:{ACC+15}], v[{fb}:{fb+3}], v[{fb+4}:{fb+7}], v[{ACC}:{ACC+15}]")
    for c in range(D_NCH):
        if c == 1:
            a(f"""
            s_waitcnt vmcnt(0)
            v_lshlrev_b32 v15, 16, v15
            v_cmp_gt_u32 vcc, 64, v0
            s_and_saveexec_b64 s[14:15], vcc
            ds_write_b32 v10, v14
            ds_write_b32 v10, v15 offset:256
            s_mov_b64 exec, s[14:15]
            """)
            T.issued += 2
        if c == 5: a.stamp(1)
        T.drain()
        if c == 5: a.stamp(2)
        a("s_barrier")
        if c in (0, 5): a.stamp(3 + c // 5)
        reads(c, 0); reads(c, 1); reads(c, 2); reads(c, 3)
        if c > 0: mfma(c - 1, 7)
        for s in range(7):
            if s + 4 < 8: reads(c, s + 4)
            mfma(c, s)
    mfma(D_NCH - 1, 7)
    a.stamp(5)
    a(f"""
    v_and_b32 v6, 15, v1
    v_lshrrev_b32 v7, 2, v6
    v_and_b32 v6, 3, v6
    v_lshrrev_b32 v12, 5, v1                 ; h
    v_lshl_add_u32 v13, v12, 2, v7
    s_lshl_b32 s12, s27, 5
    v_add_u32 v13, s12, v13
    v_lshlrev_b32 v13, 7, v13
    v_bfe_u32 v14, v1, 4, 1
    v_lshlrev_b32 v14, 1, v14
    s_lshl_b32 s12, s28, 2
    v_add_u32 v14, s12, v14
    v_lshrrev_b32 v15, 1, v6
    v_add_u32 v14, v14, v15
    v_lshrrev_b32 v7, 1, v7
    v_lshlrev_b32 v7, 2, v7
    v_xor_b32 v14, v14, v7
    v_lshl_add_u32 v13, v14, 4, v13
    v_and_b32 v6, 1, v6
    v_lshl_add_u32 v13, v6, 3, v13
    v_add_u32 v13, {D_X2}, v13
    v_lshlrev_b32 v14, 4, v12
    s_lshl_b32 s12, s27, 7
    s_add_u32 s12, s12, {D_TAB}
    v_add_u32 v14, s12, v14
    """)
    for q in range(4):
        a(f"ds_read_b64_tr_b16 v[{24+2*q}:{25+2*q}], v13 offset:{1024*q}")
        a(f"ds_read_b128 v[{32+4*q}:{35+4*q}], v14 offset:{32*q}")
        a(f"ds_read_b128 v[{48+4*q}:{51+4*q}], v14 offset:{256+32*q}")
    a(f"""
    v_and_b32 v5, 31, v1
    v_lshlrev_b32 v20, 10, v5
    v_lshl_add_u32 v20, v12, 4, v20
    s_lshl_b32 s12, s4, 1
    s_add_u32 s12, s12, s28
    s_lshl_b32 s12, s12, 15
    s_lshl_b32 s13, s5, 1
    s_add_u32 s13, s13, s27
    s_lshl_b32 s13, s13, 6
    s_add_u32 s12, s12, s13
    v_add_u32 v20, s12, v20
    """)
    for q in range(4):
        a(f"s_waitcnt lgkmcnt({3*(3-q)})")
        a(f"v_lshlrev_b32 v8, 16, v{24+2*q}")
        a(f"v_and_b32 v9, 0xffff0000, v{24+2*q}")
        a(f"v_lshlrev_b32 v10, 16, v{25+2*q}")
        a(f"v_and_b32 v11, 0xffff0000, v{25+2*q}")
        for r in range(4): a(f"v_add_f32 v{48+4*q+r}, v{48+4*q+r}, v{ACC+4*q+r}")
        for r in range(4): a(f"v_fma_f32 v{8+r}, v{48+4*q+r}, v{32+4*q+r}, v{8+r}")
        a(f"v_cvt_pk_bf16_f32 v{FB+2*q}, v8, v9")
        a(f"v_cvt_pk_bf16_f32 v{FB+2*q+1}, v10, v11")
    a(f"""
    s_nop 1
    v_permlane32_swap_b32 v{FB}, v{FB+2}
    v_permlane32_swap_b32 v{FB+1}, v{FB+3}
    v_permlane32_swap_b32 v{FB+4}, v{FB+6}
    v_permlane32_swap_b32 v{FB+5}, v{FB+7}
    global_store_dwordx4 v20, v[{FB}:{FB+3}], s[24:25]
    global_store_dwordx4 v20, v[{FB+4}:{FB+7}], s[24:25] offset:32
    d_end:
    s_endpgm
    """)

def kernels():
    return [("conv_kernel", gen_B, 168, B_GRID, 256, B_LDS),
            ("gemm1_kernel", gen_C, 176, C_GRID, 512, C_LDS),
            ("gemm2_kernel", gen_D, 128, D_GRID, 512, D_LDS)]
```

```python
import sys, struct, os

NAME = "adaLN_cond__ssm_conv_s4__dense_activation_squared_relu__prompt"
TS = bool(os.environ.get("TS"))
SC = os.environ.get("SC", "")

WS_MOD  = 0x0000
WS_ST1  = 0x4000
WS_CS   = 0x8000
WS_B1P  = 0xA000
WS_XT   = 0x100000
WS_KE   = 0x300000
KCH     = 4112
WS_W1F  = 0xA00000
WS_X2T  = 0xC00000
WS_HID  = 0x1000000
HS      = 88
WS_SIZE = 268435456
WS_TS   = 0x8000000

def f2u(x): return struct.unpack("<I", struct.pack("<f", x))[0]
def fx(x): return "0x%08x" % f2u(x)

class Asm:
    def __init__(self): self.l = []
    def __call__(self, s):
        for line in s.strip("\n").split("\n"):
            line = line.strip()
            if not line: continue
            self.l.append(line if line.endswith(":") else "    " + line)
    def stamp(self, i):
        if TS: self(f"s_memtime s[{70+2*i}:{71+2*i}]")
    def text(self): return "\n".join(self.l) + "\n"

class LdsTracker:
    def __init__(self, a): self.a = a; self.issued = 0; self.done = 0; self.tag = {}
    def issue(self, text, tags):
        self.a(text)
        for t in tags: self.tag[t] = self.issued
        self.issued += 1
    def need(self, tags):
        idx = max(self.tag[t] for t in tags)
        if idx < self.done: return
        n = min(self.issued - idx - 1, 15)
        self.a(f"s_waitcnt lgkmcnt({n})")
        self.done = self.issued - n
    def drain(self):
        if self.done < self.issued: self.a("s_waitcnt lgkmcnt(0)")
        self.done = self.issued

def cmul(a, d, x, y, t):
    a(f"v_pk_mul_f32 v[{t}:{t+1}], v[{x}:{x+1}], v[{y}:{y+1}] op_sel:[0,0] op_sel_hi:[0,1]")
    a(f"v_pk_fma_f32 v[{d}:{d+1}], v[{x}:{x+1}], v[{y}:{y+1}], v[{t}:{t+1}] op_sel:[1,1,0] op_sel_hi:[1,0,1] neg_lo:[1,0,0]")

def prefetch_code(a, start, end_, tag, vdummy, cond_sgpr="s2"):
    a(f"""
    s_cmp_lt_u32 {cond_sgpr}, 8
    s_cbranch_scc0 pf_skip_{tag}
    v_cmp_gt_u32 vcc, 64, v0
    s_and_saveexec_b64 s[64:65], vcc
    s_cbranch_execz pf_rest_{tag}
    s_getpc_b64 s[66:67]
    pf_here_{tag}:
    s_add_u32 s66, s66, {start}-pf_here_{tag}
    s_addc_u32 s67, s67, 0
    v_lshlrev_b32 v{vdummy}, 6, v0
    s_mov_b32 s68, 0
    s_mov_b32 s69, {end_}-{start}-4
    pf_loop_{tag}:
    v_min_u32 v{vdummy}, s69, v{vdummy}
    global_load_dword v{vdummy+1}, v{vdummy}, s[66:67]
    v_add_u32 v{vdummy}, 4096, v{vdummy}
    s_add_u32 s68, s68, 4096
    s_cmp_lt_u32 s68, {end_}-{start}
    s_cbranch_scc1 pf_loop_{tag}
    pf_rest_{tag}:
    s_mov_b64 exec, s[64:65]
    pf_skip_{tag}:
    """)

def tlb_touch(a, gran):
    regs = [(80, 1376*512*2, 0), (96, 1376*512*2, 0), (128, 2048*512*2, 0), (120, 512*3072*2, 0), (0, 2048*512*2, 0),
            (144, 0x1600000, 0)]
    a(f"""
    s_cmp_lt_u32 s2, 8
    s_cbranch_scc0 tt_skip
    v_lshrrev_b32 v127, 6, v0
    s_nop 0
    v_readfirstlane_b32 s64, v127
    s_cmp_eq_u32 s64, 3
    s_cbranch_scc0 tt_skip
    v_and_b32 v126, 63, v0
    v_mul_u32_u24 v126, {gran}, v126
    """)
    for i, (off, size, _) in enumerate(regs):
        a(f"s_load_dwordx2 s[66:67], s[0:1], {off}")
        a("s_waitcnt lgkmcnt(0)")
        n = -(-size // (64 * gran))
        a(f"""
        s_mov_b32 s68, 0
        v_mov_b32 v125, v126
        tt_loop_{i}:
        v_min_u32 v124, {size - 4}, v125
        global_load_dword v127, v124, s[66:67]
        v_add_u32 v125, {64*gran}, v125
        s_add_u32 s68, s68, 1
        s_cmp_lt_u32 s68, {n}
        s_cbranch_scc1 tt_loop_{i}
        """)
    a("tt_skip:")

def srd(a, s, lo, size):
    a(f"""
    s_mov_b32 s{s}, s{lo}
    s_mov_b32 s{s+1}, s{lo+1}
    s_mov_b32 s{s+2}, {size}
    s_mov_b32 s{s+3}, 0x00020000
    """)

NK, NMOD, NLN = 512, 192, 64
A_GRID = NK + NMOD + NLN
ID_K, ID_MOD, ID_LN = 0, NK, NK + NMOD
TROW = 544; QROW = 41
KC_OFF = 57 * TROW
RS = 1088
A_LDS = max(KC_OFF + 768 * 4, 32 * RS)

def gen_kgen(a):
    a(f"""
    kgen:
    s_load_dwordx4 s[4:7], s[0:1], 8
    s_load_dwordx4 s[8:11], s[0:1], 24
    s_load_dwordx4 s[12:15], s[0:1], 40
    s_load_dwordx4 s[16:19], s[0:1], 56
    s_load_dwordx2 s[20:21], s[0:1], 144
    s_sub_u32 s2, s2, {ID_K}                ; channel d
    v_and_b32 v1, 127, v0
    v_lshlrev_b32 v2, 2, v1
    v_lshlrev_b32 v1, 1, v1
    s_lshl_b32 s3, s2, 8
    v_add_u32 v1, s3, v1                    ; (d*128+n)*2
    s_lshl_b32 s22, s2, 1
    s_and_b32 s22, s22, 0xfffffffc
    s_and_b32 s23, s2, 1
    s_lshl_b32 s23, s23, 4
    v_lshrrev_b32 v3, 6, v0
    s_waitcnt lgkmcnt(0)
    global_load_ushort v10, v1, s[4:5]
    global_load_ushort v11, v1, s[6:7]
    global_load_ushort v12, v1, s[8:9]
    global_load_ushort v13, v1, s[10:11]
    global_load_ushort v14, v1, s[12:13]
    global_load_ushort v15, v1, s[14:15]
    s_load_dword s24, s[16:17], s22
    s_load_dword s25, s[18:19], s22
    v_readfirstlane_b32 s26, v3
    v_lshlrev_b32 v4, 3, v0
    v_sub_u32 v4, 2047, v4                  ; lbase
    """)
    for e in range(8): a(f"v_subrev_u32 v{30+e}, {e}, v4")
    for e in range(8): a(f"v_cvt_f32_u32 v{40+e}, v{30+e}")
    for p in range(4): a(f"v_cvt_pk_bf16_f32 v{50+p}, v{40+2*p}, v{41+2*p}")
    a(f"s_mov_b32 s27, {KC_OFF - 0x10A00}")
    for e in range(8):
        p = e // 2
        a(f"v_and_b32 v{40+e}, 0xffff, v{50+p}" if e % 2 == 0 else f"v_lshrrev_b32 v{40+e}, 16, v{50+p}")
    for e in range(8): a(f"v_lshl_add_u32 v{40+e}, v{40+e}, 2, s27")
    for e in range(8):
        a(f"v_cmp_gt_u32 vcc, 128, v{30+e}")
        a(f"v_lshlrev_b32 v{30+e}, 2, v{30+e}")
        a(f"v_add_u32 v{30+e}, {KC_OFF}, v{30+e}")
        a(f"v_cndmask_b32 v{40+e}, v{40+e}, v{30+e}, vcc")
    a(f"""
    s_waitcnt lgkmcnt(0)
    s_lshr_b32 s24, s24, s23
    s_lshl_b32 s24, s24, 16
    s_lshr_b32 s25, s25, s23
    s_lshl_b32 s25, s25, 16
    v_mov_b32 v5, s24
    v_mul_f32 v6, 0x3fb8aa3b, v5
    s_mov_b32 s28, 0x3fb8aa3b
    v_fma_f32 v7, v5, s28, -v6
    v_fmac_f32 v7, 0x32a5705f, v5
    v_exp_f32 v6, v6
    v_mul_f32 v7, {fx(0.6931471805599453)}, v7
    v_fmac_f32 v6, v6, v7
    v_cvt_pk_bf16_f32 v6, v6, v6
    v_lshlrev_b32 v6, 16, v6                ; dt
    s_waitcnt vmcnt(4)
    v_lshlrev_b32 v10, 16, v10
    v_lshlrev_b32 v11, 16, v11
    v_mul_f32 v10, v6, v10
    v_mul_f32 v11, v6, v11
    v_mul_f32 v10, 0x3fb8aa3b, v10
    v_mul_f32 v11, {fx(0.15915494309189535)}, v11
    """)
    def direct(dst, l, t):
        a(f"""
        v_mul_f32 v{t}, {fx(float(l))}, v10
        v_mul_f32 v{t+1}, {fx(float(l))}, v11
        v_exp_f32 v{t}, v{t}
        v_fract_f32 v{t+1}, v{t+1}
        v_cos_f32 v{dst}, v{t+1}
        v_sin_f32 v{dst+1}, v{t+1}
        s_nop 0
        v_mul_f32 v{dst}, v{t}, v{dst}
        v_mul_f32 v{dst+1}, v{t}, v{dst+1}
        """)
    def wr(row, src, tmp, neg=False):
        a(f"v_cvt_pk_bf16_f32 v{tmp}, v{src}, {'-' if neg else ''}v{src+1}")
        a(f"ds_write_b32 v2, v{tmp} offset:{row*TROW}")
    a.stamp(0)
    a("s_cmp_ge_u32 s26, 2\ns_cbranch_scc1 kgen_setY")
    E8, E128, Q, R, T0, T1 = 20, 22, 24, 26, 28, 60
    direct(E8, 1, 28)
    direct(E128, 128, 28)
    cmul(a, R, E128, E128, T1)
    cmul(a, E8, E8, E8, T0)
    cmul(a, R, R, R, T1)
    cmul(a, E8, E8, E8, T0)
    cmul(a, R, R, R, T1)
    cmul(a, E8, E8, E8, T0)
    a("""
    s_waitcnt vmcnt(0)
    v_lshlrev_b32 v12, 16, v12
    v_lshlrev_b32 v13, 16, v13
    v_lshlrev_b32 v14, 16, v14
    v_lshlrev_b32 v15, 16, v15
    v_mul_f32 v12, v6, v12
    v_mul_f32 v13, v6, v13
    """)
    cmul(a, Q, 14, 12, T0)
    for i in range(16):
        if i < 9:
            wr(32 + i, R, 63)
            if i < 8: cmul(a, R, R, E128, T1)
        wr(QROW + i, Q, 62, neg=True)
        if i < 15: cmul(a, Q, Q, E8, T0)
    a("s_branch kgen_tables_done")
    a("kgen_setY:")
    E = [None, 20, 22, 24, 26, 16, 18, 64]
    E128, X, Y2, T0, T1 = 66, 68, 70, 28, 60
    direct(E[1], 1, 28)
    direct(E128, 128, 28)
    a("v_mov_b32 v62, 0x3f80")
    a(f"ds_write_b32 v2, v62 offset:0")
    cmul(a, E[2], E[1], E[1], T0); wr(1, E[1], 63)
    cmul(a, E[3], E[2], E[1], T1); wr(2, E[2], 62)
    cmul(a, E[4], E[2], E[2], T0); wr(3, E[3], 63)
    cmul(a, E[5], E[4], E[1], T1); wr(4, E[4], 62)
    cmul(a, E[6], E[3], E[3], T0); wr(5, E[5], 63)
    cmul(a, E[7], E[4], E[3], T1); wr(6, E[6], 62)
    cmul(a, X, E128, E128, T0);    wr(7, E[7], 63)
    wr(8, E128, 62)
    for r in range(1, 8):
        cmul(a, Y2, E128, E[r], T1 if r % 2 else T0)
        wr(8 + r, Y2, 62 + (r % 2))
    S = [72, 74, 76, 78]
    a(f"v_mov_b64 v[{S[0]}:{S[0]+1}], v[{X}:{X+1}]")
    cmul(a, S[1], X, E[2], T0)
    cmul(a, S[2], X, E[4], T1)
    cmul(a, S[3], X, E[6], T0)
    cmul(a, X, X, X, T1)
    for r in range(4):
        wr(16 + r, S[r], 62 + (r % 2))
        cmul(a, S[r], S[r], E128, T0 if r % 2 else T1)
    cmul(a, Y2, X, E[4], T0)
    for r in range(4): wr(20 + r, S[r], 62 + (r % 2))
    for p in range(4):
        wr(24 + 2 * p, X, 62)
        wr(25 + 2 * p, Y2, 63)
        if p < 3:
            cmul(a, X, X, E128, T0)
            cmul(a, Y2, Y2, E128, T1)
    a(f"""
    kgen_tables_done:
    v_and_b32 v4, 15, v0                     ; i / j / q
    v_bfe_u32 v5, v0, 4, 2                   ; g / G
    v_lshlrev_b32 v7, 4, v5
    v_mul_u32_u24 v8, {TROW}, v4
    v_add_u32 v8, v8, v7                     ; i*544 + g*16
    s_mul_i32 s27, s26, {16*TROW}
    v_add_u32 v9, s27, v8                    ; A address
    v_add_u32 v8, {QROW*TROW}, v8            ; B address
    v_mov_b32 v20, 0
    v_mov_b32 v21, 0
    v_mov_b32 v22, 0
    v_mov_b32 v23, 0
    v_mov_b32 v24, 0
    v_mov_b32 v25, 0
    v_mov_b32 v26, 0
    v_mov_b32 v27, 0
    s_waitcnt lgkmcnt(0)
    """)
    a.stamp(1)
    a("s_barrier")
    a.stamp(3)
    a("""
    s_cmp_ge_u32 s26, 3
    s_cbranch_scc1 kgen_mfma_done
    """)
    for s in range(8):
        a(f"ds_read_b128 v[{64+8*s}:{67+8*s}], v9 offset:{64*s}")
        a(f"ds_read_b128 v[{68+8*s}:{71+8*s}], v8 offset:{64*s}")
    a(f"""
    s_cmp_eq_u32 s26, 1
    s_cbranch_scc1 kgen_t1
    s_cmp_eq_u32 s26, 2
    s_cbranch_scc1 kgen_t2
    v_and_b32 v7, 1, v5
    v_lshlrev_b32 v7, 2, v7
    v_lshrrev_b32 v16, 1, v5
    v_lshl_add_u32 v7, v16, 7, v7
    v_lshl_add_u32 v7, v4, 3, v7
    v_lshlrev_b32 v7, 2, v7
    v_add_u32 v16, {KC_OFF}, v7
    v_add_u32 v17, 8, v16
    v_mov_b32 v18, 4
    s_branch kgen_addr_done
    kgen_t1:
    v_cmp_gt_u32 vcc, 2, v5
    v_lshlrev_b32 v7, 6, v5
    v_add_u32 v7, 256, v7
    v_lshlrev_b32 v16, 2, v4
    v_lshlrev_b32 v17, 1, v4
    v_cndmask_b32 v16, v17, v16, vcc
    v_add_u32 v7, v7, v16
    v_lshlrev_b32 v7, 2, v7
    v_add_u32 v16, {KC_OFF}, v7
    v_mov_b32 v17, 128
    v_cndmask_b32 v17, v17, 8, vcc
    v_add_u32 v17, v16, v17
    v_mov_b32 v18, 4
    s_branch kgen_addr_done
    kgen_t2:
    v_lshl_add_u32 v7, v5, 6, v4
    v_lshlrev_b32 v7, 2, v7
    v_add_u32 v16, {KC_OFF + 512*4}, v7
    v_add_u32 v17, 128, v16
    v_mov_b32 v18, 64
    kgen_addr_done:
    v_add_u32 v19, v17, v18
    v_add_u32 v18, v16, v18
    v_cmp_eq_u32 vcc, 0, v0
    v_mov_b32 v7, s25
    s_nop 0
    v_cndmask_b32 v7, 0, v7, vcc
    """)
    a.stamp(4)
    for s in range(8):
        a(f"s_waitcnt lgkmcnt({14-2*s})")
        acc = 20 + 4 * (s % 2)
        a(f"v_mfma_f32_16x16x32_bf16 v[{acc}:{acc+3}], v[{64+8*s}:{67+8*s}], v[{68+8*s}:{71+8*s}], v[{acc}:{acc+3}]")
    a.stamp(5)
    a(f"""
    s_nop 7
    v_add_f32 v20, v20, v24
    v_add_f32 v21, v21, v25
    v_add_f32 v22, v22, v26
    v_add_f32 v23, v23, v27
    v_add_f32 v20, v20, v7
    ds_write_b32 v16, v20
    ds_write_b32 v18, v21
    ds_write_b32 v17, v22
    ds_write_b32 v19, v23
    kgen_mfma_done:
    s_waitcnt lgkmcnt(0)
    s_barrier
    """)
    a.stamp(2)
    for e in range(8): a(f"ds_read_b32 v{30+e}, v{40+e}")
    a(f"""
    s_mul_i32 s27, s2, {KCH}
    s_add_u32 s27, s27, {WS_KE}
    v_lshlrev_b32 v4, 4, v0
    v_add_u32 v4, s27, v4
    """)
    for p in range(4):
        a(f"s_waitcnt lgkmcnt({6-2*p})")
        a(f"v_cvt_pk_bf16_f32 v{52+p}, v{30+2*p}, v{31+2*p}")
    a(f"""
    global_store_dwordx4 v4, v[52:55], s[20:21]{SC}
    v_cmp_eq_u32 vcc, 0, v0
    s_and_saveexec_b64 s[30:31], vcc
    s_cbranch_execz kgen_end
    v_mov_b32 v6, s27
    v_add_u32 v6, 4096, v6
    v_mov_b32 v60, 0
    v_mov_b32 v61, 0
    v_mov_b32 v62, 0
    v_mov_b32 v63, 0
    global_store_dwordx4 v6, v[60:63], s[20:21]{SC}
    kgen_end:
    s_endpgm
    """)

def gen_ln1(a):
    a(f"""
    ln1:
    s_load_dwordx2 s[4:5], s[0:1], 0
    s_load_dwordx2 s[20:21], s[0:1], 144
    s_sub_u32 s3, s2, {ID_LN}
    s_and_b32 s6, s3, 7
    s_lshl_b32 s6, s6, 3
    s_lshr_b32 s7, s3, 3
    s_add_u32 s6, s6, s7
    v_lshrrev_b32 v3, 6, v0                  ; wave
    v_and_b32 v1, 63, v0                     ; lane
    v_lshlrev_b32 v4, 13, v3
    v_lshl_add_u32 v4, v1, 4, v4
    s_lshl_b32 s7, s6, 15
    v_add_u32 v4, s7, v4
    v_readfirstlane_b32 s26, v3
    s_waitcnt lgkmcnt(0)
    """)
    for r in range(8):
        if r == 4: a("v_add_u32 v4, 4096, v4")
        a(f"global_load_dwordx4 v[{8+4*r}:{11+4*r}], v4, s[4:5] offset:{1024*(r%4)}")
    a(f"""
    v_mul_u32_u24 v5, {8*RS}, v3
    v_lshl_add_u32 v5, v1, 4, v5
    v_mov_b32 v6, 0x3f803f80
    v_and_b32 v7, 15, v1
    v_lshrrev_b32 v2, 2, v7                  ; r
    v_and_b32 v7, 3, v7                      ; c
    v_mul_u32_u24 v2, {RS}, v2
    v_lshl_add_u32 v2, v7, 3, v2
    v_lshrrev_b32 v7, 4, v1
    v_lshl_add_u32 v2, v7, 5, v2
    v_lshl_add_u32 v2, v3, 8, v2
    s_lshl_b32 s7, s6, 6
    s_add_u32 s7, s7, {WS_XT}
    """)
    for r in range(8):
        b = 8 + 4 * r
        a(f"s_waitcnt vmcnt({7-r})")
        a(f"ds_write_b128 v5, v[{b}:{b+3}] offset:{RS*r}")
        a(f"v_dot2_f32_bf16 v{40+2*r}, v{b}, v6, 0")
        a(f"v_dot2_f32_bf16 v{41+2*r}, v{b}, v{b}, 0")
        for k in range(1, 4):
            a(f"v_dot2_f32_bf16 v{40+2*r}, v{b+k}, v6, v{40+2*r}")
            a(f"v_dot2_f32_bf16 v{41+2*r}, v{b+k}, v{b+k}, v{41+2*r}")
    a("s_waitcnt lgkmcnt(0)\ns_barrier")
    for db in range(2):
        for lg in range(8):
            a(f"ds_read_b64_tr_b16 v[{64+16*db+2*lg}:{65+16*db+2*lg}], v2 offset:{128*db + 4*RS*lg}")
    for dpp in ["row_shr:1", "row_shr:2", "row_shr:4"]:
        for r in range(40, 56): a(f"v_add_f32_dpp v{r}, v{r}, v{r} {dpp} row_mask:0xf bank_mask:0xf")
    a(f"""
    v_bfe_u32 v8, v1, 1, 2                   ; (d>>1)&3
    v_lshlrev_b32 v9, 6, v1                  ; d*64
    v_lshl_add_u32 v9, v3, 13, v9
    v_lshrrev_b32 v10, 2, v1
    v_and_b32 v11, 3, v1                     ; c
    v_bfe_u32 v12, v1, 3, 2                  ; (d>>1)&3
    v_xor_b32 v12, v12, v11
    v_lshlrev_b32 v12, 4, v12
    v_lshl_add_u32 v12, v10, 6, v12
    v_lshl_add_u32 v12, v3, 13, v12
    v_lshl_add_u32 v7, v3, 7, v10
    v_lshlrev_b32 v7, 12, v7
    v_lshl_add_u32 v7, v11, 4, v7
    v_add_u32 v7, s7, v7
    s_waitcnt lgkmcnt(0)
    s_barrier
    """)
    for c in range(4):
        a(f"v_xor_b32 v13, {c}, v8")
        a(f"v_lshl_add_u32 v13, v13, 4, v9")
        a(f"ds_write_b128 v13, v[{64+4*c}:{67+4*c}]")
        a(f"ds_write_b128 v13, v[{80+4*c}:{83+4*c}] offset:4096")
    for dpp in ["row_shr:8", "row_bcast:15 row_mask:0xa", "row_bcast:31 row_mask:0xc"]:
        m = "" if "row_mask" in dpp else " row_mask:0xf"
        for r in range(40, 56): a(f"v_add_f32_dpp v{r}, v{r}, v{r} {dpp}{m} bank_mask:0xf")
    a("s_waitcnt lgkmcnt(0)")
    for m_ in range(8):
        a(f"ds_read_b128 v[{64+4*m_}:{67+4*m_}], v12 offset:{1024*m_}")
    for m_ in range(8):
        a(f"s_waitcnt lgkmcnt({7-m_})")
        a(f"global_store_dwordx4 v7, v[{64+4*m_}:{67+4*m_}], s[20:21]{SC}")
        if m_ < 7: a(f"v_add_u32 v7, {16*4096}, v7")
    for r in range(8):
        a(f"v_readlane_b32 s{32+2*r}, v{40+2*r}, 63")
        a(f"v_readlane_b32 s{33+2*r}, v{41+2*r}, 63")
    a("s_nop 1")
    for r in range(8):
        a(f"v_writelane_b32 v56, s{32+2*r}, {r}")
        a(f"v_writelane_b32 v57, s{33+2*r}, {r}")
    a(f"""
    s_nop 1
    v_mul_f32 v56, {fx(1.0/512)}, v56        ; mean
    v_mul_f32 v57, {fx(1.0/512)}, v57
    v_fma_f32 v57, -v56, v56, v57
    v_max_f32 v57, 0, v57
    v_add_f32 v57, {fx(1e-5)}, v57
    v_rsq_f32 v57, v57
    s_nop 0
    v_mul_f32 v56, -v56, v57
    v_cvt_pk_bf16_f32 v56, v57, v56          ; (r, -mean*r)
    s_lshl_b32 s7, s6, 7
    s_lshl_b32 s8, s26, 5
    s_add_u32 s7, s7, s8
    s_add_u32 s7, s7, {WS_ST1}
    v_lshlrev_b32 v58, 2, v1
    v_add_u32 v58, s7, v58
    v_cmp_gt_u32 vcc, 8, v1
    s_and_saveexec_b64 s[30:31], vcc
    s_cbranch_execz ln1_end
    global_store_dword v58, v56, s[20:21]{SC}
    ln1_end:
    s_endpgm
    """)

def gen_mod16(a, tag):
    a(f"""
    v_lshrrev_b32 v3, 1, v0                  ; rg
    v_and_b32 v4, 1, v0                      ; cc
    v_mul_u32_u24 v5, {4*6144}, v3
    v_lshl_add_u32 v5, v4, 4, v5
    s_lshl_b32 s9, s8, 5
    v_add_u32 v5, s9, v5
    v_lshlrev_b32 v6, 3, v3
    s_waitcnt lgkmcnt(0)
    global_load_dwordx2 v[8:9], v6, s[4:5]
    """)
    for i in range(4):
        if i: a("v_add_u32 v5, 6144, v5")
        a(f"global_load_dwordx4 v[{16+4*i}:{19+4*i}], v5, s[6:7]")

def gen_mod16_compute(a, nlater):
    a(f"s_waitcnt vmcnt({4+nlater})")
    for i in range(4):
        src = 8 + i // 2
        a(f"v_lshlrev_b32 v{10+i}, 16, v{src}" if i % 2 == 0 else f"v_and_b32 v{10+i}, 0xffff0000, v{src}")
    for i in range(4): a(f"v_mul_f32 v{32+i}, {fx(-1.4426950408889634)}, v{10+i}")
    for i in range(4): a(f"v_exp_f32 v{32+i}, v{32+i}")
    for i in range(4): a(f"v_add_f32 v{32+i}, 1.0, v{32+i}")
    for i in range(4): a(f"v_rcp_f32 v{32+i}, v{32+i}")
    a("s_nop 0")
    for i in range(4): a(f"v_mul_f32 v{10+i}, v{10+i}, v{32+i}")
    for i in range(4):
        a(f"v_cvt_pk_bf16_f32 v{32+i}, v{10+i}, 0")
        a(f"v_cvt_pk_bf16_f32 v{36+i}, 0, v{10+i}")
    for i in range(4):
        a(f"s_waitcnt vmcnt({3-i+nlater})")
        for m in range(4):
            c0 = "0" if i == 0 else f"v{40+2*m}"; c1 = "0" if i == 0 else f"v{41+2*m}"
            a(f"v_dot2_f32_bf16 v{40+2*m}, v{16+4*i+m}, v{32+i}, {c0}")
            a(f"v_dot2_f32_bf16 v{41+2*m}, v{16+4*i+m}, v{36+i}, {c1}")
    a("s_nop 2")
    for dpp in ["row_shr:2", "row_shr:4", "row_shr:8"]:
        for r in range(40, 48): a(f"v_add_f32_dpp v{r}, v{r}, v{r} {dpp} row_mask:0xf bank_mask:0xf")
    a(f"""
    v_lshrrev_b32 v5, 4, v0
    v_mul_u32_u24 v5, 80, v5
    v_lshl_add_u32 v5, v4, 5, v5
    v_and_b32 v6, 15, v0
    v_cmp_lt_u32 vcc, 13, v6
    s_and_saveexec_b64 s[30:31], vcc
    ds_write_b128 v5, v[40:43]
    ds_write_b128 v5, v[44:47] offset:16
    s_mov_b64 exec, s[30:31]
    v_lshlrev_b32 v5, 2, v6
    s_waitcnt lgkmcnt(0)
    s_barrier
    """)
    for i in range(16): a(f"ds_read_b32 v{16+i}, v5 offset:{80*i}")
    a("s_waitcnt lgkmcnt(0)")
    for st in (1, 2, 4, 8):
        for i in range(0, 16, 2 * st): a(f"v_add_f32 v{16+i}, v{16+i}, v{16+i+st}")
    a("v_cvt_pk_bf16_f32 v16, v16, v16\nv_lshlrev_b32 v16, 16, v16")

def gen_mod(a):
    a(f"""
    modr:
    s_load_dwordx4 s[4:7], s[0:1], 112       ; c, w_mod
    s_load_dwordx2 s[20:21], s[0:1], 144
    s_sub_u32 s3, s2, {ID_MOD}
    s_and_b32 s8, s3, 7
    s_mul_i32 s8, s8, 24
    s_lshr_b32 s9, s3, 3
    s_add_u32 s8, s8, s9
    """)
    gen_mod16(a, "m"); gen_mod16_compute(a, 0)
    a(f"""
    s_lshl_b32 s9, s8, 6
    s_add_u32 s9, s9, {WS_MOD}
    v_lshlrev_b32 v5, 2, v0
    v_add_u32 v5, s9, v5
    v_cmp_gt_u32 vcc, 16, v0
    s_and_saveexec_b64 s[30:31], vcc
    s_cbranch_execz mod_end
    global_store_dword v5, v16, s[20:21]{SC}
    mod_end:
    s_endpgm
    """)

def gen_A(a):
    a(f"""
    s_cmp_ge_u32 s2, {ID_MOD}
    s_cbranch_scc1 a_other
    """)
    roles = os.environ.get("ROLES", "mlk")
    if "k" in roles: gen_kgen(a)
    else: a("kgen:\ns_endpgm")
    a(f"""
    a_other:
    s_cmp_lt_u32 s2, {ID_LN}
    s_cbranch_scc1 modr
    s_cmp_lt_u32 s2, {A_GRID}
    s_cbranch_scc1 ln1
    s_endpgm
    """)
    for ch, lab, fn in (("m", "modr", gen_mod), ("l", "ln1", gen_ln1)):
        if ch in roles: fn(a)
        else: a(f"{lab}:\ns_endpgm")

PF = os.environ.get("PF", "1") == "1"
def kernel(name, body, vgpr, kidx, sgpr=96, pf=None):
    a = Asm()
    if os.environ.get("TT") and kidx == 0:
        tlb_touch(a, int(os.environ["TT"]))
    if PF and pf:
        prefetch_code(a, pf[0], pf[1], kidx, {"prep_kernel": 126, "conv_kernel": 120, "convab_kernel": 126, "gemm1_kernel": 60, "gemm2_kernel": 62, "mlp_kernel": 60}.get(name, 126))
    if TS:
        a("""
        s_memrealtime s[90:91]
        s_memtime s[84:85]
        s_mov_b32 s89, s2
        s_mov_b32 s86, s0
        s_mov_b32 s87, s1
        v_lshrrev_b32 v1, 6, v0
        s_nop 0
        v_readfirstlane_b32 s88, v1
        """)
    if os.environ.get("DBG"):
        a(f"""
        s_cmp_eq_u32 s2, 0
        s_cbranch_scc0 dbg_skip_{kidx}
        s_memrealtime s[90:91]
        s_load_dwordx2 s[94:95], s[0:1], 144
        s_load_dwordx2 s[92:93], s[0:1], 136
        s_waitcnt lgkmcnt(0)
        v_mov_b32 v4, s90
        v_mov_b32 v6, {WS_TS + 4*kidx}
        global_store_dword v6, v4, s[94:95]
        s_waitcnt vmcnt(0)
        """)
        if kidx == 3:
            a(f"""
            v_mov_b32 v6, {WS_TS}
            global_load_dwordx4 v[8:11], v6, s[94:95] sc0 sc1
            s_waitcnt vmcnt(0)
            v_sub_u32 v9, v9, v8
            v_sub_u32 v10, v10, v8
            v_sub_u32 v11, v11, v8
            v_mov_b32 v6, 0
            global_store_dwordx4 v6, v[8:11], s[92:93]
            s_waitcnt vmcnt(0)
            """)
        a(f"dbg_skip_{kidx}:")
    body(a)
    if TS:
        a.l = [("    s_branch ts_end_%d" % kidx) if l.strip() == "s_endpgm" else l for l in a.l]
        a(f"""
        ts_end_{kidx}:
        s_waitcnt vmcnt(0) lgkmcnt(0)
        {"s_getreg_b32 s80, hwreg(HW_REG_HW_ID)" if os.environ.get("HWID") else ""}
        {"s_getreg_b32 s78, hwreg(HW_REG_XCC_ID)" if os.environ.get("HWID") else ""}
        s_memrealtime s[92:93]
        s_memtime s[82:83]
        s_load_dwordx2 s[94:95], s[86:87], 144
        s_mov_b64 exec, 1
        s_lshl_b32 s89, s89, 3
        s_add_u32 s89, s89, s88
        s_lshl_b32 s89, s89, 6
        s_add_u32 s89, s89, {WS_TS + kidx * 0x80000}
        v_mov_b32 v4, s89
        s_waitcnt lgkmcnt(0)
        v_mov_b32 v0, s90
        v_mov_b32 v1, s91
        v_mov_b32 v2, s92
        v_mov_b32 v3, s93
        global_store_dwordx4 v4, v[0:3], s[94:95]
        v_mov_b32 v8, s84
        v_mov_b32 v9, s82
        v_mov_b32 v10, s70
        v_mov_b32 v11, s72
        global_store_dwordx4 v4, v[8:11], s[94:95] offset:16
        v_mov_b32 v12, s74
        v_mov_b32 v13, s76
        v_mov_b32 v14, s78
        v_mov_b32 v15, s80
        global_store_dwordx4 v4, v[12:15], s[94:95] offset:32
        s_endpgm
        """)
    code = f".globl {name}\n.p2align 8\n.type {name},@function\n{name}:\n{a.text()}"
    desc = f""".amdhsa_kernel {name}
  .amdhsa_next_free_vgpr {vgpr}
  .amdhsa_next_free_sgpr {sgpr}
  .amdhsa_accum_offset {((vgpr + 3) // 4) * 4}
  .amdhsa_group_segment_fixed_size 0
  .amdhsa_kernarg_size 152
  .amdhsa_user_sgpr_count 2
  .amdhsa_user_sgpr_kernarg_segment_ptr 1
  .amdhsa_system_sgpr_workgroup_id_x 1
  .amdhsa_float_denorm_mode_32 3
.end_amdhsa_kernel
"""
    return code, desc

def build(kernels):
    hdr = "; adaLN + S4 long convolution + squared-ReLU MLP, gfx950.  Generated by a hand-written generator (dev/g3.py).\n"
    for (name, body, vgpr, grid, block, lds) in kernels:
        hdr += f"; @launch kernel={name} grid=({grid},1,1) block=({block},1,1) lds={lds}\n"
    out = hdr + '.amdgcn_target "amdgcn-amd-amdhsa--gfx950"\n.text\n'
    descs = ""
    names = [k[0] for k in kernels] + ["text_end"]
    for i, (name, body, vgpr, grid, block, lds) in enumerate(kernels):
        lo = "pf_here_0" if i == 0 else names[min(i + 1, len(kernels))]
        hi = names[min(i + 2, len(kernels))]
        pf = (lo, hi) if lo != hi else None
        if len(kernels) == 1: pf = ("pf_here_0", "text_end")
        c, d = kernel(name, body, vgpr, i, pf=pf)
        out += c
        descs += ".p2align 6\n" + d
    out += ".p2align 8\ntext_end:\n    s_endpgm\n"
    return out + '.section .rodata,"a"\n' + descs

if __name__ == "__main__":
    import g3b
    ks = [("prep_kernel", gen_A, 128, A_GRID, 256, A_LDS)] + g3b.kernels()
    s = build(ks)
    path = sys.argv[1] if len(sys.argv) > 1 else "out.s"
    open(path, "w").write(s)
    print("wrote", path, len(s))
```

```python
from g3 import *
import g3

HIDSC = os.environ.get("HIDSC", "")
OUTSC = os.environ.get("OUTSC", "")
NCONV, NW1 = 256, 43
B_GRID = NCONV + NW1
KCP = 4160
KCHL = 4 * KCP
H_OFF = 2 * KCHL
HCH = 4608
RED_OFF = H_OFF + 2 * HCH
B_LDS = RED_OFF + 16384

def gen_conv(a):
    VA, VB, VY = 64, 96, 128
    a(f"""
    conv:
    s_load_dwordx2 s[20:21], s[0:1], 144
    s_load_dwordx2 s[48:49], s[0:1], 96
    v_lshrrev_b32 v3, 6, v0
    v_and_b32 v1, 63, v0
    v_lshlrev_b32 v5, 4, v0                  ; tid*16
    v_readfirstlane_b32 s26, v3              ; wave
    s_lshl_b32 s29, s2, 1                    ; d0
    s_mul_i32 s32, s29, {KCH}
    s_add_u32 s32, s32, {WS_KE}
    s_add_u32 s33, s32, {KCH}
    s_lshl_b32 s36, s29, 12
    s_add_u32 s36, s36, {WS_XT}
    s_add_u32 s37, s36, 4096
    v_lshlrev_b32 v6, 5, v0
    s_mov_b32 s38, {WS_ST1}
    s_lshr_b32 s27, s26, 1                   ; ch
    s_and_b32 s28, s26, 1                    ; hf
    s_add_u32 s30, s29, s27                  ; d
    s_waitcnt lgkmcnt(0)
    """)
    srd(a, 8, 20, WS_SIZE)
    a.stamp(0)
    a(f"""
    buffer_load_dwordx4 v[8:11], v5, s[8:11], s36 offen          ; x ch0
    buffer_load_dwordx4 v[12:15], v5, s[8:11], s37 offen         ; x ch1
    buffer_load_dwordx4 v[16:19], v6, s[8:11], s38 offen         ; stats
    buffer_load_dwordx4 v[20:23], v6, s[8:11], s38 offen offset:16
    buffer_load_dwordx4 v[24:27], v5, s[8:11], s32 offen         ; K ch0
    buffer_load_dwordx2 v[28:29], v5, s[8:11], s32 offen offset:16
    buffer_load_dwordx4 v[32:35], v5, s[8:11], s33 offen         ; K ch1
    buffer_load_dwordx2 v[36:37], v5, s[8:11], s33 offen offset:16
    s_lshl_b32 s31, s29, 2
    s_add_u32 s4, s20, s31
    s_addc_u32 s5, s21, 0
    s_load_dwordx2 s[12:13], s[4:5], {WS_MOD}            ; sa
    s_load_dwordx2 s[14:15], s[4:5], {WS_MOD + 2048}     ; ca
    s_load_dwordx2 s[16:17], s[4:5], {WS_MOD + 4096}     ; ga
    """)
    a.stamp(1)
    a(f"""
    v_and_b32 v7, 15, v1                     ; j / i
    v_lshrrev_b32 v2, 4, v1                  ; G / g
    v_lshlrev_b32 v4, 5, v7
    v_lshl_add_u32 v4, v2, 3, v4
    s_lshl_b32 s39, s30, 12
    s_lshl_b32 s40, s28, 11
    s_add_u32 s39, s39, s40
    s_add_u32 s41, s39, {WS_XT}
    s_add_u32 s42, s39, {WS_X2T}
    v_mov_b32 v56, 0
    v_mov_b32 v57, 0
    v_mov_b32 v58, 0
    v_mov_b32 v59, 0
    v_lshrrev_b32 v60, 1, v0
    v_mul_u32_u24 v60, {KCP}, v60
    v_and_b32 v61, 1, v0
    v_lshl_add_u32 v60, v61, 4, v60
    v_add_u32 v60, 4096, v60
    v_bfe_u32 v61, v0, 5, 1
    v_mul_u32_u24 v61, {HCH}, v61
    v_and_b32 v62, 31, v0
    v_lshl_add_u32 v61, v62, 4, v61
    v_add_u32 v61, {H_OFF}, v61
    v_cmp_gt_u32 vcc, 16, v0
    s_cmp_eq_u32 s26, 1
    s_cbranch_scc1 conv_padh
    s_cmp_eq_u32 s26, 0
    s_cbranch_scc0 conv_pad_done
    s_and_saveexec_b64 s[44:45], vcc
    ds_write_b128 v60, v[56:59]
    s_mov_b64 exec, s[44:45]
    s_branch conv_pad_done
    conv_padh:
    ds_write_b128 v61, v[56:59]
    conv_pad_done:
    v_sub_u32 v60, 3, v7
    v_and_b32 v60, 3, v60                    ; c
    v_mul_u32_u24 v61, {KCP - 2}, v60
    v_lshlrev_b32 v62, 1, v7
    v_sub_u32 v61, v61, v62
    v_lshl_add_u32 v61, v2, 4, v61
    s_mul_i32 s43, s27, {KCHL}
    s_lshl_b32 s44, s28, 8
    s_sub_u32 s43, s43, s44
    s_add_u32 s43, s43, {2*(2031 - 32*59)}
    v_add_u32 v40, s43, v61                  ; v40 = A base
    v_lshlrev_b32 v41, 5, v7
    v_lshl_add_u32 v41, v2, 4, v41
    s_mul_i32 s43, s27, {HCH}
    s_sub_u32 s43, s43, s44
    s_add_u32 s43, s43, {H_OFF + 2*(240 - 96)}
    v_add_u32 v41, s43, v41                  ; v41 = B base
    v_add_u32 v42, {H_OFF + 512}, v5
    """)
    for t in range(8):
        for r in range(4): a(f"v_mov_b32 v{VY+4*t+r}, 0")
    a(f"""
    s_waitcnt lgkmcnt(0)
    v_add_f32 v44, 1.0, s14
    v_add_f32 v45, 1.0, s15
    v_cvt_pk_bf16_f32 v44, v44, v45
    v_mov_b32 v46, s12
    v_mov_b32 v47, s13
    v_and_b32 v45, 0xffff0000, v44
    v_lshlrev_b32 v44, 16, v44
    s_cmp_eq_u32 s27, 0
    s_cselect_b32 s46, s16, s17
    s_waitcnt vmcnt(4)
    """)
    a.stamp(2)
    for e in range(8):
        a(f"v_lshlrev_b32 v{64+e}, 16, v{16+e}")
        a(f"v_and_b32 v{72+e}, 0xffff0000, v{16+e}")
    for ch in range(2):
        src = 8 + 4 * ch; gam = 44 + ch; sa = 46 + ch
        for e in range(8):
            a(f"v_lshlrev_b32 v{80+e}, 16, v{src + e//2}" if e % 2 == 0 else f"v_and_b32 v{80+e}, 0xffff0000, v{src + e//2}")
        for e in range(8): a(f"v_fma_f32 v{80+e}, v{80+e}, v{64+e}, v{72+e}")
        for e in range(8): a(f"v_fma_f32 v{80+e}, v{80+e}, v{gam}, v{sa}")
        for p in range(4): a(f"v_cvt_pk_bf16_f32 v{src+p}, v{80+2*p}, v{81+2*p}")
        a(f"ds_write_b128 v42, v[{src}:{src+3}] offset:{ch*HCH}")
    for ch in range(2):
        D = 24 + 8 * ch
        a(f"s_waitcnt vmcnt({2 - 2*ch})")
        base = ch * KCHL
        a(f"ds_write_b128 v5, v[{D}:{D+3}] offset:{base}")
        for k in range(4): a(f"v_alignbit_b32 v{88+k}, v{D+k+1}, v{D+k}, 16")
        a(f"ds_write_b128 v5, v[88:91] offset:{base + KCP}")
        a(f"v_mov_b64 v[92:93], v[{D+2}:{D+3}]" if False else f"v_mov_b32 v92, v{D+1}")
        a(f"v_mov_b32 v93, v{D+2}")
        a(f"v_mov_b32 v94, v{D+3}")
        a(f"v_mov_b32 v95, v{D+4}")
        a(f"ds_write_b128 v5, v[92:95] offset:{base + 2*KCP}")
        a(f"v_mov_b32 v48, v89")
        a(f"v_mov_b32 v49, v90")
        a(f"v_mov_b32 v50, v91")
        a(f"v_alignbit_b32 v51, v{D+5}, v{D+4}, 16")
        a(f"ds_write_b128 v5, v[48:51] offset:{base + 3*KCP}")
    a("s_waitcnt lgkmcnt(0)")
    a.stamp(3)
    a("s_barrier")
    a.stamp(4)
    T = LdsTracker(a)
    def ldA(p, r):
        off = 512 * (7 - p) + 64 * (3 - r)
        T.issue(f"ds_read_b64 v[{VA+4*p}:{VA+4*p+1}], v40 offset:{off}", [f"A{p}"])
        T.issue(f"ds_read_b64 v[{VA+4*p+2}:{VA+4*p+3}], v40 offset:{off+8}", [f"A{p}"])
    def ldB(k, r):
        off = 512 * k + 64 * (3 - r)
        T.issue(f"ds_read_b128 v[{VB+4*k}:{VB+4*k+3}], v41 offset:{off}", [f"B{k}"])
    for p in range(8):
        ldB(7 - p, 0); ldA(p, 0)
    for i in range(4):
        a(f"buffer_load_dwordx2 v[{48+2*i}:{49+2*i}], v4, s[8:11], s41 offen offset:{512*i}")
    a(f"""
    s_lshr_b32 s47, s2, 3
    s_mul_i32 s47, s47, 44032
    v_lshlrev_b32 v8, 6, v0                  ; tid*64
    v_add_u32 v8, s47, v8
    global_load_dword v9, v8, s[48:49]
    v_add_u32 v8, 16384, v8
    global_load_dword v10, v8, s[48:49]
    s_add_u32 s47, s47, {32768 + 175*64}
    v_add_u32 v8, 16384, v8
    v_min_u32 v8, s47, v8
    global_load_dword v11, v8, s[48:49]
    """)
    for r in range(4):
        for p in range(8):
            for t in range(7, p - 1, -1):
                k = t - p
                T.need([f"A{p}", f"B{k}"])
                a(f"v_mfma_f32_16x16x32_bf16 v[{VY+4*t}:{VY+4*t+3}], v[{VA+4*p}:{VA+4*p+3}], v[{VB+4*k}:{VB+4*k+3}], v[{VY+4*t}:{VY+4*t+3}]")
                if t == 7 and r < 3: ldB(7 - p, r + 1)
            if r < 3: ldA(p, r + 1)
    a.stamp(5)
    a(f"""
    s_lshl_b32 s43, s26, 12
    s_add_u32 s43, s43, {RED_OFF}
    v_lshlrev_b32 v33, 4, v1
    v_add_u32 v34, s43, v33
    s_xor_b32 s43, s26, 1
    s_lshl_b32 s43, s43, 12
    s_add_u32 s43, s43, {RED_OFF}
    v_add_u32 v35, s43, v33
    s_cmp_eq_u32 s28, 1
    s_cbranch_scc1 conv_hf1
    """)
    def tail(hf):
        keep, send = 4 * hf, 4 * (1 - hf)
        a("s_nop 1")
        for i in range(4):
            t = send + i
            a(f"ds_write_b128 v34, v[{VY+4*t}:{VY+4*t+3}] offset:{1024*i}")
        a("s_waitcnt vmcnt(3)")
        for i in range(4):
            x0, x1 = 48 + 2 * i, 49 + 2 * i
            a(f"v_lshlrev_b32 v{80+4*i}, 16, v{x0}")
            a(f"v_and_b32 v{81+4*i}, 0xffff0000, v{x0}")
            a(f"v_lshlrev_b32 v{82+4*i}, 16, v{x1}")
            a(f"v_and_b32 v{83+4*i}, 0xffff0000, v{x1}")
        for i in range(4):
            for r in range(4): a(f"v_fma_f32 v{80+4*i+r}, s46, v{VY+4*(keep+i)+r}, v{80+4*i+r}")
        a("s_waitcnt lgkmcnt(0)")
        a("s_barrier")
        for i in range(4): a(f"ds_read_b128 v[{64+4*i}:{67+4*i}], v35 offset:{1024*i}")
        for i in range(4):
            a(f"s_waitcnt lgkmcnt({3-i})")
            for r in range(4): a(f"v_fma_f32 v{80+4*i+r}, s46, v{64+4*i+r}, v{80+4*i+r}")
            a(f"v_cvt_pk_bf16_f32 v{12+2*i}, v{80+4*i}, v{81+4*i}")
            a(f"v_cvt_pk_bf16_f32 v{13+2*i}, v{82+4*i}, v{83+4*i}")
            a(f"buffer_store_dwordx2 v[{12+2*i}:{13+2*i}], v4, s[8:11], s42 offen offset:{512*i}{SC}")
        a("s_endpgm")
    tail(0)
    a("conv_hf1:")
    tail(1)

def gen_w1p(a):
    FR = 0; RED1 = 32768; RED2 = RED1 + 9216; RED3 = RED2 + 9216
    a(f"""
    w1p:
    s_load_dwordx4 s[4:7], s[0:1], 80        ; w1, b1
    s_load_dwordx2 s[20:21], s[0:1], 144
    s_sub_u32 s3, s2, {NCONV}                ; fblk
    v_lshrrev_b32 v3, 2, v0                  ; rg
    v_and_b32 v4, 3, v0                      ; cc
    v_mul_u32_u24 v5, {8*2752}, v3
    v_lshl_add_u32 v5, v4, 4, v5
    s_lshl_b32 s9, s3, 6
    v_add_u32 v5, s9, v5
    v_lshlrev_b32 v6, 5, v3
    s_waitcnt lgkmcnt(0)
    s_add_u32 s12, s20, {WS_MOD + 3*2048}
    s_addc_u32 s13, s21, 0
    global_load_dwordx4 v[8:11], v6, s[12:13]              ; sb
    global_load_dwordx4 v[12:15], v6, s[12:13] offset:16
    global_load_dwordx4 v[16:19], v6, s[12:13] offset:2048 ; cb
    global_load_dwordx4 v[20:23], v6, s[12:13] offset:2064
    """)
    for i in range(8):
        if i: a("v_add_u32 v5, 2752, v5")
        a(f"global_load_dwordx4 v[{24+4*i}:{27+4*i}], v5, s[4:5]")
    a(f"""
    v_and_b32 v7, 31, v0
    v_lshlrev_b32 v7, 1, v7
    s_lshl_b32 s9, s3, 6
    v_add_u32 v7, s9, v7
    global_load_ushort v56, v7, s[6:7]
    v_mov_b32 v57, 0x3f803f80
    s_waitcnt vmcnt(9)
    """)
    for i in range(8): a(f"v_add_f32 v{16+i}, 1.0, v{16+i}")
    for i in range(4): a(f"v_cvt_pk_bf16_f32 v{58+i}, v{16+2*i}, v{17+2*i}")
    for i in range(8):
        if i % 2 == 0: a(f"v_lshlrev_b32 v{16+i}, 16, v{58+i//2}")
        else: a(f"v_and_b32 v{16+i}, 0xffff0000, v{58+i//2}")
    for e in range(16): a(f"v_mov_b32 v{96+e}, 0")
    for u in range(4):
        a(f"s_waitcnt vmcnt({1 + 6 - 2*u})")
        for h in range(2):
            i = 2 * u + h
            for e in range(8):
                src = 24 + 4 * i + e // 2
                if e % 2 == 0: a(f"v_lshlrev_b32 v{112+8*h+e}, 16, v{src}")
                else: a(f"v_and_b32 v{112+8*h+e}, 0xffff0000, v{src}")
            for e in range(8): a(f"v_fmac_f32 v{104+e}, v{8+i}, v{112+8*h+e}")
            for e in range(8): a(f"v_mul_f32 v{112+8*h+e}, v{16+i}, v{112+8*h+e}")
        for e in range(8): a(f"v_cvt_pk_bf16_f32 v{64+4*e+u}, v{112+e}, v{120+e}")
        for e in range(8): a(f"v_dot2_f32_bf16 v{96+e}, v{64+4*e+u}, v57, v{96+e}")
    a(f"""
    s_waitcnt vmcnt(0)
    s_waitcnt vmcnt(0)
    v_lshrrev_b32 v5, 1, v3
    v_lshlrev_b32 v5, 10, v5
    v_and_b32 v6, 1, v3
    v_lshl_add_u32 v5, v6, 9, v5
    v_lshl_add_u32 v5, v4, 7, v5
    v_lshl_add_u32 v6, v6, 2, v4
    """)
    for e in range(8):
        a(f"v_xor_b32 v7, {e}, v6")
        a(f"v_lshl_add_u32 v7, v7, 4, v5")
        a(f"ds_write_b128 v7, v[{64+4*e}:{67+4*e}] offset:{FR}")
    a(f"""
    v_mul_u32_u24 v5, 144, v3
    v_lshl_add_u32 v5, v4, 5, v5
    ds_write_b128 v5, v[96:99] offset:{RED1}
    ds_write_b128 v5, v[100:103] offset:{RED1+16}
    ds_write_b128 v5, v[104:107] offset:{RED2}
    ds_write_b128 v5, v[108:111] offset:{RED2+16}
    v_and_b32 v1, 63, v0
    v_lshrrev_b32 v2, 6, v0                  ; wave
    v_lshrrev_b32 v6, 5, v1                  ; g
    v_bfe_u32 v7, v1, 3, 2                   ; cc
    v_and_b32 v8, 7, v1                      ; e
    v_lshl_add_u32 v9, v6, 2, v7             ; 4g+cc
    v_xor_b32 v8, v8, v9
    v_lshl_add_u32 v8, v7, 3, v8             ; slot
    v_lshlrev_b32 v8, 4, v8
    v_lshl_add_u32 v8, v6, 9, v8
    v_lshl_add_u32 v8, v2, 13, v8
    v_lshlrev_b32 v9, 4, v1
    v_lshl_add_u32 v9, v2, 13, v9
    s_lshl_b32 s9, s3, 15
    s_add_u32 s9, s9, {WS_W1F}
    v_add_u32 v9, s9, v9
    v_and_b32 v6, 31, v0
    v_lshrrev_b32 v7, 5, v0
    v_mul_u32_u24 v7, {8*144}, v7
    v_lshl_add_u32 v7, v6, 2, v7
    s_waitcnt lgkmcnt(0)
    s_barrier
    """)
    for s in range(8): a(f"ds_read_b128 v[{64+4*s}:{67+4*s}], v8 offset:{FR + 1024*s}")
    for i in range(8): a(f"ds_read_b32 v{16+i}, v7 offset:{RED1 + 144*i}")
    for s in range(8):
        a(f"s_waitcnt lgkmcnt({15-s})")
        a(f"global_store_dwordx4 v9, v[{64+4*s}:{67+4*s}], s[20:21] offset:{1024*(s%4)}{SC}")
        if s == 3: a("v_add_u32 v9, 4096, v9")
    for i in range(8): a(f"ds_read_b32 v{24+i}, v7 offset:{RED2 + 144*i}")
    a("s_waitcnt lgkmcnt(0)")
    for b in (16, 24):
        a(f"""
        v_add_f32 v{b}, v{b}, v{b+1}
        v_add_f32 v{b+2}, v{b+2}, v{b+3}
        v_add_f32 v{b+4}, v{b+4}, v{b+5}
        v_add_f32 v{b+6}, v{b+6}, v{b+7}
        v_add_f32 v{b}, v{b}, v{b+2}
        v_add_f32 v{b+4}, v{b+4}, v{b+6}
        v_add_f32 v{b}, v{b}, v{b+4}
        """)
    a(f"""
    v_lshlrev_b32 v5, 2, v0
    ds_write_b32 v5, v16 offset:{RED3}
    ds_write_b32 v5, v24 offset:{RED3+1024}
    s_waitcnt lgkmcnt(0)
    s_barrier
    v_cmp_gt_u32 vcc, 32, v0
    s_and_saveexec_b64 s[30:31], vcc
    s_cbranch_execz w1p_end
    """)
    for i in range(8): a(f"ds_read_b32 v{16+i}, v5 offset:{RED3 + 128*i}")
    for i in range(8): a(f"ds_read_b32 v{24+i}, v5 offset:{RED3 + 1024 + 128*i}")
    a("s_waitcnt lgkmcnt(0)")
    for b in (16, 24):
        a(f"""
        v_add_f32 v{b}, v{b}, v{b+1}
        v_add_f32 v{b+2}, v{b+2}, v{b+3}
        v_add_f32 v{b+4}, v{b+4}, v{b+5}
        v_add_f32 v{b+6}, v{b+6}, v{b+7}
        v_add_f32 v{b}, v{b}, v{b+2}
        v_add_f32 v{b+4}, v{b+4}, v{b+6}
        v_add_f32 v{b}, v{b}, v{b+4}
        """)
    a(f"""
    v_lshlrev_b32 v56, 16, v56
    v_add_f32 v24, v24, v56
    s_lshl_b32 s9, s3, 7
    s_add_u32 s10, s9, {WS_CS}
    v_add_u32 v6, s10, v5
    s_add_u32 s10, s9, {WS_B1P}
    v_add_u32 v7, s10, v5
    global_store_dword v6, v16, s[20:21]
    global_store_dword v7, v24, s[20:21]
    w1p_end:
    s_endpgm
    """)

def gen_B(a):
    a(f"""
    s_cmp_lt_u32 s2, {NCONV}
    s_cbranch_scc1 conv
    s_cmp_lt_u32 s2, {B_GRID}
    s_cbranch_scc1 w1p
    s_endpgm
    """)
    gen_conv(a); gen_w1p(a)

C_GRID = 256
C_SLOT = 28672
C_NS = 4
C_TAB = C_NS * C_SLOT
C_LDS = C_TAB + 768

def gen_C(a):
    ACC, AQ, AS, FB = 64, 112, 120, 128
    a(f"""
    s_and_b32 s6, s2, 7
    s_lshr_b32 s7, s2, 3                     ; j
    s_and_b32 s4, s6, 3
    s_lshl_b32 s4, s4, 2
    s_and_b32 s12, s7, 3
    s_add_u32 s4, s4, s12                    ; lt = 4(k&3) + (j&3)
    s_lshr_b32 s5, s6, 2
    s_lshl_b32 s5, s5, 3
    s_lshr_b32 s13, s7, 2
    s_add_u32 s5, s5, s13                    ; fg = 8(k>>2) + (j>>2)
    s_cmp_ge_u32 s2, {C_GRID}
    s_cbranch_scc1 c_end
    s_cmp_ge_u32 s5, 15
    s_cbranch_scc1 c_end
    s_load_dwordx2 s[20:21], s[0:1], 144
    s_lshl_b32 s12, s12, 1
    s_add_u32 s36, s12, s13
    s_and_b32 s36, s36, {((8 - 8 // int(os.environ.get("C_ROT", 1))) & 7)}
    v_lshrrev_b32 v3, 6, v0
    v_and_b32 v1, 63, v0
    v_lshlrev_b32 v4, 4, v1                  ; lane*16
    v_readfirstlane_b32 s26, v3              ; wave
    s_cmp_lt_u32 s26, 4
    s_cbranch_scc1 c_compute
    s_sub_u32 s26, s26, 4
    v_lshrrev_b32 v5, 4, v1
    v_lshlrev_b32 v6, 2, v5
    v_and_b32 v7, 15, v1
    v_xor_b32 v6, v6, v7
    v_lshlrev_b32 v6, 4, v6
    v_lshl_add_u32 v5, v5, 12, v6
    s_mul_i32 s6, s5, {3*32*1024}
    s_add_u32 s6, s6, {WS_W1F}
    s_mul_i32 s7, s26, 3
    """)
    for i in range(3):
        a(f"""
        s_add_u32 s12, s7, {i}
        s_lshr_b32 s13, s12, 2
        s_and_b32 s12, s12, 3
        s_lshl_b32 s13, s13, 15
        s_lshl_b32 s12, s12, 10
        s_add_u32 s12, s12, s13
        s_add_u32 s{30+i}, s12, s6
        """)
    a(f"""
    s_lshl_b32 s12, s26, 16
    s_lshl_b32 s13, s4, 8
    s_add_u32 s12, s12, s13
    s_add_u32 s33, s12, {WS_X2T}
    s_mul_i32 s34, s26, 3072
    s_lshl_b32 s35, s26, 12
    s_add_u32 s35, s35, 12288
    s_waitcnt lgkmcnt(0)
    """)
    srd(a, 8, 20, WS_SIZE)
    a.stamp(0)
    def dma(c):
        slot = (c % C_NS) * C_SLOT
        a(f"s_add_u32 s37, s36, {c}\ns_and_b32 s37, s37, 7\ns_lshl_b32 s38, s37, 18\ns_lshl_b32 s37, s37, 12\ns_add_u32 s38, s38, s33")
        for j in range(4):
            a(f"s_add_u32 m0, s35, {slot + 1024*j}")
            if j: a(f"s_add_u32 s38, s38, 16384")
            else: a("s_nop 0")
            a(f"buffer_load_dwordx4 v5, s[8:11], s38 offen lds")
        for i in range(3):
            a(f"s_add_u32 m0, s34, {slot + 1024*i}")
            a(f"s_add_u32 s12, s{30+i}, s37")
            a(f"buffer_load_dwordx4 v4, s[8:11], s12 offen lds")
    LA = int(os.environ.get("C_LA", 2))
    for c in range(LA): dma(c)
    for c in range(8):
        last = min(7, c + LA - 1)
        if c == 4: a.stamp(1)
        a(f"s_waitcnt vmcnt({7*(last - c) if not os.environ.get('C_NODMA') else 0})")
        if c == 4: a.stamp(2)
        a("s_barrier")
        if c in (0, 4): a.stamp(3 + c // 4)
        if c + LA <= 7 and not os.environ.get("C_NODMA"): dma(c + LA)
    a.stamp(5)
    a("s_endpgm")
    a(f"""
    c_compute:
    v_lshlrev_b32 v8, 2, v0
    s_mul_i32 s12, s5, 384
    s_add_u32 s13, s12, {WS_CS}
    s_add_u32 s12, s12, {WS_B1P}
    v_and_b32 v6, 15, v1
    v_lshrrev_b32 v7, 2, v6                  ; r
    v_and_b32 v6, 3, v6                      ; c
    v_lshrrev_b32 v9, 5, v1                  ; g
    v_lshl_add_u32 v12, v9, 3, v7
    v_lshlrev_b32 v12, 8, v12
    v_bfe_u32 v13, v1, 4, 1
    v_lshlrev_b32 v13, 1, v13
    v_lshl_add_u32 v13, v3, 2, v13
    v_lshrrev_b32 v14, 1, v6
    v_add_u32 v13, v13, v14
    v_lshlrev_b32 v14, 2, v7
    v_xor_b32 v13, v13, v14
    v_lshl_add_u32 v12, v13, 4, v12
    v_and_b32 v6, 1, v6
    v_lshl_add_u32 v12, v6, 3, v12
    v_add_u32 v16, 12288, v12
    v_add_u32 v17, {2*C_SLOT}, v16
    v_mov_b32 v19, v4
    v_add_u32 v20, {2*C_SLOT}, v4
    v_mov_b32 v22, 0x3f803f80
    v_mov_b32 v23, 0x3f803f80
    v_add_u32 v9, {C_TAB}, v8
    s_waitcnt lgkmcnt(0)
    """)
    srd(a, 8, 20, WS_SIZE)
    a.stamp(0)
    a("""
    buffer_load_dword v10, v8, s[8:11], s13 offen
    buffer_load_dword v11, v8, s[8:11], s12 offen
    """)
    for r in range(ACC, FB): a(f"v_mov_b32 v{r}, 0")
    T = LdsTracker(a)
    def reads(c, s):
        slot = c % C_NS
        grp = slot // 2; so = (slot % 2) * C_SLOT
        buf = (4 * c + s) % 3
        fb = FB + 16 * buf
        T.issue(f"ds_read_b64_tr_b16 v[{fb+12}:{fb+13}], v{16+grp} offset:{so + s*4096}", [f"x{buf}"])
        T.issue(f"ds_read_b64_tr_b16 v[{fb+14}:{fb+15}], v{16+grp} offset:{so + s*4096 + 1024}", [f"x{buf}"])
        for b in range(3):
            T.issue(f"ds_read_b128 v[{fb+4*b}:{fb+4*b+3}], v{19+grp} offset:{so + (b*4+s)*1024}", [f"w{buf}{b}"])
    def read_list(c, s):
        slot = c % C_NS
        grp = slot // 2; so = (slot % 2) * C_SLOT
        buf = (4 * c + s) % 3
        fb = FB + 16 * buf
        L = [(f"ds_read_b64_tr_b16 v[{fb+12}:{fb+13}], v{16+grp} offset:{so + s*4096}", [f"x{buf}"]),
             (f"ds_read_b64_tr_b16 v[{fb+14}:{fb+15}], v{16+grp} offset:{so + s*4096 + 1024}", [f"x{buf}"])]
        for b in range(3):
            L.append((f"ds_read_b128 v[{fb+4*b}:{fb+4*b+3}], v{19+grp} offset:{so + (b*4+s)*1024}", [f"w{buf}{b}"]))
        return L
    def mfmas(c, s, rd=()):
        rd = list(rd)
        def pop(n):
            for _ in range(n):
                if rd: T.issue(*rd.pop(0))
        buf = (4 * c + s) % 3; fb = FB + 16 * buf
        T.need([f"x{buf}", f"w{buf}0", f"w{buf}1", f"w{buf}2"])
        per = (len(rd) + 2) // 3
        for b in range(3):
            a(f"v_mfma_f32_32x32x16_bf16 v[{ACC+16*b}:{ACC+16*b+15}], v[{fb+4*b}:{fb+4*b+3}], v[{fb+12}:{fb+15}], v[{ACC+16*b}:{ACC+16*b+15}]")
            pop(per)
            if not os.environ.get("C_NOSTAT"):
                if b == 0:
                    a(f"v_mfma_f32_4x4x4_16b_bf16 v[{AQ}:{AQ+3}], v[{fb+12}:{fb+13}], v[{fb+12}:{fb+13}], v[{AQ}:{AQ+3}]")
                    a(f"v_mfma_f32_4x4x4_16b_bf16 v[{AS}:{AS+3}], v[22:23], v[{fb+12}:{fb+13}], v[{AS}:{AS+3}]")
                if b == 1:
                    a(f"v_mfma_f32_4x4x4_16b_bf16 v[{AQ+4}:{AQ+7}], v[{fb+14}:{fb+15}], v[{fb+14}:{fb+15}], v[{AQ+4}:{AQ+7}]")
                    a(f"v_mfma_f32_4x4x4_16b_bf16 v[{AS+4}:{AS+7}], v[22:23], v[{fb+14}:{fb+15}], v[{AS+4}:{AS+7}]")
        pop(99)
    for c in range(8):
        if c == 1:
            a("""
            s_waitcnt vmcnt(0)
            v_cmp_gt_u32 vcc, 96, v0
            s_and_saveexec_b64 s[14:15], vcc
            ds_write_b32 v9, v10
            ds_write_b32 v9, v11 offset:384
            s_mov_b64 exec, s[14:15]
            """)
            T.issued += 2
        if c == 4: a.stamp(1)
        T.drain()
        if c == 4: a.stamp(2)
        a("s_barrier")
        if c in (0, 4): a.stamp(3 + c // 4)
        if c > 0:
            mfmas(c - 1, 3, read_list(c, 0) + read_list(c, 1))
        else:
            for x in read_list(c, 0) + read_list(c, 1): T.issue(*x)
        mfmas(c, 0, read_list(c, 2))
        mfmas(c, 1, read_list(c, 3))
        mfmas(c, 2)
    mfmas(7, 3)
    a.stamp(5)
    a(f"""
    v_and_b32 v6, 3, v1
    v_cmp_eq_u32 s[12:13], 1, v6
    v_cmp_eq_u32 s[14:15], 2, v6
    v_cmp_eq_u32 s[16:17], 3, v6
    v_lshrrev_b32 v6, 5, v1
    v_lshlrev_b32 v6, 4, v6
    v_add_u32 v6, {C_TAB}, v6
    """)
    for q in range(4):
        a(f"ds_read_b128 v[{28+4*q}:{31+4*q}], v6 offset:{(8*q)*4}")
        a(f"ds_read_b128 v[{44+4*q}:{47+4*q}], v6 offset:{384 + (8*q)*4}")
    a(f"""
    v_add_f32 v{AQ}, v{AQ}, v{AQ+4}
    v_add_f32 v{AQ+1}, v{AQ+1}, v{AQ+5}
    v_add_f32 v{AQ+2}, v{AQ+2}, v{AQ+6}
    v_add_f32 v{AQ+3}, v{AQ+3}, v{AQ+7}
    v_add_f32 v{AS}, v{AS}, v{AS+4}
    v_cndmask_b32 v{AQ}, v{AQ}, v{AQ+1}, s[12:13]
    v_cndmask_b32 v{AQ}, v{AQ}, v{AQ+2}, s[14:15]
    v_cndmask_b32 v{AQ}, v{AQ}, v{AQ+3}, s[16:17]
    v_mov_b32 v25, v{AS}
    v_mov_b32 v24, v{AQ}
    s_nop 1
    v_permlane32_swap_b32 v25, v{AS}
    v_permlane32_swap_b32 v24, v{AQ}
    s_nop 1
    v_add_f32 v25, v25, v{AS}
    v_add_f32 v24, v24, v{AQ}
    v_mul_f32 v25, {fx(1.0/512)}, v25
    v_mul_f32 v24, {fx(1.0/512)}, v24
    v_fma_f32 v24, -v25, v25, v24
    v_max_f32 v24, 0, v24
    v_add_f32 v24, {fx(1e-5)}, v24
    v_rsq_f32 v24, v24                       ; r
    s_lshl_b32 s12, s4, 2
    v_mul_f32 v26, -v25, v24                 ; -mean*r
    s_add_u32 s12, s12, s26
    s_mul_i32 s12, s12, {HS}
    v_mov_b32 v25, v24
    v_mov_b32 v27, v26
    s_mul_i32 s13, s5, 6
    s_add_u32 s12, s12, s13
    s_lshl_b32 s12, s12, 10
    s_add_u32 s12, s12, {WS_HID}
    """)
    for b in range(3):
        cs, bb = (28, 44) if b % 2 == 0 else (144, 160)
        a("s_waitcnt lgkmcnt(0)")
        if b < 2:
            cs2, bb2 = (144, 160) if b % 2 == 0 else (28, 44)
            if b == 1:
                a("s_nop 0")
            for q in range(4):
                a(f"ds_read_b128 v[{cs2+4*q}:{cs2+4*q+3}], v6 offset:{(32*(b+1) + 8*q)*4}")
                a(f"ds_read_b128 v[{bb2+4*q}:{bb2+4*q+3}], v6 offset:{384 + (32*(b+1) + 8*q)*4}")
        for j in range(8):
            a(f"v_pk_fma_f32 v[{bb+2*j}:{bb+2*j+1}], v[26:27], v[{cs+2*j}:{cs+2*j+1}], v[{bb+2*j}:{bb+2*j+1}]")
        for j in range(8):
            a(f"v_pk_fma_f32 v[{bb+2*j}:{bb+2*j+1}], v[24:25], v[{ACC+16*b+2*j}:{ACC+16*b+2*j+1}], v[{bb+2*j}:{bb+2*j+1}]")
        for j in range(16): a(f"v_max_f32 v{bb+j}, 0, v{bb+j}")
        for j in range(8): a(f"v_pk_mul_f32 v[{bb+2*j}:{bb+2*j+1}], v[{bb+2*j}:{bb+2*j+1}], v[{bb+2*j}:{bb+2*j+1}]")
        o = ACC + 16 * b
        for j in range(8): a(f"v_cvt_pk_bf16_f32 v{o+j}, v{bb+2*j}, v{bb+2*j+1}")
        a("s_nop 1")
        a(f"v_permlane32_swap_b32 v{o}, v{o+2}")
        a(f"v_permlane32_swap_b32 v{o+1}, v{o+3}")
        a(f"v_permlane32_swap_b32 v{o+4}, v{o+6}")
        a(f"v_permlane32_swap_b32 v{o+5}, v{o+7}")
        a(f"buffer_store_dwordx4 v[{o}:{o+3}], v4, s[8:11], s12 offen{HIDSC}")
        a(f"buffer_store_dwordx4 v[{o+4}:{o+7}], v4, s[8:11], s12 offen offset:1024{HIDSC}")
        a("s_add_u32 s12, s12, 2048")
        if b == 0:
            a(f"""
            s_cmp_eq_u32 s5, 14
            s_cbranch_scc0 c_more
            v_mov_b32 v28, 0
            v_mov_b32 v29, 0
            v_mov_b32 v30, 0
            v_mov_b32 v31, 0
            buffer_store_dwordx4 v[28:31], v4, s[8:11], s12 offen{SC}
            buffer_store_dwordx4 v[28:31], v4, s[8:11], s12 offen offset:1024{SC}
            s_endpgm
            c_more:
            """)
    a("c_end:\ns_endpgm")

D_GRID = 256
D_SLOT = 32768
D_NS = 4
D_X2 = D_NS * D_SLOT
D_TAB = D_X2 + 8192
D_LDS = D_TAB + 512
D_NCH = 11

def gen_D(a):
    ACC, FB = 64, 80
    if os.environ.get("MODP"):
        GB_LOAD = f"""s_lshl_b32 s12, s5, 9
    s_add_u32 s12, s12, {0x10000 + 160*128}
    v_lshrrev_b32 v14, 4, v0
    v_lshlrev_b32 v14, 7, v14
    v_and_b32 v21, 15, v0
    v_lshl_add_u32 v14, v21, 2, v14
    buffer_load_dword v14, v14, s[40:43], s12 offen"""
    else:
        GB_LOAD = f"""s_lshl_b32 s12, s5, 8
    s_add_u32 s12, s12, {WS_MOD + 5*2048}
    buffer_load_dword v14, v10, s[40:43], s12 offen"""
    a(f"""
    s_cmp_ge_u32 s2, {D_GRID}
    s_cbranch_scc1 d_end
    s_load_dwordx2 s[20:21], s[0:1], 144
    s_load_dwordx4 s[16:19], s[0:1], 96      ; w2, b2
    s_load_dwordx2 s[24:25], s[0:1], 128     ; out
    v_lshrrev_b32 v3, 6, v0
    v_and_b32 v1, 63, v0
    s_and_b32 s4, s2, 7
    s_lshl_b32 s4, s4, 2
    s_bfe_u32 s6, s2, 0x20003
    s_add_u32 s4, s4, s6
    s_lshr_b32 s5, s2, 5
    v_readfirstlane_b32 s26, v3              ; wave
    v_lshlrev_b32 v4, 4, v1                  ; lane*16
    s_lshl_b32 s6, s6, 1
    s_add_u32 s36, s6, s5
    s_and_b32 s36, s36, {((8 - 8 // int(os.environ.get("D_ROT", 4))) & 7)}
    s_mul_i32 s36, s36, 11
    s_lshr_b32 s36, s36, 3                   ; rotation
    s_and_b32 s27, s26, 1                    ; wm
    s_bfe_u32 s28, s26, 0x10001              ; wn
    s_cmp_lt_u32 s26, 4
    s_cbranch_scc1 d_compute
    s_sub_u32 s26, s26, 4
    v_lshrrev_b32 v5, 3, v1
    v_bfe_u32 v6, v1, 4, 1
    v_lshlrev_b32 v6, 2, v6
    v_and_b32 v7, 7, v1
    v_xor_b32 v6, v6, v7
    v_lshlrev_b32 v6, 4, v6
    v_lshl_add_u32 v5, v5, 10, v6
    v_lshrrev_b32 v9, 3, v1
    v_lshl_add_u32 v9, v9, 12, v6
    s_waitcnt lgkmcnt(0)
    s_cmp_eq_u32 s28, 0
    s_cbranch_scc0 d_hidrole
    s_mov_b32 s8, s16
    s_mov_b32 s9, s17
    s_mov_b32 s10, {1376*512*2}
    s_mov_b32 s11, 0x00020000
    s_lshl_b32 s30, s27, 16
    s_lshl_b32 s12, s5, 7
    s_add_u32 s30, s30, s12
    s_mov_b32 s32, 8192
    s_mov_b32 s33, 131072
    v_mov_b32 v8, v5
    s_branch d_roledone
    d_hidrole:
    s_mov_b32 s8, s20
    s_mov_b32 s9, s21
    s_mov_b32 s10, {WS_SIZE}
    s_mov_b32 s11, 0x00020000
    s_lshl_b32 s30, s4, 1
    s_add_u32 s30, s30, s27
    s_mul_i32 s30, s30, {HS*1024}
    s_add_u32 s30, s30, {WS_HID}
    s_mov_b32 s32, 1024
    s_mov_b32 s33, 8192
    v_mov_b32 v8, v4
    d_roledone:
    s_lshl_b32 s31, s26, 13
    """)
    srd(a, 40, 20, WS_SIZE)
    a.stamp(0)
    def dma(c):
        slot = (c % D_NS) * D_SLOT
        a(f"""
        s_add_u32 s34, s36, {c}
        s_sub_u32 s35, s34, 11
        s_cmp_ge_u32 s34, 11
        s_cselect_b32 s34, s35, s34
        s_mul_i32 s34, s34, s33
        s_add_u32 s34, s34, s30
        """)
        for i in range(8):
            a(f"s_add_u32 m0, s31, {slot + 1024*i}")
            a(f"s_add_u32 s34, s34, s32" if i else "s_nop 0")
            a(f"buffer_load_dwordx4 v8, s[8:11], s34 offen lds")
    dma(0)
    a(f"""
    s_lshl_b32 s12, s5, 6
    s_lshl_b32 s13, s26, 4
    s_add_u32 s12, s12, s13
    s_lshl_b32 s12, s12, 12
    s_lshl_b32 s13, s4, 7
    s_add_u32 s12, s12, s13
    s_add_u32 s12, s12, {WS_X2T}
    s_lshl_b32 s13, s26, 11
    s_add_u32 m0, s13, {D_X2}
    s_add_u32 s14, s12, {8*4096}
    buffer_load_dwordx4 v9, s[40:43], s12 offen lds
    s_add_u32 m0, m0, 1024
    s_nop 0
    buffer_load_dwordx4 v9, s[40:43], s14 offen lds
    """)
    dma(1)
    LA = 2
    for c in range(D_NCH):
        last = min(D_NCH - 1, c + LA - 1)
        n = 8 * (last - c)
        if c == 0: n += 2
        if c == 5: a.stamp(1)
        a(f"s_waitcnt vmcnt({n})")
        if c == 5: a.stamp(2)
        a("s_barrier")
        if c in (0, 5, 10): a.stamp(3 + (0, 5, 10).index(c))
        if c + LA < D_NCH: dma(c + LA)
    a("s_endpgm")
    a(f"""
    d_compute:
    v_lshlrev_b32 v10, 2, v0
    v_lshlrev_b32 v11, 1, v0
    s_lshl_b32 s12, s5, 7
    v_add_u32 v11, s12, v11
    v_min_u32 v11, 1022, v11
    v_and_b32 v6, 15, v1
    v_lshrrev_b32 v7, 2, v6                  ; r
    v_and_b32 v6, 3, v6                      ; c
    v_lshrrev_b32 v12, 5, v1                 ; g
    v_lshl_add_u32 v12, v12, 3, v7
    v_lshlrev_b32 v12, 7, v12
    v_bfe_u32 v13, v1, 4, 1
    v_lshlrev_b32 v13, 1, v13
    s_lshl_b32 s12, s27, 2
    v_add_u32 v13, s12, v13
    v_lshrrev_b32 v16, 1, v6
    v_add_u32 v13, v13, v16
    v_lshrrev_b32 v7, 1, v7
    v_lshlrev_b32 v7, 2, v7
    v_xor_b32 v13, v13, v7
    v_lshl_add_u32 v12, v13, 4, v12
    v_and_b32 v6, 1, v6
    v_lshl_add_u32 v16, v6, 3, v12
    v_add_u32 v17, {2*D_SLOT}, v16
    s_lshl_b32 s12, s28, 13
    s_add_u32 s12, s12, 16384
    v_add_u32 v18, s12, v4
    v_add_u32 v19, {2*D_SLOT}, v18
    s_waitcnt lgkmcnt(0)
    """)
    srd(a, 40, 20, WS_SIZE)
    a.stamp(0)
    a(f"""
    {GB_LOAD}
    global_load_ushort v15, v11, s[18:19]
    v_add_u32 v10, {D_TAB}, v10
    """)
    for r in range(16): a(f"v_mov_b32 v{ACC+r}, 0")
    T = LdsTracker(a)
    NB = 5
    def reads(c, s):
        slot = c % D_NS
        grp = slot // 2; so = (slot % 2) * D_SLOT
        g = (8 * c + s) % NB
        fb = FB + 8 * g
        T.issue(f"ds_read_b64_tr_b16 v[{fb}:{fb+1}], v{16+grp} offset:{so + s*2048}", [f"a{g}"])
        T.issue(f"ds_read_b64_tr_b16 v[{fb+2}:{fb+3}], v{16+grp} offset:{so + s*2048 + 512}", [f"a{g}"])
        T.issue(f"ds_read_b128 v[{fb+4}:{fb+7}], v{18+grp} offset:{so + s*1024}", [f"b{g}"])
    def mfma(c, s):
        g = (8 * c + s) % NB; fb = FB + 8 * g
        T.need([f"a{g}", f"b{g}"])
        a(f"v_mfma_f32_32x32x16_bf16 v[{ACC}:{ACC+15}], v[{fb}:{fb+3}], v[{fb+4}:{fb+7}], v[{ACC}:{ACC+15}]")
    for c in range(D_NCH):
        if c == 1:
            a(f"""
            s_waitcnt vmcnt(0)
            v_lshlrev_b32 v15, 16, v15
            v_cmp_gt_u32 vcc, 64, v0
            s_and_saveexec_b64 s[14:15], vcc
            ds_write_b32 v10, v14
            ds_write_b32 v10, v15 offset:256
            s_mov_b64 exec, s[14:15]
            """)
            T.issued += 2
        if c == 5: a.stamp(1)
        T.drain()
        if c == 5: a.stamp(2)
        a("s_barrier")
        if c in (0, 5): a.stamp(3 + c // 5)
        reads(c, 0); reads(c, 1); reads(c, 2); reads(c, 3)
        if c > 0: mfma(c - 1, 7)
        for s in range(7):
            if s + 4 < 8: reads(c, s + 4)
            mfma(c, s)
    mfma(D_NCH - 1, 7)
    a.stamp(5)
    a(f"""
    v_and_b32 v6, 15, v1
    v_lshrrev_b32 v7, 2, v6
    v_and_b32 v6, 3, v6
    v_lshrrev_b32 v12, 5, v1                 ; h
    v_lshl_add_u32 v13, v12, 2, v7
    s_lshl_b32 s12, s27, 5
    v_add_u32 v13, s12, v13
    v_lshlrev_b32 v13, 7, v13
    v_bfe_u32 v14, v1, 4, 1
    v_lshlrev_b32 v14, 1, v14
    s_lshl_b32 s12, s28, 2
    v_add_u32 v14, s12, v14
    v_lshrrev_b32 v15, 1, v6
    v_add_u32 v14, v14, v15
    v_lshrrev_b32 v7, 1, v7
    v_lshlrev_b32 v7, 2, v7
    v_xor_b32 v14, v14, v7
    v_lshl_add_u32 v13, v14, 4, v13
    v_and_b32 v6, 1, v6
    v_lshl_add_u32 v13, v6, 3, v13
    v_add_u32 v13, {D_X2}, v13
    v_lshlrev_b32 v14, 4, v12
    s_lshl_b32 s12, s27, 7
    s_add_u32 s12, s12, {D_TAB}
    v_add_u32 v14, s12, v14
    """)
    for q in range(4):
        a(f"ds_read_b64_tr_b16 v[{24+2*q}:{25+2*q}], v13 offset:{1024*q}")
        a(f"ds_read_b128 v[{32+4*q}:{35+4*q}], v14 offset:{32*q}")
        a(f"ds_read_b128 v[{48+4*q}:{51+4*q}], v14 offset:{256+32*q}")
    a(f"""
    v_and_b32 v5, 31, v1
    v_lshlrev_b32 v20, 10, v5
    v_lshl_add_u32 v20, v12, 4, v20
    s_lshl_b32 s12, s4, 1
    s_add_u32 s12, s12, s28
    s_lshl_b32 s12, s12, 15
    s_lshl_b32 s13, s5, 1
    s_add_u32 s13, s13, s27
    s_lshl_b32 s13, s13, 6
    s_add_u32 s12, s12, s13
    v_add_u32 v20, s12, v20
    """)
    for q in range(4):
        a(f"s_waitcnt lgkmcnt({3*(3-q)})")
        a(f"v_lshlrev_b32 v8, 16, v{24+2*q}")
        a(f"v_and_b32 v9, 0xffff0000, v{24+2*q}")
        a(f"v_lshlrev_b32 v10, 16, v{25+2*q}")
        a(f"v_and_b32 v11, 0xffff0000, v{25+2*q}")
        for r in range(4): a(f"v_add_f32 v{48+4*q+r}, v{48+4*q+r}, v{ACC+4*q+r}")
        for r in range(4): a(f"v_fma_f32 v{8+r}, v{48+4*q+r}, v{32+4*q+r}, v{8+r}")
        a(f"v_cvt_pk_bf16_f32 v{FB+2*q}, v8, v9")
        a(f"v_cvt_pk_bf16_f32 v{FB+2*q+1}, v10, v11")
    a(f"""
    s_nop 1
    v_permlane32_swap_b32 v{FB}, v{FB+2}
    v_permlane32_swap_b32 v{FB+1}, v{FB+3}
    v_permlane32_swap_b32 v{FB+4}, v{FB+6}
    v_permlane32_swap_b32 v{FB+5}, v{FB+7}
    global_store_dwordx4 v20, v[{FB}:{FB+3}], s[24:25]{OUTSC}
    global_store_dwordx4 v20, v[{FB+4}:{FB+7}], s[24:25] offset:32{OUTSC}
    d_end:
    s_endpgm
    """)

def kernels():
    return [("conv_kernel", gen_B, 168, B_GRID, 256, B_LDS),
            ("gemm1_kernel", gen_C, 176, C_GRID, 512, C_LDS),
            ("gemm2_kernel", gen_D, 128, D_GRID, 512, D_LDS)]
```

```python
import sys, os
os.environ["MODP"] = "1"
import g3
from g3 import *
import g3b
from g3b import gen_C, gen_D, C_GRID, C_LDS, D_GRID, D_LDS, KCP, KCHL

NMAIN, NW1 = 256, 43
TCH = 57 * TROW
H_OFF = 2 * KCHL
HCH = 4608
XR_OFF = H_OFF + 2 * HCH
RED_OFF = XR_OFF + 8192
LNT = 62016
KC2 = LNT + 4 * 2560
KCS = 776 * 4
MODS = KC2 + 2 * KCS
STP = MODS + 16 * 80
FLG = STP + 256
CNT = FLG + 16
AB_LDS = CNT + 32
NW1 = 43
AB_GRID = NMAIN + NW1
XBS = 8192
WS_MODP = 0x10000
WS_GO = 0x20000
WS_XB = WS_XT
SET = int(os.environ.get("STAMPSET", 0))
PPRIO = int(os.environ.get("PPRIO", 1))
X2SC = os.environ.get("X2SC", "")
SPIN_MAX = 0x20000

def lds_arrive(a, k, v):
    a(f"""
    v_mov_b32 v{v}, {CNT + 4*k}
    v_mov_b32 v{v+1}, 1
    s_mov_b64 exec, 1
    ds_add_u32 v{v}, v{v+1}
    s_mov_b64 exec, -1
    """)
def lds_wait(a, k, n, v, tag, slp=1):
    a(f"""
    v_mov_b32 v{v}, {CNT + 4*k}
    lw_{tag}:
    ds_read_b32 v{v+1}, v{v}
    s_waitcnt lgkmcnt(0)
    v_readfirstlane_b32 s62, v{v+1}
    s_cmp_ge_u32 s62, {n}
    s_cbranch_scc1 lw_{tag}_done
    s_sleep {slp}
    s_branch lw_{tag}
    lw_{tag}_done:
    """)

def gen_kwaves(a):
    VA, VB, VY = 32, 64, 96
    a(f"""
    kwaves:
    s_load_dwordx4 s[8:11], s[0:1], 8
    s_load_dwordx4 s[12:15], s[0:1], 24
    s_load_dwordx4 s[16:19], s[0:1], 40
    s_load_dwordx4 s[40:43], s[0:1], 56
    s_load_dwordx2 s[22:23], s[0:1], 144     ; ws
    s_lshr_b32 s27, s26, 1                   ; ch
    s_and_b32 s28, s26, 1                    ; hf
    s_add_u32 s30, s29, s27                  ; d
    s_lshl_b32 s34, s30, 8
    s_lshl_b32 s35, s28, 7
    s_add_u32 s34, s34, s35
    v_lshl_add_u32 v36, v1, 1, s34
    s_lshl_b32 s35, s29, 1
    s_waitcnt lgkmcnt(0)
    """)
    if SET == 0: a.stamp(0)
    for i, sp in enumerate((8, 10, 12, 14, 16, 18)):
        a(f"global_load_ushort v{40+i}, v36, s[{sp}:{sp+1}]")
    a("s_load_dword s24, s[40:41], s35\ns_load_dword s25, s[42:43], s35")
    a("v_lshlrev_b32 v37, 3, v0\nv_sub_u32 v37, 2047, v37")
    for e in range(11): a(f"v_subrev_u32 v{64+e}, {e}, v37")
    for e in range(11): a(f"v_max_i32 v{80+e}, 0, v{64+e}")
    for e in range(11): a(f"v_cvt_f32_u32 v{112+e}, v{80+e}")
    a("v_mov_b32 v123, 0")
    for p in range(6): a(f"v_cvt_pk_bf16_f32 v{96+p}, v{112+2*p}, v{113+2*p}")
    a(f"s_mov_b32 s36, {KC2 - 0x10A00}")
    for e in range(11):
        p = e // 2
        a(f"v_and_b32 v{112+e}, 0xffff, v{96+p}" if e % 2 == 0 else f"v_lshrrev_b32 v{112+e}, 16, v{96+p}")
    for e in range(11): a(f"v_lshl_add_u32 v{112+e}, v{112+e}, 2, s36")
    a(f"v_mov_b32 v104, {KC2 + 768*4}")
    for e in range(11):
        a(f"v_cmp_gt_u32 vcc, 128, v{80+e}")
        a(f"v_lshlrev_b32 v{80+e}, 2, v{80+e}")
        a(f"v_add_u32 v{80+e}, {KC2}, v{80+e}")
        a(f"v_cndmask_b32 v{112+e}, v{112+e}, v{80+e}, vcc")
        if e >= 8:
            a(f"v_cmp_gt_i32 vcc, 0, v{64+e}")
            a("s_nop 1")
            a(f"v_cndmask_b32 v{112+e}, v{112+e}, v104, vcc")
    a(f"""
    s_waitcnt lgkmcnt(0)
    s_lshl_b32 s36, s27, 4
    s_lshr_b32 s24, s24, s36
    s_lshl_b32 s24, s24, 16                  ; log_dt[d]
    s_lshr_b32 s25, s25, s36
    s_lshl_b32 s25, s25, 16                  ; Dskip[d]
    v_mov_b32 v5, s24
    v_mul_f32 v6, 0x3fb8aa3b, v5
    s_mov_b32 s36, 0x3fb8aa3b
    v_fma_f32 v7, v5, s36, -v6
    v_fmac_f32 v7, 0x32a5705f, v5
    v_exp_f32 v6, v6
    v_mul_f32 v7, {fx(0.6931471805599453)}, v7
    v_fmac_f32 v6, v6, v7
    v_cvt_pk_bf16_f32 v6, v6, v6
    v_lshlrev_b32 v6, 16, v6                 ; dt
    s_mul_i32 s36, s27, {TCH}
    s_lshl_b32 s37, s28, 8
    s_add_u32 s36, s36, s37
    v_lshl_add_u32 v2, v1, 2, s36
    v_mov_b32 v4, 0
    v_mov_b32 v5, {KC2 + 768*4}
    ds_write_b32 v5, v4
    ds_write_b32 v5, v4 offset:{KCS}
    s_waitcnt vmcnt(4)
    v_lshlrev_b32 v40, 16, v40
    v_lshlrev_b32 v41, 16, v41
    v_mul_f32 v10, v6, v40
    v_mul_f32 v11, v6, v41
    v_mul_f32 v10, 0x3fb8aa3b, v10
    v_mul_f32 v11, {fx(0.15915494309189535)}, v11
    """)
    if SET == 0: a.stamp(1)
    def direct(dst, l, t):
        a(f"""
        v_mul_f32 v{t}, {fx(float(l))}, v10
        v_mul_f32 v{t+1}, {fx(float(l))}, v11
        v_exp_f32 v{t}, v{t}
        v_fract_f32 v{t+1}, v{t+1}
        v_cos_f32 v{dst}, v{t+1}
        v_sin_f32 v{dst+1}, v{t+1}
        s_nop 0
        v_mul_f32 v{dst}, v{t}, v{dst}
        v_mul_f32 v{dst+1}, v{t}, v{dst+1}
        """)
    tmpw = [0]
    def wr(row, src, neg=False):
        tmp = 62 + (tmpw[0] % 2); tmpw[0] += 1
        a(f"v_cvt_pk_bf16_f32 v{tmp}, v{src}, {'-' if neg else ''}v{src+1}")
        a(f"ds_write_b32 v2, v{tmp} offset:{row*TROW}")
    E = [None, 64, 66, 68, 70, 72, 74, 76]
    E8, E128, X, Y2, Q, R = 78, 80, 82, 84, 86, 88
    S = [12, 14, 16, 18]
    T0, T1, T2 = 28, 30, 32
    direct(E[1], 1, 28); direct(E128, 128, 30)
    a("""
    s_waitcnt vmcnt(0)
    v_lshlrev_b32 v42, 16, v42
    v_lshlrev_b32 v43, 16, v43
    v_lshlrev_b32 v44, 16, v44
    v_lshlrev_b32 v45, 16, v45
    v_mul_f32 v42, v6, v42
    v_mul_f32 v43, v6, v43
    """)
    cmul(a, Q, 44, 42, T2)
    a("v_mov_b32 v62, 0x3f80\nds_write_b32 v2, v62 offset:0"); tmpw[0] = 1
    cmul(a, E[2], E[1], E[1], T0); cmul(a, X, E128, E128, T1)
    wr(1, E[1]); wr(8, E128); wr(QROW, Q, True)
    cmul(a, E[4], E[2], E[2], T0); cmul(a, E[3], E[2], E[1], T1); cmul(a, R, X, X, T2)
    wr(2, E[2]); wr(16, X)
    cmul(a, E8, E[4], E[4], T0); cmul(a, E[5], E[4], E[1], T1); cmul(a, E[6], E[3], E[3], T2)
    wr(3, E[3]); wr(4, E[4]); wr(24, R)
    cmul(a, E[7], E[4], E[3], T0); cmul(a, Y2, R, E[4], T1)
    cmul(a, S[1], X, E[2], T2); cmul(a, S[2], X, E[4], T0); cmul(a, S[3], X, E[6], T1)
    wr(5, E[5]); wr(6, E[6]); wr(7, E[7]); wr(25, Y2)
    cmul(a, S[0], X, E128, T2)
    a(f"v_mov_b64 v[{X}:{X+1}], v[{R}:{R+1}]")
    cmul(a, R, R, R, T0)
    wr(17, S[1]); wr(18, S[2]); wr(19, S[3]); wr(20, S[0])
    for r in range(1, 4): cmul(a, S[r], S[r], E128, (T0, T1, T2)[r % 3])
    for r in range(1, 4): wr(20 + r, S[r])
    wr(32, R)
    Z = S[0]
    for i in range(1, 16):
        cmul(a, Q, Q, E8, T0)
        if i <= 8: cmul(a, R, R, E128, T1)
        if i <= 7: cmul(a, Z, E128, E[i], T2)
        if i <= 3:
            cmul(a, X, X, E128, 34); cmul(a, Y2, Y2, E128, 36)
        wr(QROW + i, Q, True)
        if i <= 8: wr(32 + i, R)
        if i <= 7: wr(8 + i, Z)
        if i <= 3:
            wr(24 + 2 * i, X); wr(25 + 2 * i, Y2)
    a(f"""
    v_and_b32 v4, 15, v0
    v_bfe_u32 v5, v0, 4, 2
    v_lshlrev_b32 v7, 4, v5
    v_mul_u32_u24 v8, {TROW}, v4
    v_add_u32 v8, v8, v7
    s_mul_i32 s36, s27, {TCH}
    v_add_u32 v8, s36, v8
    v_add_u32 v9, {QROW*TROW}, v8            ; B address
    s_mul_i32 s37, s28, {32*TROW}
    v_add_u32 v12, s37, v8
    s_mul_i32 s37, s28, {16*TROW}
    s_add_u32 s37, s37, {16*TROW}
    v_add_u32 v13, s37, v8
    """)
    for r in range(20, 36): a(f"v_mov_b32 v{r}, 0")
    a(f"""
    s_mul_i32 s36, s27, {KCS}
    s_add_u32 s36, s36, {KC2}
    s_cmp_eq_u32 s28, 1
    s_cbranch_scc1 k_t2
    v_and_b32 v7, 1, v5
    v_lshlrev_b32 v7, 2, v7
    v_lshrrev_b32 v14, 1, v5
    v_lshl_add_u32 v7, v14, 7, v7
    v_lshl_add_u32 v7, v4, 3, v7
    v_lshl_add_u32 v14, v7, 2, s36
    v_add_u32 v15, 4, v14
    v_add_u32 v16, 8, v14
    v_add_u32 v17, 12, v14
    v_cmp_gt_u32 vcc, 2, v5
    v_lshlrev_b32 v7, 6, v5
    v_add_u32 v7, 256, v7
    v_lshlrev_b32 v40, 2, v4
    v_lshlrev_b32 v41, 1, v4
    v_cndmask_b32 v40, v41, v40, vcc
    v_add_u32 v7, v7, v40
    v_lshl_add_u32 v40, v7, 2, s36
    v_add_u32 v41, 4, v40
    v_mov_b32 v42, 128
    v_cndmask_b32 v42, v42, 8, vcc
    v_add_u32 v42, v40, v42
    v_add_u32 v43, 4, v42
    s_branch k_addr
    k_t2:
    v_lshl_add_u32 v7, v5, 6, v4
    v_lshl_add_u32 v14, v7, 2, s36
    v_add_u32 v14, {512*4}, v14
    v_add_u32 v15, 64, v14
    v_add_u32 v16, 128, v14
    v_add_u32 v17, 192, v14
    v_mov_b32 v40, v14
    v_mov_b32 v41, v15
    v_mov_b32 v42, v16
    v_mov_b32 v43, v17
    k_addr:
    v_cmp_eq_u32 vcc, 0, v1
    s_cmp_eq_u32 s28, 0
    s_cselect_b32 s25, s25, 0
    v_mov_b32 v7, s25
    v_cndmask_b32 v7, 0, v7, vcc
    s_waitcnt lgkmcnt(0)
    """)
    if SET == 0: a.stamp(2)
    lds_arrive(a, 2, 38); lds_wait(a, 2, 4, 38, "k1")
    def rd(s):
        o = 64 + 12 * (s % 4)
        a(f"ds_read_b128 v[{o}:{o+3}], v9 offset:{64*s}")
        a(f"ds_read_b128 v[{o+4}:{o+7}], v12 offset:{64*s}")
        a(f"ds_read_b128 v[{o+8}:{o+11}], v13 offset:{64*s}")
    for s in range(4): rd(s)
    for s in range(8):
        o = 64 + 12 * (s % 4); p = s % 2
        a(f"s_waitcnt lgkmcnt({9 if s < 5 else 3*(7-s)})")
        a(f"v_mfma_f32_16x16x32_bf16 v[{20+8*p}:{23+8*p}], v[{o+4}:{o+7}], v[{o}:{o+3}], v[{20+8*p}:{23+8*p}]")
        a(f"v_mfma_f32_16x16x32_bf16 v[{24+8*p}:{27+8*p}], v[{o+8}:{o+11}], v[{o}:{o+3}], v[{24+8*p}:{27+8*p}]")
        if s < 4: rd(s + 4)
    a("s_nop 7")
    for r in range(8): a(f"v_add_f32 v{20+r}, v{20+r}, v{28+r}")
    a(f"""
    v_add_f32 v20, v20, v7
    ds_write_b32 v14, v20
    ds_write_b32 v15, v21
    ds_write_b32 v16, v22
    ds_write_b32 v17, v23
    ds_write_b32 v40, v24
    ds_write_b32 v41, v25
    ds_write_b32 v42, v26
    ds_write_b32 v43, v27
    """)
    lds_arrive(a, 3, 38); lds_wait(a, 3, 4, 38, "k2")
    if SET == 0: a.stamp(3)
    for ch in range(2):
        for e in range(11): a(f"ds_read_b32 v{64+12*ch+e}, v{112+e} offset:{ch*KCS}")
    a(f"""
    v_lshlrev_b32 v4, 4, v0                  ; tid*16
    v_mov_b32 v56, 0
    v_mov_b32 v57, 0
    v_mov_b32 v58, 0
    v_mov_b32 v59, 0
    v_lshrrev_b32 v60, 1, v0
    v_mul_u32_u24 v60, {KCP}, v60
    v_and_b32 v61, 1, v0
    v_lshl_add_u32 v60, v61, 4, v60
    v_add_u32 v60, 4096, v60
    v_bfe_u32 v61, v0, 5, 1
    v_mul_u32_u24 v61, {HCH}, v61
    v_and_b32 v62, 31, v0
    v_lshl_add_u32 v61, v62, 4, v61
    v_add_u32 v61, {H_OFF}, v61
    v_cmp_gt_u32 vcc, 16, v0
    s_cmp_eq_u32 s26, 1
    s_cbranch_scc1 k_padh
    s_cmp_eq_u32 s26, 0
    s_cbranch_scc0 k_pad_done
    s_and_saveexec_b64 s[54:55], vcc
    ds_write_b128 v60, v[56:59]
    s_mov_b64 exec, s[54:55]
    s_branch k_pad_done
    k_padh:
    ds_write_b128 v61, v[56:59]
    k_pad_done:
    s_waitcnt lgkmcnt(0)
    """)
    for ch in range(2):
        for c in range(4):
            o = 96 + 4 * (c % 2)
            for k in range(4): a(f"v_cvt_pk_bf16_f32 v{o+k}, v{64+12*ch+c+2*k}, v{64+12*ch+c+2*k+1}")
            a(f"ds_write_b128 v4, v[{o}:{o+3}] offset:{ch*KCHL + c*KCP}")
    a(f"""
    v_and_b32 v7, 15, v1
    v_lshrrev_b32 v2, 4, v1
    v_sub_u32 v60, 3, v7
    v_and_b32 v60, 3, v60
    v_mul_u32_u24 v61, {KCP - 2}, v60
    v_lshlrev_b32 v62, 1, v7
    v_sub_u32 v61, v61, v62
    v_lshl_add_u32 v61, v2, 4, v61
    s_mul_i32 s38, s27, {KCHL}
    s_lshl_b32 s39, s28, 8
    s_sub_u32 s38, s38, s39
    s_add_u32 s38, s38, {2*(2031 - 32*59)}
    v_add_u32 v20, s38, v61                  ; A base
    v_lshlrev_b32 v21, 5, v7
    v_lshl_add_u32 v21, v2, 4, v21
    s_mul_i32 s38, s27, {HCH}
    s_sub_u32 s38, s38, s39
    s_add_u32 s38, s38, {H_OFF + 2*(240 - 96)}
    v_add_u32 v21, s38, v21                  ; B base
    v_lshlrev_b32 v22, 5, v7
    v_lshl_add_u32 v22, v2, 3, v22
    s_lshl_b32 s38, s27, 12
    s_lshl_b32 s39, s28, 11
    s_add_u32 s38, s38, s39
    s_add_u32 s38, s38, {XR_OFF}
    v_add_u32 v23, s38, v22
    s_lshl_b32 s38, s30, 12
    s_lshl_b32 s39, s28, 11
    s_add_u32 s38, s38, s39
    s_add_u32 s38, s38, {WS_X2T}
    s_add_u32 s50, s22, s38
    s_addc_u32 s51, s23, 0
    s_lshl_b32 s43, s26, 12
    s_add_u32 s43, s43, {RED_OFF}
    v_lshlrev_b32 v24, 4, v1
    v_add_u32 v25, s43, v24
    s_xor_b32 s43, s26, 1
    s_lshl_b32 s43, s43, 12
    s_add_u32 s43, s43, {RED_OFF}
    v_add_u32 v26, s43, v24
    s_lshl_b32 s43, s27, 2
    s_add_u32 s43, s43, {MODS}
    v_mov_b32 v27, s43
    s_lshl_b32 s43, s26, 2
    s_add_u32 s43, s43, {FLG}
    v_mov_b32 v29, s43
    s_xor_b32 s43, s43, 4
    v_mov_b32 v30, s43
    v_mov_b32 v31, 0
    ds_write_b32 v29, v31
    """)
    for t in range(8):
        for r in range(4): a(f"v_mov_b32 v{VY+4*t+r}, 0")
    a("s_waitcnt lgkmcnt(0)")
    if SET == 0: a.stamp(4)
    a("s_barrier")
    if SET == 0: a.stamp(5)
    T = LdsTracker(a)
    T.issue("ds_read_b32 v28, v27", ["ga"])
    def ldA(p, r):
        off = 512 * (7 - p) + 64 * (3 - r)
        T.issue(f"ds_read_b64 v[{VA+4*p}:{VA+4*p+1}], v20 offset:{off}", [f"A{p}"])
        T.issue(f"ds_read_b64 v[{VA+4*p+2}:{VA+4*p+3}], v20 offset:{off+8}", [f"A{p}"])
    def ldB(k, r):
        off = 512 * k + 64 * (3 - r)
        T.issue(f"ds_read_b128 v[{VB+4*k}:{VB+4*k+3}], v21 offset:{off}", [f"B{k}"])
    for p in range(8):
        ldB(7 - p, 0); ldA(p, 0)
    for r in range(4):
        for p in range(8):
            for t in range(7, p - 1, -1):
                k = t - p
                T.need([f"A{p}", f"B{k}"])
                a(f"v_mfma_f32_16x16x32_bf16 v[{VY+4*t}:{VY+4*t+3}], v[{VA+4*p}:{VA+4*p+3}], v[{VB+4*k}:{VB+4*k+3}], v[{VY+4*t}:{VY+4*t+3}]")
                if t == 7 and r < 3: ldB(7 - p, r + 1)
            if r < 3: ldA(p, r + 1)
            if r == 3 and p == 4:
                for i in range(4): T.issue(f"ds_read_b64 v[{4+2*i}:{5+2*i}], v23 offset:{512*i}", ["xr"])
    T.need(["xr", "ga"])
    for i in range(4):
        a(f"v_lshlrev_b32 v{32+4*i}, 16, v{4+2*i}")
        a(f"v_and_b32 v{33+4*i}, 0xffff0000, v{4+2*i}")
        a(f"v_lshlrev_b32 v{34+4*i}, 16, v{5+2*i}")
        a(f"v_and_b32 v{35+4*i}, 0xffff0000, v{5+2*i}")
    a("s_cmp_eq_u32 s28, 1\ns_cbranch_scc1 k_hf1")
    def tail(hf):
        keep, send = 4 * hf, 4 * (1 - hf)
        for i in range(4):
            t = send + i
            a(f"ds_write_b128 v25, v[{VY+4*t}:{VY+4*t+3}] offset:{1024*i}")
        a("v_mov_b32 v31, 1\nds_write_b32 v29, v31")
        for i in range(4):
            for r in range(4): a(f"v_fma_f32 v{32+4*i+r}, v28, v{VY+4*(keep+i)+r}, v{32+4*i+r}")
        a(f"""
        k_hs{hf}:
        ds_read_b32 v31, v30
        s_waitcnt lgkmcnt(0)
        v_readfirstlane_b32 s43, v31
        s_cmp_eq_u32 s43, 1
        s_cbranch_scc0 k_hs{hf}
        """)
        for i in range(4): a(f"ds_read_b128 v[{64+4*i}:{67+4*i}], v26 offset:{1024*i}")
        for i in range(4):
            a(f"s_waitcnt lgkmcnt({3-i})")
            for r in range(4): a(f"v_fma_f32 v{32+4*i+r}, v28, v{64+4*i+r}, v{32+4*i+r}")
            a(f"v_cvt_pk_bf16_f32 v{12+2*i}, v{32+4*i}, v{33+4*i}")
            a(f"v_cvt_pk_bf16_f32 v{13+2*i}, v{34+4*i}, v{35+4*i}")
            a(f"global_store_dwordx2 v22, v[{12+2*i}:{13+2*i}], s[50:51] offset:{512*i}{X2SC}")
        a("s_endpgm")
    tail(0)
    a("k_hf1:")
    tail(1)

def grid_arrive(a, tag, t):
    assert AB_GRID % 2 == 1
    a(f"""
    s_and_b32 s34, s2, 1
    s_lshl_b32 s36, s34, 7
    v_mov_b32 v{t}, s36
    v_mov_b32 v{t+1}, 1
    s_sub_u32 s37, {(AB_GRID + 1) // 2 - 1}, s34
    s_mov_b64 exec, 1
    global_atomic_add v{t+2}, v{t}, v{t+1}, s[20:21] sc0 sc1
    s_waitcnt vmcnt(0)
    v_readfirstlane_b32 s36, v{t+2}
    s_cmp_eq_u32 s36, s37
    s_cbranch_scc0 {tag}_arrived
    v_mov_b32 v{t}, 64
    global_atomic_add v{t+2}, v{t}, v{t+1}, s[20:21] sc0 sc1
    s_waitcnt vmcnt(0)
    v_readfirstlane_b32 s36, v{t+2}
    s_cmp_eq_u32 s36, 1
    s_cbranch_scc0 {tag}_arrived
    s_mov_b64 exec, -1
    s_mov_b32 exec_hi, 0
    v_add_u32 v93, 1, v93
    global_store_dword v92, v93, s[22:23] sc1
    {tag}_arrived:
    s_mov_b64 exec, -1
    """)
def grid_wait(a, tag, t):
    a(f"""
    s_mov_b32 s60, 0
    {tag}_poll_loop:
    global_load_dword v{t}, v94, s[22:23] sc1
    s_waitcnt vmcnt(0)
    v_cmp_eq_u32 vcc, v{t}, v95
    s_cbranch_vccz {tag}_go
    s_sleep 1
    s_add_u32 s60, s60, 1
    s_cmp_lt_u32 s60, {SPIN_MAX}
    s_cbranch_scc1 {tag}_poll_loop
    {tag}_go:
    """)

def gen_pwaves(a):
    a(f"""
    pwaves:
    s_load_dwordx2 s[4:5], s[0:1], 0         ; x
    s_load_dwordx4 s[44:47], s[0:1], 112     ; c, w_mod
    s_load_dwordx4 s[20:23], s[0:1], 136
    s_load_dwordx4 s[8:11], s[0:1], 80       ; w1, b1
    s_load_dwordx2 s[48:49], s[0:1], 96
    s_setprio {PPRIO}
    v_subrev_u32 v0, 256, v0
    s_sub_u32 s26, s26, 4
    v_lshrrev_b32 v3, 6, v0
    v_lshrrev_b32 v8, 4, v1                  ; row (0..3)
    v_and_b32 v9, 15, v1                     ; 16 B chunk
    v_lshlrev_b32 v4, 10, v8
    v_lshl_add_u32 v4, v9, 4, v4
    v_lshl_add_u32 v4, v3, 8, v4
    s_lshl_b32 s31, s2, 13
    v_add_u32 v4, s31, v4
    v_add_u32 v44, 4096, v4
    s_min_u32 s32, s7, 23
    s_mul_i32 s33, s6, 24
    s_add_u32 s33, s33, s32
    v_lshrrev_b32 v5, 1, v0                  ; rg
    v_and_b32 v6, 1, v0                      ; cc
    v_mul_u32_u24 v7, {4*6144}, v5
    v_lshl_add_u32 v7, v6, 4, v7
    s_lshl_b32 s34, s33, 5
    v_add_u32 v7, s34, v7
    v_lshlrev_b32 v2, 3, v5                  ; c offset
    v_and_b32 v92, 31, v1
    v_lshlrev_b32 v92, 7, v92
    v_add_u32 v92, {WS_GO}, v92
    s_and_b32 s34, s2, 31
    s_lshl_b32 s34, s34, 7
    s_add_u32 s34, s34, {WS_GO}
    v_mov_b32 v94, s34
    s_waitcnt lgkmcnt(0)
    """)
    if SET == 1: a.stamp(0)
    a(f"""
    global_load_dwordx4 v[8:11], v4, s[4:5]
    global_load_dwordx4 v[12:15], v44, s[4:5]
    global_load_dwordx2 v[16:17], v2, s[44:45]
    """)
    for i in range(4):
        if i: a("v_add_u32 v7, 6144, v7")
        a(f"global_load_dwordx4 v[{20+4*i}:{23+4*i}], v7, s[46:47]")
    a(f"""
    global_load_dword v93, v92, s[22:23] sc1
    global_load_dword v95, v94, s[22:23] sc1
    v_mov_b32 v38, 0x3f803f80
    v_lshrrev_b32 v40, 4, v1
    v_mul_u32_u24 v39, 320, v40
    v_and_b32 v41, 15, v1
    v_lshl_add_u32 v39, v41, 4, v39
    s_mul_i32 s34, s26, 2560
    s_add_u32 s34, s34, {LNT}
    v_add_u32 v39, s34, v39
    v_lshrrev_b32 v47, 2, v41
    v_mul_u32_u24 v47, 320, v47
    v_and_b32 v46, 3, v41
    v_lshl_add_u32 v47, v46, 3, v47
    v_lshl_add_u32 v47, v40, 5, v47
    v_add_u32 v47, s34, v47
    v_lshl_add_u32 v46, v3, 7, v1
    v_lshlrev_b32 v46, 4, v46
    s_mul_i32 s34, s2, {XBS}
    s_add_u32 s34, s34, {WS_XB}
    v_add_u32 v46, s34, v46
    v_lshlrev_b32 v45, 3, v40
    s_lshl_b32 s34, s26, 6
    s_add_u32 s34, s34, {STP}
    v_add_u32 v45, s34, v45
    """)
    for r in range(2):
        b = 8 + 4 * r
        a(f"s_waitcnt vmcnt({8 - r})")
        a(f"ds_write_b128 v39, v[{b}:{b+3}] offset:{1280*r}")
        a(f"v_dot2_f32_bf16 v{72+2*r}, v{b}, v38, 0")
        a(f"v_dot2_f32_bf16 v{73+2*r}, v{b}, v{b}, 0")
        for k in range(1, 4):
            a(f"v_dot2_f32_bf16 v{72+2*r}, v{b+k}, v38, v{72+2*r}")
            a(f"v_dot2_f32_bf16 v{73+2*r}, v{b+k}, v{b+k}, v{73+2*r}")
    a("""
    s_waitcnt lgkmcnt(0)
    ds_read_b64_tr_b16 v[48:49], v47
    ds_read_b64_tr_b16 v[50:51], v47 offset:1280
    ds_read_b64_tr_b16 v[52:53], v47 offset:128
    ds_read_b64_tr_b16 v[54:55], v47 offset:1408
    """)
    if SET == 1: a.stamp(1)
    a("s_waitcnt vmcnt(6)")
    for i in range(4):
        src = 16 + i // 2
        a(f"v_lshlrev_b32 v{56+i}, 16, v{src}" if i % 2 == 0 else f"v_and_b32 v{56+i}, 0xffff0000, v{src}")
    for i in range(4): a(f"v_mul_f32 v{60+i}, {fx(-1.4426950408889634)}, v{56+i}")
    for i in range(4): a(f"v_exp_f32 v{60+i}, v{60+i}")
    dpps = ["row_shr:1", "row_shr:2", "row_shr:4", "row_shr:8", "row_bcast:15 row_mask:0xa", "row_bcast:31 row_mask:0xc"]
    def dpp4(d):
        m = "" if "row_mask" in d else " row_mask:0xf"
        for r in range(72, 76): a(f"v_add_f32_dpp v{r}, v{r}, v{r} {d}{m} bank_mask:0xf")
    dpp4(dpps[0])
    for i in range(4): a(f"v_add_f32 v{60+i}, 1.0, v{60+i}")
    dpp4(dpps[1])
    for i in range(4): a(f"v_rcp_f32 v{60+i}, v{60+i}")
    dpp4(dpps[2])
    for i in range(4): a(f"v_mul_f32 v{56+i}, v{56+i}, v{60+i}")
    dpp4(dpps[3])
    for i in range(4):
        a(f"v_cvt_pk_bf16_f32 v{60+i}, v{56+i}, 0")
        a(f"v_cvt_pk_bf16_f32 v{76+i}, 0, v{56+i}")
    a(f"""
    s_waitcnt lgkmcnt(0)
    global_store_dwordx4 v46, v[48:51], s[22:23] sc1
    global_store_dwordx4 v46, v[52:55], s[22:23] offset:1024 sc1
    v_cmp_eq_u32 vcc, 15, v41
    s_and_saveexec_b64 s[54:55], vcc
    ds_write_b64 v45, v[72:73]
    ds_write_b64 v45, v[74:75] offset:32
    s_mov_b64 exec, s[54:55]
    """)
    for i in range(4):
        a(f"s_waitcnt vmcnt({7 - i})")
        for m in range(4):
            c0 = "0" if i == 0 else f"v{64+2*m}"; c1 = "0" if i == 0 else f"v{65+2*m}"
            a(f"v_dot2_f32_bf16 v{64+2*m}, v{20+4*i+m}, v{60+i}, {c0}")
            a(f"v_dot2_f32_bf16 v{65+2*m}, v{20+4*i+m}, v{76+i}, {c1}")
    a("s_nop 2")
    for d in ["row_shr:2", "row_shr:4", "row_shr:8"]:
        for r in range(64, 72): a(f"v_add_f32_dpp v{r}, v{r}, v{r} {d} row_mask:0xf bank_mask:0xf")
    a(f"""
    v_lshrrev_b32 v4, 4, v0
    v_mul_u32_u24 v4, 80, v4
    v_lshl_add_u32 v4, v6, 5, v4
    v_add_u32 v4, {MODS}, v4
    v_and_b32 v5, 15, v0
    v_cmp_lt_u32 vcc, 13, v5
    v_lshlrev_b32 v5, 2, v5
    v_add_u32 v5, {MODS}, v5
    s_and_saveexec_b64 s[54:55], vcc
    ds_write_b128 v4, v[64:67]
    ds_write_b128 v4, v[68:71] offset:16
    s_mov_b64 exec, s[54:55]
    s_waitcnt lgkmcnt(0)
    """)
    if SET == 1: a.stamp(2)
    lds_arrive(a, 0, 36); lds_wait(a, 0, 4, 36, "p1")
    for i in range(16): a(f"ds_read_b32 v{20+i}, v5 offset:{80*i}")
    a(f"""
    v_and_b32 v58, 7, v0
    v_lshlrev_b32 v59, 3, v58
    v_add_u32 v59, {STP}, v59
    ds_read_b64 v[48:49], v59
    ds_read_b64 v[50:51], v59 offset:64
    ds_read_b64 v[52:53], v59 offset:128
    ds_read_b64 v[54:55], v59 offset:192
    v_lshlrev_b32 v58, 2, v58
    s_lshl_b32 s34, s2, 5
    s_add_u32 s34, s34, {WS_ST1}
    v_add_u32 v58, s34, v58
    s_waitcnt lgkmcnt(0)
    v_add_f32 v48, v48, v50
    v_add_f32 v49, v49, v51
    v_add_f32 v52, v52, v54
    v_add_f32 v53, v53, v55
    v_add_f32 v56, v48, v52
    v_add_f32 v57, v49, v53
    v_mul_f32 v56, {fx(1.0/512)}, v56        ; mean
    v_mul_f32 v57, {fx(1.0/512)}, v57
    v_fma_f32 v57, -v56, v56, v57
    v_max_f32 v57, 0, v57
    v_add_f32 v57, {fx(1e-5)}, v57
    v_rsq_f32 v57, v57
    v_cmp_gt_u32 vcc, 8, v0
    v_mul_f32 v56, -v56, v57
    v_cvt_pk_bf16_f32 v56, v57, v56          ; (r, -mean*r)
    s_and_saveexec_b64 s[54:55], vcc
    s_cbranch_execz p_nostat
    global_store_dword v58, v56, s[22:23] sc1
    p_nostat:
    s_mov_b64 exec, s[54:55]
    """)
    for st in (1, 2, 4, 8):
        for i in range(0, 16, 2 * st): a(f"v_add_f32 v{20+i}, v{20+i}, v{20+i+st}")
    a(f"""
    v_cvt_pk_bf16_f32 v20, v20, v20
    v_lshlrev_b32 v20, 16, v20
    s_lshl_b32 s34, s33, 7
    s_add_u32 s34, s34, {WS_MODP}
    v_lshlrev_b32 v4, 2, v0
    v_add_u32 v4, s34, v4
    s_cmp_lt_u32 s7, 24
    s_cselect_b32 s34, 16, 0
    v_cmp_gt_u32 vcc, s34, v0
    s_and_saveexec_b64 s[54:55], vcc
    s_cbranch_execz p_nomod
    global_store_dword v4, v20, s[22:23] sc1
    p_nomod:
    s_mov_b64 exec, s[54:55]
    """)
    a("s_waitcnt vmcnt(0)")
    lds_arrive(a, 1, 36)
    if SET == 1: a.stamp(3)
    a(f"""
    """)
    a("s_cmp_eq_u32 s26, 0\ns_cbranch_scc0 p_wait_release")
    lds_wait(a, 1, 4, 36, "p2")
    grid_arrive(a, "p", 4); grid_wait(a, "p", 7)
    lds_arrive(a, 4, 36)
    a("s_setprio 0\ns_branch p_released\np_wait_release:\ns_setprio 0")
    lds_wait(a, 4, 1, 36, "p3", 2)
    a("p_released:")
    if SET == 1: a.stamp(4)
    a(f"""
    v_lshrrev_b32 v5, 1, v0                  ; m
    v_and_b32 v4, 1, v0                      ; ch
    v_lshlrev_b32 v6, 13, v5
    v_lshl_add_u32 v6, v4, 4, v6
    s_lshl_b32 s38, s29, 4
    s_add_u32 s38, s38, {WS_XB}
    v_add_u32 v6, s38, v6
    global_load_dwordx4 v[48:51], v6, s[22:23] sc1               ; x, block m
    v_add_u32 v6, {128*XBS}, v6
    global_load_dwordx4 v[52:55], v6, s[22:23] sc1               ; x, block m+128
    v_lshlrev_b32 v7, 5, v5
    v_add_u32 v7, {WS_ST1}, v7
    global_load_dwordx4 v[16:19], v7, s[22:23] sc1
    global_load_dwordx4 v[20:23], v7, s[22:23] offset:16 sc1
    v_add_u32 v7, 4096, v7
    global_load_dwordx4 v[24:27], v7, s[22:23] sc1               ; block m+128
    global_load_dwordx4 v[28:31], v7, s[22:23] offset:16 sc1
    s_lshr_b32 s38, s29, 4
    s_lshl_b32 s38, s38, 7
    s_and_b32 s39, s29, 15
    s_lshl_b32 s39, s39, 2
    s_add_u32 s38, s38, s39
    s_add_u32 s38, s38, {WS_MODP}
    v_lshl_add_u32 v7, v4, 2, s38
    global_load_dword v32, v7, s[22:23] sc1                      ; sa
    v_add_u32 v7, 4096, v7
    global_load_dword v33, v7, s[22:23] sc1                      ; ca
    v_add_u32 v7, 4096, v7
    global_load_dword v34, v7, s[22:23] sc1                      ; ga
    v_mul_u32_u24 v42, {HCH}, v4
    v_lshl_add_u32 v42, v5, 4, v42
    v_add_u32 v42, {H_OFF + 512}, v42
    v_lshlrev_b32 v43, 12, v4
    v_lshl_add_u32 v43, v5, 4, v43
    v_add_u32 v43, {XR_OFF}, v43
    """)
    def hpart(extra):
        a(f"s_waitcnt vmcnt({7 + extra})")
        a("ds_write_b128 v43, v[48:51]\nds_write_b128 v43, v[52:55] offset:2048".replace("\\n", "\n"))
        for blk in range(2):
            for e in range(8):
                src = 48 + 4 * blk + e // 2
                a(f"v_lshlrev_b32 v{64+8*blk+e}, 16, v{src}" if e % 2 == 0 else f"v_and_b32 v{64+8*blk+e}, 0xffff0000, v{src}")
        a(f"s_waitcnt vmcnt({3 + extra})")
        for blk in range(2):
            for e in range(8):
                a(f"v_lshlrev_b32 v{80}, 16, v{16+8*blk+e}" if False else f"v_lshlrev_b32 v{36+(e%4)}, 16, v{16+8*blk+e}")
                a(f"v_and_b32 v{16+8*blk+e}, 0xffff0000, v{16+8*blk+e}")
                a(f"v_fma_f32 v{64+8*blk+e}, v{64+8*blk+e}, v{36+(e%4)}, v{16+8*blk+e}")
        a(f"s_waitcnt vmcnt({extra})")
    hpart(0)
    a(f"""
    v_add_f32 v33, 1.0, v33
    v_cvt_pk_bf16_f32 v33, v33, v33
    v_lshlrev_b32 v35, 2, v4
    v_add_u32 v35, {MODS}, v35
    v_lshlrev_b32 v33, 16, v33               ; gamma
    ds_write_b32 v35, v34
    """)
    for blk in range(2):
        for e in range(8): a(f"v_fma_f32 v{64+8*blk+e}, v{64+8*blk+e}, v33, v32")
        for p in range(4): a(f"v_cvt_pk_bf16_f32 v{8+4*blk+p}, v{64+8*blk+2*p}, v{65+8*blk+2*p}")
        a(f"ds_write_b128 v42, v[{8+4*blk}:{11+4*blk}] offset:{2048*blk}")
    a("s_waitcnt lgkmcnt(0)")
    if SET == 1: a.stamp(5)
    a("s_barrier")
    a(f"""
    s_lshr_b32 s47, s2, 3
    s_mul_i32 s47, s47, 44032
    v_lshlrev_b32 v8, 6, v0
    v_add_u32 v8, s47, v8
    global_load_dword v9, v8, s[48:49]
    v_add_u32 v8, 16384, v8
    global_load_dword v10, v8, s[48:49]
    s_add_u32 s47, s47, {32768 + 175*64}
    v_add_u32 v8, 16384, v8
    v_min_u32 v8, s47, v8
    global_load_dword v11, v8, s[48:49]
    s_endpgm
    """)

def gen_w1p(a):
    b = Asm()
    g3b.gen_w1p(b)
    L = b.l
    mod_loads = [l for l in L if "s[12:13]" in l and "global_load" in l]
    assert len(mod_loads) == 4
    L2 = [l for l in L if l not in mod_loads]
    k0 = next(i for i, l in enumerate(L2) if "s_addc_u32 s13, s21, 0" in l)
    k = next(i for i, l in enumerate(L2) if "s_waitcnt vmcnt(9)" in l)
    p = Asm()
    p(f"""
    s_load_dwordx2 s[24:25], s[0:1], 136
    v_and_b32 v1, 63, v0
    v_lshrrev_b32 v2, 6, v0
    v_and_b32 v92, 31, v1
    v_readfirstlane_b32 s26, v2
    v_lshlrev_b32 v92, 7, v92
    v_add_u32 v92, {WS_GO}, v92
    s_and_b32 s34, s2, 31
    s_lshl_b32 s34, s34, 7
    s_add_u32 s34, s34, {WS_GO}
    v_mov_b32 v94, s34
    s_waitcnt lgkmcnt(0)
    s_mov_b32 s22, s20
    s_mov_b32 s23, s21
    s_mov_b32 s20, s24
    s_mov_b32 s21, s25
    s_cmp_eq_u32 s26, 0
    s_cbranch_scc0 w_noarr
    global_load_dword v93, v92, s[22:23] sc1
    global_load_dword v95, v94, s[22:23] sc1
    s_waitcnt vmcnt(0)
    """)
    grid_arrive(p, "w", 96)
    p("w_noarr:")
    q = Asm()
    q("s_cmp_eq_u32 s26, 0\ns_cbranch_scc0 w_released")
    grid_wait(q, "w", 96)
    q(f"""
    w_released:
    s_barrier
    s_mov_b32 s20, s22
    s_mov_b32 s21, s23
    v_lshrrev_b32 v6, 1, v3
    v_lshlrev_b32 v6, 7, v6
    v_and_b32 v7, 1, v3
    v_lshl_add_u32 v6, v7, 5, v6
    v_add_u32 v6, {WS_MODP + 96*128}, v6
    v_add_u32 v7, 4096, v6
    global_load_dwordx4 v[8:11], v6, s[20:21] sc1
    global_load_dwordx4 v[12:15], v6, s[20:21] offset:16 sc1
    global_load_dwordx4 v[16:19], v7, s[20:21] sc1
    global_load_dwordx4 v[20:23], v7, s[20:21] offset:16 sc1
    s_waitcnt vmcnt(0)
    """)
    a.l += L2[:k0+1] + p.l + L2[k0+1:k] + q.l + L2[k+1:]

def gen_AB(a):
    a(f"""
    s_cmp_ge_u32 s2, {NMAIN}
    s_cbranch_scc1 ab_other
    v_lshrrev_b32 v3, 6, v0
    v_and_b32 v1, 63, v0
    s_and_b32 s6, s2, 7
    s_lshr_b32 s7, s2, 3
    v_readfirstlane_b32 s26, v3              ; wave
    v_lshlrev_b32 v4, 2, v0
    v_add_u32 v4, {CNT}, v4
    v_mov_b32 v5, 0
    v_cmp_gt_u32 vcc, 8, v0
    s_and_saveexec_b64 s[54:55], vcc
    ds_write_b32 v4, v5
    s_mov_b64 exec, s[54:55]
    s_lshl_b32 s29, s6, 6
    s_lshl_b32 s30, s7, 1
    s_add_u32 s29, s29, s30
    s_waitcnt lgkmcnt(0)
    s_barrier
    s_cmp_ge_u32 s26, 4
    s_cbranch_scc1 pwaves
    """)
    gen_kwaves(a)
    gen_pwaves(a)
    a(f"""
    ab_other:
    s_cmp_lt_u32 s2, {AB_GRID}
    s_cbranch_scc0 ab_end
    v_cmp_gt_u32 vcc, 256, v0
    s_cbranch_vccnz w1p
    ab_end:
    s_endpgm
    """)
    gen_w1p(a)

if __name__ == "__main__":
    ks = [("convab_kernel", gen_AB, 128, AB_GRID, 512, AB_LDS),
          ("gemm1_kernel", gen_C, 176, C_GRID, 512, C_LDS),
          ("gemm2_kernel", gen_D, 128, D_GRID, 512, D_LDS)]
    s = build(ks)
    path = sys.argv[1] if len(sys.argv) > 1 else "out.s"
    open(path, "w").write(s)
    print("wrote", path, len(s))
```

```python
import sys, os
os.environ["MODP"] = "1"
import g3
from g3 import *
import g3b
from g3b import gen_C, gen_D, C_GRID, C_LDS, D_GRID, D_LDS, KCP, KCHL

NMAIN, NW1 = 256, 43
TCH = 57 * TROW
H_OFF = 2 * KCHL
HCH = 4608
XR_OFF = H_OFF + 2 * HCH
RED_OFF = XR_OFF + 8192
LNT = 62016
KC2 = LNT + 4 * 2560
KCS = 776 * 4
MODS = KC2 + 2 * KCS
STP = MODS + 16 * 80
FLG = STP + 256
CNT = FLG + 16
AB_LDS = CNT + 32
NW1 = 86
AB_GRID = NMAIN + NW1
XBS = 8192
WS_MODP = 0x10000
WS_GO = 0x20000
WS_XB = WS_XT
SET = int(os.environ.get("STAMPSET", 0))
PPRIO = int(os.environ.get("PPRIO", 1))
X2SC = os.environ.get("X2SC", "")
SPIN_MAX = 0x20000

def lds_arrive(a, k, v):
    a(f"""
    v_mov_b32 v{v}, {CNT + 4*k}
    v_mov_b32 v{v+1}, 1
    s_mov_b64 exec, 1
    ds_add_u32 v{v}, v{v+1}
    s_mov_b64 exec, -1
    """)
def lds_wait(a, k, n, v, tag, slp=1):
    a(f"""
    v_mov_b32 v{v}, {CNT + 4*k}
    lw_{tag}:
    ds_read_b32 v{v+1}, v{v}
    s_waitcnt lgkmcnt(0)
    v_readfirstlane_b32 s62, v{v+1}
    s_cmp_ge_u32 s62, {n}
    s_cbranch_scc1 lw_{tag}_done
    s_sleep {slp}
    s_branch lw_{tag}
    lw_{tag}_done:
    """)

def gen_kwaves(a):
    VA, VB, VY = 32, 64, 96
    a(f"""
    kwaves:
    s_load_dwordx4 s[8:11], s[0:1], 8
    s_load_dwordx4 s[12:15], s[0:1], 24
    s_load_dwordx4 s[16:19], s[0:1], 40
    s_load_dwordx4 s[40:43], s[0:1], 56
    s_load_dwordx2 s[22:23], s[0:1], 144     ; ws
    s_lshr_b32 s27, s26, 1                   ; ch
    s_and_b32 s28, s26, 1                    ; hf
    s_add_u32 s30, s29, s27                  ; d
    s_lshl_b32 s34, s30, 8
    s_lshl_b32 s35, s28, 7
    s_add_u32 s34, s34, s35
    v_lshl_add_u32 v36, v1, 1, s34
    s_lshl_b32 s35, s29, 1
    s_waitcnt lgkmcnt(0)
    """)
    if SET == 0: a.stamp(0)
    for i, sp in enumerate((8, 10, 12, 14, 16, 18)):
        a(f"global_load_ushort v{40+i}, v36, s[{sp}:{sp+1}]")
    a("s_load_dword s24, s[40:41], s35\ns_load_dword s25, s[42:43], s35")
    a("v_lshlrev_b32 v37, 3, v0\nv_sub_u32 v37, 2047, v37")
    for e in range(11): a(f"v_subrev_u32 v{64+e}, {e}, v37")
    for e in range(11): a(f"v_max_i32 v{80+e}, 0, v{64+e}")
    for e in range(11): a(f"v_cvt_f32_u32 v{112+e}, v{80+e}")
    a("v_mov_b32 v123, 0")
    for p in range(6): a(f"v_cvt_pk_bf16_f32 v{96+p}, v{112+2*p}, v{113+2*p}")
    a(f"s_mov_b32 s36, {KC2 - 0x10A00}")
    for e in range(11):
        p = e // 2
        a(f"v_and_b32 v{112+e}, 0xffff, v{96+p}" if e % 2 == 0 else f"v_lshrrev_b32 v{112+e}, 16, v{96+p}")
    for e in range(11): a(f"v_lshl_add_u32 v{112+e}, v{112+e}, 2, s36")
    a(f"v_mov_b32 v104, {KC2 + 768*4}")
    for e in range(11):
        a(f"v_cmp_gt_u32 vcc, 128, v{80+e}")
        a(f"v_lshlrev_b32 v{80+e}, 2, v{80+e}")
        a(f"v_add_u32 v{80+e}, {KC2}, v{80+e}")
        a(f"v_cndmask_b32 v{112+e}, v{112+e}, v{80+e}, vcc")
        if e >= 8:
            a(f"v_cmp_gt_i32 vcc, 0, v{64+e}")
            a("s_nop 1")
            a(f"v_cndmask_b32 v{112+e}, v{112+e}, v104, vcc")
    a(f"""
    s_waitcnt lgkmcnt(0)
    s_lshl_b32 s36, s27, 4
    s_lshr_b32 s24, s24, s36
    s_lshl_b32 s24, s24, 16                  ; log_dt[d]
    s_lshr_b32 s25, s25, s36
    s_lshl_b32 s25, s25, 16                  ; Dskip[d]
    v_mov_b32 v5, s24
    v_mul_f32 v6, 0x3fb8aa3b, v5
    s_mov_b32 s36, 0x3fb8aa3b
    v_fma_f32 v7, v5, s36, -v6
    v_fmac_f32 v7, 0x32a5705f, v5
    v_exp_f32 v6, v6
    v_mul_f32 v7, {fx(0.6931471805599453)}, v7
    v_fmac_f32 v6, v6, v7
    v_cvt_pk_bf16_f32 v6, v6, v6
    v_lshlrev_b32 v6, 16, v6                 ; dt
    s_mul_i32 s36, s27, {TCH}
    s_lshl_b32 s37, s28, 8
    s_add_u32 s36, s36, s37
    v_lshl_add_u32 v2, v1, 2, s36
    v_mov_b32 v4, 0
    v_mov_b32 v5, {KC2 + 768*4}
    ds_write_b32 v5, v4
    ds_write_b32 v5, v4 offset:{KCS}
    s_waitcnt vmcnt(4)
    v_lshlrev_b32 v40, 16, v40
    v_lshlrev_b32 v41, 16, v41
    v_mul_f32 v10, v6, v40
    v_mul_f32 v11, v6, v41
    v_mul_f32 v10, 0x3fb8aa3b, v10
    v_mul_f32 v11, {fx(0.15915494309189535)}, v11
    """)
    if SET == 0: a.stamp(1)
    def direct(dst, l, t):
        a(f"""
        v_mul_f32 v{t}, {fx(float(l))}, v10
        v_mul_f32 v{t+1}, {fx(float(l))}, v11
        v_exp_f32 v{t}, v{t}
        v_fract_f32 v{t+1}, v{t+1}
        v_cos_f32 v{dst}, v{t+1}
        v_sin_f32 v{dst+1}, v{t+1}
        s_nop 0
        v_mul_f32 v{dst}, v{t}, v{dst}
        v_mul_f32 v{dst+1}, v{t}, v{dst+1}
        """)
    tmpw = [0]
    def wr(row, src, neg=False):
        tmp = 62 + (tmpw[0] % 2); tmpw[0] += 1
        a(f"v_cvt_pk_bf16_f32 v{tmp}, v{src}, {'-' if neg else ''}v{src+1}")
        a(f"ds_write_b32 v2, v{tmp} offset:{row*TROW}")
    E = [None, 64, 66, 68, 70, 72, 74, 76]
    E8, E128, X, Y2, Q, R = 78, 80, 82, 84, 86, 88
    S = [12, 14, 16, 18]
    T0, T1, T2 = 28, 30, 32
    direct(E[1], 1, 28); direct(E128, 128, 30)
    a("""
    s_waitcnt vmcnt(0)
    v_lshlrev_b32 v42, 16, v42
    v_lshlrev_b32 v43, 16, v43
    v_lshlrev_b32 v44, 16, v44
    v_lshlrev_b32 v45, 16, v45
    v_mul_f32 v42, v6, v42
    v_mul_f32 v43, v6, v43
    """)
    cmul(a, Q, 44, 42, T2)
    a("v_mov_b32 v62, 0x3f80\nds_write_b32 v2, v62 offset:0"); tmpw[0] = 1
    cmul(a, E[2], E[1], E[1], T0); cmul(a, X, E128, E128, T1)
    wr(1, E[1]); wr(8, E128); wr(QROW, Q, True)
    cmul(a, E[4], E[2], E[2], T0); cmul(a, E[3], E[2], E[1], T1); cmul(a, R, X, X, T2)
    wr(2, E[2]); wr(16, X)
    cmul(a, E8, E[4], E[4], T0); cmul(a, E[5], E[4], E[1], T1); cmul(a, E[6], E[3], E[3], T2)
    wr(3, E[3]); wr(4, E[4]); wr(24, R)
    cmul(a, E[7], E[4], E[3], T0); cmul(a, Y2, R, E[4], T1)
    cmul(a, S[1], X, E[2], T2); cmul(a, S[2], X, E[4], T0); cmul(a, S[3], X, E[6], T1)
    wr(5, E[5]); wr(6, E[6]); wr(7, E[7]); wr(25, Y2)
    cmul(a, S[0], X, E128, T2)
    a(f"v_mov_b64 v[{X}:{X+1}], v[{R}:{R+1}]")
    cmul(a, R, R, R, T0)
    wr(17, S[1]); wr(18, S[2]); wr(19, S[3]); wr(20, S[0])
    for r in range(1, 4): cmul(a, S[r], S[r], E128, (T0, T1, T2)[r % 3])
    for r in range(1, 4): wr(20 + r, S[r])
    wr(32, R)
    Z = S[0]
    for i in range(1, 16):
        cmul(a, Q, Q, E8, T0)
        if i <= 8: cmul(a, R, R, E128, T1)
        if i <= 7: cmul(a, Z, E128, E[i], T2)
        if i <= 3:
            cmul(a, X, X, E128, 34); cmul(a, Y2, Y2, E128, 36)
        wr(QROW + i, Q, True)
        if i <= 8: wr(32 + i, R)
        if i <= 7: wr(8 + i, Z)
        if i <= 3:
            wr(24 + 2 * i, X); wr(25 + 2 * i, Y2)
    a(f"""
    v_and_b32 v4, 15, v0
    v_bfe_u32 v5, v0, 4, 2
    v_lshlrev_b32 v7, 4, v5
    v_mul_u32_u24 v8, {TROW}, v4
    v_add_u32 v8, v8, v7
    s_mul_i32 s36, s27, {TCH}
    v_add_u32 v8, s36, v8
    v_add_u32 v9, {QROW*TROW}, v8            ; B address
    s_mul_i32 s37, s28, {32*TROW}
    v_add_u32 v12, s37, v8
    s_mul_i32 s37, s28, {16*TROW}
    s_add_u32 s37, s37, {16*TROW}
    v_add_u32 v13, s37, v8
    """)
    for r in range(20, 36): a(f"v_mov_b32 v{r}, 0")
    a(f"""
    s_mul_i32 s36, s27, {KCS}
    s_add_u32 s36, s36, {KC2}
    s_cmp_eq_u32 s28, 1
    s_cbranch_scc1 k_t2
    v_and_b32 v7, 1, v5
    v_lshlrev_b32 v7, 2, v7
    v_lshrrev_b32 v14, 1, v5
    v_lshl_add_u32 v7, v14, 7, v7
    v_lshl_add_u32 v7, v4, 3, v7
    v_lshl_add_u32 v14, v7, 2, s36
    v_add_u32 v15, 4, v14
    v_add_u32 v16, 8, v14
    v_add_u32 v17, 12, v14
    v_cmp_gt_u32 vcc, 2, v5
    v_lshlrev_b32 v7, 6, v5
    v_add_u32 v7, 256, v7
    v_lshlrev_b32 v40, 2, v4
    v_lshlrev_b32 v41, 1, v4
    v_cndmask_b32 v40, v41, v40, vcc
    v_add_u32 v7, v7, v40
    v_lshl_add_u32 v40, v7, 2, s36
    v_add_u32 v41, 4, v40
    v_mov_b32 v42, 128
    v_cndmask_b32 v42, v42, 8, vcc
    v_add_u32 v42, v40, v42
    v_add_u32 v43, 4, v42
    s_branch k_addr
    k_t2:
    v_lshl_add_u32 v7, v5, 6, v4
    v_lshl_add_u32 v14, v7, 2, s36
    v_add_u32 v14, {512*4}, v14
    v_add_u32 v15, 64, v14
    v_add_u32 v16, 128, v14
    v_add_u32 v17, 192, v14
    v_mov_b32 v40, v14
    v_mov_b32 v41, v15
    v_mov_b32 v42, v16
    v_mov_b32 v43, v17
    k_addr:
    v_cmp_eq_u32 vcc, 0, v1
    s_cmp_eq_u32 s28, 0
    s_cselect_b32 s25, s25, 0
    v_mov_b32 v7, s25
    v_cndmask_b32 v7, 0, v7, vcc
    s_waitcnt lgkmcnt(0)
    """)
    if SET == 0: a.stamp(2)
    lds_arrive(a, 2, 38); lds_wait(a, 2, 4, 38, "k1")
    def rd(s):
        o = 64 + 12 * (s % 4)
        a(f"ds_read_b128 v[{o}:{o+3}], v9 offset:{64*s}")
        a(f"ds_read_b128 v[{o+4}:{o+7}], v12 offset:{64*s}")
        a(f"ds_read_b128 v[{o+8}:{o+11}], v13 offset:{64*s}")
    for s in range(4): rd(s)
    for s in range(8):
        o = 64 + 12 * (s % 4); p = s % 2
        a(f"s_waitcnt lgkmcnt({9 if s < 5 else 3*(7-s)})")
        a(f"v_mfma_f32_16x16x32_bf16 v[{20+8*p}:{23+8*p}], v[{o+4}:{o+7}], v[{o}:{o+3}], v[{20+8*p}:{23+8*p}]")
        a(f"v_mfma_f32_16x16x32_bf16 v[{24+8*p}:{27+8*p}], v[{o+8}:{o+11}], v[{o}:{o+3}], v[{24+8*p}:{27+8*p}]")
        if s < 4: rd(s + 4)
    a("s_nop 7")
    for r in range(8): a(f"v_add_f32 v{20+r}, v{20+r}, v{28+r}")
    a(f"""
    v_add_f32 v20, v20, v7
    ds_write_b32 v14, v20
    ds_write_b32 v15, v21
    ds_write_b32 v16, v22
    ds_write_b32 v17, v23
    ds_write_b32 v40, v24
    ds_write_b32 v41, v25
    ds_write_b32 v42, v26
    ds_write_b32 v43, v27
    """)
    lds_arrive(a, 3, 38); lds_wait(a, 3, 4, 38, "k2")
    if SET == 0: a.stamp(3)
    for ch in range(2):
        for e in range(11): a(f"ds_read_b32 v{64+12*ch+e}, v{112+e} offset:{ch*KCS}")
    a(f"""
    v_lshlrev_b32 v4, 4, v0                  ; tid*16
    v_mov_b32 v56, 0
    v_mov_b32 v57, 0
    v_mov_b32 v58, 0
    v_mov_b32 v59, 0
    v_lshrrev_b32 v60, 1, v0
    v_mul_u32_u24 v60, {KCP}, v60
    v_and_b32 v61, 1, v0
    v_lshl_add_u32 v60, v61, 4, v60
    v_add_u32 v60, 4096, v60
    v_bfe_u32 v61, v0, 5, 1
    v_mul_u32_u24 v61, {HCH}, v61
    v_and_b32 v62, 31, v0
    v_lshl_add_u32 v61, v62, 4, v61
    v_add_u32 v61, {H_OFF}, v61
    v_cmp_gt_u32 vcc, 16, v0
    s_cmp_eq_u32 s26, 1
    s_cbranch_scc1 k_padh
    s_cmp_eq_u32 s26, 0
    s_cbranch_scc0 k_pad_done
    s_and_saveexec_b64 s[54:55], vcc
    ds_write_b128 v60, v[56:59]
    s_mov_b64 exec, s[54:55]
    s_branch k_pad_done
    k_padh:
    ds_write_b128 v61, v[56:59]
    k_pad_done:
    s_waitcnt lgkmcnt(0)
    """)
    for ch in range(2):
        for c in range(4):
            o = 96 + 4 * (c % 2)
            for k in range(4): a(f"v_cvt_pk_bf16_f32 v{o+k}, v{64+12*ch+c+2*k}, v{64+12*ch+c+2*k+1}")
            a(f"ds_write_b128 v4, v[{o}:{o+3}] offset:{ch*KCHL + c*KCP}")
    a(f"""
    v_and_b32 v7, 15, v1
    v_lshrrev_b32 v2, 4, v1
    v_sub_u32 v60, 3, v7
    v_and_b32 v60, 3, v60
    v_mul_u32_u24 v61, {KCP - 2}, v60
    v_lshlrev_b32 v62, 1, v7
    v_sub_u32 v61, v61, v62
    v_lshl_add_u32 v61, v2, 4, v61
    s_mul_i32 s38, s27, {KCHL}
    s_lshl_b32 s39, s28, 8
    s_sub_u32 s38, s38, s39
    s_add_u32 s38, s38, {2*(2031 - 32*59)}
    v_add_u32 v20, s38, v61                  ; A base
    v_lshlrev_b32 v21, 5, v7
    v_lshl_add_u32 v21, v2, 4, v21
    s_mul_i32 s38, s27, {HCH}
    s_sub_u32 s38, s38, s39
    s_add_u32 s38, s38, {H_OFF + 2*(240 - 96)}
    v_add_u32 v21, s38, v21                  ; B base
    v_lshlrev_b32 v22, 5, v7
    v_lshl_add_u32 v22, v2, 3, v22
    s_lshl_b32 s38, s27, 12
    s_lshl_b32 s39, s28, 11
    s_add_u32 s38, s38, s39
    s_add_u32 s38, s38, {XR_OFF}
    v_add_u32 v23, s38, v22
    s_lshl_b32 s38, s30, 12
    s_lshl_b32 s39, s28, 11
    s_add_u32 s38, s38, s39
    s_add_u32 s38, s38, {WS_X2T}
    s_add_u32 s50, s22, s38
    s_addc_u32 s51, s23, 0
    s_lshl_b32 s43, s26, 12
    s_add_u32 s43, s43, {RED_OFF}
    v_lshlrev_b32 v24, 4, v1
    v_add_u32 v25, s43, v24
    s_xor_b32 s43, s26, 1
    s_lshl_b32 s43, s43, 12
    s_add_u32 s43, s43, {RED_OFF}
    v_add_u32 v26, s43, v24
    s_lshl_b32 s43, s27, 2
    s_add_u32 s43, s43, {MODS}
    v_mov_b32 v27, s43
    s_lshl_b32 s43, s26, 2
    s_add_u32 s43, s43, {FLG}
    v_mov_b32 v29, s43
    s_xor_b32 s43, s43, 4
    v_mov_b32 v30, s43
    v_mov_b32 v31, 0
    ds_write_b32 v29, v31
    """)
    for t in range(8):
        for r in range(4): a(f"v_mov_b32 v{VY+4*t+r}, 0")
    a("s_waitcnt lgkmcnt(0)")
    if SET == 0: a.stamp(4)
    a("s_barrier")
    if SET == 0: a.stamp(5)
    T = LdsTracker(a)
    T.issue("ds_read_b32 v28, v27", ["ga"])
    def ldA(p, r):
        off = 512 * (7 - p) + 64 * (3 - r)
        T.issue(f"ds_read_b64 v[{VA+4*p}:{VA+4*p+1}], v20 offset:{off}", [f"A{p}"])
        T.issue(f"ds_read_b64 v[{VA+4*p+2}:{VA+4*p+3}], v20 offset:{off+8}", [f"A{p}"])
    def ldB(k, r):
        off = 512 * k + 64 * (3 - r)
        T.issue(f"ds_read_b128 v[{VB+4*k}:{VB+4*k+3}], v21 offset:{off}", [f"B{k}"])
    for p in range(8):
        ldB(7 - p, 0); ldA(p, 0)
    for r in range(4):
        for p in range(8):
            for t in range(7, p - 1, -1):
                k = t - p
                T.need([f"A{p}", f"B{k}"])
                a(f"v_mfma_f32_16x16x32_bf16 v[{VY+4*t}:{VY+4*t+3}], v[{VA+4*p}:{VA+4*p+3}], v[{VB+4*k}:{VB+4*k+3}], v[{VY+4*t}:{VY+4*t+3}]")
                if t == 7 and r < 3: ldB(7 - p, r + 1)
            if r < 3: ldA(p, r + 1)
            if r == 3 and p == 4:
                for i in range(4): T.issue(f"ds_read_b64 v[{4+2*i}:{5+2*i}], v23 offset:{512*i}", ["xr"])
    T.need(["xr", "ga"])
    for i in range(4):
        a(f"v_lshlrev_b32 v{32+4*i}, 16, v{4+2*i}")
        a(f"v_and_b32 v{33+4*i}, 0xffff0000, v{4+2*i}")
        a(f"v_lshlrev_b32 v{34+4*i}, 16, v{5+2*i}")
        a(f"v_and_b32 v{35+4*i}, 0xffff0000, v{5+2*i}")
    a("s_cmp_eq_u32 s28, 1\ns_cbranch_scc1 k_hf1")
    def tail(hf):
        keep, send = 4 * hf, 4 * (1 - hf)
        for i in range(4):
            t = send + i
            a(f"ds_write_b128 v25, v[{VY+4*t}:{VY+4*t+3}] offset:{1024*i}")
        a("v_mov_b32 v31, 1\nds_write_b32 v29, v31")
        for i in range(4):
            for r in range(4): a(f"v_fma_f32 v{32+4*i+r}, v28, v{VY+4*(keep+i)+r}, v{32+4*i+r}")
        a(f"""
        k_hs{hf}:
        ds_read_b32 v31, v30
        s_waitcnt lgkmcnt(0)
        v_readfirstlane_b32 s43, v31
        s_cmp_eq_u32 s43, 1
        s_cbranch_scc0 k_hs{hf}
        """)
        for i in range(4): a(f"ds_read_b128 v[{64+4*i}:{67+4*i}], v26 offset:{1024*i}")
        for i in range(4):
            a(f"s_waitcnt lgkmcnt({3-i})")
            for r in range(4): a(f"v_fma_f32 v{32+4*i+r}, v28, v{64+4*i+r}, v{32+4*i+r}")
            a(f"v_cvt_pk_bf16_f32 v{12+2*i}, v{32+4*i}, v{33+4*i}")
            a(f"v_cvt_pk_bf16_f32 v{13+2*i}, v{34+4*i}, v{35+4*i}")
            a(f"global_store_dwordx2 v22, v[{12+2*i}:{13+2*i}], s[50:51] offset:{512*i}{X2SC}")
        a("s_endpgm")
    tail(0)
    a("k_hf1:")
    tail(1)

def grid_arrive(a, tag, t):
    assert AB_GRID % 2 == 0
    a(f"""
    s_and_b32 s34, s2, 1
    s_lshl_b32 s36, s34, 7
    v_mov_b32 v{t}, s36
    v_mov_b32 v{t+1}, 1
    s_mov_b32 s37, {AB_GRID // 2 - 1}
    s_mov_b64 exec, 1
    global_atomic_add v{t+2}, v{t}, v{t+1}, s[20:21] sc0 sc1
    s_waitcnt vmcnt(0)
    v_readfirstlane_b32 s36, v{t+2}
    s_cmp_eq_u32 s36, s37
    s_cbranch_scc0 {tag}_arrived
    v_mov_b32 v{t}, 64
    global_atomic_add v{t+2}, v{t}, v{t+1}, s[20:21] sc0 sc1
    s_waitcnt vmcnt(0)
    v_readfirstlane_b32 s36, v{t+2}
    s_cmp_eq_u32 s36, 1
    s_cbranch_scc0 {tag}_arrived
    s_mov_b64 exec, -1
    s_mov_b32 exec_hi, 0
    v_add_u32 v93, 1, v93
    global_store_dword v92, v93, s[22:23] sc1
    {tag}_arrived:
    s_mov_b64 exec, -1
    """)
def grid_wait(a, tag, t):
    a(f"""
    s_mov_b32 s60, 0
    {tag}_poll_loop:
    global_load_dword v{t}, v94, s[22:23] sc1
    s_waitcnt vmcnt(0)
    v_cmp_eq_u32 vcc, v{t}, v95
    s_cbranch_vccz {tag}_go
    s_sleep 1
    s_add_u32 s60, s60, 1
    s_cmp_lt_u32 s60, {SPIN_MAX}
    s_cbranch_scc1 {tag}_poll_loop
    {tag}_go:
    """)

def gen_pwaves(a):
    a(f"""
    pwaves:
    s_load_dwordx2 s[4:5], s[0:1], 0         ; x
    s_load_dwordx4 s[44:47], s[0:1], 112     ; c, w_mod
    s_load_dwordx4 s[20:23], s[0:1], 136
    s_load_dwordx4 s[8:11], s[0:1], 80       ; w1, b1
    s_load_dwordx2 s[48:49], s[0:1], 96
    s_setprio {PPRIO}
    v_subrev_u32 v0, 256, v0
    s_sub_u32 s26, s26, 4
    v_lshrrev_b32 v3, 6, v0
    v_lshrrev_b32 v8, 4, v1                  ; row (0..3)
    v_and_b32 v9, 15, v1                     ; 16 B chunk
    v_lshlrev_b32 v4, 10, v8
    v_lshl_add_u32 v4, v9, 4, v4
    v_lshl_add_u32 v4, v3, 8, v4
    s_lshl_b32 s31, s2, 13
    v_add_u32 v4, s31, v4
    v_add_u32 v44, 4096, v4
    s_min_u32 s32, s7, 23
    s_mul_i32 s33, s6, 24
    s_add_u32 s33, s33, s32
    v_lshrrev_b32 v5, 1, v0                  ; rg
    v_and_b32 v6, 1, v0                      ; cc
    v_mul_u32_u24 v7, {4*6144}, v5
    v_lshl_add_u32 v7, v6, 4, v7
    s_lshl_b32 s34, s33, 5
    v_add_u32 v7, s34, v7
    v_lshlrev_b32 v2, 3, v5                  ; c offset
    v_and_b32 v92, 31, v1
    v_lshlrev_b32 v92, 7, v92
    v_add_u32 v92, {WS_GO}, v92
    s_and_b32 s34, s2, 31
    s_lshl_b32 s34, s34, 7
    s_add_u32 s34, s34, {WS_GO}
    v_mov_b32 v94, s34
    s_waitcnt lgkmcnt(0)
    """)
    if SET == 1: a.stamp(0)
    a(f"""
    global_load_dwordx4 v[8:11], v4, s[4:5]
    global_load_dwordx4 v[12:15], v44, s[4:5]
    global_load_dwordx2 v[16:17], v2, s[44:45]
    """)
    for i in range(4):
        if i: a("v_add_u32 v7, 6144, v7")
        a(f"global_load_dwordx4 v[{20+4*i}:{23+4*i}], v7, s[46:47]")
    a(f"""
    v_mov_b32 v38, 0x3f803f80
    v_lshrrev_b32 v40, 4, v1
    v_mul_u32_u24 v39, 320, v40
    v_and_b32 v41, 15, v1
    v_lshl_add_u32 v39, v41, 4, v39
    s_mul_i32 s34, s26, 2560
    s_add_u32 s34, s34, {LNT}
    v_add_u32 v39, s34, v39
    v_lshrrev_b32 v47, 2, v41
    v_mul_u32_u24 v47, 320, v47
    v_and_b32 v46, 3, v41
    v_lshl_add_u32 v47, v46, 3, v47
    v_lshl_add_u32 v47, v40, 5, v47
    v_add_u32 v47, s34, v47
    v_lshl_add_u32 v46, v3, 7, v1
    v_lshlrev_b32 v46, 4, v46
    s_mul_i32 s34, s2, {XBS}
    s_add_u32 s34, s34, {WS_XB}
    v_add_u32 v46, s34, v46
    v_lshlrev_b32 v45, 3, v40
    s_lshl_b32 s34, s26, 6
    s_add_u32 s34, s34, {STP}
    v_add_u32 v45, s34, v45
    """)
    for r in range(2):
        b = 8 + 4 * r
        a(f"s_waitcnt vmcnt({6 - r})")
        a(f"ds_write_b128 v39, v[{b}:{b+3}] offset:{1280*r}")
        a(f"v_dot2_f32_bf16 v{72+2*r}, v{b}, v38, 0")
        a(f"v_dot2_f32_bf16 v{73+2*r}, v{b}, v{b}, 0")
        for k in range(1, 4):
            a(f"v_dot2_f32_bf16 v{72+2*r}, v{b+k}, v38, v{72+2*r}")
            a(f"v_dot2_f32_bf16 v{73+2*r}, v{b+k}, v{b+k}, v{73+2*r}")
    a("""
    s_waitcnt lgkmcnt(0)
    ds_read_b64_tr_b16 v[48:49], v47
    ds_read_b64_tr_b16 v[50:51], v47 offset:1280
    ds_read_b64_tr_b16 v[52:53], v47 offset:128
    ds_read_b64_tr_b16 v[54:55], v47 offset:1408
    """)
    if SET == 1: a.stamp(1)
    a("s_waitcnt vmcnt(4)")
    for i in range(4):
        src = 16 + i // 2
        a(f"v_lshlrev_b32 v{56+i}, 16, v{src}" if i % 2 == 0 else f"v_and_b32 v{56+i}, 0xffff0000, v{src}")
    for i in range(4): a(f"v_mul_f32 v{60+i}, {fx(-1.4426950408889634)}, v{56+i}")
    for i in range(4): a(f"v_exp_f32 v{60+i}, v{60+i}")
    dpps = ["row_shr:1", "row_shr:2", "row_shr:4", "row_shr:8", "row_bcast:15 row_mask:0xa", "row_bcast:31 row_mask:0xc"]
    def dpp4(d):
        m = "" if "row_mask" in d else " row_mask:0xf"
        for r in range(72, 76): a(f"v_add_f32_dpp v{r}, v{r}, v{r} {d}{m} bank_mask:0xf")
    dpp4(dpps[0])
    for i in range(4): a(f"v_add_f32 v{60+i}, 1.0, v{60+i}")
    dpp4(dpps[1])
    for i in range(4): a(f"v_rcp_f32 v{60+i}, v{60+i}")
    dpp4(dpps[2])
    for i in range(4): a(f"v_mul_f32 v{56+i}, v{56+i}, v{60+i}")
    dpp4(dpps[3])
    for i in range(4):
        a(f"v_cvt_pk_bf16_f32 v{60+i}, v{56+i}, 0")
        a(f"v_cvt_pk_bf16_f32 v{76+i}, 0, v{56+i}")
    a(f"""
    s_waitcnt lgkmcnt(0)
    global_store_dwordx4 v46, v[48:51], s[22:23] sc1
    global_store_dwordx4 v46, v[52:55], s[22:23] offset:1024 sc1
    v_cmp_eq_u32 vcc, 15, v41
    s_and_saveexec_b64 s[54:55], vcc
    ds_write_b64 v45, v[72:73]
    ds_write_b64 v45, v[74:75] offset:32
    s_mov_b64 exec, s[54:55]
    """)
    for i in range(4):
        a(f"s_waitcnt vmcnt({5 - i})")
        for m in range(4):
            c0 = "0" if i == 0 else f"v{64+2*m}"; c1 = "0" if i == 0 else f"v{65+2*m}"
            a(f"v_dot2_f32_bf16 v{64+2*m}, v{20+4*i+m}, v{60+i}, {c0}")
            a(f"v_dot2_f32_bf16 v{65+2*m}, v{20+4*i+m}, v{76+i}, {c1}")
    a("s_nop 2")
    for d in ["row_shr:2", "row_shr:4", "row_shr:8"]:
        for r in range(64, 72): a(f"v_add_f32_dpp v{r}, v{r}, v{r} {d} row_mask:0xf bank_mask:0xf")
    a(f"""
    v_lshrrev_b32 v4, 4, v0
    v_mul_u32_u24 v4, 80, v4
    v_lshl_add_u32 v4, v6, 5, v4
    v_add_u32 v4, {MODS}, v4
    v_and_b32 v5, 15, v0
    v_cmp_lt_u32 vcc, 13, v5
    v_lshlrev_b32 v5, 2, v5
    v_add_u32 v5, {MODS}, v5
    s_and_saveexec_b64 s[54:55], vcc
    ds_write_b128 v4, v[64:67]
    ds_write_b128 v4, v[68:71] offset:16
    s_mov_b64 exec, s[54:55]
    s_waitcnt lgkmcnt(0)
    """)
    if SET == 1: a.stamp(2)
    a("""
    s_cmp_eq_u32 s26, 0
    s_cbranch_scc0 p_nogo
    global_load_dword v93, v92, s[22:23] sc1
    global_load_dword v95, v94, s[22:23] sc1
    p_nogo:
    """)
    lds_arrive(a, 0, 36); lds_wait(a, 0, 4, 36, "p1")
    for i in range(16): a(f"ds_read_b32 v{20+i}, v5 offset:{80*i}")
    a(f"""
    v_and_b32 v58, 7, v0
    v_lshlrev_b32 v59, 3, v58
    v_add_u32 v59, {STP}, v59
    ds_read_b64 v[48:49], v59
    ds_read_b64 v[50:51], v59 offset:64
    ds_read_b64 v[52:53], v59 offset:128
    ds_read_b64 v[54:55], v59 offset:192
    v_lshlrev_b32 v58, 2, v58
    s_lshl_b32 s34, s2, 5
    s_add_u32 s34, s34, {WS_ST1}
    v_add_u32 v58, s34, v58
    s_waitcnt lgkmcnt(0)
    v_add_f32 v48, v48, v50
    v_add_f32 v49, v49, v51
    v_add_f32 v52, v52, v54
    v_add_f32 v53, v53, v55
    v_add_f32 v56, v48, v52
    v_add_f32 v57, v49, v53
    v_mul_f32 v56, {fx(1.0/512)}, v56        ; mean
    v_mul_f32 v57, {fx(1.0/512)}, v57
    v_fma_f32 v57, -v56, v56, v57
    v_max_f32 v57, 0, v57
    v_add_f32 v57, {fx(1e-5)}, v57
    v_rsq_f32 v57, v57
    v_cmp_gt_u32 vcc, 8, v0
    v_mul_f32 v56, -v56, v57
    v_cvt_pk_bf16_f32 v56, v57, v56          ; (r, -mean*r)
    s_and_saveexec_b64 s[54:55], vcc
    s_cbranch_execz p_nostat
    global_store_dword v58, v56, s[22:23] sc1
    p_nostat:
    s_mov_b64 exec, s[54:55]
    """)
    for st in (1, 2, 4, 8):
        for i in range(0, 16, 2 * st): a(f"v_add_f32 v{20+i}, v{20+i}, v{20+i+st}")
    a(f"""
    v_cvt_pk_bf16_f32 v20, v20, v20
    v_lshlrev_b32 v20, 16, v20
    s_lshl_b32 s34, s33, 7
    s_add_u32 s34, s34, {WS_MODP}
    v_lshlrev_b32 v4, 2, v0
    v_add_u32 v4, s34, v4
    s_cmp_lt_u32 s7, 24
    s_cselect_b32 s34, 16, 0
    v_cmp_gt_u32 vcc, s34, v0
    s_and_saveexec_b64 s[54:55], vcc
    s_cbranch_execz p_nomod
    global_store_dword v4, v20, s[22:23] sc1
    p_nomod:
    s_mov_b64 exec, s[54:55]
    """)
    a("s_waitcnt vmcnt(0)")
    lds_arrive(a, 1, 36)
    if SET == 1: a.stamp(3)
    a(f"""
    """)
    a("s_cmp_eq_u32 s26, 0\ns_cbranch_scc0 p_wait_release")
    lds_wait(a, 1, 4, 36, "p2")
    grid_arrive(a, "p", 4); grid_wait(a, "p", 7)
    lds_arrive(a, 4, 36)
    a("s_setprio 0\ns_branch p_released\np_wait_release:\ns_setprio 0")
    lds_wait(a, 4, 1, 36, "p3", 2)
    a("p_released:")
    if SET == 1: a.stamp(4)
    a(f"""
    v_lshrrev_b32 v5, 1, v0                  ; m
    v_and_b32 v4, 1, v0                      ; ch
    v_lshlrev_b32 v6, 13, v5
    v_lshl_add_u32 v6, v4, 4, v6
    s_lshl_b32 s38, s29, 4
    s_add_u32 s38, s38, {WS_XB}
    v_add_u32 v6, s38, v6
    global_load_dwordx4 v[48:51], v6, s[22:23] sc1               ; x, block m
    v_add_u32 v6, {128*XBS}, v6
    global_load_dwordx4 v[52:55], v6, s[22:23] sc1               ; x, block m+128
    v_lshlrev_b32 v7, 5, v5
    v_add_u32 v7, {WS_ST1}, v7
    global_load_dwordx4 v[16:19], v7, s[22:23] sc1
    global_load_dwordx4 v[20:23], v7, s[22:23] offset:16 sc1
    v_add_u32 v7, 4096, v7
    global_load_dwordx4 v[24:27], v7, s[22:23] sc1               ; block m+128
    global_load_dwordx4 v[28:31], v7, s[22:23] offset:16 sc1
    s_lshr_b32 s38, s29, 4
    s_lshl_b32 s38, s38, 7
    s_and_b32 s39, s29, 15
    s_lshl_b32 s39, s39, 2
    s_add_u32 s38, s38, s39
    s_add_u32 s38, s38, {WS_MODP}
    v_lshl_add_u32 v7, v4, 2, s38
    global_load_dword v32, v7, s[22:23] sc1                      ; sa
    v_add_u32 v7, 4096, v7
    global_load_dword v33, v7, s[22:23] sc1                      ; ca
    v_add_u32 v7, 4096, v7
    global_load_dword v34, v7, s[22:23] sc1                      ; ga
    v_mul_u32_u24 v42, {HCH}, v4
    v_lshl_add_u32 v42, v5, 4, v42
    v_add_u32 v42, {H_OFF + 512}, v42
    v_lshlrev_b32 v43, 12, v4
    v_lshl_add_u32 v43, v5, 4, v43
    v_add_u32 v43, {XR_OFF}, v43
    """)
    def hpart(extra):
        a(f"s_waitcnt vmcnt({7 + extra})")
        a("ds_write_b128 v43, v[48:51]\nds_write_b128 v43, v[52:55] offset:2048".replace("\\n", "\n"))
        for blk in range(2):
            for e in range(8):
                src = 48 + 4 * blk + e // 2
                a(f"v_lshlrev_b32 v{64+8*blk+e}, 16, v{src}" if e % 2 == 0 else f"v_and_b32 v{64+8*blk+e}, 0xffff0000, v{src}")
        a(f"s_waitcnt vmcnt({3 + extra})")
        for blk in range(2):
            for e in range(8):
                a(f"v_lshlrev_b32 v{80}, 16, v{16+8*blk+e}" if False else f"v_lshlrev_b32 v{36+(e%4)}, 16, v{16+8*blk+e}")
                a(f"v_and_b32 v{16+8*blk+e}, 0xffff0000, v{16+8*blk+e}")
                a(f"v_fma_f32 v{64+8*blk+e}, v{64+8*blk+e}, v{36+(e%4)}, v{16+8*blk+e}")
        a(f"s_waitcnt vmcnt({extra})")
    hpart(0)
    a(f"""
    v_add_f32 v33, 1.0, v33
    v_cvt_pk_bf16_f32 v33, v33, v33
    v_lshlrev_b32 v35, 2, v4
    v_add_u32 v35, {MODS}, v35
    v_lshlrev_b32 v33, 16, v33               ; gamma
    ds_write_b32 v35, v34
    """)
    for blk in range(2):
        for e in range(8): a(f"v_fma_f32 v{64+8*blk+e}, v{64+8*blk+e}, v33, v32")
        for p in range(4): a(f"v_cvt_pk_bf16_f32 v{8+4*blk+p}, v{64+8*blk+2*p}, v{65+8*blk+2*p}")
        a(f"ds_write_b128 v42, v[{8+4*blk}:{11+4*blk}] offset:{2048*blk}")
    a("s_waitcnt lgkmcnt(0)")
    if SET == 1: a.stamp(5)
    a("s_barrier")
    a(f"""
    s_lshr_b32 s47, s2, 3
    s_mul_i32 s47, s47, 44032
    v_lshlrev_b32 v8, 6, v0
    v_add_u32 v8, s47, v8
    global_load_dword v9, v8, s[48:49]
    v_add_u32 v8, 16384, v8
    global_load_dword v10, v8, s[48:49]
    s_add_u32 s47, s47, {32768 + 175*64}
    v_add_u32 v8, 16384, v8
    v_min_u32 v8, s47, v8
    global_load_dword v11, v8, s[48:49]
    s_endpgm
    """)

def gen_w1p(a):
    IMG = 0
    RED = 16384
    a(f"""
    w1p:
    s_load_dwordx4 s[8:11], s[0:1], 80       ; w1, b1
    s_load_dwordx4 s[20:23], s[0:1], 136     ; debug, ws
    s_sub_u32 s3, s2, {NMAIN}                ; half block hb : fblk = hb>>1, mhalf = hb&1
    v_and_b32 v1, 63, v0
    v_lshrrev_b32 v2, 6, v0
    v_lshrrev_b32 v3, 1, v0                  ; rg
    v_and_b32 v4, 1, v0                      ; cc
    v_readfirstlane_b32 s26, v2
    v_mul_u32_u24 v5, {4*2752}, v3
    v_lshl_add_u32 v5, v4, 4, v5
    s_lshl_b32 s9, s3, 5
    s_waitcnt lgkmcnt(0)
    """.replace("s_lshl_b32 s9, s3, 5\n", ""))
    a(f"""
    s_lshl_b32 s12, s3, 5
    v_add_u32 v5, s12, v5
    v_and_b32 v92, 31, v1
    v_lshlrev_b32 v92, 7, v92
    v_add_u32 v92, {WS_GO}, v92
    s_and_b32 s34, s2, 31
    s_lshl_b32 s34, s34, 7
    s_add_u32 s34, s34, {WS_GO}
    v_mov_b32 v94, s34
    s_cmp_eq_u32 s26, 0
    s_cbranch_scc0 w_noarr
    global_load_dword v93, v92, s[22:23] sc1
    global_load_dword v95, v94, s[22:23] sc1
    s_waitcnt vmcnt(0)
    """)
    grid_arrive(a, "w", 96)
    a("w_noarr:")
    for i in range(4):
        if i: a("v_add_u32 v5, 2752, v5")
        a(f"global_load_dwordx4 v[{8+4*i}:{11+4*i}], v5, s[8:9]")
    a(f"""
    v_and_b32 v7, 15, v0
    v_lshlrev_b32 v7, 1, v7
    v_add_u32 v7, s12, v7
    global_load_ushort v56, v7, s[10:11]
    v_mov_b32 v57, 0x3f803f80
    v_lshrrev_b32 v58, 2, v3
    v_lshlrev_b32 v58, 9, v58
    v_bfe_u32 v59, v3, 1, 1
    v_lshl_add_u32 v58, v59, 8, v58
    v_lshl_add_u32 v58, v4, 7, v58
    v_and_b32 v59, 1, v3
    v_lshl_add_u32 v58, v59, 3, v58
    s_waitcnt vmcnt(1)
    """)
    for i in range(4):
        for e in range(8):
            src = 8 + 4 * i + e // 2
            a(f"v_lshlrev_b32 v{24+8*i+e}, 16, v{src}" if e % 2 == 0 else f"v_and_b32 v{24+8*i+e}, 0xffff0000, v{src}")
    a("s_cmp_eq_u32 s26, 0\ns_cbranch_scc0 w_released")
    grid_wait(a, "w", 96)
    a(f"""
    w_released:
    s_barrier
    v_lshrrev_b32 v6, 2, v3
    v_lshlrev_b32 v6, 7, v6
    v_and_b32 v7, 3, v3
    v_lshl_add_u32 v6, v7, 4, v6
    v_add_u32 v6, {WS_MODP + 96*128}, v6
    v_add_u32 v7, 4096, v6
    global_load_dwordx4 v[8:11], v6, s[22:23] sc1        ; sb
    global_load_dwordx4 v[12:15], v7, s[22:23] sc1       ; cb
    s_waitcnt vmcnt(0)
    """)
    for i in range(4): a(f"v_add_f32 v{12+i}, 1.0, v{12+i}")
    a("v_cvt_pk_bf16_f32 v16, v12, v13\nv_cvt_pk_bf16_f32 v17, v14, v15")
    a("v_lshlrev_b32 v12, 16, v16\nv_and_b32 v13, 0xffff0000, v16\nv_lshlrev_b32 v14, 16, v17\nv_and_b32 v15, 0xffff0000, v17")
    for e in range(8): a(f"v_mul_f32 v{72+e}, v8, v{24+e}")
    for i in range(1, 4):
        for e in range(8): a(f"v_fmac_f32 v{72+e}, v{8+i}, v{24+8*i+e}")
    for i in range(4):
        for e in range(8): a(f"v_mul_f32 v{24+8*i+e}, v{12+i}, v{24+8*i+e}")
    for e in range(8):
        a(f"v_cvt_pk_bf16_f32 v{80+2*e}, v{24+e}, v{32+e}")
        a(f"v_cvt_pk_bf16_f32 v{81+2*e}, v{40+e}, v{48+e}")
    for e in range(8): a(f"ds_write_b64 v58, v[{80+2*e}:{81+2*e}] offset:{IMG + 16*e}")
    for e in range(8): a(f"v_dot2_f32_bf16 v{64+e}, v{80+2*e}, v57, 0")
    for e in range(8): a(f"v_dot2_f32_bf16 v{64+e}, v{81+2*e}, v57, v{64+e}")
    a("s_nop 2")
    for d in ["row_shr:2", "row_shr:4", "row_shr:8"]:
        for r in range(64, 80): a(f"v_add_f32_dpp v{r}, v{r}, v{r} {d} row_mask:0xf bank_mask:0xf")
    a(f"""
    v_lshrrev_b32 v5, 4, v0                  ; part
    v_mul_u32_u24 v5, 144, v5
    v_lshl_add_u32 v5, v4, 5, v5
    v_and_b32 v6, 15, v0
    v_cmp_lt_u32 vcc, 13, v6
    s_and_saveexec_b64 s[54:55], vcc
    ds_write_b128 v5, v[64:67] offset:{RED}
    ds_write_b128 v5, v[68:71] offset:{RED + 16}
    ds_write_b128 v5, v[72:75] offset:{RED + 64}
    ds_write_b128 v5, v[76:79] offset:{RED + 80}
    s_mov_b64 exec, s[54:55]
    v_lshlrev_b32 v7, 4, v0
    s_lshr_b32 s13, s3, 1
    s_lshl_b32 s13, s13, 15
    s_and_b32 s14, s3, 1
    s_lshl_b32 s14, s14, 8
    s_add_u32 s13, s13, s14
    s_add_u32 s13, s13, {WS_W1F}
    v_lshrrev_b32 v8, 4, v0
    v_lshlrev_b32 v8, 9, v8                  ; g*512 + s*1024 == (2s+g)*512
    v_lshl_add_u32 v8, v6, 4, v8
    v_add_u32 v8, s13, v8
    v_and_b32 v9, 31, v0
    v_lshlrev_b32 v9, 2, v9
    s_waitcnt lgkmcnt(0)
    s_barrier
    """)
    for k in range(4): a(f"ds_read_b128 v[{24+4*k}:{27+4*k}], v7 offset:{IMG + 4096*k}")
    a(f"""
    v_lshlrev_b32 v9, 2, v6
    v_bfe_u32 v10, v0, 4, 1
    v_lshl_add_u32 v9, v10, 6, v9            ; (t&15)*4 + ((t>>4)&1)*64
    """)
    for p in range(16): a(f"ds_read_b32 v{40+p}, v9 offset:{RED + 144*p}")
    for k in range(4):
        a(f"s_waitcnt lgkmcnt({15 if k == 0 else 15})" if False else "")
    a("s_waitcnt lgkmcnt(15)")
    a("s_waitcnt lgkmcnt(0)")
    for k in range(4):
        a(f"global_store_dwordx4 v8, v[{24+4*k}:{27+4*k}], s[22:23]{SC}")
        if k < 3: a(f"v_add_u32 v8, {16*512}, v8")
    for st in (1, 2, 4, 8):
        for p in range(0, 16, 2 * st): a(f"v_add_f32 v{40+p}, v{40+p}, v{40+p+st}")
    a(f"""
    v_lshlrev_b32 v56, 16, v56
    v_cmp_eq_u32 vcc, 1, v10
    s_nop 1
    v_cndmask_b32 v56, 0, v56, vcc
    v_add_f32 v40, v40, v56
    s_lshl_b32 s13, s3, 6
    v_lshl_add_u32 v11, v6, 2, s13
    v_mov_b32 v12, {WS_CS}
    v_mov_b32 v13, {WS_B1P}
    v_cndmask_b32 v12, v12, v13, vcc
    v_add_u32 v11, v11, v12
    v_cmp_gt_u32 vcc, 32, v0
    s_and_saveexec_b64 s[54:55], vcc
    s_cbranch_execz w1p_end
    global_store_dword v11, v40, s[22:23]{SC}
    w1p_end:
    s_endpgm
    """)

def gen_AB(a):
    a(f"""
    s_cmp_ge_u32 s2, {NMAIN}
    s_cbranch_scc1 ab_other
    v_lshrrev_b32 v3, 6, v0
    v_and_b32 v1, 63, v0
    s_and_b32 s6, s2, 7
    s_lshr_b32 s7, s2, 3
    v_readfirstlane_b32 s26, v3              ; wave
    v_lshlrev_b32 v4, 2, v0
    v_add_u32 v4, {CNT}, v4
    v_mov_b32 v5, 0
    v_cmp_gt_u32 vcc, 8, v0
    s_and_saveexec_b64 s[54:55], vcc
    ds_write_b32 v4, v5
    s_mov_b64 exec, s[54:55]
    s_lshl_b32 s29, s6, 6
    s_lshl_b32 s30, s7, 1
    s_add_u32 s29, s29, s30
    s_waitcnt lgkmcnt(0)
    s_barrier
    s_cmp_ge_u32 s26, 4
    s_cbranch_scc1 pwaves
    """)
    gen_kwaves(a)
    gen_pwaves(a)
    a(f"""
    ab_other:
    s_cmp_lt_u32 s2, {AB_GRID}
    s_cbranch_scc0 ab_end
    v_cmp_gt_u32 vcc, 256, v0
    s_cbranch_vccnz w1p
    ab_end:
    s_endpgm
    """)
    gen_w1p(a)

if __name__ == "__main__":
    ks = [("convab_kernel", gen_AB, 128, AB_GRID, 512, AB_LDS),
          ("gemm1_kernel", gen_C, 176, C_GRID, 512, C_LDS),
          ("gemm2_kernel", gen_D, 128, D_GRID, 512, D_LDS)]
    s = build(ks)
    path = sys.argv[1] if len(sys.argv) > 1 else "out.s"
    open(path, "w").write(s)
    print("wrote", path, len(s))
```

```python
import sys, os
os.environ["MODP"] = "1"
import g3
from g3 import *
import g3b
from g3b import gen_C, gen_D, C_GRID, C_LDS, D_GRID, D_LDS, KCP, KCHL

NMAIN, NW1 = 256, 43
TCH = 57 * TROW
H_OFF = 2 * KCHL
HCH = 4608
XR_OFF = H_OFF + 2 * HCH
RED_OFF = XR_OFF + 8192
LNT = 62016
KC2 = LNT + 4 * 2560
KCS = 776 * 4
MODS = KC2 + 2 * KCS
STP = MODS + 16 * 80
FLG = STP + 256
CNT = FLG + 16
AB_LDS = CNT + 32
NW1 = 86
AB_GRID = NMAIN + NW1
XBS = 8192
WS_MODP = 0x10000
WS_GO = 0x20000
WS_XB = WS_XT
SET = int(os.environ.get("STAMPSET", 0))
PPRIO = int(os.environ.get("PPRIO", 1))
X2SC = os.environ.get("X2SC", "")
W1SC = os.environ.get("W1SC", "")
SPIN_MAX = 0x20000

def lds_arrive(a, k, v):
    a(f"""
    v_mov_b32 v{v}, {CNT + 4*k}
    v_mov_b32 v{v+1}, 1
    s_mov_b64 exec, 1
    ds_add_u32 v{v}, v{v+1}
    s_mov_b64 exec, -1
    """)
def lds_wait(a, k, n, v, tag, slp=1):
    a(f"""
    v_mov_b32 v{v}, {CNT + 4*k}
    lw_{tag}:
    ds_read_b32 v{v+1}, v{v}
    s_waitcnt lgkmcnt(0)
    v_readfirstlane_b32 s62, v{v+1}
    s_cmp_ge_u32 s62, {n}
    s_cbranch_scc1 lw_{tag}_done
    s_sleep {slp}
    s_branch lw_{tag}
    lw_{tag}_done:
    """)

def h_addr(a, toff):
    a(f"""
    v_add_u32 v11, {toff}, v0
    v_lshrrev_b32 v12, 1, v11                ; block
    v_and_b32 v10, 1, v11                    ; ch
    v_lshlrev_b32 v4, 13, v12
    v_lshl_add_u32 v4, v10, 4, v4
    s_lshl_b32 s38, s29, 4
    s_add_u32 s38, s38, {WS_XB}
    v_add_u32 v4, s38, v4
    v_lshlrev_b32 v5, 5, v12
    v_add_u32 v5, {WS_ST1}, v5               ; statistics
    s_lshr_b32 s38, s29, 4
    s_lshl_b32 s38, s38, 7
    s_and_b32 s39, s29, 15
    s_lshl_b32 s39, s39, 2
    s_add_u32 s38, s38, s39
    s_add_u32 s38, s38, {WS_MODP}
    v_lshl_add_u32 v6, v10, 2, s38
    v_mul_u32_u24 v7, {HCH}, v10
    v_lshl_add_u32 v7, v12, 4, v7
    v_add_u32 v7, {H_OFF + 512}, v7          ; h (LDS)
    v_lshlrev_b32 v8, 12, v10
    v_lshl_add_u32 v8, v12, 4, v8
    v_add_u32 v8, {XR_OFF}, v8
    v_lshlrev_b32 v9, 2, v10
    v_add_u32 v9, {MODS}, v9
    v_add_u32 v13, 4096, v6
    v_add_u32 v14, 4096, v13
    """)
def h_body(a):
    a(f"""
    global_load_dwordx4 v[64:67], v4, s[22:23] sc1
    global_load_dwordx4 v[68:71], v5, s[22:23] sc1
    global_load_dwordx4 v[72:75], v5, s[22:23] offset:16 sc1
    global_load_dword v76, v6, s[22:23] sc1
    global_load_dword v77, v13, s[22:23] sc1
    global_load_dword v78, v14, s[22:23] sc1
    s_waitcnt vmcnt(5)
    ds_write_b128 v8, v[64:67]
    """)
    for e in range(8):
        src = 64 + e // 2
        a(f"v_lshlrev_b32 v{80+e}, 16, v{src}" if e % 2 == 0 else f"v_and_b32 v{80+e}, 0xffff0000, v{src}")
    a("s_waitcnt vmcnt(3)")
    for e in range(8):
        a(f"v_lshlrev_b32 v{12+(e%4)}, 16, v{68+e}")
        a(f"v_and_b32 v{68+e}, 0xffff0000, v{68+e}")
        a(f"v_fma_f32 v{80+e}, v{80+e}, v{12+(e%4)}, v{68+e}")
    a(f"""
    s_waitcnt vmcnt(0)
    v_add_f32 v77, 1.0, v77
    v_cvt_pk_bf16_f32 v77, v77, v77
    ds_write_b32 v9, v78                     ; ga
    v_lshlrev_b32 v77, 16, v77               ; gamma
    """)
    for e in range(8): a(f"v_fma_f32 v{80+e}, v{80+e}, v77, v76")
    for p in range(4): a(f"v_cvt_pk_bf16_f32 v{88+p}, v{80+2*p}, v{81+2*p}")
    a("ds_write_b128 v7, v[88:91]")
    a("s_waitcnt lgkmcnt(0)")

def gen_kwaves(a):
    VA, VB, VY = 32, 64, 96
    a(f"""
    kwaves:
    s_load_dwordx4 s[8:11], s[0:1], 8
    s_load_dwordx4 s[12:15], s[0:1], 24
    s_load_dwordx4 s[16:19], s[0:1], 40
    s_load_dwordx4 s[40:43], s[0:1], 56
    s_load_dwordx2 s[22:23], s[0:1], 144     ; ws
    s_lshr_b32 s27, s26, 1                   ; ch
    s_and_b32 s28, s26, 1                    ; hf
    s_add_u32 s30, s29, s27                  ; d
    s_lshl_b32 s34, s30, 8
    s_lshl_b32 s35, s28, 7
    s_add_u32 s34, s34, s35
    v_lshl_add_u32 v36, v1, 1, s34
    s_lshl_b32 s35, s29, 1
    s_waitcnt lgkmcnt(0)
    """)
    if SET in (0, 3): a.stamp(0)
    for i, sp in enumerate((8, 10, 12, 14, 16, 18)):
        a(f"global_load_ushort v{40+i}, v36, s[{sp}:{sp+1}]")
    a("s_load_dword s24, s[40:41], s35\ns_load_dword s25, s[42:43], s35")
    a("v_lshlrev_b32 v37, 3, v0\nv_sub_u32 v37, 2047, v37")
    for e in range(11): a(f"v_subrev_u32 v{64+e}, {e}, v37")
    for e in range(11): a(f"v_max_i32 v{80+e}, 0, v{64+e}")
    for e in range(11): a(f"v_cvt_f32_u32 v{112+e}, v{80+e}")
    a("v_mov_b32 v123, 0")
    for p in range(6): a(f"v_cvt_pk_bf16_f32 v{96+p}, v{112+2*p}, v{113+2*p}")
    a(f"s_mov_b32 s36, {KC2 - 0x10A00}")
    for e in range(11):
        p = e // 2
        a(f"v_and_b32 v{112+e}, 0xffff, v{96+p}" if e % 2 == 0 else f"v_lshrrev_b32 v{112+e}, 16, v{96+p}")
    for e in range(11): a(f"v_lshl_add_u32 v{112+e}, v{112+e}, 2, s36")
    a(f"v_mov_b32 v104, {KC2 + 768*4}")
    for e in range(11):
        a(f"v_cmp_gt_u32 vcc, 128, v{80+e}")
        a(f"v_lshlrev_b32 v{80+e}, 2, v{80+e}")
        a(f"v_add_u32 v{80+e}, {KC2}, v{80+e}")
        a(f"v_cndmask_b32 v{112+e}, v{112+e}, v{80+e}, vcc")
        if e >= 8:
            a(f"v_cmp_gt_i32 vcc, 0, v{64+e}")
            a("s_nop 1")
            a(f"v_cndmask_b32 v{112+e}, v{112+e}, v104, vcc")
    if SET == 3: a.stamp(1)
    a(f"""
    s_waitcnt lgkmcnt(0)
    s_lshl_b32 s36, s27, 4
    s_lshr_b32 s24, s24, s36
    s_lshl_b32 s24, s24, 16                  ; log_dt[d]
    s_lshr_b32 s25, s25, s36
    s_lshl_b32 s25, s25, 16                  ; Dskip[d]
    v_mov_b32 v5, s24
    v_mul_f32 v6, 0x3fb8aa3b, v5
    s_mov_b32 s36, 0x3fb8aa3b
    v_fma_f32 v7, v5, s36, -v6
    v_fmac_f32 v7, 0x32a5705f, v5
    v_exp_f32 v6, v6
    v_mul_f32 v7, {fx(0.6931471805599453)}, v7
    v_fmac_f32 v6, v6, v7
    v_cvt_pk_bf16_f32 v6, v6, v6
    v_lshlrev_b32 v6, 16, v6                 ; dt
    s_mul_i32 s36, s27, {TCH}
    s_lshl_b32 s37, s28, 8
    s_add_u32 s36, s36, s37
    v_lshl_add_u32 v2, v1, 2, s36
    v_mov_b32 v4, 0
    v_mov_b32 v5, {KC2 + 768*4}
    ds_write_b32 v5, v4
    ds_write_b32 v5, v4 offset:{KCS}
    s_waitcnt vmcnt(4)
    v_lshlrev_b32 v40, 16, v40
    v_lshlrev_b32 v41, 16, v41
    v_mul_f32 v10, v6, v40
    v_mul_f32 v11, v6, v41
    v_mul_f32 v10, 0x3fb8aa3b, v10
    v_mul_f32 v11, {fx(0.15915494309189535)}, v11
    """)
    if SET == 0: a.stamp(1)
    if SET == 3: a.stamp(2)
    def direct(dst, l, t):
        a(f"""
        v_mul_f32 v{t}, {fx(float(l))}, v10
        v_mul_f32 v{t+1}, {fx(float(l))}, v11
        v_exp_f32 v{t}, v{t}
        v_fract_f32 v{t+1}, v{t+1}
        v_cos_f32 v{dst}, v{t+1}
        v_sin_f32 v{dst+1}, v{t+1}
        s_nop 0
        v_mul_f32 v{dst}, v{t}, v{dst}
        v_mul_f32 v{dst+1}, v{t}, v{dst+1}
        """)
    tmpw = [0]
    def wr(row, src, neg=False):
        tmp = 62 + (tmpw[0] % 2); tmpw[0] += 1
        a(f"v_cvt_pk_bf16_f32 v{tmp}, v{src}, {'-' if neg else ''}v{src+1}")
        a(f"ds_write_b32 v2, v{tmp} offset:{row*TROW}")
    E = [None, 64, 66, 68, 70, 72, 74, 76]
    E8, E128, X, Y2, Q, R = 78, 80, 82, 84, 86, 88
    S = [12, 14, 16, 18]
    T0, T1, T2 = 28, 30, 32
    direct(E[1], 1, 28); direct(E128, 128, 30)
    a("""
    s_waitcnt vmcnt(0)
    v_lshlrev_b32 v42, 16, v42
    v_lshlrev_b32 v43, 16, v43
    v_lshlrev_b32 v44, 16, v44
    v_lshlrev_b32 v45, 16, v45
    v_mul_f32 v42, v6, v42
    v_mul_f32 v43, v6, v43
    """)
    cmul(a, Q, 44, 42, T2)
    a("v_mov_b32 v62, 0x3f80\nds_write_b32 v2, v62 offset:0"); tmpw[0] = 1
    cmul(a, E[2], E[1], E[1], T0); cmul(a, X, E128, E128, T1)
    wr(1, E[1]); wr(8, E128); wr(QROW, Q, True)
    cmul(a, E[4], E[2], E[2], T0); cmul(a, E[3], E[2], E[1], T1); cmul(a, R, X, X, T2)
    wr(2, E[2]); wr(16, X)
    cmul(a, E8, E[4], E[4], T0); cmul(a, E[5], E[4], E[1], T1); cmul(a, E[6], E[3], E[3], T2)
    wr(3, E[3]); wr(4, E[4]); wr(24, R)
    cmul(a, E[7], E[4], E[3], T0); cmul(a, Y2, R, E[4], T1)
    cmul(a, S[1], X, E[2], T2); cmul(a, S[2], X, E[4], T0); cmul(a, S[3], X, E[6], T1)
    wr(5, E[5]); wr(6, E[6]); wr(7, E[7]); wr(25, Y2)
    cmul(a, S[0], X, E128, T2)
    a(f"v_mov_b64 v[{X}:{X+1}], v[{R}:{R+1}]")
    cmul(a, R, R, R, T0)
    wr(17, S[1]); wr(18, S[2]); wr(19, S[3]); wr(20, S[0])
    for r in range(1, 4): cmul(a, S[r], S[r], E128, (T0, T1, T2)[r % 3])
    for r in range(1, 4): wr(20 + r, S[r])
    wr(32, R)
    Z = S[0]
    for i in range(1, 16):
        cmul(a, Q, Q, E8, T0)
        if i <= 8: cmul(a, R, R, E128, T1)
        if i <= 7: cmul(a, Z, E128, E[i], T2)
        if i <= 3:
            cmul(a, X, X, E128, 34); cmul(a, Y2, Y2, E128, 36)
        wr(QROW + i, Q, True)
        if i <= 8: wr(32 + i, R)
        if i <= 7: wr(8 + i, Z)
        if i <= 3:
            wr(24 + 2 * i, X); wr(25 + 2 * i, Y2)
    a(f"""
    v_and_b32 v4, 15, v0
    v_bfe_u32 v5, v0, 4, 2
    v_lshlrev_b32 v7, 4, v5
    v_mul_u32_u24 v8, {TROW}, v4
    v_add_u32 v8, v8, v7
    s_mul_i32 s36, s27, {TCH}
    v_add_u32 v8, s36, v8
    v_add_u32 v9, {QROW*TROW}, v8            ; B address
    s_mul_i32 s37, s28, {32*TROW}
    v_add_u32 v12, s37, v8
    s_mul_i32 s37, s28, {16*TROW}
    s_add_u32 s37, s37, {16*TROW}
    v_add_u32 v13, s37, v8
    """)
    for r in range(20, 36): a(f"v_mov_b32 v{r}, 0")
    a(f"""
    s_mul_i32 s36, s27, {KCS}
    s_add_u32 s36, s36, {KC2}
    s_cmp_eq_u32 s28, 1
    s_cbranch_scc1 k_t2
    v_and_b32 v7, 1, v5
    v_lshlrev_b32 v7, 2, v7
    v_lshrrev_b32 v14, 1, v5
    v_lshl_add_u32 v7, v14, 7, v7
    v_lshl_add_u32 v7, v4, 3, v7
    v_lshl_add_u32 v14, v7, 2, s36
    v_add_u32 v15, 4, v14
    v_add_u32 v16, 8, v14
    v_add_u32 v17, 12, v14
    v_cmp_gt_u32 vcc, 2, v5
    v_lshlrev_b32 v7, 6, v5
    v_add_u32 v7, 256, v7
    v_lshlrev_b32 v40, 2, v4
    v_lshlrev_b32 v41, 1, v4
    v_cndmask_b32 v40, v41, v40, vcc
    v_add_u32 v7, v7, v40
    v_lshl_add_u32 v40, v7, 2, s36
    v_add_u32 v41, 4, v40
    v_mov_b32 v42, 128
    v_cndmask_b32 v42, v42, 8, vcc
    v_add_u32 v42, v40, v42
    v_add_u32 v43, 4, v42
    s_branch k_addr
    k_t2:
    v_lshl_add_u32 v7, v5, 6, v4
    v_lshl_add_u32 v14, v7, 2, s36
    v_add_u32 v14, {512*4}, v14
    v_add_u32 v15, 64, v14
    v_add_u32 v16, 128, v14
    v_add_u32 v17, 192, v14
    v_mov_b32 v40, v14
    v_mov_b32 v41, v15
    v_mov_b32 v42, v16
    v_mov_b32 v43, v17
    k_addr:
    v_cmp_eq_u32 vcc, 0, v1
    s_cmp_eq_u32 s28, 0
    s_cselect_b32 s25, s25, 0
    v_mov_b32 v7, s25
    v_cndmask_b32 v7, 0, v7, vcc
    s_waitcnt lgkmcnt(0)
    """)
    if SET == 0: a.stamp(2)
    if SET == 3: a.stamp(3)
    lds_arrive(a, 2, 38); lds_wait(a, 2, 4, 38, "k1")
    def rd(s):
        o = 64 + 12 * (s % 4)
        a(f"ds_read_b128 v[{o}:{o+3}], v9 offset:{64*s}")
        a(f"ds_read_b128 v[{o+4}:{o+7}], v12 offset:{64*s}")
        a(f"ds_read_b128 v[{o+8}:{o+11}], v13 offset:{64*s}")
    for s in range(4): rd(s)
    for s in range(8):
        o = 64 + 12 * (s % 4); p = s % 2
        a(f"s_waitcnt lgkmcnt({9 if s < 5 else 3*(7-s)})")
        a(f"v_mfma_f32_16x16x32_bf16 v[{20+8*p}:{23+8*p}], v[{o+4}:{o+7}], v[{o}:{o+3}], v[{20+8*p}:{23+8*p}]")
        a(f"v_mfma_f32_16x16x32_bf16 v[{24+8*p}:{27+8*p}], v[{o+8}:{o+11}], v[{o}:{o+3}], v[{24+8*p}:{27+8*p}]")
        if s < 4: rd(s + 4)
    a("s_nop 7")
    for r in range(8): a(f"v_add_f32 v{20+r}, v{20+r}, v{28+r}")
    a(f"""
    v_add_f32 v20, v20, v7
    ds_write_b32 v14, v20
    ds_write_b32 v15, v21
    ds_write_b32 v16, v22
    ds_write_b32 v17, v23
    ds_write_b32 v40, v24
    ds_write_b32 v41, v25
    ds_write_b32 v42, v26
    ds_write_b32 v43, v27
    """)
    lds_arrive(a, 3, 38); lds_wait(a, 3, 4, 38, "k2")
    if SET == 0: a.stamp(3)
    for ch in range(2):
        for e in range(11): a(f"ds_read_b32 v{64+12*ch+e}, v{112+e} offset:{ch*KCS}")
    a(f"""
    v_lshlrev_b32 v4, 4, v0                  ; tid*16
    v_mov_b32 v56, 0
    v_mov_b32 v57, 0
    v_mov_b32 v58, 0
    v_mov_b32 v59, 0
    v_lshrrev_b32 v60, 1, v0
    v_mul_u32_u24 v60, {KCP}, v60
    v_and_b32 v61, 1, v0
    v_lshl_add_u32 v60, v61, 4, v60
    v_add_u32 v60, 4096, v60
    v_bfe_u32 v61, v0, 5, 1
    v_mul_u32_u24 v61, {HCH}, v61
    v_and_b32 v62, 31, v0
    v_lshl_add_u32 v61, v62, 4, v61
    v_add_u32 v61, {H_OFF}, v61
    v_cmp_gt_u32 vcc, 16, v0
    s_cmp_eq_u32 s26, 1
    s_cbranch_scc1 k_padh
    s_cmp_eq_u32 s26, 0
    s_cbranch_scc0 k_pad_done
    s_and_saveexec_b64 s[54:55], vcc
    ds_write_b128 v60, v[56:59]
    s_mov_b64 exec, s[54:55]
    s_branch k_pad_done
    k_padh:
    ds_write_b128 v61, v[56:59]
    k_pad_done:
    s_waitcnt lgkmcnt(0)
    """)
    for ch in range(2):
        for c in range(4):
            o = 96 + 4 * (c % 2)
            for k in range(4): a(f"v_cvt_pk_bf16_f32 v{o+k}, v{64+12*ch+c+2*k}, v{64+12*ch+c+2*k+1}")
            a(f"ds_write_b128 v4, v[{o}:{o+3}] offset:{ch*KCHL + c*KCP}")
    a(f"""
    v_and_b32 v7, 15, v1
    v_lshrrev_b32 v2, 4, v1
    v_sub_u32 v60, 3, v7
    v_and_b32 v60, 3, v60
    v_mul_u32_u24 v61, {KCP - 2}, v60
    v_lshlrev_b32 v62, 1, v7
    v_sub_u32 v61, v61, v62
    v_lshl_add_u32 v61, v2, 4, v61
    s_mul_i32 s38, s27, {KCHL}
    s_lshl_b32 s39, s28, 8
    s_sub_u32 s38, s38, s39
    s_add_u32 s38, s38, {2*(2031 - 32*59)}
    v_add_u32 v20, s38, v61                  ; A base
    v_lshlrev_b32 v21, 5, v7
    v_lshl_add_u32 v21, v2, 4, v21
    s_mul_i32 s38, s27, {HCH}
    s_sub_u32 s38, s38, s39
    s_add_u32 s38, s38, {H_OFF + 2*(240 - 96)}
    v_add_u32 v21, s38, v21                  ; B base
    v_lshlrev_b32 v22, 5, v7
    v_lshl_add_u32 v22, v2, 3, v22
    s_lshl_b32 s38, s27, 12
    s_lshl_b32 s39, s28, 11
    s_add_u32 s38, s38, s39
    s_add_u32 s38, s38, {XR_OFF}
    v_add_u32 v23, s38, v22
    s_lshl_b32 s38, s30, 12
    s_lshl_b32 s39, s28, 11
    s_add_u32 s38, s38, s39
    s_add_u32 s38, s38, {WS_X2T}
    s_add_u32 s50, s22, s38
    s_addc_u32 s51, s23, 0
    s_lshl_b32 s43, s26, 12
    s_add_u32 s43, s43, {RED_OFF}
    v_lshlrev_b32 v24, 4, v1
    v_add_u32 v25, s43, v24
    s_xor_b32 s43, s26, 1
    s_lshl_b32 s43, s43, 12
    s_add_u32 s43, s43, {RED_OFF}
    v_add_u32 v26, s43, v24
    s_lshl_b32 s43, s27, 2
    s_add_u32 s43, s43, {MODS}
    v_mov_b32 v27, s43
    s_lshl_b32 s43, s26, 2
    s_add_u32 s43, s43, {FLG}
    v_mov_b32 v29, s43
    s_xor_b32 s43, s43, 4
    v_mov_b32 v30, s43
    v_mov_b32 v31, 0
    ds_write_b32 v29, v31
    """)
    for t in range(8):
        for r in range(4): a(f"v_mov_b32 v{VY+4*t+r}, 0")
    lds_arrive(a, 5, 36);
    h_addr(a, 0)
    lds_wait(a, 5, 4, 36, "k3")
    T = LdsTracker(a)
    def ldA(p, r):
        off = 512 * (7 - p) + 64 * (3 - r)
        T.issue(f"ds_read_b64 v[{VA+4*p}:{VA+4*p+1}], v20 offset:{off}", [f"A{p}"])
        T.issue(f"ds_read_b64 v[{VA+4*p+2}:{VA+4*p+3}], v20 offset:{off+8}", [f"A{p}"])
    def ldB(k, r):
        off = 512 * k + 64 * (3 - r)
        T.issue(f"ds_read_b128 v[{VB+4*k}:{VB+4*k+3}], v21 offset:{off}", [f"B{k}"])
    for p in range(8): ldA(p, 0)
    if SET == 0: a.stamp(4)
    lds_wait(a, 4, 1, 16, "k4", 1)
    T.done = T.issued
    h_body(a)
    a("s_barrier")
    if SET == 0: a.stamp(5)
    for k in range(7, -1, -1): ldB(k, 0)
    T.issue("ds_read_b32 v28, v27", ["ga"])
    for r in range(4):
        for p in range(8):
            for t in range(7, p - 1, -1):
                k = t - p
                T.need([f"A{p}", f"B{k}"])
                a(f"v_mfma_f32_16x16x32_bf16 v[{VY+4*t}:{VY+4*t+3}], v[{VA+4*p}:{VA+4*p+3}], v[{VB+4*k}:{VB+4*k+3}], v[{VY+4*t}:{VY+4*t+3}]")
                if t == 7 and r < 3: ldB(7 - p, r + 1)
            if r < 3: ldA(p, r + 1)
            if r == 3 and p == 4:
                for i in range(4): T.issue(f"ds_read_b64 v[{4+2*i}:{5+2*i}], v23 offset:{512*i}", ["xr"])
    T.need(["xr", "ga"])
    for i in range(4):
        a(f"v_lshlrev_b32 v{32+4*i}, 16, v{4+2*i}")
        a(f"v_and_b32 v{33+4*i}, 0xffff0000, v{4+2*i}")
        a(f"v_lshlrev_b32 v{34+4*i}, 16, v{5+2*i}")
        a(f"v_and_b32 v{35+4*i}, 0xffff0000, v{5+2*i}")
    a("s_cmp_eq_u32 s28, 1\ns_cbranch_scc1 k_hf1")
    def tail(hf):
        keep, send = 4 * hf, 4 * (1 - hf)
        for i in range(4):
            t = send + i
            a(f"ds_write_b128 v25, v[{VY+4*t}:{VY+4*t+3}] offset:{1024*i}")
        a("v_mov_b32 v31, 1\nds_write_b32 v29, v31")
        for i in range(4):
            for r in range(4): a(f"v_fma_f32 v{32+4*i+r}, v28, v{VY+4*(keep+i)+r}, v{32+4*i+r}")
        a(f"""
        k_hs{hf}:
        ds_read_b32 v31, v30
        s_waitcnt lgkmcnt(0)
        v_readfirstlane_b32 s43, v31
        s_cmp_eq_u32 s43, 1
        s_cbranch_scc0 k_hs{hf}
        """)
        for i in range(4): a(f"ds_read_b128 v[{64+4*i}:{67+4*i}], v26 offset:{1024*i}")
        for i in range(4):
            a(f"s_waitcnt lgkmcnt({3-i})")
            for r in range(4): a(f"v_fma_f32 v{32+4*i+r}, v28, v{64+4*i+r}, v{32+4*i+r}")
            a(f"v_cvt_pk_bf16_f32 v{12+2*i}, v{32+4*i}, v{33+4*i}")
            a(f"v_cvt_pk_bf16_f32 v{13+2*i}, v{34+4*i}, v{35+4*i}")
            a(f"global_store_dwordx2 v22, v[{12+2*i}:{13+2*i}], s[50:51] offset:{512*i}{X2SC}")
        a("s_endpgm")
    tail(0)
    a("k_hf1:")
    tail(1)

NSH = 4
def go_addr(a):
    a(f"""
    v_and_b32 v92, 31, v1
    v_lshlrev_b32 v92, 7, v92
    s_and_b32 s34, s2, {NSH-1}
    s_lshl_b32 s34, s34, 2
    s_add_u32 s34, s34, {WS_GO}
    v_add_u32 v92, s34, v92
    s_and_b32 s34, s2, 31
    s_lshl_b32 s34, s34, 7
    s_add_u32 s34, s34, {WS_GO}
    v_mov_b32 v94, s34
    """)
def go_load(a, o):
    a(f"""
    global_load_dword v93, v92, s[22:23] sc1
    global_load_dwordx4 v[{o}:{o+3}], v94, s[22:23] sc1
    """)
def grid_arrive(a, tag, t):
    assert AB_GRID % 2 == 0
    n = [len(range(k, AB_GRID, NSH)) for k in range(NSH)]
    assert n[0] - n[-1] <= 1
    cut = AB_GRID % NSH
    a(f"""
    s_and_b32 s34, s2, {NSH-1}
    s_lshl_b32 s36, s34, 6
    v_mov_b32 v{t}, s36
    v_mov_b32 v{t+1}, 1
    s_cmp_lt_u32 s34, {cut}
    s_cselect_b32 s37, 1, 0
    s_add_u32 s37, s37, {n[-1] - 1}
    s_mov_b64 exec, 1
    global_atomic_add v{t+2}, v{t}, v{t+1}, s[20:21] sc0 sc1
    s_waitcnt vmcnt(0)
    v_readfirstlane_b32 s36, v{t+2}
    s_mov_b64 exec, -1
    s_cmp_eq_u32 s36, s37
    s_cbranch_scc0 {tag}_arrived
    s_mov_b32 exec_hi, 0
    v_add_u32 v93, 1, v93
    global_store_dword v92, v93, s[22:23] sc1
    s_mov_b64 exec, -1
    {tag}_arrived:
    """)
def grid_wait(a, tag, t, o, slp=1, nmax=None):
    a(f"""
    s_mov_b32 s60, 0
    {tag}_poll_loop:
    global_load_dwordx4 v[{t}:{t+3}], v94, s[22:23] sc1
    s_waitcnt vmcnt(0)
    v_cmp_eq_u32 vcc, v{t}, v{o}
    v_cmp_eq_u32 s[58:59], v{t+1}, v{o+1}
    s_or_b64 vcc, vcc, s[58:59]
    v_cmp_eq_u32 s[58:59], v{t+2}, v{o+2}
    s_or_b64 vcc, vcc, s[58:59]
    v_cmp_eq_u32 s[58:59], v{t+3}, v{o+3}
    s_or_b64 vcc, vcc, s[58:59]
    s_cbranch_scc0 {tag}_go
    s_sleep {slp}
    s_add_u32 s60, s60, 1
    s_cmp_lt_u32 s60, {nmax or SPIN_MAX}
    s_cbranch_scc1 {tag}_poll_loop
    {tag}_go:
    """)

def gen_pwaves(a):
    a(f"""
    pwaves:
    s_load_dwordx2 s[4:5], s[0:1], 0         ; x
    s_load_dwordx4 s[44:47], s[0:1], 112     ; c, w_mod
    s_load_dwordx4 s[20:23], s[0:1], 136
    s_load_dwordx4 s[8:11], s[0:1], 80       ; w1, b1
    s_load_dwordx2 s[48:49], s[0:1], 96
    s_setprio {PPRIO}
    v_subrev_u32 v0, 256, v0
    s_sub_u32 s26, s26, 4
    v_lshrrev_b32 v3, 6, v0
    v_lshrrev_b32 v8, 4, v1                  ; row (0..3)
    v_and_b32 v9, 15, v1                     ; 16 B chunk
    v_lshlrev_b32 v4, 10, v8
    v_lshl_add_u32 v4, v9, 4, v4
    v_lshl_add_u32 v4, v3, 8, v4
    s_lshl_b32 s31, s2, 13
    v_add_u32 v4, s31, v4
    v_add_u32 v44, 4096, v4
    s_min_u32 s32, s7, 23
    s_mul_i32 s33, s6, 24
    s_add_u32 s33, s33, s32
    v_lshrrev_b32 v5, 1, v0                  ; rg
    v_and_b32 v6, 1, v0                      ; cc
    v_mul_u32_u24 v7, {4*6144}, v5
    v_lshl_add_u32 v7, v6, 4, v7
    s_lshl_b32 s34, s33, 5
    v_add_u32 v7, s34, v7
    v_lshlrev_b32 v2, 3, v5                  ; c offset
    """)
    go_addr(a)
    a("s_waitcnt lgkmcnt(0)")
    if SET == 1: a.stamp(0)
    a(f"""
    global_load_dwordx4 v[8:11], v4, s[4:5]
    global_load_dwordx4 v[12:15], v44, s[4:5]
    global_load_dwordx2 v[16:17], v2, s[44:45]
    """)
    for i in range(4):
        if i: a("v_add_u32 v7, 6144, v7")
        a(f"global_load_dwordx4 v[{20+4*i}:{23+4*i}], v7, s[46:47]")
    a(f"""
    v_mov_b32 v38, 0x3f803f80
    v_lshrrev_b32 v40, 4, v1
    v_mul_u32_u24 v39, 320, v40
    v_and_b32 v41, 15, v1
    v_lshl_add_u32 v39, v41, 4, v39
    s_mul_i32 s34, s26, 2560
    s_add_u32 s34, s34, {LNT}
    v_add_u32 v39, s34, v39
    v_lshrrev_b32 v47, 2, v41
    v_mul_u32_u24 v47, 320, v47
    v_and_b32 v46, 3, v41
    v_lshl_add_u32 v47, v46, 3, v47
    v_lshl_add_u32 v47, v40, 5, v47
    v_add_u32 v47, s34, v47
    v_lshl_add_u32 v46, v3, 7, v1
    v_lshlrev_b32 v46, 4, v46
    s_mul_i32 s34, s2, {XBS}
    s_add_u32 s34, s34, {WS_XB}
    v_add_u32 v46, s34, v46
    v_lshlrev_b32 v45, 3, v40
    s_lshl_b32 s34, s26, 6
    s_add_u32 s34, s34, {STP}
    v_add_u32 v45, s34, v45
    """)
    for r in range(2):
        b = 8 + 4 * r
        a(f"s_waitcnt vmcnt({6 - r})")
        a(f"ds_write_b128 v39, v[{b}:{b+3}] offset:{1280*r}")
        a(f"v_dot2_f32_bf16 v{72+2*r}, v{b}, v38, 0")
        a(f"v_dot2_f32_bf16 v{73+2*r}, v{b}, v{b}, 0")
        for k in range(1, 4):
            a(f"v_dot2_f32_bf16 v{72+2*r}, v{b+k}, v38, v{72+2*r}")
            a(f"v_dot2_f32_bf16 v{73+2*r}, v{b+k}, v{b+k}, v{73+2*r}")
    a("""
    s_waitcnt lgkmcnt(0)
    ds_read_b64_tr_b16 v[48:49], v47
    ds_read_b64_tr_b16 v[50:51], v47 offset:1280
    ds_read_b64_tr_b16 v[52:53], v47 offset:128
    ds_read_b64_tr_b16 v[54:55], v47 offset:1408
    """)
    if SET == 1: a.stamp(1)
    a("s_waitcnt vmcnt(4)")
    for i in range(4):
        src = 16 + i // 2
        a(f"v_lshlrev_b32 v{56+i}, 16, v{src}" if i % 2 == 0 else f"v_and_b32 v{56+i}, 0xffff0000, v{src}")
    for i in range(4): a(f"v_mul_f32 v{60+i}, {fx(-1.4426950408889634)}, v{56+i}")
    for i in range(4): a(f"v_exp_f32 v{60+i}, v{60+i}")
    dpps = ["row_shr:1", "row_shr:2", "row_shr:4", "row_shr:8", "row_bcast:15 row_mask:0xa", "row_bcast:31 row_mask:0xc"]
    def dpp4(d):
        m = "" if "row_mask" in d else " row_mask:0xf"
        for r in range(72, 76): a(f"v_add_f32_dpp v{r}, v{r}, v{r} {d}{m} bank_mask:0xf")
    dpp4(dpps[0])
    for i in range(4): a(f"v_add_f32 v{60+i}, 1.0, v{60+i}")
    dpp4(dpps[1])
    for i in range(4): a(f"v_rcp_f32 v{60+i}, v{60+i}")
    dpp4(dpps[2])
    for i in range(4): a(f"v_mul_f32 v{56+i}, v{56+i}, v{60+i}")
    dpp4(dpps[3])
    for i in range(4):
        a(f"v_cvt_pk_bf16_f32 v{60+i}, v{56+i}, 0")
        a(f"v_cvt_pk_bf16_f32 v{76+i}, 0, v{56+i}")
    a(f"""
    s_waitcnt lgkmcnt(0)
    global_store_dwordx4 v46, v[48:51], s[22:23] sc1
    global_store_dwordx4 v46, v[52:55], s[22:23] offset:1024 sc1
    v_cmp_eq_u32 vcc, 15, v41
    s_and_saveexec_b64 s[54:55], vcc
    ds_write_b64 v45, v[72:73]
    ds_write_b64 v45, v[74:75] offset:32
    s_mov_b64 exec, s[54:55]
    """)
    for i in range(4):
        a(f"s_waitcnt vmcnt({5 - i})")
        for m in range(4):
            c0 = "0" if i == 0 else f"v{64+2*m}"; c1 = "0" if i == 0 else f"v{65+2*m}"
            a(f"v_dot2_f32_bf16 v{64+2*m}, v{20+4*i+m}, v{60+i}, {c0}")
            a(f"v_dot2_f32_bf16 v{65+2*m}, v{20+4*i+m}, v{76+i}, {c1}")
    a("s_nop 2")
    for d in ["row_shr:2", "row_shr:4", "row_shr:8"]:
        for r in range(64, 72): a(f"v_add_f32_dpp v{r}, v{r}, v{r} {d} row_mask:0xf bank_mask:0xf")
    a(f"""
    v_lshrrev_b32 v4, 4, v0
    v_mul_u32_u24 v4, 80, v4
    v_lshl_add_u32 v4, v6, 5, v4
    v_add_u32 v4, {MODS}, v4
    v_and_b32 v5, 15, v0
    v_cmp_lt_u32 vcc, 13, v5
    v_lshlrev_b32 v5, 2, v5
    v_add_u32 v5, {MODS}, v5
    s_and_saveexec_b64 s[54:55], vcc
    ds_write_b128 v4, v[64:67]
    ds_write_b128 v4, v[68:71] offset:16
    s_mov_b64 exec, s[54:55]
    s_waitcnt lgkmcnt(0)
    """)
    if SET == 1: a.stamp(2)
    a("""
    s_cmp_eq_u32 s26, 0
    s_cbranch_scc0 p_nogo
    """)
    go_load(a, 96)
    a("p_nogo:")
    lds_arrive(a, 0, 36); lds_wait(a, 0, 4, 36, "p1")
    for i in range(16): a(f"ds_read_b32 v{20+i}, v5 offset:{80*i}")
    a(f"""
    v_and_b32 v58, 7, v0
    v_lshlrev_b32 v59, 3, v58
    v_add_u32 v59, {STP}, v59
    ds_read_b64 v[48:49], v59
    ds_read_b64 v[50:51], v59 offset:64
    ds_read_b64 v[52:53], v59 offset:128
    ds_read_b64 v[54:55], v59 offset:192
    v_lshlrev_b32 v58, 2, v58
    s_lshl_b32 s34, s2, 5
    s_add_u32 s34, s34, {WS_ST1}
    v_add_u32 v58, s34, v58
    s_waitcnt lgkmcnt(0)
    v_add_f32 v48, v48, v50
    v_add_f32 v49, v49, v51
    v_add_f32 v52, v52, v54
    v_add_f32 v53, v53, v55
    v_add_f32 v56, v48, v52
    v_add_f32 v57, v49, v53
    v_mul_f32 v56, {fx(1.0/512)}, v56        ; mean
    v_mul_f32 v57, {fx(1.0/512)}, v57
    v_fma_f32 v57, -v56, v56, v57
    v_max_f32 v57, 0, v57
    v_add_f32 v57, {fx(1e-5)}, v57
    v_rsq_f32 v57, v57
    v_cmp_gt_u32 vcc, 8, v0
    v_mul_f32 v56, -v56, v57
    v_cvt_pk_bf16_f32 v56, v57, v56          ; (r, -mean*r)
    s_and_saveexec_b64 s[54:55], vcc
    s_cbranch_execz p_nostat
    global_store_dword v58, v56, s[22:23] sc1
    p_nostat:
    s_mov_b64 exec, s[54:55]
    """)
    for st in (1, 2, 4, 8):
        for i in range(0, 16, 2 * st): a(f"v_add_f32 v{20+i}, v{20+i}, v{20+i+st}")
    a(f"""
    v_cvt_pk_bf16_f32 v20, v20, v20
    v_lshlrev_b32 v20, 16, v20
    s_lshl_b32 s34, s33, 7
    s_add_u32 s34, s34, {WS_MODP}
    v_lshlrev_b32 v4, 2, v0
    v_add_u32 v4, s34, v4
    s_cmp_lt_u32 s7, 24
    s_cselect_b32 s34, 16, 0
    v_cmp_gt_u32 vcc, s34, v0
    s_and_saveexec_b64 s[54:55], vcc
    s_cbranch_execz p_nomod
    global_store_dword v4, v20, s[22:23] sc1
    p_nomod:
    s_mov_b64 exec, s[54:55]
    """)
    a("s_waitcnt vmcnt(0)")
    lds_arrive(a, 1, 36)
    if SET == 1: a.stamp(3)
    a(f"""
    """)
    h_addr(a, 256)
    a("s_cmp_eq_u32 s26, 0\ns_cbranch_scc0 p_wait_release")
    lds_wait(a, 1, 4, 36, "p2")
    grid_arrive(a, "p", 36); grid_wait(a, "p", 40, 96)
    lds_arrive(a, 4, 36)
    a("s_setprio 0\ns_branch p_released\np_wait_release:\ns_setprio 0")
    lds_wait(a, 4, 1, 36, "p3", 1)
    a("p_released:")
    if SET == 1: a.stamp(4)
    h_body(a)
    if SET == 1: a.stamp(5)
    a("s_barrier")
    a(f"""
    s_lshr_b32 s47, s2, 3
    s_mul_i32 s47, s47, 44032
    v_lshlrev_b32 v8, 6, v0
    v_add_u32 v8, s47, v8
    global_load_dword v9, v8, s[48:49]
    v_add_u32 v8, 16384, v8
    global_load_dword v10, v8, s[48:49]
    s_add_u32 s47, s47, {32768 + 175*64}
    v_add_u32 v8, 16384, v8
    v_min_u32 v8, s47, v8
    global_load_dword v11, v8, s[48:49]
    s_endpgm
    """)

def gen_w1p(a):
    IMG = 0
    RED = 16384
    a(f"""
    w1p:
    s_load_dwordx4 s[8:11], s[0:1], 80       ; w1, b1
    s_load_dwordx4 s[20:23], s[0:1], 136     ; debug, ws
    s_sub_u32 s3, s2, {NMAIN}                ; half block hb : fblk = hb>>1, mhalf = hb&1
    v_and_b32 v1, 63, v0
    v_lshrrev_b32 v2, 6, v0
    v_lshrrev_b32 v3, 1, v0                  ; rg
    v_and_b32 v4, 1, v0                      ; cc
    v_readfirstlane_b32 s26, v2
    v_mul_u32_u24 v5, {4*2752}, v3
    v_lshl_add_u32 v5, v4, 4, v5
    s_lshl_b32 s9, s3, 5
    s_waitcnt lgkmcnt(0)
    """.replace("s_lshl_b32 s9, s3, 5\n", ""))
    a(f"""
    s_lshl_b32 s12, s3, 5
    v_add_u32 v5, s12, v5
    """)
    go_addr(a)
    a("s_cmp_eq_u32 s26, 0\ns_cbranch_scc0 w_noarr")
    go_load(a, 100)
    a("s_waitcnt vmcnt(0)")
    grid_arrive(a, "w", 96)
    a("w_noarr:")
    a(f"""
    v_and_b32 v7, 15, v0
    v_lshlrev_b32 v7, 1, v7
    v_add_u32 v55, s12, v7                   ; b1 address
    v_mov_b32 v57, 0x3f803f80
    v_lshrrev_b32 v58, 2, v3
    v_lshlrev_b32 v58, 9, v58
    v_bfe_u32 v59, v3, 1, 1
    v_lshl_add_u32 v58, v59, 8, v58
    v_lshl_add_u32 v58, v4, 7, v58
    v_and_b32 v59, 1, v3
    v_lshl_add_u32 v58, v59, 3, v58
    v_lshrrev_b32 v6, 2, v3
    v_lshlrev_b32 v6, 7, v6
    v_and_b32 v7, 3, v3
    v_lshl_add_u32 v6, v7, 4, v6
    v_add_u32 v6, {WS_MODP + 96*128}, v6
    v_add_u32 v7, 4096, v6
    """)
    EARLY = os.environ.get("W1EARLY", "1") == "1"
    def w1loads():
        for i in range(4):
            if i: a("v_add_u32 v5, 2752, v5")
            a(f"global_load_dwordx4 v[{64+4*i}:{67+4*i}], v5, s[8:9]")
        a("global_load_ushort v56, v55, s[10:11]")
    def unpack():
        for i in range(4):
            for e in range(8):
                src = 64 + 4 * i + e // 2
                a(f"v_lshlrev_b32 v{24+8*i+e}, 16, v{src}" if e % 2 == 0 else f"v_and_b32 v{24+8*i+e}, 0xffff0000, v{src}")
    NPRE = int(os.environ.get("WPRE", 2))
    if EARLY:
        if NPRE:
            a("s_cmp_eq_u32 s26, 0\ns_cbranch_scc0 w_pre")
            grid_wait(a, "w0", 96, 100, int(os.environ.get("WSLP", 8)), NPRE)
            a("w_pre:\ns_barrier")
        w1loads()
        a("s_waitcnt vmcnt(1)")
        unpack()
    a("s_cmp_eq_u32 s26, 0\ns_cbranch_scc0 w_released")
    grid_wait(a, "w", 96, 100, 4)
    a("w_released:\ns_barrier")
    if not EARLY: w1loads()
    a(f"""
    global_load_dwordx4 v[8:11], v6, s[22:23] sc1        ; sb
    global_load_dwordx4 v[12:15], v7, s[22:23] sc1       ; cb
    """)
    if not EARLY:
        a("s_waitcnt vmcnt(3)")
        unpack()
    a("s_waitcnt vmcnt(0)")
    for i in range(4): a(f"v_add_f32 v{12+i}, 1.0, v{12+i}")
    a("v_cvt_pk_bf16_f32 v16, v12, v13\nv_cvt_pk_bf16_f32 v17, v14, v15")
    a("v_lshlrev_b32 v12, 16, v16\nv_and_b32 v13, 0xffff0000, v16\nv_lshlrev_b32 v14, 16, v17\nv_and_b32 v15, 0xffff0000, v17")
    for e in range(8): a(f"v_mul_f32 v{72+e}, v8, v{24+e}")
    for i in range(1, 4):
        for e in range(8): a(f"v_fmac_f32 v{72+e}, v{8+i}, v{24+8*i+e}")
    for i in range(4):
        for e in range(8): a(f"v_mul_f32 v{24+8*i+e}, v{12+i}, v{24+8*i+e}")
    for e in range(8):
        a(f"v_cvt_pk_bf16_f32 v{80+2*e}, v{24+e}, v{32+e}")
        a(f"v_cvt_pk_bf16_f32 v{81+2*e}, v{40+e}, v{48+e}")
    for e in range(8): a(f"ds_write_b64 v58, v[{80+2*e}:{81+2*e}] offset:{IMG + 16*e}")
    for e in range(8): a(f"v_dot2_f32_bf16 v{64+e}, v{80+2*e}, v57, 0")
    for e in range(8): a(f"v_dot2_f32_bf16 v{64+e}, v{81+2*e}, v57, v{64+e}")
    a("s_nop 2")
    for d in ["row_shr:2", "row_shr:4", "row_shr:8"]:
        for r in range(64, 80): a(f"v_add_f32_dpp v{r}, v{r}, v{r} {d} row_mask:0xf bank_mask:0xf")
    a(f"""
    v_lshrrev_b32 v5, 4, v0                  ; part
    v_mul_u32_u24 v5, 144, v5
    v_lshl_add_u32 v5, v4, 5, v5
    v_and_b32 v6, 15, v0
    v_cmp_lt_u32 vcc, 13, v6
    s_and_saveexec_b64 s[54:55], vcc
    ds_write_b128 v5, v[64:67] offset:{RED}
    ds_write_b128 v5, v[68:71] offset:{RED + 16}
    ds_write_b128 v5, v[72:75] offset:{RED + 64}
    ds_write_b128 v5, v[76:79] offset:{RED + 80}
    s_mov_b64 exec, s[54:55]
    v_lshlrev_b32 v7, 4, v0
    s_lshr_b32 s13, s3, 1
    s_lshl_b32 s13, s13, 15
    s_and_b32 s14, s3, 1
    s_lshl_b32 s14, s14, 8
    s_add_u32 s13, s13, s14
    s_add_u32 s13, s13, {WS_W1F}
    v_lshrrev_b32 v8, 4, v0
    v_lshlrev_b32 v8, 9, v8                  ; g*512 + s*1024 == (2s+g)*512
    v_lshl_add_u32 v8, v6, 4, v8
    v_add_u32 v8, s13, v8
    v_and_b32 v9, 31, v0
    v_lshlrev_b32 v9, 2, v9
    s_waitcnt lgkmcnt(0)
    s_barrier
    """)
    for k in range(4): a(f"ds_read_b128 v[{24+4*k}:{27+4*k}], v7 offset:{IMG + 4096*k}")
    a(f"""
    v_lshlrev_b32 v9, 2, v6
    v_bfe_u32 v10, v0, 4, 1
    v_lshl_add_u32 v9, v10, 6, v9            ; (t&15)*4 + ((t>>4)&1)*64
    """)
    for p in range(16): a(f"ds_read_b32 v{40+p}, v9 offset:{RED + 144*p}")
    for k in range(4):
        a(f"s_waitcnt lgkmcnt({15 if k == 0 else 15})" if False else "")
    a("s_waitcnt lgkmcnt(15)")
    a("s_waitcnt lgkmcnt(0)")
    for k in range(4):
        a(f"global_store_dwordx4 v8, v[{24+4*k}:{27+4*k}], s[22:23]{W1SC}")
        if k < 3: a(f"v_add_u32 v8, {16*512}, v8")
    for st in (1, 2, 4, 8):
        for p in range(0, 16, 2 * st): a(f"v_add_f32 v{40+p}, v{40+p}, v{40+p+st}")
    a(f"""
    v_lshlrev_b32 v56, 16, v56
    v_cmp_eq_u32 vcc, 1, v10
    s_nop 1
    v_cndmask_b32 v56, 0, v56, vcc
    v_add_f32 v40, v40, v56
    s_lshl_b32 s13, s3, 6
    v_lshl_add_u32 v11, v6, 2, s13
    v_mov_b32 v12, {WS_CS}
    v_mov_b32 v13, {WS_B1P}
    v_cndmask_b32 v12, v12, v13, vcc
    v_add_u32 v11, v11, v12
    v_cmp_gt_u32 vcc, 32, v0
    s_and_saveexec_b64 s[54:55], vcc
    s_cbranch_execz w1p_end
    global_store_dword v11, v40, s[22:23]{SC}
    w1p_end:
    s_endpgm
    """)

def gen_AB(a):
    a(f"""
    s_cmp_ge_u32 s2, {NMAIN}
    s_cbranch_scc1 ab_other
    v_lshrrev_b32 v3, 6, v0
    v_and_b32 v1, 63, v0
    s_and_b32 s6, s2, 7
    s_lshr_b32 s7, s2, 3
    v_readfirstlane_b32 s26, v3              ; wave
    v_lshlrev_b32 v4, 2, v0
    v_add_u32 v4, {CNT}, v4
    v_mov_b32 v5, 0
    v_cmp_gt_u32 vcc, 8, v0
    s_and_saveexec_b64 s[54:55], vcc
    ds_write_b32 v4, v5
    s_mov_b64 exec, s[54:55]
    s_lshl_b32 s29, s6, 6
    s_lshl_b32 s30, s7, 1
    s_add_u32 s29, s29, s30
    s_waitcnt lgkmcnt(0)
    s_barrier
    s_cmp_lt_u32 s26, 4
    s_cbranch_scc1 kwaves
    """)
    gen_pwaves(a)
    gen_kwaves(a)
    a(f"""
    ab_other:
    s_cmp_lt_u32 s2, {AB_GRID}
    s_cbranch_scc0 ab_end
    v_cmp_gt_u32 vcc, 256, v0
    s_cbranch_vccnz w1p
    ab_end:
    s_endpgm
    """)
    gen_w1p(a)

if __name__ == "__main__":
    ks = [("convab_kernel", gen_AB, 128, AB_GRID, 512, AB_LDS),
          ("gemm1_kernel", gen_C, 176, C_GRID, 512, C_LDS),
          ("gemm2_kernel", gen_D, 128, D_GRID, 512, D_LDS)]
    s = build(ks)
    path = sys.argv[1] if len(sys.argv) > 1 else "out.s"
    open(path, "w").write(s)
    print("wrote", path, len(s))
```

```python
from g3 import *
import g3

HIDSC = os.environ.get("HIDSC", " sc1")
OUTSC = os.environ.get("OUTSC", "")
NCONV, NW1 = 256, 43
B_GRID = NCONV + NW1
KCP = 4160
KCHL = 4 * KCP
H_OFF = 2 * KCHL
HCH = 4608
RED_OFF = H_OFF + 2 * HCH
B_LDS = RED_OFF + 16384

def gen_conv(a):
    VA, VB, VY = 64, 96, 128
    a(f"""
    conv:
    s_load_dwordx2 s[20:21], s[0:1], 144
    s_load_dwordx2 s[48:49], s[0:1], 96
    v_lshrrev_b32 v3, 6, v0
    v_and_b32 v1, 63, v0
    v_lshlrev_b32 v5, 4, v0                  ; tid*16
    v_readfirstlane_b32 s26, v3              ; wave
    s_lshl_b32 s29, s2, 1                    ; d0
    s_mul_i32 s32, s29, {KCH}
    s_add_u32 s32, s32, {WS_KE}
    s_add_u32 s33, s32, {KCH}
    s_lshl_b32 s36, s29, 12
    s_add_u32 s36, s36, {WS_XT}
    s_add_u32 s37, s36, 4096
    v_lshlrev_b32 v6, 5, v0
    s_mov_b32 s38, {WS_ST1}
    s_lshr_b32 s27, s26, 1                   ; ch
    s_and_b32 s28, s26, 1                    ; hf
    s_add_u32 s30, s29, s27                  ; d
    s_waitcnt lgkmcnt(0)
    """)
    srd(a, 8, 20, WS_SIZE)
    a.stamp(0)
    a(f"""
    buffer_load_dwordx4 v[8:11], v5, s[8:11], s36 offen          ; x ch0
    buffer_load_dwordx4 v[12:15], v5, s[8:11], s37 offen         ; x ch1
    buffer_load_dwordx4 v[16:19], v6, s[8:11], s38 offen         ; stats
    buffer_load_dwordx4 v[20:23], v6, s[8:11], s38 offen offset:16
    buffer_load_dwordx4 v[24:27], v5, s[8:11], s32 offen         ; K ch0
    buffer_load_dwordx2 v[28:29], v5, s[8:11], s32 offen offset:16
    buffer_load_dwordx4 v[32:35], v5, s[8:11], s33 offen         ; K ch1
    buffer_load_dwordx2 v[36:37], v5, s[8:11], s33 offen offset:16
    s_lshl_b32 s31, s29, 2
    s_add_u32 s4, s20, s31
    s_addc_u32 s5, s21, 0
    s_load_dwordx2 s[12:13], s[4:5], {WS_MOD}            ; sa
    s_load_dwordx2 s[14:15], s[4:5], {WS_MOD + 2048}     ; ca
    s_load_dwordx2 s[16:17], s[4:5], {WS_MOD + 4096}     ; ga
    """)
    a.stamp(1)
    a(f"""
    v_and_b32 v7, 15, v1                     ; j / i
    v_lshrrev_b32 v2, 4, v1                  ; G / g
    v_lshlrev_b32 v4, 5, v7
    v_lshl_add_u32 v4, v2, 3, v4
    s_lshl_b32 s39, s30, 12
    s_lshl_b32 s40, s28, 11
    s_add_u32 s39, s39, s40
    s_add_u32 s41, s39, {WS_XT}
    s_add_u32 s42, s39, {WS_X2T}
    v_mov_b32 v56, 0
    v_mov_b32 v57, 0
    v_mov_b32 v58, 0
    v_mov_b32 v59, 0
    v_lshrrev_b32 v60, 1, v0
    v_mul_u32_u24 v60, {KCP}, v60
    v_and_b32 v61, 1, v0
    v_lshl_add_u32 v60, v61, 4, v60
    v_add_u32 v60, 4096, v60
    v_bfe_u32 v61, v0, 5, 1
    v_mul_u32_u24 v61, {HCH}, v61
    v_and_b32 v62, 31, v0
    v_lshl_add_u32 v61, v62, 4, v61
    v_add_u32 v61, {H_OFF}, v61
    v_cmp_gt_u32 vcc, 16, v0
    s_cmp_eq_u32 s26, 1
    s_cbranch_scc1 conv_padh
    s_cmp_eq_u32 s26, 0
    s_cbranch_scc0 conv_pad_done
    s_and_saveexec_b64 s[44:45], vcc
    ds_write_b128 v60, v[56:59]
    s_mov_b64 exec, s[44:45]
    s_branch conv_pad_done
    conv_padh:
    ds_write_b128 v61, v[56:59]
    conv_pad_done:
    v_sub_u32 v60, 3, v7
    v_and_b32 v60, 3, v60                    ; c
    v_mul_u32_u24 v61, {KCP - 2}, v60
    v_lshlrev_b32 v62, 1, v7
    v_sub_u32 v61, v61, v62
    v_lshl_add_u32 v61, v2, 4, v61
    s_mul_i32 s43, s27, {KCHL}
    s_lshl_b32 s44, s28, 8
    s_sub_u32 s43, s43, s44
    s_add_u32 s43, s43, {2*(2031 - 32*59)}
    v_add_u32 v40, s43, v61                  ; v40 = A base
    v_lshlrev_b32 v41, 5, v7
    v_lshl_add_u32 v41, v2, 4, v41
    s_mul_i32 s43, s27, {HCH}
    s_sub_u32 s43, s43, s44
    s_add_u32 s43, s43, {H_OFF + 2*(240 - 96)}
    v_add_u32 v41, s43, v41                  ; v41 = B base
    v_add_u32 v42, {H_OFF + 512}, v5
    """)
    for t in range(8):
        for r in range(4): a(f"v_mov_b32 v{VY+4*t+r}, 0")
    a(f"""
    s_waitcnt lgkmcnt(0)
    v_add_f32 v44, 1.0, s14
    v_add_f32 v45, 1.0, s15
    v_cvt_pk_bf16_f32 v44, v44, v45
    v_mov_b32 v46, s12
    v_mov_b32 v47, s13
    v_and_b32 v45, 0xffff0000, v44
    v_lshlrev_b32 v44, 16, v44
    s_cmp_eq_u32 s27, 0
    s_cselect_b32 s46, s16, s17
    s_waitcnt vmcnt(4)
    """)
    a.stamp(2)
    for e in range(8):
        a(f"v_lshlrev_b32 v{64+e}, 16, v{16+e}")
        a(f"v_and_b32 v{72+e}, 0xffff0000, v{16+e}")
    for ch in range(2):
        src = 8 + 4 * ch; gam = 44 + ch; sa = 46 + ch
        for e in range(8):
            a(f"v_lshlrev_b32 v{80+e}, 16, v{src + e//2}" if e % 2 == 0 else f"v_and_b32 v{80+e}, 0xffff0000, v{src + e//2}")
        for e in range(8): a(f"v_fma_f32 v{80+e}, v{80+e}, v{64+e}, v{72+e}")
        for e in range(8): a(f"v_fma_f32 v{80+e}, v{80+e}, v{gam}, v{sa}")
        for p in range(4): a(f"v_cvt_pk_bf16_f32 v{src+p}, v{80+2*p}, v{81+2*p}")
        a(f"ds_write_b128 v42, v[{src}:{src+3}] offset:{ch*HCH}")
    for ch in range(2):
        D = 24 + 8 * ch
        a(f"s_waitcnt vmcnt({2 - 2*ch})")
        base = ch * KCHL
        a(f"ds_write_b128 v5, v[{D}:{D+3}] offset:{base}")
        for k in range(4): a(f"v_alignbit_b32 v{88+k}, v{D+k+1}, v{D+k}, 16")
        a(f"ds_write_b128 v5, v[88:91] offset:{base + KCP}")
        a(f"v_mov_b64 v[92:93], v[{D+2}:{D+3}]" if False else f"v_mov_b32 v92, v{D+1}")
        a(f"v_mov_b32 v93, v{D+2}")
        a(f"v_mov_b32 v94, v{D+3}")
        a(f"v_mov_b32 v95, v{D+4}")
        a(f"ds_write_b128 v5, v[92:95] offset:{base + 2*KCP}")
        a(f"v_mov_b32 v48, v89")
        a(f"v_mov_b32 v49, v90")
        a(f"v_mov_b32 v50, v91")
        a(f"v_alignbit_b32 v51, v{D+5}, v{D+4}, 16")
        a(f"ds_write_b128 v5, v[48:51] offset:{base + 3*KCP}")
    a("s_waitcnt lgkmcnt(0)")
    a.stamp(3)
    a("s_barrier")
    a.stamp(4)
    T = LdsTracker(a)
    def ldA(p, r):
        off = 512 * (7 - p) + 64 * (3 - r)
        T.issue(f"ds_read_b64 v[{VA+4*p}:{VA+4*p+1}], v40 offset:{off}", [f"A{p}"])
        T.issue(f"ds_read_b64 v[{VA+4*p+2}:{VA+4*p+3}], v40 offset:{off+8}", [f"A{p}"])
    def ldB(k, r):
        off = 512 * k + 64 * (3 - r)
        T.issue(f"ds_read_b128 v[{VB+4*k}:{VB+4*k+3}], v41 offset:{off}", [f"B{k}"])
    for p in range(8):
        ldB(7 - p, 0); ldA(p, 0)
    for i in range(4):
        a(f"buffer_load_dwordx2 v[{48+2*i}:{49+2*i}], v4, s[8:11], s41 offen offset:{512*i}")
    a(f"""
    s_lshr_b32 s47, s2, 3
    s_mul_i32 s47, s47, 44032
    v_lshlrev_b32 v8, 6, v0                  ; tid*64
    v_add_u32 v8, s47, v8
    global_load_dword v9, v8, s[48:49]
    v_add_u32 v8, 16384, v8
    global_load_dword v10, v8, s[48:49]
    s_add_u32 s47, s47, {32768 + 175*64}
    v_add_u32 v8, 16384, v8
    v_min_u32 v8, s47, v8
    global_load_dword v11, v8, s[48:49]
    """)
    for r in range(4):
        for p in range(8):
            for t in range(7, p - 1, -1):
                k = t - p
                T.need([f"A{p}", f"B{k}"])
                a(f"v_mfma_f32_16x16x32_bf16 v[{VY+4*t}:{VY+4*t+3}], v[{VA+4*p}:{VA+4*p+3}], v[{VB+4*k}:{VB+4*k+3}], v[{VY+4*t}:{VY+4*t+3}]")
                if t == 7 and r < 3: ldB(7 - p, r + 1)
            if r < 3: ldA(p, r + 1)
    a.stamp(5)
    a(f"""
    s_lshl_b32 s43, s26, 12
    s_add_u32 s43, s43, {RED_OFF}
    v_lshlrev_b32 v33, 4, v1
    v_add_u32 v34, s43, v33
    s_xor_b32 s43, s26, 1
    s_lshl_b32 s43, s43, 12
    s_add_u32 s43, s43, {RED_OFF}
    v_add_u32 v35, s43, v33
    s_cmp_eq_u32 s28, 1
    s_cbranch_scc1 conv_hf1
    """)
    def tail(hf):
        keep, send = 4 * hf, 4 * (1 - hf)
        a("s_nop 1")
        for i in range(4):
            t = send + i
            a(f"ds_write_b128 v34, v[{VY+4*t}:{VY+4*t+3}] offset:{1024*i}")
        a("s_waitcnt vmcnt(3)")
        for i in range(4):
            x0, x1 = 48 + 2 * i, 49 + 2 * i
            a(f"v_lshlrev_b32 v{80+4*i}, 16, v{x0}")
            a(f"v_and_b32 v{81+4*i}, 0xffff0000, v{x0}")
            a(f"v_lshlrev_b32 v{82+4*i}, 16, v{x1}")
            a(f"v_and_b32 v{83+4*i}, 0xffff0000, v{x1}")
        for i in range(4):
            for r in range(4): a(f"v_fma_f32 v{80+4*i+r}, s46, v{VY+4*(keep+i)+r}, v{80+4*i+r}")
        a("s_waitcnt lgkmcnt(0)")
        a("s_barrier")
        for i in range(4): a(f"ds_read_b128 v[{64+4*i}:{67+4*i}], v35 offset:{1024*i}")
        for i in range(4):
            a(f"s_waitcnt lgkmcnt({3-i})")
            for r in range(4): a(f"v_fma_f32 v{80+4*i+r}, s46, v{64+4*i+r}, v{80+4*i+r}")
            a(f"v_cvt_pk_bf16_f32 v{12+2*i}, v{80+4*i}, v{81+4*i}")
            a(f"v_cvt_pk_bf16_f32 v{13+2*i}, v{82+4*i}, v{83+4*i}")
            a(f"buffer_store_dwordx2 v[{12+2*i}:{13+2*i}], v4, s[8:11], s42 offen offset:{512*i}{SC}")
        a("s_endpgm")
    tail(0)
    a("conv_hf1:")
    tail(1)

def gen_w1p(a):
    FR = 0; RED1 = 32768; RED2 = RED1 + 9216; RED3 = RED2 + 9216
    a(f"""
    w1p:
    s_load_dwordx4 s[4:7], s[0:1], 80        ; w1, b1
    s_load_dwordx2 s[20:21], s[0:1], 144
    s_sub_u32 s3, s2, {NCONV}                ; fblk
    v_lshrrev_b32 v3, 2, v0                  ; rg
    v_and_b32 v4, 3, v0                      ; cc
    v_mul_u32_u24 v5, {8*2752}, v3
    v_lshl_add_u32 v5, v4, 4, v5
    s_lshl_b32 s9, s3, 6
    v_add_u32 v5, s9, v5
    v_lshlrev_b32 v6, 5, v3
    s_waitcnt lgkmcnt(0)
    s_add_u32 s12, s20, {WS_MOD + 3*2048}
    s_addc_u32 s13, s21, 0
    global_load_dwordx4 v[8:11], v6, s[12:13]              ; sb
    global_load_dwordx4 v[12:15], v6, s[12:13] offset:16
    global_load_dwordx4 v[16:19], v6, s[12:13] offset:2048 ; cb
    global_load_dwordx4 v[20:23], v6, s[12:13] offset:2064
    """)
    for i in range(8):
        if i: a("v_add_u32 v5, 2752, v5")
        a(f"global_load_dwordx4 v[{24+4*i}:{27+4*i}], v5, s[4:5]")
    a(f"""
    v_and_b32 v7, 31, v0
    v_lshlrev_b32 v7, 1, v7
    s_lshl_b32 s9, s3, 6
    v_add_u32 v7, s9, v7
    global_load_ushort v56, v7, s[6:7]
    v_mov_b32 v57, 0x3f803f80
    s_waitcnt vmcnt(9)
    """)
    for i in range(8): a(f"v_add_f32 v{16+i}, 1.0, v{16+i}")
    for i in range(4): a(f"v_cvt_pk_bf16_f32 v{58+i}, v{16+2*i}, v{17+2*i}")
    for i in range(8):
        if i % 2 == 0: a(f"v_lshlrev_b32 v{16+i}, 16, v{58+i//2}")
        else: a(f"v_and_b32 v{16+i}, 0xffff0000, v{58+i//2}")
    for e in range(16): a(f"v_mov_b32 v{96+e}, 0")
    for u in range(4):
        a(f"s_waitcnt vmcnt({1 + 6 - 2*u})")
        for h in range(2):
            i = 2 * u + h
            for e in range(8):
                src = 24 + 4 * i + e // 2
                if e % 2 == 0: a(f"v_lshlrev_b32 v{112+8*h+e}, 16, v{src}")
                else: a(f"v_and_b32 v{112+8*h+e}, 0xffff0000, v{src}")
            for e in range(8): a(f"v_fmac_f32 v{104+e}, v{8+i}, v{112+8*h+e}")
            for e in range(8): a(f"v_mul_f32 v{112+8*h+e}, v{16+i}, v{112+8*h+e}")
        for e in range(8): a(f"v_cvt_pk_bf16_f32 v{64+4*e+u}, v{112+e}, v{120+e}")
        for e in range(8): a(f"v_dot2_f32_bf16 v{96+e}, v{64+4*e+u}, v57, v{96+e}")
    a(f"""
    s_waitcnt vmcnt(0)
    s_waitcnt vmcnt(0)
    v_lshrrev_b32 v5, 1, v3
    v_lshlrev_b32 v5, 10, v5
    v_and_b32 v6, 1, v3
    v_lshl_add_u32 v5, v6, 9, v5
    v_lshl_add_u32 v5, v4, 7, v5
    v_lshl_add_u32 v6, v6, 2, v4
    """)
    for e in range(8):
        a(f"v_xor_b32 v7, {e}, v6")
        a(f"v_lshl_add_u32 v7, v7, 4, v5")
        a(f"ds_write_b128 v7, v[{64+4*e}:{67+4*e}] offset:{FR}")
    a(f"""
    v_mul_u32_u24 v5, 144, v3
    v_lshl_add_u32 v5, v4, 5, v5
    ds_write_b128 v5, v[96:99] offset:{RED1}
    ds_write_b128 v5, v[100:103] offset:{RED1+16}
    ds_write_b128 v5, v[104:107] offset:{RED2}
    ds_write_b128 v5, v[108:111] offset:{RED2+16}
    v_and_b32 v1, 63, v0
    v_lshrrev_b32 v2, 6, v0                  ; wave
    v_lshrrev_b32 v6, 5, v1                  ; g
    v_bfe_u32 v7, v1, 3, 2                   ; cc
    v_and_b32 v8, 7, v1                      ; e
    v_lshl_add_u32 v9, v6, 2, v7             ; 4g+cc
    v_xor_b32 v8, v8, v9
    v_lshl_add_u32 v8, v7, 3, v8             ; slot
    v_lshlrev_b32 v8, 4, v8
    v_lshl_add_u32 v8, v6, 9, v8
    v_lshl_add_u32 v8, v2, 13, v8
    v_lshlrev_b32 v9, 4, v1
    v_lshl_add_u32 v9, v2, 13, v9
    s_lshl_b32 s9, s3, 15
    s_add_u32 s9, s9, {WS_W1F}
    v_add_u32 v9, s9, v9
    v_and_b32 v6, 31, v0
    v_lshrrev_b32 v7, 5, v0
    v_mul_u32_u24 v7, {8*144}, v7
    v_lshl_add_u32 v7, v6, 2, v7
    s_waitcnt lgkmcnt(0)
    s_barrier
    """)
    for s in range(8): a(f"ds_read_b128 v[{64+4*s}:{67+4*s}], v8 offset:{FR + 1024*s}")
    for i in range(8): a(f"ds_read_b32 v{16+i}, v7 offset:{RED1 + 144*i}")
    for s in range(8):
        a(f"s_waitcnt lgkmcnt({15-s})")
        a(f"global_store_dwordx4 v9, v[{64+4*s}:{67+4*s}], s[20:21] offset:{1024*(s%4)}{SC}")
        if s == 3: a("v_add_u32 v9, 4096, v9")
    for i in range(8): a(f"ds_read_b32 v{24+i}, v7 offset:{RED2 + 144*i}")
    a("s_waitcnt lgkmcnt(0)")
    for b in (16, 24):
        a(f"""
        v_add_f32 v{b}, v{b}, v{b+1}
        v_add_f32 v{b+2}, v{b+2}, v{b+3}
        v_add_f32 v{b+4}, v{b+4}, v{b+5}
        v_add_f32 v{b+6}, v{b+6}, v{b+7}
        v_add_f32 v{b}, v{b}, v{b+2}
        v_add_f32 v{b+4}, v{b+4}, v{b+6}
        v_add_f32 v{b}, v{b}, v{b+4}
        """)
    a(f"""
    v_lshlrev_b32 v5, 2, v0
    ds_write_b32 v5, v16 offset:{RED3}
    ds_write_b32 v5, v24 offset:{RED3+1024}
    s_waitcnt lgkmcnt(0)
    s_barrier
    v_cmp_gt_u32 vcc, 32, v0
    s_and_saveexec_b64 s[30:31], vcc
    s_cbranch_execz w1p_end
    """)
    for i in range(8): a(f"ds_read_b32 v{16+i}, v5 offset:{RED3 + 128*i}")
    for i in range(8): a(f"ds_read_b32 v{24+i}, v5 offset:{RED3 + 1024 + 128*i}")
    a("s_waitcnt lgkmcnt(0)")
    for b in (16, 24):
        a(f"""
        v_add_f32 v{b}, v{b}, v{b+1}
        v_add_f32 v{b+2}, v{b+2}, v{b+3}
        v_add_f32 v{b+4}, v{b+4}, v{b+5}
        v_add_f32 v{b+6}, v{b+6}, v{b+7}
        v_add_f32 v{b}, v{b}, v{b+2}
        v_add_f32 v{b+4}, v{b+4}, v{b+6}
        v_add_f32 v{b}, v{b}, v{b+4}
        """)
    a(f"""
    v_lshlrev_b32 v56, 16, v56
    v_add_f32 v24, v24, v56
    s_lshl_b32 s9, s3, 7
    s_add_u32 s10, s9, {WS_CS}
    v_add_u32 v6, s10, v5
    s_add_u32 s10, s9, {WS_B1P}
    v_add_u32 v7, s10, v5
    global_store_dword v6, v16, s[20:21]
    global_store_dword v7, v24, s[20:21]
    w1p_end:
    s_endpgm
    """)

def gen_B(a):
    a(f"""
    s_cmp_lt_u32 s2, {NCONV}
    s_cbranch_scc1 conv
    s_cmp_lt_u32 s2, {B_GRID}
    s_cbranch_scc1 w1p
    s_endpgm
    """)
    gen_conv(a); gen_w1p(a)

C_GRID = 256
C_SLOT = 28672
C_NS = 4
C_TAB = C_NS * C_SLOT
C_LDS = C_TAB + 768

def gen_C(a):
    ACC, AQ, AS, FB = 64, 112, 120, 128
    a(f"""
    s_and_b32 s6, s2, 7
    s_lshr_b32 s7, s2, 3                     ; j
    s_and_b32 s4, s6, 3
    s_lshl_b32 s4, s4, 2
    s_and_b32 s12, s7, 3
    s_add_u32 s4, s4, s12                    ; lt = 4(k&3) + (j&3)
    s_lshr_b32 s5, s6, 2
    s_lshl_b32 s5, s5, 3
    s_lshr_b32 s13, s7, 2
    s_add_u32 s5, s5, s13                    ; fg = 8(k>>2) + (j>>2)
    s_cmp_ge_u32 s2, {C_GRID}
    s_cbranch_scc1 c_end
    s_cmp_ge_u32 s5, 15
    s_cbranch_scc1 c_end
    s_load_dwordx2 s[20:21], s[0:1], 144
    s_lshl_b32 s12, s12, 1
    s_add_u32 s36, s12, s13
    s_and_b32 s36, s36, {((8 - 8 // int(os.environ.get("C_ROT", 1))) & 7)}
    v_lshrrev_b32 v3, 6, v0
    v_and_b32 v1, 63, v0
    v_lshlrev_b32 v4, 4, v1                  ; lane*16
    v_readfirstlane_b32 s26, v3              ; wave
    s_cmp_lt_u32 s26, 4
    s_cbranch_scc1 c_compute
    s_sub_u32 s26, s26, 4
    v_lshrrev_b32 v5, 4, v1
    v_lshlrev_b32 v6, 2, v5
    v_and_b32 v7, 15, v1
    v_xor_b32 v6, v6, v7
    v_lshlrev_b32 v6, 4, v6
    v_lshl_add_u32 v5, v5, 12, v6
    s_mul_i32 s6, s5, {3*32*1024}
    s_add_u32 s6, s6, {WS_W1F}
    s_mul_i32 s7, s26, 3
    """)
    for i in range(3):
        a(f"""
        s_add_u32 s12, s7, {i}
        s_lshr_b32 s13, s12, 2
        s_and_b32 s12, s12, 3
        s_lshl_b32 s13, s13, 15
        s_lshl_b32 s12, s12, 10
        s_add_u32 s12, s12, s13
        s_add_u32 s{30+i}, s12, s6
        """)
    a(f"""
    s_lshl_b32 s12, s26, 16
    s_lshl_b32 s13, s4, 8
    s_add_u32 s12, s12, s13
    s_add_u32 s33, s12, {WS_X2T}
    s_mul_i32 s34, s26, 3072
    s_lshl_b32 s35, s26, 12
    s_add_u32 s35, s35, 12288
    s_waitcnt lgkmcnt(0)
    """)
    srd(a, 8, 20, WS_SIZE)
    a.stamp(0)
    def dma(c):
        slot = (c % C_NS) * C_SLOT
        a(f"s_add_u32 s37, s36, {c}\ns_and_b32 s37, s37, 7\ns_lshl_b32 s38, s37, 18\ns_lshl_b32 s37, s37, 12\ns_add_u32 s38, s38, s33")
        for j in range(4):
            a(f"s_add_u32 m0, s35, {slot + 1024*j}")
            if j: a(f"s_add_u32 s38, s38, 16384")
            else: a("s_nop 0")
            a(f"buffer_load_dwordx4 v5, s[8:11], s38 offen lds")
        for i in range(3):
            a(f"s_add_u32 m0, s34, {slot + 1024*i}")
            a(f"s_add_u32 s12, s{30+i}, s37")
            a(f"buffer_load_dwordx4 v4, s[8:11], s12 offen lds")
    LA = int(os.environ.get("C_LA", 2))
    for c in range(LA): dma(c)
    for c in range(8):
        last = min(7, c + LA - 1)
        if c == 4: a.stamp(1)
        a(f"s_waitcnt vmcnt({7*(last - c) if not os.environ.get('C_NODMA') else 0})")
        if c == 4: a.stamp(2)
        a("s_barrier")
        if c in (0, 4): a.stamp(3 + c // 4)
        if c + LA <= 7 and not os.environ.get("C_NODMA"): dma(c + LA)
    a.stamp(5)
    a("s_endpgm")
    a(f"""
    c_compute:
    v_lshlrev_b32 v8, 2, v0
    s_mul_i32 s12, s5, 384
    s_add_u32 s13, s12, {WS_CS}
    s_add_u32 s12, s12, {WS_B1P}
    v_and_b32 v6, 15, v1
    v_lshrrev_b32 v7, 2, v6                  ; r
    v_and_b32 v6, 3, v6                      ; c
    v_lshrrev_b32 v9, 5, v1                  ; g
    v_lshl_add_u32 v12, v9, 3, v7
    v_lshlrev_b32 v12, 8, v12
    v_bfe_u32 v13, v1, 4, 1
    v_lshlrev_b32 v13, 1, v13
    v_lshl_add_u32 v13, v3, 2, v13
    v_lshrrev_b32 v14, 1, v6
    v_add_u32 v13, v13, v14
    v_lshlrev_b32 v14, 2, v7
    v_xor_b32 v13, v13, v14
    v_lshl_add_u32 v12, v13, 4, v12
    v_and_b32 v6, 1, v6
    v_lshl_add_u32 v12, v6, 3, v12
    v_add_u32 v16, 12288, v12
    v_add_u32 v17, {2*C_SLOT}, v16
    v_mov_b32 v19, v4
    v_add_u32 v20, {2*C_SLOT}, v4
    v_mov_b32 v22, 0x3f803f80
    v_mov_b32 v23, 0x3f803f80
    v_add_u32 v9, {C_TAB}, v8
    s_waitcnt lgkmcnt(0)
    """)
    srd(a, 8, 20, WS_SIZE)
    a.stamp(0)
    a("""
    buffer_load_dword v10, v8, s[8:11], s13 offen
    buffer_load_dword v11, v8, s[8:11], s12 offen
    """)
    NT = 0
    if os.environ.get("C_TOUCH", "0") == "1":
        NT = 3
        a(f"""
        s_lshr_b32 s40, s2, 3
        s_lshl_b32 s40, s40, 2
        s_add_u32 s40, s40, s26
        s_lshr_b32 s41, s40, 4
        s_add_u32 s41, s41, 2
        s_min_u32 s41, s41, 7                    ; chunk
        s_and_b32 s42, s40, 15
        s_lshr_b32 s43, s42, 2
        s_and_b32 s44, s2, 3
        s_lshl_b32 s44, s44, 2
        s_add_u32 s43, s43, s44                  ; lt
        s_lshl_b32 s43, s43, 8
        s_and_b32 s44, s42, 3
        s_lshl_b32 s44, s44, 4
        s_lshl_b32 s45, s41, 6
        s_add_u32 s44, s44, s45
        s_lshl_b32 s44, s44, 12
        s_add_u32 s43, s43, s44
        s_add_u32 s43, s43, {WS_X2T}
        v_lshrrev_b32 v2, 2, v1
        v_lshlrev_b32 v2, 12, v2
        v_and_b32 v18, 3, v1
        v_lshl_add_u32 v2, v18, 6, v2
        buffer_load_dword v62, v2, s[8:11], s43 offen
        s_mul_i32 s44, s42, 96
        s_bfe_u32 s45, s2, 0x10002               ; half (k>>2)
        s_mul_i32 s45, s45, {24*32768}
        s_lshl_b32 s46, s41, 12
        s_add_u32 s45, s45, s46
        s_add_u32 s45, s45, {WS_W1F}
        v_add_u32 v2, s44, v1
        v_lshrrev_b32 v18, 6, v2
        v_lshlrev_b32 v18, 15, v18
        v_and_b32 v21, 63, v2
        v_lshl_add_u32 v18, v21, 6, v18
        buffer_load_dword v62, v18, s[8:11], s45 offen
        v_and_b32 v21, 31, v1
        v_add_u32 v2, s44, v21
        v_add_u32 v2, 64, v2
        v_lshrrev_b32 v18, 6, v2
        v_lshlrev_b32 v18, 15, v18
        v_and_b32 v21, 63, v2
        v_lshl_add_u32 v18, v21, 6, v18
        buffer_load_dword v62, v18, s[8:11], s45 offen
        """)
    for r in range(ACC, FB): a(f"v_mov_b32 v{r}, 0")
    T = LdsTracker(a)
    def reads(c, s):
        slot = c % C_NS
        grp = slot // 2; so = (slot % 2) * C_SLOT
        buf = (4 * c + s) % 3
        fb = FB + 16 * buf
        T.issue(f"ds_read_b64_tr_b16 v[{fb+12}:{fb+13}], v{16+grp} offset:{so + s*4096}", [f"x{buf}"])
        T.issue(f"ds_read_b64_tr_b16 v[{fb+14}:{fb+15}], v{16+grp} offset:{so + s*4096 + 1024}", [f"x{buf}"])
        for b in range(3):
            T.issue(f"ds_read_b128 v[{fb+4*b}:{fb+4*b+3}], v{19+grp} offset:{so + (b*4+s)*1024}", [f"w{buf}{b}"])
    def read_list(c, s):
        slot = c % C_NS
        grp = slot // 2; so = (slot % 2) * C_SLOT
        buf = (4 * c + s) % 3
        fb = FB + 16 * buf
        L = [(f"ds_read_b64_tr_b16 v[{fb+12}:{fb+13}], v{16+grp} offset:{so + s*4096}", [f"x{buf}"]),
             (f"ds_read_b64_tr_b16 v[{fb+14}:{fb+15}], v{16+grp} offset:{so + s*4096 + 1024}", [f"x{buf}"])]
        for b in range(3):
            L.append((f"ds_read_b128 v[{fb+4*b}:{fb+4*b+3}], v{19+grp} offset:{so + (b*4+s)*1024}", [f"w{buf}{b}"]))
        return L
    def mfmas(c, s, rd=()):
        rd = list(rd)
        def pop(n):
            for _ in range(n):
                if rd: T.issue(*rd.pop(0))
        buf = (4 * c + s) % 3; fb = FB + 16 * buf
        T.need([f"x{buf}", f"w{buf}0", f"w{buf}1", f"w{buf}2"])
        per = (len(rd) + 2) // 3
        for b in range(3):
            a(f"v_mfma_f32_32x32x16_bf16 v[{ACC+16*b}:{ACC+16*b+15}], v[{fb+4*b}:{fb+4*b+3}], v[{fb+12}:{fb+15}], v[{ACC+16*b}:{ACC+16*b+15}]")
            pop(per)
            if not os.environ.get("C_NOSTAT"):
                if b == 0:
                    a(f"v_mfma_f32_4x4x4_16b_bf16 v[{AQ}:{AQ+3}], v[{fb+12}:{fb+13}], v[{fb+12}:{fb+13}], v[{AQ}:{AQ+3}]")
                    a(f"v_mfma_f32_4x4x4_16b_bf16 v[{AS}:{AS+3}], v[22:23], v[{fb+12}:{fb+13}], v[{AS}:{AS+3}]")
                if b == 1:
                    a(f"v_mfma_f32_4x4x4_16b_bf16 v[{AQ+4}:{AQ+7}], v[{fb+14}:{fb+15}], v[{fb+14}:{fb+15}], v[{AQ+4}:{AQ+7}]")
                    a(f"v_mfma_f32_4x4x4_16b_bf16 v[{AS+4}:{AS+7}], v[22:23], v[{fb+14}:{fb+15}], v[{AS+4}:{AS+7}]")
        pop(99)
    for c in range(8):
        if c == 1:
            a(f"""
            s_waitcnt vmcnt({NT})
            v_cmp_gt_u32 vcc, 96, v0
            s_and_saveexec_b64 s[14:15], vcc
            ds_write_b32 v9, v10
            ds_write_b32 v9, v11 offset:384
            s_mov_b64 exec, s[14:15]
            """)
            T.issued += 2
        if c == 4: a.stamp(1)
        T.drain()
        if c == 4: a.stamp(2)
        a("s_barrier")
        if c in (0, 4): a.stamp(3 + c // 4)
        if c > 0:
            mfmas(c - 1, 3, read_list(c, 0) + read_list(c, 1))
        else:
            for x in read_list(c, 0) + read_list(c, 1): T.issue(*x)
        mfmas(c, 0, read_list(c, 2))
        mfmas(c, 1, read_list(c, 3))
        mfmas(c, 2)
    mfmas(7, 3)
    a.stamp(5)
    a(f"""
    v_and_b32 v6, 3, v1
    v_cmp_eq_u32 s[12:13], 1, v6
    v_cmp_eq_u32 s[14:15], 2, v6
    v_cmp_eq_u32 s[16:17], 3, v6
    v_lshrrev_b32 v6, 5, v1
    v_lshlrev_b32 v6, 4, v6
    v_add_u32 v6, {C_TAB}, v6
    """)
    for q in range(4):
        a(f"ds_read_b128 v[{28+4*q}:{31+4*q}], v6 offset:{(8*q)*4}")
        a(f"ds_read_b128 v[{44+4*q}:{47+4*q}], v6 offset:{384 + (8*q)*4}")
    a(f"""
    v_add_f32 v{AQ}, v{AQ}, v{AQ+4}
    v_add_f32 v{AQ+1}, v{AQ+1}, v{AQ+5}
    v_add_f32 v{AQ+2}, v{AQ+2}, v{AQ+6}
    v_add_f32 v{AQ+3}, v{AQ+3}, v{AQ+7}
    v_add_f32 v{AS}, v{AS}, v{AS+4}
    v_cndmask_b32 v{AQ}, v{AQ}, v{AQ+1}, s[12:13]
    v_cndmask_b32 v{AQ}, v{AQ}, v{AQ+2}, s[14:15]
    v_cndmask_b32 v{AQ}, v{AQ}, v{AQ+3}, s[16:17]
    v_mov_b32 v25, v{AS}
    v_mov_b32 v24, v{AQ}
    s_nop 1
    v_permlane32_swap_b32 v25, v{AS}
    v_permlane32_swap_b32 v24, v{AQ}
    s_nop 1
    v_add_f32 v25, v25, v{AS}
    v_add_f32 v24, v24, v{AQ}
    v_mul_f32 v25, {fx(1.0/512)}, v25
    v_mul_f32 v24, {fx(1.0/512)}, v24
    v_fma_f32 v24, -v25, v25, v24
    v_max_f32 v24, 0, v24
    v_add_f32 v24, {fx(1e-5)}, v24
    v_rsq_f32 v24, v24                       ; r
    s_lshl_b32 s12, s4, 2
    v_mul_f32 v26, -v25, v24                 ; -mean*r
    s_add_u32 s12, s12, s26
    s_mul_i32 s12, s12, {HS}
    v_mov_b32 v25, v24
    v_mov_b32 v27, v26
    s_mul_i32 s13, s5, 6
    s_add_u32 s12, s12, s13
    s_lshl_b32 s12, s12, 10
    s_add_u32 s12, s12, {WS_HID}
    """)
    for b in range(3):
        cs, bb = (28, 44) if b % 2 == 0 else (144, 160)
        a("s_waitcnt lgkmcnt(0)")
        if b < 2:
            cs2, bb2 = (144, 160) if b % 2 == 0 else (28, 44)
            if b == 1:
                a("s_nop 0")
            for q in range(4):
                a(f"ds_read_b128 v[{cs2+4*q}:{cs2+4*q+3}], v6 offset:{(32*(b+1) + 8*q)*4}")
                a(f"ds_read_b128 v[{bb2+4*q}:{bb2+4*q+3}], v6 offset:{384 + (32*(b+1) + 8*q)*4}")
        for j in range(8):
            a(f"v_pk_fma_f32 v[{bb+2*j}:{bb+2*j+1}], v[26:27], v[{cs+2*j}:{cs+2*j+1}], v[{bb+2*j}:{bb+2*j+1}]")
        for j in range(8):
            a(f"v_pk_fma_f32 v[{bb+2*j}:{bb+2*j+1}], v[24:25], v[{ACC+16*b+2*j}:{ACC+16*b+2*j+1}], v[{bb+2*j}:{bb+2*j+1}]")
        for j in range(16): a(f"v_max_f32 v{bb+j}, 0, v{bb+j}")
        for j in range(8): a(f"v_pk_mul_f32 v[{bb+2*j}:{bb+2*j+1}], v[{bb+2*j}:{bb+2*j+1}], v[{bb+2*j}:{bb+2*j+1}]")
        o = ACC + 16 * b
        for j in range(8): a(f"v_cvt_pk_bf16_f32 v{o+j}, v{bb+2*j}, v{bb+2*j+1}")
        a("s_nop 1")
        a(f"v_permlane32_swap_b32 v{o}, v{o+2}")
        a(f"v_permlane32_swap_b32 v{o+1}, v{o+3}")
        a(f"v_permlane32_swap_b32 v{o+4}, v{o+6}")
        a(f"v_permlane32_swap_b32 v{o+5}, v{o+7}")
        a(f"buffer_store_dwordx4 v[{o}:{o+3}], v4, s[8:11], s12 offen{HIDSC}")
        a(f"buffer_store_dwordx4 v[{o+4}:{o+7}], v4, s[8:11], s12 offen offset:1024{HIDSC}")
        a("s_add_u32 s12, s12, 2048")
        if b == 0:
            a(f"""
            s_cmp_eq_u32 s5, 14
            s_cbranch_scc0 c_more
            v_mov_b32 v28, 0
            v_mov_b32 v29, 0
            v_mov_b32 v30, 0
            v_mov_b32 v31, 0
            buffer_store_dwordx4 v[28:31], v4, s[8:11], s12 offen{SC}
            buffer_store_dwordx4 v[28:31], v4, s[8:11], s12 offen offset:1024{SC}
            s_endpgm
            c_more:
            """)
    a("c_end:\ns_endpgm")

D_GRID = 256
D_SLOT = 32768
D_NS = 4
D_X2 = D_NS * D_SLOT
D_TAB = D_X2 + 8192
D_LDS = D_TAB + 512
D_NCH = 11

def gen_D(a):
    ACC, FB = 64, 80
    if os.environ.get("MODP"):
        GB_LOAD = f"""s_lshl_b32 s12, s5, 9
    s_add_u32 s12, s12, {0x10000 + 160*128}
    v_lshrrev_b32 v14, 4, v0
    v_lshlrev_b32 v14, 7, v14
    v_and_b32 v21, 15, v0
    v_lshl_add_u32 v14, v21, 2, v14
    buffer_load_dword v14, v14, s[40:43], s12 offen"""
    else:
        GB_LOAD = f"""s_lshl_b32 s12, s5, 8
    s_add_u32 s12, s12, {WS_MOD + 5*2048}
    buffer_load_dword v14, v10, s[40:43], s12 offen"""
    a(f"""
    s_cmp_ge_u32 s2, {D_GRID}
    s_cbranch_scc1 d_end
    s_load_dwordx2 s[20:21], s[0:1], 144
    s_load_dwordx4 s[16:19], s[0:1], 96      ; w2, b2
    s_load_dwordx2 s[24:25], s[0:1], 128     ; out
    v_lshrrev_b32 v3, 6, v0
    v_and_b32 v1, 63, v0
    s_and_b32 s4, s2, 7
    s_lshl_b32 s4, s4, 2
    s_bfe_u32 s6, s2, 0x20003
    s_add_u32 s4, s4, s6
    s_lshr_b32 s5, s2, 5
    v_readfirstlane_b32 s26, v3              ; wave
    v_lshlrev_b32 v4, 4, v1                  ; lane*16
    s_lshl_b32 s6, s6, 1
    s_add_u32 s36, s6, s5
    s_and_b32 s36, s36, {((8 - 8 // int(os.environ.get("D_ROT", 4))) & 7)}
    s_mul_i32 s36, s36, 11
    s_lshr_b32 s36, s36, 3                   ; rotation
    s_and_b32 s27, s26, 1                    ; wm
    s_bfe_u32 s28, s26, 0x10001              ; wn
    s_cmp_lt_u32 s26, 4
    s_cbranch_scc1 d_compute
    s_sub_u32 s26, s26, 4
    v_lshrrev_b32 v5, 3, v1
    v_bfe_u32 v6, v1, 4, 1
    v_lshlrev_b32 v6, 2, v6
    v_and_b32 v7, 7, v1
    v_xor_b32 v6, v6, v7
    v_lshlrev_b32 v6, 4, v6
    v_lshl_add_u32 v5, v5, 10, v6
    v_lshrrev_b32 v9, 3, v1
    v_lshl_add_u32 v9, v9, 12, v6
    s_waitcnt lgkmcnt(0)
    s_cmp_eq_u32 s28, 0
    s_cbranch_scc0 d_hidrole
    s_mov_b32 s8, s16
    s_mov_b32 s9, s17
    s_mov_b32 s10, {1376*512*2}
    s_mov_b32 s11, 0x00020000
    s_lshl_b32 s30, s27, 16
    s_lshl_b32 s12, s5, 7
    s_add_u32 s30, s30, s12
    s_mov_b32 s32, 8192
    s_mov_b32 s33, 131072
    v_mov_b32 v8, v5
    s_branch d_roledone
    d_hidrole:
    s_mov_b32 s8, s20
    s_mov_b32 s9, s21
    s_mov_b32 s10, {WS_SIZE}
    s_mov_b32 s11, 0x00020000
    s_lshl_b32 s30, s4, 1
    s_add_u32 s30, s30, s27
    s_mul_i32 s30, s30, {HS*1024}
    s_add_u32 s30, s30, {WS_HID}
    s_mov_b32 s32, 1024
    s_mov_b32 s33, 8192
    v_mov_b32 v8, v4
    d_roledone:
    s_lshl_b32 s31, s26, 13
    """)
    srd(a, 40, 20, WS_SIZE)
    a.stamp(0)
    def dma(c):
        slot = (c % D_NS) * D_SLOT
        a(f"""
        s_add_u32 s34, s36, {c}
        s_sub_u32 s35, s34, 11
        s_cmp_ge_u32 s34, 11
        s_cselect_b32 s34, s35, s34
        s_mul_i32 s34, s34, s33
        s_add_u32 s34, s34, s30
        """)
        for i in range(8):
            a(f"s_add_u32 m0, s31, {slot + 1024*i}")
            a(f"s_add_u32 s34, s34, s32" if i else "s_nop 0")
            a(f"buffer_load_dwordx4 v8, s[8:11], s34 offen lds")
    dma(0)
    a(f"""
    s_lshl_b32 s12, s5, 6
    s_lshl_b32 s13, s26, 4
    s_add_u32 s12, s12, s13
    s_lshl_b32 s12, s12, 12
    s_lshl_b32 s13, s4, 7
    s_add_u32 s12, s12, s13
    s_add_u32 s12, s12, {WS_X2T}
    s_lshl_b32 s13, s26, 11
    s_add_u32 m0, s13, {D_X2}
    s_add_u32 s14, s12, {8*4096}
    buffer_load_dwordx4 v9, s[40:43], s12 offen lds
    s_add_u32 m0, m0, 1024
    s_nop 0
    buffer_load_dwordx4 v9, s[40:43], s14 offen lds
    """)
    dma(1)
    LA = 2
    for c in range(D_NCH):
        last = min(D_NCH - 1, c + LA - 1)
        n = 8 * (last - c)
        if c == 0: n += 2
        if c == 5: a.stamp(1)
        a(f"s_waitcnt vmcnt({n})")
        if c == 5: a.stamp(2)
        a("s_barrier")
        if c in (0, 5, 10): a.stamp(3 + (0, 5, 10).index(c))
        if c + LA < D_NCH: dma(c + LA)
    a("s_endpgm")
    a(f"""
    d_compute:
    v_lshlrev_b32 v10, 2, v0
    v_lshlrev_b32 v11, 1, v0
    s_lshl_b32 s12, s5, 7
    v_add_u32 v11, s12, v11
    v_min_u32 v11, 1022, v11
    v_and_b32 v6, 15, v1
    v_lshrrev_b32 v7, 2, v6                  ; r
    v_and_b32 v6, 3, v6                      ; c
    v_lshrrev_b32 v12, 5, v1                 ; g
    v_lshl_add_u32 v12, v12, 3, v7
    v_lshlrev_b32 v12, 7, v12
    v_bfe_u32 v13, v1, 4, 1
    v_lshlrev_b32 v13, 1, v13
    s_lshl_b32 s12, s27, 2
    v_add_u32 v13, s12, v13
    v_lshrrev_b32 v16, 1, v6
    v_add_u32 v13, v13, v16
    v_lshrrev_b32 v7, 1, v7
    v_lshlrev_b32 v7, 2, v7
    v_xor_b32 v13, v13, v7
    v_lshl_add_u32 v12, v13, 4, v12
    v_and_b32 v6, 1, v6
    v_lshl_add_u32 v16, v6, 3, v12
    v_add_u32 v17, {2*D_SLOT}, v16
    s_lshl_b32 s12, s28, 13
    s_add_u32 s12, s12, 16384
    v_add_u32 v18, s12, v4
    v_add_u32 v19, {2*D_SLOT}, v18
    s_waitcnt lgkmcnt(0)
    """)
    srd(a, 40, 20, WS_SIZE)
    a.stamp(0)
    a(f"""
    {GB_LOAD}
    global_load_ushort v15, v11, s[18:19]
    v_add_u32 v10, {D_TAB}, v10
    """)
    NT = 0
    if os.environ.get("D_TOUCH", "0") == "1":
        NT = 2
        a(f"""
        s_lshr_b32 s44, s2, 3
        s_lshl_b32 s44, s44, 2
        s_add_u32 s44, s44, s26                  ; g
        s_and_b32 s45, s44, 7
        s_and_b32 s46, s2, 7
        s_lshl_b32 s46, s46, 3
        s_add_u32 s45, s45, s46
        s_mul_i32 s45, s45, {HS*1024}
        s_lshr_b32 s46, s44, 3
        s_mul_i32 s46, s46, {88*64}
        s_add_u32 s45, s45, s46
        s_add_u32 s45, s45, {WS_HID}
        v_lshlrev_b32 v2, 6, v1
        buffer_load_dword v22, v2, s[40:43], s45 offen
        v_min_u32 v21, 23, v1
        v_lshlrev_b32 v21, 6, v21
        v_add_u32 v21, 4096, v21
        buffer_load_dword v23, v21, s[40:43], s45 offen
        """)
    for r in range(16): a(f"v_mov_b32 v{ACC+r}, 0")
    T = LdsTracker(a)
    NB = 5
    def reads(c, s):
        slot = c % D_NS
        grp = slot // 2; so = (slot % 2) * D_SLOT
        g = (8 * c + s) % NB
        fb = FB + 8 * g
        T.issue(f"ds_read_b64_tr_b16 v[{fb}:{fb+1}], v{16+grp} offset:{so + s*2048}", [f"a{g}"])
        T.issue(f"ds_read_b64_tr_b16 v[{fb+2}:{fb+3}], v{16+grp} offset:{so + s*2048 + 512}", [f"a{g}"])
        T.issue(f"ds_read_b128 v[{fb+4}:{fb+7}], v{18+grp} offset:{so + s*1024}", [f"b{g}"])
    def mfma(c, s):
        g = (8 * c + s) % NB; fb = FB + 8 * g
        T.need([f"a{g}", f"b{g}"])
        a(f"v_mfma_f32_32x32x16_bf16 v[{ACC}:{ACC+15}], v[{fb}:{fb+3}], v[{fb+4}:{fb+7}], v[{ACC}:{ACC+15}]")
    for c in range(D_NCH):
        if c == 1:
            a(f"""
            s_waitcnt vmcnt({NT})
            v_lshlrev_b32 v15, 16, v15
            v_cmp_gt_u32 vcc, 64, v0
            s_and_saveexec_b64 s[14:15], vcc
            ds_write_b32 v10, v14
            ds_write_b32 v10, v15 offset:256
            s_mov_b64 exec, s[14:15]
            """)
            T.issued += 2
        if c == 5: a.stamp(1)
        T.drain()
        if c == 5: a.stamp(2)
        a("s_barrier")
        if c in (0, 5): a.stamp(3 + c // 5)
        reads(c, 0); reads(c, 1); reads(c, 2); reads(c, 3)
        if c > 0: mfma(c - 1, 7)
        for s in range(7):
            if s + 4 < 8: reads(c, s + 4)
            mfma(c, s)
    mfma(D_NCH - 1, 7)
    a.stamp(5)
    a(f"""
    v_and_b32 v6, 15, v1
    v_lshrrev_b32 v7, 2, v6
    v_and_b32 v6, 3, v6
    v_lshrrev_b32 v12, 5, v1                 ; h
    v_lshl_add_u32 v13, v12, 2, v7
    s_lshl_b32 s12, s27, 5
    v_add_u32 v13, s12, v13
    v_lshlrev_b32 v13, 7, v13
    v_bfe_u32 v14, v1, 4, 1
    v_lshlrev_b32 v14, 1, v14
    s_lshl_b32 s12, s28, 2
    v_add_u32 v14, s12, v14
    v_lshrrev_b32 v15, 1, v6
    v_add_u32 v14, v14, v15
    v_lshrrev_b32 v7, 1, v7
    v_lshlrev_b32 v7, 2, v7
    v_xor_b32 v14, v14, v7
    v_lshl_add_u32 v13, v14, 4, v13
    v_and_b32 v6, 1, v6
    v_lshl_add_u32 v13, v6, 3, v13
    v_add_u32 v13, {D_X2}, v13
    v_lshlrev_b32 v14, 4, v12
    s_lshl_b32 s12, s27, 7
    s_add_u32 s12, s12, {D_TAB}
    v_add_u32 v14, s12, v14
    """)
    for q in range(4):
        a(f"ds_read_b64_tr_b16 v[{24+2*q}:{25+2*q}], v13 offset:{1024*q}")
        a(f"ds_read_b128 v[{32+4*q}:{35+4*q}], v14 offset:{32*q}")
        a(f"ds_read_b128 v[{48+4*q}:{51+4*q}], v14 offset:{256+32*q}")
    a(f"""
    v_and_b32 v5, 31, v1
    v_lshlrev_b32 v20, 10, v5
    v_lshl_add_u32 v20, v12, 4, v20
    s_lshl_b32 s12, s4, 1
    s_add_u32 s12, s12, s28
    s_lshl_b32 s12, s12, 15
    s_lshl_b32 s13, s5, 1
    s_add_u32 s13, s13, s27
    s_lshl_b32 s13, s13, 6
    s_add_u32 s12, s12, s13
    v_add_u32 v20, s12, v20
    """)
    for q in range(4):
        a(f"s_waitcnt lgkmcnt({3*(3-q)})")
        a(f"v_lshlrev_b32 v8, 16, v{24+2*q}")
        a(f"v_and_b32 v9, 0xffff0000, v{24+2*q}")
        a(f"v_lshlrev_b32 v10, 16, v{25+2*q}")
        a(f"v_and_b32 v11, 0xffff0000, v{25+2*q}")
        for r in range(4): a(f"v_add_f32 v{48+4*q+r}, v{48+4*q+r}, v{ACC+4*q+r}")
        for r in range(4): a(f"v_fma_f32 v{8+r}, v{48+4*q+r}, v{32+4*q+r}, v{8+r}")
        a(f"v_cvt_pk_bf16_f32 v{FB+2*q}, v8, v9")
        a(f"v_cvt_pk_bf16_f32 v{FB+2*q+1}, v10, v11")
    a(f"""
    s_nop 1
    v_permlane32_swap_b32 v{FB}, v{FB+2}
    v_permlane32_swap_b32 v{FB+1}, v{FB+3}
    v_permlane32_swap_b32 v{FB+4}, v{FB+6}
    v_permlane32_swap_b32 v{FB+5}, v{FB+7}
    global_store_dwordx4 v20, v[{FB}:{FB+3}], s[24:25]{OUTSC}
    global_store_dwordx4 v20, v[{FB+4}:{FB+7}], s[24:25] offset:32{OUTSC}
    d_end:
    s_endpgm
    """)

def kernels():
    return [("conv_kernel", gen_B, 168, B_GRID, 256, B_LDS),
            ("gemm1_kernel", gen_C, 176, C_GRID, 512, C_LDS),
            ("gemm2_kernel", gen_D, 128, D_GRID, 512, D_LDS)]
```

```python
import sys, os
os.environ["MODP"] = "1"
import g3
from g3 import *
import g3b
from g3b import gen_C, gen_D, C_GRID, C_LDS, D_GRID, D_LDS, KCP, KCHL

NMAIN, NW1 = 256, 43
TCH = 57 * TROW
H_OFF = 2 * KCHL
HCH = 4608
XR_OFF = H_OFF + 2 * HCH
RED_OFF = XR_OFF + 8192
LNT = 62016
KC2 = LNT + 4 * 2560
KCS = 776 * 4
MODS = KC2 + 2 * KCS
STP = MODS + 16 * 80
FLG = STP + 256
CNT = FLG + 16
AB_LDS = CNT + 32
NW1 = 86
AB_GRID = NMAIN + NW1
XBS = 8192
WS_MODP = 0x10000
WS_GO = 0x20000
WS_XB = WS_XT
SET = int(os.environ.get("STAMPSET", 0))
PPRIO = int(os.environ.get("PPRIO", 1))
X2SC = os.environ.get("X2SC", "")
W1SC = os.environ.get("W1SC", "")
KP0 = int(os.environ.get("KP0", 3))
SPIN_MAX = 0x20000

def lds_arrive(a, k, v):
    a(f"""
    v_mov_b32 v{v}, {CNT + 4*k}
    v_mov_b32 v{v+1}, 1
    s_mov_b64 exec, 1
    ds_add_u32 v{v}, v{v+1}
    s_mov_b64 exec, -1
    """)
def lds_wait(a, k, n, v, tag, slp=1):
    a(f"""
    v_mov_b32 v{v}, {CNT + 4*k}
    lw_{tag}:
    ds_read_b32 v{v+1}, v{v}
    s_waitcnt lgkmcnt(0)
    v_readfirstlane_b32 s62, v{v+1}
    s_cmp_ge_u32 s62, {n}
    s_cbranch_scc1 lw_{tag}_done
    s_sleep {slp}
    s_branch lw_{tag}
    lw_{tag}_done:
    """)

def h_addr(a, toff):
    a(f"""
    v_add_u32 v11, {toff}, v0
    v_lshrrev_b32 v12, 1, v11                ; block
    v_and_b32 v10, 1, v11                    ; ch
    v_lshlrev_b32 v4, 13, v12
    v_lshl_add_u32 v4, v10, 4, v4
    s_lshl_b32 s38, s29, 4
    s_add_u32 s38, s38, {WS_XB}
    v_add_u32 v4, s38, v4
    v_lshlrev_b32 v5, 5, v12
    v_add_u32 v5, {WS_ST1}, v5               ; statistics
    s_lshr_b32 s38, s29, 4
    s_lshl_b32 s38, s38, 7
    s_and_b32 s39, s29, 15
    s_lshl_b32 s39, s39, 2
    s_add_u32 s38, s38, s39
    s_add_u32 s38, s38, {WS_MODP}
    v_lshl_add_u32 v6, v10, 2, s38
    v_mul_u32_u24 v7, {HCH}, v10
    v_lshl_add_u32 v7, v12, 4, v7
    v_add_u32 v7, {H_OFF + 512}, v7          ; h (LDS)
    v_lshlrev_b32 v8, 12, v10
    v_lshl_add_u32 v8, v12, 4, v8
    v_add_u32 v8, {XR_OFF}, v8
    v_lshlrev_b32 v9, 2, v10
    v_add_u32 v9, {MODS}, v9
    v_add_u32 v13, 4096, v6
    v_add_u32 v14, 4096, v13
    """)
def h_body(a):
    a(f"""
    global_load_dwordx4 v[64:67], v4, s[22:23] sc1
    global_load_dwordx4 v[68:71], v5, s[22:23] sc1
    global_load_dwordx4 v[72:75], v5, s[22:23] offset:16 sc1
    global_load_dword v76, v6, s[22:23] sc1
    global_load_dword v77, v13, s[22:23] sc1
    global_load_dword v78, v14, s[22:23] sc1
    s_waitcnt vmcnt(5)
    ds_write_b128 v8, v[64:67]
    """)
    for e in range(8):
        src = 64 + e // 2
        a(f"v_lshlrev_b32 v{80+e}, 16, v{src}" if e % 2 == 0 else f"v_and_b32 v{80+e}, 0xffff0000, v{src}")
    a("s_waitcnt vmcnt(3)")
    for e in range(8):
        a(f"v_lshlrev_b32 v{12+(e%4)}, 16, v{68+e}")
        a(f"v_and_b32 v{68+e}, 0xffff0000, v{68+e}")
        a(f"v_fma_f32 v{80+e}, v{80+e}, v{12+(e%4)}, v{68+e}")
    a(f"""
    s_waitcnt vmcnt(0)
    v_add_f32 v77, 1.0, v77
    v_cvt_pk_bf16_f32 v77, v77, v77
    ds_write_b32 v9, v78                     ; ga
    v_lshlrev_b32 v77, 16, v77               ; gamma
    """)
    for e in range(8): a(f"v_fma_f32 v{80+e}, v{80+e}, v77, v76")
    for p in range(4): a(f"v_cvt_pk_bf16_f32 v{88+p}, v{80+2*p}, v{81+2*p}")
    a("ds_write_b128 v7, v[88:91]")
    a("s_waitcnt lgkmcnt(0)")

IDX0 = 62428
def idx_table():
    import numpy as np
    def bf16_round_int(l):
        u = int(np.float32(l).view(np.uint32))
        r = (u + 0x7FFF + ((u >> 16) & 1)) >> 16
        return r
    rows = []
    for t in range(256):
        vals = []
        for e in range(12):
            l = 2047 - 8 * t - e
            if e == 11: vals.append(0); continue
            if l < 0: idx = 768
            elif l < 128: idx = l
            else: idx = bf16_round_int(l) - 0x4300 + 128
            vals.append(4 * idx + KC2 - IDX0)
        rows.append(vals)
    out = ".p2align 4\n.type kidx_table,@object\nkidx_table:\n"
    for r in rows: out += "    .short " + ", ".join(str(v) for v in r) + "\n"
    out += ".size kidx_table, 6144\n"
    return out
def idx_load(a, tag, d):
    a(f"""
    s_getpc_b64 s[56:57]
    idx_pc_{tag}:
    s_add_u32 s56, s56, kidx_table-idx_pc_{tag}
    s_addc_u32 s57, s57, 0
    v_mul_u32_u24 v{d+6}, 24, v0
    global_load_dwordx4 v[{d}:{d+3}], v{d+6}, s[56:57]
    global_load_dwordx2 v[{d+4}:{d+5}], v{d+6}, s[56:57] offset:16
    """)
def idx_unpack(a, d, o):
    for e in range(11):
        a(f"v_and_b32 v{o+e}, 0xffff, v{d+e//2}" if e % 2 == 0 else f"v_lshrrev_b32 v{o+e}, 16, v{d+e//2}")

def gen_kwaves(a):
    VA, VB, VY = 32, 64, 96
    a(f"""
    kwaves:
    s_setprio {KP0}
    s_load_dwordx4 s[8:11], s[0:1], 8
    s_load_dwordx4 s[12:15], s[0:1], 24
    s_load_dwordx4 s[16:19], s[0:1], 40
    s_load_dwordx4 s[40:43], s[0:1], 56
    s_load_dwordx2 s[22:23], s[0:1], 144     ; ws
    s_lshr_b32 s27, s26, 1                   ; ch
    s_and_b32 s28, s26, 1                    ; hf
    s_add_u32 s30, s29, s27                  ; d
    s_lshl_b32 s34, s30, 8
    s_lshl_b32 s35, s28, 7
    s_add_u32 s34, s34, s35
    v_lshl_add_u32 v36, v1, 1, s34
    s_lshl_b32 s35, s29, 1
    s_waitcnt lgkmcnt(0)
    """)
    if SET in (0, 3): a.stamp(0)
    for i, sp in enumerate((8, 10, 12, 14, 16, 18)):
        a(f"global_load_ushort v{40+i}, v36, s[{sp}:{sp+1}]")
    a("s_load_dword s24, s[40:41], s35\ns_load_dword s25, s[42:43], s35")
    idx_load(a, "k", 104)
    a("s_setprio 0")
    if SET == 3: a.stamp(1)
    a(f"""
    s_waitcnt lgkmcnt(0)
    s_lshl_b32 s36, s27, 4
    s_lshr_b32 s24, s24, s36
    s_lshl_b32 s24, s24, 16                  ; log_dt[d]
    s_lshr_b32 s25, s25, s36
    s_lshl_b32 s25, s25, 16                  ; Dskip[d]
    v_mov_b32 v5, s24
    v_mul_f32 v6, 0x3fb8aa3b, v5
    s_mov_b32 s36, 0x3fb8aa3b
    v_fma_f32 v7, v5, s36, -v6
    v_fmac_f32 v7, 0x32a5705f, v5
    v_exp_f32 v6, v6
    v_mul_f32 v7, {fx(0.6931471805599453)}, v7
    v_fmac_f32 v6, v6, v7
    v_cvt_pk_bf16_f32 v6, v6, v6
    v_lshlrev_b32 v6, 16, v6                 ; dt
    s_mul_i32 s36, s27, {TCH}
    s_lshl_b32 s37, s28, 8
    s_add_u32 s36, s36, s37
    v_lshl_add_u32 v2, v1, 2, s36
    v_mov_b32 v4, 0
    v_mov_b32 v5, {KC2 + 768*4}
    ds_write_b32 v5, v4
    ds_write_b32 v5, v4 offset:{KCS}
    s_waitcnt vmcnt(6)
    v_lshlrev_b32 v40, 16, v40
    v_lshlrev_b32 v41, 16, v41
    v_mul_f32 v10, v6, v40
    v_mul_f32 v11, v6, v41
    v_mul_f32 v10, 0x3fb8aa3b, v10
    v_mul_f32 v11, {fx(0.15915494309189535)}, v11
    """)
    if SET == 0: a.stamp(1)
    if SET == 3: a.stamp(2)
    def direct(dst, l, t):
        a(f"""
        v_mul_f32 v{t}, {fx(float(l))}, v10
        v_mul_f32 v{t+1}, {fx(float(l))}, v11
        v_exp_f32 v{t}, v{t}
        v_fract_f32 v{t+1}, v{t+1}
        v_cos_f32 v{dst}, v{t+1}
        v_sin_f32 v{dst+1}, v{t+1}
        s_nop 0
        v_mul_f32 v{dst}, v{t}, v{dst}
        v_mul_f32 v{dst+1}, v{t}, v{dst+1}
        """)
    tmpw = [0]
    def wr(row, src, neg=False):
        tmp = 62 + (tmpw[0] % 2); tmpw[0] += 1
        a(f"v_cvt_pk_bf16_f32 v{tmp}, v{src}, {'-' if neg else ''}v{src+1}")
        a(f"ds_write_b32 v2, v{tmp} offset:{row*TROW}")
    E = [None, 64, 66, 68, 70, 72, 74, 76]
    E8, E128, X, Y2, Q, R = 78, 80, 82, 84, 86, 88
    S = [12, 14, 16, 18]
    T0, T1, T2 = 28, 30, 32
    direct(E[1], 1, 28); direct(E128, 128, 30)
    a("""
    s_waitcnt vmcnt(2)
    v_lshlrev_b32 v42, 16, v42
    v_lshlrev_b32 v43, 16, v43
    v_lshlrev_b32 v44, 16, v44
    v_lshlrev_b32 v45, 16, v45
    v_mul_f32 v42, v6, v42
    v_mul_f32 v43, v6, v43
    """)
    cmul(a, Q, 44, 42, T2)
    a("v_mov_b32 v62, 0x3f80\nds_write_b32 v2, v62 offset:0"); tmpw[0] = 1
    cmul(a, E[2], E[1], E[1], T0); cmul(a, X, E128, E128, T1)
    wr(1, E[1]); wr(8, E128); wr(QROW, Q, True)
    cmul(a, E[4], E[2], E[2], T0); cmul(a, E[3], E[2], E[1], T1); cmul(a, R, X, X, T2)
    wr(2, E[2]); wr(16, X)
    cmul(a, E8, E[4], E[4], T0); cmul(a, E[5], E[4], E[1], T1); cmul(a, E[6], E[3], E[3], T2)
    wr(3, E[3]); wr(4, E[4]); wr(24, R)
    cmul(a, E[7], E[4], E[3], T0); cmul(a, Y2, R, E[4], T1)
    cmul(a, S[1], X, E[2], T2); cmul(a, S[2], X, E[4], T0); cmul(a, S[3], X, E[6], T1)
    wr(5, E[5]); wr(6, E[6]); wr(7, E[7]); wr(25, Y2)
    cmul(a, S[0], X, E128, T2)
    a(f"v_mov_b64 v[{X}:{X+1}], v[{R}:{R+1}]")
    cmul(a, R, R, R, T0)
    wr(17, S[1]); wr(18, S[2]); wr(19, S[3]); wr(20, S[0])
    for r in range(1, 4): cmul(a, S[r], S[r], E128, (T0, T1, T2)[r % 3])
    for r in range(1, 4): wr(20 + r, S[r])
    wr(32, R)
    Z = S[0]
    for i in range(1, 16):
        cmul(a, Q, Q, E8, T0)
        if i <= 8: cmul(a, R, R, E128, T1)
        if i <= 7: cmul(a, Z, E128, E[i], T2)
        if i <= 3:
            cmul(a, X, X, E128, 34); cmul(a, Y2, Y2, E128, 36)
        wr(QROW + i, Q, True)
        if i <= 8: wr(32 + i, R)
        if i <= 7: wr(8 + i, Z)
        if i <= 3:
            wr(24 + 2 * i, X); wr(25 + 2 * i, Y2)
    a(f"""
    v_and_b32 v4, 15, v0
    v_bfe_u32 v5, v0, 4, 2
    v_lshlrev_b32 v7, 4, v5
    v_mul_u32_u24 v8, {TROW}, v4
    v_add_u32 v8, v8, v7
    s_mul_i32 s36, s27, {TCH}
    v_add_u32 v8, s36, v8
    v_add_u32 v9, {QROW*TROW}, v8            ; B address
    s_mul_i32 s37, s28, {32*TROW}
    v_add_u32 v12, s37, v8
    s_mul_i32 s37, s28, {16*TROW}
    s_add_u32 s37, s37, {16*TROW}
    v_add_u32 v13, s37, v8
    """)
    for r in range(20, 36): a(f"v_mov_b32 v{r}, 0")
    a(f"""
    s_mul_i32 s36, s27, {KCS}
    s_add_u32 s36, s36, {KC2}
    s_cmp_eq_u32 s28, 1
    s_cbranch_scc1 k_t2
    v_and_b32 v7, 1, v5
    v_lshlrev_b32 v7, 2, v7
    v_lshrrev_b32 v14, 1, v5
    v_lshl_add_u32 v7, v14, 7, v7
    v_lshl_add_u32 v7, v4, 3, v7
    v_lshl_add_u32 v14, v7, 2, s36
    v_add_u32 v15, 4, v14
    v_add_u32 v16, 8, v14
    v_add_u32 v17, 12, v14
    v_cmp_gt_u32 vcc, 2, v5
    v_lshlrev_b32 v7, 6, v5
    v_add_u32 v7, 256, v7
    v_lshlrev_b32 v40, 2, v4
    v_lshlrev_b32 v41, 1, v4
    v_cndmask_b32 v40, v41, v40, vcc
    v_add_u32 v7, v7, v40
    v_lshl_add_u32 v40, v7, 2, s36
    v_add_u32 v41, 4, v40
    v_mov_b32 v42, 128
    v_cndmask_b32 v42, v42, 8, vcc
    v_add_u32 v42, v40, v42
    v_add_u32 v43, 4, v42
    s_branch k_addr
    k_t2:
    v_lshl_add_u32 v7, v5, 6, v4
    v_lshl_add_u32 v14, v7, 2, s36
    v_add_u32 v14, {512*4}, v14
    v_add_u32 v15, 64, v14
    v_add_u32 v16, 128, v14
    v_add_u32 v17, 192, v14
    v_mov_b32 v40, v14
    v_mov_b32 v41, v15
    v_mov_b32 v42, v16
    v_mov_b32 v43, v17
    k_addr:
    v_cmp_eq_u32 vcc, 0, v1
    s_cmp_eq_u32 s28, 0
    s_cselect_b32 s25, s25, 0
    v_mov_b32 v7, s25
    v_cndmask_b32 v7, 0, v7, vcc
    s_waitcnt lgkmcnt(0)
    """)
    a("s_waitcnt vmcnt(0)")
    idx_unpack(a, 104, 112)
    if SET == 0: a.stamp(2)
    if SET == 3: a.stamp(3)
    lds_arrive(a, 2, 38); lds_wait(a, 2, 4, 38, "k1")
    def rd(s):
        o = 64 + 12 * (s % 4)
        a(f"ds_read_b128 v[{o}:{o+3}], v9 offset:{64*s}")
        a(f"ds_read_b128 v[{o+4}:{o+7}], v12 offset:{64*s}")
        a(f"ds_read_b128 v[{o+8}:{o+11}], v13 offset:{64*s}")
    for s in range(4): rd(s)
    for s in range(8):
        o = 64 + 12 * (s % 4); p = s % 2
        a(f"s_waitcnt lgkmcnt({9 if s < 5 else 3*(7-s)})")
        a(f"v_mfma_f32_16x16x32_bf16 v[{20+8*p}:{23+8*p}], v[{o+4}:{o+7}], v[{o}:{o+3}], v[{20+8*p}:{23+8*p}]")
        a(f"v_mfma_f32_16x16x32_bf16 v[{24+8*p}:{27+8*p}], v[{o+8}:{o+11}], v[{o}:{o+3}], v[{24+8*p}:{27+8*p}]")
        if s < 4: rd(s + 4)
    a("s_nop 7")
    for r in range(8): a(f"v_add_f32 v{20+r}, v{20+r}, v{28+r}")
    a(f"""
    v_add_f32 v20, v20, v7
    ds_write_b32 v14, v20
    ds_write_b32 v15, v21
    ds_write_b32 v16, v22
    ds_write_b32 v17, v23
    ds_write_b32 v40, v24
    ds_write_b32 v41, v25
    ds_write_b32 v42, v26
    ds_write_b32 v43, v27
    """)
    lds_arrive(a, 3, 38); lds_wait(a, 3, 4, 38, "k2")
    if SET == 0: a.stamp(3)
    for ch in range(2):
        for e in range(11): a(f"ds_read_b32 v{64+12*ch+e}, v{112+e} offset:{IDX0 + ch*KCS}")
    a(f"""
    v_lshlrev_b32 v4, 4, v0                  ; tid*16
    v_mov_b32 v56, 0
    v_mov_b32 v57, 0
    v_mov_b32 v58, 0
    v_mov_b32 v59, 0
    v_lshrrev_b32 v60, 1, v0
    v_mul_u32_u24 v60, {KCP}, v60
    v_and_b32 v61, 1, v0
    v_lshl_add_u32 v60, v61, 4, v60
    v_add_u32 v60, 4096, v60
    v_bfe_u32 v61, v0, 5, 1
    v_mul_u32_u24 v61, {HCH}, v61
    v_and_b32 v62, 31, v0
    v_lshl_add_u32 v61, v62, 4, v61
    v_add_u32 v61, {H_OFF}, v61
    v_cmp_gt_u32 vcc, 16, v0
    s_cmp_eq_u32 s26, 1
    s_cbranch_scc1 k_padh
    s_cmp_eq_u32 s26, 0
    s_cbranch_scc0 k_pad_done
    s_and_saveexec_b64 s[54:55], vcc
    ds_write_b128 v60, v[56:59]
    s_mov_b64 exec, s[54:55]
    s_branch k_pad_done
    k_padh:
    ds_write_b128 v61, v[56:59]
    k_pad_done:
    s_waitcnt lgkmcnt(0)
    """)
    for ch in range(2):
        for c in range(4):
            o = 96 + 4 * (c % 2)
            for k in range(4): a(f"v_cvt_pk_bf16_f32 v{o+k}, v{64+12*ch+c+2*k}, v{64+12*ch+c+2*k+1}")
            a(f"ds_write_b128 v4, v[{o}:{o+3}] offset:{ch*KCHL + c*KCP}")
    a(f"""
    v_and_b32 v7, 15, v1
    v_lshrrev_b32 v2, 4, v1
    v_sub_u32 v60, 3, v7
    v_and_b32 v60, 3, v60
    v_mul_u32_u24 v61, {KCP - 2}, v60
    v_lshlrev_b32 v62, 1, v7
    v_sub_u32 v61, v61, v62
    v_lshl_add_u32 v61, v2, 4, v61
    s_mul_i32 s38, s27, {KCHL}
    s_lshl_b32 s39, s28, 8
    s_sub_u32 s38, s38, s39
    s_add_u32 s38, s38, {2*(2031 - 32*59)}
    v_add_u32 v20, s38, v61                  ; A base
    v_lshlrev_b32 v21, 5, v7
    v_lshl_add_u32 v21, v2, 4, v21
    s_mul_i32 s38, s27, {HCH}
    s_sub_u32 s38, s38, s39
    s_add_u32 s38, s38, {H_OFF + 2*(240 - 96)}
    v_add_u32 v21, s38, v21                  ; B base
    v_lshlrev_b32 v22, 5, v7
    v_lshl_add_u32 v22, v2, 3, v22
    s_lshl_b32 s38, s27, 12
    s_lshl_b32 s39, s28, 11
    s_add_u32 s38, s38, s39
    s_add_u32 s38, s38, {XR_OFF}
    v_add_u32 v23, s38, v22
    s_lshl_b32 s38, s30, 12
    s_lshl_b32 s39, s28, 11
    s_add_u32 s38, s38, s39
    s_add_u32 s38, s38, {WS_X2T}
    s_add_u32 s50, s22, s38
    s_addc_u32 s51, s23, 0
    s_lshl_b32 s43, s26, 12
    s_add_u32 s43, s43, {RED_OFF}
    v_lshlrev_b32 v24, 4, v1
    v_add_u32 v25, s43, v24
    s_xor_b32 s43, s26, 1
    s_lshl_b32 s43, s43, 12
    s_add_u32 s43, s43, {RED_OFF}
    v_add_u32 v26, s43, v24
    s_lshl_b32 s43, s27, 2
    s_add_u32 s43, s43, {MODS}
    v_mov_b32 v27, s43
    s_lshl_b32 s43, s26, 2
    s_add_u32 s43, s43, {FLG}
    v_mov_b32 v29, s43
    s_xor_b32 s43, s43, 4
    v_mov_b32 v30, s43
    v_mov_b32 v31, 0
    ds_write_b32 v29, v31
    """)
    for t in range(8):
        for r in range(4): a(f"v_mov_b32 v{VY+4*t+r}, 0")
    lds_arrive(a, 5, 36);
    h_addr(a, 0)
    lds_wait(a, 5, 4, 36, "k3")
    T = LdsTracker(a)
    def ldA(p, r):
        off = 512 * (7 - p) + 64 * (3 - r)
        T.issue(f"ds_read_b64 v[{VA+4*p}:{VA+4*p+1}], v20 offset:{off}", [f"A{p}"])
        T.issue(f"ds_read_b64 v[{VA+4*p+2}:{VA+4*p+3}], v20 offset:{off+8}", [f"A{p}"])
    def ldB(k, r):
        off = 512 * k + 64 * (3 - r)
        T.issue(f"ds_read_b128 v[{VB+4*k}:{VB+4*k+3}], v21 offset:{off}", [f"B{k}"])
    for p in range(8): ldA(p, 0)
    if SET == 0: a.stamp(4)
    lds_wait(a, 4, 1, 16, "k4", 1)
    T.done = T.issued
    h_body(a)
    a("s_barrier")
    if int(os.environ.get("KPRIO", 0)): a(f"s_setprio {os.environ['KPRIO']}")
    if SET == 0: a.stamp(5)
    for k in range(7, -1, -1): ldB(k, 0)
    T.issue("ds_read_b32 v28, v27", ["ga"])
    for r in range(4):
        for p in range(8):
            for t in range(7, p - 1, -1):
                k = t - p
                T.need([f"A{p}", f"B{k}"])
                a(f"v_mfma_f32_16x16x32_bf16 v[{VY+4*t}:{VY+4*t+3}], v[{VA+4*p}:{VA+4*p+3}], v[{VB+4*k}:{VB+4*k+3}], v[{VY+4*t}:{VY+4*t+3}]")
                if t == 7 and r < 3: ldB(7 - p, r + 1)
            if r < 3: ldA(p, r + 1)
            if r == 3 and p == 4:
                for i in range(4): T.issue(f"ds_read_b64 v[{4+2*i}:{5+2*i}], v23 offset:{512*i}", ["xr"])
    T.need(["xr", "ga"])
    for i in range(4):
        a(f"v_lshlrev_b32 v{32+4*i}, 16, v{4+2*i}")
        a(f"v_and_b32 v{33+4*i}, 0xffff0000, v{4+2*i}")
        a(f"v_lshlrev_b32 v{34+4*i}, 16, v{5+2*i}")
        a(f"v_and_b32 v{35+4*i}, 0xffff0000, v{5+2*i}")
    a("s_cmp_eq_u32 s28, 1\ns_cbranch_scc1 k_hf1")
    def tail(hf):
        keep, send = 4 * hf, 4 * (1 - hf)
        for i in range(4):
            t = send + i
            a(f"ds_write_b128 v25, v[{VY+4*t}:{VY+4*t+3}] offset:{1024*i}")
        a("v_mov_b32 v31, 1\nds_write_b32 v29, v31")
        for i in range(4):
            for r in range(4): a(f"v_fma_f32 v{32+4*i+r}, v28, v{VY+4*(keep+i)+r}, v{32+4*i+r}")
        a(f"""
        k_hs{hf}:
        ds_read_b32 v31, v30
        s_waitcnt lgkmcnt(0)
        v_readfirstlane_b32 s43, v31
        s_cmp_eq_u32 s43, 1
        s_cbranch_scc0 k_hs{hf}
        """)
        for i in range(4): a(f"ds_read_b128 v[{64+4*i}:{67+4*i}], v26 offset:{1024*i}")
        for i in range(4):
            a(f"s_waitcnt lgkmcnt({3-i})")
            for r in range(4): a(f"v_fma_f32 v{32+4*i+r}, v28, v{64+4*i+r}, v{32+4*i+r}")
            a(f"v_cvt_pk_bf16_f32 v{12+2*i}, v{32+4*i}, v{33+4*i}")
            a(f"v_cvt_pk_bf16_f32 v{13+2*i}, v{34+4*i}, v{35+4*i}")
            a(f"global_store_dwordx2 v22, v[{12+2*i}:{13+2*i}], s[50:51] offset:{512*i}{X2SC}")
        a("s_endpgm")
    tail(0)
    a("k_hf1:")
    tail(1)

NSH = 4
def go_addr(a):
    a(f"""
    v_and_b32 v92, 31, v1
    v_lshlrev_b32 v92, 7, v92
    s_and_b32 s34, s2, {NSH-1}
    s_lshl_b32 s34, s34, 2
    s_add_u32 s34, s34, {WS_GO}
    v_add_u32 v92, s34, v92
    s_and_b32 s34, s2, 31
    s_lshl_b32 s34, s34, 7
    s_add_u32 s34, s34, {WS_GO}
    v_mov_b32 v94, s34
    """)
def go_load(a, o):
    a(f"""
    global_load_dword v93, v92, s[22:23] sc1
    global_load_dwordx4 v[{o}:{o+3}], v94, s[22:23] sc1
    """)
def grid_arrive(a, tag, t):
    assert AB_GRID % 2 == 0
    n = [len(range(k, AB_GRID, NSH)) for k in range(NSH)]
    assert n[0] - n[-1] <= 1
    cut = AB_GRID % NSH
    a(f"""
    s_and_b32 s34, s2, {NSH-1}
    s_lshl_b32 s36, s34, 6
    v_mov_b32 v{t}, s36
    v_mov_b32 v{t+1}, 1
    s_cmp_lt_u32 s34, {cut}
    s_cselect_b32 s37, 1, 0
    s_add_u32 s37, s37, {n[-1] - 1}
    s_mov_b64 exec, 1
    global_atomic_add v{t+2}, v{t}, v{t+1}, s[20:21] sc0 sc1
    s_waitcnt vmcnt(0)
    v_readfirstlane_b32 s36, v{t+2}
    s_mov_b64 exec, -1
    s_cmp_eq_u32 s36, s37
    s_cbranch_scc0 {tag}_arrived
    s_mov_b32 exec_hi, 0
    v_add_u32 v93, 1, v93
    global_store_dword v92, v93, s[22:23] sc1
    s_mov_b64 exec, -1
    {tag}_arrived:
    """)
def grid_wait(a, tag, t, o, slp=1, nmax=None):
    n = [len(range(k, AB_GRID, NSH)) for k in range(NSH)]
    cut = AB_GRID % NSH
    a(f"""
    s_mov_b32 s60, 0
    {tag}_poll_loop:
    global_load_dwordx4 v[{t}:{t+3}], v94, s[22:23] sc1
    s_waitcnt vmcnt(0)
    v_cmp_eq_u32 vcc, v{t}, v{o}
    v_cmp_eq_u32 s[58:59], v{t+1}, v{o+1}
    s_or_b64 vcc, vcc, s[58:59]
    v_cmp_eq_u32 s[58:59], v{t+2}, v{o+2}
    s_or_b64 vcc, vcc, s[58:59]
    v_cmp_eq_u32 s[58:59], v{t+3}, v{o+3}
    s_or_b64 vcc, vcc, s[58:59]
    s_cbranch_scc0 {tag}_go
    s_add_u32 s60, s60, 1
    s_and_b32 s61, s60, 31
    s_cbranch_scc1 {tag}_next
    v_and_b32 v{t}, {NSH-1}, v1
    v_lshlrev_b32 v{t+1}, 6, v{t}
    global_load_dword v{t+2}, v{t+1}, s[20:21] sc1
    v_mov_b32 v{t+3}, {n[-1]}
    v_cmp_gt_u32 vcc, {cut}, v{t}
    s_waitcnt vmcnt(0)
    s_nop 0
    v_addc_co_u32 v{t+3}, vcc, 0, v{t+3}, vcc
    v_cmp_ne_u32 vcc, v{t+2}, v{t+3}
    s_cbranch_vccz {tag}_go
    {tag}_next:
    s_sleep {slp}
    s_cmp_lt_u32 s60, {nmax or SPIN_MAX}
    s_cbranch_scc1 {tag}_poll_loop
    {tag}_go:
    """)

def gen_pwaves(a):
    a(f"""
    pwaves:
    s_load_dwordx2 s[4:5], s[0:1], 0         ; x
    s_load_dwordx4 s[44:47], s[0:1], 112     ; c, w_mod
    s_load_dwordx4 s[20:23], s[0:1], 136
    s_load_dwordx4 s[8:11], s[0:1], 80       ; w1, b1
    s_load_dwordx2 s[48:49], s[0:1], 96
    s_setprio {PPRIO}
    v_subrev_u32 v0, 256, v0
    s_sub_u32 s26, s26, 4
    v_lshrrev_b32 v3, 6, v0
    v_lshrrev_b32 v8, 4, v1                  ; row (0..3)
    v_and_b32 v9, 15, v1                     ; 16 B chunk
    v_lshlrev_b32 v4, 10, v8
    v_lshl_add_u32 v4, v9, 4, v4
    v_lshl_add_u32 v4, v3, 8, v4
    s_lshl_b32 s31, s2, 13
    v_add_u32 v4, s31, v4
    v_add_u32 v44, 4096, v4
    s_min_u32 s32, s7, 23
    s_mul_i32 s33, s6, 24
    s_add_u32 s33, s33, s32
    v_lshrrev_b32 v5, 1, v0                  ; rg
    v_and_b32 v6, 1, v0                      ; cc
    v_mul_u32_u24 v7, {4*6144}, v5
    v_lshl_add_u32 v7, v6, 4, v7
    s_lshl_b32 s34, s33, 5
    v_add_u32 v7, s34, v7
    v_lshlrev_b32 v2, 3, v5                  ; c offset
    """)
    go_addr(a)
    a("s_waitcnt lgkmcnt(0)")
    if SET == 1: a.stamp(0)
    a(f"""
    global_load_dwordx4 v[8:11], v4, s[4:5]
    global_load_dwordx4 v[12:15], v44, s[4:5]
    global_load_dwordx2 v[16:17], v2, s[44:45]
    """)
    for i in range(4):
        if i: a("v_add_u32 v7, 6144, v7")
        a(f"global_load_dwordx4 v[{20+4*i}:{23+4*i}], v7, s[46:47]")
    a(f"""
    v_mov_b32 v38, 0x3f803f80
    v_lshrrev_b32 v40, 4, v1
    v_mul_u32_u24 v39, 320, v40
    v_and_b32 v41, 15, v1
    v_lshl_add_u32 v39, v41, 4, v39
    s_mul_i32 s34, s26, 2560
    s_add_u32 s34, s34, {LNT}
    v_add_u32 v39, s34, v39
    v_lshrrev_b32 v47, 2, v41
    v_mul_u32_u24 v47, 320, v47
    v_and_b32 v46, 3, v41
    v_lshl_add_u32 v47, v46, 3, v47
    v_lshl_add_u32 v47, v40, 5, v47
    v_add_u32 v47, s34, v47
    v_lshl_add_u32 v46, v3, 7, v1
    v_lshlrev_b32 v46, 4, v46
    s_mul_i32 s34, s2, {XBS}
    s_add_u32 s34, s34, {WS_XB}
    v_add_u32 v46, s34, v46
    v_lshlrev_b32 v45, 3, v40
    s_lshl_b32 s34, s26, 6
    s_add_u32 s34, s34, {STP}
    v_add_u32 v45, s34, v45
    """)
    for r in range(2):
        b = 8 + 4 * r
        a(f"s_waitcnt vmcnt({6 - r})")
        a(f"ds_write_b128 v39, v[{b}:{b+3}] offset:{1280*r}")
        a(f"v_dot2_f32_bf16 v{72+2*r}, v{b}, v38, 0")
        a(f"v_dot2_f32_bf16 v{73+2*r}, v{b}, v{b}, 0")
        for k in range(1, 4):
            a(f"v_dot2_f32_bf16 v{72+2*r}, v{b+k}, v38, v{72+2*r}")
            a(f"v_dot2_f32_bf16 v{73+2*r}, v{b+k}, v{b+k}, v{73+2*r}")
    a("""
    s_waitcnt lgkmcnt(0)
    ds_read_b64_tr_b16 v[48:49], v47
    ds_read_b64_tr_b16 v[50:51], v47 offset:1280
    ds_read_b64_tr_b16 v[52:53], v47 offset:128
    ds_read_b64_tr_b16 v[54:55], v47 offset:1408
    """)
    if SET == 1: a.stamp(1)
    a("s_waitcnt vmcnt(4)")
    for i in range(4):
        src = 16 + i // 2
        a(f"v_lshlrev_b32 v{56+i}, 16, v{src}" if i % 2 == 0 else f"v_and_b32 v{56+i}, 0xffff0000, v{src}")
    for i in range(4): a(f"v_mul_f32 v{60+i}, {fx(-1.4426950408889634)}, v{56+i}")
    for i in range(4): a(f"v_exp_f32 v{60+i}, v{60+i}")
    dpps = ["row_shr:1", "row_shr:2", "row_shr:4", "row_shr:8", "row_bcast:15 row_mask:0xa", "row_bcast:31 row_mask:0xc"]
    def dpp4(d):
        m = "" if "row_mask" in d else " row_mask:0xf"
        for r in range(72, 76): a(f"v_add_f32_dpp v{r}, v{r}, v{r} {d}{m} bank_mask:0xf")
    dpp4(dpps[0])
    for i in range(4): a(f"v_add_f32 v{60+i}, 1.0, v{60+i}")
    dpp4(dpps[1])
    for i in range(4): a(f"v_rcp_f32 v{60+i}, v{60+i}")
    dpp4(dpps[2])
    for i in range(4): a(f"v_mul_f32 v{56+i}, v{56+i}, v{60+i}")
    dpp4(dpps[3])
    for i in range(4):
        a(f"v_cvt_pk_bf16_f32 v{60+i}, v{56+i}, 0")
        a(f"v_cvt_pk_bf16_f32 v{76+i}, 0, v{56+i}")
    a(f"""
    s_waitcnt lgkmcnt(0)
    global_store_dwordx4 v46, v[48:51], s[22:23] sc1
    global_store_dwordx4 v46, v[52:55], s[22:23] offset:1024 sc1
    v_cmp_eq_u32 vcc, 15, v41
    s_and_saveexec_b64 s[54:55], vcc
    ds_write_b64 v45, v[72:73]
    ds_write_b64 v45, v[74:75] offset:32
    s_mov_b64 exec, s[54:55]
    """)
    for i in range(4):
        a(f"s_waitcnt vmcnt({5 - i})")
        for m in range(4):
            c0 = "0" if i == 0 else f"v{64+2*m}"; c1 = "0" if i == 0 else f"v{65+2*m}"
            a(f"v_dot2_f32_bf16 v{64+2*m}, v{20+4*i+m}, v{60+i}, {c0}")
            a(f"v_dot2_f32_bf16 v{65+2*m}, v{20+4*i+m}, v{76+i}, {c1}")
    a("s_nop 2")
    for d in ["row_shr:2", "row_shr:4", "row_shr:8"]:
        for r in range(64, 72): a(f"v_add_f32_dpp v{r}, v{r}, v{r} {d} row_mask:0xf bank_mask:0xf")
    a(f"""
    v_lshrrev_b32 v4, 4, v0
    v_mul_u32_u24 v4, 80, v4
    v_lshl_add_u32 v4, v6, 5, v4
    v_add_u32 v4, {MODS}, v4
    v_and_b32 v5, 15, v0
    v_cmp_lt_u32 vcc, 13, v5
    v_lshlrev_b32 v5, 2, v5
    v_add_u32 v5, {MODS}, v5
    s_and_saveexec_b64 s[54:55], vcc
    ds_write_b128 v4, v[64:67]
    ds_write_b128 v4, v[68:71] offset:16
    s_mov_b64 exec, s[54:55]
    s_waitcnt lgkmcnt(0)
    """)
    if SET == 1: a.stamp(2)
    a("""
    s_cmp_eq_u32 s26, 0
    s_cbranch_scc0 p_nogo
    """)
    go_load(a, 96)
    a("p_nogo:")
    lds_arrive(a, 0, 36); lds_wait(a, 0, 4, 36, "p1")
    for i in range(16): a(f"ds_read_b32 v{20+i}, v5 offset:{80*i}")
    a(f"""
    v_and_b32 v58, 7, v0
    v_lshlrev_b32 v59, 3, v58
    v_add_u32 v59, {STP}, v59
    ds_read_b64 v[48:49], v59
    ds_read_b64 v[50:51], v59 offset:64
    ds_read_b64 v[52:53], v59 offset:128
    ds_read_b64 v[54:55], v59 offset:192
    v_lshlrev_b32 v58, 2, v58
    s_lshl_b32 s34, s2, 5
    s_add_u32 s34, s34, {WS_ST1}
    v_add_u32 v58, s34, v58
    s_waitcnt lgkmcnt(0)
    v_add_f32 v48, v48, v50
    v_add_f32 v49, v49, v51
    v_add_f32 v52, v52, v54
    v_add_f32 v53, v53, v55
    v_add_f32 v56, v48, v52
    v_add_f32 v57, v49, v53
    v_mul_f32 v56, {fx(1.0/512)}, v56        ; mean
    v_mul_f32 v57, {fx(1.0/512)}, v57
    v_fma_f32 v57, -v56, v56, v57
    v_max_f32 v57, 0, v57
    v_add_f32 v57, {fx(1e-5)}, v57
    v_rsq_f32 v57, v57
    v_cmp_gt_u32 vcc, 8, v0
    v_mul_f32 v56, -v56, v57
    v_cvt_pk_bf16_f32 v56, v57, v56          ; (r, -mean*r)
    s_and_saveexec_b64 s[54:55], vcc
    s_cbranch_execz p_nostat
    global_store_dword v58, v56, s[22:23] sc1
    p_nostat:
    s_mov_b64 exec, s[54:55]
    """)
    for st in (1, 2, 4, 8):
        for i in range(0, 16, 2 * st): a(f"v_add_f32 v{20+i}, v{20+i}, v{20+i+st}")
    a(f"""
    v_cvt_pk_bf16_f32 v20, v20, v20
    v_lshlrev_b32 v20, 16, v20
    s_lshl_b32 s34, s33, 7
    s_add_u32 s34, s34, {WS_MODP}
    v_lshlrev_b32 v4, 2, v0
    v_add_u32 v4, s34, v4
    s_cmp_lt_u32 s7, 24
    s_cselect_b32 s34, 16, 0
    v_cmp_gt_u32 vcc, s34, v0
    s_and_saveexec_b64 s[54:55], vcc
    s_cbranch_execz p_nomod
    global_store_dword v4, v20, s[22:23] sc1
    p_nomod:
    s_mov_b64 exec, s[54:55]
    """)
    a("s_waitcnt vmcnt(0)")
    lds_arrive(a, 1, 36)
    if SET == 1: a.stamp(3)
    a(f"""
    """)
    h_addr(a, 256)
    a("s_cmp_eq_u32 s26, 0\ns_cbranch_scc0 p_wait_release")
    lds_wait(a, 1, 4, 36, "p2")
    if os.environ.get("FORCE_RACE"):
        a("s_cmp_eq_u32 s2, 5\ns_cbranch_scc0 fr_skip\nv_add_u32 v96, 1, v96\nfr_skip:")
    grid_arrive(a, "p", 36); grid_wait(a, "p", 40, 96)
    lds_arrive(a, 4, 36)
    a("s_setprio 0\ns_branch p_released\np_wait_release:\ns_setprio 0")
    lds_wait(a, 4, 1, 36, "p3", 1)
    a("p_released:")
    if SET == 1: a.stamp(4)
    h_body(a)
    if SET == 1: a.stamp(5)
    a("s_barrier")
    a(f"""
    s_lshr_b32 s47, s2, 3
    s_mul_i32 s47, s47, 44032
    v_lshlrev_b32 v8, 6, v0
    v_add_u32 v8, s47, v8
    global_load_dword v9, v8, s[48:49]
    v_add_u32 v8, 16384, v8
    global_load_dword v10, v8, s[48:49]
    s_add_u32 s47, s47, {32768 + 175*64}
    v_add_u32 v8, 16384, v8
    v_min_u32 v8, s47, v8
    global_load_dword v11, v8, s[48:49]
    s_endpgm
    """)

def gen_w1p(a):
    IMG = 0
    RED = 16384
    a(f"""
    w1p:
    s_load_dwordx4 s[8:11], s[0:1], 80       ; w1, b1
    s_load_dwordx4 s[20:23], s[0:1], 136     ; debug, ws
    s_sub_u32 s3, s2, {NMAIN}                ; half block hb : fblk = hb>>1, mhalf = hb&1
    v_and_b32 v1, 63, v0
    v_lshrrev_b32 v2, 6, v0
    v_lshrrev_b32 v3, 1, v0                  ; rg
    v_and_b32 v4, 1, v0                      ; cc
    v_readfirstlane_b32 s26, v2
    v_mul_u32_u24 v5, {4*2752}, v3
    v_lshl_add_u32 v5, v4, 4, v5
    s_lshl_b32 s9, s3, 5
    s_waitcnt lgkmcnt(0)
    """.replace("s_lshl_b32 s9, s3, 5\n", ""))
    a(f"""
    s_lshl_b32 s12, s3, 5
    v_add_u32 v5, s12, v5
    """)
    go_addr(a)
    a("s_cmp_eq_u32 s26, 0\ns_cbranch_scc0 w_noarr")
    go_load(a, 100)
    a("s_waitcnt vmcnt(0)")
    grid_arrive(a, "w", 96)
    a("w_noarr:")
    a(f"""
    v_and_b32 v7, 15, v0
    v_lshlrev_b32 v7, 1, v7
    v_add_u32 v55, s12, v7                   ; b1 address
    v_mov_b32 v57, 0x3f803f80
    v_lshrrev_b32 v58, 2, v3
    v_lshlrev_b32 v58, 9, v58
    v_bfe_u32 v59, v3, 1, 1
    v_lshl_add_u32 v58, v59, 8, v58
    v_lshl_add_u32 v58, v4, 7, v58
    v_and_b32 v59, 1, v3
    v_lshl_add_u32 v58, v59, 3, v58
    v_lshrrev_b32 v6, 2, v3
    v_lshlrev_b32 v6, 7, v6
    v_and_b32 v7, 3, v3
    v_lshl_add_u32 v6, v7, 4, v6
    v_add_u32 v6, {WS_MODP + 96*128}, v6
    v_add_u32 v7, 4096, v6
    """)
    EARLY = os.environ.get("W1EARLY", "1") == "1"
    def w1loads():
        for i in range(4):
            if i: a("v_add_u32 v5, 2752, v5")
            a(f"global_load_dwordx4 v[{64+4*i}:{67+4*i}], v5, s[8:9]")
        a("global_load_ushort v56, v55, s[10:11]")
    def unpack():
        for i in range(4):
            for e in range(8):
                src = 64 + 4 * i + e // 2
                a(f"v_lshlrev_b32 v{24+8*i+e}, 16, v{src}" if e % 2 == 0 else f"v_and_b32 v{24+8*i+e}, 0xffff0000, v{src}")
    NPRE = int(os.environ.get("WPRE", 2))
    if EARLY:
        if NPRE:
            a("s_cmp_eq_u32 s26, 0\ns_cbranch_scc0 w_pre")
            grid_wait(a, "w0", 96, 100, int(os.environ.get("WSLP", 8)), NPRE)
            a("w_pre:\ns_barrier")
        w1loads()
        a("s_waitcnt vmcnt(1)")
        unpack()
    a("s_cmp_eq_u32 s26, 0\ns_cbranch_scc0 w_released")
    grid_wait(a, "w", 96, 100, int(os.environ.get("WSLP2", 1)))
    a("w_released:\ns_barrier")
    if int(os.environ.get("WPRIO", 0)): a(f"s_setprio {os.environ['WPRIO']}")
    if not EARLY: w1loads()
    a(f"""
    global_load_dwordx4 v[8:11], v6, s[22:23] sc1        ; sb
    global_load_dwordx4 v[12:15], v7, s[22:23] sc1       ; cb
    """)
    if not EARLY:
        a("s_waitcnt vmcnt(3)")
        unpack()
    a("s_waitcnt vmcnt(0)")
    for i in range(4): a(f"v_add_f32 v{12+i}, 1.0, v{12+i}")
    a("v_cvt_pk_bf16_f32 v16, v12, v13\nv_cvt_pk_bf16_f32 v17, v14, v15")
    a("v_lshlrev_b32 v12, 16, v16\nv_and_b32 v13, 0xffff0000, v16\nv_lshlrev_b32 v14, 16, v17\nv_and_b32 v15, 0xffff0000, v17")
    for e in range(8): a(f"v_mul_f32 v{72+e}, v8, v{24+e}")
    for i in range(1, 4):
        for e in range(8): a(f"v_fmac_f32 v{72+e}, v{8+i}, v{24+8*i+e}")
    for i in range(4):
        for e in range(8): a(f"v_mul_f32 v{24+8*i+e}, v{12+i}, v{24+8*i+e}")
    for e in range(8):
        a(f"v_cvt_pk_bf16_f32 v{80+2*e}, v{24+e}, v{32+e}")
        a(f"v_cvt_pk_bf16_f32 v{81+2*e}, v{40+e}, v{48+e}")
    for e in range(8): a(f"ds_write_b64 v58, v[{80+2*e}:{81+2*e}] offset:{IMG + 16*e}")
    for e in range(8): a(f"v_dot2_f32_bf16 v{64+e}, v{80+2*e}, v57, 0")
    for e in range(8): a(f"v_dot2_f32_bf16 v{64+e}, v{81+2*e}, v57, v{64+e}")
    a("s_nop 2")
    for d in ["row_shr:2", "row_shr:4", "row_shr:8"]:
        for r in range(64, 80): a(f"v_add_f32_dpp v{r}, v{r}, v{r} {d} row_mask:0xf bank_mask:0xf")
    a(f"""
    v_lshrrev_b32 v5, 4, v0                  ; part
    v_mul_u32_u24 v5, 144, v5
    v_lshl_add_u32 v5, v4, 5, v5
    v_and_b32 v6, 15, v0
    v_cmp_lt_u32 vcc, 13, v6
    s_and_saveexec_b64 s[54:55], vcc
    ds_write_b128 v5, v[64:67] offset:{RED}
    ds_write_b128 v5, v[68:71] offset:{RED + 16}
    ds_write_b128 v5, v[72:75] offset:{RED + 64}
    ds_write_b128 v5, v[76:79] offset:{RED + 80}
    s_mov_b64 exec, s[54:55]
    v_lshlrev_b32 v7, 4, v0
    s_lshr_b32 s13, s3, 1
    s_lshl_b32 s13, s13, 15
    s_and_b32 s14, s3, 1
    s_lshl_b32 s14, s14, 8
    s_add_u32 s13, s13, s14
    s_add_u32 s13, s13, {WS_W1F}
    v_lshrrev_b32 v8, 4, v0
    v_lshlrev_b32 v8, 9, v8                  ; g*512 + s*1024 == (2s+g)*512
    v_lshl_add_u32 v8, v6, 4, v8
    v_add_u32 v8, s13, v8
    v_and_b32 v9, 31, v0
    v_lshlrev_b32 v9, 2, v9
    s_waitcnt lgkmcnt(0)
    s_barrier
    """)
    for k in range(4): a(f"ds_read_b128 v[{24+4*k}:{27+4*k}], v7 offset:{IMG + 4096*k}")
    a(f"""
    v_lshlrev_b32 v9, 2, v6
    v_bfe_u32 v10, v0, 4, 1
    v_lshl_add_u32 v9, v10, 6, v9            ; (t&15)*4 + ((t>>4)&1)*64
    """)
    for p in range(16): a(f"ds_read_b32 v{40+p}, v9 offset:{RED + 144*p}")
    for k in range(4):
        a(f"s_waitcnt lgkmcnt({15 if k == 0 else 15})" if False else "")
    a("s_waitcnt lgkmcnt(15)")
    a("s_waitcnt lgkmcnt(0)")
    for k in range(4):
        a(f"global_store_dwordx4 v8, v[{24+4*k}:{27+4*k}], s[22:23]{W1SC}")
        if k < 3: a(f"v_add_u32 v8, {16*512}, v8")
    for st in (1, 2, 4, 8):
        for p in range(0, 16, 2 * st): a(f"v_add_f32 v{40+p}, v{40+p}, v{40+p+st}")
    a(f"""
    v_lshlrev_b32 v56, 16, v56
    v_cmp_eq_u32 vcc, 1, v10
    s_nop 1
    v_cndmask_b32 v56, 0, v56, vcc
    v_add_f32 v40, v40, v56
    s_lshl_b32 s13, s3, 6
    v_lshl_add_u32 v11, v6, 2, s13
    v_mov_b32 v12, {WS_CS}
    v_mov_b32 v13, {WS_B1P}
    v_cndmask_b32 v12, v12, v13, vcc
    v_add_u32 v11, v11, v12
    v_cmp_gt_u32 vcc, 32, v0
    s_and_saveexec_b64 s[54:55], vcc
    s_cbranch_execz w1p_end
    global_store_dword v11, v40, s[22:23]{SC}
    w1p_end:
    s_endpgm
    """)

def gen_AB(a):
    a(f"""
    s_cmp_ge_u32 s2, {NMAIN}
    s_cbranch_scc1 ab_other
    v_lshrrev_b32 v3, 6, v0
    v_and_b32 v1, 63, v0
    s_and_b32 s6, s2, 7
    s_lshr_b32 s7, s2, 3
    v_readfirstlane_b32 s26, v3              ; wave
    v_lshlrev_b32 v4, 2, v0
    v_add_u32 v4, {CNT}, v4
    v_mov_b32 v5, 0
    v_cmp_gt_u32 vcc, 8, v0
    s_and_saveexec_b64 s[54:55], vcc
    ds_write_b32 v4, v5
    s_mov_b64 exec, s[54:55]
    s_lshl_b32 s29, s6, 6
    s_lshl_b32 s30, s7, 1
    s_add_u32 s29, s29, s30
    s_waitcnt lgkmcnt(0)
    s_barrier
    s_cmp_lt_u32 s26, 4
    s_cbranch_scc1 kwaves
    """)
    gen_pwaves(a)
    gen_kwaves(a)
    a(f"""
    ab_other:
    s_cmp_lt_u32 s2, {AB_GRID}
    s_cbranch_scc0 ab_end
    v_cmp_gt_u32 vcc, 256, v0
    s_cbranch_vccnz w1p
    ab_end:
    s_endpgm
    """)
    gen_w1p(a)
    a.l.append(idx_table())

if __name__ == "__main__":
    ks = [("convab_kernel", gen_AB, 128, AB_GRID, 512, AB_LDS),
          ("gemm1_kernel", gen_C, 176, C_GRID, 512, C_LDS),
          ("gemm2_kernel", gen_D, 128, D_GRID, 512, D_LDS)]
    s = build(ks)
    path = sys.argv[1] if len(sys.argv) > 1 else "out.s"
    open(path, "w").write(s)
    print("wrote", path, len(s))
```

```python
import sys, os
os.environ["MODP"] = "1"
import g3
from g3 import *
import g3b
from g3b import gen_C, gen_D, C_GRID, C_LDS, D_GRID, D_LDS, KCP, KCHL

NMAIN, NW1 = 256, 43
TCH = 57 * TROW
H_OFF = 2 * KCHL
HCH = 4608
XR_OFF = H_OFF + 2 * HCH
RED_OFF = XR_OFF + 8192
LNT = 62016
KC2 = LNT + 4 * 2560
KCS = 776 * 4
MODS = KC2 + 2 * KCS
STP = MODS + 16 * 80
FLG = STP + 256
CNT = FLG + 16
AB_LDS = CNT + 32
NW1 = 86
AB_GRID = NMAIN + NW1
XBS = 8192
WS_MODP = 0x10000
WS_GO = 0x20000
WS_XB = WS_XT
SET = int(os.environ.get("STAMPSET", 0))
PPRIO = int(os.environ.get("PPRIO", 1))
X2SC = os.environ.get("X2SC", "")
X2W = bool(os.environ.get("X2W"))
W1SC = os.environ.get("W1SC", " sc1")
KP0 = int(os.environ.get("KP0", 3))
SPIN_MAX = 0x20000

def lds_arrive(a, k, v):
    a(f"""
    v_mov_b32 v{v}, {CNT + 4*k}
    v_mov_b32 v{v+1}, 1
    s_mov_b64 exec, 1
    ds_add_u32 v{v}, v{v+1}
    s_mov_b64 exec, -1
    """)
def lds_wait(a, k, n, v, tag, slp=1):
    a(f"""
    v_mov_b32 v{v}, {CNT + 4*k}
    lw_{tag}:
    ds_read_b32 v{v+1}, v{v}
    s_waitcnt lgkmcnt(0)
    v_readfirstlane_b32 s62, v{v+1}
    s_cmp_ge_u32 s62, {n}
    s_cbranch_scc1 lw_{tag}_done
    s_sleep {slp}
    s_branch lw_{tag}
    lw_{tag}_done:
    """)

def h_addr(a, toff):
    a(f"""
    v_add_u32 v11, {toff}, v0
    v_lshrrev_b32 v12, 1, v11                ; block
    v_and_b32 v10, 1, v11                    ; ch
    v_lshlrev_b32 v4, 13, v12
    v_lshl_add_u32 v4, v10, 4, v4
    s_lshl_b32 s38, s29, 4
    s_add_u32 s38, s38, {WS_XB}
    v_add_u32 v4, s38, v4
    v_lshlrev_b32 v5, 5, v12
    v_add_u32 v5, {WS_ST1}, v5               ; statistics
    s_lshr_b32 s38, s29, 4
    s_lshl_b32 s38, s38, 7
    s_and_b32 s39, s29, 15
    s_lshl_b32 s39, s39, 2
    s_add_u32 s38, s38, s39
    s_add_u32 s38, s38, {WS_MODP}
    v_lshl_add_u32 v6, v10, 2, s38
    v_mul_u32_u24 v7, {HCH}, v10
    v_lshl_add_u32 v7, v12, 4, v7
    v_add_u32 v7, {H_OFF + 512}, v7          ; h (LDS)
    v_lshlrev_b32 v8, 12, v10
    v_lshl_add_u32 v8, v12, 4, v8
    v_add_u32 v8, {XR_OFF}, v8
    v_lshlrev_b32 v9, 2, v10
    v_add_u32 v9, {MODS}, v9
    v_add_u32 v13, 4096, v6
    v_add_u32 v14, 4096, v13
    """)
def h_body(a):
    a(f"""
    global_load_dwordx4 v[64:67], v4, s[22:23] sc1
    global_load_dwordx4 v[68:71], v5, s[22:23] sc1
    global_load_dwordx4 v[72:75], v5, s[22:23] offset:16 sc1
    global_load_dword v76, v6, s[22:23] sc1
    global_load_dword v77, v13, s[22:23] sc1
    global_load_dword v78, v14, s[22:23] sc1
    s_waitcnt vmcnt(5)
    ds_write_b128 v8, v[64:67]
    """)
    for e in range(8):
        src = 64 + e // 2
        a(f"v_lshlrev_b32 v{80+e}, 16, v{src}" if e % 2 == 0 else f"v_and_b32 v{80+e}, 0xffff0000, v{src}")
    a("s_waitcnt vmcnt(3)")
    for e in range(8):
        a(f"v_lshlrev_b32 v{12+(e%4)}, 16, v{68+e}")
        a(f"v_and_b32 v{68+e}, 0xffff0000, v{68+e}")
        a(f"v_fma_f32 v{80+e}, v{80+e}, v{12+(e%4)}, v{68+e}")
    a(f"""
    s_waitcnt vmcnt(0)
    v_add_f32 v77, 1.0, v77
    v_cvt_pk_bf16_f32 v77, v77, v77
    ds_write_b32 v9, v78                     ; ga
    v_lshlrev_b32 v77, 16, v77               ; gamma
    """)
    for e in range(8): a(f"v_fma_f32 v{80+e}, v{80+e}, v77, v76")
    for p in range(4): a(f"v_cvt_pk_bf16_f32 v{88+p}, v{80+2*p}, v{81+2*p}")
    a("ds_write_b128 v7, v[88:91]")
    a("s_waitcnt lgkmcnt(0)")

IDX0 = 62428
def idx_table():
    import numpy as np
    def bf16_round_int(l):
        u = int(np.float32(l).view(np.uint32))
        r = (u + 0x7FFF + ((u >> 16) & 1)) >> 16
        return r
    rows = []
    for t in range(256):
        vals = []
        for e in range(12):
            l = 2047 - 8 * t - e
            if e == 11: vals.append(0); continue
            if l < 0: idx = 768
            elif l < 128: idx = l
            else: idx = bf16_round_int(l) - 0x4300 + 128
            vals.append(4 * idx + KC2 - IDX0)
        rows.append(vals)
    out = ".p2align 4\n.type kidx_table,@object\nkidx_table:\n"
    for r in rows: out += "    .short " + ", ".join(str(v) for v in r) + "\n"
    out += ".size kidx_table, 6144\n"
    return out
def idx_load(a, tag, d):
    a(f"""
    s_getpc_b64 s[56:57]
    idx_pc_{tag}:
    s_add_u32 s56, s56, kidx_table-idx_pc_{tag}
    s_addc_u32 s57, s57, 0
    v_mul_u32_u24 v{d+6}, 24, v0
    global_load_dwordx4 v[{d}:{d+3}], v{d+6}, s[56:57]
    global_load_dwordx2 v[{d+4}:{d+5}], v{d+6}, s[56:57] offset:16
    """)
def idx_unpack(a, d, o):
    for e in range(11):
        a(f"v_and_b32 v{o+e}, 0xffff, v{d+e//2}" if e % 2 == 0 else f"v_lshrrev_b32 v{o+e}, 16, v{d+e//2}")

def gen_kwaves(a):
    VA, VB, VY = 32, 64, 96
    a(f"""
    kwaves:
    s_setprio {KP0}
    s_load_dwordx4 s[8:11], s[0:1], 8
    s_load_dwordx4 s[12:15], s[0:1], 24
    s_load_dwordx4 s[16:19], s[0:1], 40
    s_load_dwordx4 s[40:43], s[0:1], 56
    s_load_dwordx2 s[22:23], s[0:1], 144     ; ws
    s_lshr_b32 s27, s26, 1                   ; ch
    s_and_b32 s28, s26, 1                    ; hf
    s_add_u32 s30, s29, s27                  ; d
    s_lshl_b32 s34, s30, 8
    s_lshl_b32 s35, s28, 7
    s_add_u32 s34, s34, s35
    v_lshl_add_u32 v36, v1, 1, s34
    s_lshl_b32 s35, s29, 1
    s_waitcnt lgkmcnt(0)
    """)
    if SET in (0, 3): a.stamp(0)
    for i, sp in enumerate((8, 10, 12, 14, 16, 18)):
        a(f"global_load_ushort v{40+i}, v36, s[{sp}:{sp+1}]")
    a("s_load_dword s24, s[40:41], s35\ns_load_dword s25, s[42:43], s35")
    idx_load(a, "k", 104)
    a("s_setprio 0")
    if SET == 3: a.stamp(1)
    a(f"""
    s_waitcnt lgkmcnt(0)
    s_lshl_b32 s36, s27, 4
    s_lshr_b32 s24, s24, s36
    s_lshl_b32 s24, s24, 16                  ; log_dt[d]
    s_lshr_b32 s25, s25, s36
    s_lshl_b32 s25, s25, 16                  ; Dskip[d]
    v_mov_b32 v5, s24
    v_mul_f32 v6, 0x3fb8aa3b, v5
    s_mov_b32 s36, 0x3fb8aa3b
    v_fma_f32 v7, v5, s36, -v6
    v_fmac_f32 v7, 0x32a5705f, v5
    v_exp_f32 v6, v6
    v_mul_f32 v7, {fx(0.6931471805599453)}, v7
    v_fmac_f32 v6, v6, v7
    v_cvt_pk_bf16_f32 v6, v6, v6
    v_lshlrev_b32 v6, 16, v6                 ; dt
    s_mul_i32 s36, s27, {TCH}
    s_lshl_b32 s37, s28, 8
    s_add_u32 s36, s36, s37
    v_lshl_add_u32 v2, v1, 2, s36
    v_mov_b32 v4, 0
    v_mov_b32 v5, {KC2 + 768*4}
    ds_write_b32 v5, v4
    ds_write_b32 v5, v4 offset:{KCS}
    s_waitcnt vmcnt(6)
    v_lshlrev_b32 v40, 16, v40
    v_lshlrev_b32 v41, 16, v41
    v_mul_f32 v10, v6, v40
    v_mul_f32 v11, v6, v41
    v_mul_f32 v10, 0x3fb8aa3b, v10
    v_mul_f32 v11, {fx(0.15915494309189535)}, v11
    """)
    if SET == 0: a.stamp(1)
    if SET == 3: a.stamp(2)
    def direct(dst, l, t):
        a(f"""
        v_mul_f32 v{t}, {fx(float(l))}, v10
        v_mul_f32 v{t+1}, {fx(float(l))}, v11
        v_exp_f32 v{t}, v{t}
        v_fract_f32 v{t+1}, v{t+1}
        v_cos_f32 v{dst}, v{t+1}
        v_sin_f32 v{dst+1}, v{t+1}
        s_nop 0
        v_mul_f32 v{dst}, v{t}, v{dst}
        v_mul_f32 v{dst+1}, v{t}, v{dst+1}
        """)
    tmpw = [0]
    def wr(row, src, neg=False):
        tmp = 62 + (tmpw[0] % 2); tmpw[0] += 1
        a(f"v_cvt_pk_bf16_f32 v{tmp}, v{src}, {'-' if neg else ''}v{src+1}")
        a(f"ds_write_b32 v2, v{tmp} offset:{row*TROW}")
    E = [None, 64, 66, 68, 70, 72, 74, 76]
    E8, E128, X, Y2, Q, R = 78, 80, 82, 84, 86, 88
    S = [12, 14, 16, 18]
    T0, T1, T2 = 28, 30, 32
    direct(E[1], 1, 28); direct(E128, 128, 30)
    a("""
    s_waitcnt vmcnt(2)
    v_lshlrev_b32 v42, 16, v42
    v_lshlrev_b32 v43, 16, v43
    v_lshlrev_b32 v44, 16, v44
    v_lshlrev_b32 v45, 16, v45
    v_mul_f32 v42, v6, v42
    v_mul_f32 v43, v6, v43
    """)
    cmul(a, Q, 44, 42, T2)
    a("v_mov_b32 v62, 0x3f80\nds_write_b32 v2, v62 offset:0"); tmpw[0] = 1
    cmul(a, E[2], E[1], E[1], T0); cmul(a, X, E128, E128, T1)
    wr(1, E[1]); wr(8, E128); wr(QROW, Q, True)
    cmul(a, E[4], E[2], E[2], T0); cmul(a, E[3], E[2], E[1], T1); cmul(a, R, X, X, T2)
    wr(2, E[2]); wr(16, X)
    cmul(a, E8, E[4], E[4], T0); cmul(a, E[5], E[4], E[1], T1); cmul(a, E[6], E[3], E[3], T2)
    wr(3, E[3]); wr(4, E[4]); wr(24, R)
    cmul(a, E[7], E[4], E[3], T0); cmul(a, Y2, R, E[4], T1)
    cmul(a, S[1], X, E[2], T2); cmul(a, S[2], X, E[4], T0); cmul(a, S[3], X, E[6], T1)
    wr(5, E[5]); wr(6, E[6]); wr(7, E[7]); wr(25, Y2)
    cmul(a, S[0], X, E128, T2)
    a(f"v_mov_b64 v[{X}:{X+1}], v[{R}:{R+1}]")
    cmul(a, R, R, R, T0)
    wr(17, S[1]); wr(18, S[2]); wr(19, S[3]); wr(20, S[0])
    for r in range(1, 4): cmul(a, S[r], S[r], E128, (T0, T1, T2)[r % 3])
    for r in range(1, 4): wr(20 + r, S[r])
    wr(32, R)
    Z = S[0]
    for i in range(1, 16):
        cmul(a, Q, Q, E8, T0)
        if i <= 8: cmul(a, R, R, E128, T1)
        if i <= 7: cmul(a, Z, E128, E[i], T2)
        if i <= 3:
            cmul(a, X, X, E128, 34); cmul(a, Y2, Y2, E128, 36)
        wr(QROW + i, Q, True)
        if i <= 8: wr(32 + i, R)
        if i <= 7: wr(8 + i, Z)
        if i <= 3:
            wr(24 + 2 * i, X); wr(25 + 2 * i, Y2)
    a(f"""
    v_and_b32 v4, 15, v0
    v_bfe_u32 v5, v0, 4, 2
    v_lshlrev_b32 v7, 4, v5
    v_mul_u32_u24 v8, {TROW}, v4
    v_add_u32 v8, v8, v7
    s_mul_i32 s36, s27, {TCH}
    v_add_u32 v8, s36, v8
    v_add_u32 v9, {QROW*TROW}, v8            ; B address
    s_mul_i32 s37, s28, {32*TROW}
    v_add_u32 v12, s37, v8
    s_mul_i32 s37, s28, {16*TROW}
    s_add_u32 s37, s37, {16*TROW}
    v_add_u32 v13, s37, v8
    """)
    for r in range(20, 36): a(f"v_mov_b32 v{r}, 0")
    a(f"""
    s_mul_i32 s36, s27, {KCS}
    s_add_u32 s36, s36, {KC2}
    s_cmp_eq_u32 s28, 1
    s_cbranch_scc1 k_t2
    v_and_b32 v7, 1, v5
    v_lshlrev_b32 v7, 2, v7
    v_lshrrev_b32 v14, 1, v5
    v_lshl_add_u32 v7, v14, 7, v7
    v_lshl_add_u32 v7, v4, 3, v7
    v_lshl_add_u32 v14, v7, 2, s36
    v_add_u32 v15, 4, v14
    v_add_u32 v16, 8, v14
    v_add_u32 v17, 12, v14
    v_cmp_gt_u32 vcc, 2, v5
    v_lshlrev_b32 v7, 6, v5
    v_add_u32 v7, 256, v7
    v_lshlrev_b32 v40, 2, v4
    v_lshlrev_b32 v41, 1, v4
    v_cndmask_b32 v40, v41, v40, vcc
    v_add_u32 v7, v7, v40
    v_lshl_add_u32 v40, v7, 2, s36
    v_add_u32 v41, 4, v40
    v_mov_b32 v42, 128
    v_cndmask_b32 v42, v42, 8, vcc
    v_add_u32 v42, v40, v42
    v_add_u32 v43, 4, v42
    s_branch k_addr
    k_t2:
    v_lshl_add_u32 v7, v5, 6, v4
    v_lshl_add_u32 v14, v7, 2, s36
    v_add_u32 v14, {512*4}, v14
    v_add_u32 v15, 64, v14
    v_add_u32 v16, 128, v14
    v_add_u32 v17, 192, v14
    v_mov_b32 v40, v14
    v_mov_b32 v41, v15
    v_mov_b32 v42, v16
    v_mov_b32 v43, v17
    k_addr:
    v_cmp_eq_u32 vcc, 0, v1
    s_cmp_eq_u32 s28, 0
    s_cselect_b32 s25, s25, 0
    v_mov_b32 v7, s25
    v_cndmask_b32 v7, 0, v7, vcc
    s_waitcnt lgkmcnt(0)
    """)
    a("s_waitcnt vmcnt(0)")
    idx_unpack(a, 104, 112)
    if SET == 0: a.stamp(2)
    if SET == 3: a.stamp(3)
    lds_arrive(a, 2, 38); lds_wait(a, 2, 4, 38, "k1")
    def rd(s):
        o = 64 + 12 * (s % 4)
        a(f"ds_read_b128 v[{o}:{o+3}], v9 offset:{64*s}")
        a(f"ds_read_b128 v[{o+4}:{o+7}], v12 offset:{64*s}")
        a(f"ds_read_b128 v[{o+8}:{o+11}], v13 offset:{64*s}")
    for s in range(4): rd(s)
    for s in range(8):
        o = 64 + 12 * (s % 4); p = s % 2
        a(f"s_waitcnt lgkmcnt({9 if s < 5 else 3*(7-s)})")
        a(f"v_mfma_f32_16x16x32_bf16 v[{20+8*p}:{23+8*p}], v[{o+4}:{o+7}], v[{o}:{o+3}], v[{20+8*p}:{23+8*p}]")
        a(f"v_mfma_f32_16x16x32_bf16 v[{24+8*p}:{27+8*p}], v[{o+8}:{o+11}], v[{o}:{o+3}], v[{24+8*p}:{27+8*p}]")
        if s < 4: rd(s + 4)
    a("s_nop 7")
    for r in range(8): a(f"v_add_f32 v{20+r}, v{20+r}, v{28+r}")
    a(f"""
    v_add_f32 v20, v20, v7
    ds_write_b32 v14, v20
    ds_write_b32 v15, v21
    ds_write_b32 v16, v22
    ds_write_b32 v17, v23
    ds_write_b32 v40, v24
    ds_write_b32 v41, v25
    ds_write_b32 v42, v26
    ds_write_b32 v43, v27
    """)
    lds_arrive(a, 3, 38); lds_wait(a, 3, 4, 38, "k2")
    if SET == 0: a.stamp(3)
    for ch in range(2):
        for e in range(11): a(f"ds_read_b32 v{64+12*ch+e}, v{112+e} offset:{IDX0 + ch*KCS}")
    a(f"""
    v_lshlrev_b32 v4, 4, v0                  ; tid*16
    v_mov_b32 v56, 0
    v_mov_b32 v57, 0
    v_mov_b32 v58, 0
    v_mov_b32 v59, 0
    v_lshrrev_b32 v60, 1, v0
    v_mul_u32_u24 v60, {KCP}, v60
    v_and_b32 v61, 1, v0
    v_lshl_add_u32 v60, v61, 4, v60
    v_add_u32 v60, 4096, v60
    v_bfe_u32 v61, v0, 5, 1
    v_mul_u32_u24 v61, {HCH}, v61
    v_and_b32 v62, 31, v0
    v_lshl_add_u32 v61, v62, 4, v61
    v_add_u32 v61, {H_OFF}, v61
    v_cmp_gt_u32 vcc, 16, v0
    s_cmp_eq_u32 s26, 1
    s_cbranch_scc1 k_padh
    s_cmp_eq_u32 s26, 0
    s_cbranch_scc0 k_pad_done
    s_and_saveexec_b64 s[54:55], vcc
    ds_write_b128 v60, v[56:59]
    s_mov_b64 exec, s[54:55]
    s_branch k_pad_done
    k_padh:
    ds_write_b128 v61, v[56:59]
    k_pad_done:
    s_waitcnt lgkmcnt(0)
    """)
    for ch in range(2):
        for c in range(4):
            o = 96 + 4 * (c % 2)
            for k in range(4): a(f"v_cvt_pk_bf16_f32 v{o+k}, v{64+12*ch+c+2*k}, v{64+12*ch+c+2*k+1}")
            a(f"ds_write_b128 v4, v[{o}:{o+3}] offset:{ch*KCHL + c*KCP}")
    a(f"""
    v_and_b32 v7, 15, v1
    v_lshrrev_b32 v2, 4, v1
    v_sub_u32 v60, 3, v7
    v_and_b32 v60, 3, v60
    v_mul_u32_u24 v61, {KCP - 2}, v60
    v_lshlrev_b32 v62, 1, v7
    v_sub_u32 v61, v61, v62
    v_lshl_add_u32 v61, v2, 4, v61
    s_mul_i32 s38, s27, {KCHL}
    s_lshl_b32 s39, s28, 8
    s_sub_u32 s38, s38, s39
    s_add_u32 s38, s38, {2*(2031 - 32*59)}
    v_add_u32 v20, s38, v61                  ; A base
    v_lshlrev_b32 v21, 5, v7
    v_lshl_add_u32 v21, v2, 4, v21
    s_mul_i32 s38, s27, {HCH}
    s_sub_u32 s38, s38, s39
    s_add_u32 s38, s38, {H_OFF + 2*(240 - 96)}
    v_add_u32 v21, s38, v21                  ; B base
    v_lshlrev_b32 v22, 5, v7
    v_lshl_add_u32 v22, v2, 3, v22
    s_lshl_b32 s38, s27, 12
    s_lshl_b32 s39, s28, 11
    s_add_u32 s38, s38, s39
    s_add_u32 s38, s38, {XR_OFF}
    v_add_u32 v23, s38, v22
    s_lshl_b32 s38, s30, 12
    s_lshl_b32 s39, s28, 11
    s_add_u32 s38, s38, s39
    s_add_u32 s38, s38, {WS_X2T}
    s_add_u32 s50, s22, s38
    s_addc_u32 s51, s23, 0
    s_lshl_b32 s43, s26, 12
    s_add_u32 s43, s43, {RED_OFF}
    v_lshlrev_b32 v24, 4, v1
    v_add_u32 v25, s43, v24
    s_xor_b32 s43, s26, 1
    s_lshl_b32 s43, s43, 12
    s_add_u32 s43, s43, {RED_OFF}
    v_add_u32 v26, s43, v24
    s_lshl_b32 s43, s27, 2
    s_add_u32 s43, s43, {MODS}
    v_mov_b32 v27, s43
    s_lshl_b32 s43, s26, 2
    s_add_u32 s43, s43, {FLG}
    v_mov_b32 v29, s43
    s_xor_b32 s43, s43, 4
    v_mov_b32 v30, s43
    v_mov_b32 v31, 0
    ds_write_b32 v29, v31
    v_lshlrev_b32 v24, 5, v7
    v_lshrrev_b32 v60, 1, v2
    v_lshl_add_u32 v24, v60, 4, v24
    v_and_b32 v60, 1, v2
    v_lshl_add_u32 v24, v60, 9, v24
    """)
    for t in range(8):
        for r in range(4): a(f"v_mov_b32 v{VY+4*t+r}, 0")
    lds_arrive(a, 5, 36);
    h_addr(a, 0)
    lds_wait(a, 5, 4, 36, "k3")
    T = LdsTracker(a)
    def ldA(p, r):
        off = 512 * (7 - p) + 64 * (3 - r)
        T.issue(f"ds_read_b64 v[{VA+4*p}:{VA+4*p+1}], v20 offset:{off}", [f"A{p}"])
        T.issue(f"ds_read_b64 v[{VA+4*p+2}:{VA+4*p+3}], v20 offset:{off+8}", [f"A{p}"])
    def ldB(k, r):
        off = 512 * k + 64 * (3 - r)
        T.issue(f"ds_read_b128 v[{VB+4*k}:{VB+4*k+3}], v21 offset:{off}", [f"B{k}"])
    for p in range(8): ldA(p, 0)
    if SET == 0: a.stamp(4)
    lds_wait(a, 4, 1, 16, "k4", 1)
    T.done = T.issued
    h_body(a)
    a("s_barrier")
    if int(os.environ.get("KPRIO", 0)): a(f"s_setprio {os.environ['KPRIO']}")
    if SET == 0: a.stamp(5)
    for k in range(7, -1, -1): ldB(k, 0)
    T.issue("ds_read_b32 v28, v27", ["ga"])
    for r in range(4):
        for p in range(8):
            for t in range(7, p - 1, -1):
                k = t - p
                T.need([f"A{p}", f"B{k}"])
                a(f"v_mfma_f32_16x16x32_bf16 v[{VY+4*t}:{VY+4*t+3}], v[{VA+4*p}:{VA+4*p+3}], v[{VB+4*k}:{VB+4*k+3}], v[{VY+4*t}:{VY+4*t+3}]")
                if t == 7 and r < 3: ldB(7 - p, r + 1)
            if r < 3: ldA(p, r + 1)
            if r == 3 and p == 4:
                for i in range(4): T.issue(f"ds_read_b64 v[{4+2*i}:{5+2*i}], v23 offset:{512*i}", ["xr"])
    T.need(["xr", "ga"])
    for i in range(4):
        a(f"v_lshlrev_b32 v{32+4*i}, 16, v{4+2*i}")
        a(f"v_and_b32 v{33+4*i}, 0xffff0000, v{4+2*i}")
        a(f"v_lshlrev_b32 v{34+4*i}, 16, v{5+2*i}")
        a(f"v_and_b32 v{35+4*i}, 0xffff0000, v{5+2*i}")
    a("s_cmp_eq_u32 s28, 1\ns_cbranch_scc1 k_hf1")
    def tail(hf):
        keep, send = 4 * hf, 4 * (1 - hf)
        for i in range(4):
            t = send + i
            a(f"ds_write_b128 v25, v[{VY+4*t}:{VY+4*t+3}] offset:{1024*i}")
        a("v_mov_b32 v31, 1\nds_write_b32 v29, v31")
        for i in range(4):
            for r in range(4): a(f"v_fma_f32 v{32+4*i+r}, v28, v{VY+4*(keep+i)+r}, v{32+4*i+r}")
        a(f"""
        k_hs{hf}:
        ds_read_b32 v31, v30
        s_waitcnt lgkmcnt(0)
        v_readfirstlane_b32 s43, v31
        s_cmp_eq_u32 s43, 1
        s_cbranch_scc0 k_hs{hf}
        """)
        for i in range(4): a(f"ds_read_b128 v[{64+4*i}:{67+4*i}], v26 offset:{1024*i}")
        for i in range(4):
            a(f"s_waitcnt lgkmcnt({3-i})")
            for r in range(4): a(f"v_fma_f32 v{32+4*i+r}, v28, v{64+4*i+r}, v{32+4*i+r}")
            a(f"v_cvt_pk_bf16_f32 v{12+2*i}, v{32+4*i}, v{33+4*i}")
            a(f"v_cvt_pk_bf16_f32 v{13+2*i}, v{34+4*i}, v{35+4*i}")
            if not X2W:
                a(f"global_store_dwordx2 v22, v[{12+2*i}:{13+2*i}], s[50:51] offset:{512*i}{X2SC}")
            elif i % 2 == 1:
                o = 12 + 2 * (i - 1)
                a("s_nop 1")
                a(f"v_permlane16_swap_b32 v{o}, v{o+2}")
                a(f"v_permlane16_swap_b32 v{o+1}, v{o+3}")
                a(f"global_store_dwordx4 v24, v[{o}:{o+3}], s[50:51] offset:{512*(i-1)}{X2SC}")
        a("s_endpgm")
    tail(0)
    a("k_hf1:")
    tail(1)

NSH = 4
def go_addr(a):
    a(f"""
    v_and_b32 v92, 31, v1
    v_lshlrev_b32 v92, 7, v92
    s_and_b32 s34, s2, {NSH-1}
    s_lshl_b32 s34, s34, 2
    s_add_u32 s34, s34, {WS_GO}
    v_add_u32 v92, s34, v92
    s_and_b32 s34, s2, 31
    s_lshl_b32 s34, s34, 7
    s_add_u32 s34, s34, {WS_GO}
    v_mov_b32 v94, s34
    """)
def go_load(a, o):
    a(f"""
    global_load_dword v93, v92, s[22:23] sc1
    global_load_dwordx4 v[{o}:{o+3}], v94, s[22:23] sc1
    """)
def grid_arrive(a, tag, t):
    assert AB_GRID % 2 == 0
    n = [len(range(k, AB_GRID, NSH)) for k in range(NSH)]
    assert n[0] - n[-1] <= 1
    cut = AB_GRID % NSH
    a(f"""
    s_and_b32 s34, s2, {NSH-1}
    s_lshl_b32 s36, s34, 6
    v_mov_b32 v{t}, s36
    v_mov_b32 v{t+1}, 1
    s_cmp_lt_u32 s34, {cut}
    s_cselect_b32 s37, 1, 0
    s_add_u32 s37, s37, {n[-1] - 1}
    s_mov_b64 exec, 1
    global_atomic_add v{t+2}, v{t}, v{t+1}, s[20:21] sc0 sc1
    s_waitcnt vmcnt(0)
    v_readfirstlane_b32 s36, v{t+2}
    s_mov_b64 exec, -1
    s_cmp_eq_u32 s36, s37
    s_cbranch_scc0 {tag}_arrived
    s_mov_b32 exec_hi, 0
    v_add_u32 v93, 1, v93
    global_store_dword v92, v93, s[22:23] sc1
    s_mov_b64 exec, -1
    {tag}_arrived:
    """)
def grid_wait(a, tag, t, o, slp=1, nmax=None):
    n = [len(range(k, AB_GRID, NSH)) for k in range(NSH)]
    cut = AB_GRID % NSH
    a(f"""
    s_mov_b32 s60, 0
    {tag}_poll_loop:
    global_load_dwordx4 v[{t}:{t+3}], v94, s[22:23] sc1
    s_waitcnt vmcnt(0)
    v_cmp_eq_u32 vcc, v{t}, v{o}
    v_cmp_eq_u32 s[58:59], v{t+1}, v{o+1}
    s_or_b64 vcc, vcc, s[58:59]
    v_cmp_eq_u32 s[58:59], v{t+2}, v{o+2}
    s_or_b64 vcc, vcc, s[58:59]
    v_cmp_eq_u32 s[58:59], v{t+3}, v{o+3}
    s_or_b64 vcc, vcc, s[58:59]
    s_cbranch_scc0 {tag}_go
    s_add_u32 s60, s60, 1
    s_and_b32 s61, s60, 31
    s_cbranch_scc1 {tag}_next
    v_and_b32 v{t}, {NSH-1}, v1
    v_lshlrev_b32 v{t+1}, 6, v{t}
    global_load_dword v{t+2}, v{t+1}, s[20:21] sc1
    v_mov_b32 v{t+3}, {n[-1]}
    v_cmp_gt_u32 vcc, {cut}, v{t}
    s_waitcnt vmcnt(0)
    s_nop 0
    v_addc_co_u32 v{t+3}, vcc, 0, v{t+3}, vcc
    v_cmp_ne_u32 vcc, v{t+2}, v{t+3}
    s_cbranch_vccz {tag}_go
    {tag}_next:
    s_sleep {slp}
    s_cmp_lt_u32 s60, {nmax or SPIN_MAX}
    s_cbranch_scc1 {tag}_poll_loop
    {tag}_go:
    """)

def gen_pwaves(a):
    a(f"""
    pwaves:
    s_load_dwordx2 s[4:5], s[0:1], 0         ; x
    s_load_dwordx4 s[44:47], s[0:1], 112     ; c, w_mod
    s_load_dwordx4 s[20:23], s[0:1], 136
    s_load_dwordx4 s[8:11], s[0:1], 80       ; w1, b1
    s_load_dwordx2 s[48:49], s[0:1], 96
    s_setprio {PPRIO}
    v_subrev_u32 v0, 256, v0
    s_sub_u32 s26, s26, 4
    v_lshrrev_b32 v3, 6, v0
    v_lshrrev_b32 v8, 4, v1                  ; row (0..3)
    v_and_b32 v9, 15, v1                     ; 16 B chunk
    v_lshlrev_b32 v4, 10, v8
    v_lshl_add_u32 v4, v9, 4, v4
    v_lshl_add_u32 v4, v3, 8, v4
    s_lshl_b32 s31, s2, 13
    v_add_u32 v4, s31, v4
    v_add_u32 v44, 4096, v4
    s_min_u32 s32, s7, 23
    s_mul_i32 s33, s6, 24
    s_add_u32 s33, s33, s32
    v_lshrrev_b32 v5, 1, v0                  ; rg
    v_and_b32 v6, 1, v0                      ; cc
    v_mul_u32_u24 v7, {4*6144}, v5
    v_lshl_add_u32 v7, v6, 4, v7
    s_lshl_b32 s34, s33, 5
    v_add_u32 v7, s34, v7
    v_lshlrev_b32 v2, 3, v5                  ; c offset
    """)
    go_addr(a)
    a("s_waitcnt lgkmcnt(0)")
    if SET == 1: a.stamp(0)
    a(f"""
    global_load_dwordx4 v[8:11], v4, s[4:5]
    global_load_dwordx4 v[12:15], v44, s[4:5]
    global_load_dwordx2 v[16:17], v2, s[44:45]
    """)
    for i in range(4):
        if i: a("v_add_u32 v7, 6144, v7")
        a(f"global_load_dwordx4 v[{20+4*i}:{23+4*i}], v7, s[46:47]")
    a(f"""
    v_mov_b32 v38, 0x3f803f80
    v_lshrrev_b32 v40, 4, v1
    v_mul_u32_u24 v39, 320, v40
    v_and_b32 v41, 15, v1
    v_lshl_add_u32 v39, v41, 4, v39
    s_mul_i32 s34, s26, 2560
    s_add_u32 s34, s34, {LNT}
    v_add_u32 v39, s34, v39
    v_lshrrev_b32 v47, 2, v41
    v_mul_u32_u24 v47, 320, v47
    v_and_b32 v46, 3, v41
    v_lshl_add_u32 v47, v46, 3, v47
    v_lshl_add_u32 v47, v40, 5, v47
    v_add_u32 v47, s34, v47
    v_lshl_add_u32 v46, v3, 7, v1
    v_lshlrev_b32 v46, 4, v46
    s_mul_i32 s34, s2, {XBS}
    s_add_u32 s34, s34, {WS_XB}
    v_add_u32 v46, s34, v46
    v_lshlrev_b32 v45, 3, v40
    s_lshl_b32 s34, s26, 6
    s_add_u32 s34, s34, {STP}
    v_add_u32 v45, s34, v45
    """)
    for r in range(2):
        b = 8 + 4 * r
        a(f"s_waitcnt vmcnt({6 - r})")
        a(f"ds_write_b128 v39, v[{b}:{b+3}] offset:{1280*r}")
        a(f"v_dot2_f32_bf16 v{72+2*r}, v{b}, v38, 0")
        a(f"v_dot2_f32_bf16 v{73+2*r}, v{b}, v{b}, 0")
        for k in range(1, 4):
            a(f"v_dot2_f32_bf16 v{72+2*r}, v{b+k}, v38, v{72+2*r}")
            a(f"v_dot2_f32_bf16 v{73+2*r}, v{b+k}, v{b+k}, v{73+2*r}")
    a("""
    s_waitcnt lgkmcnt(0)
    ds_read_b64_tr_b16 v[48:49], v47
    ds_read_b64_tr_b16 v[50:51], v47 offset:1280
    ds_read_b64_tr_b16 v[52:53], v47 offset:128
    ds_read_b64_tr_b16 v[54:55], v47 offset:1408
    """)
    if SET == 1: a.stamp(1)
    a("s_waitcnt vmcnt(4)")
    for i in range(4):
        src = 16 + i // 2
        a(f"v_lshlrev_b32 v{56+i}, 16, v{src}" if i % 2 == 0 else f"v_and_b32 v{56+i}, 0xffff0000, v{src}")
    for i in range(4): a(f"v_mul_f32 v{60+i}, {fx(-1.4426950408889634)}, v{56+i}")
    for i in range(4): a(f"v_exp_f32 v{60+i}, v{60+i}")
    dpps = ["row_shr:1", "row_shr:2", "row_shr:4", "row_shr:8", "row_bcast:15 row_mask:0xa", "row_bcast:31 row_mask:0xc"]
    def dpp4(d):
        m = "" if "row_mask" in d else " row_mask:0xf"
        for r in range(72, 76): a(f"v_add_f32_dpp v{r}, v{r}, v{r} {d}{m} bank_mask:0xf")
    dpp4(dpps[0])
    for i in range(4): a(f"v_add_f32 v{60+i}, 1.0, v{60+i}")
    dpp4(dpps[1])
    for i in range(4): a(f"v_rcp_f32 v{60+i}, v{60+i}")
    dpp4(dpps[2])
    for i in range(4): a(f"v_mul_f32 v{56+i}, v{56+i}, v{60+i}")
    dpp4(dpps[3])
    for i in range(4):
        a(f"v_cvt_pk_bf16_f32 v{60+i}, v{56+i}, 0")
        a(f"v_cvt_pk_bf16_f32 v{76+i}, 0, v{56+i}")
    a(f"""
    s_waitcnt lgkmcnt(0)
    global_store_dwordx4 v46, v[48:51], s[22:23] sc1
    global_store_dwordx4 v46, v[52:55], s[22:23] offset:1024 sc1
    v_cmp_eq_u32 vcc, 15, v41
    s_and_saveexec_b64 s[54:55], vcc
    ds_write_b64 v45, v[72:73]
    ds_write_b64 v45, v[74:75] offset:32
    s_mov_b64 exec, s[54:55]
    """)
    for i in range(4):
        a(f"s_waitcnt vmcnt({5 - i})")
        for m in range(4):
            c0 = "0" if i == 0 else f"v{64+2*m}"; c1 = "0" if i == 0 else f"v{65+2*m}"
            a(f"v_dot2_f32_bf16 v{64+2*m}, v{20+4*i+m}, v{60+i}, {c0}")
            a(f"v_dot2_f32_bf16 v{65+2*m}, v{20+4*i+m}, v{76+i}, {c1}")
    a("s_nop 2")
    for d in ["row_shr:2", "row_shr:4", "row_shr:8"]:
        for r in range(64, 72): a(f"v_add_f32_dpp v{r}, v{r}, v{r} {d} row_mask:0xf bank_mask:0xf")
    a(f"""
    v_lshrrev_b32 v4, 4, v0
    v_mul_u32_u24 v4, 80, v4
    v_lshl_add_u32 v4, v6, 5, v4
    v_add_u32 v4, {MODS}, v4
    v_and_b32 v5, 15, v0
    v_cmp_lt_u32 vcc, 13, v5
    v_lshlrev_b32 v5, 2, v5
    v_add_u32 v5, {MODS}, v5
    s_and_saveexec_b64 s[54:55], vcc
    ds_write_b128 v4, v[64:67]
    ds_write_b128 v4, v[68:71] offset:16
    s_mov_b64 exec, s[54:55]
    s_waitcnt lgkmcnt(0)
    """)
    if SET == 1: a.stamp(2)
    a("""
    s_cmp_eq_u32 s26, 0
    s_cbranch_scc0 p_nogo
    """)
    go_load(a, 96)
    a("p_nogo:")
    lds_arrive(a, 0, 36); lds_wait(a, 0, 4, 36, "p1")
    for i in range(16): a(f"ds_read_b32 v{20+i}, v5 offset:{80*i}")
    a(f"""
    v_and_b32 v58, 7, v0
    v_lshlrev_b32 v59, 3, v58
    v_add_u32 v59, {STP}, v59
    ds_read_b64 v[48:49], v59
    ds_read_b64 v[50:51], v59 offset:64
    ds_read_b64 v[52:53], v59 offset:128
    ds_read_b64 v[54:55], v59 offset:192
    v_lshlrev_b32 v58, 2, v58
    s_lshl_b32 s34, s2, 5
    s_add_u32 s34, s34, {WS_ST1}
    v_add_u32 v58, s34, v58
    s_waitcnt lgkmcnt(0)
    v_add_f32 v48, v48, v50
    v_add_f32 v49, v49, v51
    v_add_f32 v52, v52, v54
    v_add_f32 v53, v53, v55
    v_add_f32 v56, v48, v52
    v_add_f32 v57, v49, v53
    v_mul_f32 v56, {fx(1.0/512)}, v56        ; mean
    v_mul_f32 v57, {fx(1.0/512)}, v57
    v_fma_f32 v57, -v56, v56, v57
    v_max_f32 v57, 0, v57
    v_add_f32 v57, {fx(1e-5)}, v57
    v_rsq_f32 v57, v57
    v_cmp_gt_u32 vcc, 8, v0
    v_mul_f32 v56, -v56, v57
    v_cvt_pk_bf16_f32 v56, v57, v56          ; (r, -mean*r)
    s_and_saveexec_b64 s[54:55], vcc
    s_cbranch_execz p_nostat
    global_store_dword v58, v56, s[22:23] sc1
    p_nostat:
    s_mov_b64 exec, s[54:55]
    """)
    for st in (1, 2, 4, 8):
        for i in range(0, 16, 2 * st): a(f"v_add_f32 v{20+i}, v{20+i}, v{20+i+st}")
    a(f"""
    v_cvt_pk_bf16_f32 v20, v20, v20
    v_lshlrev_b32 v20, 16, v20
    s_lshl_b32 s34, s33, 7
    s_add_u32 s34, s34, {WS_MODP}
    v_lshlrev_b32 v4, 2, v0
    v_add_u32 v4, s34, v4
    s_cmp_lt_u32 s7, 24
    s_cselect_b32 s34, 16, 0
    v_cmp_gt_u32 vcc, s34, v0
    s_and_saveexec_b64 s[54:55], vcc
    s_cbranch_execz p_nomod
    global_store_dword v4, v20, s[22:23] sc1
    p_nomod:
    s_mov_b64 exec, s[54:55]
    """)
    a("s_waitcnt vmcnt(0)")
    lds_arrive(a, 1, 36)
    if SET == 1: a.stamp(3)
    a(f"""
    """)
    h_addr(a, 256)
    a("s_cmp_eq_u32 s26, 0\ns_cbranch_scc0 p_wait_release")
    lds_wait(a, 1, 4, 36, "p2")
    if os.environ.get("FORCE_RACE"):
        a("s_cmp_eq_u32 s2, 5\ns_cbranch_scc0 fr_skip\nv_add_u32 v96, 1, v96\nfr_skip:")
    grid_arrive(a, "p", 36); grid_wait(a, "p", 40, 96)
    lds_arrive(a, 4, 36)
    a("s_setprio 0\ns_branch p_released\np_wait_release:\ns_setprio 0")
    lds_wait(a, 4, 1, 36, "p3", 1)
    a("p_released:")
    if SET == 1: a.stamp(4)
    h_body(a)
    if SET == 1: a.stamp(5)
    a("s_barrier")
    a(f"""
    s_lshr_b32 s47, s2, 3
    s_mul_i32 s47, s47, 44032
    v_lshlrev_b32 v8, 6, v0
    v_add_u32 v8, s47, v8
    global_load_dword v9, v8, s[48:49]
    v_add_u32 v8, 16384, v8
    global_load_dword v10, v8, s[48:49]
    s_add_u32 s47, s47, {32768 + 175*64}
    v_add_u32 v8, 16384, v8
    v_min_u32 v8, s47, v8
    global_load_dword v11, v8, s[48:49]
    s_endpgm
    """)

def gen_w1p(a):
    IMG = 0
    RED = 16384
    a(f"""
    w1p:
    s_load_dwordx4 s[8:11], s[0:1], 80       ; w1, b1
    s_load_dwordx4 s[20:23], s[0:1], 136     ; debug, ws
    s_sub_u32 s3, s2, {NMAIN}                ; half block hb : fblk = hb>>1, mhalf = hb&1
    v_and_b32 v1, 63, v0
    v_lshrrev_b32 v2, 6, v0
    v_lshrrev_b32 v3, 1, v0                  ; rg
    v_and_b32 v4, 1, v0                      ; cc
    v_readfirstlane_b32 s26, v2
    v_mul_u32_u24 v5, {4*2752}, v3
    v_lshl_add_u32 v5, v4, 4, v5
    s_lshl_b32 s9, s3, 5
    s_waitcnt lgkmcnt(0)
    """.replace("s_lshl_b32 s9, s3, 5\n", ""))
    a(f"""
    s_lshl_b32 s12, s3, 5
    v_add_u32 v5, s12, v5
    """)
    go_addr(a)
    a("s_cmp_eq_u32 s26, 0\ns_cbranch_scc0 w_noarr")
    go_load(a, 100)
    a("s_waitcnt vmcnt(0)")
    grid_arrive(a, "w", 96)
    a("w_noarr:")
    a(f"""
    v_and_b32 v7, 15, v0
    v_lshlrev_b32 v7, 1, v7
    v_add_u32 v55, s12, v7                   ; b1 address
    v_mov_b32 v57, 0x3f803f80
    v_lshrrev_b32 v58, 2, v3
    v_lshlrev_b32 v58, 9, v58
    v_bfe_u32 v59, v3, 1, 1
    v_lshl_add_u32 v58, v59, 8, v58
    v_lshl_add_u32 v58, v4, 7, v58
    v_and_b32 v59, 1, v3
    v_lshl_add_u32 v58, v59, 3, v58
    v_lshrrev_b32 v6, 2, v3
    v_lshlrev_b32 v6, 7, v6
    v_and_b32 v7, 3, v3
    v_lshl_add_u32 v6, v7, 4, v6
    v_add_u32 v6, {WS_MODP + 96*128}, v6
    v_add_u32 v7, 4096, v6
    """)
    EARLY = os.environ.get("W1EARLY", "1") == "1"
    def w1loads():
        for i in range(4):
            if i: a("v_add_u32 v5, 2752, v5")
            a(f"global_load_dwordx4 v[{64+4*i}:{67+4*i}], v5, s[8:9]")
        a("global_load_ushort v56, v55, s[10:11]")
    def unpack():
        for i in range(4):
            for e in range(8):
                src = 64 + 4 * i + e // 2
                a(f"v_lshlrev_b32 v{24+8*i+e}, 16, v{src}" if e % 2 == 0 else f"v_and_b32 v{24+8*i+e}, 0xffff0000, v{src}")
    NPRE = int(os.environ.get("WPRE", 2))
    if EARLY:
        if NPRE:
            a("s_cmp_eq_u32 s26, 0\ns_cbranch_scc0 w_pre")
            grid_wait(a, "w0", 96, 100, int(os.environ.get("WSLP", 8)), NPRE)
            a("w_pre:\ns_barrier")
        w1loads()
        a("s_waitcnt vmcnt(1)")
        unpack()
    a("s_cmp_eq_u32 s26, 0\ns_cbranch_scc0 w_released")
    grid_wait(a, "w", 96, 100, int(os.environ.get("WSLP2", 1)))
    a("w_released:\ns_barrier")
    if int(os.environ.get("WPRIO", 0)): a(f"s_setprio {os.environ['WPRIO']}")
    if not EARLY: w1loads()
    a(f"""
    global_load_dwordx4 v[8:11], v6, s[22:23] sc1        ; sb
    global_load_dwordx4 v[12:15], v7, s[22:23] sc1       ; cb
    """)
    if not EARLY:
        a("s_waitcnt vmcnt(3)")
        unpack()
    a("s_waitcnt vmcnt(0)")
    for i in range(4): a(f"v_add_f32 v{12+i}, 1.0, v{12+i}")
    a("v_cvt_pk_bf16_f32 v16, v12, v13\nv_cvt_pk_bf16_f32 v17, v14, v15")
    a("v_lshlrev_b32 v12, 16, v16\nv_and_b32 v13, 0xffff0000, v16\nv_lshlrev_b32 v14, 16, v17\nv_and_b32 v15, 0xffff0000, v17")
    for e in range(8): a(f"v_mul_f32 v{72+e}, v8, v{24+e}")
    for i in range(1, 4):
        for e in range(8): a(f"v_fmac_f32 v{72+e}, v{8+i}, v{24+8*i+e}")
    for i in range(4):
        for e in range(8): a(f"v_mul_f32 v{24+8*i+e}, v{12+i}, v{24+8*i+e}")
    for e in range(8):
        a(f"v_cvt_pk_bf16_f32 v{80+2*e}, v{24+e}, v{32+e}")
        a(f"v_cvt_pk_bf16_f32 v{81+2*e}, v{40+e}, v{48+e}")
    for e in range(8): a(f"ds_write_b64 v58, v[{80+2*e}:{81+2*e}] offset:{IMG + 16*e}")
    for e in range(8): a(f"v_dot2_f32_bf16 v{64+e}, v{80+2*e}, v57, 0")
    for e in range(8): a(f"v_dot2_f32_bf16 v{64+e}, v{81+2*e}, v57, v{64+e}")
    a("s_nop 2")
    for d in ["row_shr:2", "row_shr:4", "row_shr:8"]:
        for r in range(64, 80): a(f"v_add_f32_dpp v{r}, v{r}, v{r} {d} row_mask:0xf bank_mask:0xf")
    a(f"""
    v_lshrrev_b32 v5, 4, v0                  ; part
    v_mul_u32_u24 v5, 144, v5
    v_lshl_add_u32 v5, v4, 5, v5
    v_and_b32 v6, 15, v0
    v_cmp_lt_u32 vcc, 13, v6
    s_and_saveexec_b64 s[54:55], vcc
    ds_write_b128 v5, v[64:67] offset:{RED}
    ds_write_b128 v5, v[68:71] offset:{RED + 16}
    ds_write_b128 v5, v[72:75] offset:{RED + 64}
    ds_write_b128 v5, v[76:79] offset:{RED + 80}
    s_mov_b64 exec, s[54:55]
    v_lshlrev_b32 v7, 4, v0
    s_lshr_b32 s13, s3, 1
    s_lshl_b32 s13, s13, 15
    s_and_b32 s14, s3, 1
    s_lshl_b32 s14, s14, 8
    s_add_u32 s13, s13, s14
    s_add_u32 s13, s13, {WS_W1F}
    v_lshrrev_b32 v8, 4, v0
    v_lshlrev_b32 v8, 9, v8                  ; g*512 + s*1024 == (2s+g)*512
    v_lshl_add_u32 v8, v6, 4, v8
    v_add_u32 v8, s13, v8
    v_and_b32 v9, 31, v0
    v_lshlrev_b32 v9, 2, v9
    s_waitcnt lgkmcnt(0)
    s_barrier
    """)
    for k in range(4): a(f"ds_read_b128 v[{24+4*k}:{27+4*k}], v7 offset:{IMG + 4096*k}")
    a(f"""
    v_lshlrev_b32 v9, 2, v6
    v_bfe_u32 v10, v0, 4, 1
    v_lshl_add_u32 v9, v10, 6, v9            ; (t&15)*4 + ((t>>4)&1)*64
    """)
    for p in range(16): a(f"ds_read_b32 v{40+p}, v9 offset:{RED + 144*p}")
    for k in range(4):
        a(f"s_waitcnt lgkmcnt({15 if k == 0 else 15})" if False else "")
    a("s_waitcnt lgkmcnt(15)")
    a("s_waitcnt lgkmcnt(0)")
    for k in range(4):
        a(f"global_store_dwordx4 v8, v[{24+4*k}:{27+4*k}], s[22:23]{W1SC}")
        if k < 3: a(f"v_add_u32 v8, {16*512}, v8")
    for st in (1, 2, 4, 8):
        for p in range(0, 16, 2 * st): a(f"v_add_f32 v{40+p}, v{40+p}, v{40+p+st}")
    a(f"""
    v_lshlrev_b32 v56, 16, v56
    v_cmp_eq_u32 vcc, 1, v10
    s_nop 1
    v_cndmask_b32 v56, 0, v56, vcc
    v_add_f32 v40, v40, v56
    s_lshl_b32 s13, s3, 6
    v_lshl_add_u32 v11, v6, 2, s13
    v_mov_b32 v12, {WS_CS}
    v_mov_b32 v13, {WS_B1P}
    v_cndmask_b32 v12, v12, v13, vcc
    v_add_u32 v11, v11, v12
    v_cmp_gt_u32 vcc, 32, v0
    s_and_saveexec_b64 s[54:55], vcc
    s_cbranch_execz w1p_end
    global_store_dword v11, v40, s[22:23]{SC}
    w1p_end:
    s_endpgm
    """)

def gen_AB(a):
    a(f"""
    s_cmp_ge_u32 s2, {NMAIN}
    s_cbranch_scc1 ab_other
    v_lshrrev_b32 v3, 6, v0
    v_and_b32 v1, 63, v0
    s_and_b32 s6, s2, 7
    s_lshr_b32 s7, s2, 3
    v_readfirstlane_b32 s26, v3              ; wave
    v_lshlrev_b32 v4, 2, v0
    v_add_u32 v4, {CNT}, v4
    v_mov_b32 v5, 0
    v_cmp_gt_u32 vcc, 8, v0
    s_and_saveexec_b64 s[54:55], vcc
    ds_write_b32 v4, v5
    s_mov_b64 exec, s[54:55]
    s_lshl_b32 s29, s6, 6
    s_lshl_b32 s30, s7, 1
    s_add_u32 s29, s29, s30
    s_waitcnt lgkmcnt(0)
    s_barrier
    s_cmp_lt_u32 s26, 4
    s_cbranch_scc1 kwaves
    """)
    gen_pwaves(a)
    gen_kwaves(a)
    a(f"""
    ab_other:
    s_cmp_lt_u32 s2, {AB_GRID}
    s_cbranch_scc0 ab_end
    v_cmp_gt_u32 vcc, 256, v0
    s_cbranch_vccnz w1p
    ab_end:
    s_endpgm
    """)
    gen_w1p(a)
    a.l.append(idx_table())

if __name__ == "__main__":
    ks = [("convab_kernel", gen_AB, 128, AB_GRID, 512, AB_LDS),
          ("gemm1_kernel", gen_C, 176, C_GRID, 512, C_LDS),
          ("gemm2_kernel", gen_D, 128, D_GRID, 512, D_LDS)]
    s = build(ks)
    path = sys.argv[1] if len(sys.argv) > 1 else "out.s"
    open(path, "w").write(s)
    print("wrote", path, len(s))
```

```python
from g3 import *
import g3

HIDSC = os.environ.get("HIDSC", " sc1")
OUTSC = os.environ.get("OUTSC", "")
NCONV, NW1 = 256, 43
B_GRID = NCONV + NW1
KCP = 4160
KCHL = 4 * KCP
H_OFF = 2 * KCHL
HCH = 4608
RED_OFF = H_OFF + 2 * HCH
B_LDS = RED_OFF + 16384

def gen_conv(a):
    VA, VB, VY = 64, 96, 128
    a(f"""
    conv:
    s_load_dwordx2 s[20:21], s[0:1], 144
    s_load_dwordx2 s[48:49], s[0:1], 96
    v_lshrrev_b32 v3, 6, v0
    v_and_b32 v1, 63, v0
    v_lshlrev_b32 v5, 4, v0                  ; tid*16
    v_readfirstlane_b32 s26, v3              ; wave
    s_lshl_b32 s29, s2, 1                    ; d0
    s_mul_i32 s32, s29, {KCH}
    s_add_u32 s32, s32, {WS_KE}
    s_add_u32 s33, s32, {KCH}
    s_lshl_b32 s36, s29, 12
    s_add_u32 s36, s36, {WS_XT}
    s_add_u32 s37, s36, 4096
    v_lshlrev_b32 v6, 5, v0
    s_mov_b32 s38, {WS_ST1}
    s_lshr_b32 s27, s26, 1                   ; ch
    s_and_b32 s28, s26, 1                    ; hf
    s_add_u32 s30, s29, s27                  ; d
    s_waitcnt lgkmcnt(0)
    """)
    srd(a, 8, 20, WS_SIZE)
    a.stamp(0)
    a(f"""
    buffer_load_dwordx4 v[8:11], v5, s[8:11], s36 offen          ; x ch0
    buffer_load_dwordx4 v[12:15], v5, s[8:11], s37 offen         ; x ch1
    buffer_load_dwordx4 v[16:19], v6, s[8:11], s38 offen         ; stats
    buffer_load_dwordx4 v[20:23], v6, s[8:11], s38 offen offset:16
    buffer_load_dwordx4 v[24:27], v5, s[8:11], s32 offen         ; K ch0
    buffer_load_dwordx2 v[28:29], v5, s[8:11], s32 offen offset:16
    buffer_load_dwordx4 v[32:35], v5, s[8:11], s33 offen         ; K ch1
    buffer_load_dwordx2 v[36:37], v5, s[8:11], s33 offen offset:16
    s_lshl_b32 s31, s29, 2
    s_add_u32 s4, s20, s31
    s_addc_u32 s5, s21, 0
    s_load_dwordx2 s[12:13], s[4:5], {WS_MOD}            ; sa
    s_load_dwordx2 s[14:15], s[4:5], {WS_MOD + 2048}     ; ca
    s_load_dwordx2 s[16:17], s[4:5], {WS_MOD + 4096}     ; ga
    """)
    a.stamp(1)
    a(f"""
    v_and_b32 v7, 15, v1                     ; j / i
    v_lshrrev_b32 v2, 4, v1                  ; G / g
    v_lshlrev_b32 v4, 5, v7
    v_lshl_add_u32 v4, v2, 3, v4
    s_lshl_b32 s39, s30, 12
    s_lshl_b32 s40, s28, 11
    s_add_u32 s39, s39, s40
    s_add_u32 s41, s39, {WS_XT}
    s_add_u32 s42, s39, {WS_X2T}
    v_mov_b32 v56, 0
    v_mov_b32 v57, 0
    v_mov_b32 v58, 0
    v_mov_b32 v59, 0
    v_lshrrev_b32 v60, 1, v0
    v_mul_u32_u24 v60, {KCP}, v60
    v_and_b32 v61, 1, v0
    v_lshl_add_u32 v60, v61, 4, v60
    v_add_u32 v60, 4096, v60
    v_bfe_u32 v61, v0, 5, 1
    v_mul_u32_u24 v61, {HCH}, v61
    v_and_b32 v62, 31, v0
    v_lshl_add_u32 v61, v62, 4, v61
    v_add_u32 v61, {H_OFF}, v61
    v_cmp_gt_u32 vcc, 16, v0
    s_cmp_eq_u32 s26, 1
    s_cbranch_scc1 conv_padh
    s_cmp_eq_u32 s26, 0
    s_cbranch_scc0 conv_pad_done
    s_and_saveexec_b64 s[44:45], vcc
    ds_write_b128 v60, v[56:59]
    s_mov_b64 exec, s[44:45]
    s_branch conv_pad_done
    conv_padh:
    ds_write_b128 v61, v[56:59]
    conv_pad_done:
    v_sub_u32 v60, 3, v7
    v_and_b32 v60, 3, v60                    ; c
    v_mul_u32_u24 v61, {KCP - 2}, v60
    v_lshlrev_b32 v62, 1, v7
    v_sub_u32 v61, v61, v62
    v_lshl_add_u32 v61, v2, 4, v61
    s_mul_i32 s43, s27, {KCHL}
    s_lshl_b32 s44, s28, 8
    s_sub_u32 s43, s43, s44
    s_add_u32 s43, s43, {2*(2031 - 32*59)}
    v_add_u32 v40, s43, v61                  ; v40 = A base
    v_lshlrev_b32 v41, 5, v7
    v_lshl_add_u32 v41, v2, 4, v41
    s_mul_i32 s43, s27, {HCH}
    s_sub_u32 s43, s43, s44
    s_add_u32 s43, s43, {H_OFF + 2*(240 - 96)}
    v_add_u32 v41, s43, v41                  ; v41 = B base
    v_add_u32 v42, {H_OFF + 512}, v5
    """)
    for t in range(8):
        for r in range(4): a(f"v_mov_b32 v{VY+4*t+r}, 0")
    a(f"""
    s_waitcnt lgkmcnt(0)
    v_add_f32 v44, 1.0, s14
    v_add_f32 v45, 1.0, s15
    v_cvt_pk_bf16_f32 v44, v44, v45
    v_mov_b32 v46, s12
    v_mov_b32 v47, s13
    v_and_b32 v45, 0xffff0000, v44
    v_lshlrev_b32 v44, 16, v44
    s_cmp_eq_u32 s27, 0
    s_cselect_b32 s46, s16, s17
    s_waitcnt vmcnt(4)
    """)
    a.stamp(2)
    for e in range(8):
        a(f"v_lshlrev_b32 v{64+e}, 16, v{16+e}")
        a(f"v_and_b32 v{72+e}, 0xffff0000, v{16+e}")
    for ch in range(2):
        src = 8 + 4 * ch; gam = 44 + ch; sa = 46 + ch
        for e in range(8):
            a(f"v_lshlrev_b32 v{80+e}, 16, v{src + e//2}" if e % 2 == 0 else f"v_and_b32 v{80+e}, 0xffff0000, v{src + e//2}")
        for e in range(8): a(f"v_fma_f32 v{80+e}, v{80+e}, v{64+e}, v{72+e}")
        for e in range(8): a(f"v_fma_f32 v{80+e}, v{80+e}, v{gam}, v{sa}")
        for p in range(4): a(f"v_cvt_pk_bf16_f32 v{src+p}, v{80+2*p}, v{81+2*p}")
        a(f"ds_write_b128 v42, v[{src}:{src+3}] offset:{ch*HCH}")
    for ch in range(2):
        D = 24 + 8 * ch
        a(f"s_waitcnt vmcnt({2 - 2*ch})")
        base = ch * KCHL
        a(f"ds_write_b128 v5, v[{D}:{D+3}] offset:{base}")
        for k in range(4): a(f"v_alignbit_b32 v{88+k}, v{D+k+1}, v{D+k}, 16")
        a(f"ds_write_b128 v5, v[88:91] offset:{base + KCP}")
        a(f"v_mov_b64 v[92:93], v[{D+2}:{D+3}]" if False else f"v_mov_b32 v92, v{D+1}")
        a(f"v_mov_b32 v93, v{D+2}")
        a(f"v_mov_b32 v94, v{D+3}")
        a(f"v_mov_b32 v95, v{D+4}")
        a(f"ds_write_b128 v5, v[92:95] offset:{base + 2*KCP}")
        a(f"v_mov_b32 v48, v89")
        a(f"v_mov_b32 v49, v90")
        a(f"v_mov_b32 v50, v91")
        a(f"v_alignbit_b32 v51, v{D+5}, v{D+4}, 16")
        a(f"ds_write_b128 v5, v[48:51] offset:{base + 3*KCP}")
    a("s_waitcnt lgkmcnt(0)")
    a.stamp(3)
    a("s_barrier")
    a.stamp(4)
    T = LdsTracker(a)
    def ldA(p, r):
        off = 512 * (7 - p) + 64 * (3 - r)
        T.issue(f"ds_read_b64 v[{VA+4*p}:{VA+4*p+1}], v40 offset:{off}", [f"A{p}"])
        T.issue(f"ds_read_b64 v[{VA+4*p+2}:{VA+4*p+3}], v40 offset:{off+8}", [f"A{p}"])
    def ldB(k, r):
        off = 512 * k + 64 * (3 - r)
        T.issue(f"ds_read_b128 v[{VB+4*k}:{VB+4*k+3}], v41 offset:{off}", [f"B{k}"])
    for p in range(8):
        ldB(7 - p, 0); ldA(p, 0)
    for i in range(4):
        a(f"buffer_load_dwordx2 v[{48+2*i}:{49+2*i}], v4, s[8:11], s41 offen offset:{512*i}")
    a(f"""
    s_lshr_b32 s47, s2, 3
    s_mul_i32 s47, s47, 44032
    v_lshlrev_b32 v8, 6, v0                  ; tid*64
    v_add_u32 v8, s47, v8
    global_load_dword v9, v8, s[48:49]
    v_add_u32 v8, 16384, v8
    global_load_dword v10, v8, s[48:49]
    s_add_u32 s47, s47, {32768 + 175*64}
    v_add_u32 v8, 16384, v8
    v_min_u32 v8, s47, v8
    global_load_dword v11, v8, s[48:49]
    """)
    for r in range(4):
        for p in range(8):
            for t in range(7, p - 1, -1):
                k = t - p
                T.need([f"A{p}", f"B{k}"])
                a(f"v_mfma_f32_16x16x32_bf16 v[{VY+4*t}:{VY+4*t+3}], v[{VA+4*p}:{VA+4*p+3}], v[{VB+4*k}:{VB+4*k+3}], v[{VY+4*t}:{VY+4*t+3}]")
                if t == 7 and r < 3: ldB(7 - p, r + 1)
            if r < 3: ldA(p, r + 1)
    a.stamp(5)
    a(f"""
    s_lshl_b32 s43, s26, 12
    s_add_u32 s43, s43, {RED_OFF}
    v_lshlrev_b32 v33, 4, v1
    v_add_u32 v34, s43, v33
    s_xor_b32 s43, s26, 1
    s_lshl_b32 s43, s43, 12
    s_add_u32 s43, s43, {RED_OFF}
    v_add_u32 v35, s43, v33
    s_cmp_eq_u32 s28, 1
    s_cbranch_scc1 conv_hf1
    """)
    def tail(hf):
        keep, send = 4 * hf, 4 * (1 - hf)
        a("s_nop 1")
        for i in range(4):
            t = send + i
            a(f"ds_write_b128 v34, v[{VY+4*t}:{VY+4*t+3}] offset:{1024*i}")
        a("s_waitcnt vmcnt(3)")
        for i in range(4):
            x0, x1 = 48 + 2 * i, 49 + 2 * i
            a(f"v_lshlrev_b32 v{80+4*i}, 16, v{x0}")
            a(f"v_and_b32 v{81+4*i}, 0xffff0000, v{x0}")
            a(f"v_lshlrev_b32 v{82+4*i}, 16, v{x1}")
            a(f"v_and_b32 v{83+4*i}, 0xffff0000, v{x1}")
        for i in range(4):
            for r in range(4): a(f"v_fma_f32 v{80+4*i+r}, s46, v{VY+4*(keep+i)+r}, v{80+4*i+r}")
        a("s_waitcnt lgkmcnt(0)")
        a("s_barrier")
        for i in range(4): a(f"ds_read_b128 v[{64+4*i}:{67+4*i}], v35 offset:{1024*i}")
        for i in range(4):
            a(f"s_waitcnt lgkmcnt({3-i})")
            for r in range(4): a(f"v_fma_f32 v{80+4*i+r}, s46, v{64+4*i+r}, v{80+4*i+r}")
            a(f"v_cvt_pk_bf16_f32 v{12+2*i}, v{80+4*i}, v{81+4*i}")
            a(f"v_cvt_pk_bf16_f32 v{13+2*i}, v{82+4*i}, v{83+4*i}")
            a(f"buffer_store_dwordx2 v[{12+2*i}:{13+2*i}], v4, s[8:11], s42 offen offset:{512*i}{SC}")
        a("s_endpgm")
    tail(0)
    a("conv_hf1:")
    tail(1)

def gen_w1p(a):
    FR = 0; RED1 = 32768; RED2 = RED1 + 9216; RED3 = RED2 + 9216
    a(f"""
    w1p:
    s_load_dwordx4 s[4:7], s[0:1], 80        ; w1, b1
    s_load_dwordx2 s[20:21], s[0:1], 144
    s_sub_u32 s3, s2, {NCONV}                ; fblk
    v_lshrrev_b32 v3, 2, v0                  ; rg
    v_and_b32 v4, 3, v0                      ; cc
    v_mul_u32_u24 v5, {8*2752}, v3
    v_lshl_add_u32 v5, v4, 4, v5
    s_lshl_b32 s9, s3, 6
    v_add_u32 v5, s9, v5
    v_lshlrev_b32 v6, 5, v3
    s_waitcnt lgkmcnt(0)
    s_add_u32 s12, s20, {WS_MOD + 3*2048}
    s_addc_u32 s13, s21, 0
    global_load_dwordx4 v[8:11], v6, s[12:13]              ; sb
    global_load_dwordx4 v[12:15], v6, s[12:13] offset:16
    global_load_dwordx4 v[16:19], v6, s[12:13] offset:2048 ; cb
    global_load_dwordx4 v[20:23], v6, s[12:13] offset:2064
    """)
    for i in range(8):
        if i: a("v_add_u32 v5, 2752, v5")
        a(f"global_load_dwordx4 v[{24+4*i}:{27+4*i}], v5, s[4:5]")
    a(f"""
    v_and_b32 v7, 31, v0
    v_lshlrev_b32 v7, 1, v7
    s_lshl_b32 s9, s3, 6
    v_add_u32 v7, s9, v7
    global_load_ushort v56, v7, s[6:7]
    v_mov_b32 v57, 0x3f803f80
    s_waitcnt vmcnt(9)
    """)
    for i in range(8): a(f"v_add_f32 v{16+i}, 1.0, v{16+i}")
    for i in range(4): a(f"v_cvt_pk_bf16_f32 v{58+i}, v{16+2*i}, v{17+2*i}")
    for i in range(8):
        if i % 2 == 0: a(f"v_lshlrev_b32 v{16+i}, 16, v{58+i//2}")
        else: a(f"v_and_b32 v{16+i}, 0xffff0000, v{58+i//2}")
    for e in range(16): a(f"v_mov_b32 v{96+e}, 0")
    for u in range(4):
        a(f"s_waitcnt vmcnt({1 + 6 - 2*u})")
        for h in range(2):
            i = 2 * u + h
            for e in range(8):
                src = 24 + 4 * i + e // 2
                if e % 2 == 0: a(f"v_lshlrev_b32 v{112+8*h+e}, 16, v{src}")
                else: a(f"v_and_b32 v{112+8*h+e}, 0xffff0000, v{src}")
            for e in range(8): a(f"v_fmac_f32 v{104+e}, v{8+i}, v{112+8*h+e}")
            for e in range(8): a(f"v_mul_f32 v{112+8*h+e}, v{16+i}, v{112+8*h+e}")
        for e in range(8): a(f"v_cvt_pk_bf16_f32 v{64+4*e+u}, v{112+e}, v{120+e}")
        for e in range(8): a(f"v_dot2_f32_bf16 v{96+e}, v{64+4*e+u}, v57, v{96+e}")
    a(f"""
    s_waitcnt vmcnt(0)
    s_waitcnt vmcnt(0)
    v_lshrrev_b32 v5, 1, v3
    v_lshlrev_b32 v5, 10, v5
    v_and_b32 v6, 1, v3
    v_lshl_add_u32 v5, v6, 9, v5
    v_lshl_add_u32 v5, v4, 7, v5
    v_lshl_add_u32 v6, v6, 2, v4
    """)
    for e in range(8):
        a(f"v_xor_b32 v7, {e}, v6")
        a(f"v_lshl_add_u32 v7, v7, 4, v5")
        a(f"ds_write_b128 v7, v[{64+4*e}:{67+4*e}] offset:{FR}")
    a(f"""
    v_mul_u32_u24 v5, 144, v3
    v_lshl_add_u32 v5, v4, 5, v5
    ds_write_b128 v5, v[96:99] offset:{RED1}
    ds_write_b128 v5, v[100:103] offset:{RED1+16}
    ds_write_b128 v5, v[104:107] offset:{RED2}
    ds_write_b128 v5, v[108:111] offset:{RED2+16}
    v_and_b32 v1, 63, v0
    v_lshrrev_b32 v2, 6, v0                  ; wave
    v_lshrrev_b32 v6, 5, v1                  ; g
    v_bfe_u32 v7, v1, 3, 2                   ; cc
    v_and_b32 v8, 7, v1                      ; e
    v_lshl_add_u32 v9, v6, 2, v7             ; 4g+cc
    v_xor_b32 v8, v8, v9
    v_lshl_add_u32 v8, v7, 3, v8             ; slot
    v_lshlrev_b32 v8, 4, v8
    v_lshl_add_u32 v8, v6, 9, v8
    v_lshl_add_u32 v8, v2, 13, v8
    v_lshlrev_b32 v9, 4, v1
    v_lshl_add_u32 v9, v2, 13, v9
    s_lshl_b32 s9, s3, 15
    s_add_u32 s9, s9, {WS_W1F}
    v_add_u32 v9, s9, v9
    v_and_b32 v6, 31, v0
    v_lshrrev_b32 v7, 5, v0
    v_mul_u32_u24 v7, {8*144}, v7
    v_lshl_add_u32 v7, v6, 2, v7
    s_waitcnt lgkmcnt(0)
    s_barrier
    """)
    for s in range(8): a(f"ds_read_b128 v[{64+4*s}:{67+4*s}], v8 offset:{FR + 1024*s}")
    for i in range(8): a(f"ds_read_b32 v{16+i}, v7 offset:{RED1 + 144*i}")
    for s in range(8):
        a(f"s_waitcnt lgkmcnt({15-s})")
        a(f"global_store_dwordx4 v9, v[{64+4*s}:{67+4*s}], s[20:21] offset:{1024*(s%4)}{SC}")
        if s == 3: a("v_add_u32 v9, 4096, v9")
    for i in range(8): a(f"ds_read_b32 v{24+i}, v7 offset:{RED2 + 144*i}")
    a("s_waitcnt lgkmcnt(0)")
    for b in (16, 24):
        a(f"""
        v_add_f32 v{b}, v{b}, v{b+1}
        v_add_f32 v{b+2}, v{b+2}, v{b+3}
        v_add_f32 v{b+4}, v{b+4}, v{b+5}
        v_add_f32 v{b+6}, v{b+6}, v{b+7}
        v_add_f32 v{b}, v{b}, v{b+2}
        v_add_f32 v{b+4}, v{b+4}, v{b+6}
        v_add_f32 v{b}, v{b}, v{b+4}
        """)
    a(f"""
    v_lshlrev_b32 v5, 2, v0
    ds_write_b32 v5, v16 offset:{RED3}
    ds_write_b32 v5, v24 offset:{RED3+1024}
    s_waitcnt lgkmcnt(0)
    s_barrier
    v_cmp_gt_u32 vcc, 32, v0
    s_and_saveexec_b64 s[30:31], vcc
    s_cbranch_execz w1p_end
    """)
    for i in range(8): a(f"ds_read_b32 v{16+i}, v5 offset:{RED3 + 128*i}")
    for i in range(8): a(f"ds_read_b32 v{24+i}, v5 offset:{RED3 + 1024 + 128*i}")
    a("s_waitcnt lgkmcnt(0)")
    for b in (16, 24):
        a(f"""
        v_add_f32 v{b}, v{b}, v{b+1}
        v_add_f32 v{b+2}, v{b+2}, v{b+3}
        v_add_f32 v{b+4}, v{b+4}, v{b+5}
        v_add_f32 v{b+6}, v{b+6}, v{b+7}
        v_add_f32 v{b}, v{b}, v{b+2}
        v_add_f32 v{b+4}, v{b+4}, v{b+6}
        v_add_f32 v{b}, v{b}, v{b+4}
        """)
    a(f"""
    v_lshlrev_b32 v56, 16, v56
    v_add_f32 v24, v24, v56
    s_lshl_b32 s9, s3, 7
    s_add_u32 s10, s9, {WS_CS}
    v_add_u32 v6, s10, v5
    s_add_u32 s10, s9, {WS_B1P}
    v_add_u32 v7, s10, v5
    global_store_dword v6, v16, s[20:21]
    global_store_dword v7, v24, s[20:21]
    w1p_end:
    s_endpgm
    """)

def gen_B(a):
    a(f"""
    s_cmp_lt_u32 s2, {NCONV}
    s_cbranch_scc1 conv
    s_cmp_lt_u32 s2, {B_GRID}
    s_cbranch_scc1 w1p
    s_endpgm
    """)
    gen_conv(a); gen_w1p(a)

C_GRID = 256
C_SLOT = 28672
C_NS = 4
C_TAB = C_NS * C_SLOT
C_LDS = C_TAB + 768

def gen_C(a):
    ACC, AQ, AS, FB = 64, 112, 120, 128
    a(f"""
    s_and_b32 s6, s2, 7
    s_lshr_b32 s7, s2, 3                     ; j
    s_and_b32 s4, s6, 3
    s_lshl_b32 s4, s4, 2
    s_and_b32 s12, s7, 3
    s_add_u32 s4, s4, s12                    ; lt = 4(k&3) + (j&3)
    s_lshr_b32 s5, s6, 2
    s_lshl_b32 s5, s5, 3
    s_lshr_b32 s13, s7, 2
    s_add_u32 s5, s5, s13                    ; fg = 8(k>>2) + (j>>2)
    s_cmp_ge_u32 s2, {C_GRID}
    s_cbranch_scc1 c_end
    s_cmp_ge_u32 s5, 15
    s_cbranch_scc1 c_end
    s_load_dwordx2 s[20:21], s[0:1], 144
    s_lshl_b32 s12, s12, 1
    s_add_u32 s36, s12, s13
    s_and_b32 s36, s36, {((8 - 8 // int(os.environ.get("C_ROT", 1))) & 7)}
    v_lshrrev_b32 v3, 6, v0
    v_and_b32 v1, 63, v0
    v_lshlrev_b32 v4, 4, v1                  ; lane*16
    v_readfirstlane_b32 s26, v3              ; wave
    s_cmp_lt_u32 s26, 4
    s_cbranch_scc1 c_compute
    s_sub_u32 s26, s26, 4
    v_lshrrev_b32 v5, 4, v1
    v_lshlrev_b32 v6, 2, v5
    v_and_b32 v7, 15, v1
    v_xor_b32 v6, v6, v7
    v_lshlrev_b32 v6, 4, v6
    v_lshl_add_u32 v5, v5, 12, v6
    s_mul_i32 s6, s5, {3*32*1024}
    s_add_u32 s6, s6, {WS_W1F}
    s_mul_i32 s7, s26, 3
    """)
    for i in range(3):
        a(f"""
        s_add_u32 s12, s7, {i}
        s_lshr_b32 s13, s12, 2
        s_and_b32 s12, s12, 3
        s_lshl_b32 s13, s13, 15
        s_lshl_b32 s12, s12, 10
        s_add_u32 s12, s12, s13
        s_add_u32 s{30+i}, s12, s6
        """)
    a(f"""
    s_lshl_b32 s12, s26, 16
    s_lshl_b32 s13, s4, 8
    s_add_u32 s12, s12, s13
    s_add_u32 s33, s12, {WS_X2T}
    s_mul_i32 s34, s26, 3072
    s_lshl_b32 s35, s26, 12
    s_add_u32 s35, s35, 12288
    s_waitcnt lgkmcnt(0)
    """)
    srd(a, 8, 20, WS_SIZE)
    a.stamp(0)
    def dma(c):
        slot = (c % C_NS) * C_SLOT
        a(f"s_add_u32 s37, s36, {c}\ns_and_b32 s37, s37, 7\ns_lshl_b32 s38, s37, 18\ns_lshl_b32 s37, s37, 12\ns_add_u32 s38, s38, s33")
        for j in range(4):
            a(f"s_add_u32 m0, s35, {slot + 1024*j}")
            if j: a(f"s_add_u32 s38, s38, 16384")
            else: a("s_nop 0")
            a(f"buffer_load_dwordx4 v5, s[8:11], s38 offen lds")
        for i in range(3):
            a(f"s_add_u32 m0, s34, {slot + 1024*i}")
            a(f"s_add_u32 s12, s{30+i}, s37")
            a(f"buffer_load_dwordx4 v4, s[8:11], s12 offen lds")
    LA = int(os.environ.get("C_LA", 2))
    for c in range(LA): dma(c)
    for c in range(8):
        last = min(7, c + LA - 1)
        if c == 4: a.stamp(1)
        a(f"s_waitcnt vmcnt({7*(last - c) if not os.environ.get('C_NODMA') else 0})")
        if c == 4: a.stamp(2)
        a("s_barrier")
        if c in (0, 4): a.stamp(3 + c // 4)
        if c + LA <= 7 and not os.environ.get("C_NODMA"): dma(c + LA)
    a.stamp(5)
    a("s_endpgm")
    a(f"""
    c_compute:
    v_lshlrev_b32 v8, 2, v0
    s_mul_i32 s12, s5, 384
    s_add_u32 s13, s12, {WS_CS}
    s_add_u32 s12, s12, {WS_B1P}
    v_and_b32 v6, 15, v1
    v_lshrrev_b32 v7, 2, v6                  ; r
    v_and_b32 v6, 3, v6                      ; c
    v_lshrrev_b32 v9, 5, v1                  ; g
    v_lshl_add_u32 v12, v9, 3, v7
    v_lshlrev_b32 v12, 8, v12
    v_bfe_u32 v13, v1, 4, 1
    v_lshlrev_b32 v13, 1, v13
    v_lshl_add_u32 v13, v3, 2, v13
    v_lshrrev_b32 v14, 1, v6
    v_add_u32 v13, v13, v14
    v_lshlrev_b32 v14, 2, v7
    v_xor_b32 v13, v13, v14
    v_lshl_add_u32 v12, v13, 4, v12
    v_and_b32 v6, 1, v6
    v_lshl_add_u32 v12, v6, 3, v12
    v_add_u32 v16, 12288, v12
    v_add_u32 v17, {2*C_SLOT}, v16
    v_mov_b32 v19, v4
    v_add_u32 v20, {2*C_SLOT}, v4
    v_mov_b32 v22, 0x3f803f80
    v_mov_b32 v23, 0x3f803f80
    v_add_u32 v9, {C_TAB}, v8
    s_waitcnt lgkmcnt(0)
    """)
    srd(a, 8, 20, WS_SIZE)
    a.stamp(0)
    a("""
    buffer_load_dword v10, v8, s[8:11], s13 offen
    buffer_load_dword v11, v8, s[8:11], s12 offen
    """)
    NT = 0
    if os.environ.get("C_TOUCH", "0") == "1":
        NT = 3
        a(f"""
        s_lshr_b32 s40, s2, 3
        s_lshl_b32 s40, s40, 2
        s_add_u32 s40, s40, s26
        s_lshr_b32 s41, s40, 4
        s_add_u32 s41, s41, 2
        s_min_u32 s41, s41, 7                    ; chunk
        s_and_b32 s42, s40, 15
        s_lshr_b32 s43, s42, 2
        s_and_b32 s44, s2, 3
        s_lshl_b32 s44, s44, 2
        s_add_u32 s43, s43, s44                  ; lt
        s_lshl_b32 s43, s43, 8
        s_and_b32 s44, s42, 3
        s_lshl_b32 s44, s44, 4
        s_lshl_b32 s45, s41, 6
        s_add_u32 s44, s44, s45
        s_lshl_b32 s44, s44, 12
        s_add_u32 s43, s43, s44
        s_add_u32 s43, s43, {WS_X2T}
        v_lshrrev_b32 v2, 2, v1
        v_lshlrev_b32 v2, 12, v2
        v_and_b32 v18, 3, v1
        v_lshl_add_u32 v2, v18, 6, v2
        buffer_load_dword v62, v2, s[8:11], s43 offen
        s_mul_i32 s44, s42, 96
        s_bfe_u32 s45, s2, 0x10002               ; half (k>>2)
        s_mul_i32 s45, s45, {24*32768}
        s_lshl_b32 s46, s41, 12
        s_add_u32 s45, s45, s46
        s_add_u32 s45, s45, {WS_W1F}
        v_add_u32 v2, s44, v1
        v_lshrrev_b32 v18, 6, v2
        v_lshlrev_b32 v18, 15, v18
        v_and_b32 v21, 63, v2
        v_lshl_add_u32 v18, v21, 6, v18
        buffer_load_dword v62, v18, s[8:11], s45 offen
        v_and_b32 v21, 31, v1
        v_add_u32 v2, s44, v21
        v_add_u32 v2, 64, v2
        v_lshrrev_b32 v18, 6, v2
        v_lshlrev_b32 v18, 15, v18
        v_and_b32 v21, 63, v2
        v_lshl_add_u32 v18, v21, 6, v18
        buffer_load_dword v62, v18, s[8:11], s45 offen
        """)
    for r in range(ACC, FB): a(f"v_mov_b32 v{r}, 0")
    T = LdsTracker(a)
    def reads(c, s):
        slot = c % C_NS
        grp = slot // 2; so = (slot % 2) * C_SLOT
        buf = (4 * c + s) % 3
        fb = FB + 16 * buf
        T.issue(f"ds_read_b64_tr_b16 v[{fb+12}:{fb+13}], v{16+grp} offset:{so + s*4096}", [f"x{buf}"])
        T.issue(f"ds_read_b64_tr_b16 v[{fb+14}:{fb+15}], v{16+grp} offset:{so + s*4096 + 1024}", [f"x{buf}"])
        for b in range(3):
            T.issue(f"ds_read_b128 v[{fb+4*b}:{fb+4*b+3}], v{19+grp} offset:{so + (b*4+s)*1024}", [f"w{buf}{b}"])
    def read_list(c, s):
        slot = c % C_NS
        grp = slot // 2; so = (slot % 2) * C_SLOT
        buf = (4 * c + s) % 3
        fb = FB + 16 * buf
        L = [(f"ds_read_b64_tr_b16 v[{fb+12}:{fb+13}], v{16+grp} offset:{so + s*4096}", [f"x{buf}"]),
             (f"ds_read_b64_tr_b16 v[{fb+14}:{fb+15}], v{16+grp} offset:{so + s*4096 + 1024}", [f"x{buf}"])]
        for b in range(3):
            L.append((f"ds_read_b128 v[{fb+4*b}:{fb+4*b+3}], v{19+grp} offset:{so + (b*4+s)*1024}", [f"w{buf}{b}"]))
        return L
    def mfmas(c, s, rd=()):
        rd = list(rd)
        def pop(n):
            for _ in range(n):
                if rd: T.issue(*rd.pop(0))
        buf = (4 * c + s) % 3; fb = FB + 16 * buf
        T.need([f"x{buf}", f"w{buf}0", f"w{buf}1", f"w{buf}2"])
        per = (len(rd) + 2) // 3
        for b in range(3):
            a(f"v_mfma_f32_32x32x16_bf16 v[{ACC+16*b}:{ACC+16*b+15}], v[{fb+4*b}:{fb+4*b+3}], v[{fb+12}:{fb+15}], v[{ACC+16*b}:{ACC+16*b+15}]")
            pop(per)
            if not os.environ.get("C_NOSTAT"):
                if b == 0:
                    a(f"v_mfma_f32_4x4x4_16b_bf16 v[{AQ}:{AQ+3}], v[{fb+12}:{fb+13}], v[{fb+12}:{fb+13}], v[{AQ}:{AQ+3}]")
                    a(f"v_mfma_f32_4x4x4_16b_bf16 v[{AS}:{AS+3}], v[22:23], v[{fb+12}:{fb+13}], v[{AS}:{AS+3}]")
                if b == 1:
                    a(f"v_mfma_f32_4x4x4_16b_bf16 v[{AQ+4}:{AQ+7}], v[{fb+14}:{fb+15}], v[{fb+14}:{fb+15}], v[{AQ+4}:{AQ+7}]")
                    a(f"v_mfma_f32_4x4x4_16b_bf16 v[{AS+4}:{AS+7}], v[22:23], v[{fb+14}:{fb+15}], v[{AS+4}:{AS+7}]")
        pop(99)
    for c in range(8):
        if c == 1:
            a(f"""
            s_waitcnt vmcnt({NT})
            v_cmp_gt_u32 vcc, 96, v0
            s_and_saveexec_b64 s[14:15], vcc
            ds_write_b32 v9, v10
            ds_write_b32 v9, v11 offset:384
            s_mov_b64 exec, s[14:15]
            """)
            T.issued += 2
        if c == 4: a.stamp(1)
        T.drain()
        if c == 4: a.stamp(2)
        a("s_barrier")
        if c in (0, 4): a.stamp(3 + c // 4)
        if c > 0:
            mfmas(c - 1, 3, read_list(c, 0) + read_list(c, 1))
        else:
            for x in read_list(c, 0) + read_list(c, 1): T.issue(*x)
        mfmas(c, 0, read_list(c, 2))
        mfmas(c, 1, read_list(c, 3))
        mfmas(c, 2)
    mfmas(7, 3)
    a.stamp(5)
    a(f"""
    v_and_b32 v6, 3, v1
    v_cmp_eq_u32 s[12:13], 1, v6
    v_cmp_eq_u32 s[14:15], 2, v6
    v_cmp_eq_u32 s[16:17], 3, v6
    v_lshrrev_b32 v6, 5, v1
    v_lshlrev_b32 v6, 4, v6
    v_add_u32 v6, {C_TAB}, v6
    """)
    for q in range(4):
        a(f"ds_read_b128 v[{28+4*q}:{31+4*q}], v6 offset:{(8*q)*4}")
        a(f"ds_read_b128 v[{44+4*q}:{47+4*q}], v6 offset:{384 + (8*q)*4}")
    a(f"""
    v_add_f32 v{AQ}, v{AQ}, v{AQ+4}
    v_add_f32 v{AQ+1}, v{AQ+1}, v{AQ+5}
    v_add_f32 v{AQ+2}, v{AQ+2}, v{AQ+6}
    v_add_f32 v{AQ+3}, v{AQ+3}, v{AQ+7}
    v_add_f32 v{AS}, v{AS}, v{AS+4}
    v_cndmask_b32 v{AQ}, v{AQ}, v{AQ+1}, s[12:13]
    v_cndmask_b32 v{AQ}, v{AQ}, v{AQ+2}, s[14:15]
    v_cndmask_b32 v{AQ}, v{AQ}, v{AQ+3}, s[16:17]
    v_mov_b32 v25, v{AS}
    v_mov_b32 v24, v{AQ}
    s_nop 1
    v_permlane32_swap_b32 v25, v{AS}
    v_permlane32_swap_b32 v24, v{AQ}
    s_nop 1
    v_add_f32 v25, v25, v{AS}
    v_add_f32 v24, v24, v{AQ}
    v_mul_f32 v25, {fx(1.0/512)}, v25
    v_mul_f32 v24, {fx(1.0/512)}, v24
    v_fma_f32 v24, -v25, v25, v24
    v_max_f32 v24, 0, v24
    v_add_f32 v24, {fx(1e-5)}, v24
    v_rsq_f32 v24, v24                       ; r
    s_lshl_b32 s12, s4, 2
    v_mul_f32 v26, -v25, v24                 ; -mean*r
    s_add_u32 s12, s12, s26
    s_mul_i32 s12, s12, {HS}
    v_mov_b32 v25, v24
    v_mov_b32 v27, v26
    s_mul_i32 s13, s5, 6
    s_add_u32 s12, s12, s13
    s_lshl_b32 s12, s12, 10
    s_add_u32 s12, s12, {WS_HID}
    """)
    for b in range(3):
        cs, bb = (28, 44) if b % 2 == 0 else (144, 160)
        a("s_waitcnt lgkmcnt(0)")
        if b < 2:
            cs2, bb2 = (144, 160) if b % 2 == 0 else (28, 44)
            if b == 1:
                a("s_nop 0")
            for q in range(4):
                a(f"ds_read_b128 v[{cs2+4*q}:{cs2+4*q+3}], v6 offset:{(32*(b+1) + 8*q)*4}")
                a(f"ds_read_b128 v[{bb2+4*q}:{bb2+4*q+3}], v6 offset:{384 + (32*(b+1) + 8*q)*4}")
        for j in range(8):
            a(f"v_pk_fma_f32 v[{bb+2*j}:{bb+2*j+1}], v[26:27], v[{cs+2*j}:{cs+2*j+1}], v[{bb+2*j}:{bb+2*j+1}]")
        for j in range(8):
            a(f"v_pk_fma_f32 v[{bb+2*j}:{bb+2*j+1}], v[24:25], v[{ACC+16*b+2*j}:{ACC+16*b+2*j+1}], v[{bb+2*j}:{bb+2*j+1}]")
        for j in range(16): a(f"v_max_f32 v{bb+j}, 0, v{bb+j}")
        for j in range(8): a(f"v_pk_mul_f32 v[{bb+2*j}:{bb+2*j+1}], v[{bb+2*j}:{bb+2*j+1}], v[{bb+2*j}:{bb+2*j+1}]")
        o = ACC + 16 * b
        for j in range(8): a(f"v_cvt_pk_bf16_f32 v{o+j}, v{bb+2*j}, v{bb+2*j+1}")
        a("s_nop 1")
        a(f"v_permlane32_swap_b32 v{o}, v{o+2}")
        a(f"v_permlane32_swap_b32 v{o+1}, v{o+3}")
        a(f"v_permlane32_swap_b32 v{o+4}, v{o+6}")
        a(f"v_permlane32_swap_b32 v{o+5}, v{o+7}")
        a(f"buffer_store_dwordx4 v[{o}:{o+3}], v4, s[8:11], s12 offen{HIDSC}")
        a(f"buffer_store_dwordx4 v[{o+4}:{o+7}], v4, s[8:11], s12 offen offset:1024{HIDSC}")
        a("s_add_u32 s12, s12, 2048")
        if b == 0:
            a(f"""
            s_cmp_eq_u32 s5, 14
            s_cbranch_scc0 c_more
            v_mov_b32 v28, 0
            v_mov_b32 v29, 0
            v_mov_b32 v30, 0
            v_mov_b32 v31, 0
            buffer_store_dwordx4 v[28:31], v4, s[8:11], s12 offen{SC}
            buffer_store_dwordx4 v[28:31], v4, s[8:11], s12 offen offset:1024{SC}
            s_endpgm
            c_more:
            """)
    a("c_end:\ns_endpgm")

D_GRID = 256
D_SLOT = 32768
D_NS = 4
D_X2 = D_NS * D_SLOT
D_TAB = D_X2 + 8192
D_LDS = D_TAB + 512
D_NCH = 11

def gen_D(a):
    ACC, FB = 64, 80
    if os.environ.get("MODP"):
        GB_LOAD = f"""s_lshl_b32 s12, s5, 9
    s_add_u32 s12, s12, {0x10000 + 160*128}
    v_lshrrev_b32 v14, 4, v0
    v_lshlrev_b32 v14, 7, v14
    v_and_b32 v21, 15, v0
    v_lshl_add_u32 v14, v21, 2, v14
    buffer_load_dword v14, v14, s[40:43], s12 offen"""
    else:
        GB_LOAD = f"""s_lshl_b32 s12, s5, 8
    s_add_u32 s12, s12, {WS_MOD + 5*2048}
    buffer_load_dword v14, v10, s[40:43], s12 offen"""
    a(f"""
    s_cmp_ge_u32 s2, {D_GRID}
    s_cbranch_scc1 d_end
    s_load_dwordx2 s[20:21], s[0:1], 144
    s_load_dwordx4 s[16:19], s[0:1], 96      ; w2, b2
    s_load_dwordx2 s[24:25], s[0:1], 128     ; out
    v_lshrrev_b32 v3, 6, v0
    v_and_b32 v1, 63, v0
    s_and_b32 s4, s2, 7
    s_lshl_b32 s4, s4, 2
    s_bfe_u32 s6, s2, 0x20003
    s_add_u32 s4, s4, s6
    s_lshr_b32 s5, s2, 5
    v_readfirstlane_b32 s26, v3              ; wave
    v_lshlrev_b32 v4, 4, v1                  ; lane*16
    s_lshl_b32 s6, s6, 1
    s_add_u32 s36, s6, s5
    s_and_b32 s36, s36, {((8 - 8 // int(os.environ.get("D_ROT", 4))) & 7)}
    s_mul_i32 s36, s36, 11
    s_lshr_b32 s36, s36, 3                   ; rotation
    s_and_b32 s27, s26, 1                    ; wm
    s_bfe_u32 s28, s26, 0x10001              ; wn
    s_cmp_lt_u32 s26, 4
    s_cbranch_scc1 d_compute
    s_sub_u32 s26, s26, 4
    v_lshrrev_b32 v5, 3, v1
    v_bfe_u32 v6, v1, 4, 1
    v_lshlrev_b32 v6, 2, v6
    v_and_b32 v7, 7, v1
    v_xor_b32 v6, v6, v7
    v_lshlrev_b32 v6, 4, v6
    v_lshl_add_u32 v5, v5, 10, v6
    v_lshrrev_b32 v9, 3, v1
    v_lshl_add_u32 v9, v9, 12, v6
    s_waitcnt lgkmcnt(0)
    s_cmp_eq_u32 s28, 0
    s_cbranch_scc0 d_hidrole
    s_mov_b32 s8, s16
    s_mov_b32 s9, s17
    s_mov_b32 s10, {1376*512*2}
    s_mov_b32 s11, 0x00020000
    s_lshl_b32 s30, s27, 16
    s_lshl_b32 s12, s5, 7
    s_add_u32 s30, s30, s12
    s_mov_b32 s32, 8192
    s_mov_b32 s33, 131072
    v_mov_b32 v8, v5
    s_branch d_roledone
    d_hidrole:
    s_mov_b32 s8, s20
    s_mov_b32 s9, s21
    s_mov_b32 s10, {WS_SIZE}
    s_mov_b32 s11, 0x00020000
    s_lshl_b32 s30, s4, 1
    s_add_u32 s30, s30, s27
    s_mul_i32 s30, s30, {HS*1024}
    s_add_u32 s30, s30, {WS_HID}
    s_mov_b32 s32, 1024
    s_mov_b32 s33, 8192
    v_mov_b32 v8, v4
    d_roledone:
    s_lshl_b32 s31, s26, 13
    """)
    srd(a, 40, 20, WS_SIZE)
    a.stamp(0)
    def dma(c):
        slot = (c % D_NS) * D_SLOT
        a(f"""
        s_add_u32 s34, s36, {c}
        s_sub_u32 s35, s34, 11
        s_cmp_ge_u32 s34, 11
        s_cselect_b32 s34, s35, s34
        s_mul_i32 s34, s34, s33
        s_add_u32 s34, s34, s30
        """)
        for i in range(8):
            a(f"s_add_u32 m0, s31, {slot + 1024*i}")
            a(f"s_add_u32 s34, s34, s32" if i else "s_nop 0")
            a(f"buffer_load_dwordx4 v8, s[8:11], s34 offen lds")
    dma(0)
    a(f"""
    s_lshl_b32 s12, s5, 6
    s_lshl_b32 s13, s26, 4
    s_add_u32 s12, s12, s13
    s_lshl_b32 s12, s12, 12
    s_lshl_b32 s13, s4, 7
    s_add_u32 s12, s12, s13
    s_add_u32 s12, s12, {WS_X2T}
    s_lshl_b32 s13, s26, 11
    s_add_u32 m0, s13, {D_X2}
    s_add_u32 s14, s12, {8*4096}
    buffer_load_dwordx4 v9, s[40:43], s12 offen lds
    s_add_u32 m0, m0, 1024
    s_nop 0
    buffer_load_dwordx4 v9, s[40:43], s14 offen lds
    """)
    dma(1)
    LA = int(os.environ.get("D_LA", 2))
    for c in range(2, LA): dma(c)
    for c in range(D_NCH):
        last = min(D_NCH - 1, c + LA - 1)
        n = 8 * (last - c)
        if c == 0: n += 2
        if c == 5: a.stamp(1)
        a(f"s_waitcnt vmcnt({n})")
        if c == 5: a.stamp(2)
        a("s_barrier")
        if c in (0, 5, 10): a.stamp(3 + (0, 5, 10).index(c))
        if c + LA < D_NCH: dma(c + LA)
    a("s_endpgm")
    a(f"""
    d_compute:
    v_lshlrev_b32 v10, 2, v0
    v_lshlrev_b32 v11, 1, v0
    s_lshl_b32 s12, s5, 7
    v_add_u32 v11, s12, v11
    v_min_u32 v11, 1022, v11
    v_and_b32 v6, 15, v1
    v_lshrrev_b32 v7, 2, v6                  ; r
    v_and_b32 v6, 3, v6                      ; c
    v_lshrrev_b32 v12, 5, v1                 ; g
    v_lshl_add_u32 v12, v12, 3, v7
    v_lshlrev_b32 v12, 7, v12
    v_bfe_u32 v13, v1, 4, 1
    v_lshlrev_b32 v13, 1, v13
    s_lshl_b32 s12, s27, 2
    v_add_u32 v13, s12, v13
    v_lshrrev_b32 v16, 1, v6
    v_add_u32 v13, v13, v16
    v_lshrrev_b32 v7, 1, v7
    v_lshlrev_b32 v7, 2, v7
    v_xor_b32 v13, v13, v7
    v_lshl_add_u32 v12, v13, 4, v12
    v_and_b32 v6, 1, v6
    v_lshl_add_u32 v16, v6, 3, v12
    v_add_u32 v17, {2*D_SLOT}, v16
    s_lshl_b32 s12, s28, 13
    s_add_u32 s12, s12, 16384
    v_add_u32 v18, s12, v4
    v_add_u32 v19, {2*D_SLOT}, v18
    s_waitcnt lgkmcnt(0)
    """)
    srd(a, 40, 20, WS_SIZE)
    a.stamp(0)
    a(f"""
    {GB_LOAD}
    global_load_ushort v15, v11, s[18:19]
    v_add_u32 v10, {D_TAB}, v10
    """)
    NT = 0
    if os.environ.get("D_TOUCH", "0") == "1":
        NT = 2
        a(f"""
        s_lshr_b32 s44, s2, 3
        s_lshl_b32 s44, s44, 2
        s_add_u32 s44, s44, s26                  ; g
        s_and_b32 s45, s44, 7
        s_and_b32 s46, s2, 7
        s_lshl_b32 s46, s46, 3
        s_add_u32 s45, s45, s46
        s_mul_i32 s45, s45, {HS*1024}
        s_lshr_b32 s46, s44, 3
        s_mul_i32 s46, s46, {88*64}
        s_add_u32 s45, s45, s46
        s_add_u32 s45, s45, {WS_HID}
        v_lshlrev_b32 v2, 6, v1
        buffer_load_dword v22, v2, s[40:43], s45 offen
        v_min_u32 v21, 23, v1
        v_lshlrev_b32 v21, 6, v21
        v_add_u32 v21, 4096, v21
        buffer_load_dword v23, v21, s[40:43], s45 offen
        """)
    for r in range(16): a(f"v_mov_b32 v{ACC+r}, 0")
    T = LdsTracker(a)
    NB = 5
    def reads(c, s):
        slot = c % D_NS
        grp = slot // 2; so = (slot % 2) * D_SLOT
        g = (8 * c + s) % NB
        fb = FB + 8 * g
        T.issue(f"ds_read_b64_tr_b16 v[{fb}:{fb+1}], v{16+grp} offset:{so + s*2048}", [f"a{g}"])
        T.issue(f"ds_read_b64_tr_b16 v[{fb+2}:{fb+3}], v{16+grp} offset:{so + s*2048 + 512}", [f"a{g}"])
        T.issue(f"ds_read_b128 v[{fb+4}:{fb+7}], v{18+grp} offset:{so + s*1024}", [f"b{g}"])
    def mfma(c, s):
        g = (8 * c + s) % NB; fb = FB + 8 * g
        T.need([f"a{g}", f"b{g}"])
        a(f"v_mfma_f32_32x32x16_bf16 v[{ACC}:{ACC+15}], v[{fb}:{fb+3}], v[{fb+4}:{fb+7}], v[{ACC}:{ACC+15}]")
    EPC = int(os.environ.get("D_EPC", 9))
    def epi_prepare():
        a(f"""
        v_and_b32 v6, 15, v1
        v_lshrrev_b32 v7, 2, v6
        v_and_b32 v6, 3, v6
        v_lshrrev_b32 v12, 5, v1                 ; h
        v_lshl_add_u32 v13, v12, 2, v7
        s_lshl_b32 s12, s27, 5
        v_add_u32 v13, s12, v13
        v_lshlrev_b32 v13, 7, v13
        v_bfe_u32 v14, v1, 4, 1
        v_lshlrev_b32 v14, 1, v14
        s_lshl_b32 s12, s28, 2
        v_add_u32 v14, s12, v14
        v_lshrrev_b32 v15, 1, v6
        v_add_u32 v14, v14, v15
        v_lshrrev_b32 v7, 1, v7
        v_lshlrev_b32 v7, 2, v7
        v_xor_b32 v14, v14, v7
        v_lshl_add_u32 v13, v14, 4, v13
        v_and_b32 v6, 1, v6
        v_lshl_add_u32 v13, v6, 3, v13
        v_add_u32 v13, {D_X2}, v13
        v_lshlrev_b32 v14, 4, v12
        s_lshl_b32 s12, s27, 7
        s_add_u32 s12, s12, {D_TAB}
        v_add_u32 v14, s12, v14
        """)
        for q in range(4):
            T.issue(f"ds_read_b64_tr_b16 v[{24+2*q}:{25+2*q}], v13 offset:{1024*q}", ["epi"])
            T.issue(f"ds_read_b128 v[{32+4*q}:{35+4*q}], v14 offset:{32*q}", ["epi"])
            T.issue(f"ds_read_b128 v[{48+4*q}:{51+4*q}], v14 offset:{256+32*q}", ["epi"])
        a(f"""
        v_and_b32 v5, 31, v1
        v_lshlrev_b32 v20, 10, v5
        v_lshl_add_u32 v20, v12, 4, v20
        s_lshl_b32 s12, s4, 1
        s_add_u32 s12, s12, s28
        s_lshl_b32 s12, s12, 15
        s_lshl_b32 s13, s5, 1
        s_add_u32 s13, s13, s27
        s_lshl_b32 s13, s13, 6
        s_add_u32 s12, s12, s13
        v_add_u32 v20, s12, v20
        """)
    def epi_finish():
        T.need(["epi"])
        for q in range(4):
            a(f"v_lshlrev_b32 v8, 16, v{24+2*q}")
            a(f"v_and_b32 v9, 0xffff0000, v{24+2*q}")
            a(f"v_lshlrev_b32 v10, 16, v{25+2*q}")
            a(f"v_and_b32 v11, 0xffff0000, v{25+2*q}")
            for r in range(4): a(f"v_fma_f32 v{48+4*q+r}, v{48+4*q+r}, v{32+4*q+r}, v{8+r}")
    for c in range(D_NCH):
        if c == 1:
            a(f"""
            s_waitcnt vmcnt({NT})
            v_lshlrev_b32 v15, 16, v15
            v_cmp_gt_u32 vcc, 64, v0
            s_and_saveexec_b64 s[14:15], vcc
            ds_write_b32 v10, v14
            ds_write_b32 v10, v15 offset:256
            s_mov_b64 exec, s[14:15]
            """)
            T.issued += 2
        if c == 5: a.stamp(1)
        T.drain()
        if c == 5: a.stamp(2)
        a("s_barrier")
        if c in (0, 5): a.stamp(3 + c // 5)
        reads(c, 0); reads(c, 1); reads(c, 2); reads(c, 3)
        if c > 0: mfma(c - 1, 7)
        for s in range(7):
            if s + 4 < 8: reads(c, s + 4)
            mfma(c, s)
            if c == EPC and s == 1: epi_prepare()
            if c == EPC + 1 and s == 2: epi_finish()
    mfma(D_NCH - 1, 7)
    a.stamp(5)
    a("s_nop 7\ns_nop 3")
    for q in range(4):
        for r in range(4): a(f"v_fma_f32 v{48+4*q+r}, v{ACC+4*q+r}, v{32+4*q+r}, v{48+4*q+r}")
        a(f"v_cvt_pk_bf16_f32 v{FB+2*q}, v{48+4*q}, v{49+4*q}")
        a(f"v_cvt_pk_bf16_f32 v{FB+2*q+1}, v{50+4*q}, v{51+4*q}")
    a(f"""
    s_nop 1
    v_permlane32_swap_b32 v{FB}, v{FB+2}
    v_permlane32_swap_b32 v{FB+1}, v{FB+3}
    v_permlane32_swap_b32 v{FB+4}, v{FB+6}
    v_permlane32_swap_b32 v{FB+5}, v{FB+7}
    global_store_dwordx4 v20, v[{FB}:{FB+3}], s[24:25]{OUTSC}
    global_store_dwordx4 v20, v[{FB+4}:{FB+7}], s[24:25] offset:32{OUTSC}
    d_end:
    s_endpgm
    """)

def kernels():
    return [("conv_kernel", gen_B, 168, B_GRID, 256, B_LDS),
            ("gemm1_kernel", gen_C, 176, C_GRID, 512, C_LDS),
            ("gemm2_kernel", gen_D, 128, D_GRID, 512, D_LDS)]
```

```python
import sys, os
os.environ["MODP"] = "1"
import g3
from g3 import *
import g3b
from g3b import gen_C, gen_D, C_GRID, C_LDS, D_GRID, D_LDS, KCP, KCHL

NMAIN, NW1 = 256, 43
TCH = 57 * TROW
H_OFF = 2 * KCHL
HCH = 4608
XR_OFF = H_OFF + 2 * HCH
RED_OFF = XR_OFF + 8192
LNT = 62016
KC2 = LNT + 4 * 2560
KCS = 776 * 4
MODS = KC2 + 2 * KCS
STP = MODS + 16 * 80
FLG = STP + 256
CNT = FLG + 16
AB_LDS = CNT + 32
NW1 = 86
AB_GRID = NMAIN + NW1
XBS = 8192
WS_MODP = 0x10000
WS_GO = 0x20000
WS_XB = WS_XT
SET = int(os.environ.get("STAMPSET", 0))
PPRIO = int(os.environ.get("PPRIO", 1))
X2SC = os.environ.get("X2SC", "")
X2W = bool(os.environ.get("X2W"))
W1SC = os.environ.get("W1SC", " sc1")
KP0 = int(os.environ.get("KP0", 3))
SPIN_MAX = 0x20000

def lds_arrive(a, k, v):
    a(f"""
    v_mov_b32 v{v}, {CNT + 4*k}
    v_mov_b32 v{v+1}, 1
    s_mov_b64 exec, 1
    ds_add_u32 v{v}, v{v+1}
    s_mov_b64 exec, -1
    """)
def lds_wait(a, k, n, v, tag, slp=1):
    a(f"""
    v_mov_b32 v{v}, {CNT + 4*k}
    lw_{tag}:
    ds_read_b32 v{v+1}, v{v}
    s_waitcnt lgkmcnt(0)
    v_readfirstlane_b32 s62, v{v+1}
    s_cmp_ge_u32 s62, {n}
    s_cbranch_scc1 lw_{tag}_done
    s_sleep {slp}
    s_branch lw_{tag}
    lw_{tag}_done:
    """)

def h_addr(a, toff):
    a(f"""
    v_add_u32 v11, {toff}, v0
    v_lshrrev_b32 v12, 1, v11                ; block
    v_and_b32 v10, 1, v11                    ; ch
    v_lshlrev_b32 v4, 13, v12
    v_lshl_add_u32 v4, v10, 4, v4
    s_lshl_b32 s38, s29, 4
    s_add_u32 s38, s38, {WS_XB}
    v_add_u32 v4, s38, v4
    v_lshlrev_b32 v5, 5, v12
    v_add_u32 v5, {WS_ST1}, v5               ; statistics
    s_lshr_b32 s38, s29, 4
    s_lshl_b32 s38, s38, 7
    s_and_b32 s39, s29, 15
    s_lshl_b32 s39, s39, 2
    s_add_u32 s38, s38, s39
    s_add_u32 s38, s38, {WS_MODP}
    v_lshl_add_u32 v6, v10, 2, s38
    v_mul_u32_u24 v7, {HCH}, v10
    v_lshl_add_u32 v7, v12, 4, v7
    v_add_u32 v7, {H_OFF + 512}, v7          ; h (LDS)
    v_lshlrev_b32 v8, 12, v10
    v_lshl_add_u32 v8, v12, 4, v8
    v_add_u32 v8, {XR_OFF}, v8
    v_lshlrev_b32 v9, 2, v10
    v_add_u32 v9, {MODS}, v9
    v_add_u32 v13, 4096, v6
    v_add_u32 v14, 4096, v13
    """)
def h_body(a):
    a(f"""
    global_load_dwordx4 v[64:67], v4, s[22:23] sc1
    global_load_dwordx4 v[68:71], v5, s[22:23] sc1
    global_load_dwordx4 v[72:75], v5, s[22:23] offset:16 sc1
    global_load_dword v76, v6, s[22:23] sc1
    global_load_dword v77, v13, s[22:23] sc1
    global_load_dword v78, v14, s[22:23] sc1
    s_waitcnt vmcnt(5)
    ds_write_b128 v8, v[64:67]
    """)
    for e in range(8):
        src = 64 + e // 2
        a(f"v_lshlrev_b32 v{80+e}, 16, v{src}" if e % 2 == 0 else f"v_and_b32 v{80+e}, 0xffff0000, v{src}")
    a("s_waitcnt vmcnt(3)")
    for e in range(8):
        a(f"v_lshlrev_b32 v{12+(e%4)}, 16, v{68+e}")
        a(f"v_and_b32 v{68+e}, 0xffff0000, v{68+e}")
        a(f"v_fma_f32 v{80+e}, v{80+e}, v{12+(e%4)}, v{68+e}")
    a(f"""
    s_waitcnt vmcnt(0)
    v_add_f32 v77, 1.0, v77
    v_cvt_pk_bf16_f32 v77, v77, v77
    ds_write_b32 v9, v78                     ; ga
    v_lshlrev_b32 v77, 16, v77               ; gamma
    """)
    for e in range(8): a(f"v_fma_f32 v{80+e}, v{80+e}, v77, v76")
    for p in range(4): a(f"v_cvt_pk_bf16_f32 v{88+p}, v{80+2*p}, v{81+2*p}")
    a("ds_write_b128 v7, v[88:91]")
    a("s_waitcnt lgkmcnt(0)")

IDX0 = 62428
def idx_table():
    import numpy as np
    def bf16_round_int(l):
        u = int(np.float32(l).view(np.uint32))
        r = (u + 0x7FFF + ((u >> 16) & 1)) >> 16
        return r
    rows = []
    for t in range(256):
        vals = []
        for e in range(12):
            l = 2047 - 8 * t - e
            if e == 11: vals.append(0); continue
            if l < 0: idx = 768
            elif l < 128: idx = l
            else: idx = bf16_round_int(l) - 0x4300 + 128
            vals.append(4 * idx + KC2 - IDX0)
        rows.append(vals)
    out = ".p2align 4\n.type kidx_table,@object\nkidx_table:\n"
    for r in rows: out += "    .short " + ", ".join(str(v) for v in r) + "\n"
    out += ".size kidx_table, 6144\n"
    return out
def idx_load(a, tag, d):
    a(f"""
    s_getpc_b64 s[56:57]
    idx_pc_{tag}:
    s_add_u32 s56, s56, kidx_table-idx_pc_{tag}
    s_addc_u32 s57, s57, 0
    v_mul_u32_u24 v{d+6}, 24, v0
    global_load_dwordx4 v[{d}:{d+3}], v{d+6}, s[56:57]
    global_load_dwordx2 v[{d+4}:{d+5}], v{d+6}, s[56:57] offset:16
    """)
def idx_unpack(a, d, o):
    for e in range(11):
        a(f"v_and_b32 v{o+e}, 0xffff, v{d+e//2}" if e % 2 == 0 else f"v_lshrrev_b32 v{o+e}, 16, v{d+e//2}")

def gen_kwaves(a):
    VA, VB, VY = 32, 64, 96
    a(f"""
    kwaves:
    s_setprio {KP0}
    s_load_dwordx4 s[8:11], s[0:1], 8
    s_load_dwordx4 s[12:15], s[0:1], 24
    s_load_dwordx4 s[16:19], s[0:1], 40
    s_load_dwordx4 s[40:43], s[0:1], 56
    s_load_dwordx2 s[22:23], s[0:1], 144     ; ws
    s_lshr_b32 s27, s26, 1                   ; ch
    s_and_b32 s28, s26, 1                    ; hf
    s_add_u32 s30, s29, s27                  ; d
    s_lshl_b32 s34, s30, 8
    s_lshl_b32 s35, s28, 7
    s_add_u32 s34, s34, s35
    v_lshl_add_u32 v36, v1, 1, s34
    s_lshl_b32 s35, s29, 1
    s_waitcnt lgkmcnt(0)
    """)
    if SET in (0, 3): a.stamp(0)
    for i, sp in enumerate((8, 10, 12, 14, 16, 18)):
        a(f"global_load_ushort v{40+i}, v36, s[{sp}:{sp+1}]")
    a("s_load_dword s24, s[40:41], s35\ns_load_dword s25, s[42:43], s35")
    idx_load(a, "k", 104)
    a("s_setprio 0")
    if SET == 3: a.stamp(1)
    a(f"""
    s_waitcnt lgkmcnt(0)
    s_lshl_b32 s36, s27, 4
    s_lshr_b32 s24, s24, s36
    s_lshl_b32 s24, s24, 16                  ; log_dt[d]
    s_lshr_b32 s25, s25, s36
    s_lshl_b32 s25, s25, 16                  ; Dskip[d]
    v_mov_b32 v5, s24
    v_mul_f32 v6, 0x3fb8aa3b, v5
    s_mov_b32 s36, 0x3fb8aa3b
    v_fma_f32 v7, v5, s36, -v6
    v_fmac_f32 v7, 0x32a5705f, v5
    v_exp_f32 v6, v6
    v_mul_f32 v7, {fx(0.6931471805599453)}, v7
    v_fmac_f32 v6, v6, v7
    v_cvt_pk_bf16_f32 v6, v6, v6
    v_lshlrev_b32 v6, 16, v6                 ; dt
    s_mul_i32 s36, s27, {TCH}
    s_lshl_b32 s37, s28, 8
    s_add_u32 s36, s36, s37
    v_lshl_add_u32 v2, v1, 2, s36
    v_mov_b32 v4, 0
    v_mov_b32 v5, {KC2 + 768*4}
    ds_write_b32 v5, v4
    ds_write_b32 v5, v4 offset:{KCS}
    s_waitcnt vmcnt(6)
    v_lshlrev_b32 v40, 16, v40
    v_lshlrev_b32 v41, 16, v41
    v_mul_f32 v10, v6, v40
    v_mul_f32 v11, v6, v41
    v_mul_f32 v10, 0x3fb8aa3b, v10
    v_mul_f32 v11, {fx(0.15915494309189535)}, v11
    """)
    if SET == 0: a.stamp(1)
    if SET == 3: a.stamp(2)
    def direct(dst, l, t):
        a(f"""
        v_mul_f32 v{t}, {fx(float(l))}, v10
        v_mul_f32 v{t+1}, {fx(float(l))}, v11
        v_exp_f32 v{t}, v{t}
        v_fract_f32 v{t+1}, v{t+1}
        v_cos_f32 v{dst}, v{t+1}
        v_sin_f32 v{dst+1}, v{t+1}
        s_nop 0
        v_mul_f32 v{dst}, v{t}, v{dst}
        v_mul_f32 v{dst+1}, v{t}, v{dst+1}
        """)
    tmpw = [0]
    def wr(row, src, neg=False):
        tmp = 62 + (tmpw[0] % 2); tmpw[0] += 1
        a(f"v_cvt_pk_bf16_f32 v{tmp}, v{src}, {'-' if neg else ''}v{src+1}")
        a(f"ds_write_b32 v2, v{tmp} offset:{row*TROW}")
    E = [None, 64, 66, 68, 70, 72, 74, 76]
    E8, E128, X, Y2, Q, R = 78, 80, 82, 84, 86, 88
    S = [12, 14, 16, 18]
    T0, T1, T2 = 28, 30, 32
    direct(E[1], 1, 28); direct(E128, 128, 30)
    a("""
    s_waitcnt vmcnt(2)
    v_lshlrev_b32 v42, 16, v42
    v_lshlrev_b32 v43, 16, v43
    v_lshlrev_b32 v44, 16, v44
    v_lshlrev_b32 v45, 16, v45
    v_mul_f32 v42, v6, v42
    v_mul_f32 v43, v6, v43
    """)
    cmul(a, Q, 44, 42, T2)
    a("v_mov_b32 v62, 0x3f80\nds_write_b32 v2, v62 offset:0"); tmpw[0] = 1
    cmul(a, E[2], E[1], E[1], T0); cmul(a, X, E128, E128, T1)
    wr(1, E[1]); wr(8, E128); wr(QROW, Q, True)
    cmul(a, E[4], E[2], E[2], T0); cmul(a, E[3], E[2], E[1], T1); cmul(a, R, X, X, T2)
    wr(2, E[2]); wr(16, X)
    cmul(a, E8, E[4], E[4], T0); cmul(a, E[5], E[4], E[1], T1); cmul(a, E[6], E[3], E[3], T2)
    wr(3, E[3]); wr(4, E[4]); wr(24, R)
    cmul(a, E[7], E[4], E[3], T0); cmul(a, Y2, R, E[4], T1)
    cmul(a, S[1], X, E[2], T2); cmul(a, S[2], X, E[4], T0); cmul(a, S[3], X, E[6], T1)
    wr(5, E[5]); wr(6, E[6]); wr(7, E[7]); wr(25, Y2)
    cmul(a, S[0], X, E128, T2)
    a(f"v_mov_b64 v[{X}:{X+1}], v[{R}:{R+1}]")
    cmul(a, R, R, R, T0)
    wr(17, S[1]); wr(18, S[2]); wr(19, S[3]); wr(20, S[0])
    for r in range(1, 4): cmul(a, S[r], S[r], E128, (T0, T1, T2)[r % 3])
    for r in range(1, 4): wr(20 + r, S[r])
    wr(32, R)
    Z = S[0]
    for i in range(1, 16):
        cmul(a, Q, Q, E8, T0)
        if i <= 8: cmul(a, R, R, E128, T1)
        if i <= 7: cmul(a, Z, E128, E[i], T2)
        if i <= 3:
            cmul(a, X, X, E128, 34); cmul(a, Y2, Y2, E128, 36)
        wr(QROW + i, Q, True)
        if i <= 8: wr(32 + i, R)
        if i <= 7: wr(8 + i, Z)
        if i <= 3:
            wr(24 + 2 * i, X); wr(25 + 2 * i, Y2)
    a(f"""
    v_and_b32 v4, 15, v0
    v_bfe_u32 v5, v0, 4, 2
    v_lshlrev_b32 v7, 4, v5
    v_mul_u32_u24 v8, {TROW}, v4
    v_add_u32 v8, v8, v7
    s_mul_i32 s36, s27, {TCH}
    v_add_u32 v8, s36, v8
    v_add_u32 v9, {QROW*TROW}, v8            ; B address
    s_mul_i32 s37, s28, {32*TROW}
    v_add_u32 v12, s37, v8
    s_mul_i32 s37, s28, {16*TROW}
    s_add_u32 s37, s37, {16*TROW}
    v_add_u32 v13, s37, v8
    """)
    for r in range(20, 36): a(f"v_mov_b32 v{r}, 0")
    a(f"""
    s_mul_i32 s36, s27, {KCS}
    s_add_u32 s36, s36, {KC2}
    s_cmp_eq_u32 s28, 1
    s_cbranch_scc1 k_t2
    v_and_b32 v7, 1, v5
    v_lshlrev_b32 v7, 2, v7
    v_lshrrev_b32 v14, 1, v5
    v_lshl_add_u32 v7, v14, 7, v7
    v_lshl_add_u32 v7, v4, 3, v7
    v_lshl_add_u32 v14, v7, 2, s36
    v_add_u32 v15, 4, v14
    v_add_u32 v16, 8, v14
    v_add_u32 v17, 12, v14
    v_cmp_gt_u32 vcc, 2, v5
    v_lshlrev_b32 v7, 6, v5
    v_add_u32 v7, 256, v7
    v_lshlrev_b32 v40, 2, v4
    v_lshlrev_b32 v41, 1, v4
    v_cndmask_b32 v40, v41, v40, vcc
    v_add_u32 v7, v7, v40
    v_lshl_add_u32 v40, v7, 2, s36
    v_add_u32 v41, 4, v40
    v_mov_b32 v42, 128
    v_cndmask_b32 v42, v42, 8, vcc
    v_add_u32 v42, v40, v42
    v_add_u32 v43, 4, v42
    s_branch k_addr
    k_t2:
    v_lshl_add_u32 v7, v5, 6, v4
    v_lshl_add_u32 v14, v7, 2, s36
    v_add_u32 v14, {512*4}, v14
    v_add_u32 v15, 64, v14
    v_add_u32 v16, 128, v14
    v_add_u32 v17, 192, v14
    v_mov_b32 v40, v14
    v_mov_b32 v41, v15
    v_mov_b32 v42, v16
    v_mov_b32 v43, v17
    k_addr:
    v_cmp_eq_u32 vcc, 0, v1
    s_cmp_eq_u32 s28, 0
    s_cselect_b32 s25, s25, 0
    v_mov_b32 v7, s25
    v_cndmask_b32 v7, 0, v7, vcc
    s_waitcnt lgkmcnt(0)
    """)
    a("s_waitcnt vmcnt(0)")
    idx_unpack(a, 104, 112)
    if SET == 0: a.stamp(2)
    if SET == 3: a.stamp(3)
    lds_arrive(a, 2, 38); lds_wait(a, 2, 4, 38, "k1")
    def rd(s):
        o = 64 + 12 * (s % 4)
        a(f"ds_read_b128 v[{o}:{o+3}], v9 offset:{64*s}")
        a(f"ds_read_b128 v[{o+4}:{o+7}], v12 offset:{64*s}")
        a(f"ds_read_b128 v[{o+8}:{o+11}], v13 offset:{64*s}")
    for s in range(4): rd(s)
    for s in range(8):
        o = 64 + 12 * (s % 4); p = s % 2
        a(f"s_waitcnt lgkmcnt({9 if s < 5 else 3*(7-s)})")
        a(f"v_mfma_f32_16x16x32_bf16 v[{20+8*p}:{23+8*p}], v[{o+4}:{o+7}], v[{o}:{o+3}], v[{20+8*p}:{23+8*p}]")
        a(f"v_mfma_f32_16x16x32_bf16 v[{24+8*p}:{27+8*p}], v[{o+8}:{o+11}], v[{o}:{o+3}], v[{24+8*p}:{27+8*p}]")
        if s < 4: rd(s + 4)
    a("s_nop 7")
    for r in range(8): a(f"v_add_f32 v{20+r}, v{20+r}, v{28+r}")
    a(f"""
    v_add_f32 v20, v20, v7
    ds_write_b32 v14, v20
    ds_write_b32 v15, v21
    ds_write_b32 v16, v22
    ds_write_b32 v17, v23
    ds_write_b32 v40, v24
    ds_write_b32 v41, v25
    ds_write_b32 v42, v26
    ds_write_b32 v43, v27
    """)
    lds_arrive(a, 3, 38); lds_wait(a, 3, 4, 38, "k2")
    if SET == 0: a.stamp(3)
    for ch in range(2):
        for e in range(11): a(f"ds_read_b32 v{64+12*ch+e}, v{112+e} offset:{IDX0 + ch*KCS}")
    a(f"""
    v_lshlrev_b32 v4, 4, v0                  ; tid*16
    v_mov_b32 v56, 0
    v_mov_b32 v57, 0
    v_mov_b32 v58, 0
    v_mov_b32 v59, 0
    v_lshrrev_b32 v60, 1, v0
    v_mul_u32_u24 v60, {KCP}, v60
    v_and_b32 v61, 1, v0
    v_lshl_add_u32 v60, v61, 4, v60
    v_add_u32 v60, 4096, v60
    v_bfe_u32 v61, v0, 5, 1
    v_mul_u32_u24 v61, {HCH}, v61
    v_and_b32 v62, 31, v0
    v_lshl_add_u32 v61, v62, 4, v61
    v_add_u32 v61, {H_OFF}, v61
    v_cmp_gt_u32 vcc, 16, v0
    s_cmp_eq_u32 s26, 1
    s_cbranch_scc1 k_padh
    s_cmp_eq_u32 s26, 0
    s_cbranch_scc0 k_pad_done
    s_and_saveexec_b64 s[54:55], vcc
    ds_write_b128 v60, v[56:59]
    s_mov_b64 exec, s[54:55]
    s_branch k_pad_done
    k_padh:
    ds_write_b128 v61, v[56:59]
    k_pad_done:
    s_waitcnt lgkmcnt(0)
    """)
    for ch in range(2):
        for c in range(4):
            o = 96 + 4 * (c % 2)
            for k in range(4): a(f"v_cvt_pk_bf16_f32 v{o+k}, v{64+12*ch+c+2*k}, v{64+12*ch+c+2*k+1}")
            a(f"ds_write_b128 v4, v[{o}:{o+3}] offset:{ch*KCHL + c*KCP}")
    a(f"""
    v_and_b32 v7, 15, v1
    v_lshrrev_b32 v2, 4, v1
    v_sub_u32 v60, 3, v7
    v_and_b32 v60, 3, v60
    v_mul_u32_u24 v61, {KCP - 2}, v60
    v_lshlrev_b32 v62, 1, v7
    v_sub_u32 v61, v61, v62
    v_lshl_add_u32 v61, v2, 4, v61
    s_mul_i32 s38, s27, {KCHL}
    s_lshl_b32 s39, s28, 8
    s_sub_u32 s38, s38, s39
    s_add_u32 s38, s38, {2*(2031 - 32*59)}
    v_add_u32 v20, s38, v61                  ; A base
    v_lshlrev_b32 v21, 5, v7
    v_lshl_add_u32 v21, v2, 4, v21
    s_mul_i32 s38, s27, {HCH}
    s_sub_u32 s38, s38, s39
    s_add_u32 s38, s38, {H_OFF + 2*(240 - 96)}
    v_add_u32 v21, s38, v21                  ; B base
    v_lshlrev_b32 v22, 5, v7
    v_lshl_add_u32 v22, v2, 3, v22
    s_lshl_b32 s38, s27, 12
    s_lshl_b32 s39, s28, 11
    s_add_u32 s38, s38, s39
    s_add_u32 s38, s38, {XR_OFF}
    v_add_u32 v23, s38, v22
    s_lshl_b32 s38, s30, 12
    s_lshl_b32 s39, s28, 11
    s_add_u32 s38, s38, s39
    s_add_u32 s38, s38, {WS_X2T}
    s_add_u32 s50, s22, s38
    s_addc_u32 s51, s23, 0
    s_lshl_b32 s43, s26, 12
    s_add_u32 s43, s43, {RED_OFF}
    v_lshlrev_b32 v24, 4, v1
    v_add_u32 v25, s43, v24
    s_xor_b32 s43, s26, 1
    s_lshl_b32 s43, s43, 12
    s_add_u32 s43, s43, {RED_OFF}
    v_add_u32 v26, s43, v24
    s_lshl_b32 s43, s27, 2
    s_add_u32 s43, s43, {MODS}
    v_mov_b32 v27, s43
    s_lshl_b32 s43, s26, 2
    s_add_u32 s43, s43, {FLG}
    v_mov_b32 v29, s43
    s_xor_b32 s43, s43, 4
    v_mov_b32 v30, s43
    v_mov_b32 v31, 0
    ds_write_b32 v29, v31
    v_lshlrev_b32 v24, 5, v7
    v_lshrrev_b32 v60, 1, v2
    v_lshl_add_u32 v24, v60, 4, v24
    v_and_b32 v60, 1, v2
    v_lshl_add_u32 v24, v60, 9, v24
    """)
    for t in range(8):
        for r in range(4): a(f"v_mov_b32 v{VY+4*t+r}, 0")
    lds_arrive(a, 5, 36);
    h_addr(a, 0)
    lds_wait(a, 5, 4, 36, "k3")
    T = LdsTracker(a)
    def ldA(p, r):
        off = 512 * (7 - p) + 64 * (3 - r)
        T.issue(f"ds_read_b64 v[{VA+4*p}:{VA+4*p+1}], v20 offset:{off}", [f"A{p}"])
        T.issue(f"ds_read_b64 v[{VA+4*p+2}:{VA+4*p+3}], v20 offset:{off+8}", [f"A{p}"])
    def ldB(k, r):
        off = 512 * k + 64 * (3 - r)
        T.issue(f"ds_read_b128 v[{VB+4*k}:{VB+4*k+3}], v21 offset:{off}", [f"B{k}"])
    for p in range(8): ldA(p, 0)
    if SET == 0: a.stamp(4)
    lds_wait(a, 4, 1, 16, "k4", 1)
    T.done = T.issued
    h_body(a)
    a("s_barrier")
    if int(os.environ.get("KPRIO", 0)): a(f"s_setprio {os.environ['KPRIO']}")
    if SET == 0: a.stamp(5)
    for k in range(7, -1, -1): ldB(k, 0)
    T.issue("ds_read_b32 v28, v27", ["ga"])
    for r in range(4):
        for p in range(8):
            for t in range(7, p - 1, -1):
                k = t - p
                T.need([f"A{p}", f"B{k}"])
                a(f"v_mfma_f32_16x16x32_bf16 v[{VY+4*t}:{VY+4*t+3}], v[{VA+4*p}:{VA+4*p+3}], v[{VB+4*k}:{VB+4*k+3}], v[{VY+4*t}:{VY+4*t+3}]")
                if t == 7 and r < 3: ldB(7 - p, r + 1)
            if r < 3: ldA(p, r + 1)
            if r == 3 and p == 4:
                for i in range(4): T.issue(f"ds_read_b64 v[{4+2*i}:{5+2*i}], v23 offset:{512*i}", ["xr"])
    T.need(["xr", "ga"])
    for i in range(4):
        a(f"v_lshlrev_b32 v{32+4*i}, 16, v{4+2*i}")
        a(f"v_and_b32 v{33+4*i}, 0xffff0000, v{4+2*i}")
        a(f"v_lshlrev_b32 v{34+4*i}, 16, v{5+2*i}")
        a(f"v_and_b32 v{35+4*i}, 0xffff0000, v{5+2*i}")
    a("s_cmp_eq_u32 s28, 1\ns_cbranch_scc1 k_hf1")
    def tail(hf):
        keep, send = 4 * hf, 4 * (1 - hf)
        for i in range(4):
            t = send + i
            a(f"ds_write_b128 v25, v[{VY+4*t}:{VY+4*t+3}] offset:{1024*i}")
        a("v_mov_b32 v31, 1\nds_write_b32 v29, v31")
        for i in range(4):
            for r in range(4): a(f"v_fma_f32 v{32+4*i+r}, v28, v{VY+4*(keep+i)+r}, v{32+4*i+r}")
        a(f"""
        k_hs{hf}:
        ds_read_b32 v31, v30
        s_waitcnt lgkmcnt(0)
        v_readfirstlane_b32 s43, v31
        s_cmp_eq_u32 s43, 1
        s_cbranch_scc0 k_hs{hf}
        """)
        for i in range(4): a(f"ds_read_b128 v[{64+4*i}:{67+4*i}], v26 offset:{1024*i}")
        for i in range(4):
            a(f"s_waitcnt lgkmcnt({3-i})")
            for r in range(4): a(f"v_fma_f32 v{32+4*i+r}, v28, v{64+4*i+r}, v{32+4*i+r}")
            a(f"v_cvt_pk_bf16_f32 v{12+2*i}, v{32+4*i}, v{33+4*i}")
            a(f"v_cvt_pk_bf16_f32 v{13+2*i}, v{34+4*i}, v{35+4*i}")
            if not X2W:
                a(f"global_store_dwordx2 v22, v[{12+2*i}:{13+2*i}], s[50:51] offset:{512*i}{X2SC}")
            elif i % 2 == 1:
                o = 12 + 2 * (i - 1)
                a("s_nop 1")
                a(f"v_permlane16_swap_b32 v{o}, v{o+2}")
                a(f"v_permlane16_swap_b32 v{o+1}, v{o+3}")
                a(f"global_store_dwordx4 v24, v[{o}:{o+3}], s[50:51] offset:{512*(i-1)}{X2SC}")
        a("s_endpgm")
    tail(0)
    a("k_hf1:")
    tail(1)

NSH = 4
def go_addr(a):
    a(f"""
    v_and_b32 v92, 31, v1
    v_lshlrev_b32 v92, 7, v92
    s_and_b32 s34, s2, {NSH-1}
    s_lshl_b32 s34, s34, 2
    s_add_u32 s34, s34, {WS_GO}
    v_add_u32 v92, s34, v92
    s_and_b32 s34, s2, 31
    s_lshl_b32 s34, s34, 7
    s_add_u32 s34, s34, {WS_GO}
    v_mov_b32 v94, s34
    """)
def go_load(a, o):
    a(f"""
    global_load_dword v93, v92, s[22:23] sc1
    global_load_dwordx4 v[{o}:{o+3}], v94, s[22:23] sc1
    """)
def grid_arrive(a, tag, t):
    assert AB_GRID % 2 == 0
    n = [len(range(k, AB_GRID, NSH)) for k in range(NSH)]
    assert n[0] - n[-1] <= 1
    cut = AB_GRID % NSH
    a(f"""
    s_and_b32 s34, s2, {NSH-1}
    s_lshl_b32 s36, s34, 6
    v_mov_b32 v{t}, s36
    v_mov_b32 v{t+1}, 1
    s_cmp_lt_u32 s34, {cut}
    s_cselect_b32 s37, 1, 0
    s_add_u32 s37, s37, {n[-1] - 1}
    s_mov_b64 exec, 1
    global_atomic_add v{t+2}, v{t}, v{t+1}, s[20:21] sc0 sc1
    s_waitcnt vmcnt(0)
    v_readfirstlane_b32 s36, v{t+2}
    s_mov_b64 exec, -1
    s_cmp_eq_u32 s36, s37
    s_cbranch_scc0 {tag}_arrived
    s_mov_b32 exec_hi, 0
    v_add_u32 v93, 1, v93
    global_store_dword v92, v93, s[22:23] sc1
    s_mov_b64 exec, -1
    {tag}_arrived:
    """)
def grid_wait(a, tag, t, o, slp=1, nmax=None, t2=None):
    n = [len(range(k, AB_GRID, NSH)) for k in range(NSH)]
    cut = AB_GRID % NSH
    def check(r):
        a(f"""
        v_cmp_eq_u32 vcc, v{r}, v{o}
        v_cmp_eq_u32 s[58:59], v{r+1}, v{o+1}
        s_or_b64 vcc, vcc, s[58:59]
        v_cmp_eq_u32 s[58:59], v{r+2}, v{o+2}
        s_or_b64 vcc, vcc, s[58:59]
        v_cmp_eq_u32 s[58:59], v{r+3}, v{o+3}
        s_or_b64 vcc, vcc, s[58:59]
        s_cbranch_scc0 {tag}_go
        """)
    a("s_mov_b32 s60, 0")
    if t2 is not None:
        a(f"global_load_dwordx4 v[{t2}:{t2+3}], v94, s[22:23] sc1\ns_sleep {os.environ.get('PS0', 5)}")
    a(f"""
    {tag}_poll_loop:
    global_load_dwordx4 v[{t}:{t+3}], v94, s[22:23] sc1
    """)
    if t2 is None:
        a("s_waitcnt vmcnt(0)")
        check(t)
    else:
        a("s_waitcnt vmcnt(1)")
        check(t2)
        a(f"global_load_dwordx4 v[{t2}:{t2+3}], v94, s[22:23] sc1\ns_waitcnt vmcnt(1)")
        check(t)
    a(f"""
    s_add_u32 s60, s60, 1
    s_and_b32 s61, s60, 31
    s_cbranch_scc1 {tag}_next
    s_waitcnt vmcnt(0)
    v_and_b32 v{t}, {NSH-1}, v1
    v_lshlrev_b32 v{t+1}, 6, v{t}
    global_load_dword v{t+2}, v{t+1}, s[20:21] sc1
    v_mov_b32 v{t+3}, {n[-1]}
    v_cmp_gt_u32 vcc, {cut}, v{t}
    s_waitcnt vmcnt(0)
    s_nop 0
    v_addc_co_u32 v{t+3}, vcc, 0, v{t+3}, vcc
    v_cmp_ne_u32 vcc, v{t+2}, v{t+3}
    s_cbranch_vccz {tag}_go
    """)
    if t2 is not None:
        a(f"global_load_dwordx4 v[{t2}:{t2+3}], v94, s[22:23] sc1")
    a(f"""
    {tag}_next:
    {"s_sleep " + str(slp) if t2 is None else ""}
    s_cmp_lt_u32 s60, {nmax or SPIN_MAX}
    s_cbranch_scc1 {tag}_poll_loop
    {tag}_go:
    s_waitcnt vmcnt(0)
    """)

def gen_pwaves(a):
    a(f"""
    pwaves:
    s_load_dwordx2 s[4:5], s[0:1], 0         ; x
    s_load_dwordx4 s[44:47], s[0:1], 112     ; c, w_mod
    s_load_dwordx4 s[20:23], s[0:1], 136
    s_load_dwordx4 s[8:11], s[0:1], 80       ; w1, b1
    s_load_dwordx2 s[48:49], s[0:1], 96
    s_setprio {PPRIO}
    v_subrev_u32 v0, 256, v0
    s_sub_u32 s26, s26, 4
    v_lshrrev_b32 v3, 6, v0
    v_lshrrev_b32 v8, 4, v1                  ; row (0..3)
    v_and_b32 v9, 15, v1                     ; 16 B chunk
    v_lshlrev_b32 v4, 10, v8
    v_lshl_add_u32 v4, v9, 4, v4
    v_lshl_add_u32 v4, v3, 8, v4
    s_lshl_b32 s31, s2, 13
    v_add_u32 v4, s31, v4
    v_add_u32 v44, 4096, v4
    s_min_u32 s32, s7, 23
    s_mul_i32 s33, s6, 24
    s_add_u32 s33, s33, s32
    v_lshrrev_b32 v5, 1, v0                  ; rg
    v_and_b32 v6, 1, v0                      ; cc
    v_mul_u32_u24 v7, {4*6144}, v5
    v_lshl_add_u32 v7, v6, 4, v7
    s_lshl_b32 s34, s33, 5
    v_add_u32 v7, s34, v7
    v_lshlrev_b32 v2, 3, v5                  ; c offset
    """)
    go_addr(a)
    a("s_waitcnt lgkmcnt(0)")
    if SET == 1: a.stamp(0)
    a(f"""
    global_load_dwordx4 v[8:11], v4, s[4:5]
    global_load_dwordx4 v[12:15], v44, s[4:5]
    global_load_dwordx2 v[16:17], v2, s[44:45]
    """)
    for i in range(4):
        if i: a("v_add_u32 v7, 6144, v7")
        a(f"global_load_dwordx4 v[{20+4*i}:{23+4*i}], v7, s[46:47]")
    a(f"""
    v_mov_b32 v38, 0x3f803f80
    v_lshrrev_b32 v40, 4, v1
    v_mul_u32_u24 v39, 320, v40
    v_and_b32 v41, 15, v1
    v_lshl_add_u32 v39, v41, 4, v39
    s_mul_i32 s34, s26, 2560
    s_add_u32 s34, s34, {LNT}
    v_add_u32 v39, s34, v39
    v_lshrrev_b32 v47, 2, v41
    v_mul_u32_u24 v47, 320, v47
    v_and_b32 v46, 3, v41
    v_lshl_add_u32 v47, v46, 3, v47
    v_lshl_add_u32 v47, v40, 5, v47
    v_add_u32 v47, s34, v47
    v_lshl_add_u32 v46, v3, 7, v1
    v_lshlrev_b32 v46, 4, v46
    s_mul_i32 s34, s2, {XBS}
    s_add_u32 s34, s34, {WS_XB}
    v_add_u32 v46, s34, v46
    v_lshlrev_b32 v45, 3, v40
    s_lshl_b32 s34, s26, 6
    s_add_u32 s34, s34, {STP}
    v_add_u32 v45, s34, v45
    """)
    for r in range(2):
        b = 8 + 4 * r
        a(f"s_waitcnt vmcnt({6 - r})")
        a(f"ds_write_b128 v39, v[{b}:{b+3}] offset:{1280*r}")
        a(f"v_dot2_f32_bf16 v{72+2*r}, v{b}, v38, 0")
        a(f"v_dot2_f32_bf16 v{73+2*r}, v{b}, v{b}, 0")
        for k in range(1, 4):
            a(f"v_dot2_f32_bf16 v{72+2*r}, v{b+k}, v38, v{72+2*r}")
            a(f"v_dot2_f32_bf16 v{73+2*r}, v{b+k}, v{b+k}, v{73+2*r}")
    a("""
    s_waitcnt lgkmcnt(0)
    ds_read_b64_tr_b16 v[48:49], v47
    ds_read_b64_tr_b16 v[50:51], v47 offset:1280
    ds_read_b64_tr_b16 v[52:53], v47 offset:128
    ds_read_b64_tr_b16 v[54:55], v47 offset:1408
    """)
    if SET == 1: a.stamp(1)
    a("s_waitcnt vmcnt(4)")
    for i in range(4):
        src = 16 + i // 2
        a(f"v_lshlrev_b32 v{56+i}, 16, v{src}" if i % 2 == 0 else f"v_and_b32 v{56+i}, 0xffff0000, v{src}")
    for i in range(4): a(f"v_mul_f32 v{60+i}, {fx(-1.4426950408889634)}, v{56+i}")
    for i in range(4): a(f"v_exp_f32 v{60+i}, v{60+i}")
    dpps = ["row_shr:1", "row_shr:2", "row_shr:4", "row_shr:8", "row_bcast:15 row_mask:0xa", "row_bcast:31 row_mask:0xc"]
    def dpp4(d):
        m = "" if "row_mask" in d else " row_mask:0xf"
        for r in range(72, 76): a(f"v_add_f32_dpp v{r}, v{r}, v{r} {d}{m} bank_mask:0xf")
    dpp4(dpps[0])
    for i in range(4): a(f"v_add_f32 v{60+i}, 1.0, v{60+i}")
    dpp4(dpps[1])
    for i in range(4): a(f"v_rcp_f32 v{60+i}, v{60+i}")
    dpp4(dpps[2])
    for i in range(4): a(f"v_mul_f32 v{56+i}, v{56+i}, v{60+i}")
    dpp4(dpps[3])
    for i in range(4):
        a(f"v_cvt_pk_bf16_f32 v{60+i}, v{56+i}, 0")
        a(f"v_cvt_pk_bf16_f32 v{76+i}, 0, v{56+i}")
    a(f"""
    s_waitcnt lgkmcnt(0)
    global_store_dwordx4 v46, v[48:51], s[22:23] sc1
    global_store_dwordx4 v46, v[52:55], s[22:23] offset:1024 sc1
    v_cmp_eq_u32 vcc, 15, v41
    s_and_saveexec_b64 s[54:55], vcc
    ds_write_b64 v45, v[72:73]
    ds_write_b64 v45, v[74:75] offset:32
    s_mov_b64 exec, s[54:55]
    """)
    for i in range(4):
        a(f"s_waitcnt vmcnt({5 - i})")
        for m in range(4):
            c0 = "0" if i == 0 else f"v{64+2*m}"; c1 = "0" if i == 0 else f"v{65+2*m}"
            a(f"v_dot2_f32_bf16 v{64+2*m}, v{20+4*i+m}, v{60+i}, {c0}")
            a(f"v_dot2_f32_bf16 v{65+2*m}, v{20+4*i+m}, v{76+i}, {c1}")
    a("s_nop 2")
    for d in ["row_shr:2", "row_shr:4", "row_shr:8"]:
        for r in range(64, 72): a(f"v_add_f32_dpp v{r}, v{r}, v{r} {d} row_mask:0xf bank_mask:0xf")
    a(f"""
    v_lshrrev_b32 v4, 4, v0
    v_mul_u32_u24 v4, 80, v4
    v_lshl_add_u32 v4, v6, 5, v4
    v_add_u32 v4, {MODS}, v4
    v_and_b32 v5, 15, v0
    v_cmp_lt_u32 vcc, 13, v5
    v_lshlrev_b32 v5, 2, v5
    v_add_u32 v5, {MODS}, v5
    s_and_saveexec_b64 s[54:55], vcc
    ds_write_b128 v4, v[64:67]
    ds_write_b128 v4, v[68:71] offset:16
    s_mov_b64 exec, s[54:55]
    s_waitcnt lgkmcnt(0)
    """)
    if SET == 1: a.stamp(2)
    a("""
    s_cmp_eq_u32 s26, 0
    s_cbranch_scc0 p_nogo
    """)
    go_load(a, 96)
    a("p_nogo:")
    lds_arrive(a, 0, 36); lds_wait(a, 0, 4, 36, "p1")
    for i in range(16): a(f"ds_read_b32 v{20+i}, v5 offset:{80*i}")
    a(f"""
    v_and_b32 v58, 7, v0
    v_lshlrev_b32 v59, 3, v58
    v_add_u32 v59, {STP}, v59
    ds_read_b64 v[48:49], v59
    ds_read_b64 v[50:51], v59 offset:64
    ds_read_b64 v[52:53], v59 offset:128
    ds_read_b64 v[54:55], v59 offset:192
    v_lshlrev_b32 v58, 2, v58
    s_lshl_b32 s34, s2, 5
    s_add_u32 s34, s34, {WS_ST1}
    v_add_u32 v58, s34, v58
    s_waitcnt lgkmcnt(0)
    v_add_f32 v48, v48, v50
    v_add_f32 v49, v49, v51
    v_add_f32 v52, v52, v54
    v_add_f32 v53, v53, v55
    v_add_f32 v56, v48, v52
    v_add_f32 v57, v49, v53
    v_mul_f32 v56, {fx(1.0/512)}, v56        ; mean
    v_mul_f32 v57, {fx(1.0/512)}, v57
    v_fma_f32 v57, -v56, v56, v57
    v_max_f32 v57, 0, v57
    v_add_f32 v57, {fx(1e-5)}, v57
    v_rsq_f32 v57, v57
    v_cmp_gt_u32 vcc, 8, v0
    v_mul_f32 v56, -v56, v57
    v_cvt_pk_bf16_f32 v56, v57, v56          ; (r, -mean*r)
    s_and_saveexec_b64 s[54:55], vcc
    s_cbranch_execz p_nostat
    global_store_dword v58, v56, s[22:23] sc1
    p_nostat:
    s_mov_b64 exec, s[54:55]
    """)
    for st in (1, 2, 4, 8):
        for i in range(0, 16, 2 * st): a(f"v_add_f32 v{20+i}, v{20+i}, v{20+i+st}")
    a(f"""
    v_cvt_pk_bf16_f32 v20, v20, v20
    v_lshlrev_b32 v20, 16, v20
    s_lshl_b32 s34, s33, 7
    s_add_u32 s34, s34, {WS_MODP}
    v_lshlrev_b32 v4, 2, v0
    v_add_u32 v4, s34, v4
    s_cmp_lt_u32 s7, 24
    s_cselect_b32 s34, 16, 0
    v_cmp_gt_u32 vcc, s34, v0
    s_and_saveexec_b64 s[54:55], vcc
    s_cbranch_execz p_nomod
    global_store_dword v4, v20, s[22:23] sc1
    p_nomod:
    s_mov_b64 exec, s[54:55]
    """)
    a("s_waitcnt vmcnt(0)")
    lds_arrive(a, 1, 36)
    if SET == 1: a.stamp(3)
    a(f"""
    """)
    h_addr(a, 256)
    a("s_cmp_eq_u32 s26, 0\ns_cbranch_scc0 p_wait_release")
    lds_wait(a, 1, 4, 36, "p2")
    if os.environ.get("FORCE_RACE"):
        a("s_cmp_eq_u32 s2, 5\ns_cbranch_scc0 fr_skip\nv_add_u32 v96, 1, v96\nfr_skip:")
    grid_arrive(a, "p", 36); grid_wait(a, "p", 40, 96, int(os.environ.get("PSLP", 1)), None, 44 if os.environ.get("POLL2", "0") == "1" else None)
    lds_arrive(a, 4, 36)
    a("s_setprio 0\ns_branch p_released\np_wait_release:\ns_setprio 0")
    lds_wait(a, 4, 1, 36, "p3", 1)
    a("p_released:")
    if SET == 1: a.stamp(4)
    h_body(a)
    if SET == 1: a.stamp(5)
    a("s_barrier")
    a(f"""
    s_lshr_b32 s47, s2, 3
    s_mul_i32 s47, s47, 44032
    v_lshlrev_b32 v8, 6, v0
    v_add_u32 v8, s47, v8
    global_load_dword v9, v8, s[48:49]
    v_add_u32 v8, 16384, v8
    global_load_dword v10, v8, s[48:49]
    s_add_u32 s47, s47, {32768 + 175*64}
    v_add_u32 v8, 16384, v8
    v_min_u32 v8, s47, v8
    global_load_dword v11, v8, s[48:49]
    s_endpgm
    """)

def gen_w1p(a):
    IMG = 0
    RED = 16384
    a(f"""
    w1p:
    s_load_dwordx4 s[8:11], s[0:1], 80       ; w1, b1
    s_load_dwordx4 s[20:23], s[0:1], 136     ; debug, ws
    s_sub_u32 s3, s2, {NMAIN}                ; half block hb : fblk = hb>>1, mhalf = hb&1
    v_and_b32 v1, 63, v0
    v_lshrrev_b32 v2, 6, v0
    v_lshrrev_b32 v3, 1, v0                  ; rg
    v_and_b32 v4, 1, v0                      ; cc
    v_readfirstlane_b32 s26, v2
    v_mul_u32_u24 v5, {4*2752}, v3
    v_lshl_add_u32 v5, v4, 4, v5
    s_lshl_b32 s9, s3, 5
    s_waitcnt lgkmcnt(0)
    """.replace("s_lshl_b32 s9, s3, 5\n", ""))
    a(f"""
    s_lshl_b32 s12, s3, 5
    v_add_u32 v5, s12, v5
    """)
    go_addr(a)
    a("s_cmp_eq_u32 s26, 0\ns_cbranch_scc0 w_noarr")
    go_load(a, 100)
    a("s_waitcnt vmcnt(0)")
    grid_arrive(a, "w", 96)
    a("w_noarr:")
    a(f"""
    v_and_b32 v7, 15, v0
    v_lshlrev_b32 v7, 1, v7
    v_add_u32 v55, s12, v7                   ; b1 address
    v_mov_b32 v57, 0x3f803f80
    v_lshrrev_b32 v58, 2, v3
    v_lshlrev_b32 v58, 9, v58
    v_bfe_u32 v59, v3, 1, 1
    v_lshl_add_u32 v58, v59, 8, v58
    v_lshl_add_u32 v58, v4, 7, v58
    v_and_b32 v59, 1, v3
    v_lshl_add_u32 v58, v59, 3, v58
    v_lshrrev_b32 v6, 2, v3
    v_lshlrev_b32 v6, 7, v6
    v_and_b32 v7, 3, v3
    v_lshl_add_u32 v6, v7, 4, v6
    v_add_u32 v6, {WS_MODP + 96*128}, v6
    v_add_u32 v7, 4096, v6
    """)
    EARLY = os.environ.get("W1EARLY", "1") == "1"
    def w1loads():
        for i in range(4):
            if i: a("v_add_u32 v5, 2752, v5")
            a(f"global_load_dwordx4 v[{64+4*i}:{67+4*i}], v5, s[8:9]")
        a("global_load_ushort v56, v55, s[10:11]")
    def unpack():
        for i in range(4):
            for e in range(8):
                src = 64 + 4 * i + e // 2
                a(f"v_lshlrev_b32 v{24+8*i+e}, 16, v{src}" if e % 2 == 0 else f"v_and_b32 v{24+8*i+e}, 0xffff0000, v{src}")
    NPRE = int(os.environ.get("WPRE", 2))
    if EARLY:
        if NPRE:
            a("s_cmp_eq_u32 s26, 0\ns_cbranch_scc0 w_pre")
            grid_wait(a, "w0", 96, 100, int(os.environ.get("WSLP", 8)), NPRE)
            a("w_pre:\ns_barrier")
        w1loads()
        a("s_waitcnt vmcnt(1)")
        unpack()
    a("s_cmp_eq_u32 s26, 0\ns_cbranch_scc0 w_released")
    grid_wait(a, "w", 96, 100, int(os.environ.get("WSLP2", 1)))
    a("w_released:\ns_barrier")
    if int(os.environ.get("WPRIO", 0)): a(f"s_setprio {os.environ['WPRIO']}")
    if not EARLY: w1loads()
    a(f"""
    global_load_dwordx4 v[8:11], v6, s[22:23] sc1        ; sb
    global_load_dwordx4 v[12:15], v7, s[22:23] sc1       ; cb
    """)
    if not EARLY:
        a("s_waitcnt vmcnt(3)")
        unpack()
    a("s_waitcnt vmcnt(0)")
    for i in range(4): a(f"v_add_f32 v{12+i}, 1.0, v{12+i}")
    a("v_cvt_pk_bf16_f32 v16, v12, v13\nv_cvt_pk_bf16_f32 v17, v14, v15")
    a("v_lshlrev_b32 v12, 16, v16\nv_and_b32 v13, 0xffff0000, v16\nv_lshlrev_b32 v14, 16, v17\nv_and_b32 v15, 0xffff0000, v17")
    for e in range(8): a(f"v_mul_f32 v{72+e}, v8, v{24+e}")
    for i in range(1, 4):
        for e in range(8): a(f"v_fmac_f32 v{72+e}, v{8+i}, v{24+8*i+e}")
    for i in range(4):
        for e in range(8): a(f"v_mul_f32 v{24+8*i+e}, v{12+i}, v{24+8*i+e}")
    for e in range(8):
        a(f"v_cvt_pk_bf16_f32 v{80+2*e}, v{24+e}, v{32+e}")
        a(f"v_cvt_pk_bf16_f32 v{81+2*e}, v{40+e}, v{48+e}")
    for e in range(8): a(f"ds_write_b64 v58, v[{80+2*e}:{81+2*e}] offset:{IMG + 16*e}")
    for e in range(8): a(f"v_dot2_f32_bf16 v{64+e}, v{80+2*e}, v57, 0")
    for e in range(8): a(f"v_dot2_f32_bf16 v{64+e}, v{81+2*e}, v57, v{64+e}")
    a("s_nop 2")
    for d in ["row_shr:2", "row_shr:4", "row_shr:8"]:
        for r in range(64, 80): a(f"v_add_f32_dpp v{r}, v{r}, v{r} {d} row_mask:0xf bank_mask:0xf")
    a(f"""
    v_lshrrev_b32 v5, 4, v0                  ; part
    v_mul_u32_u24 v5, 144, v5
    v_lshl_add_u32 v5, v4, 5, v5
    v_and_b32 v6, 15, v0
    v_cmp_lt_u32 vcc, 13, v6
    s_and_saveexec_b64 s[54:55], vcc
    ds_write_b128 v5, v[64:67] offset:{RED}
    ds_write_b128 v5, v[68:71] offset:{RED + 16}
    ds_write_b128 v5, v[72:75] offset:{RED + 64}
    ds_write_b128 v5, v[76:79] offset:{RED + 80}
    s_mov_b64 exec, s[54:55]
    v_lshlrev_b32 v7, 4, v0
    s_lshr_b32 s13, s3, 1
    s_lshl_b32 s13, s13, 15
    s_and_b32 s14, s3, 1
    s_lshl_b32 s14, s14, 8
    s_add_u32 s13, s13, s14
    s_add_u32 s13, s13, {WS_W1F}
    v_lshrrev_b32 v8, 4, v0
    v_lshlrev_b32 v8, 9, v8                  ; g*512 + s*1024 == (2s+g)*512
    v_lshl_add_u32 v8, v6, 4, v8
    v_add_u32 v8, s13, v8
    v_and_b32 v9, 31, v0
    v_lshlrev_b32 v9, 2, v9
    s_waitcnt lgkmcnt(0)
    s_barrier
    """)
    for k in range(4): a(f"ds_read_b128 v[{24+4*k}:{27+4*k}], v7 offset:{IMG + 4096*k}")
    a(f"""
    v_lshlrev_b32 v9, 2, v6
    v_bfe_u32 v10, v0, 4, 1
    v_lshl_add_u32 v9, v10, 6, v9            ; (t&15)*4 + ((t>>4)&1)*64
    """)
    for p in range(16): a(f"ds_read_b32 v{40+p}, v9 offset:{RED + 144*p}")
    for k in range(4):
        a(f"s_waitcnt lgkmcnt({15 if k == 0 else 15})" if False else "")
    a("s_waitcnt lgkmcnt(15)")
    a("s_waitcnt lgkmcnt(0)")
    for k in range(4):
        a(f"global_store_dwordx4 v8, v[{24+4*k}:{27+4*k}], s[22:23]{W1SC}")
        if k < 3: a(f"v_add_u32 v8, {16*512}, v8")
    for st in (1, 2, 4, 8):
        for p in range(0, 16, 2 * st): a(f"v_add_f32 v{40+p}, v{40+p}, v{40+p+st}")
    a(f"""
    v_lshlrev_b32 v56, 16, v56
    v_cmp_eq_u32 vcc, 1, v10
    s_nop 1
    v_cndmask_b32 v56, 0, v56, vcc
    v_add_f32 v40, v40, v56
    s_lshl_b32 s13, s3, 6
    v_lshl_add_u32 v11, v6, 2, s13
    v_mov_b32 v12, {WS_CS}
    v_mov_b32 v13, {WS_B1P}
    v_cndmask_b32 v12, v12, v13, vcc
    v_add_u32 v11, v11, v12
    v_cmp_gt_u32 vcc, 32, v0
    s_and_saveexec_b64 s[54:55], vcc
    s_cbranch_execz w1p_end
    global_store_dword v11, v40, s[22:23]{SC}
    w1p_end:
    s_endpgm
    """)

def gen_AB(a):
    a(f"""
    s_cmp_ge_u32 s2, {NMAIN}
    s_cbranch_scc1 ab_other
    v_lshrrev_b32 v3, 6, v0
    v_and_b32 v1, 63, v0
    s_and_b32 s6, s2, 7
    s_lshr_b32 s7, s2, 3
    v_readfirstlane_b32 s26, v3              ; wave
    v_lshlrev_b32 v4, 2, v0
    v_add_u32 v4, {CNT}, v4
    v_mov_b32 v5, 0
    v_cmp_gt_u32 vcc, 8, v0
    s_and_saveexec_b64 s[54:55], vcc
    ds_write_b32 v4, v5
    s_mov_b64 exec, s[54:55]
    s_lshl_b32 s29, s6, 6
    s_lshl_b32 s30, s7, 1
    s_add_u32 s29, s29, s30
    s_waitcnt lgkmcnt(0)
    s_barrier
    s_cmp_lt_u32 s26, 4
    s_cbranch_scc1 kwaves
    """)
    gen_pwaves(a)
    gen_kwaves(a)
    a(f"""
    ab_other:
    s_cmp_lt_u32 s2, {AB_GRID}
    s_cbranch_scc0 ab_end
    v_cmp_gt_u32 vcc, 256, v0
    s_cbranch_vccnz w1p
    ab_end:
    s_endpgm
    """)
    gen_w1p(a)
    a.l.append(idx_table())

if __name__ == "__main__":
    ks = [("convab_kernel", gen_AB, 128, AB_GRID, 512, AB_LDS),
          ("gemm1_kernel", gen_C, 176, C_GRID, 512, C_LDS),
          ("gemm2_kernel", gen_D, 128, D_GRID, 512, D_LDS)]
    s = build(ks)
    path = sys.argv[1] if len(sys.argv) > 1 else "out.s"
    open(path, "w").write(s)
    print("wrote", path, len(s))
```

```python
import sys, os
os.environ["MODP"] = "1"
import g5
from g5 import *
from g3b import HIDSC, OUTSC, HS

CD_GRID = 256
C_SLOT, C_NS = 28672, 4
C_TAB = C_NS * C_SLOT
D_SLOT, D_NS, D_NCH = 32768, 4, 11
D_X2 = D_NS * D_SLOT
D_TAB = D_X2 + 8192
D_FLG = D_TAB + 512
CD_LDS = D_FLG + 16
WS_GO2 = 0x28000
CSET = int(os.environ.get("CSET", 0))

def gen_CD(a):
    ACC, AQ, AS, FB = 64, 112, 120, 128
    st = lambda k, i: a.stamp(i) if CSET == k else None
    a(f"""
    s_cmp_ge_u32 s2, {CD_GRID}
    s_cbranch_scc1 cd_exit
    s_load_dwordx2 s[20:21], s[0:1], 144     ; ws
    s_load_dwordx4 s[44:47], s[0:1], 96      ; w2, b2
    s_load_dwordx4 s[48:51], s[0:1], 128
    s_and_b32 s6, s2, 7
    s_lshr_b32 s7, s2, 3                     ; j
    s_and_b32 s4, s6, 3
    s_lshl_b32 s4, s4, 2
    s_and_b32 s12, s7, 3
    s_add_u32 s4, s4, s12                    ; lt = 4(k&3) + (j&3)
    s_lshr_b32 s5, s6, 2
    s_lshl_b32 s5, s5, 3
    s_lshr_b32 s13, s7, 2
    s_add_u32 s5, s5, s13
    s_lshl_b32 s52, s6, 2
    s_add_u32 s52, s52, s12                  ; lt64 = 4k + (j&3)
    s_mov_b32 s53, s13                       ; dt = j>>2
    v_lshrrev_b32 v3, 6, v0
    v_and_b32 v1, 63, v0
    v_lshlrev_b32 v4, 4, v1                  ; lane*16
    v_readfirstlane_b32 s26, v3              ; wave
    s_cmp_lt_u32 s26, 4
    s_cbranch_scc1 cd_compute
    s_sub_u32 s26, s26, 4
    v_lshrrev_b32 v5, 4, v1
    v_lshlrev_b32 v6, 2, v5
    v_and_b32 v7, 15, v1
    v_xor_b32 v6, v6, v7
    v_lshlrev_b32 v6, 4, v6
    v_lshl_add_u32 v5, v5, 12, v6
    s_mul_i32 s6, s5, {3*32*1024}
    s_add_u32 s6, s6, {WS_W1F}
    s_mul_i32 s7, s26, 3
    """)
    for i in range(3):
        a(f"""
        s_add_u32 s12, s7, {i}
        s_lshr_b32 s13, s12, 2
        s_and_b32 s12, s12, 3
        s_lshl_b32 s13, s13, 15
        s_lshl_b32 s12, s12, 10
        s_add_u32 s12, s12, s13
        s_add_u32 s{30+i}, s12, s6
        """)
    a(f"""
    s_lshl_b32 s12, s26, 16
    s_lshl_b32 s13, s4, 8
    s_add_u32 s12, s12, s13
    s_add_u32 s33, s12, {WS_X2T}
    s_mul_i32 s34, s26, 3072
    s_lshl_b32 s35, s26, 12
    s_add_u32 s35, s35, 12288
    s_lshl_b32 s12, s4, 7
    s_add_u32 s12, s12, {WS_GO2}
    v_mov_b32 v20, s12
    s_lshr_b32 s12, s52, 1
    s_lshl_b32 s12, s12, 7
    s_add_u32 s12, s12, {WS_GO2}
    v_mov_b32 v21, s12
    s_waitcnt lgkmcnt(0)
    """)
    srd(a, 8, 20, WS_SIZE)
    st(1, 0)
    def dmaC(c):
        slot = (c % C_NS) * C_SLOT
        a(f"s_and_b32 s37, {c}, 7\ns_lshl_b32 s38, s37, 18\ns_lshl_b32 s37, s37, 12\ns_add_u32 s38, s38, s33")
        for j in range(4):
            a(f"s_add_u32 m0, s35, {slot + 1024*j}")
            a(f"s_add_u32 s38, s38, 16384" if j else "s_nop 0")
            a(f"buffer_load_dwordx4 v5, s[8:11], s38 offen lds")
        for i in range(3):
            a(f"s_add_u32 m0, s34, {slot + 1024*i}")
            a(f"s_add_u32 s12, s{30+i}, s37")
            a(f"buffer_load_dwordx4 v4, s[8:11], s12 offen lds")
    a("s_cmp_ge_u32 s5, 15\ns_cbranch_scc1 cd_ld_noC")
    dmaC(0); dmaC(1)
    a("global_load_dword v22, v20, s[20:21] sc1\nglobal_load_dword v23, v21, s[20:21] sc1")
    for c in range(8):
        last = min(7, c + 1)
        n = 7 * (last - c) + (2 if c == 0 else 0)
        a(f"s_waitcnt vmcnt({n})")
        a("s_barrier")
        if c == 0: st(1, 1)
        if c + 2 <= 7: dmaC(c + 2)
    a("s_barrier")
    a("s_branch cd_ld2")
    a("cd_ld_noC:")
    a("global_load_dword v22, v20, s[20:21] sc1\nglobal_load_dword v23, v21, s[20:21] sc1\ns_waitcnt vmcnt(0)")
    a("cd_ld2:")
    st(1, 2)
    a(f"""
    s_and_b32 s27, s26, 1
    s_lshr_b32 s28, s26, 1
    s_and_b32 s6, s52, 3
    s_lshl_b32 s6, s6, 1
    s_add_u32 s36, s6, s53
    s_and_b32 s36, s36, {((8 - 8 // int(os.environ.get("D_ROT", 4))) & 7)}
    s_mul_i32 s36, s36, 11
    s_lshr_b32 s36, s36, 3
    v_lshrrev_b32 v5, 3, v1
    v_bfe_u32 v6, v1, 4, 1
    v_lshlrev_b32 v6, 2, v6
    v_and_b32 v7, 7, v1
    v_xor_b32 v6, v6, v7
    v_lshlrev_b32 v6, 4, v6
    v_lshl_add_u32 v5, v5, 10, v6
    v_lshrrev_b32 v9, 3, v1
    v_lshl_add_u32 v9, v9, 12, v6
    s_lshl_b32 s31, s26, 13
    """)
    def dmaD(c, fl=""):
        slot = (c % D_NS) * D_SLOT
        a(f"""
        s_add_u32 s34, s36, {c}
        s_sub_u32 s35, s34, 11
        s_cmp_ge_u32 s34, 11
        s_cselect_b32 s34, s35, s34
        s_mul_i32 s34, s34, s33
        s_add_u32 s34, s34, s30
        """)
        for i in range(8):
            a(f"s_add_u32 m0, s31, {slot + 1024*i}")
            a(f"s_add_u32 s34, s34, s32" if i else "s_nop 0")
            a(f"buffer_load_dwordx4 v8, s[8:11], s34 offen{fl} lds")
    a(f"""
    s_cmp_eq_u32 s28, 0
    s_cbranch_scc0 cd_hid
    s_mov_b32 s8, s44
    s_mov_b32 s9, s45
    s_mov_b32 s10, {1376*512*2}
    s_mov_b32 s11, 0x00020000
    s_lshl_b32 s30, s27, 16
    s_lshl_b32 s12, s53, 7
    s_add_u32 s30, s30, s12
    s_mov_b32 s32, 8192
    s_mov_b32 s33, 131072
    v_mov_b32 v8, v5
    """)
    srd(a, 40, 20, WS_SIZE)
    NPRE = 4
    a("s_barrier")
    dmaD(0)
    a(f"""
    s_lshl_b32 s12, s53, 6
    s_lshl_b32 s13, s27, 5
    s_add_u32 s12, s12, s13
    s_lshl_b32 s12, s12, 12
    s_lshl_b32 s13, s52, 7
    s_add_u32 s12, s12, s13
    s_add_u32 s12, s12, {WS_X2T}
    s_lshl_b32 s13, s27, 12
    s_add_u32 s13, s13, {D_X2}
    """)
    for i in range(4):
        a(f"s_add_u32 m0, s13, {1024*i}")
        a(f"s_add_u32 s14, s12, {8*4096*i}")
        a("buffer_load_dwordx4 v9, s[40:43], s14 offen lds")
    for c in range(1, NPRE): dmaD(c)
    for c in range(D_NCH):
        issued = max(NPRE - 1, min(D_NCH - 1, c + 2))
        n = 8 * (issued - c)
        if c == 0: n = 8 * (NPRE - 1)
        a(f"s_waitcnt vmcnt({n})")
        a("s_barrier")
        k = c + 3
        if c >= 1 and NPRE <= k < D_NCH: dmaD(k)
    a("s_endpgm")
    a(f"""
    cd_hid:
    s_mov_b32 s8, s20
    s_mov_b32 s9, s21
    s_mov_b32 s10, {WS_SIZE}
    s_mov_b32 s11, 0x00020000
    s_lshl_b32 s30, s52, 1
    s_add_u32 s30, s30, s27
    s_mul_i32 s30, s30, {HS*1024}
    s_add_u32 s30, s30, {WS_HID}
    s_mov_b32 s32, 1024
    s_mov_b32 s33, 8192
    v_mov_b32 v8, v4
    v_mov_b32 v24, {D_FLG}
    s_barrier
    """)
    st(1, 3)
    a(f"""
    s_cmp_eq_u32 s27, 0
    s_cbranch_scc0 cd_relay
    s_cmp_ge_u32 s5, 15
    s_cbranch_scc1 cd_noarr
    s_lshl_b32 s12, s4, 4
    v_mov_b32 v25, s12
    v_mov_b32 v26, 1
    s_mov_b64 exec, 1
    global_atomic_add v27, v25, v26, s[50:51] sc0 sc1
    s_waitcnt vmcnt(0)
    v_readfirstlane_b32 s12, v27
    s_cmp_eq_u32 s12, 14
    s_cbranch_scc0 cd_arr_done
    v_add_u32 v22, 1, v22
    global_store_dword v20, v22, s[20:21] sc1
    cd_arr_done:
    s_mov_b64 exec, -1
    cd_noarr:
    s_mov_b32 s60, 0
    cd_poll:
    global_load_dword v27, v21, s[20:21] sc1
    s_waitcnt vmcnt(0)
    v_cmp_eq_u32 vcc, v27, v23
    s_cbranch_vccz cd_go
    s_add_u32 s60, s60, 1
    s_and_b32 s61, s60, 31
    s_cbranch_scc1 cd_poll_next
    s_lshr_b32 s12, s52, 1
    s_lshl_b32 s12, s12, 4
    v_mov_b32 v25, s12
    global_load_dword v27, v25, s[50:51] sc1
    s_waitcnt vmcnt(0)
    v_cmp_ne_u32 vcc, 15, v27
    s_cbranch_vccz cd_go
    cd_poll_next:
    s_sleep 1
    s_cmp_lt_u32 s60, {SPIN_MAX}
    s_cbranch_scc1 cd_poll
    cd_go:
    v_mov_b32 v25, 1
    ds_write_b32 v24, v25
    s_branch cd_released
    cd_relay:
    ds_read_b32 v25, v24
    s_waitcnt lgkmcnt(0)
    v_readfirstlane_b32 s12, v25
    s_cmp_eq_u32 s12, 1
    s_cbranch_scc1 cd_released
    s_sleep 1
    s_branch cd_relay
    cd_released:
    """)
    st(1, 4)
    dmaD(0, " sc1"); dmaD(1, " sc1")
    for c in range(D_NCH):
        last = min(D_NCH - 1, c + 1)
        a(f"s_waitcnt vmcnt({8*(last - c)})")
        a("s_barrier")
        if c == 0: st(1, 5)
        if c + 2 < D_NCH: dmaD(c + 2, " sc1")
    a("s_endpgm")

    a(f"""
    cd_compute:
    v_lshlrev_b32 v8, 2, v0
    s_mul_i32 s12, s5, 384
    s_add_u32 s13, s12, {WS_CS}
    s_add_u32 s12, s12, {WS_B1P}
    v_and_b32 v6, 15, v1
    v_lshrrev_b32 v7, 2, v6                  ; r
    v_and_b32 v6, 3, v6                      ; c
    v_lshrrev_b32 v9, 5, v1                  ; g
    v_lshl_add_u32 v12, v9, 3, v7
    v_lshlrev_b32 v12, 8, v12
    v_bfe_u32 v13, v1, 4, 1
    v_lshlrev_b32 v13, 1, v13
    v_lshl_add_u32 v13, v3, 2, v13
    v_lshrrev_b32 v14, 1, v6
    v_add_u32 v13, v13, v14
    v_lshlrev_b32 v14, 2, v7
    v_xor_b32 v13, v13, v14
    v_lshl_add_u32 v12, v13, 4, v12
    v_and_b32 v6, 1, v6
    v_lshl_add_u32 v12, v6, 3, v12
    v_add_u32 v16, 12288, v12
    v_add_u32 v17, {2*C_SLOT}, v16
    v_mov_b32 v19, v4
    v_add_u32 v20, {2*C_SLOT}, v4
    v_mov_b32 v22, 0x3f803f80
    v_mov_b32 v23, 0x3f803f80
    v_add_u32 v9, {C_TAB}, v8
    v_lshrrev_b32 v14, 4, v0
    v_lshlrev_b32 v14, 7, v14
    v_and_b32 v21, 15, v0
    v_lshl_add_u32 v14, v21, 2, v14
    s_lshl_b32 s16, s53, 9
    s_add_u32 s16, s16, {WS_MODP + 160*128}
    v_lshlrev_b32 v15, 1, v0
    s_lshl_b32 s17, s53, 7
    v_add_u32 v15, s17, v15
    v_min_u32 v15, 1022, v15
    v_add_u32 v18, {D_TAB}, v8
    v_mov_b32 v24, 0
    v_mov_b32 v25, {D_FLG}
    ds_write_b32 v25, v24
    s_waitcnt lgkmcnt(0)
    """)
    srd(a, 8, 20, WS_SIZE)
    st(0, 0)
    a(f"""
    buffer_load_dword v10, v8, s[8:11], s13 offen
    buffer_load_dword v11, v8, s[8:11], s12 offen
    buffer_load_dword v14, v14, s[8:11], s16 offen
    global_load_ushort v15, v15, s[46:47]
    """)
    def tables():
        a(f"""
        s_waitcnt vmcnt(0)
        v_lshlrev_b32 v15, 16, v15
        v_cmp_gt_u32 vcc, 96, v0
        s_and_saveexec_b64 s[14:15], vcc
        ds_write_b32 v9, v10
        ds_write_b32 v9, v11 offset:384
        s_mov_b64 exec, s[14:15]
        v_cmp_gt_u32 vcc, 64, v0
        s_and_saveexec_b64 s[14:15], vcc
        ds_write_b32 v18, v14
        ds_write_b32 v18, v15 offset:256
        s_mov_b64 exec, s[14:15]
        """)
    a("s_cmp_ge_u32 s5, 15\ns_cbranch_scc0 cd_doC")
    tables()
    a("s_waitcnt lgkmcnt(0)\ns_branch cd_cmp2\ncd_doC:")
    for r in range(ACC, FB): a(f"v_mov_b32 v{r}, 0")
    T = LdsTracker(a)
    def read_list(c, s):
        slot = c % C_NS
        grp = slot // 2; so = (slot % 2) * C_SLOT
        buf = (4 * c + s) % 3
        fb = FB + 16 * buf
        L = [(f"ds_read_b64_tr_b16 v[{fb+12}:{fb+13}], v{16+grp} offset:{so + s*4096}", [f"x{buf}"]),
             (f"ds_read_b64_tr_b16 v[{fb+14}:{fb+15}], v{16+grp} offset:{so + s*4096 + 1024}", [f"x{buf}"])]
        for b in range(3):
            L.append((f"ds_read_b128 v[{fb+4*b}:{fb+4*b+3}], v{19+grp} offset:{so + (b*4+s)*1024}", [f"w{buf}{b}"]))
        return L
    def mfmas(c, s, rd=()):
        rd = list(rd)
        def pop(n):
            for _ in range(n):
                if rd: T.issue(*rd.pop(0))
        buf = (4 * c + s) % 3; fb = FB + 16 * buf
        T.need([f"x{buf}", f"w{buf}0", f"w{buf}1", f"w{buf}2"])
        per = (len(rd) + 2) // 3
        for b in range(3):
            a(f"v_mfma_f32_32x32x16_bf16 v[{ACC+16*b}:{ACC+16*b+15}], v[{fb+4*b}:{fb+4*b+3}], v[{fb+12}:{fb+15}], v[{ACC+16*b}:{ACC+16*b+15}]")
            pop(per)
            if b == 0:
                a(f"v_mfma_f32_4x4x4_16b_bf16 v[{AQ}:{AQ+3}], v[{fb+12}:{fb+13}], v[{fb+12}:{fb+13}], v[{AQ}:{AQ+3}]")
                a(f"v_mfma_f32_4x4x4_16b_bf16 v[{AS}:{AS+3}], v[22:23], v[{fb+12}:{fb+13}], v[{AS}:{AS+3}]")
            if b == 1:
                a(f"v_mfma_f32_4x4x4_16b_bf16 v[{AQ+4}:{AQ+7}], v[{fb+14}:{fb+15}], v[{fb+14}:{fb+15}], v[{AQ+4}:{AQ+7}]")
                a(f"v_mfma_f32_4x4x4_16b_bf16 v[{AS+4}:{AS+7}], v[22:23], v[{fb+14}:{fb+15}], v[{AS+4}:{AS+7}]")
        pop(99)
    for c in range(8):
        if c == 1:
            tables()
            T.issued += 4
        T.drain()
        a("s_barrier")
        if c == 0: st(0, 1)
        if c > 0: mfmas(c - 1, 3, read_list(c, 0) + read_list(c, 1))
        else:
            for x in read_list(c, 0) + read_list(c, 1): T.issue(*x)
        mfmas(c, 0, read_list(c, 2))
        mfmas(c, 1, read_list(c, 3))
        mfmas(c, 2)
    T.drain()
    a("s_barrier")
    mfmas(7, 3)
    st(0, 2)
    a(f"""
    v_and_b32 v6, 3, v1
    v_cmp_eq_u32 s[12:13], 1, v6
    v_cmp_eq_u32 s[14:15], 2, v6
    v_cmp_eq_u32 s[16:17], 3, v6
    v_lshrrev_b32 v6, 5, v1
    v_lshlrev_b32 v6, 4, v6
    v_add_u32 v6, {C_TAB}, v6
    """)
    for q in range(4):
        a(f"ds_read_b128 v[{28+4*q}:{31+4*q}], v6 offset:{(8*q)*4}")
        a(f"ds_read_b128 v[{44+4*q}:{47+4*q}], v6 offset:{384 + (8*q)*4}")
    a(f"""
    v_add_f32 v{AQ}, v{AQ}, v{AQ+4}
    v_add_f32 v{AQ+1}, v{AQ+1}, v{AQ+5}
    v_add_f32 v{AQ+2}, v{AQ+2}, v{AQ+6}
    v_add_f32 v{AQ+3}, v{AQ+3}, v{AQ+7}
    v_add_f32 v{AS}, v{AS}, v{AS+4}
    v_cndmask_b32 v{AQ}, v{AQ}, v{AQ+1}, s[12:13]
    v_cndmask_b32 v{AQ}, v{AQ}, v{AQ+2}, s[14:15]
    v_cndmask_b32 v{AQ}, v{AQ}, v{AQ+3}, s[16:17]
    v_mov_b32 v25, v{AS}
    v_mov_b32 v24, v{AQ}
    s_nop 1
    v_permlane32_swap_b32 v25, v{AS}
    v_permlane32_swap_b32 v24, v{AQ}
    s_nop 1
    v_add_f32 v25, v25, v{AS}
    v_add_f32 v24, v24, v{AQ}
    v_mul_f32 v25, {fx(1.0/512)}, v25
    v_mul_f32 v24, {fx(1.0/512)}, v24
    v_fma_f32 v24, -v25, v25, v24
    v_max_f32 v24, 0, v24
    v_add_f32 v24, {fx(1e-5)}, v24
    v_rsq_f32 v24, v24                       ; r
    s_lshl_b32 s12, s4, 2
    v_mul_f32 v26, -v25, v24                 ; -mean*r
    s_add_u32 s12, s12, s26
    s_mul_i32 s12, s12, {HS}
    v_mov_b32 v25, v24
    v_mov_b32 v27, v26
    s_mul_i32 s13, s5, 6
    s_add_u32 s12, s12, s13
    s_lshl_b32 s12, s12, 10
    s_add_u32 s12, s12, {WS_HID}
    """)
    for b in range(3):
        cs, bb = (28, 44) if b % 2 == 0 else (144, 160)
        a("s_waitcnt lgkmcnt(0)")
        if b < 2:
            cs2, bb2 = (144, 160) if b % 2 == 0 else (28, 44)
            for q in range(4):
                a(f"ds_read_b128 v[{cs2+4*q}:{cs2+4*q+3}], v6 offset:{(32*(b+1) + 8*q)*4}")
                a(f"ds_read_b128 v[{bb2+4*q}:{bb2+4*q+3}], v6 offset:{384 + (32*(b+1) + 8*q)*4}")
        for j in range(8):
            a(f"v_pk_fma_f32 v[{bb+2*j}:{bb+2*j+1}], v[26:27], v[{cs+2*j}:{cs+2*j+1}], v[{bb+2*j}:{bb+2*j+1}]")
        for j in range(8):
            a(f"v_pk_fma_f32 v[{bb+2*j}:{bb+2*j+1}], v[24:25], v[{ACC+16*b+2*j}:{ACC+16*b+2*j+1}], v[{bb+2*j}:{bb+2*j+1}]")
        for j in range(16): a(f"v_max_f32 v{bb+j}, 0, v{bb+j}")
        for j in range(8): a(f"v_pk_mul_f32 v[{bb+2*j}:{bb+2*j+1}], v[{bb+2*j}:{bb+2*j+1}], v[{bb+2*j}:{bb+2*j+1}]")
        o = ACC + 16 * b
        for j in range(8): a(f"v_cvt_pk_bf16_f32 v{o+j}, v{bb+2*j}, v{bb+2*j+1}")
        a("s_nop 1")
        a(f"v_permlane32_swap_b32 v{o}, v{o+2}")
        a(f"v_permlane32_swap_b32 v{o+1}, v{o+3}")
        a(f"v_permlane32_swap_b32 v{o+4}, v{o+6}")
        a(f"v_permlane32_swap_b32 v{o+5}, v{o+7}")
        a(f"buffer_store_dwordx4 v[{o}:{o+3}], v4, s[8:11], s12 offen sc1")
        a(f"buffer_store_dwordx4 v[{o+4}:{o+7}], v4, s[8:11], s12 offen offset:1024 sc1")
        a("s_add_u32 s12, s12, 2048")
        if b == 0:
            a(f"""
            s_cmp_eq_u32 s5, 14
            s_cbranch_scc0 cd_more
            s_waitcnt lgkmcnt(0)
            v_mov_b32 v28, 0
            v_mov_b32 v29, 0
            v_mov_b32 v30, 0
            v_mov_b32 v31, 0
            buffer_store_dwordx4 v[28:31], v4, s[8:11], s12 offen sc1
            buffer_store_dwordx4 v[28:31], v4, s[8:11], s12 offen offset:1024 sc1
            s_branch cd_cmp2
            cd_more:
            """)
    ACC, FB = 64, 80
    a(f"""
    cd_cmp2:
    s_and_b32 s27, s26, 1                    ; wm
    s_lshr_b32 s28, s26, 1                   ; wn
    v_and_b32 v6, 15, v1
    v_lshrrev_b32 v7, 2, v6                  ; r
    v_and_b32 v6, 3, v6                      ; c
    v_lshrrev_b32 v12, 5, v1                 ; g
    v_lshl_add_u32 v12, v12, 3, v7
    v_lshlrev_b32 v12, 7, v12
    v_bfe_u32 v13, v1, 4, 1
    v_lshlrev_b32 v13, 1, v13
    s_lshl_b32 s12, s27, 2
    v_add_u32 v13, s12, v13
    v_lshrrev_b32 v16, 1, v6
    v_add_u32 v13, v13, v16
    v_lshrrev_b32 v7, 1, v7
    v_lshlrev_b32 v7, 2, v7
    v_xor_b32 v13, v13, v7
    v_lshl_add_u32 v12, v13, 4, v12
    v_and_b32 v6, 1, v6
    v_lshl_add_u32 v16, v6, 3, v12
    v_add_u32 v17, {2*D_SLOT}, v16
    s_lshl_b32 s12, s28, 13
    s_add_u32 s12, s12, 16384
    v_add_u32 v18, s12, v4
    v_add_u32 v19, {2*D_SLOT}, v18
    s_waitcnt vmcnt(0)
    """)
    st(0, 3)
    a("s_barrier")
    for r in range(16): a(f"v_mov_b32 v{ACC+r}, 0")
    T = LdsTracker(a)
    NB = 5
    def reads(c, s):
        slot = c % D_NS
        grp = slot // 2; so = (slot % 2) * D_SLOT
        g = (8 * c + s) % NB
        fb = FB + 8 * g
        T.issue(f"ds_read_b64_tr_b16 v[{fb}:{fb+1}], v{16+grp} offset:{so + s*2048}", [f"a{g}"])
        T.issue(f"ds_read_b64_tr_b16 v[{fb+2}:{fb+3}], v{16+grp} offset:{so + s*2048 + 512}", [f"a{g}"])
        T.issue(f"ds_read_b128 v[{fb+4}:{fb+7}], v{18+grp} offset:{so + s*1024}", [f"b{g}"])
    def mfma(c, s):
        g = (8 * c + s) % NB; fb = FB + 8 * g
        T.need([f"a{g}", f"b{g}"])
        a(f"v_mfma_f32_32x32x16_bf16 v[{ACC}:{ACC+15}], v[{fb}:{fb+3}], v[{fb+4}:{fb+7}], v[{ACC}:{ACC+15}]")
    def epi_prepare():
        a(f"""
        v_and_b32 v6, 15, v1
        v_lshrrev_b32 v7, 2, v6
        v_and_b32 v6, 3, v6
        v_lshrrev_b32 v12, 5, v1                 ; h
        v_lshl_add_u32 v13, v12, 2, v7
        s_lshl_b32 s12, s27, 5
        v_add_u32 v13, s12, v13
        v_lshlrev_b32 v13, 7, v13
        v_bfe_u32 v14, v1, 4, 1
        v_lshlrev_b32 v14, 1, v14
        s_lshl_b32 s12, s28, 2
        v_add_u32 v14, s12, v14
        v_lshrrev_b32 v15, 1, v6
        v_add_u32 v14, v14, v15
        v_lshrrev_b32 v7, 1, v7
        v_lshlrev_b32 v7, 2, v7
        v_xor_b32 v14, v14, v7
        v_lshl_add_u32 v13, v14, 4, v13
        v_and_b32 v6, 1, v6
        v_lshl_add_u32 v13, v6, 3, v13
        v_add_u32 v13, {D_X2}, v13
        v_lshlrev_b32 v14, 4, v12
        s_lshl_b32 s12, s27, 7
        s_add_u32 s12, s12, {D_TAB}
        v_add_u32 v14, s12, v14
        """)
        for q in range(4):
            T.issue(f"ds_read_b64_tr_b16 v[{24+2*q}:{25+2*q}], v13 offset:{1024*q}", ["epi"])
            T.issue(f"ds_read_b128 v[{32+4*q}:{35+4*q}], v14 offset:{32*q}", ["epi"])
            T.issue(f"ds_read_b128 v[{48+4*q}:{51+4*q}], v14 offset:{256+32*q}", ["epi"])
        a(f"""
        v_and_b32 v5, 31, v1
        v_lshlrev_b32 v20, 10, v5
        v_lshl_add_u32 v20, v12, 4, v20
        s_lshl_b32 s12, s52, 1
        s_add_u32 s12, s12, s28
        s_lshl_b32 s12, s12, 15
        s_lshl_b32 s13, s53, 1
        s_add_u32 s13, s13, s27
        s_lshl_b32 s13, s13, 6
        s_add_u32 s12, s12, s13
        v_add_u32 v20, s12, v20
        """)
    def epi_finish():
        T.need(["epi"])
        for q in range(4):
            a(f"v_lshlrev_b32 v8, 16, v{24+2*q}")
            a(f"v_and_b32 v9, 0xffff0000, v{24+2*q}")
            a(f"v_lshlrev_b32 v10, 16, v{25+2*q}")
            a(f"v_and_b32 v11, 0xffff0000, v{25+2*q}")
            for r in range(4): a(f"v_fma_f32 v{48+4*q+r}, v{48+4*q+r}, v{32+4*q+r}, v{8+r}")
    EPC = int(os.environ.get("D_EPC", 9))
    for c in range(D_NCH):
        T.drain()
        a("s_barrier")
        if c == 0: st(0, 4)
        reads(c, 0); reads(c, 1); reads(c, 2); reads(c, 3)
        if c > 0: mfma(c - 1, 7)
        for s in range(7):
            if s + 4 < 8: reads(c, s + 4)
            mfma(c, s)
            if c == EPC and s == 1: epi_prepare()
            if c == EPC + 1 and s == 2: epi_finish()
    mfma(D_NCH - 1, 7)
    st(0, 5)
    a("s_nop 7\ns_nop 3")
    for q in range(4):
        for r in range(4): a(f"v_fma_f32 v{48+4*q+r}, v{ACC+4*q+r}, v{32+4*q+r}, v{48+4*q+r}")
        a(f"v_cvt_pk_bf16_f32 v{FB+2*q}, v{48+4*q}, v{49+4*q}")
        a(f"v_cvt_pk_bf16_f32 v{FB+2*q+1}, v{50+4*q}, v{51+4*q}")
    a(f"""
    s_nop 1
    v_permlane32_swap_b32 v{FB}, v{FB+2}
    v_permlane32_swap_b32 v{FB+1}, v{FB+3}
    v_permlane32_swap_b32 v{FB+4}, v{FB+6}
    v_permlane32_swap_b32 v{FB+5}, v{FB+7}
    global_store_dwordx4 v20, v[{FB}:{FB+3}], s[48:49]{OUTSC}
    global_store_dwordx4 v20, v[{FB+4}:{FB+7}], s[48:49] offset:32{OUTSC}
    cd_exit:
    s_endpgm
    """)

if __name__ == "__main__":
    ks = [("convab_kernel", gen_AB, 128, AB_GRID, 512, AB_LDS),
          ("mlp_kernel", gen_CD, 176, CD_GRID, 512, CD_LDS)]
    s = build(ks)
    path = sys.argv[1] if len(sys.argv) > 1 else "out.s"
    open(path, "w").write(s)
    print("wrote", path, len(s))
```

```python
import sys, os
os.environ["MODP"] = "1"
import g5
from g5 import *
from g3b import HIDSC, OUTSC, HS

CD_GRID = 256
C_SLOT, C_NS = 28672, 4
C_TAB = C_NS * C_SLOT
D_NCH = 11
NW = int(os.environ.get("CD_NW", 6)); NH = 3
D_HID = NW * 16384
D_X2 = D_HID + NH * 16384
D_TAB = D_X2 + 8192
D_FLG = D_TAB + 512
CD_LDS = D_FLG + 16
WS_GO2 = 0x28000
CSET = int(os.environ.get("CSET", 0))
NODMA = bool(os.environ.get("CD_NODMA"))

def gen_CD(a):
    ACC, AQ, AS, FB = 64, 112, 120, 128
    st = lambda k, i: a.stamp(i) if CSET == k else None
    a(f"""
    s_cmp_ge_u32 s2, {CD_GRID}
    s_cbranch_scc1 cd_exit
    s_load_dwordx2 s[20:21], s[0:1], 144     ; ws
    s_load_dwordx4 s[44:47], s[0:1], 96      ; w2, b2
    s_load_dwordx4 s[48:51], s[0:1], 128
    s_and_b32 s6, s2, 7
    s_lshr_b32 s7, s2, 3                     ; j
    s_and_b32 s4, s6, 3
    s_lshl_b32 s4, s4, 2
    s_and_b32 s12, s7, 3
    s_add_u32 s4, s4, s12                    ; lt = 4(k&3) + (j&3)
    s_lshr_b32 s5, s6, 2
    s_lshl_b32 s5, s5, 3
    s_lshr_b32 s13, s7, 2
    s_add_u32 s5, s5, s13
    s_lshl_b32 s52, s6, 2
    s_add_u32 s52, s52, s12                  ; lt64 = 4k + (j&3)
    s_mov_b32 s53, s13                       ; dt = j>>2
    v_lshrrev_b32 v3, 6, v0
    v_and_b32 v1, 63, v0
    v_lshlrev_b32 v4, 4, v1                  ; lane*16
    v_readfirstlane_b32 s26, v3              ; wave
    s_cmp_lt_u32 s26, 4
    s_cbranch_scc1 cd_compute
    s_sub_u32 s26, s26, 4
    v_lshrrev_b32 v5, 4, v1
    v_lshlrev_b32 v6, 2, v5
    v_and_b32 v7, 15, v1
    v_xor_b32 v6, v6, v7
    v_lshlrev_b32 v6, 4, v6
    v_lshl_add_u32 v5, v5, 12, v6
    s_mul_i32 s6, s5, {3*32*1024}
    s_add_u32 s6, s6, {WS_W1F}
    s_mul_i32 s7, s26, 3
    """)
    for i in range(3):
        a(f"""
        s_add_u32 s12, s7, {i}
        s_lshr_b32 s13, s12, 2
        s_and_b32 s12, s12, 3
        s_lshl_b32 s13, s13, 15
        s_lshl_b32 s12, s12, 10
        s_add_u32 s12, s12, s13
        s_add_u32 s{30+i}, s12, s6
        """)
    a(f"""
    s_lshl_b32 s12, s26, 16
    s_lshl_b32 s13, s4, 8
    s_add_u32 s12, s12, s13
    s_add_u32 s33, s12, {WS_X2T}
    s_mul_i32 s34, s26, 3072
    s_lshl_b32 s35, s26, 12
    s_add_u32 s35, s35, 12288
    s_lshl_b32 s12, s4, 7
    s_add_u32 s12, s12, {WS_GO2}
    v_mov_b32 v20, s12
    s_lshr_b32 s12, s52, 1
    s_lshl_b32 s12, s12, 7
    s_add_u32 s12, s12, {WS_GO2}
    v_mov_b32 v21, s12
    s_waitcnt lgkmcnt(0)
    """)
    srd(a, 8, 20, WS_SIZE)
    st(1, 0)
    def dmaC(c):
        slot = (c % C_NS) * C_SLOT
        a(f"s_and_b32 s37, {c}, 7\ns_lshl_b32 s38, s37, 18\ns_lshl_b32 s37, s37, 12\ns_add_u32 s38, s38, s33")
        for j in range(4):
            a(f"s_add_u32 m0, s35, {slot + 1024*j}")
            a(f"s_add_u32 s38, s38, 16384" if j else "s_nop 0")
            a(f"buffer_load_dwordx4 v5, s[8:11], s38 offen lds")
        for i in range(3):
            a(f"s_add_u32 m0, s34, {slot + 1024*i}")
            a(f"s_add_u32 s12, s{30+i}, s37")
            a(f"buffer_load_dwordx4 v4, s[8:11], s12 offen lds")
    a("s_cmp_ge_u32 s5, 15\ns_cbranch_scc1 cd_ld_noC")
    dmaC(0); dmaC(1)
    a("global_load_dword v22, v20, s[20:21] sc1\nglobal_load_dword v23, v21, s[20:21] sc1")
    for c in range(8):
        last = min(7, c + 1)
        n = 7 * (last - c) + (2 if c == 0 else 0)
        a(f"s_waitcnt vmcnt({n})")
        a("s_barrier")
        if c == 0: st(1, 1)
        if c + 2 <= 7: dmaC(c + 2)
    a("s_barrier")
    a("s_branch cd_ld2")
    a("cd_ld_noC:")
    a("global_load_dword v22, v20, s[20:21] sc1\nglobal_load_dword v23, v21, s[20:21] sc1\ns_waitcnt vmcnt(0)")
    a("cd_ld2:")
    st(1, 2)
    a(f"""
    s_and_b32 s27, s26, 1
    s_lshr_b32 s28, s26, 1
    s_and_b32 s6, s52, 3
    s_lshl_b32 s6, s6, 1
    s_add_u32 s36, s6, s53
    s_and_b32 s36, s36, {((8 - 8 // int(os.environ.get("D_ROT", 4))) & 7)}
    s_mul_i32 s36, s36, 11
    s_lshr_b32 s36, s36, 3
    v_lshrrev_b32 v5, 3, v1
    v_bfe_u32 v6, v1, 4, 1
    v_lshlrev_b32 v6, 2, v6
    v_and_b32 v7, 7, v1
    v_xor_b32 v6, v6, v7
    v_lshlrev_b32 v6, 4, v6
    v_lshl_add_u32 v5, v5, 10, v6
    v_lshrrev_b32 v9, 3, v1
    v_lshl_add_u32 v9, v9, 12, v6
    s_lshl_b32 s31, s27, 13
    """)
    def dmaD(c, fl=""):
        slot = (c % NW) * 16384 if not fl else D_HID + (c % NH) * 16384
        a(f"""
        s_add_u32 s34, s36, {c}
        s_sub_u32 s35, s34, 11
        s_cmp_ge_u32 s34, 11
        s_cselect_b32 s34, s35, s34
        s_mul_i32 s34, s34, s33
        s_add_u32 s34, s34, s30
        """)
        for i in range(8):
            a(f"s_add_u32 m0, s31, {slot + 1024*i}")
            a(f"s_add_u32 s34, s34, s32" if i else "s_nop 0")
            a(f"buffer_load_dwordx4 v8, s[8:11], s34 offen{fl} lds")
    a(f"""
    s_cmp_eq_u32 s28, 0
    s_cbranch_scc0 cd_hid
    s_mov_b32 s8, s44
    s_mov_b32 s9, s45
    s_mov_b32 s10, {1376*512*2}
    s_mov_b32 s11, 0x00020000
    s_lshl_b32 s30, s27, 16
    s_lshl_b32 s12, s53, 7
    s_add_u32 s30, s30, s12
    s_mov_b32 s32, 8192
    s_mov_b32 s33, 131072
    v_mov_b32 v8, v5
    """)
    srd(a, 40, 20, WS_SIZE)
    NPRE = NW
    W2LATE = os.environ.get("W2LATE") == "1"
    if W2LATE: a("s_barrier")
    dmaD(0)
    a(f"""
    s_lshl_b32 s12, s53, 6
    s_lshl_b32 s13, s27, 5
    s_add_u32 s12, s12, s13
    s_lshl_b32 s12, s12, 12
    s_lshl_b32 s13, s52, 7
    s_add_u32 s12, s12, s13
    s_add_u32 s12, s12, {WS_X2T}
    s_lshl_b32 s13, s27, 12
    s_add_u32 s13, s13, {D_X2}
    """)
    for i in range(4):
        a(f"s_add_u32 m0, s13, {1024*i}")
        a(f"s_add_u32 s14, s12, {8*4096*i}")
        a("buffer_load_dwordx4 v9, s[40:43], s14 offen lds")
    for c in range(1, NPRE): dmaD(c)
    if not W2LATE:
        a(f"s_waitcnt vmcnt({8*(NPRE-1)})")
        a("s_barrier")
    issued = NPRE - 1
    for c in range(D_NCH):
        a(f"s_waitcnt vmcnt({8*(issued - c)})")
        a("s_barrier")
        k = c + NPRE - 1
        if c >= 1 and k < D_NCH and not NODMA:
            dmaD(k); issued = k
    a("s_endpgm")
    a(f"""
    cd_hid:
    s_mov_b32 s8, s20
    s_mov_b32 s9, s21
    s_mov_b32 s10, {WS_SIZE}
    s_mov_b32 s11, 0x00020000
    s_lshl_b32 s30, s52, 1
    s_add_u32 s30, s30, s27
    s_mul_i32 s30, s30, {HS*1024}
    s_add_u32 s30, s30, {WS_HID}
    s_mov_b32 s32, 1024
    s_mov_b32 s33, 8192
    v_mov_b32 v8, v4
    v_mov_b32 v24, {D_FLG}
    s_barrier
    """)
    st(1, 3)
    a(f"""
    s_cmp_eq_u32 s27, 0
    s_cbranch_scc0 cd_relay
    s_cmp_ge_u32 s5, 15
    s_cbranch_scc1 cd_noarr
    s_lshl_b32 s12, s4, 4
    v_mov_b32 v25, s12
    v_mov_b32 v26, 1
    s_mov_b64 exec, 1
    global_atomic_add v27, v25, v26, s[50:51] sc0 sc1
    s_waitcnt vmcnt(0)
    v_readfirstlane_b32 s12, v27
    s_cmp_eq_u32 s12, 14
    s_cbranch_scc0 cd_arr_done
    v_add_u32 v22, 1, v22
    global_store_dword v20, v22, s[20:21] sc1
    cd_arr_done:
    s_mov_b64 exec, -1
    cd_noarr:
    s_mov_b32 s60, 0
    cd_poll:
    global_load_dword v27, v21, s[20:21] sc1
    s_waitcnt vmcnt(0)
    v_cmp_eq_u32 vcc, v27, v23
    s_cbranch_vccz cd_go
    s_add_u32 s60, s60, 1
    s_and_b32 s61, s60, 31
    s_cbranch_scc1 cd_poll_next
    s_lshr_b32 s12, s52, 1
    s_lshl_b32 s12, s12, 4
    v_mov_b32 v25, s12
    global_load_dword v27, v25, s[50:51] sc1
    s_waitcnt vmcnt(0)
    v_cmp_ne_u32 vcc, 15, v27
    s_cbranch_vccz cd_go
    cd_poll_next:
    s_sleep 1
    s_cmp_lt_u32 s60, {SPIN_MAX}
    s_cbranch_scc1 cd_poll
    cd_go:
    v_mov_b32 v25, 1
    ds_write_b32 v24, v25
    s_branch cd_released
    cd_relay:
    ds_read_b32 v25, v24
    s_waitcnt lgkmcnt(0)
    v_readfirstlane_b32 s12, v25
    s_cmp_eq_u32 s12, 1
    s_cbranch_scc1 cd_released
    s_sleep 1
    s_branch cd_relay
    cd_released:
    """)
    st(1, 4)
    dmaD(0, " sc1"); dmaD(1, " sc1")
    for c in range(D_NCH):
        last = min(D_NCH - 1, c + 1)
        a(f"s_waitcnt vmcnt({8*(last - c)})")
        a("s_barrier")
        if c == 0: st(1, 5)
        if c + 2 < D_NCH and not NODMA: dmaD(c + 2, " sc1")
    a("s_endpgm")

    a(f"""
    cd_compute:
    v_lshlrev_b32 v8, 2, v0
    s_mul_i32 s12, s5, 384
    s_add_u32 s13, s12, {WS_CS}
    s_add_u32 s12, s12, {WS_B1P}
    v_and_b32 v6, 15, v1
    v_lshrrev_b32 v7, 2, v6                  ; r
    v_and_b32 v6, 3, v6                      ; c
    v_lshrrev_b32 v9, 5, v1                  ; g
    v_lshl_add_u32 v12, v9, 3, v7
    v_lshlrev_b32 v12, 8, v12
    v_bfe_u32 v13, v1, 4, 1
    v_lshlrev_b32 v13, 1, v13
    v_lshl_add_u32 v13, v3, 2, v13
    v_lshrrev_b32 v14, 1, v6
    v_add_u32 v13, v13, v14
    v_lshlrev_b32 v14, 2, v7
    v_xor_b32 v13, v13, v14
    v_lshl_add_u32 v12, v13, 4, v12
    v_and_b32 v6, 1, v6
    v_lshl_add_u32 v12, v6, 3, v12
    v_add_u32 v16, 12288, v12
    v_add_u32 v17, {2*C_SLOT}, v16
    v_mov_b32 v19, v4
    v_add_u32 v20, {2*C_SLOT}, v4
    v_mov_b32 v22, 0x3f803f80
    v_mov_b32 v23, 0x3f803f80
    v_add_u32 v9, {C_TAB}, v8
    v_lshrrev_b32 v14, 4, v0
    v_lshlrev_b32 v14, 7, v14
    v_and_b32 v21, 15, v0
    v_lshl_add_u32 v14, v21, 2, v14
    s_lshl_b32 s16, s53, 9
    s_add_u32 s16, s16, {WS_MODP + 160*128}
    v_lshlrev_b32 v15, 1, v0
    s_lshl_b32 s17, s53, 7
    v_add_u32 v15, s17, v15
    v_min_u32 v15, 1022, v15
    v_add_u32 v18, {D_TAB}, v8
    v_mov_b32 v24, 0
    v_mov_b32 v25, {D_FLG}
    ds_write_b32 v25, v24
    s_waitcnt lgkmcnt(0)
    """)
    srd(a, 8, 20, WS_SIZE)
    st(0, 0)
    a(f"""
    buffer_load_dword v10, v8, s[8:11], s13 offen
    buffer_load_dword v11, v8, s[8:11], s12 offen
    buffer_load_dword v14, v14, s[8:11], s16 offen
    global_load_ushort v15, v15, s[46:47]
    """)
    def tables():
        a(f"""
        s_waitcnt vmcnt(0)
        v_lshlrev_b32 v15, 16, v15
        v_cmp_gt_u32 vcc, 96, v0
        s_and_saveexec_b64 s[14:15], vcc
        ds_write_b32 v9, v10
        ds_write_b32 v9, v11 offset:384
        s_mov_b64 exec, s[14:15]
        v_cmp_gt_u32 vcc, 64, v0
        s_and_saveexec_b64 s[14:15], vcc
        ds_write_b32 v18, v14
        ds_write_b32 v18, v15 offset:256
        s_mov_b64 exec, s[14:15]
        """)
    a("s_cmp_ge_u32 s5, 15\ns_cbranch_scc0 cd_doC")
    tables()
    a("s_waitcnt lgkmcnt(0)\ns_branch cd_cmp2\ncd_doC:")
    for r in range(ACC, FB): a(f"v_mov_b32 v{r}, 0")
    T = LdsTracker(a)
    def read_list(c, s):
        slot = c % C_NS
        grp = slot // 2; so = (slot % 2) * C_SLOT
        buf = (4 * c + s) % 3
        fb = FB + 16 * buf
        L = [(f"ds_read_b64_tr_b16 v[{fb+12}:{fb+13}], v{16+grp} offset:{so + s*4096}", [f"x{buf}"]),
             (f"ds_read_b64_tr_b16 v[{fb+14}:{fb+15}], v{16+grp} offset:{so + s*4096 + 1024}", [f"x{buf}"])]
        for b in range(3):
            L.append((f"ds_read_b128 v[{fb+4*b}:{fb+4*b+3}], v{19+grp} offset:{so + (b*4+s)*1024}", [f"w{buf}{b}"]))
        return L
    def mfmas(c, s, rd=()):
        rd = list(rd)
        def pop(n):
            for _ in range(n):
                if rd: T.issue(*rd.pop(0))
        buf = (4 * c + s) % 3; fb = FB + 16 * buf
        T.need([f"x{buf}", f"w{buf}0", f"w{buf}1", f"w{buf}2"])
        per = (len(rd) + 2) // 3
        for b in range(3):
            a(f"v_mfma_f32_32x32x16_bf16 v[{ACC+16*b}:{ACC+16*b+15}], v[{fb+4*b}:{fb+4*b+3}], v[{fb+12}:{fb+15}], v[{ACC+16*b}:{ACC+16*b+15}]")
            pop(per)
            if b == 0:
                a(f"v_mfma_f32_4x4x4_16b_bf16 v[{AQ}:{AQ+3}], v[{fb+12}:{fb+13}], v[{fb+12}:{fb+13}], v[{AQ}:{AQ+3}]")
                a(f"v_mfma_f32_4x4x4_16b_bf16 v[{AS}:{AS+3}], v[22:23], v[{fb+12}:{fb+13}], v[{AS}:{AS+3}]")
            if b == 1:
                a(f"v_mfma_f32_4x4x4_16b_bf16 v[{AQ+4}:{AQ+7}], v[{fb+14}:{fb+15}], v[{fb+14}:{fb+15}], v[{AQ+4}:{AQ+7}]")
                a(f"v_mfma_f32_4x4x4_16b_bf16 v[{AS+4}:{AS+7}], v[22:23], v[{fb+14}:{fb+15}], v[{AS+4}:{AS+7}]")
        pop(99)
    for c in range(8):
        if c == 1:
            tables()
            T.issued += 4
        T.drain()
        a("s_barrier")
        if c == 0: st(0, 1)
        if c > 0: mfmas(c - 1, 3, read_list(c, 0) + read_list(c, 1))
        else:
            for x in read_list(c, 0) + read_list(c, 1): T.issue(*x)
        mfmas(c, 0, read_list(c, 2))
        mfmas(c, 1, read_list(c, 3))
        mfmas(c, 2)
    T.drain()
    a("s_barrier")
    mfmas(7, 3)
    st(0, 2)
    a(f"""
    v_and_b32 v6, 3, v1
    v_cmp_eq_u32 s[12:13], 1, v6
    v_cmp_eq_u32 s[14:15], 2, v6
    v_cmp_eq_u32 s[16:17], 3, v6
    v_lshrrev_b32 v6, 5, v1
    v_lshlrev_b32 v6, 4, v6
    v_add_u32 v6, {C_TAB}, v6
    """)
    for q in range(4):
        a(f"ds_read_b128 v[{28+4*q}:{31+4*q}], v6 offset:{(8*q)*4}")
        a(f"ds_read_b128 v[{44+4*q}:{47+4*q}], v6 offset:{384 + (8*q)*4}")
    a(f"""
    v_add_f32 v{AQ}, v{AQ}, v{AQ+4}
    v_add_f32 v{AQ+1}, v{AQ+1}, v{AQ+5}
    v_add_f32 v{AQ+2}, v{AQ+2}, v{AQ+6}
    v_add_f32 v{AQ+3}, v{AQ+3}, v{AQ+7}
    v_add_f32 v{AS}, v{AS}, v{AS+4}
    v_cndmask_b32 v{AQ}, v{AQ}, v{AQ+1}, s[12:13]
    v_cndmask_b32 v{AQ}, v{AQ}, v{AQ+2}, s[14:15]
    v_cndmask_b32 v{AQ}, v{AQ}, v{AQ+3}, s[16:17]
    v_mov_b32 v25, v{AS}
    v_mov_b32 v24, v{AQ}
    s_nop 1
    v_permlane32_swap_b32 v25, v{AS}
    v_permlane32_swap_b32 v24, v{AQ}
    s_nop 1
    v_add_f32 v25, v25, v{AS}
    v_add_f32 v24, v24, v{AQ}
    v_mul_f32 v25, {fx(1.0/512)}, v25
    v_mul_f32 v24, {fx(1.0/512)}, v24
    v_fma_f32 v24, -v25, v25, v24
    v_max_f32 v24, 0, v24
    v_add_f32 v24, {fx(1e-5)}, v24
    v_rsq_f32 v24, v24                       ; r
    s_lshl_b32 s12, s4, 2
    v_mul_f32 v26, -v25, v24                 ; -mean*r
    s_add_u32 s12, s12, s26
    s_mul_i32 s12, s12, {HS}
    v_mov_b32 v25, v24
    v_mov_b32 v27, v26
    s_mul_i32 s13, s5, 6
    s_add_u32 s12, s12, s13
    s_lshl_b32 s12, s12, 10
    s_add_u32 s12, s12, {WS_HID}
    """)
    for b in range(3):
        cs, bb = (28, 44) if b % 2 == 0 else (144, 160)
        a("s_waitcnt lgkmcnt(0)")
        if b < 2:
            cs2, bb2 = (144, 160) if b % 2 == 0 else (28, 44)
            for q in range(4):
                a(f"ds_read_b128 v[{cs2+4*q}:{cs2+4*q+3}], v6 offset:{(32*(b+1) + 8*q)*4}")
                a(f"ds_read_b128 v[{bb2+4*q}:{bb2+4*q+3}], v6 offset:{384 + (32*(b+1) + 8*q)*4}")
        for j in range(8):
            a(f"v_pk_fma_f32 v[{bb+2*j}:{bb+2*j+1}], v[26:27], v[{cs+2*j}:{cs+2*j+1}], v[{bb+2*j}:{bb+2*j+1}]")
        for j in range(8):
            a(f"v_pk_fma_f32 v[{bb+2*j}:{bb+2*j+1}], v[24:25], v[{ACC+16*b+2*j}:{ACC+16*b+2*j+1}], v[{bb+2*j}:{bb+2*j+1}]")
        for j in range(16): a(f"v_max_f32 v{bb+j}, 0, v{bb+j}")
        for j in range(8): a(f"v_pk_mul_f32 v[{bb+2*j}:{bb+2*j+1}], v[{bb+2*j}:{bb+2*j+1}], v[{bb+2*j}:{bb+2*j+1}]")
        o = ACC + 16 * b
        for j in range(8): a(f"v_cvt_pk_bf16_f32 v{o+j}, v{bb+2*j}, v{bb+2*j+1}")
        a("s_nop 1")
        a(f"v_permlane32_swap_b32 v{o}, v{o+2}")
        a(f"v_permlane32_swap_b32 v{o+1}, v{o+3}")
        a(f"v_permlane32_swap_b32 v{o+4}, v{o+6}")
        a(f"v_permlane32_swap_b32 v{o+5}, v{o+7}")
        a(f"buffer_store_dwordx4 v[{o}:{o+3}], v4, s[8:11], s12 offen sc1")
        a(f"buffer_store_dwordx4 v[{o+4}:{o+7}], v4, s[8:11], s12 offen offset:1024 sc1")
        a("s_add_u32 s12, s12, 2048")
        if b == 0:
            a(f"""
            s_cmp_eq_u32 s5, 14
            s_cbranch_scc0 cd_more
            s_waitcnt lgkmcnt(0)
            v_mov_b32 v28, 0
            v_mov_b32 v29, 0
            v_mov_b32 v30, 0
            v_mov_b32 v31, 0
            buffer_store_dwordx4 v[28:31], v4, s[8:11], s12 offen sc1
            buffer_store_dwordx4 v[28:31], v4, s[8:11], s12 offen offset:1024 sc1
            s_branch cd_cmp2
            cd_more:
            """)
    ACC, FB = 64, 80
    a(f"""
    cd_cmp2:
    s_and_b32 s27, s26, 1                    ; wm
    s_lshr_b32 s28, s26, 1                   ; wn
    v_and_b32 v6, 15, v1
    v_lshrrev_b32 v7, 2, v6                  ; r
    v_and_b32 v6, 3, v6                      ; c
    v_lshrrev_b32 v12, 5, v1                 ; g
    v_lshl_add_u32 v12, v12, 3, v7
    v_lshlrev_b32 v12, 7, v12
    v_bfe_u32 v13, v1, 4, 1
    v_lshlrev_b32 v13, 1, v13
    s_lshl_b32 s12, s27, 2
    v_add_u32 v13, s12, v13
    v_lshrrev_b32 v16, 1, v6
    v_add_u32 v13, v13, v16
    v_lshrrev_b32 v7, 1, v7
    v_lshlrev_b32 v7, 2, v7
    v_xor_b32 v13, v13, v7
    v_lshl_add_u32 v12, v13, 4, v12
    v_and_b32 v6, 1, v6
    v_lshl_add_u32 v16, v6, 3, v12
    v_add_u32 v17, 65536, v16
    s_lshl_b32 s12, s28, 13
    s_add_u32 s12, s12, {D_HID}
    v_add_u32 v18, s12, v4
    s_waitcnt vmcnt(0)
    """)
    st(0, 3)
    a("s_barrier")
    for r in range(16): a(f"v_mov_b32 v{ACC+r}, 0")
    T = LdsTracker(a)
    NB = 5
    def reads(c, s):
        wo = (c % NW) * 16384; grp = wo // 65536; wo %= 65536
        ho = (c % NH) * 16384
        g = (8 * c + s) % NB
        fb = FB + 8 * g
        T.issue(f"ds_read_b64_tr_b16 v[{fb}:{fb+1}], v{16+grp} offset:{wo + s*2048}", [f"a{g}"])
        T.issue(f"ds_read_b64_tr_b16 v[{fb+2}:{fb+3}], v{16+grp} offset:{wo + s*2048 + 512}", [f"a{g}"])
        T.issue(f"ds_read_b128 v[{fb+4}:{fb+7}], v{18} offset:{ho + s*1024}", [f"b{g}"])
    def mfma(c, s):
        g = (8 * c + s) % NB; fb = FB + 8 * g
        T.need([f"a{g}", f"b{g}"])
        a(f"v_mfma_f32_32x32x16_bf16 v[{ACC}:{ACC+15}], v[{fb}:{fb+3}], v[{fb+4}:{fb+7}], v[{ACC}:{ACC+15}]")
    def epi_prepare():
        a(f"""
        v_and_b32 v6, 15, v1
        v_lshrrev_b32 v7, 2, v6
        v_and_b32 v6, 3, v6
        v_lshrrev_b32 v12, 5, v1                 ; h
        v_lshl_add_u32 v13, v12, 2, v7
        s_lshl_b32 s12, s27, 5
        v_add_u32 v13, s12, v13
        v_lshlrev_b32 v13, 7, v13
        v_bfe_u32 v14, v1, 4, 1
        v_lshlrev_b32 v14, 1, v14
        s_lshl_b32 s12, s28, 2
        v_add_u32 v14, s12, v14
        v_lshrrev_b32 v15, 1, v6
        v_add_u32 v14, v14, v15
        v_lshrrev_b32 v7, 1, v7
        v_lshlrev_b32 v7, 2, v7
        v_xor_b32 v14, v14, v7
        v_lshl_add_u32 v13, v14, 4, v13
        v_and_b32 v6, 1, v6
        v_lshl_add_u32 v13, v6, 3, v13
        v_add_u32 v13, {D_X2}, v13
        v_lshlrev_b32 v14, 4, v12
        s_lshl_b32 s12, s27, 7
        s_add_u32 s12, s12, {D_TAB}
        v_add_u32 v14, s12, v14
        """)
        for q in range(4):
            T.issue(f"ds_read_b64_tr_b16 v[{24+2*q}:{25+2*q}], v13 offset:{1024*q}", ["epi"])
            T.issue(f"ds_read_b128 v[{32+4*q}:{35+4*q}], v14 offset:{32*q}", ["epi"])
            T.issue(f"ds_read_b128 v[{48+4*q}:{51+4*q}], v14 offset:{256+32*q}", ["epi"])
        a(f"""
        v_and_b32 v5, 31, v1
        v_lshlrev_b32 v20, 10, v5
        v_lshl_add_u32 v20, v12, 4, v20
        s_lshl_b32 s12, s52, 1
        s_add_u32 s12, s12, s28
        s_lshl_b32 s12, s12, 15
        s_lshl_b32 s13, s53, 1
        s_add_u32 s13, s13, s27
        s_lshl_b32 s13, s13, 6
        s_add_u32 s12, s12, s13
        v_add_u32 v20, s12, v20
        """)
    def epi_finish():
        T.need(["epi"])
        for q in range(4):
            a(f"v_lshlrev_b32 v8, 16, v{24+2*q}")
            a(f"v_and_b32 v9, 0xffff0000, v{24+2*q}")
            a(f"v_lshlrev_b32 v10, 16, v{25+2*q}")
            a(f"v_and_b32 v11, 0xffff0000, v{25+2*q}")
            for r in range(4): a(f"v_fma_f32 v{48+4*q+r}, v{48+4*q+r}, v{32+4*q+r}, v{8+r}")
    epi_prepare(); epi_finish()
    EPC = -5
    for c in range(D_NCH):
        T.drain()
        a("s_barrier")
        if c == 0: st(0, 4)
        if c in (0, 2, 4, 6, 8, 10): st(2, c // 2)
        reads(c, 0); reads(c, 1); reads(c, 2); reads(c, 3)
        if c > 0: mfma(c - 1, 7)
        for s in range(7):
            if s + 4 < 8: reads(c, s + 4)
            mfma(c, s)
            if c == EPC and s == 1: epi_prepare()
            if c == EPC + 1 and s == 2: epi_finish()
    mfma(D_NCH - 1, 7)
    st(0, 5)
    a("s_nop 7\ns_nop 3")
    for q in range(4):
        for r in range(4): a(f"v_fma_f32 v{48+4*q+r}, v{ACC+4*q+r}, v{32+4*q+r}, v{48+4*q+r}")
        a(f"v_cvt_pk_bf16_f32 v{FB+2*q}, v{48+4*q}, v{49+4*q}")
        a(f"v_cvt_pk_bf16_f32 v{FB+2*q+1}, v{50+4*q}, v{51+4*q}")
    a(f"""
    s_nop 1
    v_permlane32_swap_b32 v{FB}, v{FB+2}
    v_permlane32_swap_b32 v{FB+1}, v{FB+3}
    v_permlane32_swap_b32 v{FB+4}, v{FB+6}
    v_permlane32_swap_b32 v{FB+5}, v{FB+7}
    global_store_dwordx4 v20, v[{FB}:{FB+3}], s[48:49]{OUTSC}
    global_store_dwordx4 v20, v[{FB+4}:{FB+7}], s[48:49] offset:32{OUTSC}
    cd_exit:
    s_endpgm
    """)

if __name__ == "__main__":
    ks = [("convab_kernel", gen_AB, 128, AB_GRID, 512, AB_LDS),
          ("mlp_kernel", gen_CD, 176, CD_GRID, 512, CD_LDS)]
    s = build(ks)
    path = sys.argv[1] if len(sys.argv) > 1 else "out.s"
    open(path, "w").write(s)
    print("wrote", path, len(s))
```

```python
import sys, os
os.environ["MODP"] = "1"
import g3
from g3 import *
import g3b
from g3b import gen_C, gen_D, C_GRID, C_LDS, D_GRID, D_LDS, KCP, KCHL

NMAIN, NW1 = 256, 43
TCH = 57 * TROW
H_OFF = 2 * KCHL
HCH = 4608
XR_OFF = H_OFF + 2 * HCH
RED_OFF = XR_OFF + 8192
LNT = 62016
KC2 = LNT + 4 * 2560
KCS = 776 * 4
MODS = KC2 + 2 * KCS
STP = MODS + 16 * 80
FLG = STP + 256
CNT = FLG + 16
AB_LDS = CNT + 32
NW1 = 86
AB_GRID = NMAIN + NW1
XBS = 8192
WS_MODP = 0x10000
WS_CNT = 0x28000
WS_GO = 0x20000
WS_XB = WS_XT
SET = int(os.environ.get("STAMPSET", 0))
PPRIO = int(os.environ.get("PPRIO", 1))
X2SC = os.environ.get("X2SC", "")
X2W = bool(os.environ.get("X2W"))
W1SC = os.environ.get("W1SC", " sc1")
KP0 = int(os.environ.get("KP0", 3))
SPIN_MAX = 0x20000

def lds_arrive(a, k, v):
    a(f"""
    v_mov_b32 v{v}, {CNT + 4*k}
    v_mov_b32 v{v+1}, 1
    s_mov_b64 exec, 1
    ds_add_u32 v{v}, v{v+1}
    s_mov_b64 exec, -1
    """)
def lds_wait(a, k, n, v, tag, slp=1):
    a(f"""
    v_mov_b32 v{v}, {CNT + 4*k}
    lw_{tag}:
    ds_read_b32 v{v+1}, v{v}
    s_waitcnt lgkmcnt(0)
    v_readfirstlane_b32 s62, v{v+1}
    s_cmp_ge_u32 s62, {n}
    s_cbranch_scc1 lw_{tag}_done
    s_sleep {slp}
    s_branch lw_{tag}
    lw_{tag}_done:
    """)

def h_addr(a, toff):
    a(f"""
    v_add_u32 v11, {toff}, v0
    v_lshrrev_b32 v12, 1, v11                ; block
    v_and_b32 v10, 1, v11                    ; ch
    v_lshlrev_b32 v4, 13, v12
    v_lshl_add_u32 v4, v10, 4, v4
    s_lshl_b32 s38, s29, 4
    s_add_u32 s38, s38, {WS_XB}
    v_add_u32 v4, s38, v4
    v_lshlrev_b32 v5, 5, v12
    v_add_u32 v5, {WS_ST1}, v5               ; statistics
    s_lshr_b32 s38, s29, 4
    s_lshl_b32 s38, s38, 7
    s_and_b32 s39, s29, 15
    s_lshl_b32 s39, s39, 2
    s_add_u32 s38, s38, s39
    s_add_u32 s38, s38, {WS_MODP}
    v_lshl_add_u32 v6, v10, 2, s38
    v_mul_u32_u24 v7, {HCH}, v10
    v_lshl_add_u32 v7, v12, 4, v7
    v_add_u32 v7, {H_OFF + 512}, v7          ; h (LDS)
    v_lshlrev_b32 v8, 12, v10
    v_lshl_add_u32 v8, v12, 4, v8
    v_add_u32 v8, {XR_OFF}, v8
    v_lshlrev_b32 v9, 2, v10
    v_add_u32 v9, {MODS}, v9
    v_add_u32 v13, 4096, v6
    v_add_u32 v14, 4096, v13
    """)
def h_body(a):
    a(f"""
    global_load_dwordx4 v[64:67], v4, s[22:23] sc1
    global_load_dwordx4 v[68:71], v5, s[22:23] sc1
    global_load_dwordx4 v[72:75], v5, s[22:23] offset:16 sc1
    global_load_dword v76, v6, s[22:23] sc1
    global_load_dword v77, v13, s[22:23] sc1
    global_load_dword v78, v14, s[22:23] sc1
    s_waitcnt vmcnt(5)
    ds_write_b128 v8, v[64:67]
    """)
    for e in range(8):
        src = 64 + e // 2
        a(f"v_lshlrev_b32 v{80+e}, 16, v{src}" if e % 2 == 0 else f"v_and_b32 v{80+e}, 0xffff0000, v{src}")
    a("s_waitcnt vmcnt(3)")
    for e in range(8):
        a(f"v_lshlrev_b32 v{12+(e%4)}, 16, v{68+e}")
        a(f"v_and_b32 v{68+e}, 0xffff0000, v{68+e}")
        a(f"v_fma_f32 v{80+e}, v{80+e}, v{12+(e%4)}, v{68+e}")
    a(f"""
    s_waitcnt vmcnt(0)
    v_add_f32 v77, 1.0, v77
    v_cvt_pk_bf16_f32 v77, v77, v77
    ds_write_b32 v9, v78                     ; ga
    v_lshlrev_b32 v77, 16, v77               ; gamma
    """)
    for e in range(8): a(f"v_fma_f32 v{80+e}, v{80+e}, v77, v76")
    for p in range(4): a(f"v_cvt_pk_bf16_f32 v{88+p}, v{80+2*p}, v{81+2*p}")
    a("ds_write_b128 v7, v[88:91]")
    a("s_waitcnt lgkmcnt(0)")

IDX0 = 62428
def idx_table():
    import numpy as np
    def bf16_round_int(l):
        u = int(np.float32(l).view(np.uint32))
        r = (u + 0x7FFF + ((u >> 16) & 1)) >> 16
        return r
    rows = []
    for t in range(256):
        vals = []
        for e in range(12):
            l = 2047 - 8 * t - e
            if e == 11: vals.append(0); continue
            if l < 0: idx = 768
            elif l < 128: idx = l
            else: idx = bf16_round_int(l) - 0x4300 + 128
            vals.append(4 * idx + KC2 - IDX0)
        rows.append(vals)
    out = ".p2align 4\n.type kidx_table,@object\nkidx_table:\n"
    for r in rows: out += "    .short " + ", ".join(str(v) for v in r) + "\n"
    out += ".size kidx_table, 6144\n"
    return out
def idx_load(a, tag, d):
    a(f"""
    s_getpc_b64 s[56:57]
    idx_pc_{tag}:
    s_add_u32 s56, s56, kidx_table-idx_pc_{tag}
    s_addc_u32 s57, s57, 0
    v_mul_u32_u24 v{d+6}, 24, v0
    global_load_dwordx4 v[{d}:{d+3}], v{d+6}, s[56:57]
    global_load_dwordx2 v[{d+4}:{d+5}], v{d+6}, s[56:57] offset:16
    """)
def idx_unpack(a, d, o):
    for e in range(11):
        a(f"v_and_b32 v{o+e}, 0xffff, v{d+e//2}" if e % 2 == 0 else f"v_lshrrev_b32 v{o+e}, 16, v{d+e//2}")

def gen_kwaves(a):
    VA, VB, VY = 32, 64, 96
    a(f"""
    kwaves:
    s_setprio {KP0}
    s_load_dwordx4 s[8:11], s[0:1], 8
    s_load_dwordx4 s[12:15], s[0:1], 24
    s_load_dwordx4 s[16:19], s[0:1], 40
    s_load_dwordx4 s[40:43], s[0:1], 56
    s_load_dwordx2 s[22:23], s[0:1], 144     ; ws
    s_lshr_b32 s27, s26, 1                   ; ch
    s_and_b32 s28, s26, 1                    ; hf
    s_add_u32 s30, s29, s27                  ; d
    s_lshl_b32 s34, s30, 8
    s_lshl_b32 s35, s28, 7
    s_add_u32 s34, s34, s35
    v_lshl_add_u32 v36, v1, 1, s34
    s_lshl_b32 s35, s29, 1
    s_waitcnt lgkmcnt(0)
    """)
    if SET in (0, 3): a.stamp(0)
    for i, sp in enumerate((8, 10, 12, 14, 16, 18)):
        a(f"global_load_ushort v{40+i}, v36, s[{sp}:{sp+1}]")
    a("s_load_dword s24, s[40:41], s35\ns_load_dword s25, s[42:43], s35")
    idx_load(a, "k", 104)
    a("s_setprio 0")
    if SET == 3: a.stamp(1)
    a(f"""
    s_waitcnt lgkmcnt(0)
    s_lshl_b32 s36, s27, 4
    s_lshr_b32 s24, s24, s36
    s_lshl_b32 s24, s24, 16                  ; log_dt[d]
    s_lshr_b32 s25, s25, s36
    s_lshl_b32 s25, s25, 16                  ; Dskip[d]
    v_mov_b32 v5, s24
    v_mul_f32 v6, 0x3fb8aa3b, v5
    s_mov_b32 s36, 0x3fb8aa3b
    v_fma_f32 v7, v5, s36, -v6
    v_fmac_f32 v7, 0x32a5705f, v5
    v_exp_f32 v6, v6
    v_mul_f32 v7, {fx(0.6931471805599453)}, v7
    v_fmac_f32 v6, v6, v7
    v_cvt_pk_bf16_f32 v6, v6, v6
    v_lshlrev_b32 v6, 16, v6                 ; dt
    s_mul_i32 s36, s27, {TCH}
    s_lshl_b32 s37, s28, 8
    s_add_u32 s36, s36, s37
    v_lshl_add_u32 v2, v1, 2, s36
    v_mov_b32 v4, 0
    v_mov_b32 v5, {KC2 + 768*4}
    ds_write_b32 v5, v4
    ds_write_b32 v5, v4 offset:{KCS}
    s_waitcnt vmcnt(6)
    v_lshlrev_b32 v40, 16, v40
    v_lshlrev_b32 v41, 16, v41
    v_mul_f32 v10, v6, v40
    v_mul_f32 v11, v6, v41
    v_mul_f32 v10, 0x3fb8aa3b, v10
    v_mul_f32 v11, {fx(0.15915494309189535)}, v11
    """)
    if SET == 0: a.stamp(1)
    if SET == 3: a.stamp(2)
    def direct(dst, l, t):
        a(f"""
        v_mul_f32 v{t}, {fx(float(l))}, v10
        v_mul_f32 v{t+1}, {fx(float(l))}, v11
        v_exp_f32 v{t}, v{t}
        v_fract_f32 v{t+1}, v{t+1}
        v_cos_f32 v{dst}, v{t+1}
        v_sin_f32 v{dst+1}, v{t+1}
        s_nop 0
        v_mul_f32 v{dst}, v{t}, v{dst}
        v_mul_f32 v{dst+1}, v{t}, v{dst+1}
        """)
    tmpw = [0]
    def wr(row, src, neg=False):
        tmp = 62 + (tmpw[0] % 2); tmpw[0] += 1
        a(f"v_cvt_pk_bf16_f32 v{tmp}, v{src}, {'-' if neg else ''}v{src+1}")
        a(f"ds_write_b32 v2, v{tmp} offset:{row*TROW}")
    E = [None, 64, 66, 68, 70, 72, 74, 76]
    E8, E128, X, Y2, Q, R = 78, 80, 82, 84, 86, 88
    S = [12, 14, 16, 18]
    T0, T1, T2 = 28, 30, 32
    direct(E[1], 1, 28); direct(E128, 128, 30)
    a("""
    s_waitcnt vmcnt(2)
    v_lshlrev_b32 v42, 16, v42
    v_lshlrev_b32 v43, 16, v43
    v_lshlrev_b32 v44, 16, v44
    v_lshlrev_b32 v45, 16, v45
    v_mul_f32 v42, v6, v42
    v_mul_f32 v43, v6, v43
    """)
    cmul(a, Q, 44, 42, T2)
    a("v_mov_b32 v62, 0x3f80\nds_write_b32 v2, v62 offset:0"); tmpw[0] = 1
    cmul(a, E[2], E[1], E[1], T0); cmul(a, X, E128, E128, T1)
    wr(1, E[1]); wr(8, E128); wr(QROW, Q, True)
    cmul(a, E[4], E[2], E[2], T0); cmul(a, E[3], E[2], E[1], T1); cmul(a, R, X, X, T2)
    wr(2, E[2]); wr(16, X)
    cmul(a, E8, E[4], E[4], T0); cmul(a, E[5], E[4], E[1], T1); cmul(a, E[6], E[3], E[3], T2)
    wr(3, E[3]); wr(4, E[4]); wr(24, R)
    cmul(a, E[7], E[4], E[3], T0); cmul(a, Y2, R, E[4], T1)
    cmul(a, S[1], X, E[2], T2); cmul(a, S[2], X, E[4], T0); cmul(a, S[3], X, E[6], T1)
    wr(5, E[5]); wr(6, E[6]); wr(7, E[7]); wr(25, Y2)
    cmul(a, S[0], X, E128, T2)
    a(f"v_mov_b64 v[{X}:{X+1}], v[{R}:{R+1}]")
    cmul(a, R, R, R, T0)
    wr(17, S[1]); wr(18, S[2]); wr(19, S[3]); wr(20, S[0])
    for r in range(1, 4): cmul(a, S[r], S[r], E128, (T0, T1, T2)[r % 3])
    for r in range(1, 4): wr(20 + r, S[r])
    wr(32, R)
    Z = S[0]
    for i in range(1, 16):
        cmul(a, Q, Q, E8, T0)
        if i <= 8: cmul(a, R, R, E128, T1)
        if i <= 7: cmul(a, Z, E128, E[i], T2)
        if i <= 3:
            cmul(a, X, X, E128, 34); cmul(a, Y2, Y2, E128, 36)
        wr(QROW + i, Q, True)
        if i <= 8: wr(32 + i, R)
        if i <= 7: wr(8 + i, Z)
        if i <= 3:
            wr(24 + 2 * i, X); wr(25 + 2 * i, Y2)
    a(f"""
    v_and_b32 v4, 15, v0
    v_bfe_u32 v5, v0, 4, 2
    v_lshlrev_b32 v7, 4, v5
    v_mul_u32_u24 v8, {TROW}, v4
    v_add_u32 v8, v8, v7
    s_mul_i32 s36, s27, {TCH}
    v_add_u32 v8, s36, v8
    v_add_u32 v9, {QROW*TROW}, v8            ; B address
    s_mul_i32 s37, s28, {32*TROW}
    v_add_u32 v12, s37, v8
    s_mul_i32 s37, s28, {16*TROW}
    s_add_u32 s37, s37, {16*TROW}
    v_add_u32 v13, s37, v8
    """)
    for r in range(20, 36): a(f"v_mov_b32 v{r}, 0")
    a(f"""
    s_mul_i32 s36, s27, {KCS}
    s_add_u32 s36, s36, {KC2}
    s_cmp_eq_u32 s28, 1
    s_cbranch_scc1 k_t2
    v_and_b32 v7, 1, v5
    v_lshlrev_b32 v7, 2, v7
    v_lshrrev_b32 v14, 1, v5
    v_lshl_add_u32 v7, v14, 7, v7
    v_lshl_add_u32 v7, v4, 3, v7
    v_lshl_add_u32 v14, v7, 2, s36
    v_add_u32 v15, 4, v14
    v_add_u32 v16, 8, v14
    v_add_u32 v17, 12, v14
    v_cmp_gt_u32 vcc, 2, v5
    v_lshlrev_b32 v7, 6, v5
    v_add_u32 v7, 256, v7
    v_lshlrev_b32 v40, 2, v4
    v_lshlrev_b32 v41, 1, v4
    v_cndmask_b32 v40, v41, v40, vcc
    v_add_u32 v7, v7, v40
    v_lshl_add_u32 v40, v7, 2, s36
    v_add_u32 v41, 4, v40
    v_mov_b32 v42, 128
    v_cndmask_b32 v42, v42, 8, vcc
    v_add_u32 v42, v40, v42
    v_add_u32 v43, 4, v42
    s_branch k_addr
    k_t2:
    v_lshl_add_u32 v7, v5, 6, v4
    v_lshl_add_u32 v14, v7, 2, s36
    v_add_u32 v14, {512*4}, v14
    v_add_u32 v15, 64, v14
    v_add_u32 v16, 128, v14
    v_add_u32 v17, 192, v14
    v_mov_b32 v40, v14
    v_mov_b32 v41, v15
    v_mov_b32 v42, v16
    v_mov_b32 v43, v17
    k_addr:
    v_cmp_eq_u32 vcc, 0, v1
    s_cmp_eq_u32 s28, 0
    s_cselect_b32 s25, s25, 0
    v_mov_b32 v7, s25
    v_cndmask_b32 v7, 0, v7, vcc
    s_waitcnt lgkmcnt(0)
    """)
    a("s_waitcnt vmcnt(0)")
    idx_unpack(a, 104, 112)
    if SET == 0: a.stamp(2)
    if SET == 3: a.stamp(3)
    lds_arrive(a, 2, 38); lds_wait(a, 2, 4, 38, "k1")
    def rd(s):
        o = 64 + 12 * (s % 4)
        a(f"ds_read_b128 v[{o}:{o+3}], v9 offset:{64*s}")
        a(f"ds_read_b128 v[{o+4}:{o+7}], v12 offset:{64*s}")
        a(f"ds_read_b128 v[{o+8}:{o+11}], v13 offset:{64*s}")
    for s in range(4): rd(s)
    for s in range(8):
        o = 64 + 12 * (s % 4); p = s % 2
        a(f"s_waitcnt lgkmcnt({9 if s < 5 else 3*(7-s)})")
        a(f"v_mfma_f32_16x16x32_bf16 v[{20+8*p}:{23+8*p}], v[{o+4}:{o+7}], v[{o}:{o+3}], v[{20+8*p}:{23+8*p}]")
        a(f"v_mfma_f32_16x16x32_bf16 v[{24+8*p}:{27+8*p}], v[{o+8}:{o+11}], v[{o}:{o+3}], v[{24+8*p}:{27+8*p}]")
        if s < 4: rd(s + 4)
    a("s_nop 7")
    for r in range(8): a(f"v_add_f32 v{20+r}, v{20+r}, v{28+r}")
    a(f"""
    v_add_f32 v20, v20, v7
    ds_write_b32 v14, v20
    ds_write_b32 v15, v21
    ds_write_b32 v16, v22
    ds_write_b32 v17, v23
    ds_write_b32 v40, v24
    ds_write_b32 v41, v25
    ds_write_b32 v42, v26
    ds_write_b32 v43, v27
    """)
    lds_arrive(a, 3, 38); lds_wait(a, 3, 4, 38, "k2")
    if SET == 0: a.stamp(3)
    for ch in range(2):
        for e in range(11): a(f"ds_read_b32 v{64+12*ch+e}, v{112+e} offset:{IDX0 + ch*KCS}")
    a(f"""
    v_lshlrev_b32 v4, 4, v0                  ; tid*16
    v_mov_b32 v56, 0
    v_mov_b32 v57, 0
    v_mov_b32 v58, 0
    v_mov_b32 v59, 0
    v_lshrrev_b32 v60, 1, v0
    v_mul_u32_u24 v60, {KCP}, v60
    v_and_b32 v61, 1, v0
    v_lshl_add_u32 v60, v61, 4, v60
    v_add_u32 v60, 4096, v60
    v_bfe_u32 v61, v0, 5, 1
    v_mul_u32_u24 v61, {HCH}, v61
    v_and_b32 v62, 31, v0
    v_lshl_add_u32 v61, v62, 4, v61
    v_add_u32 v61, {H_OFF}, v61
    v_cmp_gt_u32 vcc, 16, v0
    s_cmp_eq_u32 s26, 1
    s_cbranch_scc1 k_padh
    s_cmp_eq_u32 s26, 0
    s_cbranch_scc0 k_pad_done
    s_and_saveexec_b64 s[54:55], vcc
    ds_write_b128 v60, v[56:59]
    s_mov_b64 exec, s[54:55]
    s_branch k_pad_done
    k_padh:
    ds_write_b128 v61, v[56:59]
    k_pad_done:
    s_waitcnt lgkmcnt(0)
    """)
    for ch in range(2):
        for c in range(4):
            o = 96 + 4 * (c % 2)
            for k in range(4): a(f"v_cvt_pk_bf16_f32 v{o+k}, v{64+12*ch+c+2*k}, v{64+12*ch+c+2*k+1}")
            a(f"ds_write_b128 v4, v[{o}:{o+3}] offset:{ch*KCHL + c*KCP}")
    a(f"""
    v_and_b32 v7, 15, v1
    v_lshrrev_b32 v2, 4, v1
    v_sub_u32 v60, 3, v7
    v_and_b32 v60, 3, v60
    v_mul_u32_u24 v61, {KCP - 2}, v60
    v_lshlrev_b32 v62, 1, v7
    v_sub_u32 v61, v61, v62
    v_lshl_add_u32 v61, v2, 4, v61
    s_mul_i32 s38, s27, {KCHL}
    s_lshl_b32 s39, s28, 8
    s_sub_u32 s38, s38, s39
    s_add_u32 s38, s38, {2*(2031 - 32*59)}
    v_add_u32 v20, s38, v61                  ; A base
    v_lshlrev_b32 v21, 5, v7
    v_lshl_add_u32 v21, v2, 4, v21
    s_mul_i32 s38, s27, {HCH}
    s_sub_u32 s38, s38, s39
    s_add_u32 s38, s38, {H_OFF + 2*(240 - 96)}
    v_add_u32 v21, s38, v21                  ; B base
    v_lshlrev_b32 v22, 5, v7
    v_lshl_add_u32 v22, v2, 3, v22
    s_lshl_b32 s38, s27, 12
    s_lshl_b32 s39, s28, 11
    s_add_u32 s38, s38, s39
    s_add_u32 s38, s38, {XR_OFF}
    v_add_u32 v23, s38, v22
    s_lshl_b32 s38, s30, 12
    s_lshl_b32 s39, s28, 11
    s_add_u32 s38, s38, s39
    s_add_u32 s38, s38, {WS_X2T}
    s_add_u32 s50, s22, s38
    s_addc_u32 s51, s23, 0
    s_lshl_b32 s43, s26, 12
    s_add_u32 s43, s43, {RED_OFF}
    v_lshlrev_b32 v24, 4, v1
    v_add_u32 v25, s43, v24
    s_xor_b32 s43, s26, 1
    s_lshl_b32 s43, s43, 12
    s_add_u32 s43, s43, {RED_OFF}
    v_add_u32 v26, s43, v24
    s_lshl_b32 s43, s27, 2
    s_add_u32 s43, s43, {MODS}
    v_mov_b32 v27, s43
    s_lshl_b32 s43, s26, 2
    s_add_u32 s43, s43, {FLG}
    v_mov_b32 v29, s43
    s_xor_b32 s43, s43, 4
    v_mov_b32 v30, s43
    v_mov_b32 v31, 0
    ds_write_b32 v29, v31
    v_lshlrev_b32 v24, 5, v7
    v_lshrrev_b32 v60, 1, v2
    v_lshl_add_u32 v24, v60, 4, v24
    v_and_b32 v60, 1, v2
    v_lshl_add_u32 v24, v60, 9, v24
    """)
    for t in range(8):
        for r in range(4): a(f"v_mov_b32 v{VY+4*t+r}, 0")
    lds_arrive(a, 5, 36);
    h_addr(a, 0)
    lds_wait(a, 5, 4, 36, "k3")
    T = LdsTracker(a)
    def ldA(p, r):
        off = 512 * (7 - p) + 64 * (3 - r)
        T.issue(f"ds_read_b64 v[{VA+4*p}:{VA+4*p+1}], v20 offset:{off}", [f"A{p}"])
        T.issue(f"ds_read_b64 v[{VA+4*p+2}:{VA+4*p+3}], v20 offset:{off+8}", [f"A{p}"])
    def ldB(k, r):
        off = 512 * k + 64 * (3 - r)
        T.issue(f"ds_read_b128 v[{VB+4*k}:{VB+4*k+3}], v21 offset:{off}", [f"B{k}"])
    for p in range(8): ldA(p, 0)
    if SET == 0: a.stamp(4)
    lds_wait(a, 4, 1, 16, "k4", 1)
    T.done = T.issued
    h_body(a)
    a("s_barrier")
    if int(os.environ.get("KPRIO", 0)): a(f"s_setprio {os.environ['KPRIO']}")
    if SET == 0: a.stamp(5)
    for k in range(7, -1, -1): ldB(k, 0)
    T.issue("ds_read_b32 v28, v27", ["ga"])
    for r in range(4):
        for p in range(8):
            for t in range(7, p - 1, -1):
                k = t - p
                T.need([f"A{p}", f"B{k}"])
                a(f"v_mfma_f32_16x16x32_bf16 v[{VY+4*t}:{VY+4*t+3}], v[{VA+4*p}:{VA+4*p+3}], v[{VB+4*k}:{VB+4*k+3}], v[{VY+4*t}:{VY+4*t+3}]")
                if t == 7 and r < 3: ldB(7 - p, r + 1)
            if r < 3: ldA(p, r + 1)
            if r == 3 and p == 4:
                for i in range(4): T.issue(f"ds_read_b64 v[{4+2*i}:{5+2*i}], v23 offset:{512*i}", ["xr"])
    T.need(["xr", "ga"])
    for i in range(4):
        a(f"v_lshlrev_b32 v{32+4*i}, 16, v{4+2*i}")
        a(f"v_and_b32 v{33+4*i}, 0xffff0000, v{4+2*i}")
        a(f"v_lshlrev_b32 v{34+4*i}, 16, v{5+2*i}")
        a(f"v_and_b32 v{35+4*i}, 0xffff0000, v{5+2*i}")
    a("s_cmp_eq_u32 s28, 1\ns_cbranch_scc1 k_hf1")
    def tail(hf):
        keep, send = 4 * hf, 4 * (1 - hf)
        for i in range(4):
            t = send + i
            a(f"ds_write_b128 v25, v[{VY+4*t}:{VY+4*t+3}] offset:{1024*i}")
        a("v_mov_b32 v31, 1\nds_write_b32 v29, v31")
        for i in range(4):
            for r in range(4): a(f"v_fma_f32 v{32+4*i+r}, v28, v{VY+4*(keep+i)+r}, v{32+4*i+r}")
        a(f"""
        k_hs{hf}:
        ds_read_b32 v31, v30
        s_waitcnt lgkmcnt(0)
        v_readfirstlane_b32 s43, v31
        s_cmp_eq_u32 s43, 1
        s_cbranch_scc0 k_hs{hf}
        """)
        for i in range(4): a(f"ds_read_b128 v[{64+4*i}:{67+4*i}], v26 offset:{1024*i}")
        for i in range(4):
            a(f"s_waitcnt lgkmcnt({3-i})")
            for r in range(4): a(f"v_fma_f32 v{32+4*i+r}, v28, v{64+4*i+r}, v{32+4*i+r}")
            a(f"v_cvt_pk_bf16_f32 v{12+2*i}, v{32+4*i}, v{33+4*i}")
            a(f"v_cvt_pk_bf16_f32 v{13+2*i}, v{34+4*i}, v{35+4*i}")
            if not X2W:
                a(f"global_store_dwordx2 v22, v[{12+2*i}:{13+2*i}], s[50:51] offset:{512*i}{X2SC}")
            elif i % 2 == 1:
                o = 12 + 2 * (i - 1)
                a("s_nop 1")
                a(f"v_permlane16_swap_b32 v{o}, v{o+2}")
                a(f"v_permlane16_swap_b32 v{o+1}, v{o+3}")
                a(f"global_store_dwordx4 v24, v[{o}:{o+3}], s[50:51] offset:{512*(i-1)}{X2SC}")
        a("s_endpgm")
    tail(0)
    a("k_hf1:")
    tail(1)

NSH = 4
def go_addr(a, o):
    a(f"""
    v_and_b32 v92, 31, v1
    v_lshlrev_b32 v92, 7, v92
    s_and_b32 s34, s2, {NSH-1}
    s_lshl_b32 s34, s34, 2
    s_add_u32 s34, s34, {WS_GO}
    v_add_u32 v92, s34, v92
    s_and_b32 s34, s2, 31
    s_lshl_b32 s34, s34, 7
    s_add_u32 s34, s34, {WS_GO}
    v_and_b32 v94, 1, v1
    v_lshl_add_u32 v94, v94, 3, s34
    v_mov_b32 v{o+2}, 0
    v_mov_b32 v{o+3}, 0
    """)
def go_load(a, o):
    a(f"""
    s_mov_b64 exec, 3
    global_atomic_add_x2 v[{o}:{o+1}], v94, v[{o+2}:{o+3}], s[22:23] sc0 sc1
    s_mov_b64 exec, -1
    """)
def grid_arrive(a, tag, t):
    assert AB_GRID % 2 == 0
    n = [len(range(k, AB_GRID, NSH)) for k in range(NSH)]
    assert n[0] - n[-1] <= 1
    cut = AB_GRID % NSH
    BUMP = f"s_mov_b32 exec_hi, 0\n    global_atomic_add v92, v{t+1}, s[22:23] sc1"
    a(f"""
    s_and_b32 s34, s2, {NSH-1}
    s_lshl_b32 s36, s34, 6
    v_mov_b32 v{t}, s36
    v_mov_b32 v{t+1}, 1
    s_cmp_lt_u32 s34, {cut}
    s_cselect_b32 s37, 1, 0
    s_add_u32 s37, s37, {n[-1] - 1}
    s_mov_b64 exec, 1
    global_atomic_add v{t+2}, v{t}, v{t+1}, s[20:21] sc0 sc1
    s_waitcnt vmcnt(0)
    v_readfirstlane_b32 s36, v{t+2}
    s_mov_b64 exec, -1
    s_cmp_eq_u32 s36, s37
    s_cbranch_scc0 {tag}_arrived
    {BUMP}
    s_mov_b64 exec, -1
    {tag}_arrived:
    """)
def grid_wait(a, tag, t, o, slp=1, nmax=None):
    n = [len(range(k, AB_GRID, NSH)) for k in range(NSH)]
    cut = AB_GRID % NSH
    a(f"""
    s_mov_b32 s60, 0
    {tag}_poll_loop:
    s_mov_b64 exec, 3
    global_atomic_add_x2 v[{t}:{t+1}], v94, v[{o+2}:{o+3}], s[22:23] sc0 sc1
    s_waitcnt vmcnt(0)
    v_cmp_eq_u32 vcc, v{t}, v{o}
    v_cmp_eq_u32 s[58:59], v{t+1}, v{o+1}
    s_mov_b64 exec, -1
    s_or_b64 vcc, vcc, s[58:59]
    s_cbranch_scc0 {tag}_go
    s_add_u32 s60, s60, 1
    s_and_b32 s61, s60, 31
    s_cbranch_scc1 {tag}_next
    v_and_b32 v{t}, {NSH-1}, v1
    v_lshlrev_b32 v{t+1}, 6, v{t}
    v_mov_b32 v{t+3}, {n[-1]}
    v_cmp_gt_u32 vcc, {cut}, v{t}
    s_mov_b64 exec, {(1 << NSH) - 1}
    global_atomic_add v{t+2}, v{t+1}, v{o+2}, s[20:21] sc0 sc1
    s_waitcnt vmcnt(0)
    v_addc_co_u32 v{t+3}, vcc, 0, v{t+3}, vcc
    v_cmp_ne_u32 vcc, v{t+2}, v{t+3}
    s_mov_b64 exec, -1
    s_cbranch_vccz {tag}_go
    {tag}_next:
    s_sleep {slp}
    s_cmp_lt_u32 s60, {nmax or SPIN_MAX}
    s_cbranch_scc1 {tag}_poll_loop
    {tag}_go:
    """)

def gen_pwaves(a):
    a(f"""
    pwaves:
    s_load_dwordx2 s[4:5], s[0:1], 0         ; x
    s_load_dwordx4 s[44:47], s[0:1], 112     ; c, w_mod
    s_load_dwordx4 s[20:23], s[0:1], 136
    s_load_dwordx4 s[8:11], s[0:1], 80       ; w1, b1
    s_load_dwordx2 s[48:49], s[0:1], 96
    s_setprio {PPRIO}
    v_subrev_u32 v0, 256, v0
    s_sub_u32 s26, s26, 4
    v_lshrrev_b32 v3, 6, v0
    v_lshrrev_b32 v8, 4, v1                  ; row (0..3)
    v_and_b32 v9, 15, v1                     ; 16 B chunk
    v_lshlrev_b32 v4, 10, v8
    v_lshl_add_u32 v4, v9, 4, v4
    v_lshl_add_u32 v4, v3, 8, v4
    s_lshl_b32 s31, s2, 13
    v_add_u32 v4, s31, v4
    v_add_u32 v44, 4096, v4
    s_min_u32 s32, s7, 23
    s_mul_i32 s33, s6, 24
    s_add_u32 s33, s33, s32
    v_lshrrev_b32 v5, 1, v0                  ; rg
    v_and_b32 v6, 1, v0                      ; cc
    v_mul_u32_u24 v7, {4*6144}, v5
    v_lshl_add_u32 v7, v6, 4, v7
    s_lshl_b32 s34, s33, 5
    v_add_u32 v7, s34, v7
    v_lshlrev_b32 v2, 3, v5                  ; c offset
    """)
    go_addr(a, 96)
    a("s_waitcnt lgkmcnt(0)")
    if SET == 1: a.stamp(0)
    a(f"""
    global_load_dwordx4 v[8:11], v4, s[4:5]
    global_load_dwordx4 v[12:15], v44, s[4:5]
    global_load_dwordx2 v[16:17], v2, s[44:45]
    """)
    for i in range(4):
        if i: a("v_add_u32 v7, 6144, v7")
        a(f"global_load_dwordx4 v[{20+4*i}:{23+4*i}], v7, s[46:47]")
    a(f"""
    v_mov_b32 v38, 0x3f803f80
    v_lshrrev_b32 v40, 4, v1
    v_mul_u32_u24 v39, 320, v40
    v_and_b32 v41, 15, v1
    v_lshl_add_u32 v39, v41, 4, v39
    s_mul_i32 s34, s26, 2560
    s_add_u32 s34, s34, {LNT}
    v_add_u32 v39, s34, v39
    v_lshrrev_b32 v47, 2, v41
    v_mul_u32_u24 v47, 320, v47
    v_and_b32 v46, 3, v41
    v_lshl_add_u32 v47, v46, 3, v47
    v_lshl_add_u32 v47, v40, 5, v47
    v_add_u32 v47, s34, v47
    v_lshl_add_u32 v46, v3, 7, v1
    v_lshlrev_b32 v46, 4, v46
    s_mul_i32 s34, s2, {XBS}
    s_add_u32 s34, s34, {WS_XB}
    v_add_u32 v46, s34, v46
    v_lshlrev_b32 v45, 3, v40
    s_lshl_b32 s34, s26, 6
    s_add_u32 s34, s34, {STP}
    v_add_u32 v45, s34, v45
    """)
    for r in range(2):
        b = 8 + 4 * r
        a(f"s_waitcnt vmcnt({6 - r})")
        a(f"ds_write_b128 v39, v[{b}:{b+3}] offset:{1280*r}")
        a(f"v_dot2_f32_bf16 v{72+2*r}, v{b}, v38, 0")
        a(f"v_dot2_f32_bf16 v{73+2*r}, v{b}, v{b}, 0")
        for k in range(1, 4):
            a(f"v_dot2_f32_bf16 v{72+2*r}, v{b+k}, v38, v{72+2*r}")
            a(f"v_dot2_f32_bf16 v{73+2*r}, v{b+k}, v{b+k}, v{73+2*r}")
    a("""
    s_waitcnt lgkmcnt(0)
    ds_read_b64_tr_b16 v[48:49], v47
    ds_read_b64_tr_b16 v[50:51], v47 offset:1280
    ds_read_b64_tr_b16 v[52:53], v47 offset:128
    ds_read_b64_tr_b16 v[54:55], v47 offset:1408
    """)
    if SET == 1: a.stamp(1)
    a("s_waitcnt vmcnt(4)")
    for i in range(4):
        src = 16 + i // 2
        a(f"v_lshlrev_b32 v{56+i}, 16, v{src}" if i % 2 == 0 else f"v_and_b32 v{56+i}, 0xffff0000, v{src}")
    for i in range(4): a(f"v_mul_f32 v{60+i}, {fx(-1.4426950408889634)}, v{56+i}")
    for i in range(4): a(f"v_exp_f32 v{60+i}, v{60+i}")
    dpps = ["row_shr:1", "row_shr:2", "row_shr:4", "row_shr:8", "row_bcast:15 row_mask:0xa", "row_bcast:31 row_mask:0xc"]
    def dpp4(d):
        m = "" if "row_mask" in d else " row_mask:0xf"
        for r in range(72, 76): a(f"v_add_f32_dpp v{r}, v{r}, v{r} {d}{m} bank_mask:0xf")
    dpp4(dpps[0])
    for i in range(4): a(f"v_add_f32 v{60+i}, 1.0, v{60+i}")
    dpp4(dpps[1])
    for i in range(4): a(f"v_rcp_f32 v{60+i}, v{60+i}")
    dpp4(dpps[2])
    for i in range(4): a(f"v_mul_f32 v{56+i}, v{56+i}, v{60+i}")
    dpp4(dpps[3])
    for i in range(4):
        a(f"v_cvt_pk_bf16_f32 v{60+i}, v{56+i}, 0")
        a(f"v_cvt_pk_bf16_f32 v{76+i}, 0, v{56+i}")
    a(f"""
    s_waitcnt lgkmcnt(0)
    global_store_dwordx4 v46, v[48:51], s[22:23] sc1
    global_store_dwordx4 v46, v[52:55], s[22:23] offset:1024 sc1
    v_cmp_eq_u32 vcc, 15, v41
    s_and_saveexec_b64 s[54:55], vcc
    ds_write_b64 v45, v[72:73]
    ds_write_b64 v45, v[74:75] offset:32
    s_mov_b64 exec, s[54:55]
    """)
    for i in range(4):
        a(f"s_waitcnt vmcnt({5 - i})")
        for m in range(4):
            c0 = "0" if i == 0 else f"v{64+2*m}"; c1 = "0" if i == 0 else f"v{65+2*m}"
            a(f"v_dot2_f32_bf16 v{64+2*m}, v{20+4*i+m}, v{60+i}, {c0}")
            a(f"v_dot2_f32_bf16 v{65+2*m}, v{20+4*i+m}, v{76+i}, {c1}")
    a("s_nop 2")
    for d in ["row_shr:2", "row_shr:4", "row_shr:8"]:
        for r in range(64, 72): a(f"v_add_f32_dpp v{r}, v{r}, v{r} {d} row_mask:0xf bank_mask:0xf")
    a(f"""
    v_lshrrev_b32 v4, 4, v0
    v_mul_u32_u24 v4, 80, v4
    v_lshl_add_u32 v4, v6, 5, v4
    v_add_u32 v4, {MODS}, v4
    v_and_b32 v5, 15, v0
    v_cmp_lt_u32 vcc, 13, v5
    v_lshlrev_b32 v5, 2, v5
    v_add_u32 v5, {MODS}, v5
    s_and_saveexec_b64 s[54:55], vcc
    ds_write_b128 v4, v[64:67]
    ds_write_b128 v4, v[68:71] offset:16
    s_mov_b64 exec, s[54:55]
    s_waitcnt lgkmcnt(0)
    """)
    if SET == 1: a.stamp(2)
    a("""
    s_cmp_eq_u32 s26, 0
    s_cbranch_scc0 p_nogo
    """)
    go_load(a, 96)
    a("p_nogo:")
    lds_arrive(a, 0, 36); lds_wait(a, 0, 4, 36, "p1")
    for i in range(16): a(f"ds_read_b32 v{20+i}, v5 offset:{80*i}")
    a(f"""
    v_and_b32 v58, 7, v0
    v_lshlrev_b32 v59, 3, v58
    v_add_u32 v59, {STP}, v59
    ds_read_b64 v[48:49], v59
    ds_read_b64 v[50:51], v59 offset:64
    ds_read_b64 v[52:53], v59 offset:128
    ds_read_b64 v[54:55], v59 offset:192
    v_lshlrev_b32 v58, 2, v58
    s_lshl_b32 s34, s2, 5
    s_add_u32 s34, s34, {WS_ST1}
    v_add_u32 v58, s34, v58
    s_waitcnt lgkmcnt(0)
    v_add_f32 v48, v48, v50
    v_add_f32 v49, v49, v51
    v_add_f32 v52, v52, v54
    v_add_f32 v53, v53, v55
    v_add_f32 v56, v48, v52
    v_add_f32 v57, v49, v53
    v_mul_f32 v56, {fx(1.0/512)}, v56        ; mean
    v_mul_f32 v57, {fx(1.0/512)}, v57
    v_fma_f32 v57, -v56, v56, v57
    v_max_f32 v57, 0, v57
    v_add_f32 v57, {fx(1e-5)}, v57
    v_rsq_f32 v57, v57
    v_cmp_gt_u32 vcc, 8, v0
    v_mul_f32 v56, -v56, v57
    v_cvt_pk_bf16_f32 v56, v57, v56          ; (r, -mean*r)
    s_and_saveexec_b64 s[54:55], vcc
    s_cbranch_execz p_nostat
    global_store_dword v58, v56, s[22:23] sc1
    p_nostat:
    s_mov_b64 exec, s[54:55]
    """)
    for st in (1, 2, 4, 8):
        for i in range(0, 16, 2 * st): a(f"v_add_f32 v{20+i}, v{20+i}, v{20+i+st}")
    a(f"""
    v_cvt_pk_bf16_f32 v20, v20, v20
    v_lshlrev_b32 v20, 16, v20
    s_lshl_b32 s34, s33, 7
    s_add_u32 s34, s34, {WS_MODP}
    v_lshlrev_b32 v4, 2, v0
    v_add_u32 v4, s34, v4
    s_cmp_lt_u32 s7, 24
    s_cselect_b32 s34, 16, 0
    v_cmp_gt_u32 vcc, s34, v0
    s_and_saveexec_b64 s[54:55], vcc
    s_cbranch_execz p_nomod
    global_store_dword v4, v20, s[22:23] sc1
    p_nomod:
    s_mov_b64 exec, s[54:55]
    """)
    a("s_waitcnt vmcnt(0)")
    lds_arrive(a, 1, 36)
    if SET == 1: a.stamp(3)
    a(f"""
    """)
    h_addr(a, 256)
    a("s_cmp_eq_u32 s26, 0\ns_cbranch_scc0 p_wait_release")
    lds_wait(a, 1, 4, 36, "p2")
    if os.environ.get("FORCE_RACE"):
        a("s_cmp_eq_u32 s2, 5\ns_cbranch_scc0 fr_skip\nv_add_u32 v96, 1, v96\nfr_skip:")
    grid_arrive(a, "p", 36); grid_wait(a, "p", 40, 96, int(os.environ.get("PSLP", 1)))
    lds_arrive(a, 4, 36)
    a("s_setprio 0\ns_branch p_released\np_wait_release:\ns_setprio 0")
    lds_wait(a, 4, 1, 36, "p3", 1)
    a("p_released:")
    if SET == 1: a.stamp(4)
    h_body(a)
    if SET == 1: a.stamp(5)
    a("s_barrier")
    a(f"""
    s_lshr_b32 s47, s2, 3
    s_mul_i32 s47, s47, 44032
    v_lshlrev_b32 v8, 6, v0
    v_add_u32 v8, s47, v8
    global_load_dword v9, v8, s[48:49]
    v_add_u32 v8, 16384, v8
    global_load_dword v10, v8, s[48:49]
    s_add_u32 s47, s47, {32768 + 175*64}
    v_add_u32 v8, 16384, v8
    v_min_u32 v8, s47, v8
    global_load_dword v11, v8, s[48:49]
    s_endpgm
    """)

def gen_w1p(a):
    IMG = 0
    RED = 16384
    a(f"""
    w1p:
    s_load_dwordx4 s[8:11], s[0:1], 80       ; w1, b1
    s_load_dwordx4 s[20:23], s[0:1], 136     ; debug, ws
    s_sub_u32 s3, s2, {NMAIN}                ; half block hb : fblk = hb>>1, mhalf = hb&1
    v_and_b32 v1, 63, v0
    v_lshrrev_b32 v2, 6, v0
    v_lshrrev_b32 v3, 1, v0                  ; rg
    v_and_b32 v4, 1, v0                      ; cc
    v_readfirstlane_b32 s26, v2
    v_mul_u32_u24 v5, {4*2752}, v3
    v_lshl_add_u32 v5, v4, 4, v5
    s_lshl_b32 s9, s3, 5
    s_waitcnt lgkmcnt(0)
    """.replace("s_lshl_b32 s9, s3, 5\n", ""))
    a(f"""
    s_lshl_b32 s12, s3, 5
    v_add_u32 v5, s12, v5
    """)
    a(f"""
    s_cmp_eq_u32 s3, 0
    s_cbranch_scc0 w_nozero
    v_lshlrev_b32 v60, 7, v1
    v_add_u32 v60, {WS_CNT}, v60
    v_mov_b32 v61, 0
    v_cmp_gt_u32 vcc, 16, v0
    s_and_saveexec_b64 s[54:55], vcc
    s_cbranch_execz w_nozero2
    global_store_dword v60, v61, s[22:23]
    w_nozero2:
    s_mov_b64 exec, s[54:55]
    w_nozero:
    """)
    go_addr(a, 100)
    a("s_cmp_eq_u32 s26, 0\ns_cbranch_scc0 w_noarr")
    go_load(a, 100)
    a("s_waitcnt vmcnt(0)")
    grid_arrive(a, "w", 96)
    a("w_noarr:")
    a(f"""
    v_and_b32 v7, 15, v0
    v_lshlrev_b32 v7, 1, v7
    v_add_u32 v55, s12, v7                   ; b1 address
    v_mov_b32 v57, 0x3f803f80
    v_lshrrev_b32 v58, 2, v3
    v_lshlrev_b32 v58, 9, v58
    v_bfe_u32 v59, v3, 1, 1
    v_lshl_add_u32 v58, v59, 8, v58
    v_lshl_add_u32 v58, v4, 7, v58
    v_and_b32 v59, 1, v3
    v_lshl_add_u32 v58, v59, 3, v58
    v_lshrrev_b32 v6, 2, v3
    v_lshlrev_b32 v6, 7, v6
    v_and_b32 v7, 3, v3
    v_lshl_add_u32 v6, v7, 4, v6
    v_add_u32 v6, {WS_MODP + 96*128}, v6
    v_add_u32 v7, 4096, v6
    """)
    EARLY = os.environ.get("W1EARLY", "1") == "1"
    def w1loads():
        for i in range(4):
            if i: a("v_add_u32 v5, 2752, v5")
            a(f"global_load_dwordx4 v[{64+4*i}:{67+4*i}], v5, s[8:9]")
        a("global_load_ushort v56, v55, s[10:11]")
    def unpack():
        for i in range(4):
            for e in range(8):
                src = 64 + 4 * i + e // 2
                a(f"v_lshlrev_b32 v{24+8*i+e}, 16, v{src}" if e % 2 == 0 else f"v_and_b32 v{24+8*i+e}, 0xffff0000, v{src}")
    NPRE = int(os.environ.get("WPRE", 2))
    if EARLY:
        if NPRE:
            a("s_cmp_eq_u32 s26, 0\ns_cbranch_scc0 w_pre")
            grid_wait(a, "w0", 104, 100, int(os.environ.get("WSLP", 8)), NPRE)
            a("w_pre:\ns_barrier")
        w1loads()
        a("s_waitcnt vmcnt(1)")
        unpack()
    a("s_cmp_eq_u32 s26, 0\ns_cbranch_scc0 w_released")
    grid_wait(a, "w", 104, 100, int(os.environ.get("WSLP2", 1)))
    a("w_released:\ns_barrier")
    if int(os.environ.get("WPRIO", 0)): a(f"s_setprio {os.environ['WPRIO']}")
    if not EARLY: w1loads()
    a(f"""
    global_load_dwordx4 v[8:11], v6, s[22:23] sc1        ; sb
    global_load_dwordx4 v[12:15], v7, s[22:23] sc1       ; cb
    """)
    if not EARLY:
        a("s_waitcnt vmcnt(3)")
        unpack()
    a("s_waitcnt vmcnt(0)")
    for i in range(4): a(f"v_add_f32 v{12+i}, 1.0, v{12+i}")
    a("v_cvt_pk_bf16_f32 v16, v12, v13\nv_cvt_pk_bf16_f32 v17, v14, v15")
    a("v_lshlrev_b32 v12, 16, v16\nv_and_b32 v13, 0xffff0000, v16\nv_lshlrev_b32 v14, 16, v17\nv_and_b32 v15, 0xffff0000, v17")
    for e in range(8): a(f"v_mul_f32 v{72+e}, v8, v{24+e}")
    for i in range(1, 4):
        for e in range(8): a(f"v_fmac_f32 v{72+e}, v{8+i}, v{24+8*i+e}")
    for i in range(4):
        for e in range(8): a(f"v_mul_f32 v{24+8*i+e}, v{12+i}, v{24+8*i+e}")
    for e in range(8):
        a(f"v_cvt_pk_bf16_f32 v{80+2*e}, v{24+e}, v{32+e}")
        a(f"v_cvt_pk_bf16_f32 v{81+2*e}, v{40+e}, v{48+e}")
    for e in range(8): a(f"ds_write_b64 v58, v[{80+2*e}:{81+2*e}] offset:{IMG + 16*e}")
    for e in range(8): a(f"v_dot2_f32_bf16 v{64+e}, v{80+2*e}, v57, 0")
    for e in range(8): a(f"v_dot2_f32_bf16 v{64+e}, v{81+2*e}, v57, v{64+e}")
    a("s_nop 2")
    for d in ["row_shr:2", "row_shr:4", "row_shr:8"]:
        for r in range(64, 80): a(f"v_add_f32_dpp v{r}, v{r}, v{r} {d} row_mask:0xf bank_mask:0xf")
    a(f"""
    v_lshrrev_b32 v5, 4, v0                  ; part
    v_mul_u32_u24 v5, 144, v5
    v_lshl_add_u32 v5, v4, 5, v5
    v_and_b32 v6, 15, v0
    v_cmp_lt_u32 vcc, 13, v6
    s_and_saveexec_b64 s[54:55], vcc
    ds_write_b128 v5, v[64:67] offset:{RED}
    ds_write_b128 v5, v[68:71] offset:{RED + 16}
    ds_write_b128 v5, v[72:75] offset:{RED + 64}
    ds_write_b128 v5, v[76:79] offset:{RED + 80}
    s_mov_b64 exec, s[54:55]
    v_lshlrev_b32 v7, 4, v0
    s_lshr_b32 s13, s3, 1
    s_lshl_b32 s13, s13, 15
    s_and_b32 s14, s3, 1
    s_lshl_b32 s14, s14, 8
    s_add_u32 s13, s13, s14
    s_add_u32 s13, s13, {WS_W1F}
    v_lshrrev_b32 v8, 4, v0
    v_lshlrev_b32 v8, 9, v8                  ; g*512 + s*1024 == (2s+g)*512
    v_lshl_add_u32 v8, v6, 4, v8
    v_add_u32 v8, s13, v8
    v_and_b32 v9, 31, v0
    v_lshlrev_b32 v9, 2, v9
    s_waitcnt lgkmcnt(0)
    s_barrier
    """)
    for k in range(4): a(f"ds_read_b128 v[{24+4*k}:{27+4*k}], v7 offset:{IMG + 4096*k}")
    a(f"""
    v_lshlrev_b32 v9, 2, v6
    v_bfe_u32 v10, v0, 4, 1
    v_lshl_add_u32 v9, v10, 6, v9            ; (t&15)*4 + ((t>>4)&1)*64
    """)
    for p in range(16): a(f"ds_read_b32 v{40+p}, v9 offset:{RED + 144*p}")
    for k in range(4):
        a(f"s_waitcnt lgkmcnt({15 if k == 0 else 15})" if False else "")
    a("s_waitcnt lgkmcnt(15)")
    a("s_waitcnt lgkmcnt(0)")
    for k in range(4):
        a(f"global_store_dwordx4 v8, v[{24+4*k}:{27+4*k}], s[22:23]{W1SC}")
        if k < 3: a(f"v_add_u32 v8, {16*512}, v8")
    for st in (1, 2, 4, 8):
        for p in range(0, 16, 2 * st): a(f"v_add_f32 v{40+p}, v{40+p}, v{40+p+st}")
    a(f"""
    v_lshlrev_b32 v56, 16, v56
    v_cmp_eq_u32 vcc, 1, v10
    s_nop 1
    v_cndmask_b32 v56, 0, v56, vcc
    v_add_f32 v40, v40, v56
    s_lshl_b32 s13, s3, 6
    v_lshl_add_u32 v11, v6, 2, s13
    v_mov_b32 v12, {WS_CS}
    v_mov_b32 v13, {WS_B1P}
    v_cndmask_b32 v12, v12, v13, vcc
    v_add_u32 v11, v11, v12
    v_cmp_gt_u32 vcc, 32, v0
    s_and_saveexec_b64 s[54:55], vcc
    s_cbranch_execz w1p_end
    global_store_dword v11, v40, s[22:23]{SC}
    w1p_end:
    s_endpgm
    """)

def gen_AB(a):
    a(f"""
    s_cmp_ge_u32 s2, {NMAIN}
    s_cbranch_scc1 ab_other
    v_lshrrev_b32 v3, 6, v0
    v_and_b32 v1, 63, v0
    s_and_b32 s6, s2, 7
    s_lshr_b32 s7, s2, 3
    v_readfirstlane_b32 s26, v3              ; wave
    v_lshlrev_b32 v4, 2, v0
    v_add_u32 v4, {CNT}, v4
    v_mov_b32 v5, 0
    v_cmp_gt_u32 vcc, 8, v0
    s_and_saveexec_b64 s[54:55], vcc
    ds_write_b32 v4, v5
    s_mov_b64 exec, s[54:55]
    s_lshl_b32 s29, s6, 6
    s_lshl_b32 s30, s7, 1
    s_add_u32 s29, s29, s30
    s_waitcnt lgkmcnt(0)
    s_barrier
    s_cmp_lt_u32 s26, 4
    s_cbranch_scc1 kwaves
    """)
    gen_pwaves(a)
    gen_kwaves(a)
    a(f"""
    ab_other:
    s_cmp_lt_u32 s2, {AB_GRID}
    s_cbranch_scc0 ab_end
    v_cmp_gt_u32 vcc, 256, v0
    s_cbranch_vccnz w1p
    ab_end:
    s_endpgm
    """)
    gen_w1p(a)
    a.l.append(idx_table())

if __name__ == "__main__":
    ks = [("convab_kernel", gen_AB, 128, AB_GRID, 512, AB_LDS),
          ("gemm1_kernel", gen_C, 176, C_GRID, 512, C_LDS),
          ("gemm2_kernel", gen_D, 128, D_GRID, 512, D_LDS)]
    s = build(ks)
    path = sys.argv[1] if len(sys.argv) > 1 else "out.s"
    open(path, "w").write(s)
    print("wrote", path, len(s))
```

```python
import sys, os
os.environ["MODP"] = "1"
import g5
from g5 import *
from g3b import HIDSC, OUTSC, HS

CD_GRID = 256
C_SLOT, C_NS = 28672, 4
C_TAB = C_NS * C_SLOT
D_NCH = 11
NW = int(os.environ.get("CD_NW", 6)); NH = 3
D_HID = NW * 16384
D_X2 = D_HID + NH * 16384
D_TAB = D_X2 + 8192
D_FLG = D_TAB + 512
CD_LDS = D_FLG + 16
assert D_X2 >= C_TAB + 768 and CD_LDS <= 163840
WS_CNT = g5.WS_CNT
CSET = int(os.environ.get("CSET", 0))
NODMA = bool(os.environ.get("CD_NODMA"))
PATOM = os.environ.get("PATOM", "1") == "1"
POLL = ("s_mov_b64 exec, 1\n    global_atomic_add v27, v21, v26, s[20:21] sc0 sc1\n    s_mov_b64 exec, -1" if PATOM else
        "global_load_dword v27, v21, s[20:21] " + os.environ.get("PSC", "sc1"))

def gen_CD(a):
    ACC, AQ, AS, FB = 64, 112, 120, 128
    st = lambda k, i: a.stamp(i) if CSET == k else None
    a(f"""
    s_cmp_ge_u32 s2, {CD_GRID}
    s_cbranch_scc1 cd_exit
    s_load_dwordx2 s[20:21], s[0:1], 144     ; ws
    s_load_dwordx4 s[44:47], s[0:1], 96      ; w2, b2
    s_load_dwordx2 s[48:49], s[0:1], 128     ; out
    s_and_b32 s6, s2, 7
    s_lshr_b32 s7, s2, 3                     ; j
    s_and_b32 s4, s6, 3
    s_lshl_b32 s4, s4, 2
    s_and_b32 s12, s7, 3
    s_add_u32 s4, s4, s12                    ; lt = 4(k&3) + (j&3)
    s_lshr_b32 s5, s6, 2
    s_lshl_b32 s5, s5, 3
    s_lshr_b32 s13, s7, 2
    s_add_u32 s5, s5, s13
    s_lshl_b32 s52, s6, 2
    s_add_u32 s52, s52, s12                  ; lt64 = 4k + (j&3)
    s_mov_b32 s53, s13                       ; dt = j>>2
    v_lshrrev_b32 v3, 6, v0
    v_and_b32 v1, 63, v0
    v_lshlrev_b32 v4, 4, v1                  ; lane*16
    v_readfirstlane_b32 s26, v3              ; wave
    s_cmp_lt_u32 s26, 4
    s_cbranch_scc1 cd_compute
    s_sub_u32 s26, s26, 4
    v_lshrrev_b32 v5, 4, v1
    v_lshlrev_b32 v6, 2, v5
    v_and_b32 v7, 15, v1
    v_xor_b32 v6, v6, v7
    v_lshlrev_b32 v6, 4, v6
    v_lshl_add_u32 v5, v5, 12, v6
    s_mul_i32 s6, s5, {3*32*1024}
    s_add_u32 s6, s6, {WS_W1F}
    s_mul_i32 s7, s26, 3
    """)
    for i in range(3):
        a(f"""
        s_add_u32 s12, s7, {i}
        s_lshr_b32 s13, s12, 2
        s_and_b32 s12, s12, 3
        s_lshl_b32 s13, s13, 15
        s_lshl_b32 s12, s12, 10
        s_add_u32 s12, s12, s13
        s_add_u32 s{30+i}, s12, s6
        """)
    a(f"""
    s_lshl_b32 s12, s26, 16
    s_lshl_b32 s13, s4, 8
    s_add_u32 s12, s12, s13
    s_add_u32 s33, s12, {WS_X2T}
    s_mul_i32 s34, s26, 3072
    s_lshl_b32 s35, s26, 12
    s_add_u32 s35, s35, 12288
    s_lshl_b32 s12, s4, 7
    s_add_u32 s12, s12, {WS_CNT}
    v_mov_b32 v20, s12
    s_lshr_b32 s12, s52, 1
    s_lshl_b32 s12, s12, 7
    s_add_u32 s12, s12, {WS_CNT}
    v_mov_b32 v21, s12
    s_waitcnt lgkmcnt(0)
    """)
    srd(a, 8, 20, WS_SIZE)
    st(1, 0)
    def dmaC(c):
        slot = (c % C_NS) * C_SLOT
        a(f"s_and_b32 s37, {c}, 7\ns_lshl_b32 s38, s37, 18\ns_lshl_b32 s37, s37, 12\ns_add_u32 s38, s38, s33")
        for j in range(4):
            a(f"s_add_u32 m0, s35, {slot + 1024*j}")
            a(f"s_add_u32 s38, s38, 16384" if j else "s_nop 0")
            a(f"buffer_load_dwordx4 v5, s[8:11], s38 offen lds")
        for i in range(3):
            a(f"s_add_u32 m0, s34, {slot + 1024*i}")
            a(f"s_add_u32 s12, s{30+i}, s37")
            a(f"buffer_load_dwordx4 v4, s[8:11], s12 offen lds")
    a("s_cmp_ge_u32 s5, 15\ns_cbranch_scc1 cd_ld_noC")
    dmaC(0); dmaC(1)
    for c in range(8):
        last = min(7, c + 1)
        n = 7 * (last - c)
        a(f"s_waitcnt vmcnt({n})")
        a("s_barrier")
        if c == 0: st(1, 1)
        if c + 2 <= 7: dmaC(c + 2)
    a("s_barrier")
    a("s_branch cd_ld2")
    a("cd_ld_noC:")
    a("cd_ld2:")
    st(1, 2)
    a(f"""
    s_and_b32 s27, s26, 1
    s_lshr_b32 s28, s26, 1
    s_and_b32 s6, s52, 3
    s_lshl_b32 s6, s6, 1
    s_add_u32 s36, s6, s53
    s_and_b32 s36, s36, {((8 - 8 // int(os.environ.get("D_ROT", 4))) & 7)}
    s_mul_i32 s36, s36, 11
    s_lshr_b32 s36, s36, 3
    v_lshrrev_b32 v5, 3, v1
    v_bfe_u32 v6, v1, 4, 1
    v_lshlrev_b32 v6, 2, v6
    v_and_b32 v7, 7, v1
    v_xor_b32 v6, v6, v7
    v_lshlrev_b32 v6, 4, v6
    v_lshl_add_u32 v5, v5, 10, v6
    v_lshrrev_b32 v9, 3, v1
    v_lshl_add_u32 v9, v9, 12, v6
    s_lshl_b32 s31, s27, 13
    """)
    def dmaD(c, fl=""):
        slot = (c % NW) * 16384 if not fl else D_HID + (c % NH) * 16384
        a(f"""
        s_add_u32 s34, s36, {c}
        s_sub_u32 s35, s34, 11
        s_cmp_ge_u32 s34, 11
        s_cselect_b32 s34, s35, s34
        s_mul_i32 s34, s34, s33
        s_add_u32 s34, s34, s30
        """)
        for i in range(8):
            a(f"s_add_u32 m0, s31, {slot + 1024*i}")
            a(f"s_add_u32 s34, s34, s32" if i else "s_nop 0")
            a(f"buffer_load_dwordx4 v8, s[8:11], s34 offen{fl} lds")
    a(f"""
    s_cmp_eq_u32 s28, 0
    s_cbranch_scc0 cd_hid
    s_mov_b32 s8, s44
    s_mov_b32 s9, s45
    s_mov_b32 s10, {1376*512*2}
    s_mov_b32 s11, 0x00020000
    s_lshl_b32 s30, s27, 16
    s_lshl_b32 s12, s53, 7
    s_add_u32 s30, s30, s12
    s_mov_b32 s32, 8192
    s_mov_b32 s33, 131072
    v_mov_b32 v8, v5
    """)
    srd(a, 40, 20, WS_SIZE)
    NPRE = NW
    W2LATE = os.environ.get("W2LATE") == "1"
    if W2LATE: a("s_barrier")
    dmaD(0)
    a(f"""
    s_lshl_b32 s12, s53, 6
    s_lshl_b32 s13, s27, 5
    s_add_u32 s12, s12, s13
    s_lshl_b32 s12, s12, 12
    s_lshl_b32 s13, s52, 7
    s_add_u32 s12, s12, s13
    s_add_u32 s12, s12, {WS_X2T}
    s_lshl_b32 s13, s27, 12
    s_add_u32 s13, s13, {D_X2}
    """)
    for i in range(4):
        a(f"s_add_u32 m0, s13, {1024*i}")
        a(f"s_add_u32 s14, s12, {8*4096*i}")
        a("buffer_load_dwordx4 v9, s[40:43], s14 offen lds")
    for c in range(1, NPRE): dmaD(c)
    if not W2LATE:
        a(f"s_waitcnt vmcnt({8*(NPRE-1)})")
        a("s_barrier")
    issued = NPRE - 1
    for c in range(D_NCH):
        a(f"s_waitcnt vmcnt({8*(issued - c)})")
        a("s_barrier")
        k = c + NPRE - 1
        if c >= 1 and k < D_NCH and not NODMA:
            dmaD(k); issued = k
    a("s_endpgm")
    a(f"""
    cd_hid:
    s_mov_b32 s8, s20
    s_mov_b32 s9, s21
    s_mov_b32 s10, {WS_SIZE}
    s_mov_b32 s11, 0x00020000
    s_lshl_b32 s30, s52, 1
    s_add_u32 s30, s30, s27
    s_mul_i32 s30, s30, {HS*1024}
    s_add_u32 s30, s30, {WS_HID}
    s_mov_b32 s32, 1024
    s_mov_b32 s33, 8192
    v_mov_b32 v8, v4
    v_mov_b32 v24, {D_FLG}
    s_barrier
    """)
    st(1, 3)
    a(f"""
    s_cmp_eq_u32 s27, 0
    s_cbranch_scc0 cd_relay
    s_cmp_ge_u32 s5, 15
    s_cbranch_scc1 cd_noarr
    v_mov_b32 v26, 1
    s_mov_b64 exec, 1
    global_atomic_add v20, v26, s[20:21] sc1
    s_mov_b64 exec, -1
    cd_noarr:
    s_mov_b32 s60, 0
    v_mov_b32 v26, 0
    cd_poll:
    {POLL}
    s_waitcnt vmcnt(0)
    v_readfirstlane_b32 s12, v27
    s_nop 0
    s_cmp_eq_u32 s12, 15
    s_cbranch_scc1 cd_go
    s_add_u32 s60, s60, 1
    s_sleep 1
    s_cmp_lt_u32 s60, {SPIN_MAX}
    s_cbranch_scc1 cd_poll
    cd_go:
    v_mov_b32 v25, 1
    ds_write_b32 v24, v25
    s_branch cd_released
    cd_relay:
    ds_read_b32 v25, v24
    s_waitcnt lgkmcnt(0)
    v_readfirstlane_b32 s12, v25
    s_cmp_eq_u32 s12, 1
    s_cbranch_scc1 cd_released
    s_sleep 1
    s_branch cd_relay
    cd_released:
    """)
    st(1, 4)
    dmaD(0, " sc1"); dmaD(1, " sc1")
    for c in range(D_NCH):
        last = min(D_NCH - 1, c + 1)
        a(f"s_waitcnt vmcnt({8*(last - c)})")
        a("s_barrier")
        if c == 0: st(1, 5)
        if c + 2 < D_NCH and not NODMA: dmaD(c + 2, " sc1")
    a("s_endpgm")

    a(f"""
    cd_compute:
    v_lshlrev_b32 v8, 2, v0
    s_mul_i32 s12, s5, 384
    s_add_u32 s13, s12, {WS_CS}
    s_add_u32 s12, s12, {WS_B1P}
    v_and_b32 v6, 15, v1
    v_lshrrev_b32 v7, 2, v6                  ; r
    v_and_b32 v6, 3, v6                      ; c
    v_lshrrev_b32 v9, 5, v1                  ; g
    v_lshl_add_u32 v12, v9, 3, v7
    v_lshlrev_b32 v12, 8, v12
    v_bfe_u32 v13, v1, 4, 1
    v_lshlrev_b32 v13, 1, v13
    v_lshl_add_u32 v13, v3, 2, v13
    v_lshrrev_b32 v14, 1, v6
    v_add_u32 v13, v13, v14
    v_lshlrev_b32 v14, 2, v7
    v_xor_b32 v13, v13, v14
    v_lshl_add_u32 v12, v13, 4, v12
    v_and_b32 v6, 1, v6
    v_lshl_add_u32 v12, v6, 3, v12
    v_add_u32 v16, 12288, v12
    v_add_u32 v17, {2*C_SLOT}, v16
    v_mov_b32 v19, v4
    v_add_u32 v20, {2*C_SLOT}, v4
    v_mov_b32 v22, 0x3f803f80
    v_mov_b32 v23, 0x3f803f80
    v_add_u32 v9, {C_TAB}, v8
    v_lshrrev_b32 v14, 4, v0
    v_lshlrev_b32 v14, 7, v14
    v_and_b32 v21, 15, v0
    v_lshl_add_u32 v14, v21, 2, v14
    s_lshl_b32 s16, s53, 9
    s_add_u32 s16, s16, {WS_MODP + 160*128}
    v_lshlrev_b32 v15, 1, v0
    s_lshl_b32 s17, s53, 7
    v_add_u32 v15, s17, v15
    v_min_u32 v15, 1022, v15
    v_add_u32 v18, {D_TAB}, v8
    v_mov_b32 v24, 0
    v_mov_b32 v25, {D_FLG}
    ds_write_b32 v25, v24
    s_waitcnt lgkmcnt(0)
    """)
    srd(a, 8, 20, WS_SIZE)
    st(0, 0)
    a(f"""
    buffer_load_dword v10, v8, s[8:11], s13 offen
    buffer_load_dword v11, v8, s[8:11], s12 offen
    buffer_load_dword v14, v14, s[8:11], s16 offen
    global_load_ushort v15, v15, s[46:47]
    """)
    def tables():
        a(f"""
        s_waitcnt vmcnt(0)
        v_lshlrev_b32 v15, 16, v15
        v_cmp_gt_u32 vcc, 96, v0
        s_and_saveexec_b64 s[14:15], vcc
        ds_write_b32 v9, v10
        ds_write_b32 v9, v11 offset:384
        s_mov_b64 exec, s[14:15]
        v_cmp_gt_u32 vcc, 64, v0
        s_and_saveexec_b64 s[14:15], vcc
        ds_write_b32 v18, v14
        ds_write_b32 v18, v15 offset:256
        s_mov_b64 exec, s[14:15]
        """)
    a("s_cmp_ge_u32 s5, 15\ns_cbranch_scc0 cd_doC")
    tables()
    a("s_waitcnt lgkmcnt(0)\ns_branch cd_cmp2\ncd_doC:")
    for r in range(ACC, FB): a(f"v_mov_b32 v{r}, 0")
    T = LdsTracker(a)
    def read_list(c, s):
        slot = c % C_NS
        grp = slot // 2; so = (slot % 2) * C_SLOT
        buf = (4 * c + s) % 3
        fb = FB + 16 * buf
        L = [(f"ds_read_b64_tr_b16 v[{fb+12}:{fb+13}], v{16+grp} offset:{so + s*4096}", [f"x{buf}"]),
             (f"ds_read_b64_tr_b16 v[{fb+14}:{fb+15}], v{16+grp} offset:{so + s*4096 + 1024}", [f"x{buf}"])]
        for b in range(3):
            L.append((f"ds_read_b128 v[{fb+4*b}:{fb+4*b+3}], v{19+grp} offset:{so + (b*4+s)*1024}", [f"w{buf}{b}"]))
        return L
    def mfmas(c, s, rd=()):
        rd = list(rd)
        def pop(n):
            for _ in range(n):
                if rd: T.issue(*rd.pop(0))
        buf = (4 * c + s) % 3; fb = FB + 16 * buf
        T.need([f"x{buf}", f"w{buf}0", f"w{buf}1", f"w{buf}2"])
        per = (len(rd) + 2) // 3
        for b in range(3):
            a(f"v_mfma_f32_32x32x16_bf16 v[{ACC+16*b}:{ACC+16*b+15}], v[{fb+4*b}:{fb+4*b+3}], v[{fb+12}:{fb+15}], v[{ACC+16*b}:{ACC+16*b+15}]")
            pop(per)
            if b == 0:
                a(f"v_mfma_f32_4x4x4_16b_bf16 v[{AQ}:{AQ+3}], v[{fb+12}:{fb+13}], v[{fb+12}:{fb+13}], v[{AQ}:{AQ+3}]")
                a(f"v_mfma_f32_4x4x4_16b_bf16 v[{AS}:{AS+3}], v[22:23], v[{fb+12}:{fb+13}], v[{AS}:{AS+3}]")
            if b == 1:
                a(f"v_mfma_f32_4x4x4_16b_bf16 v[{AQ+4}:{AQ+7}], v[{fb+14}:{fb+15}], v[{fb+14}:{fb+15}], v[{AQ+4}:{AQ+7}]")
                a(f"v_mfma_f32_4x4x4_16b_bf16 v[{AS+4}:{AS+7}], v[22:23], v[{fb+14}:{fb+15}], v[{AS+4}:{AS+7}]")
        pop(99)
    for c in range(8):
        if c == 1:
            tables()
            T.issued += 4
        T.drain()
        a("s_barrier")
        if c == 0: st(0, 1)
        if c > 0: mfmas(c - 1, 3, read_list(c, 0) + read_list(c, 1))
        else:
            for x in read_list(c, 0) + read_list(c, 1): T.issue(*x)
        mfmas(c, 0, read_list(c, 2))
        mfmas(c, 1, read_list(c, 3))
        mfmas(c, 2)
    T.drain()
    a("s_barrier")
    mfmas(7, 3)
    st(0, 2)
    a(f"""
    v_and_b32 v6, 3, v1
    v_cmp_eq_u32 s[12:13], 1, v6
    v_cmp_eq_u32 s[14:15], 2, v6
    v_cmp_eq_u32 s[16:17], 3, v6
    v_lshrrev_b32 v6, 5, v1
    v_lshlrev_b32 v6, 4, v6
    v_add_u32 v6, {C_TAB}, v6
    """)
    for q in range(4):
        a(f"ds_read_b128 v[{28+4*q}:{31+4*q}], v6 offset:{(8*q)*4}")
        a(f"ds_read_b128 v[{44+4*q}:{47+4*q}], v6 offset:{384 + (8*q)*4}")
    a(f"""
    v_add_f32 v{AQ}, v{AQ}, v{AQ+4}
    v_add_f32 v{AQ+1}, v{AQ+1}, v{AQ+5}
    v_add_f32 v{AQ+2}, v{AQ+2}, v{AQ+6}
    v_add_f32 v{AQ+3}, v{AQ+3}, v{AQ+7}
    v_add_f32 v{AS}, v{AS}, v{AS+4}
    v_cndmask_b32 v{AQ}, v{AQ}, v{AQ+1}, s[12:13]
    v_cndmask_b32 v{AQ}, v{AQ}, v{AQ+2}, s[14:15]
    v_cndmask_b32 v{AQ}, v{AQ}, v{AQ+3}, s[16:17]
    v_mov_b32 v25, v{AS}
    v_mov_b32 v24, v{AQ}
    s_nop 1
    v_permlane32_swap_b32 v25, v{AS}
    v_permlane32_swap_b32 v24, v{AQ}
    s_nop 1
    v_add_f32 v25, v25, v{AS}
    v_add_f32 v24, v24, v{AQ}
    v_mul_f32 v25, {fx(1.0/512)}, v25
    v_mul_f32 v24, {fx(1.0/512)}, v24
    v_fma_f32 v24, -v25, v25, v24
    v_max_f32 v24, 0, v24
    v_add_f32 v24, {fx(1e-5)}, v24
    v_rsq_f32 v24, v24                       ; r
    s_lshl_b32 s12, s4, 2
    v_mul_f32 v26, -v25, v24                 ; -mean*r
    s_add_u32 s12, s12, s26
    s_mul_i32 s12, s12, {HS}
    v_mov_b32 v25, v24
    v_mov_b32 v27, v26
    s_mul_i32 s13, s5, 6
    s_add_u32 s12, s12, s13
    s_lshl_b32 s12, s12, 10
    s_add_u32 s12, s12, {WS_HID}
    """)
    for b in range(3):
        cs, bb = (28, 44) if b % 2 == 0 else (144, 160)
        a("s_waitcnt lgkmcnt(0)")
        if b < 2:
            cs2, bb2 = (144, 160) if b % 2 == 0 else (28, 44)
            for q in range(4):
                a(f"ds_read_b128 v[{cs2+4*q}:{cs2+4*q+3}], v6 offset:{(32*(b+1) + 8*q)*4}")
                a(f"ds_read_b128 v[{bb2+4*q}:{bb2+4*q+3}], v6 offset:{384 + (32*(b+1) + 8*q)*4}")
        for j in range(8):
            a(f"v_pk_fma_f32 v[{bb+2*j}:{bb+2*j+1}], v[26:27], v[{cs+2*j}:{cs+2*j+1}], v[{bb+2*j}:{bb+2*j+1}]")
        for j in range(8):
            a(f"v_pk_fma_f32 v[{bb+2*j}:{bb+2*j+1}], v[24:25], v[{ACC+16*b+2*j}:{ACC+16*b+2*j+1}], v[{bb+2*j}:{bb+2*j+1}]")
        for j in range(16): a(f"v_max_f32 v{bb+j}, 0, v{bb+j}")
        for j in range(8): a(f"v_pk_mul_f32 v[{bb+2*j}:{bb+2*j+1}], v[{bb+2*j}:{bb+2*j+1}], v[{bb+2*j}:{bb+2*j+1}]")
        o = ACC + 16 * b
        for j in range(8): a(f"v_cvt_pk_bf16_f32 v{o+j}, v{bb+2*j}, v{bb+2*j+1}")
        a("s_nop 1")
        a(f"v_permlane32_swap_b32 v{o}, v{o+2}")
        a(f"v_permlane32_swap_b32 v{o+1}, v{o+3}")
        a(f"v_permlane32_swap_b32 v{o+4}, v{o+6}")
        a(f"v_permlane32_swap_b32 v{o+5}, v{o+7}")
        a(f"buffer_store_dwordx4 v[{o}:{o+3}], v4, s[8:11], s12 offen sc1")
        a(f"buffer_store_dwordx4 v[{o+4}:{o+7}], v4, s[8:11], s12 offen offset:1024 sc1")
        a("s_add_u32 s12, s12, 2048")
        if b == 0:
            a(f"""
            s_cmp_eq_u32 s5, 14
            s_cbranch_scc0 cd_more
            s_waitcnt lgkmcnt(0)
            v_mov_b32 v28, 0
            v_mov_b32 v29, 0
            v_mov_b32 v30, 0
            v_mov_b32 v31, 0
            buffer_store_dwordx4 v[28:31], v4, s[8:11], s12 offen sc1
            buffer_store_dwordx4 v[28:31], v4, s[8:11], s12 offen offset:1024 sc1
            s_branch cd_cmp2
            cd_more:
            """)
    ACC, FB = 64, 80
    a(f"""
    cd_cmp2:
    s_and_b32 s27, s26, 1                    ; wm
    s_lshr_b32 s28, s26, 1                   ; wn
    v_and_b32 v6, 15, v1
    v_lshrrev_b32 v7, 2, v6                  ; r
    v_and_b32 v6, 3, v6                      ; c
    v_lshrrev_b32 v12, 5, v1                 ; g
    v_lshl_add_u32 v12, v12, 3, v7
    v_lshlrev_b32 v12, 7, v12
    v_bfe_u32 v13, v1, 4, 1
    v_lshlrev_b32 v13, 1, v13
    s_lshl_b32 s12, s27, 2
    v_add_u32 v13, s12, v13
    v_lshrrev_b32 v16, 1, v6
    v_add_u32 v13, v13, v16
    v_lshrrev_b32 v7, 1, v7
    v_lshlrev_b32 v7, 2, v7
    v_xor_b32 v13, v13, v7
    v_lshl_add_u32 v12, v13, 4, v12
    v_and_b32 v6, 1, v6
    v_lshl_add_u32 v16, v6, 3, v12
    v_add_u32 v17, 65536, v16
    s_lshl_b32 s12, s28, 13
    s_add_u32 s12, s12, {D_HID}
    v_add_u32 v18, s12, v4
    s_waitcnt vmcnt(0)
    """)
    st(0, 3)
    a("s_barrier")
    for r in range(16): a(f"v_mov_b32 v{ACC+r}, 0")
    T = LdsTracker(a)
    NB = 5
    def reads(c, s):
        wo = (c % NW) * 16384; grp = wo // 65536; wo %= 65536
        ho = (c % NH) * 16384
        g = (8 * c + s) % NB
        fb = FB + 8 * g
        T.issue(f"ds_read_b64_tr_b16 v[{fb}:{fb+1}], v{16+grp} offset:{wo + s*2048}", [f"a{g}"])
        T.issue(f"ds_read_b64_tr_b16 v[{fb+2}:{fb+3}], v{16+grp} offset:{wo + s*2048 + 512}", [f"a{g}"])
        T.issue(f"ds_read_b128 v[{fb+4}:{fb+7}], v{18} offset:{ho + s*1024}", [f"b{g}"])
    def mfma(c, s):
        g = (8 * c + s) % NB; fb = FB + 8 * g
        T.need([f"a{g}", f"b{g}"])
        a(f"v_mfma_f32_32x32x16_bf16 v[{ACC}:{ACC+15}], v[{fb}:{fb+3}], v[{fb+4}:{fb+7}], v[{ACC}:{ACC+15}]")
    def epi_prepare():
        a(f"""
        v_and_b32 v6, 15, v1
        v_lshrrev_b32 v7, 2, v6
        v_and_b32 v6, 3, v6
        v_lshrrev_b32 v12, 5, v1                 ; h
        v_lshl_add_u32 v13, v12, 2, v7
        s_lshl_b32 s12, s27, 5
        v_add_u32 v13, s12, v13
        v_lshlrev_b32 v13, 7, v13
        v_bfe_u32 v14, v1, 4, 1
        v_lshlrev_b32 v14, 1, v14
        s_lshl_b32 s12, s28, 2
        v_add_u32 v14, s12, v14
        v_lshrrev_b32 v15, 1, v6
        v_add_u32 v14, v14, v15
        v_lshrrev_b32 v7, 1, v7
        v_lshlrev_b32 v7, 2, v7
        v_xor_b32 v14, v14, v7
        v_lshl_add_u32 v13, v14, 4, v13
        v_and_b32 v6, 1, v6
        v_lshl_add_u32 v13, v6, 3, v13
        v_add_u32 v13, {D_X2}, v13
        v_lshlrev_b32 v14, 4, v12
        s_lshl_b32 s12, s27, 7
        s_add_u32 s12, s12, {D_TAB}
        v_add_u32 v14, s12, v14
        """)
        for q in range(4):
            T.issue(f"ds_read_b64_tr_b16 v[{24+2*q}:{25+2*q}], v13 offset:{1024*q}", ["epi"])
            T.issue(f"ds_read_b128 v[{32+4*q}:{35+4*q}], v14 offset:{32*q}", ["epi"])
            T.issue(f"ds_read_b128 v[{48+4*q}:{51+4*q}], v14 offset:{256+32*q}", ["epi"])
        a(f"""
        v_and_b32 v5, 31, v1
        v_lshlrev_b32 v20, 10, v5
        v_lshl_add_u32 v20, v12, 4, v20
        s_lshl_b32 s12, s52, 1
        s_add_u32 s12, s12, s28
        s_lshl_b32 s12, s12, 15
        s_lshl_b32 s13, s53, 1
        s_add_u32 s13, s13, s27
        s_lshl_b32 s13, s13, 6
        s_add_u32 s12, s12, s13
        v_add_u32 v20, s12, v20
        """)
    def epi_finish():
        T.need(["epi"])
        for q in range(4):
            a(f"v_lshlrev_b32 v8, 16, v{24+2*q}")
            a(f"v_and_b32 v9, 0xffff0000, v{24+2*q}")
            a(f"v_lshlrev_b32 v10, 16, v{25+2*q}")
            a(f"v_and_b32 v11, 0xffff0000, v{25+2*q}")
            for r in range(4): a(f"v_fma_f32 v{48+4*q+r}, v{48+4*q+r}, v{32+4*q+r}, v{8+r}")
    epi_prepare(); epi_finish()
    EPC = -5
    for c in range(D_NCH):
        T.drain()
        a("s_barrier")
        if c == 0: st(0, 4)
        if c in (0, 2, 4, 6, 8, 10): st(2, c // 2)
        reads(c, 0); reads(c, 1); reads(c, 2); reads(c, 3)
        if c > 0: mfma(c - 1, 7)
        for s in range(7):
            if s + 4 < 8: reads(c, s + 4)
            mfma(c, s)
            if c == EPC and s == 1: epi_prepare()
            if c == EPC + 1 and s == 2: epi_finish()
    mfma(D_NCH - 1, 7)
    st(0, 5)
    a("s_nop 7\ns_nop 3")
    for q in range(4):
        for r in range(4): a(f"v_fma_f32 v{48+4*q+r}, v{ACC+4*q+r}, v{32+4*q+r}, v{48+4*q+r}")
        a(f"v_cvt_pk_bf16_f32 v{FB+2*q}, v{48+4*q}, v{49+4*q}")
        a(f"v_cvt_pk_bf16_f32 v{FB+2*q+1}, v{50+4*q}, v{51+4*q}")
    a(f"""
    s_nop 1
    v_permlane32_swap_b32 v{FB}, v{FB+2}
    v_permlane32_swap_b32 v{FB+1}, v{FB+3}
    v_permlane32_swap_b32 v{FB+4}, v{FB+6}
    v_permlane32_swap_b32 v{FB+5}, v{FB+7}
    global_store_dwordx4 v20, v[{FB}:{FB+3}], s[48:49]{OUTSC}
    global_store_dwordx4 v20, v[{FB+4}:{FB+7}], s[48:49] offset:32{OUTSC}
    cd_exit:
    s_endpgm
    """)

if __name__ == "__main__":
    ks = [("convab_kernel", gen_AB, 128, AB_GRID, 512, AB_LDS),
          ("mlp_kernel", gen_CD, 176, CD_GRID, 512, CD_LDS)]
    s = build(ks)
    path = sys.argv[1] if len(sys.argv) > 1 else "out.s"
    open(path, "w").write(s)
    print("wrote", path, len(s))
```

```python
import sys, os
os.environ["MODP"] = "1"
import g3
from g3 import *
import g3b
from g3b import gen_C, gen_D, C_GRID, C_LDS, D_GRID, D_LDS, KCP, KCHL

NMAIN, NW1 = 256, 43
TCH = 57 * TROW
H_OFF = 2 * KCHL
HCH = 4608
XR_OFF = H_OFF + 2 * HCH
RED_OFF = XR_OFF + 8192
LNT = 62016
KC2 = LNT + 4 * 2560
KCS = 776 * 4
MODS = KC2 + 2 * KCS
STP = MODS + 16 * 80
FLG = STP + 256
CNT = FLG + 16
AB_LDS = CNT + 32
NW1 = 86
AB_GRID = NMAIN + NW1
XBS = 8192
WS_MODP = 0x10000
WS_CNT = 0x28000
WS_GO = 0x20000
WS_XB = WS_XT
SET = int(os.environ.get("STAMPSET", 0))
PPRIO = int(os.environ.get("PPRIO", 1))
X2SC = os.environ.get("X2SC", "")
X2W = bool(os.environ.get("X2W"))
W1SC = os.environ.get("W1SC", " sc1")
KP0 = int(os.environ.get("KP0", 3))
KP1 = int(os.environ.get("KP1", 0))
SPIN_MAX = 0x20000

def lds_arrive(a, k, v):
    a(f"""
    v_mov_b32 v{v}, {CNT + 4*k}
    v_mov_b32 v{v+1}, 1
    s_mov_b64 exec, 1
    ds_add_u32 v{v}, v{v+1}
    s_mov_b64 exec, -1
    """)
def lds_wait(a, k, n, v, tag, slp=1):
    a(f"""
    v_mov_b32 v{v}, {CNT + 4*k}
    lw_{tag}:
    ds_read_b32 v{v+1}, v{v}
    s_waitcnt lgkmcnt(0)
    v_readfirstlane_b32 s62, v{v+1}
    s_cmp_ge_u32 s62, {n}
    s_cbranch_scc1 lw_{tag}_done
    s_sleep {slp}
    s_branch lw_{tag}
    lw_{tag}_done:
    """)

def h_addr(a, toff):
    a(f"""
    v_add_u32 v11, {toff}, v0
    v_lshrrev_b32 v12, 1, v11                ; block
    v_and_b32 v10, 1, v11                    ; ch
    v_lshlrev_b32 v4, 13, v12
    v_lshl_add_u32 v4, v10, 4, v4
    s_lshl_b32 s38, s29, 4
    s_add_u32 s38, s38, {WS_XB}
    v_add_u32 v4, s38, v4
    v_lshlrev_b32 v5, 5, v12
    v_add_u32 v5, {WS_ST1}, v5               ; statistics
    s_lshr_b32 s38, s29, 4
    s_lshl_b32 s38, s38, 7
    s_and_b32 s39, s29, 15
    s_lshl_b32 s39, s39, 2
    s_add_u32 s38, s38, s39
    s_add_u32 s38, s38, {WS_MODP}
    v_lshl_add_u32 v6, v10, 2, s38
    v_mul_u32_u24 v7, {HCH}, v10
    v_lshl_add_u32 v7, v12, 4, v7
    v_add_u32 v7, {H_OFF + 512}, v7          ; h (LDS)
    v_lshlrev_b32 v8, 12, v10
    v_lshl_add_u32 v8, v12, 4, v8
    v_add_u32 v8, {XR_OFF}, v8
    v_lshlrev_b32 v9, 2, v10
    v_add_u32 v9, {MODS}, v9
    v_add_u32 v13, 4096, v6
    v_add_u32 v14, 4096, v13
    """)
def h_body(a):
    a(f"""
    global_load_dwordx4 v[64:67], v4, s[22:23] sc1
    global_load_dwordx4 v[68:71], v5, s[22:23] sc1
    global_load_dwordx4 v[72:75], v5, s[22:23] offset:16 sc1
    global_load_dword v76, v6, s[22:23] sc1
    global_load_dword v77, v13, s[22:23] sc1
    global_load_dword v78, v14, s[22:23] sc1
    s_waitcnt vmcnt(5)
    ds_write_b128 v8, v[64:67]
    """)
    for e in range(8):
        src = 64 + e // 2
        a(f"v_lshlrev_b32 v{80+e}, 16, v{src}" if e % 2 == 0 else f"v_and_b32 v{80+e}, 0xffff0000, v{src}")
    a("s_waitcnt vmcnt(3)")
    for e in range(8):
        a(f"v_lshlrev_b32 v{12+(e%4)}, 16, v{68+e}")
        a(f"v_and_b32 v{68+e}, 0xffff0000, v{68+e}")
        a(f"v_fma_f32 v{80+e}, v{80+e}, v{12+(e%4)}, v{68+e}")
    a(f"""
    s_waitcnt vmcnt(0)
    v_add_f32 v77, 1.0, v77
    v_cvt_pk_bf16_f32 v77, v77, v77
    ds_write_b32 v9, v78                     ; ga
    v_lshlrev_b32 v77, 16, v77               ; gamma
    """)
    for e in range(8): a(f"v_fma_f32 v{80+e}, v{80+e}, v77, v76")
    for p in range(4): a(f"v_cvt_pk_bf16_f32 v{88+p}, v{80+2*p}, v{81+2*p}")
    a("ds_write_b128 v7, v[88:91]")
    a("s_waitcnt lgkmcnt(0)")

IDX0 = 62428
def idx_table():
    import numpy as np
    def bf16_round_int(l):
        u = int(np.float32(l).view(np.uint32))
        r = (u + 0x7FFF + ((u >> 16) & 1)) >> 16
        return r
    rows = []
    for t in range(256):
        vals = []
        for e in range(12):
            l = 2047 - 8 * t - e
            if e == 11: vals.append(0); continue
            if l < 0: idx = 768
            elif l < 128: idx = l
            else: idx = bf16_round_int(l) - 0x4300 + 128
            vals.append(4 * idx + KC2 - IDX0)
        rows.append(vals)
    out = ".p2align 4\n.type kidx_table,@object\nkidx_table:\n"
    for r in rows: out += "    .short " + ", ".join(str(v) for v in r) + "\n"
    out += ".size kidx_table, 6144\n"
    return out
def idx_load(a, tag, d):
    a(f"""
    s_getpc_b64 s[56:57]
    idx_pc_{tag}:
    s_add_u32 s56, s56, kidx_table-idx_pc_{tag}
    s_addc_u32 s57, s57, 0
    v_mul_u32_u24 v{d+6}, 24, v0
    global_load_dwordx4 v[{d}:{d+3}], v{d+6}, s[56:57]
    global_load_dwordx2 v[{d+4}:{d+5}], v{d+6}, s[56:57] offset:16
    """)
def idx_unpack(a, d, o):
    for e in range(11):
        a(f"v_and_b32 v{o+e}, 0xffff, v{d+e//2}" if e % 2 == 0 else f"v_lshrrev_b32 v{o+e}, 16, v{d+e//2}")

def gen_kwaves(a):
    VA, VB, VY = 32, 64, 96
    a(f"""
    kwaves:
    s_setprio {KP0}
    s_load_dwordx4 s[8:11], s[0:1], 8
    s_load_dwordx4 s[12:15], s[0:1], 24
    s_load_dwordx4 s[16:19], s[0:1], 40
    s_load_dwordx4 s[40:43], s[0:1], 56
    s_load_dwordx2 s[22:23], s[0:1], 144     ; ws
    s_lshr_b32 s27, s26, 1                   ; ch
    s_and_b32 s28, s26, 1                    ; hf
    s_add_u32 s30, s29, s27                  ; d
    s_lshl_b32 s34, s30, 8
    s_lshl_b32 s35, s28, 7
    s_add_u32 s34, s34, s35
    v_lshl_add_u32 v36, v1, 1, s34
    s_lshl_b32 s35, s29, 1
    s_waitcnt lgkmcnt(0)
    """)
    if SET in (0, 3): a.stamp(0)
    for i, sp in enumerate((8, 10, 12, 14, 16, 18)):
        a(f"global_load_ushort v{40+i}, v36, s[{sp}:{sp+1}]")
    a("s_load_dword s24, s[40:41], s35\ns_load_dword s25, s[42:43], s35")
    idx_load(a, "k", 104)
    a(f"s_setprio {KP1}")
    if SET == 3: a.stamp(1)
    a(f"""
    s_waitcnt lgkmcnt(0)
    s_lshl_b32 s36, s27, 4
    s_lshr_b32 s24, s24, s36
    s_lshl_b32 s24, s24, 16                  ; log_dt[d]
    s_lshr_b32 s25, s25, s36
    s_lshl_b32 s25, s25, 16                  ; Dskip[d]
    v_mov_b32 v5, s24
    v_mul_f32 v6, 0x3fb8aa3b, v5
    s_mov_b32 s36, 0x3fb8aa3b
    v_fma_f32 v7, v5, s36, -v6
    v_fmac_f32 v7, 0x32a5705f, v5
    v_exp_f32 v6, v6
    v_mul_f32 v7, {fx(0.6931471805599453)}, v7
    v_fmac_f32 v6, v6, v7
    v_cvt_pk_bf16_f32 v6, v6, v6
    v_lshlrev_b32 v6, 16, v6                 ; dt
    s_mul_i32 s36, s27, {TCH}
    s_lshl_b32 s37, s28, 8
    s_add_u32 s36, s36, s37
    v_lshl_add_u32 v2, v1, 2, s36
    v_mov_b32 v4, 0
    v_mov_b32 v5, {KC2 + 768*4}
    ds_write_b32 v5, v4
    ds_write_b32 v5, v4 offset:{KCS}
    s_waitcnt vmcnt(6)
    v_lshlrev_b32 v40, 16, v40
    v_lshlrev_b32 v41, 16, v41
    v_mul_f32 v10, v6, v40
    v_mul_f32 v11, v6, v41
    v_mul_f32 v10, 0x3fb8aa3b, v10
    v_mul_f32 v11, {fx(0.15915494309189535)}, v11
    """)
    if SET == 0: a.stamp(1)
    if SET == 3: a.stamp(2)
    def direct(dst, l, t):
        a(f"""
        v_mul_f32 v{t}, {fx(float(l))}, v10
        v_mul_f32 v{t+1}, {fx(float(l))}, v11
        v_exp_f32 v{t}, v{t}
        v_fract_f32 v{t+1}, v{t+1}
        v_cos_f32 v{dst}, v{t+1}
        v_sin_f32 v{dst+1}, v{t+1}
        s_nop 0
        v_mul_f32 v{dst}, v{t}, v{dst}
        v_mul_f32 v{dst+1}, v{t}, v{dst+1}
        """)
    tmpw = [0]
    def wr(row, src, neg=False):
        tmp = 62 + (tmpw[0] % 2); tmpw[0] += 1
        a(f"v_cvt_pk_bf16_f32 v{tmp}, v{src}, {'-' if neg else ''}v{src+1}")
        a(f"ds_write_b32 v2, v{tmp} offset:{row*TROW}")
    E = [None, 64, 66, 68, 70, 72, 74, 76]
    E8, E128, X, Y2, Q, R = 78, 80, 82, 84, 86, 88
    S = [12, 14, 16, 18]
    T0, T1, T2 = 28, 30, 32
    direct(E[1], 1, 28); direct(E128, 128, 30)
    a("""
    s_waitcnt vmcnt(2)
    v_lshlrev_b32 v42, 16, v42
    v_lshlrev_b32 v43, 16, v43
    v_lshlrev_b32 v44, 16, v44
    v_lshlrev_b32 v45, 16, v45
    v_mul_f32 v42, v6, v42
    v_mul_f32 v43, v6, v43
    """)
    cmul(a, Q, 44, 42, T2)
    a("v_mov_b32 v62, 0x3f80\nds_write_b32 v2, v62 offset:0"); tmpw[0] = 1
    cmul(a, E[2], E[1], E[1], T0); cmul(a, X, E128, E128, T1)
    wr(1, E[1]); wr(8, E128); wr(QROW, Q, True)
    cmul(a, E[4], E[2], E[2], T0); cmul(a, E[3], E[2], E[1], T1); cmul(a, R, X, X, T2)
    wr(2, E[2]); wr(16, X)
    cmul(a, E8, E[4], E[4], T0); cmul(a, E[5], E[4], E[1], T1); cmul(a, E[6], E[3], E[3], T2)
    wr(3, E[3]); wr(4, E[4]); wr(24, R)
    cmul(a, E[7], E[4], E[3], T0); cmul(a, Y2, R, E[4], T1)
    cmul(a, S[1], X, E[2], T2); cmul(a, S[2], X, E[4], T0); cmul(a, S[3], X, E[6], T1)
    wr(5, E[5]); wr(6, E[6]); wr(7, E[7]); wr(25, Y2)
    cmul(a, S[0], X, E128, T2)
    a(f"v_mov_b64 v[{X}:{X+1}], v[{R}:{R+1}]")
    cmul(a, R, R, R, T0)
    wr(17, S[1]); wr(18, S[2]); wr(19, S[3]); wr(20, S[0])
    for r in range(1, 4): cmul(a, S[r], S[r], E128, (T0, T1, T2)[r % 3])
    for r in range(1, 4): wr(20 + r, S[r])
    wr(32, R)
    Z = S[0]
    for i in range(1, 16):
        cmul(a, Q, Q, E8, T0)
        if i <= 8: cmul(a, R, R, E128, T1)
        if i <= 7: cmul(a, Z, E128, E[i], T2)
        if i <= 3:
            cmul(a, X, X, E128, 34); cmul(a, Y2, Y2, E128, 36)
        wr(QROW + i, Q, True)
        if i <= 8: wr(32 + i, R)
        if i <= 7: wr(8 + i, Z)
        if i <= 3:
            wr(24 + 2 * i, X); wr(25 + 2 * i, Y2)
    a(f"""
    v_and_b32 v4, 15, v0
    v_bfe_u32 v5, v0, 4, 2
    v_lshlrev_b32 v7, 4, v5
    v_mul_u32_u24 v8, {TROW}, v4
    v_add_u32 v8, v8, v7
    s_mul_i32 s36, s27, {TCH}
    v_add_u32 v8, s36, v8
    v_add_u32 v9, {QROW*TROW}, v8            ; B address
    s_mul_i32 s37, s28, {32*TROW}
    v_add_u32 v12, s37, v8
    s_mul_i32 s37, s28, {16*TROW}
    s_add_u32 s37, s37, {16*TROW}
    v_add_u32 v13, s37, v8
    """)
    for r in range(20, 36): a(f"v_mov_b32 v{r}, 0")
    a(f"""
    s_mul_i32 s36, s27, {KCS}
    s_add_u32 s36, s36, {KC2}
    s_cmp_eq_u32 s28, 1
    s_cbranch_scc1 k_t2
    v_and_b32 v7, 1, v5
    v_lshlrev_b32 v7, 2, v7
    v_lshrrev_b32 v14, 1, v5
    v_lshl_add_u32 v7, v14, 7, v7
    v_lshl_add_u32 v7, v4, 3, v7
    v_lshl_add_u32 v14, v7, 2, s36
    v_add_u32 v15, 4, v14
    v_add_u32 v16, 8, v14
    v_add_u32 v17, 12, v14
    v_cmp_gt_u32 vcc, 2, v5
    v_lshlrev_b32 v7, 6, v5
    v_add_u32 v7, 256, v7
    v_lshlrev_b32 v40, 2, v4
    v_lshlrev_b32 v41, 1, v4
    v_cndmask_b32 v40, v41, v40, vcc
    v_add_u32 v7, v7, v40
    v_lshl_add_u32 v40, v7, 2, s36
    v_add_u32 v41, 4, v40
    v_mov_b32 v42, 128
    v_cndmask_b32 v42, v42, 8, vcc
    v_add_u32 v42, v40, v42
    v_add_u32 v43, 4, v42
    s_branch k_addr
    k_t2:
    v_lshl_add_u32 v7, v5, 6, v4
    v_lshl_add_u32 v14, v7, 2, s36
    v_add_u32 v14, {512*4}, v14
    v_add_u32 v15, 64, v14
    v_add_u32 v16, 128, v14
    v_add_u32 v17, 192, v14
    v_mov_b32 v40, v14
    v_mov_b32 v41, v15
    v_mov_b32 v42, v16
    v_mov_b32 v43, v17
    k_addr:
    v_cmp_eq_u32 vcc, 0, v1
    s_cmp_eq_u32 s28, 0
    s_cselect_b32 s25, s25, 0
    v_mov_b32 v7, s25
    v_cndmask_b32 v7, 0, v7, vcc
    s_waitcnt lgkmcnt(0)
    """)
    a("s_waitcnt vmcnt(0)")
    idx_unpack(a, 104, 112)
    if SET == 0: a.stamp(2)
    if SET == 3: a.stamp(3)
    lds_arrive(a, 2, 38); lds_wait(a, 2, 4, 38, "k1")
    def rd(s):
        o = 64 + 12 * (s % 4)
        a(f"ds_read_b128 v[{o}:{o+3}], v9 offset:{64*s}")
        a(f"ds_read_b128 v[{o+4}:{o+7}], v12 offset:{64*s}")
        a(f"ds_read_b128 v[{o+8}:{o+11}], v13 offset:{64*s}")
    for s in range(4): rd(s)
    for s in range(8):
        o = 64 + 12 * (s % 4); p = s % 2
        a(f"s_waitcnt lgkmcnt({9 if s < 5 else 3*(7-s)})")
        a(f"v_mfma_f32_16x16x32_bf16 v[{20+8*p}:{23+8*p}], v[{o+4}:{o+7}], v[{o}:{o+3}], v[{20+8*p}:{23+8*p}]")
        a(f"v_mfma_f32_16x16x32_bf16 v[{24+8*p}:{27+8*p}], v[{o+8}:{o+11}], v[{o}:{o+3}], v[{24+8*p}:{27+8*p}]")
        if s < 4: rd(s + 4)
    a("s_nop 7")
    for r in range(8): a(f"v_add_f32 v{20+r}, v{20+r}, v{28+r}")
    a(f"""
    v_add_f32 v20, v20, v7
    ds_write_b32 v14, v20
    ds_write_b32 v15, v21
    ds_write_b32 v16, v22
    ds_write_b32 v17, v23
    ds_write_b32 v40, v24
    ds_write_b32 v41, v25
    ds_write_b32 v42, v26
    ds_write_b32 v43, v27
    """)
    lds_arrive(a, 3, 38); lds_wait(a, 3, 4, 38, "k2")
    if SET == 0: a.stamp(3)
    for ch in range(2):
        for e in range(11): a(f"ds_read_b32 v{64+12*ch+e}, v{112+e} offset:{IDX0 + ch*KCS}")
    a(f"""
    v_lshlrev_b32 v4, 4, v0                  ; tid*16
    v_mov_b32 v56, 0
    v_mov_b32 v57, 0
    v_mov_b32 v58, 0
    v_mov_b32 v59, 0
    v_lshrrev_b32 v60, 1, v0
    v_mul_u32_u24 v60, {KCP}, v60
    v_and_b32 v61, 1, v0
    v_lshl_add_u32 v60, v61, 4, v60
    v_add_u32 v60, 4096, v60
    v_bfe_u32 v61, v0, 5, 1
    v_mul_u32_u24 v61, {HCH}, v61
    v_and_b32 v62, 31, v0
    v_lshl_add_u32 v61, v62, 4, v61
    v_add_u32 v61, {H_OFF}, v61
    v_cmp_gt_u32 vcc, 16, v0
    s_cmp_eq_u32 s26, 1
    s_cbranch_scc1 k_padh
    s_cmp_eq_u32 s26, 0
    s_cbranch_scc0 k_pad_done
    s_and_saveexec_b64 s[54:55], vcc
    ds_write_b128 v60, v[56:59]
    s_mov_b64 exec, s[54:55]
    s_branch k_pad_done
    k_padh:
    ds_write_b128 v61, v[56:59]
    k_pad_done:
    s_waitcnt lgkmcnt(0)
    """)
    for ch in range(2):
        for c in range(4):
            o = 96 + 4 * (c % 2)
            for k in range(4): a(f"v_cvt_pk_bf16_f32 v{o+k}, v{64+12*ch+c+2*k}, v{64+12*ch+c+2*k+1}")
            a(f"ds_write_b128 v4, v[{o}:{o+3}] offset:{ch*KCHL + c*KCP}")
    a(f"""
    v_and_b32 v7, 15, v1
    v_lshrrev_b32 v2, 4, v1
    v_sub_u32 v60, 3, v7
    v_and_b32 v60, 3, v60
    v_mul_u32_u24 v61, {KCP - 2}, v60
    v_lshlrev_b32 v62, 1, v7
    v_sub_u32 v61, v61, v62
    v_lshl_add_u32 v61, v2, 4, v61
    s_mul_i32 s38, s27, {KCHL}
    s_lshl_b32 s39, s28, 8
    s_sub_u32 s38, s38, s39
    s_add_u32 s38, s38, {2*(2031 - 32*59)}
    v_add_u32 v20, s38, v61                  ; A base
    v_lshlrev_b32 v21, 5, v7
    v_lshl_add_u32 v21, v2, 4, v21
    s_mul_i32 s38, s27, {HCH}
    s_sub_u32 s38, s38, s39
    s_add_u32 s38, s38, {H_OFF + 2*(240 - 96)}
    v_add_u32 v21, s38, v21                  ; B base
    v_lshlrev_b32 v22, 5, v7
    v_lshl_add_u32 v22, v2, 3, v22
    s_lshl_b32 s38, s27, 12
    s_lshl_b32 s39, s28, 11
    s_add_u32 s38, s38, s39
    s_add_u32 s38, s38, {XR_OFF}
    v_add_u32 v23, s38, v22
    s_lshl_b32 s38, s30, 12
    s_lshl_b32 s39, s28, 11
    s_add_u32 s38, s38, s39
    s_add_u32 s38, s38, {WS_X2T}
    s_add_u32 s50, s22, s38
    s_addc_u32 s51, s23, 0
    s_lshl_b32 s43, s26, 12
    s_add_u32 s43, s43, {RED_OFF}
    v_lshlrev_b32 v24, 4, v1
    v_add_u32 v25, s43, v24
    s_xor_b32 s43, s26, 1
    s_lshl_b32 s43, s43, 12
    s_add_u32 s43, s43, {RED_OFF}
    v_add_u32 v26, s43, v24
    s_lshl_b32 s43, s27, 2
    s_add_u32 s43, s43, {MODS}
    v_mov_b32 v27, s43
    s_lshl_b32 s43, s26, 2
    s_add_u32 s43, s43, {FLG}
    v_mov_b32 v29, s43
    s_xor_b32 s43, s43, 4
    v_mov_b32 v30, s43
    v_mov_b32 v31, 0
    ds_write_b32 v29, v31
    v_lshlrev_b32 v24, 5, v7
    v_lshrrev_b32 v60, 1, v2
    v_lshl_add_u32 v24, v60, 4, v24
    v_and_b32 v60, 1, v2
    v_lshl_add_u32 v24, v60, 9, v24
    """)
    for t in range(8):
        for r in range(4): a(f"v_mov_b32 v{VY+4*t+r}, 0")
    lds_arrive(a, 5, 36);
    h_addr(a, 0)
    lds_wait(a, 5, 4, 36, "k3")
    T = LdsTracker(a)
    def ldA(p, r):
        off = 512 * (7 - p) + 64 * (3 - r)
        T.issue(f"ds_read_b64 v[{VA+4*p}:{VA+4*p+1}], v20 offset:{off}", [f"A{p}"])
        T.issue(f"ds_read_b64 v[{VA+4*p+2}:{VA+4*p+3}], v20 offset:{off+8}", [f"A{p}"])
    def ldB(k, r):
        off = 512 * k + 64 * (3 - r)
        T.issue(f"ds_read_b128 v[{VB+4*k}:{VB+4*k+3}], v21 offset:{off}", [f"B{k}"])
    for p in range(8): ldA(p, 0)
    if SET == 0: a.stamp(4)
    lds_wait(a, 4, 1, 16, "k4", 1)
    T.done = T.issued
    h_body(a)
    a("s_barrier")
    if int(os.environ.get("KPRIO", 0)): a(f"s_setprio {os.environ['KPRIO']}")
    if SET == 0: a.stamp(5)
    for k in range(7, -1, -1): ldB(k, 0)
    T.issue("ds_read_b32 v28, v27", ["ga"])
    for r in range(4):
        for p in range(8):
            for t in range(7, p - 1, -1):
                k = t - p
                T.need([f"A{p}", f"B{k}"])
                a(f"v_mfma_f32_16x16x32_bf16 v[{VY+4*t}:{VY+4*t+3}], v[{VA+4*p}:{VA+4*p+3}], v[{VB+4*k}:{VB+4*k+3}], v[{VY+4*t}:{VY+4*t+3}]")
                if t == 7 and r < 3: ldB(7 - p, r + 1)
            if r < 3: ldA(p, r + 1)
            if r == 3 and p == 4:
                for i in range(4): T.issue(f"ds_read_b64 v[{4+2*i}:{5+2*i}], v23 offset:{512*i}", ["xr"])
    T.need(["xr", "ga"])
    for i in range(4):
        a(f"v_lshlrev_b32 v{32+4*i}, 16, v{4+2*i}")
        a(f"v_and_b32 v{33+4*i}, 0xffff0000, v{4+2*i}")
        a(f"v_lshlrev_b32 v{34+4*i}, 16, v{5+2*i}")
        a(f"v_and_b32 v{35+4*i}, 0xffff0000, v{5+2*i}")
    a("s_cmp_eq_u32 s28, 1\ns_cbranch_scc1 k_hf1")
    def tail(hf):
        keep, send = 4 * hf, 4 * (1 - hf)
        for i in range(4):
            t = send + i
            a(f"ds_write_b128 v25, v[{VY+4*t}:{VY+4*t+3}] offset:{1024*i}")
        a("v_mov_b32 v31, 1\nds_write_b32 v29, v31")
        for i in range(4):
            for r in range(4): a(f"v_fma_f32 v{32+4*i+r}, v28, v{VY+4*(keep+i)+r}, v{32+4*i+r}")
        a(f"""
        k_hs{hf}:
        ds_read_b32 v31, v30
        s_waitcnt lgkmcnt(0)
        v_readfirstlane_b32 s43, v31
        s_cmp_eq_u32 s43, 1
        s_cbranch_scc0 k_hs{hf}
        """)
        for i in range(4): a(f"ds_read_b128 v[{64+4*i}:{67+4*i}], v26 offset:{1024*i}")
        for i in range(4):
            a(f"s_waitcnt lgkmcnt({3-i})")
            for r in range(4): a(f"v_fma_f32 v{32+4*i+r}, v28, v{64+4*i+r}, v{32+4*i+r}")
            a(f"v_cvt_pk_bf16_f32 v{12+2*i}, v{32+4*i}, v{33+4*i}")
            a(f"v_cvt_pk_bf16_f32 v{13+2*i}, v{34+4*i}, v{35+4*i}")
            if not X2W:
                a(f"global_store_dwordx2 v22, v[{12+2*i}:{13+2*i}], s[50:51] offset:{512*i}{X2SC}")
            elif i % 2 == 1:
                o = 12 + 2 * (i - 1)
                a("s_nop 1")
                a(f"v_permlane16_swap_b32 v{o}, v{o+2}")
                a(f"v_permlane16_swap_b32 v{o+1}, v{o+3}")
                a(f"global_store_dwordx4 v24, v[{o}:{o+3}], s[50:51] offset:{512*(i-1)}{X2SC}")
        a("s_endpgm")
    tail(0)
    a("k_hf1:")
    tail(1)

NGO = int(os.environ.get('NGO', 32))
NSH = 4
def go_addr(a, o):
    a(f"""
    v_and_b32 v92, {NGO-1}, v1
    v_lshlrev_b32 v92, 7, v92
    s_and_b32 s34, s2, {NSH-1}
    s_lshl_b32 s34, s34, 2
    s_add_u32 s34, s34, {WS_GO}
    v_add_u32 v92, s34, v92
    s_lshr_b32 s34, s2, 2
    s_and_b32 s34, s34, {NGO-1}
    s_lshl_b32 s34, s34, 7
    s_add_u32 s34, s34, {WS_GO}
    v_and_b32 v94, 1, v1
    v_lshl_add_u32 v94, v94, 3, s34
    v_mov_b32 v{o+2}, 0
    v_mov_b32 v{o+3}, 0
    """)
def go_load(a, o):
    a(f"""
    s_mov_b64 exec, 3
    global_atomic_add_x2 v[{o}:{o+1}], v94, v[{o+2}:{o+3}], s[22:23] sc0 sc1
    s_mov_b64 exec, -1
    """)
def grid_arrive(a, tag, t):
    assert AB_GRID % 2 == 0
    n = [len(range(k, AB_GRID, NSH)) for k in range(NSH)]
    assert n[0] - n[-1] <= 1
    cut = AB_GRID % NSH
    BUMP = f"s_mov_b32 exec_hi, 0\n    s_mov_b32 exec_lo, {hex((1 << NGO) - 1)}\n    global_atomic_add v92, v{t+1}, s[22:23] sc1"
    a(f"""
    s_and_b32 s34, s2, {NSH-1}
    s_lshl_b32 s36, s34, 6
    v_mov_b32 v{t}, s36
    v_mov_b32 v{t+1}, 1
    s_cmp_lt_u32 s34, {cut}
    s_cselect_b32 s37, 1, 0
    s_add_u32 s37, s37, {n[-1] - 1}
    s_mov_b64 exec, 1
    global_atomic_add v{t+2}, v{t}, v{t+1}, s[20:21] sc0 sc1
    s_waitcnt vmcnt(0)
    v_readfirstlane_b32 s36, v{t+2}
    s_mov_b64 exec, -1
    s_cmp_eq_u32 s36, s37
    s_cbranch_scc0 {tag}_arrived
    {BUMP}
    s_mov_b64 exec, -1
    {tag}_arrived:
    """)
def grid_wait(a, tag, t, o, slp=1, nmax=None):
    n = [len(range(k, AB_GRID, NSH)) for k in range(NSH)]
    cut = AB_GRID % NSH
    a(f"""
    s_mov_b32 s60, 0
    {tag}_poll_loop:
    s_mov_b64 exec, 3
    global_atomic_add_x2 v[{t}:{t+1}], v94, v[{o+2}:{o+3}], s[22:23] sc0 sc1
    s_waitcnt vmcnt(0)
    v_cmp_eq_u32 vcc, v{t}, v{o}
    v_cmp_eq_u32 s[58:59], v{t+1}, v{o+1}
    s_mov_b64 exec, -1
    s_or_b64 vcc, vcc, s[58:59]
    s_cbranch_scc0 {tag}_go
    s_add_u32 s60, s60, 1
    s_and_b32 s61, s60, 31
    s_cbranch_scc1 {tag}_next
    v_and_b32 v{t}, {NSH-1}, v1
    v_lshlrev_b32 v{t+1}, 6, v{t}
    v_mov_b32 v{t+3}, {n[-1]}
    v_cmp_gt_u32 vcc, {cut}, v{t}
    s_mov_b64 exec, {(1 << NSH) - 1}
    global_atomic_add v{t+2}, v{t+1}, v{o+2}, s[20:21] sc0 sc1
    s_waitcnt vmcnt(0)
    v_addc_co_u32 v{t+3}, vcc, 0, v{t+3}, vcc
    v_cmp_ne_u32 vcc, v{t+2}, v{t+3}
    s_mov_b64 exec, -1
    s_cbranch_vccz {tag}_go
    {tag}_next:
    s_sleep {slp}
    s_cmp_lt_u32 s60, {nmax or SPIN_MAX}
    s_cbranch_scc1 {tag}_poll_loop
    {tag}_go:
    """)

def gen_pwaves(a):
    a(f"""
    pwaves:
    s_load_dwordx2 s[4:5], s[0:1], 0         ; x
    s_load_dwordx4 s[44:47], s[0:1], 112     ; c, w_mod
    s_load_dwordx4 s[20:23], s[0:1], 136
    s_load_dwordx4 s[8:11], s[0:1], 80       ; w1, b1
    s_load_dwordx2 s[48:49], s[0:1], 96
    s_setprio {PPRIO}
    v_subrev_u32 v0, 256, v0
    s_sub_u32 s26, s26, 4
    v_lshrrev_b32 v3, 6, v0
    v_lshrrev_b32 v8, 4, v1                  ; row (0..3)
    v_and_b32 v9, 15, v1                     ; 16 B chunk
    v_lshlrev_b32 v4, 10, v8
    v_lshl_add_u32 v4, v9, 4, v4
    v_lshl_add_u32 v4, v3, 8, v4
    s_lshl_b32 s31, s2, 13
    v_add_u32 v4, s31, v4
    v_add_u32 v44, 4096, v4
    s_min_u32 s32, s7, 23
    s_mul_i32 s33, s6, 24
    s_add_u32 s33, s33, s32
    v_lshrrev_b32 v5, 1, v0                  ; rg
    v_and_b32 v6, 1, v0                      ; cc
    v_mul_u32_u24 v7, {4*6144}, v5
    v_lshl_add_u32 v7, v6, 4, v7
    s_lshl_b32 s34, s33, 5
    v_add_u32 v7, s34, v7
    v_lshlrev_b32 v2, 3, v5                  ; c offset
    """)
    go_addr(a, 96)
    a("s_waitcnt lgkmcnt(0)")
    if SET == 1: a.stamp(0)
    a(f"""
    global_load_dwordx4 v[8:11], v4, s[4:5]
    global_load_dwordx4 v[12:15], v44, s[4:5]
    global_load_dwordx2 v[16:17], v2, s[44:45]
    """)
    for i in range(4):
        if i: a("v_add_u32 v7, 6144, v7")
        a(f"global_load_dwordx4 v[{20+4*i}:{23+4*i}], v7, s[46:47]")
    a(f"""
    v_mov_b32 v38, 0x3f803f80
    v_lshrrev_b32 v40, 4, v1
    v_mul_u32_u24 v39, 320, v40
    v_and_b32 v41, 15, v1
    v_lshl_add_u32 v39, v41, 4, v39
    s_mul_i32 s34, s26, 2560
    s_add_u32 s34, s34, {LNT}
    v_add_u32 v39, s34, v39
    v_lshrrev_b32 v47, 2, v41
    v_mul_u32_u24 v47, 320, v47
    v_and_b32 v46, 3, v41
    v_lshl_add_u32 v47, v46, 3, v47
    v_lshl_add_u32 v47, v40, 5, v47
    v_add_u32 v47, s34, v47
    v_lshl_add_u32 v46, v3, 7, v1
    v_lshlrev_b32 v46, 4, v46
    s_mul_i32 s34, s2, {XBS}
    s_add_u32 s34, s34, {WS_XB}
    v_add_u32 v46, s34, v46
    v_lshlrev_b32 v45, 3, v40
    s_lshl_b32 s34, s26, 6
    s_add_u32 s34, s34, {STP}
    v_add_u32 v45, s34, v45
    """)
    for r in range(2):
        b = 8 + 4 * r
        a(f"s_waitcnt vmcnt({6 - r})")
        a(f"ds_write_b128 v39, v[{b}:{b+3}] offset:{1280*r}")
        a(f"v_dot2_f32_bf16 v{72+2*r}, v{b}, v38, 0")
        a(f"v_dot2_f32_bf16 v{73+2*r}, v{b}, v{b}, 0")
        for k in range(1, 4):
            a(f"v_dot2_f32_bf16 v{72+2*r}, v{b+k}, v38, v{72+2*r}")
            a(f"v_dot2_f32_bf16 v{73+2*r}, v{b+k}, v{b+k}, v{73+2*r}")
    a("""
    s_waitcnt lgkmcnt(0)
    ds_read_b64_tr_b16 v[48:49], v47
    ds_read_b64_tr_b16 v[50:51], v47 offset:1280
    ds_read_b64_tr_b16 v[52:53], v47 offset:128
    ds_read_b64_tr_b16 v[54:55], v47 offset:1408
    """)
    if SET == 1: a.stamp(1)
    a("s_waitcnt vmcnt(4)")
    for i in range(4):
        src = 16 + i // 2
        a(f"v_lshlrev_b32 v{56+i}, 16, v{src}" if i % 2 == 0 else f"v_and_b32 v{56+i}, 0xffff0000, v{src}")
    for i in range(4): a(f"v_mul_f32 v{60+i}, {fx(-1.4426950408889634)}, v{56+i}")
    for i in range(4): a(f"v_exp_f32 v{60+i}, v{60+i}")
    dpps = ["row_shr:1", "row_shr:2", "row_shr:4", "row_shr:8", "row_bcast:15 row_mask:0xa", "row_bcast:31 row_mask:0xc"]
    def dpp4(d):
        m = "" if "row_mask" in d else " row_mask:0xf"
        for r in range(72, 76): a(f"v_add_f32_dpp v{r}, v{r}, v{r} {d}{m} bank_mask:0xf")
    dpp4(dpps[0])
    for i in range(4): a(f"v_add_f32 v{60+i}, 1.0, v{60+i}")
    dpp4(dpps[1])
    for i in range(4): a(f"v_rcp_f32 v{60+i}, v{60+i}")
    dpp4(dpps[2])
    for i in range(4): a(f"v_mul_f32 v{56+i}, v{56+i}, v{60+i}")
    dpp4(dpps[3])
    for i in range(4):
        a(f"v_cvt_pk_bf16_f32 v{60+i}, v{56+i}, 0")
        a(f"v_cvt_pk_bf16_f32 v{76+i}, 0, v{56+i}")
    a(f"""
    s_waitcnt lgkmcnt(0)
    global_store_dwordx4 v46, v[48:51], s[22:23] sc1
    global_store_dwordx4 v46, v[52:55], s[22:23] offset:1024 sc1
    v_cmp_eq_u32 vcc, 15, v41
    s_and_saveexec_b64 s[54:55], vcc
    ds_write_b64 v45, v[72:73]
    ds_write_b64 v45, v[74:75] offset:32
    s_mov_b64 exec, s[54:55]
    """)
    for i in range(4):
        a(f"s_waitcnt vmcnt({5 - i})")
        for m in range(4):
            c0 = "0" if i == 0 else f"v{64+2*m}"; c1 = "0" if i == 0 else f"v{65+2*m}"
            a(f"v_dot2_f32_bf16 v{64+2*m}, v{20+4*i+m}, v{60+i}, {c0}")
            a(f"v_dot2_f32_bf16 v{65+2*m}, v{20+4*i+m}, v{76+i}, {c1}")
    a("s_nop 2")
    for d in ["row_shr:2", "row_shr:4", "row_shr:8"]:
        for r in range(64, 72): a(f"v_add_f32_dpp v{r}, v{r}, v{r} {d} row_mask:0xf bank_mask:0xf")
    a(f"""
    v_lshrrev_b32 v4, 4, v0
    v_mul_u32_u24 v4, 80, v4
    v_lshl_add_u32 v4, v6, 5, v4
    v_add_u32 v4, {MODS}, v4
    v_and_b32 v5, 15, v0
    v_cmp_lt_u32 vcc, 13, v5
    v_lshlrev_b32 v5, 2, v5
    v_add_u32 v5, {MODS}, v5
    s_and_saveexec_b64 s[54:55], vcc
    ds_write_b128 v4, v[64:67]
    ds_write_b128 v4, v[68:71] offset:16
    s_mov_b64 exec, s[54:55]
    s_waitcnt lgkmcnt(0)
    """)
    if SET == 1: a.stamp(2)
    a("""
    s_cmp_eq_u32 s26, 0
    s_cbranch_scc0 p_nogo
    """)
    go_load(a, 96)
    a("p_nogo:")
    lds_arrive(a, 0, 36); lds_wait(a, 0, 4, 36, "p1")
    for i in range(16): a(f"ds_read_b32 v{20+i}, v5 offset:{80*i}")
    a(f"""
    v_and_b32 v58, 7, v0
    v_lshlrev_b32 v59, 3, v58
    v_add_u32 v59, {STP}, v59
    ds_read_b64 v[48:49], v59
    ds_read_b64 v[50:51], v59 offset:64
    ds_read_b64 v[52:53], v59 offset:128
    ds_read_b64 v[54:55], v59 offset:192
    v_lshlrev_b32 v58, 2, v58
    s_lshl_b32 s34, s2, 5
    s_add_u32 s34, s34, {WS_ST1}
    v_add_u32 v58, s34, v58
    s_waitcnt lgkmcnt(0)
    v_add_f32 v48, v48, v50
    v_add_f32 v49, v49, v51
    v_add_f32 v52, v52, v54
    v_add_f32 v53, v53, v55
    v_add_f32 v56, v48, v52
    v_add_f32 v57, v49, v53
    v_mul_f32 v56, {fx(1.0/512)}, v56        ; mean
    v_mul_f32 v57, {fx(1.0/512)}, v57
    v_fma_f32 v57, -v56, v56, v57
    v_max_f32 v57, 0, v57
    v_add_f32 v57, {fx(1e-5)}, v57
    v_rsq_f32 v57, v57
    v_cmp_gt_u32 vcc, 8, v0
    v_mul_f32 v56, -v56, v57
    v_cvt_pk_bf16_f32 v56, v57, v56          ; (r, -mean*r)
    s_and_saveexec_b64 s[54:55], vcc
    s_cbranch_execz p_nostat
    global_store_dword v58, v56, s[22:23] sc1
    p_nostat:
    s_mov_b64 exec, s[54:55]
    """)
    for st in (1, 2, 4, 8):
        for i in range(0, 16, 2 * st): a(f"v_add_f32 v{20+i}, v{20+i}, v{20+i+st}")
    a(f"""
    v_cvt_pk_bf16_f32 v20, v20, v20
    v_lshlrev_b32 v20, 16, v20
    s_lshl_b32 s34, s33, 7
    s_add_u32 s34, s34, {WS_MODP}
    v_lshlrev_b32 v4, 2, v0
    v_add_u32 v4, s34, v4
    s_cmp_lt_u32 s7, 24
    s_cselect_b32 s34, 16, 0
    v_cmp_gt_u32 vcc, s34, v0
    s_and_saveexec_b64 s[54:55], vcc
    s_cbranch_execz p_nomod
    global_store_dword v4, v20, s[22:23] sc1
    p_nomod:
    s_mov_b64 exec, s[54:55]
    """)
    a("s_waitcnt vmcnt(0)")
    lds_arrive(a, 1, 36)
    if SET == 1: a.stamp(3)
    a(f"""
    """)
    h_addr(a, 256)
    a("s_cmp_eq_u32 s26, 0\ns_cbranch_scc0 p_wait_release")
    lds_wait(a, 1, 4, 36, "p2")
    if os.environ.get("FORCE_RACE"):
        a("s_cmp_eq_u32 s2, 5\ns_cbranch_scc0 fr_skip\nv_add_u32 v96, 1, v96\nfr_skip:")
    grid_arrive(a, "p", 36); grid_wait(a, "p", 40, 96, int(os.environ.get("PSLP", 1)))
    lds_arrive(a, 4, 36)
    a("s_setprio 0\ns_branch p_released\np_wait_release:\ns_setprio 0")
    lds_wait(a, 4, 1, 36, "p3", 1)
    a("p_released:")
    if SET == 1: a.stamp(4)
    h_body(a)
    if SET == 1: a.stamp(5)
    a("s_barrier")
    a(f"""
    s_lshr_b32 s47, s2, 3
    s_mul_i32 s47, s47, 44032
    v_lshlrev_b32 v8, 6, v0
    v_add_u32 v8, s47, v8
    global_load_dword v9, v8, s[48:49]
    v_add_u32 v8, 16384, v8
    global_load_dword v10, v8, s[48:49]
    s_add_u32 s47, s47, {32768 + 175*64}
    v_add_u32 v8, 16384, v8
    v_min_u32 v8, s47, v8
    global_load_dword v11, v8, s[48:49]
    s_endpgm
    """)

def gen_w1p(a):
    IMG = 0
    RED = 16384
    a(f"""
    w1p:
    s_load_dwordx4 s[8:11], s[0:1], 80       ; w1, b1
    s_load_dwordx4 s[20:23], s[0:1], 136     ; debug, ws
    s_sub_u32 s3, s2, {NMAIN}                ; half block hb : fblk = hb>>1, mhalf = hb&1
    v_and_b32 v1, 63, v0
    v_lshrrev_b32 v2, 6, v0
    v_lshrrev_b32 v3, 1, v0                  ; rg
    v_and_b32 v4, 1, v0                      ; cc
    v_readfirstlane_b32 s26, v2
    v_mul_u32_u24 v5, {4*2752}, v3
    v_lshl_add_u32 v5, v4, 4, v5
    s_lshl_b32 s9, s3, 5
    s_waitcnt lgkmcnt(0)
    """.replace("s_lshl_b32 s9, s3, 5\n", ""))
    a(f"""
    s_lshl_b32 s12, s3, 5
    v_add_u32 v5, s12, v5
    """)
    a(f"""
    s_cmp_eq_u32 s3, 0
    s_cbranch_scc0 w_nozero
    v_lshlrev_b32 v60, 7, v1
    v_add_u32 v60, {WS_CNT}, v60
    v_mov_b32 v61, 0
    v_cmp_gt_u32 vcc, 16, v0
    s_and_saveexec_b64 s[54:55], vcc
    s_cbranch_execz w_nozero2
    global_store_dword v60, v61, s[22:23]
    w_nozero2:
    s_mov_b64 exec, s[54:55]
    w_nozero:
    """)
    go_addr(a, 100)
    a("s_cmp_eq_u32 s26, 0\ns_cbranch_scc0 w_noarr")
    go_load(a, 100)
    a("s_waitcnt vmcnt(0)")
    grid_arrive(a, "w", 96)
    a("w_noarr:")
    a(f"""
    v_and_b32 v7, 15, v0
    v_lshlrev_b32 v7, 1, v7
    v_add_u32 v55, s12, v7                   ; b1 address
    v_mov_b32 v57, 0x3f803f80
    v_lshrrev_b32 v58, 2, v3
    v_lshlrev_b32 v58, 9, v58
    v_bfe_u32 v59, v3, 1, 1
    v_lshl_add_u32 v58, v59, 8, v58
    v_lshl_add_u32 v58, v4, 7, v58
    v_and_b32 v59, 1, v3
    v_lshl_add_u32 v58, v59, 3, v58
    v_lshrrev_b32 v6, 2, v3
    v_lshlrev_b32 v6, 7, v6
    v_and_b32 v7, 3, v3
    v_lshl_add_u32 v6, v7, 4, v6
    v_add_u32 v6, {WS_MODP + 96*128}, v6
    v_add_u32 v7, 4096, v6
    """)
    EARLY = os.environ.get("W1EARLY", "1") == "1"
    def w1loads():
        for i in range(4):
            if i: a("v_add_u32 v5, 2752, v5")
            a(f"global_load_dwordx4 v[{64+4*i}:{67+4*i}], v5, s[8:9]")
        a("global_load_ushort v56, v55, s[10:11]")
    def unpack():
        for i in range(4):
            for e in range(8):
                src = 64 + 4 * i + e // 2
                a(f"v_lshlrev_b32 v{24+8*i+e}, 16, v{src}" if e % 2 == 0 else f"v_and_b32 v{24+8*i+e}, 0xffff0000, v{src}")
    NPRE = int(os.environ.get("WPRE", 0))
    if EARLY:
        if NPRE:
            a("s_cmp_eq_u32 s26, 0\ns_cbranch_scc0 w_pre")
            grid_wait(a, "w0", 104, 100, int(os.environ.get("WSLP", 8)), NPRE)
            a("w_pre:\ns_barrier")
        w1loads()
        a("s_waitcnt vmcnt(1)")
        unpack()
    a("s_cmp_eq_u32 s26, 0\ns_cbranch_scc0 w_released")
    grid_wait(a, "w", 104, 100, int(os.environ.get("WSLP2", 1)))
    a("w_released:\ns_barrier")
    if int(os.environ.get("WPRIO", 0)): a(f"s_setprio {os.environ['WPRIO']}")
    if not EARLY: w1loads()
    a(f"""
    global_load_dwordx4 v[8:11], v6, s[22:23] sc1        ; sb
    global_load_dwordx4 v[12:15], v7, s[22:23] sc1       ; cb
    """)
    if not EARLY:
        a("s_waitcnt vmcnt(3)")
        unpack()
    a("s_waitcnt vmcnt(0)")
    for i in range(4): a(f"v_add_f32 v{12+i}, 1.0, v{12+i}")
    a("v_cvt_pk_bf16_f32 v16, v12, v13\nv_cvt_pk_bf16_f32 v17, v14, v15")
    a("v_lshlrev_b32 v12, 16, v16\nv_and_b32 v13, 0xffff0000, v16\nv_lshlrev_b32 v14, 16, v17\nv_and_b32 v15, 0xffff0000, v17")
    for e in range(8): a(f"v_mul_f32 v{72+e}, v8, v{24+e}")
    for i in range(1, 4):
        for e in range(8): a(f"v_fmac_f32 v{72+e}, v{8+i}, v{24+8*i+e}")
    for i in range(4):
        for e in range(8): a(f"v_mul_f32 v{24+8*i+e}, v{12+i}, v{24+8*i+e}")
    for e in range(8):
        a(f"v_cvt_pk_bf16_f32 v{80+2*e}, v{24+e}, v{32+e}")
        a(f"v_cvt_pk_bf16_f32 v{81+2*e}, v{40+e}, v{48+e}")
    for e in range(8): a(f"ds_write_b64 v58, v[{80+2*e}:{81+2*e}] offset:{IMG + 16*e}")
    for e in range(8): a(f"v_dot2_f32_bf16 v{64+e}, v{80+2*e}, v57, 0")
    for e in range(8): a(f"v_dot2_f32_bf16 v{64+e}, v{81+2*e}, v57, v{64+e}")
    a("s_nop 2")
    for d in ["row_shr:2", "row_shr:4", "row_shr:8"]:
        for r in range(64, 80): a(f"v_add_f32_dpp v{r}, v{r}, v{r} {d} row_mask:0xf bank_mask:0xf")
    a(f"""
    v_lshrrev_b32 v5, 4, v0                  ; part
    v_mul_u32_u24 v5, 144, v5
    v_lshl_add_u32 v5, v4, 5, v5
    v_and_b32 v6, 15, v0
    v_cmp_lt_u32 vcc, 13, v6
    s_and_saveexec_b64 s[54:55], vcc
    ds_write_b128 v5, v[64:67] offset:{RED}
    ds_write_b128 v5, v[68:71] offset:{RED + 16}
    ds_write_b128 v5, v[72:75] offset:{RED + 64}
    ds_write_b128 v5, v[76:79] offset:{RED + 80}
    s_mov_b64 exec, s[54:55]
    v_lshlrev_b32 v7, 4, v0
    s_lshr_b32 s13, s3, 1
    s_lshl_b32 s13, s13, 15
    s_and_b32 s14, s3, 1
    s_lshl_b32 s14, s14, 8
    s_add_u32 s13, s13, s14
    s_add_u32 s13, s13, {WS_W1F}
    v_lshrrev_b32 v8, 4, v0
    v_lshlrev_b32 v8, 9, v8                  ; g*512 + s*1024 == (2s+g)*512
    v_lshl_add_u32 v8, v6, 4, v8
    v_add_u32 v8, s13, v8
    v_and_b32 v9, 31, v0
    v_lshlrev_b32 v9, 2, v9
    s_waitcnt lgkmcnt(0)
    s_barrier
    """)
    for k in range(4): a(f"ds_read_b128 v[{24+4*k}:{27+4*k}], v7 offset:{IMG + 4096*k}")
    a(f"""
    v_lshlrev_b32 v9, 2, v6
    v_bfe_u32 v10, v0, 4, 1
    v_lshl_add_u32 v9, v10, 6, v9            ; (t&15)*4 + ((t>>4)&1)*64
    """)
    for p in range(16): a(f"ds_read_b32 v{40+p}, v9 offset:{RED + 144*p}")
    for k in range(4):
        a(f"s_waitcnt lgkmcnt({15 if k == 0 else 15})" if False else "")
    a("s_waitcnt lgkmcnt(15)")
    a("s_waitcnt lgkmcnt(0)")
    for k in range(4):
        a(f"global_store_dwordx4 v8, v[{24+4*k}:{27+4*k}], s[22:23]{W1SC}")
        if k < 3: a(f"v_add_u32 v8, {16*512}, v8")
    for st in (1, 2, 4, 8):
        for p in range(0, 16, 2 * st): a(f"v_add_f32 v{40+p}, v{40+p}, v{40+p+st}")
    a(f"""
    v_lshlrev_b32 v56, 16, v56
    v_cmp_eq_u32 vcc, 1, v10
    s_nop 1
    v_cndmask_b32 v56, 0, v56, vcc
    v_add_f32 v40, v40, v56
    s_lshl_b32 s13, s3, 6
    v_lshl_add_u32 v11, v6, 2, s13
    v_mov_b32 v12, {WS_CS}
    v_mov_b32 v13, {WS_B1P}
    v_cndmask_b32 v12, v12, v13, vcc
    v_add_u32 v11, v11, v12
    v_cmp_gt_u32 vcc, 32, v0
    s_and_saveexec_b64 s[54:55], vcc
    s_cbranch_execz w1p_end
    global_store_dword v11, v40, s[22:23]{SC}
    w1p_end:
    s_endpgm
    """)

def gen_AB(a):
    a(f"""
    s_cmp_ge_u32 s2, {NMAIN}
    s_cbranch_scc1 ab_other
    v_lshrrev_b32 v3, 6, v0
    v_and_b32 v1, 63, v0
    s_and_b32 s6, s2, 7
    s_lshr_b32 s7, s2, 3
    v_readfirstlane_b32 s26, v3              ; wave
    v_lshlrev_b32 v4, 2, v0
    v_add_u32 v4, {CNT}, v4
    v_mov_b32 v5, 0
    v_cmp_gt_u32 vcc, 8, v0
    s_and_saveexec_b64 s[54:55], vcc
    ds_write_b32 v4, v5
    s_mov_b64 exec, s[54:55]
    s_lshl_b32 s29, s6, 6
    s_lshl_b32 s30, s7, 1
    s_add_u32 s29, s29, s30
    s_waitcnt lgkmcnt(0)
    s_barrier
    s_cmp_lt_u32 s26, 4
    s_cbranch_scc1 kwaves
    """)
    gen_pwaves(a)
    gen_kwaves(a)
    a(f"""
    ab_other:
    s_cmp_lt_u32 s2, {AB_GRID}
    s_cbranch_scc0 ab_end
    v_cmp_gt_u32 vcc, 256, v0
    s_cbranch_vccnz w1p
    ab_end:
    s_endpgm
    """)
    gen_w1p(a)
    a.l.append(idx_table())

if __name__ == "__main__":
    ks = [("convab_kernel", gen_AB, 128, AB_GRID, 512, AB_LDS),
          ("gemm1_kernel", gen_C, 176, C_GRID, 512, C_LDS),
          ("gemm2_kernel", gen_D, 128, D_GRID, 512, D_LDS)]
    s = build(ks)
    path = sys.argv[1] if len(sys.argv) > 1 else "out.s"
    open(path, "w").write(s)
    print("wrote", path, len(s))
```

```python
import sys, os
os.environ["MODP"] = "1"
import g3
from g3 import *
import g3b
from g3b import gen_C, gen_D, C_GRID, C_LDS, D_GRID, D_LDS, KCP, KCHL

NMAIN, NW1 = 256, 43
TCH = 57 * TROW
H_OFF = 2 * KCHL
HCH = 4608
XR_OFF = H_OFF + 2 * HCH
RED_OFF = XR_OFF + 8192
LNT = 62016
KC2 = LNT + 4 * 2560
KCS = 776 * 4
MODS = KC2 + 2 * KCS
STP = MODS + 16 * 80
FLG = STP + 256
CNT = FLG + 16
NW1 = 86
IMG = 80128
RED2 = IMG + 16384
GOE = RED2 + 2304
AB_LDS = GOE + 16
assert CNT + 32 <= IMG
AB_GRID = NMAIN
XBS = 8192
WS_MODP = 0x10000
WS_CNT = 0x28000
WS_GO = 0x20000
WS_XB = WS_XT
SET = int(os.environ.get("STAMPSET", 0))
PPRIO = int(os.environ.get("PPRIO", 1))
X2SC = os.environ.get("X2SC", " sc1" if os.environ.get("MEGA") == "1" else "")
X2W = bool(os.environ.get("X2W")) or os.environ.get("MEGA") == "1"
W1SC = os.environ.get("W1SC", " sc1")
KP0 = int(os.environ.get("KP0", 3))
KP1 = int(os.environ.get("KP1", 0))
MEGA = os.environ.get("MEGA") == "1"
SPIN_MAX = 0x20000

def lds_arrive(a, k, v):
    a(f"""
    v_mov_b32 v{v}, {CNT + 4*k}
    v_mov_b32 v{v+1}, 1
    s_mov_b64 exec, 1
    ds_add_u32 v{v}, v{v+1}
    s_mov_b64 exec, -1
    """)
def lds_wait(a, k, n, v, tag, slp=1):
    a(f"""
    v_mov_b32 v{v}, {CNT + 4*k}
    lw_{tag}:
    ds_read_b32 v{v+1}, v{v}
    s_waitcnt lgkmcnt(0)
    v_readfirstlane_b32 s62, v{v+1}
    s_cmp_ge_u32 s62, {n}
    s_cbranch_scc1 lw_{tag}_done
    s_sleep {slp}
    s_branch lw_{tag}
    lw_{tag}_done:
    """)

def h_addr(a, toff):
    a(f"""
    v_add_u32 v11, {toff}, v0
    v_lshrrev_b32 v12, 1, v11                ; block
    v_and_b32 v10, 1, v11                    ; ch
    v_lshlrev_b32 v4, 13, v12
    v_lshl_add_u32 v4, v10, 4, v4
    s_lshl_b32 s38, s29, 4
    s_add_u32 s38, s38, {WS_XB}
    v_add_u32 v4, s38, v4
    v_lshlrev_b32 v5, 5, v12
    v_add_u32 v5, {WS_ST1}, v5               ; statistics
    s_lshr_b32 s38, s29, 4
    s_lshl_b32 s38, s38, 7
    s_and_b32 s39, s29, 15
    s_lshl_b32 s39, s39, 2
    s_add_u32 s38, s38, s39
    s_add_u32 s38, s38, {WS_MODP}
    v_lshl_add_u32 v6, v10, 2, s38
    v_mul_u32_u24 v7, {HCH}, v10
    v_lshl_add_u32 v7, v12, 4, v7
    v_add_u32 v7, {H_OFF + 512}, v7          ; h (LDS)
    v_lshlrev_b32 v8, 12, v10
    v_lshl_add_u32 v8, v12, 4, v8
    v_add_u32 v8, {XR_OFF}, v8
    v_lshlrev_b32 v9, 2, v10
    v_add_u32 v9, {MODS}, v9
    v_add_u32 v13, 4096, v6
    v_add_u32 v14, 4096, v13
    """)
def h_body(a, extra=None, nextra=0):
    a(f"""
    global_load_dwordx4 v[64:67], v4, s[22:23] sc1
    global_load_dwordx4 v[68:71], v5, s[22:23] sc1
    global_load_dwordx4 v[72:75], v5, s[22:23] offset:16 sc1
    global_load_dword v76, v6, s[22:23] sc1
    global_load_dword v77, v13, s[22:23] sc1
    global_load_dword v78, v14, s[22:23] sc1
    """)
    if extra: extra()
    a(f"""
    s_waitcnt vmcnt({5 + nextra})
    ds_write_b128 v8, v[64:67]
    """)
    for e in range(8):
        src = 64 + e // 2
        a(f"v_lshlrev_b32 v{80+e}, 16, v{src}" if e % 2 == 0 else f"v_and_b32 v{80+e}, 0xffff0000, v{src}")
    a(f"s_waitcnt vmcnt({3 + nextra})")
    for e in range(8):
        a(f"v_lshlrev_b32 v{12+(e%4)}, 16, v{68+e}")
        a(f"v_and_b32 v{68+e}, 0xffff0000, v{68+e}")
        a(f"v_fma_f32 v{80+e}, v{80+e}, v{12+(e%4)}, v{68+e}")
    a(f"""
    s_waitcnt vmcnt({nextra})
    v_add_f32 v77, 1.0, v77
    v_cvt_pk_bf16_f32 v77, v77, v77
    ds_write_b32 v9, v78                     ; ga
    v_lshlrev_b32 v77, 16, v77               ; gamma
    """)
    for e in range(8): a(f"v_fma_f32 v{80+e}, v{80+e}, v77, v76")
    for p in range(4): a(f"v_cvt_pk_bf16_f32 v{88+p}, v{80+2*p}, v{81+2*p}")
    a("ds_write_b128 v7, v[88:91]")
    a("s_waitcnt lgkmcnt(0)")

IDX0 = 62428
def idx_table():
    import numpy as np
    def bf16_round_int(l):
        u = int(np.float32(l).view(np.uint32))
        r = (u + 0x7FFF + ((u >> 16) & 1)) >> 16
        return r
    rows = []
    for t in range(256):
        vals = []
        for e in range(12):
            l = 2047 - 8 * t - e
            if e == 11: vals.append(0); continue
            if l < 0: idx = 768
            elif l < 128: idx = l
            else: idx = bf16_round_int(l) - 0x4300 + 128
            vals.append(4 * idx + KC2 - IDX0)
        rows.append(vals)
    out = ".p2align 4\n.type kidx_table,@object\nkidx_table:\n"
    for r in rows: out += "    .short " + ", ".join(str(v) for v in r) + "\n"
    out += ".size kidx_table, 6144\n"
    return out
def idx_load(a, tag, d):
    a(f"""
    s_getpc_b64 s[56:57]
    idx_pc_{tag}:
    s_add_u32 s56, s56, kidx_table-idx_pc_{tag}
    s_addc_u32 s57, s57, 0
    v_mul_u32_u24 v{d+6}, 24, v0
    global_load_dwordx4 v[{d}:{d+3}], v{d+6}, s[56:57]
    global_load_dwordx2 v[{d+4}:{d+5}], v{d+6}, s[56:57] offset:16
    """)
def idx_unpack(a, d, o):
    for e in range(11):
        a(f"v_and_b32 v{o+e}, 0xffff, v{d+e//2}" if e % 2 == 0 else f"v_lshrrev_b32 v{o+e}, 16, v{d+e//2}")

def gen_kwaves(a):
    VA, VB, VY = 32, 64, 96
    a(f"""
    kwaves:
    s_setprio {KP0}
    s_load_dwordx4 s[8:11], s[0:1], 8
    s_load_dwordx4 s[12:15], s[0:1], 24
    s_load_dwordx4 s[16:19], s[0:1], 40
    s_load_dwordx4 s[40:43], s[0:1], 56
    s_load_dwordx4 s[20:23], s[0:1], 136
    s_lshr_b32 s27, s26, 1                   ; ch
    s_and_b32 s28, s26, 1                    ; hf
    s_add_u32 s30, s29, s27                  ; d
    s_lshl_b32 s34, s30, 8
    s_lshl_b32 s35, s28, 7
    s_add_u32 s34, s34, s35
    v_lshl_add_u32 v36, v1, 1, s34
    s_lshl_b32 s35, s29, 1
    s_waitcnt lgkmcnt(0)
    """)
    if SET in (0, 3): a.stamp(0)
    for i, sp in enumerate((8, 10, 12, 14, 16, 18)):
        a(f"global_load_ushort v{40+i}, v36, s[{sp}:{sp+1}]")
    a("s_load_dword s24, s[40:41], s35\ns_load_dword s25, s[42:43], s35")
    idx_load(a, "k", 104)
    a(f"s_setprio {KP1}")
    if SET == 3: a.stamp(1)
    a(f"""
    s_waitcnt lgkmcnt(0)
    s_lshl_b32 s36, s27, 4
    s_lshr_b32 s24, s24, s36
    s_lshl_b32 s24, s24, 16                  ; log_dt[d]
    s_lshr_b32 s25, s25, s36
    s_lshl_b32 s25, s25, 16                  ; Dskip[d]
    v_mov_b32 v5, s24
    v_mul_f32 v6, 0x3fb8aa3b, v5
    s_mov_b32 s36, 0x3fb8aa3b
    v_fma_f32 v7, v5, s36, -v6
    v_fmac_f32 v7, 0x32a5705f, v5
    v_exp_f32 v6, v6
    v_mul_f32 v7, {fx(0.6931471805599453)}, v7
    v_fmac_f32 v6, v6, v7
    v_cvt_pk_bf16_f32 v6, v6, v6
    v_lshlrev_b32 v6, 16, v6                 ; dt
    s_mul_i32 s36, s27, {TCH}
    s_lshl_b32 s37, s28, 8
    s_add_u32 s36, s36, s37
    v_lshl_add_u32 v2, v1, 2, s36
    v_mov_b32 v4, 0
    v_mov_b32 v5, {KC2 + 768*4}
    ds_write_b32 v5, v4
    ds_write_b32 v5, v4 offset:{KCS}
    s_waitcnt vmcnt(6)
    v_lshlrev_b32 v40, 16, v40
    v_lshlrev_b32 v41, 16, v41
    v_mul_f32 v10, v6, v40
    v_mul_f32 v11, v6, v41
    v_mul_f32 v10, 0x3fb8aa3b, v10
    v_mul_f32 v11, {fx(0.15915494309189535)}, v11
    """)
    if SET == 0: a.stamp(1)
    if SET == 3: a.stamp(2)
    def direct(dst, l, t):
        a(f"""
        v_mul_f32 v{t}, {fx(float(l))}, v10
        v_mul_f32 v{t+1}, {fx(float(l))}, v11
        v_exp_f32 v{t}, v{t}
        v_fract_f32 v{t+1}, v{t+1}
        v_cos_f32 v{dst}, v{t+1}
        v_sin_f32 v{dst+1}, v{t+1}
        s_nop 0
        v_mul_f32 v{dst}, v{t}, v{dst}
        v_mul_f32 v{dst+1}, v{t}, v{dst+1}
        """)
    tmpw = [0]
    def wr(row, src, neg=False):
        tmp = 62 + (tmpw[0] % 2); tmpw[0] += 1
        a(f"v_cvt_pk_bf16_f32 v{tmp}, v{src}, {'-' if neg else ''}v{src+1}")
        a(f"ds_write_b32 v2, v{tmp} offset:{row*TROW}")
    E = [None, 64, 66, 68, 70, 72, 74, 76]
    E8, E128, X, Y2, Q, R = 78, 80, 82, 84, 86, 88
    S = [12, 14, 16, 18]
    T0, T1, T2 = 28, 30, 32
    direct(E[1], 1, 28); direct(E128, 128, 30)
    a("""
    s_waitcnt vmcnt(2)
    v_lshlrev_b32 v42, 16, v42
    v_lshlrev_b32 v43, 16, v43
    v_lshlrev_b32 v44, 16, v44
    v_lshlrev_b32 v45, 16, v45
    v_mul_f32 v42, v6, v42
    v_mul_f32 v43, v6, v43
    """)
    cmul(a, Q, 44, 42, T2)
    a("v_mov_b32 v62, 0x3f80\nds_write_b32 v2, v62 offset:0"); tmpw[0] = 1
    cmul(a, E[2], E[1], E[1], T0); cmul(a, X, E128, E128, T1)
    wr(1, E[1]); wr(8, E128); wr(QROW, Q, True)
    cmul(a, E[4], E[2], E[2], T0); cmul(a, E[3], E[2], E[1], T1); cmul(a, R, X, X, T2)
    wr(2, E[2]); wr(16, X)
    cmul(a, E8, E[4], E[4], T0); cmul(a, E[5], E[4], E[1], T1); cmul(a, E[6], E[3], E[3], T2)
    wr(3, E[3]); wr(4, E[4]); wr(24, R)
    cmul(a, E[7], E[4], E[3], T0); cmul(a, Y2, R, E[4], T1)
    cmul(a, S[1], X, E[2], T2); cmul(a, S[2], X, E[4], T0); cmul(a, S[3], X, E[6], T1)
    wr(5, E[5]); wr(6, E[6]); wr(7, E[7]); wr(25, Y2)
    cmul(a, S[0], X, E128, T2)
    a(f"v_mov_b64 v[{X}:{X+1}], v[{R}:{R+1}]")
    cmul(a, R, R, R, T0)
    wr(17, S[1]); wr(18, S[2]); wr(19, S[3]); wr(20, S[0])
    for r in range(1, 4): cmul(a, S[r], S[r], E128, (T0, T1, T2)[r % 3])
    for r in range(1, 4): wr(20 + r, S[r])
    wr(32, R)
    Z = S[0]
    for i in range(1, 16):
        cmul(a, Q, Q, E8, T0)
        if i <= 8: cmul(a, R, R, E128, T1)
        if i <= 7: cmul(a, Z, E128, E[i], T2)
        if i <= 3:
            cmul(a, X, X, E128, 34); cmul(a, Y2, Y2, E128, 36)
        wr(QROW + i, Q, True)
        if i <= 8: wr(32 + i, R)
        if i <= 7: wr(8 + i, Z)
        if i <= 3:
            wr(24 + 2 * i, X); wr(25 + 2 * i, Y2)
    a(f"""
    v_and_b32 v4, 15, v0
    v_bfe_u32 v5, v0, 4, 2
    v_lshlrev_b32 v7, 4, v5
    v_mul_u32_u24 v8, {TROW}, v4
    v_add_u32 v8, v8, v7
    s_mul_i32 s36, s27, {TCH}
    v_add_u32 v8, s36, v8
    v_add_u32 v9, {QROW*TROW}, v8            ; B address
    s_mul_i32 s37, s28, {32*TROW}
    v_add_u32 v12, s37, v8
    s_mul_i32 s37, s28, {16*TROW}
    s_add_u32 s37, s37, {16*TROW}
    v_add_u32 v13, s37, v8
    """)
    for r in range(20, 36): a(f"v_mov_b32 v{r}, 0")
    a(f"""
    s_mul_i32 s36, s27, {KCS}
    s_add_u32 s36, s36, {KC2}
    s_cmp_eq_u32 s28, 1
    s_cbranch_scc1 k_t2
    v_and_b32 v7, 1, v5
    v_lshlrev_b32 v7, 2, v7
    v_lshrrev_b32 v14, 1, v5
    v_lshl_add_u32 v7, v14, 7, v7
    v_lshl_add_u32 v7, v4, 3, v7
    v_lshl_add_u32 v14, v7, 2, s36
    v_add_u32 v15, 4, v14
    v_add_u32 v16, 8, v14
    v_add_u32 v17, 12, v14
    v_cmp_gt_u32 vcc, 2, v5
    v_lshlrev_b32 v7, 6, v5
    v_add_u32 v7, 256, v7
    v_lshlrev_b32 v40, 2, v4
    v_lshlrev_b32 v41, 1, v4
    v_cndmask_b32 v40, v41, v40, vcc
    v_add_u32 v7, v7, v40
    v_lshl_add_u32 v40, v7, 2, s36
    v_add_u32 v41, 4, v40
    v_mov_b32 v42, 128
    v_cndmask_b32 v42, v42, 8, vcc
    v_add_u32 v42, v40, v42
    v_add_u32 v43, 4, v42
    s_branch k_addr
    k_t2:
    v_lshl_add_u32 v7, v5, 6, v4
    v_lshl_add_u32 v14, v7, 2, s36
    v_add_u32 v14, {512*4}, v14
    v_add_u32 v15, 64, v14
    v_add_u32 v16, 128, v14
    v_add_u32 v17, 192, v14
    v_mov_b32 v40, v14
    v_mov_b32 v41, v15
    v_mov_b32 v42, v16
    v_mov_b32 v43, v17
    k_addr:
    v_cmp_eq_u32 vcc, 0, v1
    s_cmp_eq_u32 s28, 0
    s_cselect_b32 s25, s25, 0
    v_mov_b32 v7, s25
    v_cndmask_b32 v7, 0, v7, vcc
    s_waitcnt lgkmcnt(0)
    """)
    a("s_waitcnt vmcnt(0)")
    idx_unpack(a, 104, 112)
    if SET == 0: a.stamp(2)
    if SET == 3: a.stamp(3)
    lds_arrive(a, 2, 38); lds_wait(a, 2, 4, 38, "k1")
    def rd(s):
        o = 64 + 12 * (s % 4)
        a(f"ds_read_b128 v[{o}:{o+3}], v9 offset:{64*s}")
        a(f"ds_read_b128 v[{o+4}:{o+7}], v12 offset:{64*s}")
        a(f"ds_read_b128 v[{o+8}:{o+11}], v13 offset:{64*s}")
    for s in range(4): rd(s)
    for s in range(8):
        o = 64 + 12 * (s % 4); p = s % 2
        a(f"s_waitcnt lgkmcnt({9 if s < 5 else 3*(7-s)})")
        a(f"v_mfma_f32_16x16x32_bf16 v[{20+8*p}:{23+8*p}], v[{o+4}:{o+7}], v[{o}:{o+3}], v[{20+8*p}:{23+8*p}]")
        a(f"v_mfma_f32_16x16x32_bf16 v[{24+8*p}:{27+8*p}], v[{o+8}:{o+11}], v[{o}:{o+3}], v[{24+8*p}:{27+8*p}]")
        if s < 4: rd(s + 4)
    a("s_nop 7")
    for r in range(8): a(f"v_add_f32 v{20+r}, v{20+r}, v{28+r}")
    a(f"""
    v_add_f32 v20, v20, v7
    ds_write_b32 v14, v20
    ds_write_b32 v15, v21
    ds_write_b32 v16, v22
    ds_write_b32 v17, v23
    ds_write_b32 v40, v24
    ds_write_b32 v41, v25
    ds_write_b32 v42, v26
    ds_write_b32 v43, v27
    """)
    lds_arrive(a, 3, 38); lds_wait(a, 3, 4, 38, "k2")
    if SET == 0: a.stamp(3)
    for ch in range(2):
        for e in range(11): a(f"ds_read_b32 v{64+12*ch+e}, v{112+e} offset:{IDX0 + ch*KCS}")
    a(f"""
    v_lshlrev_b32 v4, 4, v0                  ; tid*16
    v_mov_b32 v56, 0
    v_mov_b32 v57, 0
    v_mov_b32 v58, 0
    v_mov_b32 v59, 0
    v_lshrrev_b32 v60, 1, v0
    v_mul_u32_u24 v60, {KCP}, v60
    v_and_b32 v61, 1, v0
    v_lshl_add_u32 v60, v61, 4, v60
    v_add_u32 v60, 4096, v60
    v_bfe_u32 v61, v0, 5, 1
    v_mul_u32_u24 v61, {HCH}, v61
    v_and_b32 v62, 31, v0
    v_lshl_add_u32 v61, v62, 4, v61
    v_add_u32 v61, {H_OFF}, v61
    v_cmp_gt_u32 vcc, 16, v0
    s_cmp_eq_u32 s26, 1
    s_cbranch_scc1 k_padh
    s_cmp_eq_u32 s26, 0
    s_cbranch_scc0 k_pad_done
    s_and_saveexec_b64 s[54:55], vcc
    ds_write_b128 v60, v[56:59]
    s_mov_b64 exec, s[54:55]
    s_branch k_pad_done
    k_padh:
    ds_write_b128 v61, v[56:59]
    k_pad_done:
    s_waitcnt lgkmcnt(0)
    """)
    for ch in range(2):
        for c in range(4):
            o = 96 + 4 * (c % 2)
            for k in range(4): a(f"v_cvt_pk_bf16_f32 v{o+k}, v{64+12*ch+c+2*k}, v{64+12*ch+c+2*k+1}")
            a(f"ds_write_b128 v4, v[{o}:{o+3}] offset:{ch*KCHL + c*KCP}")
    a(f"""
    v_and_b32 v7, 15, v1
    v_lshrrev_b32 v2, 4, v1
    v_sub_u32 v60, 3, v7
    v_and_b32 v60, 3, v60
    v_mul_u32_u24 v61, {KCP - 2}, v60
    v_lshlrev_b32 v62, 1, v7
    v_sub_u32 v61, v61, v62
    v_lshl_add_u32 v61, v2, 4, v61
    s_mul_i32 s38, s27, {KCHL}
    s_lshl_b32 s39, s28, 8
    s_sub_u32 s38, s38, s39
    s_add_u32 s38, s38, {2*(2031 - 32*59)}
    v_add_u32 v20, s38, v61                  ; A base
    v_lshlrev_b32 v21, 5, v7
    v_lshl_add_u32 v21, v2, 4, v21
    s_mul_i32 s38, s27, {HCH}
    s_sub_u32 s38, s38, s39
    s_add_u32 s38, s38, {H_OFF + 2*(240 - 96)}
    v_add_u32 v21, s38, v21                  ; B base
    v_lshlrev_b32 v22, 5, v7
    v_lshl_add_u32 v22, v2, 3, v22
    s_lshl_b32 s38, s27, 12
    s_lshl_b32 s39, s28, 11
    s_add_u32 s38, s38, s39
    s_add_u32 s38, s38, {XR_OFF}
    v_add_u32 v23, s38, v22
    s_lshl_b32 s38, s30, 12
    s_lshl_b32 s39, s28, 11
    s_add_u32 s38, s38, s39
    s_add_u32 s38, s38, {WS_X2T}
    s_add_u32 s50, s22, s38
    s_addc_u32 s51, s23, 0
    s_lshl_b32 s43, s26, 12
    s_add_u32 s43, s43, {RED_OFF}
    v_lshlrev_b32 v24, 4, v1
    v_add_u32 v25, s43, v24
    s_xor_b32 s43, s26, 1
    s_lshl_b32 s43, s43, 12
    s_add_u32 s43, s43, {RED_OFF}
    v_add_u32 v26, s43, v24
    s_lshl_b32 s43, s27, 2
    s_add_u32 s43, s43, {MODS}
    v_mov_b32 v27, s43
    s_lshl_b32 s43, s26, 2
    s_add_u32 s43, s43, {FLG}
    v_mov_b32 v29, s43
    s_xor_b32 s43, s43, 4
    v_mov_b32 v30, s43
    v_mov_b32 v31, 0
    ds_write_b32 v29, v31
    v_lshlrev_b32 v24, 5, v7
    v_lshrrev_b32 v60, 1, v2
    v_lshl_add_u32 v24, v60, 4, v24
    v_and_b32 v60, 1, v2
    v_lshl_add_u32 v24, v60, 9, v24
    """)
    for t in range(8):
        for r in range(4): a(f"v_mov_b32 v{VY+4*t+r}, 0")
    lds_arrive(a, 5, 36);
    h_addr(a, 0)
    lds_wait(a, 5, 4, 36, "k3")
    T = LdsTracker(a)
    def ldA(p, r):
        off = 512 * (7 - p) + 64 * (3 - r)
        T.issue(f"ds_read_b64 v[{VA+4*p}:{VA+4*p+1}], v20 offset:{off}", [f"A{p}"])
        T.issue(f"ds_read_b64 v[{VA+4*p+2}:{VA+4*p+3}], v20 offset:{off+8}", [f"A{p}"])
    def ldB(k, r):
        off = 512 * k + 64 * (3 - r)
        T.issue(f"ds_read_b128 v[{VB+4*k}:{VB+4*k+3}], v21 offset:{off}", [f"B{k}"])
    for p in range(8): ldA(p, 0)
    if SET == 0: a.stamp(4)
    a("s_cmp_eq_u32 s26, 0\ns_cbranch_scc0 k_waitrel")
    go_addr(a, 84)
    lds_wait(a, 6, 1, 16, "k6", 1)
    a(f"v_and_b32 v16, 1, v1\nv_lshlrev_b32 v16, 3, v16\nv_add_u32 v16, {GOE}, v16\nds_read_b64 v[84:85], v16\ns_waitcnt lgkmcnt(0)")
    grid_wait(a, "k", 80, 84, int(os.environ.get("PSLP", 1)))
    lds_arrive(a, 4, 16)
    a("k_waitrel:")
    lds_wait(a, 4, 1, 16, "k4", 1)
    T.done = T.issued
    h_body(a)
    a("s_barrier")
    if int(os.environ.get("KPRIO", 0)): a(f"s_setprio {os.environ['KPRIO']}")
    if SET == 0: a.stamp(5)
    for k in range(7, -1, -1): ldB(k, 0)
    T.issue("ds_read_b32 v28, v27", ["ga"])
    for r in range(4):
        for p in range(8):
            for t in range(7, p - 1, -1):
                k = t - p
                T.need([f"A{p}", f"B{k}"])
                a(f"v_mfma_f32_16x16x32_bf16 v[{VY+4*t}:{VY+4*t+3}], v[{VA+4*p}:{VA+4*p+3}], v[{VB+4*k}:{VB+4*k+3}], v[{VY+4*t}:{VY+4*t+3}]")
                if t == 7 and r < 3: ldB(7 - p, r + 1)
            if r < 3: ldA(p, r + 1)
            if r == 3 and p == 4:
                for i in range(4): T.issue(f"ds_read_b64 v[{4+2*i}:{5+2*i}], v23 offset:{512*i}", ["xr"])
    T.need(["xr", "ga"])
    for i in range(4):
        a(f"v_lshlrev_b32 v{32+4*i}, 16, v{4+2*i}")
        a(f"v_and_b32 v{33+4*i}, 0xffff0000, v{4+2*i}")
        a(f"v_lshlrev_b32 v{34+4*i}, 16, v{5+2*i}")
        a(f"v_and_b32 v{35+4*i}, 0xffff0000, v{5+2*i}")
    a("s_cmp_eq_u32 s28, 1\ns_cbranch_scc1 k_hf1")
    def tail(hf):
        keep, send = 4 * hf, 4 * (1 - hf)
        for i in range(4):
            t = send + i
            a(f"ds_write_b128 v25, v[{VY+4*t}:{VY+4*t+3}] offset:{1024*i}")
        a("v_mov_b32 v31, 1\nds_write_b32 v29, v31")
        for i in range(4):
            for r in range(4): a(f"v_fma_f32 v{32+4*i+r}, v28, v{VY+4*(keep+i)+r}, v{32+4*i+r}")
        a(f"""
        k_hs{hf}:
        ds_read_b32 v31, v30
        s_waitcnt lgkmcnt(0)
        v_readfirstlane_b32 s43, v31
        s_cmp_eq_u32 s43, 1
        s_cbranch_scc0 k_hs{hf}
        """)
        for i in range(4): a(f"ds_read_b128 v[{64+4*i}:{67+4*i}], v26 offset:{1024*i}")
        for i in range(4):
            a(f"s_waitcnt lgkmcnt({3-i})")
            for r in range(4): a(f"v_fma_f32 v{32+4*i+r}, v28, v{64+4*i+r}, v{32+4*i+r}")
            a(f"v_cvt_pk_bf16_f32 v{12+2*i}, v{32+4*i}, v{33+4*i}")
            a(f"v_cvt_pk_bf16_f32 v{13+2*i}, v{34+4*i}, v{35+4*i}")
            if not X2W:
                a(f"global_store_dwordx2 v22, v[{12+2*i}:{13+2*i}], s[50:51] offset:{512*i}{X2SC}")
            elif i % 2 == 1:
                o = 12 + 2 * (i - 1)
                a("s_nop 1")
                a(f"v_permlane16_swap_b32 v{o}, v{o+2}")
                a(f"v_permlane16_swap_b32 v{o+1}, v{o+3}")
                a(f"global_store_dwordx4 v24, v[{o}:{o+3}], s[50:51] offset:{512*(i-1)}{X2SC}")
        a("s_waitcnt vmcnt(0)\ns_branch mega_next" if MEGA else "s_endpgm")
    tail(0)
    a("k_hf1:")
    tail(1)

NGO = int(os.environ.get('NGO', 32))
NSH = 4
def go_addr(a, o):
    a(f"""
    v_and_b32 v92, {NGO-1}, v1
    v_lshlrev_b32 v92, 7, v92
    s_and_b32 s34, s2, {NSH-1}
    s_lshl_b32 s34, s34, 2
    s_add_u32 s34, s34, {WS_GO}
    v_add_u32 v92, s34, v92
    s_lshr_b32 s34, s2, 2
    s_and_b32 s34, s34, {NGO-1}
    s_lshl_b32 s34, s34, 7
    s_add_u32 s34, s34, {WS_GO}
    v_and_b32 v94, 1, v1
    v_lshl_add_u32 v94, v94, 3, s34
    v_mov_b32 v{o+2}, 0
    v_mov_b32 v{o+3}, 0
    """)
def go_load(a, o):
    a(f"""
    s_mov_b64 exec, 3
    global_atomic_add_x2 v[{o}:{o+1}], v94, v[{o+2}:{o+3}], s[22:23] sc0 sc1
    s_mov_b64 exec, -1
    """)
def grid_arrive(a, tag, t):
    assert AB_GRID % 2 == 0
    n = [len(range(k, AB_GRID, NSH)) for k in range(NSH)]
    assert n[0] - n[-1] <= 1
    cut = AB_GRID % NSH
    BUMP = f"s_mov_b32 exec_hi, 0\n    s_mov_b32 exec_lo, {hex((1 << NGO) - 1)}\n    global_atomic_add v92, v{t+1}, s[22:23] sc1"
    a(f"""
    s_and_b32 s34, s2, {NSH-1}
    s_lshl_b32 s36, s34, 6
    v_mov_b32 v{t}, s36
    v_mov_b32 v{t+1}, 1
    s_cmp_lt_u32 s34, {cut}
    s_cselect_b32 s37, 1, 0
    s_add_u32 s37, s37, {n[-1] - 1}
    s_mov_b64 exec, 1
    global_atomic_add v{t+2}, v{t}, v{t+1}, s[20:21] sc0 sc1
    s_waitcnt vmcnt(0)
    v_readfirstlane_b32 s36, v{t+2}
    s_mov_b64 exec, -1
    s_cmp_eq_u32 s36, s37
    s_cbranch_scc0 {tag}_arrived
    {BUMP}
    s_mov_b64 exec, -1
    {tag}_arrived:
    """)
def grid_wait(a, tag, t, o, slp=1, nmax=None):
    n = [len(range(k, AB_GRID, NSH)) for k in range(NSH)]
    cut = AB_GRID % NSH
    a(f"""
    s_mov_b32 s60, 0
    {tag}_poll_loop:
    s_mov_b64 exec, 3
    global_atomic_add_x2 v[{t}:{t+1}], v94, v[{o+2}:{o+3}], s[22:23] sc0 sc1
    s_waitcnt vmcnt(0)
    v_cmp_eq_u32 vcc, v{t}, v{o}
    v_cmp_eq_u32 s[58:59], v{t+1}, v{o+1}
    s_mov_b64 exec, -1
    s_or_b64 vcc, vcc, s[58:59]
    s_cbranch_scc0 {tag}_go
    s_add_u32 s60, s60, 1
    s_and_b32 s61, s60, 31
    s_cbranch_scc1 {tag}_next
    v_and_b32 v{t}, {NSH-1}, v1
    v_lshlrev_b32 v{t+1}, 6, v{t}
    v_mov_b32 v{t+3}, {n[-1]}
    v_cmp_gt_u32 vcc, {cut}, v{t}
    s_mov_b64 exec, {(1 << NSH) - 1}
    global_atomic_add v{t+2}, v{t+1}, v{o+2}, s[20:21] sc0 sc1
    s_waitcnt vmcnt(0)
    v_addc_co_u32 v{t+3}, vcc, 0, v{t+3}, vcc
    v_cmp_ne_u32 vcc, v{t+2}, v{t+3}
    s_mov_b64 exec, -1
    s_cbranch_vccz {tag}_go
    {tag}_next:
    s_sleep {slp}
    s_cmp_lt_u32 s60, {nmax or SPIN_MAX}
    s_cbranch_scc1 {tag}_poll_loop
    {tag}_go:
    """)

def gen_pwaves(a):
    a(f"""
    pwaves:
    s_load_dwordx2 s[4:5], s[0:1], 0         ; x
    s_load_dwordx4 s[44:47], s[0:1], 112     ; c, w_mod
    s_load_dwordx4 s[20:23], s[0:1], 136
    s_load_dwordx4 s[8:11], s[0:1], 80       ; w1, b1
    s_load_dwordx2 s[48:49], s[0:1], 96
    s_setprio {PPRIO}
    v_subrev_u32 v0, 256, v0
    s_sub_u32 s26, s26, 4
    v_lshrrev_b32 v3, 6, v0
    v_lshrrev_b32 v8, 4, v1                  ; row (0..3)
    v_and_b32 v9, 15, v1                     ; 16 B chunk
    v_lshlrev_b32 v4, 10, v8
    v_lshl_add_u32 v4, v9, 4, v4
    v_lshl_add_u32 v4, v3, 8, v4
    s_lshl_b32 s31, s2, 13
    v_add_u32 v4, s31, v4
    v_add_u32 v44, 4096, v4
    s_min_u32 s32, s7, 23
    s_mul_i32 s33, s6, 24
    s_add_u32 s33, s33, s32
    v_lshrrev_b32 v5, 1, v0                  ; rg
    v_and_b32 v6, 1, v0                      ; cc
    v_mul_u32_u24 v7, {4*6144}, v5
    v_lshl_add_u32 v7, v6, 4, v7
    s_lshl_b32 s34, s33, 5
    v_add_u32 v7, s34, v7
    v_lshlrev_b32 v2, 3, v5                  ; c offset
    """)
    go_addr(a, 96)
    a("s_waitcnt lgkmcnt(0)")
    if SET == 1: a.stamp(0)
    a(f"""
    global_load_dwordx4 v[8:11], v4, s[4:5]
    global_load_dwordx4 v[12:15], v44, s[4:5]
    global_load_dwordx2 v[16:17], v2, s[44:45]
    """)
    for i in range(4):
        if i: a("v_add_u32 v7, 6144, v7")
        a(f"global_load_dwordx4 v[{20+4*i}:{23+4*i}], v7, s[46:47]")
    a(f"""
    v_mov_b32 v38, 0x3f803f80
    v_lshrrev_b32 v40, 4, v1
    v_mul_u32_u24 v39, 320, v40
    v_and_b32 v41, 15, v1
    v_lshl_add_u32 v39, v41, 4, v39
    s_mul_i32 s34, s26, 2560
    s_add_u32 s34, s34, {LNT}
    v_add_u32 v39, s34, v39
    v_lshrrev_b32 v47, 2, v41
    v_mul_u32_u24 v47, 320, v47
    v_and_b32 v46, 3, v41
    v_lshl_add_u32 v47, v46, 3, v47
    v_lshl_add_u32 v47, v40, 5, v47
    v_add_u32 v47, s34, v47
    v_lshl_add_u32 v46, v3, 7, v1
    v_lshlrev_b32 v46, 4, v46
    s_mul_i32 s34, s2, {XBS}
    s_add_u32 s34, s34, {WS_XB}
    v_add_u32 v46, s34, v46
    v_lshlrev_b32 v45, 3, v40
    s_lshl_b32 s34, s26, 6
    s_add_u32 s34, s34, {STP}
    v_add_u32 v45, s34, v45
    """)
    for r in range(2):
        b = 8 + 4 * r
        a(f"s_waitcnt vmcnt({6 - r})")
        a(f"ds_write_b128 v39, v[{b}:{b+3}] offset:{1280*r}")
        a(f"v_dot2_f32_bf16 v{72+2*r}, v{b}, v38, 0")
        a(f"v_dot2_f32_bf16 v{73+2*r}, v{b}, v{b}, 0")
        for k in range(1, 4):
            a(f"v_dot2_f32_bf16 v{72+2*r}, v{b+k}, v38, v{72+2*r}")
            a(f"v_dot2_f32_bf16 v{73+2*r}, v{b+k}, v{b+k}, v{73+2*r}")
    a("""
    s_waitcnt lgkmcnt(0)
    ds_read_b64_tr_b16 v[48:49], v47
    ds_read_b64_tr_b16 v[50:51], v47 offset:1280
    ds_read_b64_tr_b16 v[52:53], v47 offset:128
    ds_read_b64_tr_b16 v[54:55], v47 offset:1408
    """)
    if SET == 1: a.stamp(1)
    a("s_waitcnt vmcnt(4)")
    for i in range(4):
        src = 16 + i // 2
        a(f"v_lshlrev_b32 v{56+i}, 16, v{src}" if i % 2 == 0 else f"v_and_b32 v{56+i}, 0xffff0000, v{src}")
    for i in range(4): a(f"v_mul_f32 v{60+i}, {fx(-1.4426950408889634)}, v{56+i}")
    for i in range(4): a(f"v_exp_f32 v{60+i}, v{60+i}")
    dpps = ["row_shr:1", "row_shr:2", "row_shr:4", "row_shr:8", "row_bcast:15 row_mask:0xa", "row_bcast:31 row_mask:0xc"]
    def dpp4(d):
        m = "" if "row_mask" in d else " row_mask:0xf"
        for r in range(72, 76): a(f"v_add_f32_dpp v{r}, v{r}, v{r} {d}{m} bank_mask:0xf")
    dpp4(dpps[0])
    for i in range(4): a(f"v_add_f32 v{60+i}, 1.0, v{60+i}")
    dpp4(dpps[1])
    for i in range(4): a(f"v_rcp_f32 v{60+i}, v{60+i}")
    dpp4(dpps[2])
    for i in range(4): a(f"v_mul_f32 v{56+i}, v{56+i}, v{60+i}")
    dpp4(dpps[3])
    for i in range(4):
        a(f"v_cvt_pk_bf16_f32 v{60+i}, v{56+i}, 0")
        a(f"v_cvt_pk_bf16_f32 v{76+i}, 0, v{56+i}")
    a(f"""
    s_waitcnt lgkmcnt(0)
    global_store_dwordx4 v46, v[48:51], s[22:23] sc1
    global_store_dwordx4 v46, v[52:55], s[22:23] offset:1024 sc1
    v_cmp_eq_u32 vcc, 15, v41
    s_and_saveexec_b64 s[54:55], vcc
    ds_write_b64 v45, v[72:73]
    ds_write_b64 v45, v[74:75] offset:32
    s_mov_b64 exec, s[54:55]
    """)
    for i in range(4):
        a(f"s_waitcnt vmcnt({5 - i})")
        for m in range(4):
            c0 = "0" if i == 0 else f"v{64+2*m}"; c1 = "0" if i == 0 else f"v{65+2*m}"
            a(f"v_dot2_f32_bf16 v{64+2*m}, v{20+4*i+m}, v{60+i}, {c0}")
            a(f"v_dot2_f32_bf16 v{65+2*m}, v{20+4*i+m}, v{76+i}, {c1}")
    a("s_nop 2")
    for d in ["row_shr:2", "row_shr:4", "row_shr:8"]:
        for r in range(64, 72): a(f"v_add_f32_dpp v{r}, v{r}, v{r} {d} row_mask:0xf bank_mask:0xf")
    a(f"""
    v_lshrrev_b32 v4, 4, v0
    v_mul_u32_u24 v4, 80, v4
    v_lshl_add_u32 v4, v6, 5, v4
    v_add_u32 v4, {MODS}, v4
    v_and_b32 v5, 15, v0
    v_cmp_lt_u32 vcc, 13, v5
    v_lshlrev_b32 v5, 2, v5
    v_add_u32 v5, {MODS}, v5
    s_and_saveexec_b64 s[54:55], vcc
    ds_write_b128 v4, v[64:67]
    ds_write_b128 v4, v[68:71] offset:16
    s_mov_b64 exec, s[54:55]
    s_waitcnt lgkmcnt(0)
    """)
    if SET == 1: a.stamp(2)
    a("""
    s_cmp_eq_u32 s26, 0
    s_cbranch_scc0 p_nogo
    """)
    go_load(a, 96)
    a("p_nogo:")
    lds_arrive(a, 0, 36); lds_wait(a, 0, 4, 36, "p1")
    for i in range(16): a(f"ds_read_b32 v{20+i}, v5 offset:{80*i}")
    a(f"""
    v_and_b32 v58, 7, v0
    v_lshlrev_b32 v59, 3, v58
    v_add_u32 v59, {STP}, v59
    ds_read_b64 v[48:49], v59
    ds_read_b64 v[50:51], v59 offset:64
    ds_read_b64 v[52:53], v59 offset:128
    ds_read_b64 v[54:55], v59 offset:192
    v_lshlrev_b32 v58, 2, v58
    s_lshl_b32 s34, s2, 5
    s_add_u32 s34, s34, {WS_ST1}
    v_add_u32 v58, s34, v58
    s_waitcnt lgkmcnt(0)
    v_add_f32 v48, v48, v50
    v_add_f32 v49, v49, v51
    v_add_f32 v52, v52, v54
    v_add_f32 v53, v53, v55
    v_add_f32 v56, v48, v52
    v_add_f32 v57, v49, v53
    v_mul_f32 v56, {fx(1.0/512)}, v56        ; mean
    v_mul_f32 v57, {fx(1.0/512)}, v57
    v_fma_f32 v57, -v56, v56, v57
    v_max_f32 v57, 0, v57
    v_add_f32 v57, {fx(1e-5)}, v57
    v_rsq_f32 v57, v57
    v_cmp_gt_u32 vcc, 8, v0
    v_mul_f32 v56, -v56, v57
    v_cvt_pk_bf16_f32 v56, v57, v56          ; (r, -mean*r)
    s_and_saveexec_b64 s[54:55], vcc
    s_cbranch_execz p_nostat
    global_store_dword v58, v56, s[22:23] sc1
    p_nostat:
    s_mov_b64 exec, s[54:55]
    """)
    for st in (1, 2, 4, 8):
        for i in range(0, 16, 2 * st): a(f"v_add_f32 v{20+i}, v{20+i}, v{20+i+st}")
    a(f"""
    v_cvt_pk_bf16_f32 v20, v20, v20
    v_lshlrev_b32 v20, 16, v20
    s_lshl_b32 s34, s33, 7
    s_add_u32 s34, s34, {WS_MODP}
    v_lshlrev_b32 v4, 2, v0
    v_add_u32 v4, s34, v4
    s_cmp_lt_u32 s7, 24
    s_cselect_b32 s34, 16, 0
    v_cmp_gt_u32 vcc, s34, v0
    s_and_saveexec_b64 s[54:55], vcc
    s_cbranch_execz p_nomod
    global_store_dword v4, v20, s[22:23] sc1
    p_nomod:
    s_mov_b64 exec, s[54:55]
    """)
    a(f"""
    s_cmp_eq_u32 s2, 0
    s_cbranch_scc0 p_nozero
    s_cmp_eq_u32 s26, 1
    s_cbranch_scc0 p_nozero
    v_lshlrev_b32 v60, 7, v1
    v_add_u32 v60, {WS_CNT}, v60
    v_mov_b32 v62, 0
    v_mov_b32 v63, 0
    v_mov_b32 v64, 0
    v_mov_b32 v65, 0
    global_store_dwordx4 v60, v[62:65], s[22:23] sc1
    p_nozero:
    """)
    a("s_waitcnt vmcnt(0)")
    lds_arrive(a, 1, 36)
    if SET == 1: a.stamp(3)
    a(f"""
    s_cmp_eq_u32 s26, 0
    s_cbranch_scc0 p_noentry
    """)
    if os.environ.get("FORCE_RACE"):
        a("s_cmp_eq_u32 s2, 5\ns_cbranch_scc0 fr_skip\nv_add_u32 v96, 1, v96\nfr_skip:")
    a(f"""
    v_and_b32 v60, 1, v1
    v_lshlrev_b32 v60, 3, v60
    v_add_u32 v60, {GOE}, v60
    s_mov_b64 exec, 3
    ds_write_b64 v60, v[96:97]
    s_mov_b64 exec, -1
    """)
    lds_arrive(a, 6, 36)
    lds_wait(a, 1, 4, 36, "p2")
    grid_arrive(a, "p", 36)
    a("p_noentry:")
    h_addr(a, 256)
    a(f"""
    s_cmp_lt_u32 s2, {NW1}
    s_cbranch_scc0 p_now1
    v_lshrrev_b32 v18, 1, v0                 ; rg
    v_and_b32 v19, 1, v0                     ; cc
    v_mul_u32_u24 v16, {4*2752}, v18
    v_lshl_add_u32 v16, v19, 4, v16
    s_lshl_b32 s12, s2, 5
    v_add_u32 v16, s12, v16
    """)
    for i in range(4):
        if i: a("v_add_u32 v16, 2752, v16")
        a(f"global_load_dwordx4 v[{100+4*i}:{103+4*i}], v16, s[8:9]")
    a(f"""
    v_and_b32 v17, 15, v0
    v_lshlrev_b32 v17, 1, v17
    v_add_u32 v17, s12, v17
    global_load_ushort v56, v17, s[10:11]
    v_mov_b32 v57, 0x3f803f80
    v_lshrrev_b32 v58, 2, v18
    v_lshlrev_b32 v58, 9, v58
    v_bfe_u32 v59, v18, 1, 1
    v_lshl_add_u32 v58, v59, 8, v58
    v_lshl_add_u32 v58, v19, 7, v58
    v_and_b32 v59, 1, v18
    v_lshl_add_u32 v58, v59, 3, v58
    v_add_u32 v58, {IMG}, v58
    s_waitcnt vmcnt(1)
    """)
    for i in range(4):
        for e in range(8):
            src = 100 + 4 * i + e // 2
            a(f"v_lshlrev_b32 v{24+8*i+e}, 16, v{src}" if e % 2 == 0 else f"v_and_b32 v{24+8*i+e}, 0xffff0000, v{src}")
    a("p_now1:\ns_setprio 0")
    a(f"""
    v_lshrrev_b32 v16, 3, v0
    v_lshlrev_b32 v16, 7, v16
    v_bfe_u32 v17, v0, 1, 2
    v_lshl_add_u32 v16, v17, 4, v16
    v_add_u32 v16, {WS_MODP + 96*128}, v16
    v_add_u32 v17, 4096, v16
    """)
    lds_wait(a, 4, 1, 60, "p3", 1)
    if SET == 1: a.stamp(4)
    a(f"s_cmp_lt_u32 s2, {NW1}\ns_cbranch_scc0 p_hplain")
    h_body(a, lambda: a("global_load_dwordx4 v[100:103], v16, s[22:23] sc1\nglobal_load_dwordx4 v[104:107], v17, s[22:23] sc1"), 2)
    a("s_branch p_hdone\np_hplain:")
    h_body(a)
    a("p_hdone:")
    if SET == 1: a.stamp(5)
    a("s_barrier")
    if int(os.environ.get("WPRIO", 0)): a(f"s_setprio {os.environ['WPRIO']}")
    a(f"""
    s_lshr_b32 s47, s2, 3
    s_mul_i32 s47, s47, 44032
    v_lshlrev_b32 v20, 6, v0
    v_add_u32 v20, s47, v20
    global_load_dword v21, v20, s[48:49]
    v_add_u32 v20, 16384, v20
    global_load_dword v22, v20, s[48:49]
    s_add_u32 s47, s47, {32768 + 175*64}
    v_add_u32 v20, 16384, v20
    v_min_u32 v20, s47, v20
    global_load_dword v23, v20, s[48:49]
    s_cmp_lt_u32 s2, {NW1}
    s_cbranch_scc0 p_done
    s_waitcnt vmcnt(3)
    """)
    for i in range(4): a(f"v_add_f32 v{12+i}, 1.0, v{104+i}")
    a("v_cvt_pk_bf16_f32 v16, v12, v13\nv_cvt_pk_bf16_f32 v17, v14, v15")
    a("v_lshlrev_b32 v12, 16, v16\nv_and_b32 v13, 0xffff0000, v16\nv_lshlrev_b32 v14, 16, v17\nv_and_b32 v15, 0xffff0000, v17")
    for e in range(8): a(f"v_mul_f32 v{72+e}, v100, v{24+e}")
    for i in range(1, 4):
        for e in range(8): a(f"v_fmac_f32 v{72+e}, v{100+i}, v{24+8*i+e}")
    for i in range(4):
        for e in range(8): a(f"v_mul_f32 v{24+8*i+e}, v{12+i}, v{24+8*i+e}")
    for e in range(8):
        a(f"v_cvt_pk_bf16_f32 v{80+2*e}, v{24+e}, v{32+e}")
        a(f"v_cvt_pk_bf16_f32 v{81+2*e}, v{40+e}, v{48+e}")
    for e in range(8): a(f"ds_write_b64 v58, v[{80+2*e}:{81+2*e}] offset:{16*e}")
    for e in range(8): a(f"v_dot2_f32_bf16 v{64+e}, v{80+2*e}, v57, 0")
    for e in range(8): a(f"v_dot2_f32_bf16 v{64+e}, v{81+2*e}, v57, v{64+e}")
    a("s_nop 2")
    for d in ["row_shr:2", "row_shr:4", "row_shr:8"]:
        for r in range(64, 80): a(f"v_add_f32_dpp v{r}, v{r}, v{r} {d} row_mask:0xf bank_mask:0xf")
    a(f"""
    v_lshrrev_b32 v5, 4, v0                  ; part
    v_mul_u32_u24 v5, 144, v5
    v_lshl_add_u32 v5, v19, 5, v5
    v_add_u32 v5, {RED2}, v5
    v_and_b32 v6, 15, v0
    v_cmp_lt_u32 vcc, 13, v6
    s_and_saveexec_b64 s[54:55], vcc
    ds_write_b128 v5, v[64:67]
    ds_write_b128 v5, v[68:71] offset:16
    ds_write_b128 v5, v[72:75] offset:64
    ds_write_b128 v5, v[76:79] offset:80
    s_mov_b64 exec, s[54:55]
    """)
    lds_arrive(a, 7, 60)
    a(f"""
    v_lshlrev_b32 v7, 4, v0
    v_add_u32 v7, {IMG}, v7
    s_lshr_b32 s13, s2, 1
    s_lshl_b32 s13, s13, 15
    s_and_b32 s14, s2, 1
    s_lshl_b32 s14, s14, 8
    s_add_u32 s13, s13, s14
    s_add_u32 s13, s13, {WS_W1F}
    v_lshrrev_b32 v8, 4, v0
    v_lshlrev_b32 v8, 9, v8
    v_lshl_add_u32 v8, v6, 4, v8
    v_add_u32 v8, s13, v8
    v_lshlrev_b32 v9, 2, v6
    v_bfe_u32 v10, v0, 4, 1
    v_lshl_add_u32 v9, v10, 6, v9            ; (t&15)*4 + ((t>>4)&1)*64
    v_add_u32 v9, {RED2}, v9
    """)
    lds_wait(a, 7, 4, 60, "p7", 1)
    for k in range(4): a(f"ds_read_b128 v[{24+4*k}:{27+4*k}], v7 offset:{4096*k}")
    for p in range(16): a(f"ds_read_b32 v{40+p}, v9 offset:{144*p}")
    a("s_waitcnt lgkmcnt(0)")
    for k in range(4):
        a(f"global_store_dwordx4 v8, v[{24+4*k}:{27+4*k}], s[22:23]{W1SC}")
        if k < 3: a(f"v_add_u32 v8, {16*512}, v8")
    for st in (1, 2, 4, 8):
        for p in range(0, 16, 2 * st): a(f"v_add_f32 v{40+p}, v{40+p}, v{40+p+st}")
    a(f"""
    v_lshlrev_b32 v56, 16, v56
    v_cmp_eq_u32 vcc, 1, v10
    s_nop 1
    v_cndmask_b32 v56, 0, v56, vcc
    v_add_f32 v40, v40, v56
    s_lshl_b32 s13, s2, 6
    v_lshl_add_u32 v11, v6, 2, s13
    v_mov_b32 v12, {WS_CS}
    v_mov_b32 v13, {WS_B1P}
    v_cndmask_b32 v12, v12, v13, vcc
    v_add_u32 v11, v11, v12
    v_cmp_gt_u32 vcc, 32, v0
    s_and_saveexec_b64 s[54:55], vcc
    s_cbranch_execz p_done
    global_store_dword v11, v40, s[22:23]{" sc1" if MEGA else SC}
    p_done:
    """)
    if MEGA: a("s_mov_b64 exec, -1\nv_add_u32 v0, 256, v0\ns_waitcnt vmcnt(0)\ns_branch mega_next")
    else: a("s_endpgm")

def gen_AB(a):
    a(f"""
    s_cmp_ge_u32 s2, {NMAIN}
    s_cbranch_scc1 ab_other
    v_lshrrev_b32 v3, 6, v0
    v_and_b32 v1, 63, v0
    s_and_b32 s6, s2, 7
    s_lshr_b32 s7, s2, 3
    v_readfirstlane_b32 s26, v3              ; wave
    v_lshlrev_b32 v4, 2, v0
    v_add_u32 v4, {CNT}, v4
    v_mov_b32 v5, 0
    v_cmp_gt_u32 vcc, 8, v0
    s_and_saveexec_b64 s[54:55], vcc
    ds_write_b32 v4, v5
    s_mov_b64 exec, s[54:55]
    s_lshl_b32 s29, s6, 6
    s_lshl_b32 s30, s7, 1
    s_add_u32 s29, s29, s30
    s_waitcnt lgkmcnt(0)
    s_barrier
    s_cmp_lt_u32 s26, 4
    s_cbranch_scc1 kwaves
    """)
    gen_pwaves(a)
    gen_kwaves(a)
    if not MEGA:
        a("ab_other:\ns_endpgm")
        a.l.append(idx_table())

if __name__ == "__main__":
    ks = [("convab_kernel", gen_AB, 128, AB_GRID, 512, AB_LDS),
          ("gemm1_kernel", gen_C, 176, C_GRID, 512, C_LDS),
          ("gemm2_kernel", gen_D, 128, D_GRID, 512, D_LDS)]
    s = build(ks)
    path = sys.argv[1] if len(sys.argv) > 1 else "out.s"
    open(path, "w").write(s)
    print("wrote", path, len(s))
```

```python
import sys, os
os.environ["MODP"] = "1"
import g7 as g5
from g7 import *
from g3b import HIDSC, OUTSC, HS

CD_GRID = 256
C_SLOT, C_NS = 28672, 4
C_TAB = C_NS * C_SLOT
D_NCH = 11
NW = int(os.environ.get("CD_NW", 6)); NH = 3
D_HID = NW * 16384
D_X2 = D_HID + NH * 16384
D_TAB = D_X2 + 8192
D_FLG = D_TAB + 512
CD_LDS = D_FLG + 16
assert D_X2 >= C_TAB + 768 and CD_LDS <= 163840
WS_CNT = g5.WS_CNT
CSET = int(os.environ.get("CSET", 0))
NODMA = bool(os.environ.get("CD_NODMA"))
PATOM = os.environ.get("PATOM", "1") == "1"
POLL = ("s_mov_b64 exec, 1\n    global_atomic_add v27, v21, v26, s[20:21] sc0 sc1\n    s_mov_b64 exec, -1" if PATOM else
        "global_load_dword v27, v21, s[20:21] " + os.environ.get("PSC", "sc1"))

def mega_sync(a, poller):
    if poller:
        a(f"""
        s_cmp_eq_u32 s26, 0
        s_cbranch_scc0 mg_wait
        s_and_b32 s12, s2, 3
        s_lshl_b32 s13, s12, 7
        s_add_u32 s13, s13, {WS_CNT + 16*128}
        v_mov_b32 v30, s13
        v_mov_b32 v31, 1
        s_mov_b64 exec, 1
        global_atomic_add v32, v30, v31, s[20:21] sc0 sc1
        s_waitcnt vmcnt(0)
        v_readfirstlane_b32 s13, v32
        s_mov_b64 exec, -1
        s_cmp_eq_u32 s13, 63
        s_cbranch_scc0 mg_arrived
        v_and_b32 v30, 31, v1
        v_lshlrev_b32 v30, 7, v30
        s_lshl_b32 s12, s12, 2
        s_add_u32 s12, s12, {WS_CNT + 20*128}
        v_add_u32 v30, s12, v30
        s_mov_b32 exec_hi, 0
        global_atomic_add v30, v31, s[20:21] sc1
        s_mov_b64 exec, -1
        mg_arrived:
        s_lshr_b32 s12, s2, 2
        s_and_b32 s12, s12, 31
        s_lshl_b32 s12, s12, 7
        s_add_u32 s12, s12, {WS_CNT + 20*128}
        v_and_b32 v30, 1, v1
        v_lshl_add_u32 v30, v30, 3, s12
        v_mov_b32 v34, 0
        v_mov_b32 v35, 0
        s_mov_b32 s60, 0
        mg_poll:
        s_mov_b64 exec, 3
        global_atomic_add_x2 v[32:33], v30, v[34:35], s[20:21] sc0 sc1
        s_waitcnt vmcnt(0)
        v_cmp_ne_u32 vcc, 1, v32
        v_cmp_ne_u32 s[58:59], 1, v33
        s_mov_b64 exec, -1
        s_or_b64 vcc, vcc, s[58:59]
        s_cbranch_scc0 mg_wait
        s_add_u32 s60, s60, 1
        s_sleep 1
        s_cmp_lt_u32 s60, {SPIN_MAX}
        s_cbranch_scc1 mg_poll
        mg_wait:
        """)
    a("s_barrier")

def gen_CD(a):
    ACC, AQ, AS, FB = 64, 112, 120, 128
    st = lambda k, i: a.stamp(i) if CSET == k else None
    a(f"""
    s_cmp_ge_u32 s2, {CD_GRID}
    s_cbranch_scc1 cd_exit
    s_load_dwordx2 s[20:21], s[0:1], 144     ; ws
    s_load_dwordx4 s[44:47], s[0:1], 96      ; w2, b2
    s_load_dwordx2 s[48:49], s[0:1], 128     ; out
    s_and_b32 s6, s2, 7
    s_lshr_b32 s7, s2, 3                     ; j
    s_and_b32 s4, s6, 3
    s_lshl_b32 s4, s4, 2
    s_and_b32 s12, s7, 3
    s_add_u32 s4, s4, s12                    ; lt = 4(k&3) + (j&3)
    s_lshr_b32 s5, s6, 2
    s_lshl_b32 s5, s5, 3
    s_lshr_b32 s13, s7, 2
    s_add_u32 s5, s5, s13
    s_lshl_b32 s52, s6, 2
    s_add_u32 s52, s52, s12                  ; lt64 = 4k + (j&3)
    s_mov_b32 s53, s13                       ; dt = j>>2
    v_lshrrev_b32 v3, 6, v0
    v_and_b32 v1, 63, v0
    v_lshlrev_b32 v4, 4, v1                  ; lane*16
    v_readfirstlane_b32 s26, v3              ; wave
    s_cmp_lt_u32 s26, 4
    s_cbranch_scc1 cd_compute
    s_sub_u32 s26, s26, 4
    v_lshrrev_b32 v5, 4, v1
    v_lshlrev_b32 v6, 2, v5
    v_and_b32 v7, 15, v1
    v_xor_b32 v6, v6, v7
    v_lshlrev_b32 v6, 4, v6
    v_lshl_add_u32 v5, v5, 12, v6
    s_mul_i32 s6, s5, {3*32*1024}
    s_add_u32 s6, s6, {WS_W1F}
    s_mul_i32 s7, s26, 3
    """)
    for i in range(3):
        a(f"""
        s_add_u32 s12, s7, {i}
        s_lshr_b32 s13, s12, 2
        s_and_b32 s12, s12, 3
        s_lshl_b32 s13, s13, 15
        s_lshl_b32 s12, s12, 10
        s_add_u32 s12, s12, s13
        s_add_u32 s{30+i}, s12, s6
        """)
    a(f"""
    s_lshl_b32 s12, s26, 16
    s_lshl_b32 s13, s4, 8
    s_add_u32 s12, s12, s13
    s_add_u32 s33, s12, {WS_X2T}
    s_mul_i32 s34, s26, 3072
    s_lshl_b32 s35, s26, 12
    s_add_u32 s35, s35, 12288
    s_lshl_b32 s12, s4, 7
    s_add_u32 s12, s12, {WS_CNT}
    v_mov_b32 v20, s12
    s_lshr_b32 s12, s52, 1
    s_lshl_b32 s12, s12, 7
    s_add_u32 s12, s12, {WS_CNT}
    v_mov_b32 v21, s12
    s_waitcnt lgkmcnt(0)
    """)
    srd(a, 8, 20, WS_SIZE)
    if MEGA: mega_sync(a, True)
    st(1, 0)
    def dmaC(c):
        slot = (c % C_NS) * C_SLOT
        a(f"s_and_b32 s37, {c}, 7\ns_lshl_b32 s38, s37, 18\ns_lshl_b32 s37, s37, 12\ns_add_u32 s38, s38, s33")
        for j in range(4):
            a(f"s_add_u32 m0, s35, {slot + 1024*j}")
            a(f"s_add_u32 s38, s38, 16384" if j else "s_nop 0")
            a(f"buffer_load_dwordx4 v5, s[8:11], s38 offen lds")
        for i in range(3):
            a(f"s_add_u32 m0, s34, {slot + 1024*i}")
            a(f"s_add_u32 s12, s{30+i}, s37")
            a(f"buffer_load_dwordx4 v4, s[8:11], s12 offen lds")
    a("s_cmp_ge_u32 s5, 15\ns_cbranch_scc1 cd_ld_noC")
    dmaC(0); dmaC(1)
    for c in range(8):
        last = min(7, c + 1)
        n = 7 * (last - c)
        a(f"s_waitcnt vmcnt({n})")
        a("s_barrier")
        if c == 0: st(1, 1)
        if c + 2 <= 7: dmaC(c + 2)
    a("s_barrier")
    a("s_branch cd_ld2")
    a("cd_ld_noC:")
    a("cd_ld2:")
    st(1, 2)
    a(f"""
    s_and_b32 s27, s26, 1
    s_lshr_b32 s28, s26, 1
    s_and_b32 s6, s52, 3
    s_lshl_b32 s6, s6, 1
    s_add_u32 s36, s6, s53
    s_and_b32 s36, s36, {((8 - 8 // int(os.environ.get("D_ROT", 4))) & 7)}
    s_mul_i32 s36, s36, 11
    s_lshr_b32 s36, s36, 3
    v_lshrrev_b32 v5, 3, v1
    v_bfe_u32 v6, v1, 4, 1
    v_lshlrev_b32 v6, 2, v6
    v_and_b32 v7, 7, v1
    v_xor_b32 v6, v6, v7
    v_lshlrev_b32 v6, 4, v6
    v_lshl_add_u32 v5, v5, 10, v6
    v_lshrrev_b32 v9, 3, v1
    v_lshl_add_u32 v9, v9, 12, v6
    s_lshl_b32 s31, s27, 13
    """)
    def dmaD(c, fl=""):
        slot = (c % NW) * 16384 if not fl else D_HID + (c % NH) * 16384
        a(f"""
        s_add_u32 s34, s36, {c}
        s_sub_u32 s35, s34, 11
        s_cmp_ge_u32 s34, 11
        s_cselect_b32 s34, s35, s34
        s_mul_i32 s34, s34, s33
        s_add_u32 s34, s34, s30
        """)
        for i in range(8):
            a(f"s_add_u32 m0, s31, {slot + 1024*i}")
            a(f"s_add_u32 s34, s34, s32" if i else "s_nop 0")
            a(f"buffer_load_dwordx4 v8, s[8:11], s34 offen{fl} lds")
    a(f"""
    s_cmp_eq_u32 s28, 0
    s_cbranch_scc0 cd_hid
    s_mov_b32 s8, s44
    s_mov_b32 s9, s45
    s_mov_b32 s10, {1376*512*2}
    s_mov_b32 s11, 0x00020000
    s_lshl_b32 s30, s27, 16
    s_lshl_b32 s12, s53, 7
    s_add_u32 s30, s30, s12
    s_mov_b32 s32, 8192
    s_mov_b32 s33, 131072
    v_mov_b32 v8, v5
    """)
    srd(a, 40, 20, WS_SIZE)
    NPRE = NW
    W2LATE = os.environ.get("W2LATE") == "1"
    if W2LATE: a("s_barrier")
    dmaD(0)
    a(f"""
    s_lshl_b32 s12, s53, 6
    s_lshl_b32 s13, s27, 5
    s_add_u32 s12, s12, s13
    s_lshl_b32 s12, s12, 12
    s_lshl_b32 s13, s52, 7
    s_add_u32 s12, s12, s13
    s_add_u32 s12, s12, {WS_X2T}
    s_lshl_b32 s13, s27, 12
    s_add_u32 s13, s13, {D_X2}
    """)
    for i in range(4):
        a(f"s_add_u32 m0, s13, {1024*i}")
        a(f"s_add_u32 s14, s12, {8*4096*i}")
        a("buffer_load_dwordx4 v9, s[40:43], s14 offen lds")
    for c in range(1, NPRE): dmaD(c)
    if not W2LATE:
        a(f"s_waitcnt vmcnt({8*(NPRE-1)})")
        a("s_barrier")
    issued = NPRE - 1
    for c in range(D_NCH):
        a(f"s_waitcnt vmcnt({8*(issued - c)})")
        a("s_barrier")
        k = c + NPRE - 1
        if c >= 1 and k < D_NCH and not NODMA:
            dmaD(k); issued = k
    a("s_endpgm")
    a(f"""
    cd_hid:
    s_mov_b32 s8, s20
    s_mov_b32 s9, s21
    s_mov_b32 s10, {WS_SIZE}
    s_mov_b32 s11, 0x00020000
    s_lshl_b32 s30, s52, 1
    s_add_u32 s30, s30, s27
    s_mul_i32 s30, s30, {HS*1024}
    s_add_u32 s30, s30, {WS_HID}
    s_mov_b32 s32, 1024
    s_mov_b32 s33, 8192
    v_mov_b32 v8, v4
    v_mov_b32 v24, {D_FLG}
    s_barrier
    """)
    st(1, 3)
    a(f"""
    s_cmp_eq_u32 s27, 0
    s_cbranch_scc0 cd_relay
    s_cmp_ge_u32 s5, 15
    s_cbranch_scc1 cd_noarr
    v_mov_b32 v26, 1
    s_mov_b64 exec, 1
    global_atomic_add v20, v26, s[20:21] sc1
    s_mov_b64 exec, -1
    cd_noarr:
    s_mov_b32 s60, 0
    v_mov_b32 v26, 0
    cd_poll:
    {POLL}
    s_waitcnt vmcnt(0)
    v_readfirstlane_b32 s12, v27
    s_nop 0
    s_cmp_eq_u32 s12, 15
    s_cbranch_scc1 cd_go
    s_add_u32 s60, s60, 1
    s_sleep 1
    s_cmp_lt_u32 s60, {SPIN_MAX}
    s_cbranch_scc1 cd_poll
    cd_go:
    v_mov_b32 v25, 1
    ds_write_b32 v24, v25
    s_branch cd_released
    cd_relay:
    ds_read_b32 v25, v24
    s_waitcnt lgkmcnt(0)
    v_readfirstlane_b32 s12, v25
    s_cmp_eq_u32 s12, 1
    s_cbranch_scc1 cd_released
    s_sleep 1
    s_branch cd_relay
    cd_released:
    """)
    st(1, 4)
    dmaD(0, " sc1"); dmaD(1, " sc1")
    for c in range(D_NCH):
        last = min(D_NCH - 1, c + 1)
        a(f"s_waitcnt vmcnt({8*(last - c)})")
        a("s_barrier")
        if c == 0: st(1, 5)
        if c + 2 < D_NCH and not NODMA: dmaD(c + 2, " sc1")
    a("s_endpgm")

    a(f"""
    cd_compute:
    v_lshlrev_b32 v8, 2, v0
    s_mul_i32 s12, s5, 384
    s_add_u32 s13, s12, {WS_CS}
    s_add_u32 s12, s12, {WS_B1P}
    v_and_b32 v6, 15, v1
    v_lshrrev_b32 v7, 2, v6                  ; r
    v_and_b32 v6, 3, v6                      ; c
    v_lshrrev_b32 v9, 5, v1                  ; g
    v_lshl_add_u32 v12, v9, 3, v7
    v_lshlrev_b32 v12, 8, v12
    v_bfe_u32 v13, v1, 4, 1
    v_lshlrev_b32 v13, 1, v13
    v_lshl_add_u32 v13, v3, 2, v13
    v_lshrrev_b32 v14, 1, v6
    v_add_u32 v13, v13, v14
    v_lshlrev_b32 v14, 2, v7
    v_xor_b32 v13, v13, v14
    v_lshl_add_u32 v12, v13, 4, v12
    v_and_b32 v6, 1, v6
    v_lshl_add_u32 v12, v6, 3, v12
    v_add_u32 v16, 12288, v12
    v_add_u32 v17, {2*C_SLOT}, v16
    v_mov_b32 v19, v4
    v_add_u32 v20, {2*C_SLOT}, v4
    v_mov_b32 v22, 0x3f803f80
    v_mov_b32 v23, 0x3f803f80
    v_add_u32 v9, {C_TAB}, v8
    v_lshrrev_b32 v14, 4, v0
    v_lshlrev_b32 v14, 7, v14
    v_and_b32 v21, 15, v0
    v_lshl_add_u32 v14, v21, 2, v14
    s_lshl_b32 s16, s53, 9
    s_add_u32 s16, s16, {WS_MODP + 160*128}
    v_lshlrev_b32 v15, 1, v0
    s_lshl_b32 s17, s53, 7
    v_add_u32 v15, s17, v15
    v_min_u32 v15, 1022, v15
    v_add_u32 v18, {D_TAB}, v8
    v_mov_b32 v24, 0
    v_mov_b32 v25, {D_FLG}
    ds_write_b32 v25, v24
    s_waitcnt lgkmcnt(0)
    """)
    srd(a, 8, 20, WS_SIZE)
    if MEGA: mega_sync(a, False)
    st(0, 0)
    a(f"""
    buffer_load_dword v10, v8, s[8:11], s13 offen
    buffer_load_dword v11, v8, s[8:11], s12 offen
    buffer_load_dword v14, v14, s[8:11], s16 offen
    global_load_ushort v15, v15, s[46:47]
    """)
    def tables():
        a(f"""
        s_waitcnt vmcnt(0)
        v_lshlrev_b32 v15, 16, v15
        v_cmp_gt_u32 vcc, 96, v0
        s_and_saveexec_b64 s[14:15], vcc
        ds_write_b32 v9, v10
        ds_write_b32 v9, v11 offset:384
        s_mov_b64 exec, s[14:15]
        v_cmp_gt_u32 vcc, 64, v0
        s_and_saveexec_b64 s[14:15], vcc
        ds_write_b32 v18, v14
        ds_write_b32 v18, v15 offset:256
        s_mov_b64 exec, s[14:15]
        """)
    a("s_cmp_ge_u32 s5, 15\ns_cbranch_scc0 cd_doC")
    tables()
    a("s_waitcnt lgkmcnt(0)\ns_branch cd_cmp2\ncd_doC:")
    for r in range(ACC, FB): a(f"v_mov_b32 v{r}, 0")
    T = LdsTracker(a)
    def read_list(c, s):
        slot = c % C_NS
        grp = slot // 2; so = (slot % 2) * C_SLOT
        buf = (4 * c + s) % 3
        fb = FB + 16 * buf
        L = [(f"ds_read_b64_tr_b16 v[{fb+12}:{fb+13}], v{16+grp} offset:{so + s*4096}", [f"x{buf}"]),
             (f"ds_read_b64_tr_b16 v[{fb+14}:{fb+15}], v{16+grp} offset:{so + s*4096 + 1024}", [f"x{buf}"])]
        for b in range(3):
            L.append((f"ds_read_b128 v[{fb+4*b}:{fb+4*b+3}], v{19+grp} offset:{so + (b*4+s)*1024}", [f"w{buf}{b}"]))
        return L
    def mfmas(c, s, rd=()):
        rd = list(rd)
        def pop(n):
            for _ in range(n):
                if rd: T.issue(*rd.pop(0))
        buf = (4 * c + s) % 3; fb = FB + 16 * buf
        T.need([f"x{buf}", f"w{buf}0", f"w{buf}1", f"w{buf}2"])
        per = (len(rd) + 2) // 3
        for b in range(3):
            a(f"v_mfma_f32_32x32x16_bf16 v[{ACC+16*b}:{ACC+16*b+15}], v[{fb+4*b}:{fb+4*b+3}], v[{fb+12}:{fb+15}], v[{ACC+16*b}:{ACC+16*b+15}]")
            pop(per)
            if b == 0:
                a(f"v_mfma_f32_4x4x4_16b_bf16 v[{AQ}:{AQ+3}], v[{fb+12}:{fb+13}], v[{fb+12}:{fb+13}], v[{AQ}:{AQ+3}]")
                a(f"v_mfma_f32_4x4x4_16b_bf16 v[{AS}:{AS+3}], v[22:23], v[{fb+12}:{fb+13}], v[{AS}:{AS+3}]")
            if b == 1:
                a(f"v_mfma_f32_4x4x4_16b_bf16 v[{AQ+4}:{AQ+7}], v[{fb+14}:{fb+15}], v[{fb+14}:{fb+15}], v[{AQ+4}:{AQ+7}]")
                a(f"v_mfma_f32_4x4x4_16b_bf16 v[{AS+4}:{AS+7}], v[22:23], v[{fb+14}:{fb+15}], v[{AS+4}:{AS+7}]")
        pop(99)
    for c in range(8):
        if c == 1:
            tables()
            T.issued += 4
        T.drain()
        a("s_barrier")
        if c == 0: st(0, 1)
        if c > 0: mfmas(c - 1, 3, read_list(c, 0) + read_list(c, 1))
        else:
            for x in read_list(c, 0) + read_list(c, 1): T.issue(*x)
        mfmas(c, 0, read_list(c, 2))
        mfmas(c, 1, read_list(c, 3))
        mfmas(c, 2)
    T.drain()
    a("s_barrier")
    mfmas(7, 3)
    st(0, 2)
    a(f"""
    v_and_b32 v6, 3, v1
    v_cmp_eq_u32 s[12:13], 1, v6
    v_cmp_eq_u32 s[14:15], 2, v6
    v_cmp_eq_u32 s[16:17], 3, v6
    v_lshrrev_b32 v6, 5, v1
    v_lshlrev_b32 v6, 4, v6
    v_add_u32 v6, {C_TAB}, v6
    """)
    for q in range(4):
        a(f"ds_read_b128 v[{28+4*q}:{31+4*q}], v6 offset:{(8*q)*4}")
        a(f"ds_read_b128 v[{44+4*q}:{47+4*q}], v6 offset:{384 + (8*q)*4}")
    a(f"""
    v_add_f32 v{AQ}, v{AQ}, v{AQ+4}
    v_add_f32 v{AQ+1}, v{AQ+1}, v{AQ+5}
    v_add_f32 v{AQ+2}, v{AQ+2}, v{AQ+6}
    v_add_f32 v{AQ+3}, v{AQ+3}, v{AQ+7}
    v_add_f32 v{AS}, v{AS}, v{AS+4}
    v_cndmask_b32 v{AQ}, v{AQ}, v{AQ+1}, s[12:13]
    v_cndmask_b32 v{AQ}, v{AQ}, v{AQ+2}, s[14:15]
    v_cndmask_b32 v{AQ}, v{AQ}, v{AQ+3}, s[16:17]
    v_mov_b32 v25, v{AS}
    v_mov_b32 v24, v{AQ}
    s_nop 1
    v_permlane32_swap_b32 v25, v{AS}
    v_permlane32_swap_b32 v24, v{AQ}
    s_nop 1
    v_add_f32 v25, v25, v{AS}
    v_add_f32 v24, v24, v{AQ}
    v_mul_f32 v25, {fx(1.0/512)}, v25
    v_mul_f32 v24, {fx(1.0/512)}, v24
    v_fma_f32 v24, -v25, v25, v24
    v_max_f32 v24, 0, v24
    v_add_f32 v24, {fx(1e-5)}, v24
    v_rsq_f32 v24, v24                       ; r
    s_lshl_b32 s12, s4, 2
    v_mul_f32 v26, -v25, v24                 ; -mean*r
    s_add_u32 s12, s12, s26
    s_mul_i32 s12, s12, {HS}
    v_mov_b32 v25, v24
    v_mov_b32 v27, v26
    s_mul_i32 s13, s5, 6
    s_add_u32 s12, s12, s13
    s_lshl_b32 s12, s12, 10
    s_add_u32 s12, s12, {WS_HID}
    """)
    for b in range(3):
        cs, bb = (28, 44) if b % 2 == 0 else (144, 160)
        a("s_waitcnt lgkmcnt(0)")
        if b < 2:
            cs2, bb2 = (144, 160) if b % 2 == 0 else (28, 44)
            for q in range(4):
                a(f"ds_read_b128 v[{cs2+4*q}:{cs2+4*q+3}], v6 offset:{(32*(b+1) + 8*q)*4}")
                a(f"ds_read_b128 v[{bb2+4*q}:{bb2+4*q+3}], v6 offset:{384 + (32*(b+1) + 8*q)*4}")
        for j in range(8):
            a(f"v_pk_fma_f32 v[{bb+2*j}:{bb+2*j+1}], v[26:27], v[{cs+2*j}:{cs+2*j+1}], v[{bb+2*j}:{bb+2*j+1}]")
        for j in range(8):
            a(f"v_pk_fma_f32 v[{bb+2*j}:{bb+2*j+1}], v[24:25], v[{ACC+16*b+2*j}:{ACC+16*b+2*j+1}], v[{bb+2*j}:{bb+2*j+1}]")
        for j in range(16): a(f"v_max_f32 v{bb+j}, 0, v{bb+j}")
        for j in range(8): a(f"v_pk_mul_f32 v[{bb+2*j}:{bb+2*j+1}], v[{bb+2*j}:{bb+2*j+1}], v[{bb+2*j}:{bb+2*j+1}]")
        o = ACC + 16 * b
        for j in range(8): a(f"v_cvt_pk_bf16_f32 v{o+j}, v{bb+2*j}, v{bb+2*j+1}")
        a("s_nop 1")
        a(f"v_permlane32_swap_b32 v{o}, v{o+2}")
        a(f"v_permlane32_swap_b32 v{o+1}, v{o+3}")
        a(f"v_permlane32_swap_b32 v{o+4}, v{o+6}")
        a(f"v_permlane32_swap_b32 v{o+5}, v{o+7}")
        a(f"buffer_store_dwordx4 v[{o}:{o+3}], v4, s[8:11], s12 offen sc1")
        a(f"buffer_store_dwordx4 v[{o+4}:{o+7}], v4, s[8:11], s12 offen offset:1024 sc1")
        a("s_add_u32 s12, s12, 2048")
        if b == 0:
            a(f"""
            s_cmp_eq_u32 s5, 14
            s_cbranch_scc0 cd_more
            s_waitcnt lgkmcnt(0)
            v_mov_b32 v28, 0
            v_mov_b32 v29, 0
            v_mov_b32 v30, 0
            v_mov_b32 v31, 0
            buffer_store_dwordx4 v[28:31], v4, s[8:11], s12 offen sc1
            buffer_store_dwordx4 v[28:31], v4, s[8:11], s12 offen offset:1024 sc1
            s_branch cd_cmp2
            cd_more:
            """)
    ACC, FB = 64, 80
    a(f"""
    cd_cmp2:
    s_and_b32 s27, s26, 1                    ; wm
    s_lshr_b32 s28, s26, 1                   ; wn
    v_and_b32 v6, 15, v1
    v_lshrrev_b32 v7, 2, v6                  ; r
    v_and_b32 v6, 3, v6                      ; c
    v_lshrrev_b32 v12, 5, v1                 ; g
    v_lshl_add_u32 v12, v12, 3, v7
    v_lshlrev_b32 v12, 7, v12
    v_bfe_u32 v13, v1, 4, 1
    v_lshlrev_b32 v13, 1, v13
    s_lshl_b32 s12, s27, 2
    v_add_u32 v13, s12, v13
    v_lshrrev_b32 v16, 1, v6
    v_add_u32 v13, v13, v16
    v_lshrrev_b32 v7, 1, v7
    v_lshlrev_b32 v7, 2, v7
    v_xor_b32 v13, v13, v7
    v_lshl_add_u32 v12, v13, 4, v12
    v_and_b32 v6, 1, v6
    v_lshl_add_u32 v16, v6, 3, v12
    v_add_u32 v17, 65536, v16
    s_lshl_b32 s12, s28, 13
    s_add_u32 s12, s12, {D_HID}
    v_add_u32 v18, s12, v4
    s_waitcnt vmcnt(0)
    """)
    st(0, 3)
    a("s_barrier")
    for r in range(16): a(f"v_mov_b32 v{ACC+r}, 0")
    T = LdsTracker(a)
    NB = 5
    def reads(c, s):
        wo = (c % NW) * 16384; grp = wo // 65536; wo %= 65536
        ho = (c % NH) * 16384
        g = (8 * c + s) % NB
        fb = FB + 8 * g
        T.issue(f"ds_read_b64_tr_b16 v[{fb}:{fb+1}], v{16+grp} offset:{wo + s*2048}", [f"a{g}"])
        T.issue(f"ds_read_b64_tr_b16 v[{fb+2}:{fb+3}], v{16+grp} offset:{wo + s*2048 + 512}", [f"a{g}"])
        T.issue(f"ds_read_b128 v[{fb+4}:{fb+7}], v{18} offset:{ho + s*1024}", [f"b{g}"])
    def mfma(c, s):
        g = (8 * c + s) % NB; fb = FB + 8 * g
        T.need([f"a{g}", f"b{g}"])
        a(f"v_mfma_f32_32x32x16_bf16 v[{ACC}:{ACC+15}], v[{fb}:{fb+3}], v[{fb+4}:{fb+7}], v[{ACC}:{ACC+15}]")
    def epi_prepare():
        a(f"""
        v_and_b32 v6, 15, v1
        v_lshrrev_b32 v7, 2, v6
        v_and_b32 v6, 3, v6
        v_lshrrev_b32 v12, 5, v1                 ; h
        v_lshl_add_u32 v13, v12, 2, v7
        s_lshl_b32 s12, s27, 5
        v_add_u32 v13, s12, v13
        v_lshlrev_b32 v13, 7, v13
        v_bfe_u32 v14, v1, 4, 1
        v_lshlrev_b32 v14, 1, v14
        s_lshl_b32 s12, s28, 2
        v_add_u32 v14, s12, v14
        v_lshrrev_b32 v15, 1, v6
        v_add_u32 v14, v14, v15
        v_lshrrev_b32 v7, 1, v7
        v_lshlrev_b32 v7, 2, v7
        v_xor_b32 v14, v14, v7
        v_lshl_add_u32 v13, v14, 4, v13
        v_and_b32 v6, 1, v6
        v_lshl_add_u32 v13, v6, 3, v13
        v_add_u32 v13, {D_X2}, v13
        v_lshlrev_b32 v14, 4, v12
        s_lshl_b32 s12, s27, 7
        s_add_u32 s12, s12, {D_TAB}
        v_add_u32 v14, s12, v14
        """)
        for q in range(4):
            T.issue(f"ds_read_b64_tr_b16 v[{24+2*q}:{25+2*q}], v13 offset:{1024*q}", ["epi"])
            T.issue(f"ds_read_b128 v[{32+4*q}:{35+4*q}], v14 offset:{32*q}", ["epi"])
            T.issue(f"ds_read_b128 v[{48+4*q}:{51+4*q}], v14 offset:{256+32*q}", ["epi"])
        a(f"""
        v_and_b32 v5, 31, v1
        v_lshlrev_b32 v20, 10, v5
        v_lshl_add_u32 v20, v12, 4, v20
        s_lshl_b32 s12, s52, 1
        s_add_u32 s12, s12, s28
        s_lshl_b32 s12, s12, 15
        s_lshl_b32 s13, s53, 1
        s_add_u32 s13, s13, s27
        s_lshl_b32 s13, s13, 6
        s_add_u32 s12, s12, s13
        v_add_u32 v20, s12, v20
        """)
    def epi_finish():
        T.need(["epi"])
        for q in range(4):
            a(f"v_lshlrev_b32 v8, 16, v{24+2*q}")
            a(f"v_and_b32 v9, 0xffff0000, v{24+2*q}")
            a(f"v_lshlrev_b32 v10, 16, v{25+2*q}")
            a(f"v_and_b32 v11, 0xffff0000, v{25+2*q}")
            for r in range(4): a(f"v_fma_f32 v{48+4*q+r}, v{48+4*q+r}, v{32+4*q+r}, v{8+r}")
    epi_prepare(); epi_finish()
    EPC = -5
    for c in range(D_NCH):
        T.drain()
        a("s_barrier")
        if c == 0: st(0, 4)
        if c in (0, 2, 4, 6, 8, 10): st(2, c // 2)
        reads(c, 0); reads(c, 1); reads(c, 2); reads(c, 3)
        if c > 0: mfma(c - 1, 7)
        for s in range(7):
            if s + 4 < 8: reads(c, s + 4)
            mfma(c, s)
            if c == EPC and s == 1: epi_prepare()
            if c == EPC + 1 and s == 2: epi_finish()
    mfma(D_NCH - 1, 7)
    st(0, 5)
    a("s_nop 7\ns_nop 3")
    for q in range(4):
        for r in range(4): a(f"v_fma_f32 v{48+4*q+r}, v{ACC+4*q+r}, v{32+4*q+r}, v{48+4*q+r}")
        a(f"v_cvt_pk_bf16_f32 v{FB+2*q}, v{48+4*q}, v{49+4*q}")
        a(f"v_cvt_pk_bf16_f32 v{FB+2*q+1}, v{50+4*q}, v{51+4*q}")
    a(f"""
    s_nop 1
    v_permlane32_swap_b32 v{FB}, v{FB+2}
    v_permlane32_swap_b32 v{FB+1}, v{FB+3}
    v_permlane32_swap_b32 v{FB+4}, v{FB+6}
    v_permlane32_swap_b32 v{FB+5}, v{FB+7}
    global_store_dwordx4 v20, v[{FB}:{FB+3}], s[48:49]{OUTSC}
    global_store_dwordx4 v20, v[{FB+4}:{FB+7}], s[48:49] offset:32{OUTSC}
    cd_exit:
    s_endpgm
    """)

def gen_MEGA(a):
    gen_AB(a)
    a("mega_next:\ns_setprio 0\ns_barrier")
    gen_CD(a)
    a("ab_other:\ns_endpgm")
    a.l.append(idx_table())

if __name__ == "__main__":
    if MEGA:
        ks = [(NAME + "_kernel", gen_MEGA, 176, 256, 512, max(AB_LDS, CD_LDS))]
    else:
        ks = [("convab_kernel", gen_AB, 128, AB_GRID, 512, AB_LDS),
              ("mlp_kernel", gen_CD, 176, CD_GRID, 512, CD_LDS)]
    s = build(ks)
    path = sys.argv[1] if len(sys.argv) > 1 else "out.s"
    open(path, "w").write(s)
    print("wrote", path, len(s))
```

```python
import sys, struct, os

NAME = "adaLN_cond__ssm_conv_s4__dense_activation_squared_relu__prompt"
TS = bool(os.environ.get("TS"))
SC = os.environ.get("SC", "")

WS_MOD  = 0x0000
WS_ST1  = 0x4000
WS_CS   = 0x8000
WS_B1P  = 0xA000
WS_XT   = 0x100000
WS_KE   = 0x300000
KCH     = 4112
WS_W1F  = 0xA00000
WS_X2T  = 0xC00000
WS_HID  = 0x1000000
HS      = 88
WS_SIZE = 268435456
WS_TS   = 0x8000000

def f2u(x): return struct.unpack("<I", struct.pack("<f", x))[0]
def fx(x): return "0x%08x" % f2u(x)

class Asm:
    def __init__(self): self.l = []
    def __call__(self, s):
        for line in s.strip("\n").split("\n"):
            line = line.strip()
            if not line: continue
            self.l.append(line if line.endswith(":") else "    " + line)
    def stamp(self, i):
        if TS: self(f"s_memtime s[{70+2*i}:{71+2*i}]")
    def text(self): return "\n".join(self.l) + "\n"

class LdsTracker:
    def __init__(self, a): self.a = a; self.issued = 0; self.done = 0; self.tag = {}
    def issue(self, text, tags):
        self.a(text)
        for t in tags: self.tag[t] = self.issued
        self.issued += 1
    def need(self, tags):
        idx = max(self.tag[t] for t in tags)
        if idx < self.done: return
        n = min(self.issued - idx - 1, 15)
        self.a(f"s_waitcnt lgkmcnt({n})")
        self.done = self.issued - n
    def drain(self):
        if self.done < self.issued: self.a("s_waitcnt lgkmcnt(0)")
        self.done = self.issued

def cmul(a, d, x, y, t):
    a(f"v_pk_mul_f32 v[{t}:{t+1}], v[{x}:{x+1}], v[{y}:{y+1}] op_sel:[0,0] op_sel_hi:[0,1]")
    a(f"v_pk_fma_f32 v[{d}:{d+1}], v[{x}:{x+1}], v[{y}:{y+1}], v[{t}:{t+1}] op_sel:[1,1,0] op_sel_hi:[1,0,1] neg_lo:[1,0,0]")

def prefetch_code(a, start, end_, tag, vdummy, cond_sgpr="s2"):
    a(f"""
    s_cmp_lt_u32 {cond_sgpr}, 8
    s_cbranch_scc0 pf_skip_{tag}
    v_cmp_gt_u32 vcc, 64, v0
    s_and_saveexec_b64 s[64:65], vcc
    s_cbranch_execz pf_rest_{tag}
    s_getpc_b64 s[66:67]
    pf_here_{tag}:
    s_add_u32 s66, s66, {start}-pf_here_{tag}
    s_addc_u32 s67, s67, 0
    v_lshlrev_b32 v{vdummy}, 6, v0
    s_mov_b32 s68, 0
    s_mov_b32 s69, {end_}-{start}-4
    pf_loop_{tag}:
    v_min_u32 v{vdummy}, s69, v{vdummy}
    global_load_dword v{vdummy+1}, v{vdummy}, s[66:67]
    v_add_u32 v{vdummy}, 4096, v{vdummy}
    s_add_u32 s68, s68, 4096
    s_cmp_lt_u32 s68, {end_}-{start}
    s_cbranch_scc1 pf_loop_{tag}
    pf_rest_{tag}:
    s_mov_b64 exec, s[64:65]
    pf_skip_{tag}:
    """)

def tlb_touch(a, gran):
    regs = [(80, 1376*512*2, 0), (96, 1376*512*2, 0), (128, 2048*512*2, 0), (120, 512*3072*2, 0), (0, 2048*512*2, 0),
            (144, 0x1600000, 0)]
    a(f"""
    s_cmp_lt_u32 s2, 8
    s_cbranch_scc0 tt_skip
    v_lshrrev_b32 v127, 6, v0
    s_nop 0
    v_readfirstlane_b32 s64, v127
    s_cmp_eq_u32 s64, 3
    s_cbranch_scc0 tt_skip
    v_and_b32 v126, 63, v0
    v_mul_u32_u24 v126, {gran}, v126
    """)
    for i, (off, size, _) in enumerate(regs):
        a(f"s_load_dwordx2 s[66:67], s[0:1], {off}")
        a("s_waitcnt lgkmcnt(0)")
        n = -(-size // (64 * gran))
        a(f"""
        s_mov_b32 s68, 0
        v_mov_b32 v125, v126
        tt_loop_{i}:
        v_min_u32 v124, {size - 4}, v125
        global_load_dword v127, v124, s[66:67]
        v_add_u32 v125, {64*gran}, v125
        s_add_u32 s68, s68, 1
        s_cmp_lt_u32 s68, {n}
        s_cbranch_scc1 tt_loop_{i}
        """)
    a("tt_skip:")

def srd(a, s, lo, size):
    a(f"""
    s_mov_b32 s{s}, s{lo}
    s_mov_b32 s{s+1}, s{lo+1}
    s_mov_b32 s{s+2}, {size}
    s_mov_b32 s{s+3}, 0x00020000
    """)

NK, NMOD, NLN = 512, 192, 64
A_GRID = NK + NMOD + NLN
ID_K, ID_MOD, ID_LN = 0, NK, NK + NMOD
TROW = 544; QROW = 41
KC_OFF = 57 * TROW
RS = 1088
A_LDS = max(KC_OFF + 768 * 4, 32 * RS)

def gen_kgen(a):
    a(f"""
    kgen:
    s_load_dwordx4 s[4:7], s[0:1], 8
    s_load_dwordx4 s[8:11], s[0:1], 24
    s_load_dwordx4 s[12:15], s[0:1], 40
    s_load_dwordx4 s[16:19], s[0:1], 56
    s_load_dwordx2 s[20:21], s[0:1], 144
    s_sub_u32 s2, s2, {ID_K}                ; channel d
    v_and_b32 v1, 127, v0
    v_lshlrev_b32 v2, 2, v1
    v_lshlrev_b32 v1, 1, v1
    s_lshl_b32 s3, s2, 8
    v_add_u32 v1, s3, v1                    ; (d*128+n)*2
    s_lshl_b32 s22, s2, 1
    s_and_b32 s22, s22, 0xfffffffc
    s_and_b32 s23, s2, 1
    s_lshl_b32 s23, s23, 4
    v_lshrrev_b32 v3, 6, v0
    s_waitcnt lgkmcnt(0)
    global_load_ushort v10, v1, s[4:5]
    global_load_ushort v11, v1, s[6:7]
    global_load_ushort v12, v1, s[8:9]
    global_load_ushort v13, v1, s[10:11]
    global_load_ushort v14, v1, s[12:13]
    global_load_ushort v15, v1, s[14:15]
    s_load_dword s24, s[16:17], s22
    s_load_dword s25, s[18:19], s22
    v_readfirstlane_b32 s26, v3
    v_lshlrev_b32 v4, 3, v0
    v_sub_u32 v4, 2047, v4                  ; lbase
    """)
    for e in range(8): a(f"v_subrev_u32 v{30+e}, {e}, v4")
    for e in range(8): a(f"v_cvt_f32_u32 v{40+e}, v{30+e}")
    for p in range(4): a(f"v_cvt_pk_bf16_f32 v{50+p}, v{40+2*p}, v{41+2*p}")
    a(f"s_mov_b32 s27, {KC_OFF - 0x10A00}")
    for e in range(8):
        p = e // 2
        a(f"v_and_b32 v{40+e}, 0xffff, v{50+p}" if e % 2 == 0 else f"v_lshrrev_b32 v{40+e}, 16, v{50+p}")
    for e in range(8): a(f"v_lshl_add_u32 v{40+e}, v{40+e}, 2, s27")
    for e in range(8):
        a(f"v_cmp_gt_u32 vcc, 128, v{30+e}")
        a(f"v_lshlrev_b32 v{30+e}, 2, v{30+e}")
        a(f"v_add_u32 v{30+e}, {KC_OFF}, v{30+e}")
        a(f"v_cndmask_b32 v{40+e}, v{40+e}, v{30+e}, vcc")
    a(f"""
    s_waitcnt lgkmcnt(0)
    s_lshr_b32 s24, s24, s23
    s_lshl_b32 s24, s24, 16
    s_lshr_b32 s25, s25, s23
    s_lshl_b32 s25, s25, 16
    v_mov_b32 v5, s24
    v_mul_f32 v6, 0x3fb8aa3b, v5
    s_mov_b32 s28, 0x3fb8aa3b
    v_fma_f32 v7, v5, s28, -v6
    v_fmac_f32 v7, 0x32a5705f, v5
    v_exp_f32 v6, v6
    v_mul_f32 v7, {fx(0.6931471805599453)}, v7
    v_fmac_f32 v6, v6, v7
    v_cvt_pk_bf16_f32 v6, v6, v6
    v_lshlrev_b32 v6, 16, v6                ; dt
    s_waitcnt vmcnt(4)
    v_lshlrev_b32 v10, 16, v10
    v_lshlrev_b32 v11, 16, v11
    v_mul_f32 v10, v6, v10
    v_mul_f32 v11, v6, v11
    v_mul_f32 v10, 0x3fb8aa3b, v10
    v_mul_f32 v11, {fx(0.15915494309189535)}, v11
    """)
    def direct(dst, l, t):
        a(f"""
        v_mul_f32 v{t}, {fx(float(l))}, v10
        v_mul_f32 v{t+1}, {fx(float(l))}, v11
        v_exp_f32 v{t}, v{t}
        v_fract_f32 v{t+1}, v{t+1}
        v_cos_f32 v{dst}, v{t+1}
        v_sin_f32 v{dst+1}, v{t+1}
        s_nop 0
        v_mul_f32 v{dst}, v{t}, v{dst}
        v_mul_f32 v{dst+1}, v{t}, v{dst+1}
        """)
    def wr(row, src, tmp, neg=False):
        a(f"v_cvt_pk_bf16_f32 v{tmp}, v{src}, {'-' if neg else ''}v{src+1}")
        a(f"ds_write_b32 v2, v{tmp} offset:{row*TROW}")
    a.stamp(0)
    a("s_cmp_ge_u32 s26, 2\ns_cbranch_scc1 kgen_setY")
    E8, E128, Q, R, T0, T1 = 20, 22, 24, 26, 28, 60
    direct(E8, 1, 28)
    direct(E128, 128, 28)
    cmul(a, R, E128, E128, T1)
    cmul(a, E8, E8, E8, T0)
    cmul(a, R, R, R, T1)
    cmul(a, E8, E8, E8, T0)
    cmul(a, R, R, R, T1)
    cmul(a, E8, E8, E8, T0)
    a("""
    s_waitcnt vmcnt(0)
    v_lshlrev_b32 v12, 16, v12
    v_lshlrev_b32 v13, 16, v13
    v_lshlrev_b32 v14, 16, v14
    v_lshlrev_b32 v15, 16, v15
    v_mul_f32 v12, v6, v12
    v_mul_f32 v13, v6, v13
    """)
    cmul(a, Q, 14, 12, T0)
    for i in range(16):
        if i < 9:
            wr(32 + i, R, 63)
            if i < 8: cmul(a, R, R, E128, T1)
        wr(QROW + i, Q, 62, neg=True)
        if i < 15: cmul(a, Q, Q, E8, T0)
    a("s_branch kgen_tables_done")
    a("kgen_setY:")
    E = [None, 20, 22, 24, 26, 16, 18, 64]
    E128, X, Y2, T0, T1 = 66, 68, 70, 28, 60
    direct(E[1], 1, 28)
    direct(E128, 128, 28)
    a("v_mov_b32 v62, 0x3f80")
    a(f"ds_write_b32 v2, v62 offset:0")
    cmul(a, E[2], E[1], E[1], T0); wr(1, E[1], 63)
    cmul(a, E[3], E[2], E[1], T1); wr(2, E[2], 62)
    cmul(a, E[4], E[2], E[2], T0); wr(3, E[3], 63)
    cmul(a, E[5], E[4], E[1], T1); wr(4, E[4], 62)
    cmul(a, E[6], E[3], E[3], T0); wr(5, E[5], 63)
    cmul(a, E[7], E[4], E[3], T1); wr(6, E[6], 62)
    cmul(a, X, E128, E128, T0);    wr(7, E[7], 63)
    wr(8, E128, 62)
    for r in range(1, 8):
        cmul(a, Y2, E128, E[r], T1 if r % 2 else T0)
        wr(8 + r, Y2, 62 + (r % 2))
    S = [72, 74, 76, 78]
    a(f"v_mov_b64 v[{S[0]}:{S[0]+1}], v[{X}:{X+1}]")
    cmul(a, S[1], X, E[2], T0)
    cmul(a, S[2], X, E[4], T1)
    cmul(a, S[3], X, E[6], T0)
    cmul(a, X, X, X, T1)
    for r in range(4):
        wr(16 + r, S[r], 62 + (r % 2))
        cmul(a, S[r], S[r], E128, T0 if r % 2 else T1)
    cmul(a, Y2, X, E[4], T0)
    for r in range(4): wr(20 + r, S[r], 62 + (r % 2))
    for p in range(4):
        wr(24 + 2 * p, X, 62)
        wr(25 + 2 * p, Y2, 63)
        if p < 3:
            cmul(a, X, X, E128, T0)
            cmul(a, Y2, Y2, E128, T1)
    a(f"""
    kgen_tables_done:
    v_and_b32 v4, 15, v0                     ; i / j / q
    v_bfe_u32 v5, v0, 4, 2                   ; g / G
    v_lshlrev_b32 v7, 4, v5
    v_mul_u32_u24 v8, {TROW}, v4
    v_add_u32 v8, v8, v7                     ; i*544 + g*16
    s_mul_i32 s27, s26, {16*TROW}
    v_add_u32 v9, s27, v8                    ; A address
    v_add_u32 v8, {QROW*TROW}, v8            ; B address
    v_mov_b32 v20, 0
    v_mov_b32 v21, 0
    v_mov_b32 v22, 0
    v_mov_b32 v23, 0
    v_mov_b32 v24, 0
    v_mov_b32 v25, 0
    v_mov_b32 v26, 0
    v_mov_b32 v27, 0
    s_waitcnt lgkmcnt(0)
    """)
    a.stamp(1)
    a("s_barrier")
    a.stamp(3)
    a("""
    s_cmp_ge_u32 s26, 3
    s_cbranch_scc1 kgen_mfma_done
    """)
    for s in range(8):
        a(f"ds_read_b128 v[{64+8*s}:{67+8*s}], v9 offset:{64*s}")
        a(f"ds_read_b128 v[{68+8*s}:{71+8*s}], v8 offset:{64*s}")
    a(f"""
    s_cmp_eq_u32 s26, 1
    s_cbranch_scc1 kgen_t1
    s_cmp_eq_u32 s26, 2
    s_cbranch_scc1 kgen_t2
    v_and_b32 v7, 1, v5
    v_lshlrev_b32 v7, 2, v7
    v_lshrrev_b32 v16, 1, v5
    v_lshl_add_u32 v7, v16, 7, v7
    v_lshl_add_u32 v7, v4, 3, v7
    v_lshlrev_b32 v7, 2, v7
    v_add_u32 v16, {KC_OFF}, v7
    v_add_u32 v17, 8, v16
    v_mov_b32 v18, 4
    s_branch kgen_addr_done
    kgen_t1:
    v_cmp_gt_u32 vcc, 2, v5
    v_lshlrev_b32 v7, 6, v5
    v_add_u32 v7, 256, v7
    v_lshlrev_b32 v16, 2, v4
    v_lshlrev_b32 v17, 1, v4
    v_cndmask_b32 v16, v17, v16, vcc
    v_add_u32 v7, v7, v16
    v_lshlrev_b32 v7, 2, v7
    v_add_u32 v16, {KC_OFF}, v7
    v_mov_b32 v17, 128
    v_cndmask_b32 v17, v17, 8, vcc
    v_add_u32 v17, v16, v17
    v_mov_b32 v18, 4
    s_branch kgen_addr_done
    kgen_t2:
    v_lshl_add_u32 v7, v5, 6, v4
    v_lshlrev_b32 v7, 2, v7
    v_add_u32 v16, {KC_OFF + 512*4}, v7
    v_add_u32 v17, 128, v16
    v_mov_b32 v18, 64
    kgen_addr_done:
    v_add_u32 v19, v17, v18
    v_add_u32 v18, v16, v18
    v_cmp_eq_u32 vcc, 0, v0
    v_mov_b32 v7, s25
    s_nop 0
    v_cndmask_b32 v7, 0, v7, vcc
    """)
    a.stamp(4)
    for s in range(8):
        a(f"s_waitcnt lgkmcnt({14-2*s})")
        acc = 20 + 4 * (s % 2)
        a(f"v_mfma_f32_16x16x32_bf16 v[{acc}:{acc+3}], v[{64+8*s}:{67+8*s}], v[{68+8*s}:{71+8*s}], v[{acc}:{acc+3}]")
    a.stamp(5)
    a(f"""
    s_nop 7
    v_add_f32 v20, v20, v24
    v_add_f32 v21, v21, v25
    v_add_f32 v22, v22, v26
    v_add_f32 v23, v23, v27
    v_add_f32 v20, v20, v7
    ds_write_b32 v16, v20
    ds_write_b32 v18, v21
    ds_write_b32 v17, v22
    ds_write_b32 v19, v23
    kgen_mfma_done:
    s_waitcnt lgkmcnt(0)
    s_barrier
    """)
    a.stamp(2)
    for e in range(8): a(f"ds_read_b32 v{30+e}, v{40+e}")
    a(f"""
    s_mul_i32 s27, s2, {KCH}
    s_add_u32 s27, s27, {WS_KE}
    v_lshlrev_b32 v4, 4, v0
    v_add_u32 v4, s27, v4
    """)
    for p in range(4):
        a(f"s_waitcnt lgkmcnt({6-2*p})")
        a(f"v_cvt_pk_bf16_f32 v{52+p}, v{30+2*p}, v{31+2*p}")
    a(f"""
    global_store_dwordx4 v4, v[52:55], s[20:21]{SC}
    v_cmp_eq_u32 vcc, 0, v0
    s_and_saveexec_b64 s[30:31], vcc
    s_cbranch_execz kgen_end
    v_mov_b32 v6, s27
    v_add_u32 v6, 4096, v6
    v_mov_b32 v60, 0
    v_mov_b32 v61, 0
    v_mov_b32 v62, 0
    v_mov_b32 v63, 0
    global_store_dwordx4 v6, v[60:63], s[20:21]{SC}
    kgen_end:
    s_endpgm
    """)

def gen_ln1(a):
    a(f"""
    ln1:
    s_load_dwordx2 s[4:5], s[0:1], 0
    s_load_dwordx2 s[20:21], s[0:1], 144
    s_sub_u32 s3, s2, {ID_LN}
    s_and_b32 s6, s3, 7
    s_lshl_b32 s6, s6, 3
    s_lshr_b32 s7, s3, 3
    s_add_u32 s6, s6, s7
    v_lshrrev_b32 v3, 6, v0                  ; wave
    v_and_b32 v1, 63, v0                     ; lane
    v_lshlrev_b32 v4, 13, v3
    v_lshl_add_u32 v4, v1, 4, v4
    s_lshl_b32 s7, s6, 15
    v_add_u32 v4, s7, v4
    v_readfirstlane_b32 s26, v3
    s_waitcnt lgkmcnt(0)
    """)
    for r in range(8):
        if r == 4: a("v_add_u32 v4, 4096, v4")
        a(f"global_load_dwordx4 v[{8+4*r}:{11+4*r}], v4, s[4:5] offset:{1024*(r%4)}")
    a(f"""
    v_mul_u32_u24 v5, {8*RS}, v3
    v_lshl_add_u32 v5, v1, 4, v5
    v_mov_b32 v6, 0x3f803f80
    v_and_b32 v7, 15, v1
    v_lshrrev_b32 v2, 2, v7                  ; r
    v_and_b32 v7, 3, v7                      ; c
    v_mul_u32_u24 v2, {RS}, v2
    v_lshl_add_u32 v2, v7, 3, v2
    v_lshrrev_b32 v7, 4, v1
    v_lshl_add_u32 v2, v7, 5, v2
    v_lshl_add_u32 v2, v3, 8, v2
    s_lshl_b32 s7, s6, 6
    s_add_u32 s7, s7, {WS_XT}
    """)
    for r in range(8):
        b = 8 + 4 * r
        a(f"s_waitcnt vmcnt({7-r})")
        a(f"ds_write_b128 v5, v[{b}:{b+3}] offset:{RS*r}")
        a(f"v_dot2_f32_bf16 v{40+2*r}, v{b}, v6, 0")
        a(f"v_dot2_f32_bf16 v{41+2*r}, v{b}, v{b}, 0")
        for k in range(1, 4):
            a(f"v_dot2_f32_bf16 v{40+2*r}, v{b+k}, v6, v{40+2*r}")
            a(f"v_dot2_f32_bf16 v{41+2*r}, v{b+k}, v{b+k}, v{41+2*r}")
    a("s_waitcnt lgkmcnt(0)\ns_barrier")
    for db in range(2):
        for lg in range(8):
            a(f"ds_read_b64_tr_b16 v[{64+16*db+2*lg}:{65+16*db+2*lg}], v2 offset:{128*db + 4*RS*lg}")
    for dpp in ["row_shr:1", "row_shr:2", "row_shr:4"]:
        for r in range(40, 56): a(f"v_add_f32_dpp v{r}, v{r}, v{r} {dpp} row_mask:0xf bank_mask:0xf")
    a(f"""
    v_bfe_u32 v8, v1, 1, 2                   ; (d>>1)&3
    v_lshlrev_b32 v9, 6, v1                  ; d*64
    v_lshl_add_u32 v9, v3, 13, v9
    v_lshrrev_b32 v10, 2, v1
    v_and_b32 v11, 3, v1                     ; c
    v_bfe_u32 v12, v1, 3, 2                  ; (d>>1)&3
    v_xor_b32 v12, v12, v11
    v_lshlrev_b32 v12, 4, v12
    v_lshl_add_u32 v12, v10, 6, v12
    v_lshl_add_u32 v12, v3, 13, v12
    v_lshl_add_u32 v7, v3, 7, v10
    v_lshlrev_b32 v7, 12, v7
    v_lshl_add_u32 v7, v11, 4, v7
    v_add_u32 v7, s7, v7
    s_waitcnt lgkmcnt(0)
    s_barrier
    """)
    for c in range(4):
        a(f"v_xor_b32 v13, {c}, v8")
        a(f"v_lshl_add_u32 v13, v13, 4, v9")
        a(f"ds_write_b128 v13, v[{64+4*c}:{67+4*c}]")
        a(f"ds_write_b128 v13, v[{80+4*c}:{83+4*c}] offset:4096")
    for dpp in ["row_shr:8", "row_bcast:15 row_mask:0xa", "row_bcast:31 row_mask:0xc"]:
        m = "" if "row_mask" in dpp else " row_mask:0xf"
        for r in range(40, 56): a(f"v_add_f32_dpp v{r}, v{r}, v{r} {dpp}{m} bank_mask:0xf")
    a("s_waitcnt lgkmcnt(0)")
    for m_ in range(8):
        a(f"ds_read_b128 v[{64+4*m_}:{67+4*m_}], v12 offset:{1024*m_}")
    for m_ in range(8):
        a(f"s_waitcnt lgkmcnt({7-m_})")
        a(f"global_store_dwordx4 v7, v[{64+4*m_}:{67+4*m_}], s[20:21]{SC}")
        if m_ < 7: a(f"v_add_u32 v7, {16*4096}, v7")
    for r in range(8):
        a(f"v_readlane_b32 s{32+2*r}, v{40+2*r}, 63")
        a(f"v_readlane_b32 s{33+2*r}, v{41+2*r}, 63")
    a("s_nop 1")
    for r in range(8):
        a(f"v_writelane_b32 v56, s{32+2*r}, {r}")
        a(f"v_writelane_b32 v57, s{33+2*r}, {r}")
    a(f"""
    s_nop 1
    v_mul_f32 v56, {fx(1.0/512)}, v56        ; mean
    v_mul_f32 v57, {fx(1.0/512)}, v57
    v_fma_f32 v57, -v56, v56, v57
    v_max_f32 v57, 0, v57
    v_add_f32 v57, {fx(1e-5)}, v57
    v_rsq_f32 v57, v57
    s_nop 0
    v_mul_f32 v56, -v56, v57
    v_cvt_pk_bf16_f32 v56, v57, v56          ; (r, -mean*r)
    s_lshl_b32 s7, s6, 7
    s_lshl_b32 s8, s26, 5
    s_add_u32 s7, s7, s8
    s_add_u32 s7, s7, {WS_ST1}
    v_lshlrev_b32 v58, 2, v1
    v_add_u32 v58, s7, v58
    v_cmp_gt_u32 vcc, 8, v1
    s_and_saveexec_b64 s[30:31], vcc
    s_cbranch_execz ln1_end
    global_store_dword v58, v56, s[20:21]{SC}
    ln1_end:
    s_endpgm
    """)

def gen_mod16(a, tag):
    a(f"""
    v_lshrrev_b32 v3, 1, v0                  ; rg
    v_and_b32 v4, 1, v0                      ; cc
    v_mul_u32_u24 v5, {4*6144}, v3
    v_lshl_add_u32 v5, v4, 4, v5
    s_lshl_b32 s9, s8, 5
    v_add_u32 v5, s9, v5
    v_lshlrev_b32 v6, 3, v3
    s_waitcnt lgkmcnt(0)
    global_load_dwordx2 v[8:9], v6, s[4:5]
    """)
    for i in range(4):
        if i: a("v_add_u32 v5, 6144, v5")
        a(f"global_load_dwordx4 v[{16+4*i}:{19+4*i}], v5, s[6:7]")

def gen_mod16_compute(a, nlater):
    a(f"s_waitcnt vmcnt({4+nlater})")
    for i in range(4):
        src = 8 + i // 2
        a(f"v_lshlrev_b32 v{10+i}, 16, v{src}" if i % 2 == 0 else f"v_and_b32 v{10+i}, 0xffff0000, v{src}")
    for i in range(4): a(f"v_mul_f32 v{32+i}, {fx(-1.4426950408889634)}, v{10+i}")
    for i in range(4): a(f"v_exp_f32 v{32+i}, v{32+i}")
    for i in range(4): a(f"v_add_f32 v{32+i}, 1.0, v{32+i}")
    for i in range(4): a(f"v_rcp_f32 v{32+i}, v{32+i}")
    a("s_nop 0")
    for i in range(4): a(f"v_mul_f32 v{10+i}, v{10+i}, v{32+i}")
    for i in range(4):
        a(f"v_cvt_pk_bf16_f32 v{32+i}, v{10+i}, 0")
        a(f"v_cvt_pk_bf16_f32 v{36+i}, 0, v{10+i}")
    for i in range(4):
        a(f"s_waitcnt vmcnt({3-i+nlater})")
        for m in range(4):
            c0 = "0" if i == 0 else f"v{40+2*m}"; c1 = "0" if i == 0 else f"v{41+2*m}"
            a(f"v_dot2_f32_bf16 v{40+2*m}, v{16+4*i+m}, v{32+i}, {c0}")
            a(f"v_dot2_f32_bf16 v{41+2*m}, v{16+4*i+m}, v{36+i}, {c1}")
    a("s_nop 2")
    for dpp in ["row_shr:2", "row_shr:4", "row_shr:8"]:
        for r in range(40, 48): a(f"v_add_f32_dpp v{r}, v{r}, v{r} {dpp} row_mask:0xf bank_mask:0xf")
    a(f"""
    v_lshrrev_b32 v5, 4, v0
    v_mul_u32_u24 v5, 80, v5
    v_lshl_add_u32 v5, v4, 5, v5
    v_and_b32 v6, 15, v0
    v_cmp_lt_u32 vcc, 13, v6
    s_and_saveexec_b64 s[30:31], vcc
    ds_write_b128 v5, v[40:43]
    ds_write_b128 v5, v[44:47] offset:16
    s_mov_b64 exec, s[30:31]
    v_lshlrev_b32 v5, 2, v6
    s_waitcnt lgkmcnt(0)
    s_barrier
    """)
    for i in range(16): a(f"ds_read_b32 v{16+i}, v5 offset:{80*i}")
    a("s_waitcnt lgkmcnt(0)")
    for st in (1, 2, 4, 8):
        for i in range(0, 16, 2 * st): a(f"v_add_f32 v{16+i}, v{16+i}, v{16+i+st}")
    a("v_cvt_pk_bf16_f32 v16, v16, v16\nv_lshlrev_b32 v16, 16, v16")

def gen_mod(a):
    a(f"""
    modr:
    s_load_dwordx4 s[4:7], s[0:1], 112       ; c, w_mod
    s_load_dwordx2 s[20:21], s[0:1], 144
    s_sub_u32 s3, s2, {ID_MOD}
    s_and_b32 s8, s3, 7
    s_mul_i32 s8, s8, 24
    s_lshr_b32 s9, s3, 3
    s_add_u32 s8, s8, s9
    """)
    gen_mod16(a, "m"); gen_mod16_compute(a, 0)
    a(f"""
    s_lshl_b32 s9, s8, 6
    s_add_u32 s9, s9, {WS_MOD}
    v_lshlrev_b32 v5, 2, v0
    v_add_u32 v5, s9, v5
    v_cmp_gt_u32 vcc, 16, v0
    s_and_saveexec_b64 s[30:31], vcc
    s_cbranch_execz mod_end
    global_store_dword v5, v16, s[20:21]{SC}
    mod_end:
    s_endpgm
    """)

def gen_A(a):
    a(f"""
    s_cmp_ge_u32 s2, {ID_MOD}
    s_cbranch_scc1 a_other
    """)
    roles = os.environ.get("ROLES", "mlk")
    if "k" in roles: gen_kgen(a)
    else: a("kgen:\ns_endpgm")
    a(f"""
    a_other:
    s_cmp_lt_u32 s2, {ID_LN}
    s_cbranch_scc1 modr
    s_cmp_lt_u32 s2, {A_GRID}
    s_cbranch_scc1 ln1
    s_endpgm
    """)
    for ch, lab, fn in (("m", "modr", gen_mod), ("l", "ln1", gen_ln1)):
        if ch in roles: fn(a)
        else: a(f"{lab}:\ns_endpgm")

PF = os.environ.get("PF", "1") == "1"
def kernel(name, body, vgpr, kidx, sgpr=96, pf=None):
    a = Asm()
    if os.environ.get("TT") and kidx == 0:
        tlb_touch(a, int(os.environ["TT"]))
    if PF and pf:
        prefetch_code(a, pf[0], pf[1], kidx, {"prep_kernel": 126, "conv_kernel": 120, "convab_kernel": 126, "gemm1_kernel": 60, "gemm2_kernel": 62, "mlp_kernel": 60}.get(name, 126))
    if TS:
        a("""
        s_memrealtime s[90:91]
        s_memtime s[84:85]
        s_mov_b32 s89, s2
        s_mov_b32 s86, s0
        s_mov_b32 s87, s1
        v_lshrrev_b32 v1, 6, v0
        s_nop 0
        v_readfirstlane_b32 s88, v1
        """)
    if os.environ.get("DBG"):
        a(f"""
        s_cmp_eq_u32 s2, 0
        s_cbranch_scc0 dbg_skip_{kidx}
        s_memrealtime s[90:91]
        s_load_dwordx2 s[94:95], s[0:1], 144
        s_load_dwordx2 s[92:93], s[0:1], 136
        s_waitcnt lgkmcnt(0)
        v_mov_b32 v4, s90
        v_mov_b32 v6, {WS_TS + 4*kidx}
        global_store_dword v6, v4, s[94:95]
        s_waitcnt vmcnt(0)
        """)
        if kidx == 3:
            a(f"""
            v_mov_b32 v6, {WS_TS}
            global_load_dwordx4 v[8:11], v6, s[94:95] sc0 sc1
            s_waitcnt vmcnt(0)
            v_sub_u32 v9, v9, v8
            v_sub_u32 v10, v10, v8
            v_sub_u32 v11, v11, v8
            v_mov_b32 v6, 0
            global_store_dwordx4 v6, v[8:11], s[92:93]
            s_waitcnt vmcnt(0)
            """)
        a(f"dbg_skip_{kidx}:")
    body(a)
    if TS:
        a.l = [("    s_branch ts_end_%d" % kidx) if l.strip() == "s_endpgm" else l for l in a.l]
        a(f"""
        ts_end_{kidx}:
        s_waitcnt vmcnt(0) lgkmcnt(0)
        {"s_getreg_b32 s80, hwreg(HW_REG_HW_ID)" if os.environ.get("HWID") else ""}
        {"s_getreg_b32 s78, hwreg(HW_REG_XCC_ID)" if os.environ.get("HWID") else ""}
        s_memrealtime s[92:93]
        s_memtime s[82:83]
        s_load_dwordx2 s[94:95], s[86:87], 144
        s_mov_b64 exec, 1
        s_lshl_b32 s89, s89, 3
        s_add_u32 s89, s89, s88
        s_lshl_b32 s89, s89, 6
        s_add_u32 s89, s89, {WS_TS + kidx * 0x80000}
        v_mov_b32 v4, s89
        s_waitcnt lgkmcnt(0)
        v_mov_b32 v0, s90
        v_mov_b32 v1, s91
        v_mov_b32 v2, s92
        v_mov_b32 v3, s93
        global_store_dwordx4 v4, v[0:3], s[94:95]
        v_mov_b32 v8, s84
        v_mov_b32 v9, s82
        v_mov_b32 v10, s70
        v_mov_b32 v11, s72
        global_store_dwordx4 v4, v[8:11], s[94:95] offset:16
        v_mov_b32 v12, s74
        v_mov_b32 v13, s76
        v_mov_b32 v14, s78
        v_mov_b32 v15, s80
        global_store_dwordx4 v4, v[12:15], s[94:95] offset:32
        s_endpgm
        """)
    code = f".globl {name}\n.p2align 8\n.type {name},@function\n{name}:\n{a.text()}"
    desc = f""".amdhsa_kernel {name}
  .amdhsa_next_free_vgpr {vgpr}
  .amdhsa_next_free_sgpr {sgpr}
  .amdhsa_accum_offset {((vgpr + 3) // 4) * 4}
  .amdhsa_group_segment_fixed_size 0
  .amdhsa_kernarg_size 152
  .amdhsa_user_sgpr_count 2
  .amdhsa_user_sgpr_kernarg_segment_ptr 1
  .amdhsa_system_sgpr_workgroup_id_x 1
  .amdhsa_float_denorm_mode_32 3
.end_amdhsa_kernel
"""
    return code, desc

def build(kernels):
    hdr = "; adaLN + S4 long convolution + squared-ReLU MLP, gfx950.  Generated by a hand-written generator (dev/g3.py).\n"
    for (name, body, vgpr, grid, block, lds) in kernels:
        if len(kernels) == 1 and name == NAME + "_kernel":
            hdr += f"; @launch grid=({grid},1,1) block=({block},1,1) lds={lds}\n"
        else:
            hdr += f"; @launch kernel={name} grid=({grid},1,1) block=({block},1,1) lds={lds}\n"
    out = hdr + '.amdgcn_target "amdgcn-amd-amdhsa--gfx950"\n.text\n'
    descs = ""
    names = [k[0] for k in kernels] + ["text_end"]
    for i, (name, body, vgpr, grid, block, lds) in enumerate(kernels):
        lo = "pf_here_0" if i == 0 else names[min(i + 1, len(kernels))]
        hi = names[min(i + 2, len(kernels))]
        pf = (lo, hi) if lo != hi else None
        if len(kernels) == 1: pf = ("pf_here_0", "text_end")
        c, d = kernel(name, body, vgpr, i, pf=pf)
        out += c
        descs += ".p2align 6\n" + d
    out += ".p2align 8\ntext_end:\n    s_endpgm\n"
    return out + '.section .rodata,"a"\n' + descs

if __name__ == "__main__":
    import g3b
    ks = [("prep_kernel", gen_A, 128, A_GRID, 256, A_LDS)] + g3b.kernels()
    s = build(ks)
    path = sys.argv[1] if len(sys.argv) > 1 else "out.s"
    open(path, "w").write(s)
    print("wrote", path, len(s))
```

```python
import sys, os
os.environ["MODP"] = "1"
import g3
from g3 import *
import g3b
from g3b import gen_C, gen_D, C_GRID, C_LDS, D_GRID, D_LDS, KCP, KCHL

NMAIN, NW1 = 256, 43
TCH = 57 * TROW
H_OFF = 2 * KCHL
HCH = 4608
XR_OFF = H_OFF + 2 * HCH
RED_OFF = XR_OFF + 8192
LNT = 62016
KC2 = LNT + 4 * 2560
KCS = 776 * 4
MODS = KC2 + 2 * KCS
STP = MODS + 16 * 80
FLG = STP + 256
CNT = FLG + 16
NW1 = 86
IMG = 80128
RED2 = IMG + 16384
GOE = RED2 + 2304
AB_LDS = GOE + 16
assert CNT + 32 <= IMG
AB_GRID = NMAIN
XBS = 8192
WS_MODP = 0x10000
WS_CNT = 0x28000
WS_GO = 0x20000
WS_XB = WS_XT
SET = int(os.environ.get("STAMPSET", 0))
PPRIO = int(os.environ.get("PPRIO", 1))
X2SC = os.environ.get("X2SC", " sc1" if os.environ.get("MEGA") == "1" else "")
X2W = bool(os.environ.get("X2W")) or os.environ.get("MEGA") == "1"
W1SC = os.environ.get("W1SC", " sc1")
KP0 = int(os.environ.get("KP0", 3))
KP1 = int(os.environ.get("KP1", 0))
MEGA = os.environ.get("MEGA") == "1"
SPIN_MAX = 0x20000

def lds_arrive(a, k, v):
    a(f"""
    v_mov_b32 v{v}, {CNT + 4*k}
    v_mov_b32 v{v+1}, 1
    s_mov_b64 exec, 1
    ds_add_u32 v{v}, v{v+1}
    s_mov_b64 exec, -1
    """)
def lds_wait(a, k, n, v, tag, slp=1):
    a(f"""
    v_mov_b32 v{v}, {CNT + 4*k}
    lw_{tag}:
    ds_read_b32 v{v+1}, v{v}
    s_waitcnt lgkmcnt(0)
    v_readfirstlane_b32 s62, v{v+1}
    s_cmp_ge_u32 s62, {n}
    s_cbranch_scc1 lw_{tag}_done
    s_sleep {slp}
    s_branch lw_{tag}
    lw_{tag}_done:
    """)

def h_addr(a, toff):
    a(f"""
    v_add_u32 v11, {toff}, v0
    v_lshrrev_b32 v12, 1, v11                ; block
    v_and_b32 v10, 1, v11                    ; ch
    v_lshlrev_b32 v4, 13, v12
    v_lshl_add_u32 v4, v10, 4, v4
    s_lshl_b32 s38, s29, 4
    s_add_u32 s38, s38, {WS_XB}
    v_add_u32 v4, s38, v4
    v_lshlrev_b32 v5, 5, v12
    v_add_u32 v5, {WS_ST1}, v5               ; statistics
    s_lshr_b32 s38, s29, 4
    s_lshl_b32 s38, s38, 7
    s_and_b32 s39, s29, 15
    s_lshl_b32 s39, s39, 2
    s_add_u32 s38, s38, s39
    s_add_u32 s38, s38, {WS_MODP}
    v_lshl_add_u32 v6, v10, 2, s38
    v_mul_u32_u24 v7, {HCH}, v10
    v_lshl_add_u32 v7, v12, 4, v7
    v_add_u32 v7, {H_OFF + 512}, v7          ; h (LDS)
    v_lshlrev_b32 v8, 12, v10
    v_lshl_add_u32 v8, v12, 4, v8
    v_add_u32 v8, {XR_OFF}, v8
    v_lshlrev_b32 v9, 2, v10
    v_add_u32 v9, {MODS}, v9
    v_add_u32 v13, 4096, v6
    v_add_u32 v14, 4096, v13
    """)
def h_body(a, extra=None, nextra=0):
    a(f"""
    global_load_dwordx4 v[64:67], v4, s[22:23] sc1
    global_load_dwordx4 v[68:71], v5, s[22:23] sc1
    global_load_dwordx4 v[72:75], v5, s[22:23] offset:16 sc1
    global_load_dword v76, v6, s[22:23] sc1
    global_load_dword v77, v13, s[22:23] sc1
    global_load_dword v78, v14, s[22:23] sc1
    """)
    if extra: extra()
    a(f"""
    s_waitcnt vmcnt({5 + nextra})
    ds_write_b128 v8, v[64:67]
    """)
    for e in range(8):
        src = 64 + e // 2
        a(f"v_lshlrev_b32 v{80+e}, 16, v{src}" if e % 2 == 0 else f"v_and_b32 v{80+e}, 0xffff0000, v{src}")
    a(f"s_waitcnt vmcnt({3 + nextra})")
    for e in range(8):
        a(f"v_lshlrev_b32 v{12+(e%4)}, 16, v{68+e}")
        a(f"v_and_b32 v{68+e}, 0xffff0000, v{68+e}")
        a(f"v_fma_f32 v{80+e}, v{80+e}, v{12+(e%4)}, v{68+e}")
    a(f"""
    s_waitcnt vmcnt({nextra})
    v_add_f32 v77, 1.0, v77
    v_cvt_pk_bf16_f32 v77, v77, v77
    ds_write_b32 v9, v78                     ; ga
    v_lshlrev_b32 v77, 16, v77               ; gamma
    """)
    for e in range(8): a(f"v_fma_f32 v{80+e}, v{80+e}, v77, v76")
    for p in range(4): a(f"v_cvt_pk_bf16_f32 v{88+p}, v{80+2*p}, v{81+2*p}")
    a("ds_write_b128 v7, v[88:91]")
    a("s_waitcnt lgkmcnt(0)")

IDX0 = 62428
def idx_table():
    import numpy as np
    def bf16_round_int(l):
        u = int(np.float32(l).view(np.uint32))
        r = (u + 0x7FFF + ((u >> 16) & 1)) >> 16
        return r
    rows = []
    for t in range(256):
        vals = []
        for e in range(12):
            l = 2047 - 8 * t - e
            if e == 11: vals.append(0); continue
            if l < 0: idx = 768
            elif l < 128: idx = l
            else: idx = bf16_round_int(l) - 0x4300 + 128
            vals.append(4 * idx + KC2 - IDX0)
        rows.append(vals)
    out = ".p2align 4\n.type kidx_table,@object\nkidx_table:\n"
    for r in rows: out += "    .short " + ", ".join(str(v) for v in r) + "\n"
    out += ".size kidx_table, 6144\n"
    return out
def idx_load(a, tag, d):
    a(f"""
    s_getpc_b64 s[56:57]
    idx_pc_{tag}:
    s_add_u32 s56, s56, kidx_table-idx_pc_{tag}
    s_addc_u32 s57, s57, 0
    v_mul_u32_u24 v{d+6}, 24, v0
    global_load_dwordx4 v[{d}:{d+3}], v{d+6}, s[56:57]
    global_load_dwordx2 v[{d+4}:{d+5}], v{d+6}, s[56:57] offset:16
    """)
def idx_unpack(a, d, o):
    for e in range(11):
        a(f"v_and_b32 v{o+e}, 0xffff, v{d+e//2}" if e % 2 == 0 else f"v_lshrrev_b32 v{o+e}, 16, v{d+e//2}")

def gen_kwaves(a):
    VA, VB, VY = 32, 64, 96
    a(f"""
    kwaves:
    s_setprio {KP0}
    s_load_dwordx4 s[8:11], s[0:1], 8
    s_load_dwordx4 s[12:15], s[0:1], 24
    s_load_dwordx4 s[16:19], s[0:1], 40
    s_load_dwordx4 s[40:43], s[0:1], 56
    s_load_dwordx4 s[20:23], s[0:1], 136
    s_lshr_b32 s27, s26, 1                   ; ch
    s_and_b32 s28, s26, 1                    ; hf
    s_add_u32 s30, s29, s27                  ; d
    s_lshl_b32 s34, s30, 8
    s_lshl_b32 s35, s28, 7
    s_add_u32 s34, s34, s35
    v_lshl_add_u32 v36, v1, 1, s34
    s_lshl_b32 s35, s29, 1
    s_waitcnt lgkmcnt(0)
    """)
    if SET in (0, 3): a.stamp(0)
    for i, sp in enumerate((8, 10, 12, 14, 16, 18)):
        a(f"global_load_ushort v{40+i}, v36, s[{sp}:{sp+1}]")
    a("s_load_dword s24, s[40:41], s35\ns_load_dword s25, s[42:43], s35")
    idx_load(a, "k", 104)
    a(f"s_setprio {KP1}")
    if SET == 3: a.stamp(1)
    a(f"""
    s_waitcnt lgkmcnt(0)
    s_lshl_b32 s36, s27, 4
    s_lshr_b32 s24, s24, s36
    s_lshl_b32 s24, s24, 16                  ; log_dt[d]
    s_lshr_b32 s25, s25, s36
    s_lshl_b32 s25, s25, 16                  ; Dskip[d]
    v_mov_b32 v5, s24
    v_mul_f32 v6, 0x3fb8aa3b, v5
    s_mov_b32 s36, 0x3fb8aa3b
    v_fma_f32 v7, v5, s36, -v6
    v_fmac_f32 v7, 0x32a5705f, v5
    v_exp_f32 v6, v6
    v_mul_f32 v7, {fx(0.6931471805599453)}, v7
    v_fmac_f32 v6, v6, v7
    v_cvt_pk_bf16_f32 v6, v6, v6
    v_lshlrev_b32 v6, 16, v6                 ; dt
    s_mul_i32 s36, s27, {TCH}
    s_lshl_b32 s37, s28, 8
    s_add_u32 s36, s36, s37
    v_lshl_add_u32 v2, v1, 2, s36
    v_mov_b32 v4, 0
    v_mov_b32 v5, {KC2 + 768*4}
    ds_write_b32 v5, v4
    ds_write_b32 v5, v4 offset:{KCS}
    s_waitcnt vmcnt(6)
    v_lshlrev_b32 v40, 16, v40
    v_lshlrev_b32 v41, 16, v41
    v_mul_f32 v10, v6, v40
    v_mul_f32 v11, v6, v41
    v_mul_f32 v10, 0x3fb8aa3b, v10
    v_mul_f32 v11, {fx(0.15915494309189535)}, v11
    """)
    if SET == 0: a.stamp(1)
    if SET == 3: a.stamp(2)
    def direct(dst, l, t):
        a(f"""
        v_mul_f32 v{t}, {fx(float(l))}, v10
        v_mul_f32 v{t+1}, {fx(float(l))}, v11
        v_exp_f32 v{t}, v{t}
        v_fract_f32 v{t+1}, v{t+1}
        v_cos_f32 v{dst}, v{t+1}
        v_sin_f32 v{dst+1}, v{t+1}
        s_nop 0
        v_mul_f32 v{dst}, v{t}, v{dst}
        v_mul_f32 v{dst+1}, v{t}, v{dst+1}
        """)
    tmpw = [0]
    def wr(row, src, neg=False):
        tmp = 62 + (tmpw[0] % 2); tmpw[0] += 1
        a(f"v_cvt_pk_bf16_f32 v{tmp}, v{src}, {'-' if neg else ''}v{src+1}")
        a(f"ds_write_b32 v2, v{tmp} offset:{row*TROW}")
    E = [None, 64, 66, 68, 70, 72, 74, 76]
    E8, E128, X, Y2, Q, R = 78, 80, 82, 84, 86, 88
    S = [12, 14, 16, 18]
    T0, T1, T2 = 28, 30, 32
    direct(E[1], 1, 28); direct(E128, 128, 30)
    a("""
    s_waitcnt vmcnt(2)
    v_lshlrev_b32 v42, 16, v42
    v_lshlrev_b32 v43, 16, v43
    v_lshlrev_b32 v44, 16, v44
    v_lshlrev_b32 v45, 16, v45
    v_mul_f32 v42, v6, v42
    v_mul_f32 v43, v6, v43
    """)
    cmul(a, Q, 44, 42, T2)
    a("v_mov_b32 v62, 0x3f80\nds_write_b32 v2, v62 offset:0"); tmpw[0] = 1
    cmul(a, E[2], E[1], E[1], T0); cmul(a, X, E128, E128, T1)
    wr(1, E[1]); wr(8, E128); wr(QROW, Q, True)
    cmul(a, E[4], E[2], E[2], T0); cmul(a, E[3], E[2], E[1], T1); cmul(a, R, X, X, T2)
    wr(2, E[2]); wr(16, X)
    cmul(a, E8, E[4], E[4], T0); cmul(a, E[5], E[4], E[1], T1); cmul(a, E[6], E[3], E[3], T2)
    wr(3, E[3]); wr(4, E[4]); wr(24, R)
    cmul(a, E[7], E[4], E[3], T0); cmul(a, Y2, R, E[4], T1)
    cmul(a, S[1], X, E[2], T2); cmul(a, S[2], X, E[4], T0); cmul(a, S[3], X, E[6], T1)
    wr(5, E[5]); wr(6, E[6]); wr(7, E[7]); wr(25, Y2)
    cmul(a, S[0], X, E128, T2)
    a(f"v_mov_b64 v[{X}:{X+1}], v[{R}:{R+1}]")
    cmul(a, R, R, R, T0)
    wr(17, S[1]); wr(18, S[2]); wr(19, S[3]); wr(20, S[0])
    for r in range(1, 4): cmul(a, S[r], S[r], E128, (T0, T1, T2)[r % 3])
    for r in range(1, 4): wr(20 + r, S[r])
    wr(32, R)
    Z = S[0]
    for i in range(1, 16):
        cmul(a, Q, Q, E8, T0)
        if i <= 8: cmul(a, R, R, E128, T1)
        if i <= 7: cmul(a, Z, E128, E[i], T2)
        if i <= 3:
            cmul(a, X, X, E128, 34); cmul(a, Y2, Y2, E128, 36)
        wr(QROW + i, Q, True)
        if i <= 8: wr(32 + i, R)
        if i <= 7: wr(8 + i, Z)
        if i <= 3:
            wr(24 + 2 * i, X); wr(25 + 2 * i, Y2)
    a(f"""
    v_and_b32 v4, 15, v0
    v_bfe_u32 v5, v0, 4, 2
    v_lshlrev_b32 v7, 4, v5
    v_mul_u32_u24 v8, {TROW}, v4
    v_add_u32 v8, v8, v7
    s_mul_i32 s36, s27, {TCH}
    v_add_u32 v8, s36, v8
    v_add_u32 v9, {QROW*TROW}, v8            ; B address
    s_mul_i32 s37, s28, {32*TROW}
    v_add_u32 v12, s37, v8
    s_mul_i32 s37, s28, {16*TROW}
    s_add_u32 s37, s37, {16*TROW}
    v_add_u32 v13, s37, v8
    """)
    for r in range(20, 36): a(f"v_mov_b32 v{r}, 0")
    a(f"""
    s_mul_i32 s36, s27, {KCS}
    s_add_u32 s36, s36, {KC2}
    s_cmp_eq_u32 s28, 1
    s_cbranch_scc1 k_t2
    v_and_b32 v7, 1, v5
    v_lshlrev_b32 v7, 2, v7
    v_lshrrev_b32 v14, 1, v5
    v_lshl_add_u32 v7, v14, 7, v7
    v_lshl_add_u32 v7, v4, 3, v7
    v_lshl_add_u32 v14, v7, 2, s36
    v_add_u32 v15, 4, v14
    v_add_u32 v16, 8, v14
    v_add_u32 v17, 12, v14
    v_cmp_gt_u32 vcc, 2, v5
    v_lshlrev_b32 v7, 6, v5
    v_add_u32 v7, 256, v7
    v_lshlrev_b32 v40, 2, v4
    v_lshlrev_b32 v41, 1, v4
    v_cndmask_b32 v40, v41, v40, vcc
    v_add_u32 v7, v7, v40
    v_lshl_add_u32 v40, v7, 2, s36
    v_add_u32 v41, 4, v40
    v_mov_b32 v42, 128
    v_cndmask_b32 v42, v42, 8, vcc
    v_add_u32 v42, v40, v42
    v_add_u32 v43, 4, v42
    s_branch k_addr
    k_t2:
    v_lshl_add_u32 v7, v5, 6, v4
    v_lshl_add_u32 v14, v7, 2, s36
    v_add_u32 v14, {512*4}, v14
    v_add_u32 v15, 64, v14
    v_add_u32 v16, 128, v14
    v_add_u32 v17, 192, v14
    v_mov_b32 v40, v14
    v_mov_b32 v41, v15
    v_mov_b32 v42, v16
    v_mov_b32 v43, v17
    k_addr:
    v_cmp_eq_u32 vcc, 0, v1
    s_cmp_eq_u32 s28, 0
    s_cselect_b32 s25, s25, 0
    v_mov_b32 v7, s25
    v_cndmask_b32 v7, 0, v7, vcc
    s_waitcnt lgkmcnt(0)
    """)
    a("s_waitcnt vmcnt(0)")
    idx_unpack(a, 104, 112)
    if SET == 0: a.stamp(2)
    if SET == 3: a.stamp(3)
    lds_arrive(a, 2, 38); lds_wait(a, 2, 4, 38, "k1")
    def rd(s):
        o = 64 + 12 * (s % 4)
        a(f"ds_read_b128 v[{o}:{o+3}], v9 offset:{64*s}")
        a(f"ds_read_b128 v[{o+4}:{o+7}], v12 offset:{64*s}")
        a(f"ds_read_b128 v[{o+8}:{o+11}], v13 offset:{64*s}")
    for s in range(4): rd(s)
    for s in range(8):
        o = 64 + 12 * (s % 4); p = s % 2
        a(f"s_waitcnt lgkmcnt({9 if s < 5 else 3*(7-s)})")
        a(f"v_mfma_f32_16x16x32_bf16 v[{20+8*p}:{23+8*p}], v[{o+4}:{o+7}], v[{o}:{o+3}], v[{20+8*p}:{23+8*p}]")
        a(f"v_mfma_f32_16x16x32_bf16 v[{24+8*p}:{27+8*p}], v[{o+8}:{o+11}], v[{o}:{o+3}], v[{24+8*p}:{27+8*p}]")
        if s < 4: rd(s + 4)
    a("s_nop 7")
    for r in range(8): a(f"v_add_f32 v{20+r}, v{20+r}, v{28+r}")
    a(f"""
    v_add_f32 v20, v20, v7
    ds_write_b32 v14, v20
    ds_write_b32 v15, v21
    ds_write_b32 v16, v22
    ds_write_b32 v17, v23
    ds_write_b32 v40, v24
    ds_write_b32 v41, v25
    ds_write_b32 v42, v26
    ds_write_b32 v43, v27
    """)
    lds_arrive(a, 3, 38); lds_wait(a, 3, 4, 38, "k2")
    if SET == 0: a.stamp(3)
    for ch in range(2):
        for e in range(11): a(f"ds_read_b32 v{64+12*ch+e}, v{112+e} offset:{IDX0 + ch*KCS}")
    a(f"""
    v_lshlrev_b32 v4, 4, v0                  ; tid*16
    v_mov_b32 v56, 0
    v_mov_b32 v57, 0
    v_mov_b32 v58, 0
    v_mov_b32 v59, 0
    v_lshrrev_b32 v60, 1, v0
    v_mul_u32_u24 v60, {KCP}, v60
    v_and_b32 v61, 1, v0
    v_lshl_add_u32 v60, v61, 4, v60
    v_add_u32 v60, 4096, v60
    v_bfe_u32 v61, v0, 5, 1
    v_mul_u32_u24 v61, {HCH}, v61
    v_and_b32 v62, 31, v0
    v_lshl_add_u32 v61, v62, 4, v61
    v_add_u32 v61, {H_OFF}, v61
    v_cmp_gt_u32 vcc, 16, v0
    s_cmp_eq_u32 s26, 1
    s_cbranch_scc1 k_padh
    s_cmp_eq_u32 s26, 0
    s_cbranch_scc0 k_pad_done
    s_and_saveexec_b64 s[54:55], vcc
    ds_write_b128 v60, v[56:59]
    s_mov_b64 exec, s[54:55]
    s_branch k_pad_done
    k_padh:
    ds_write_b128 v61, v[56:59]
    k_pad_done:
    s_waitcnt lgkmcnt(0)
    """)
    for ch in range(2):
        for c in range(4):
            o = 96 + 4 * (c % 2)
            for k in range(4): a(f"v_cvt_pk_bf16_f32 v{o+k}, v{64+12*ch+c+2*k}, v{64+12*ch+c+2*k+1}")
            a(f"ds_write_b128 v4, v[{o}:{o+3}] offset:{ch*KCHL + c*KCP}")
    a(f"""
    v_and_b32 v7, 15, v1
    v_lshrrev_b32 v2, 4, v1
    v_sub_u32 v60, 3, v7
    v_and_b32 v60, 3, v60
    v_mul_u32_u24 v61, {KCP - 2}, v60
    v_lshlrev_b32 v62, 1, v7
    v_sub_u32 v61, v61, v62
    v_lshl_add_u32 v61, v2, 4, v61
    s_mul_i32 s38, s27, {KCHL}
    s_lshl_b32 s39, s28, 8
    s_sub_u32 s38, s38, s39
    s_add_u32 s38, s38, {2*(2031 - 32*59)}
    v_add_u32 v20, s38, v61                  ; A base
    v_lshlrev_b32 v21, 5, v7
    v_lshl_add_u32 v21, v2, 4, v21
    s_mul_i32 s38, s27, {HCH}
    s_sub_u32 s38, s38, s39
    s_add_u32 s38, s38, {H_OFF + 2*(240 - 96)}
    v_add_u32 v21, s38, v21                  ; B base
    v_lshlrev_b32 v22, 5, v7
    v_lshl_add_u32 v22, v2, 3, v22
    s_lshl_b32 s38, s27, 12
    s_lshl_b32 s39, s28, 11
    s_add_u32 s38, s38, s39
    s_add_u32 s38, s38, {XR_OFF}
    v_add_u32 v23, s38, v22
    s_lshl_b32 s38, s30, 12
    s_lshl_b32 s39, s28, 11
    s_add_u32 s38, s38, s39
    s_add_u32 s38, s38, {WS_X2T}
    s_add_u32 s50, s22, s38
    s_addc_u32 s51, s23, 0
    s_lshl_b32 s43, s26, 12
    s_add_u32 s43, s43, {RED_OFF}
    v_lshlrev_b32 v24, 4, v1
    v_add_u32 v25, s43, v24
    s_xor_b32 s43, s26, 1
    s_lshl_b32 s43, s43, 12
    s_add_u32 s43, s43, {RED_OFF}
    v_add_u32 v26, s43, v24
    s_lshl_b32 s43, s27, 2
    s_add_u32 s43, s43, {MODS}
    v_mov_b32 v27, s43
    s_lshl_b32 s43, s26, 2
    s_add_u32 s43, s43, {FLG}
    v_mov_b32 v29, s43
    s_xor_b32 s43, s43, 4
    v_mov_b32 v30, s43
    v_mov_b32 v31, 0
    ds_write_b32 v29, v31
    v_lshlrev_b32 v24, 5, v7
    v_lshrrev_b32 v60, 1, v2
    v_lshl_add_u32 v24, v60, 4, v24
    v_and_b32 v60, 1, v2
    v_lshl_add_u32 v24, v60, 9, v24
    """)
    for t in range(8):
        for r in range(4): a(f"v_mov_b32 v{VY+4*t+r}, 0")
    lds_arrive(a, 5, 36);
    h_addr(a, 0)
    lds_wait(a, 5, 4, 36, "k3")
    T = LdsTracker(a)
    def ldA(p, r):
        off = 512 * (7 - p) + 64 * (3 - r)
        T.issue(f"ds_read_b64 v[{VA+4*p}:{VA+4*p+1}], v20 offset:{off}", [f"A{p}"])
        T.issue(f"ds_read_b64 v[{VA+4*p+2}:{VA+4*p+3}], v20 offset:{off+8}", [f"A{p}"])
    def ldB(k, r):
        off = 512 * k + 64 * (3 - r)
        T.issue(f"ds_read_b128 v[{VB+4*k}:{VB+4*k+3}], v21 offset:{off}", [f"B{k}"])
    for p in range(8): ldA(p, 0)
    if SET == 0: a.stamp(4)
    a("s_cmp_eq_u32 s26, 0\ns_cbranch_scc0 k_waitrel")
    go_addr(a, 84)
    lds_wait(a, 6, 1, 16, "k6", 1)
    a(f"v_and_b32 v16, 1, v1\nv_lshlrev_b32 v16, 3, v16\nv_add_u32 v16, {GOE}, v16\nds_read_b64 v[84:85], v16\ns_waitcnt lgkmcnt(0)")
    grid_wait(a, "k", 80, 84, int(os.environ.get("PSLP", 1)))
    lds_arrive(a, 4, 16)
    a("k_waitrel:")
    lds_wait(a, 4, 1, 16, "k4", 1)
    T.done = T.issued
    h_body(a)
    a("s_barrier")
    if int(os.environ.get("KPRIO", 0)): a(f"s_setprio {os.environ['KPRIO']}")
    if SET == 0: a.stamp(5)
    for k in range(7, -1, -1): ldB(k, 0)
    T.issue("ds_read_b32 v28, v27", ["ga"])
    for r in range(4):
        for p in range(8):
            for t in range(7, p - 1, -1):
                k = t - p
                T.need([f"A{p}", f"B{k}"])
                a(f"v_mfma_f32_16x16x32_bf16 v[{VY+4*t}:{VY+4*t+3}], v[{VA+4*p}:{VA+4*p+3}], v[{VB+4*k}:{VB+4*k+3}], v[{VY+4*t}:{VY+4*t+3}]")
                if t == 7 and r < 3: ldB(7 - p, r + 1)
            if r < 3: ldA(p, r + 1)
            if r == 3 and p == 4:
                for i in range(4): T.issue(f"ds_read_b64 v[{4+2*i}:{5+2*i}], v23 offset:{512*i}", ["xr"])
    T.need(["xr", "ga"])
    for i in range(4):
        a(f"v_lshlrev_b32 v{32+4*i}, 16, v{4+2*i}")
        a(f"v_and_b32 v{33+4*i}, 0xffff0000, v{4+2*i}")
        a(f"v_lshlrev_b32 v{34+4*i}, 16, v{5+2*i}")
        a(f"v_and_b32 v{35+4*i}, 0xffff0000, v{5+2*i}")
    a("s_cmp_eq_u32 s28, 1\ns_cbranch_scc1 k_hf1")
    def tail(hf):
        keep, send = 4 * hf, 4 * (1 - hf)
        for i in range(4):
            t = send + i
            a(f"ds_write_b128 v25, v[{VY+4*t}:{VY+4*t+3}] offset:{1024*i}")
        a("v_mov_b32 v31, 1\nds_write_b32 v29, v31")
        for i in range(4):
            for r in range(4): a(f"v_fma_f32 v{32+4*i+r}, v28, v{VY+4*(keep+i)+r}, v{32+4*i+r}")
        a(f"""
        k_hs{hf}:
        ds_read_b32 v31, v30
        s_waitcnt lgkmcnt(0)
        v_readfirstlane_b32 s43, v31
        s_cmp_eq_u32 s43, 1
        s_cbranch_scc0 k_hs{hf}
        """)
        for i in range(4): a(f"ds_read_b128 v[{64+4*i}:{67+4*i}], v26 offset:{1024*i}")
        for i in range(4):
            a(f"s_waitcnt lgkmcnt({3-i})")
            for r in range(4): a(f"v_fma_f32 v{32+4*i+r}, v28, v{64+4*i+r}, v{32+4*i+r}")
            a(f"v_cvt_pk_bf16_f32 v{12+2*i}, v{32+4*i}, v{33+4*i}")
            a(f"v_cvt_pk_bf16_f32 v{13+2*i}, v{34+4*i}, v{35+4*i}")
            if not X2W:
                a(f"global_store_dwordx2 v22, v[{12+2*i}:{13+2*i}], s[50:51] offset:{512*i}{X2SC}")
            elif i % 2 == 1:
                o = 12 + 2 * (i - 1)
                a("s_nop 1")
                a(f"v_permlane16_swap_b32 v{o}, v{o+2}")
                a(f"v_permlane16_swap_b32 v{o+1}, v{o+3}")
                a(f"global_store_dwordx4 v24, v[{o}:{o+3}], s[50:51] offset:{512*(i-1)}{X2SC}")
        a("s_waitcnt vmcnt(0)\ns_branch mega_next" if MEGA else "s_endpgm")
    tail(0)
    a("k_hf1:")
    tail(1)

NGO = int(os.environ.get('NGO', 32))
NSH = 4
def go_addr(a, o):
    a(f"""
    v_and_b32 v92, {NGO-1}, v1
    v_lshlrev_b32 v92, 7, v92
    s_and_b32 s34, s2, {NSH-1}
    s_lshl_b32 s34, s34, 2
    s_add_u32 s34, s34, {WS_GO}
    v_add_u32 v92, s34, v92
    s_lshr_b32 s34, s2, 2
    s_and_b32 s34, s34, {NGO-1}
    s_lshl_b32 s34, s34, 7
    s_add_u32 s34, s34, {WS_GO}
    v_and_b32 v94, 1, v1
    v_lshl_add_u32 v94, v94, 3, s34
    v_mov_b32 v{o+2}, 0
    v_mov_b32 v{o+3}, 0
    """)
def go_load(a, o):
    a(f"""
    s_mov_b64 exec, 3
    global_atomic_add_x2 v[{o}:{o+1}], v94, v[{o+2}:{o+3}], s[22:23] sc0 sc1
    s_mov_b64 exec, -1
    """)
def grid_arrive(a, tag, t):
    assert AB_GRID % 2 == 0
    n = [len(range(k, AB_GRID, NSH)) for k in range(NSH)]
    assert n[0] == n[-1] and n[0] & (n[0] - 1) == 0
    BUMP = f"s_mov_b32 exec_hi, 0\n    s_mov_b32 exec_lo, {hex((1 << NGO) - 1)}\n    global_atomic_add v92, v{t+1}, s[22:23] sc1"
    a(f"""
    s_and_b32 s34, s2, {NSH-1}
    s_lshl_b32 s36, s34, 6
    v_mov_b32 v{t}, s36
    v_mov_b32 v{t+1}, 1
    s_mov_b64 exec, 1
    global_atomic_add v{t+2}, v{t}, v{t+1}, s[20:21] sc0 sc1
    s_waitcnt vmcnt(0)
    v_readfirstlane_b32 s36, v{t+2}
    s_mov_b64 exec, -1
    s_and_b32 s36, s36, {n[0] - 1}
    s_cmp_eq_u32 s36, {n[0] - 1}
    s_cbranch_scc0 {tag}_arrived
    {BUMP}
    s_mov_b64 exec, -1
    {tag}_arrived:
    """)
def grid_wait(a, tag, t, o, slp=1, nmax=None):
    n = [len(range(k, AB_GRID, NSH)) for k in range(NSH)]
    cut = AB_GRID % NSH
    a(f"""
    s_mov_b32 s60, 0
    {tag}_poll_loop:
    s_mov_b64 exec, 3
    global_atomic_add_x2 v[{t}:{t+1}], v94, v[{o+2}:{o+3}], s[22:23] sc0 sc1
    s_waitcnt vmcnt(0)
    v_cmp_eq_u32 vcc, v{t}, v{o}
    v_cmp_eq_u32 s[58:59], v{t+1}, v{o+1}
    s_mov_b64 exec, -1
    s_or_b64 vcc, vcc, s[58:59]
    s_cbranch_scc0 {tag}_go
    s_add_u32 s60, s60, 1
    s_and_b32 s61, s60, 31
    s_cbranch_scc1 {tag}_next
    v_and_b32 v{t}, {NSH-1}, v1
    v_lshlrev_b32 v{t+1}, 6, v{t}
    s_mov_b64 exec, {(1 << NSH) - 1}
    global_atomic_add v{t+2}, v{t+1}, v{o+2}, s[20:21] sc0 sc1
    s_waitcnt vmcnt(0)
    v_cmp_ne_u32 vcc, {n[0]}, v{t+2}
    s_mov_b64 exec, -1
    s_cbranch_vccz {tag}_go
    {tag}_next:
    s_sleep {slp}
    s_cmp_lt_u32 s60, {nmax or SPIN_MAX}
    s_cbranch_scc1 {tag}_poll_loop
    {tag}_go:
    """)

def gen_pwaves(a):
    a(f"""
    pwaves:
    s_load_dwordx2 s[4:5], s[0:1], 0         ; x
    s_load_dwordx4 s[44:47], s[0:1], 112     ; c, w_mod
    s_load_dwordx4 s[20:23], s[0:1], 136
    s_load_dwordx4 s[8:11], s[0:1], 80       ; w1, b1
    s_load_dwordx2 s[48:49], s[0:1], 96
    s_setprio {PPRIO}
    v_subrev_u32 v0, 256, v0
    s_sub_u32 s26, s26, 4
    v_lshrrev_b32 v3, 6, v0
    v_lshrrev_b32 v8, 4, v1                  ; row (0..3)
    v_and_b32 v9, 15, v1                     ; 16 B chunk
    v_lshlrev_b32 v4, 10, v8
    v_lshl_add_u32 v4, v9, 4, v4
    v_lshl_add_u32 v4, v3, 8, v4
    s_lshl_b32 s31, s2, 13
    v_add_u32 v4, s31, v4
    v_add_u32 v44, 4096, v4
    s_min_u32 s32, s7, 23
    s_mul_i32 s33, s6, 24
    s_add_u32 s33, s33, s32
    v_lshrrev_b32 v5, 1, v0                  ; rg
    v_and_b32 v6, 1, v0                      ; cc
    v_mul_u32_u24 v7, {4*6144}, v5
    v_lshl_add_u32 v7, v6, 4, v7
    s_lshl_b32 s34, s33, 5
    v_add_u32 v7, s34, v7
    v_lshlrev_b32 v2, 3, v5                  ; c offset
    """)
    go_addr(a, 96)
    a("s_waitcnt lgkmcnt(0)")
    if SET == 1: a.stamp(0)
    a(f"""
    global_load_dwordx4 v[8:11], v4, s[4:5]
    global_load_dwordx4 v[12:15], v44, s[4:5]
    global_load_dwordx2 v[16:17], v2, s[44:45]
    """)
    for i in range(4):
        if i: a("v_add_u32 v7, 6144, v7")
        a(f"global_load_dwordx4 v[{20+4*i}:{23+4*i}], v7, s[46:47]")
    a(f"""
    v_mov_b32 v38, 0x3f803f80
    v_lshrrev_b32 v40, 4, v1
    v_mul_u32_u24 v39, 320, v40
    v_and_b32 v41, 15, v1
    v_lshl_add_u32 v39, v41, 4, v39
    s_mul_i32 s34, s26, 2560
    s_add_u32 s34, s34, {LNT}
    v_add_u32 v39, s34, v39
    v_lshrrev_b32 v47, 2, v41
    v_mul_u32_u24 v47, 320, v47
    v_and_b32 v46, 3, v41
    v_lshl_add_u32 v47, v46, 3, v47
    v_lshl_add_u32 v47, v40, 5, v47
    v_add_u32 v47, s34, v47
    v_lshl_add_u32 v46, v3, 7, v1
    v_lshlrev_b32 v46, 4, v46
    s_mul_i32 s34, s2, {XBS}
    s_add_u32 s34, s34, {WS_XB}
    v_add_u32 v46, s34, v46
    v_lshlrev_b32 v45, 3, v40
    s_lshl_b32 s34, s26, 6
    s_add_u32 s34, s34, {STP}
    v_add_u32 v45, s34, v45
    """)
    for r in range(2):
        b = 8 + 4 * r
        a(f"s_waitcnt vmcnt({6 - r})")
        a(f"ds_write_b128 v39, v[{b}:{b+3}] offset:{1280*r}")
        a(f"v_dot2_f32_bf16 v{72+2*r}, v{b}, v38, 0")
        a(f"v_dot2_f32_bf16 v{73+2*r}, v{b}, v{b}, 0")
        for k in range(1, 4):
            a(f"v_dot2_f32_bf16 v{72+2*r}, v{b+k}, v38, v{72+2*r}")
            a(f"v_dot2_f32_bf16 v{73+2*r}, v{b+k}, v{b+k}, v{73+2*r}")
    a("""
    s_waitcnt lgkmcnt(0)
    ds_read_b64_tr_b16 v[48:49], v47
    ds_read_b64_tr_b16 v[50:51], v47 offset:1280
    ds_read_b64_tr_b16 v[52:53], v47 offset:128
    ds_read_b64_tr_b16 v[54:55], v47 offset:1408
    """)
    if SET == 1: a.stamp(1)
    a("s_waitcnt vmcnt(4)")
    for i in range(4):
        src = 16 + i // 2
        a(f"v_lshlrev_b32 v{56+i}, 16, v{src}" if i % 2 == 0 else f"v_and_b32 v{56+i}, 0xffff0000, v{src}")
    for i in range(4): a(f"v_mul_f32 v{60+i}, {fx(-1.4426950408889634)}, v{56+i}")
    for i in range(4): a(f"v_exp_f32 v{60+i}, v{60+i}")
    dpps = ["row_shr:1", "row_shr:2", "row_shr:4", "row_shr:8", "row_bcast:15 row_mask:0xa", "row_bcast:31 row_mask:0xc"]
    def dpp4(d):
        m = "" if "row_mask" in d else " row_mask:0xf"
        for r in range(72, 76): a(f"v_add_f32_dpp v{r}, v{r}, v{r} {d}{m} bank_mask:0xf")
    dpp4(dpps[0])
    for i in range(4): a(f"v_add_f32 v{60+i}, 1.0, v{60+i}")
    dpp4(dpps[1])
    for i in range(4): a(f"v_rcp_f32 v{60+i}, v{60+i}")
    dpp4(dpps[2])
    for i in range(4): a(f"v_mul_f32 v{56+i}, v{56+i}, v{60+i}")
    dpp4(dpps[3])
    for i in range(4):
        a(f"v_cvt_pk_bf16_f32 v{60+i}, v{56+i}, 0")
        a(f"v_cvt_pk_bf16_f32 v{76+i}, 0, v{56+i}")
    a(f"""
    s_waitcnt lgkmcnt(0)
    global_store_dwordx4 v46, v[48:51], s[22:23] sc1
    global_store_dwordx4 v46, v[52:55], s[22:23] offset:1024 sc1
    v_cmp_eq_u32 vcc, 15, v41
    s_and_saveexec_b64 s[54:55], vcc
    ds_write_b64 v45, v[72:73]
    ds_write_b64 v45, v[74:75] offset:32
    s_mov_b64 exec, s[54:55]
    """)
    for i in range(4):
        a(f"s_waitcnt vmcnt({5 - i})")
        for m in range(4):
            c0 = "0" if i == 0 else f"v{64+2*m}"; c1 = "0" if i == 0 else f"v{65+2*m}"
            a(f"v_dot2_f32_bf16 v{64+2*m}, v{20+4*i+m}, v{60+i}, {c0}")
            a(f"v_dot2_f32_bf16 v{65+2*m}, v{20+4*i+m}, v{76+i}, {c1}")
    a("s_nop 2")
    for d in ["row_shr:2", "row_shr:4", "row_shr:8"]:
        for r in range(64, 72): a(f"v_add_f32_dpp v{r}, v{r}, v{r} {d} row_mask:0xf bank_mask:0xf")
    a(f"""
    v_lshrrev_b32 v4, 4, v0
    v_mul_u32_u24 v4, 80, v4
    v_lshl_add_u32 v4, v6, 5, v4
    v_add_u32 v4, {MODS}, v4
    v_and_b32 v5, 15, v0
    v_cmp_lt_u32 vcc, 13, v5
    v_lshlrev_b32 v5, 2, v5
    v_add_u32 v5, {MODS}, v5
    s_and_saveexec_b64 s[54:55], vcc
    ds_write_b128 v4, v[64:67]
    ds_write_b128 v4, v[68:71] offset:16
    s_mov_b64 exec, s[54:55]
    s_waitcnt lgkmcnt(0)
    """)
    if SET == 1: a.stamp(2)
    a("""
    s_cmp_eq_u32 s26, 0
    s_cbranch_scc0 p_nogo
    """)
    go_load(a, 96)
    a("p_nogo:")
    lds_arrive(a, 0, 36); lds_wait(a, 0, 4, 36, "p1")
    for i in range(16): a(f"ds_read_b32 v{20+i}, v5 offset:{80*i}")
    a(f"""
    v_and_b32 v58, 7, v0
    v_lshlrev_b32 v59, 3, v58
    v_add_u32 v59, {STP}, v59
    ds_read_b64 v[48:49], v59
    ds_read_b64 v[50:51], v59 offset:64
    ds_read_b64 v[52:53], v59 offset:128
    ds_read_b64 v[54:55], v59 offset:192
    v_lshlrev_b32 v58, 2, v58
    s_lshl_b32 s34, s2, 5
    s_add_u32 s34, s34, {WS_ST1}
    v_add_u32 v58, s34, v58
    s_waitcnt lgkmcnt(0)
    v_add_f32 v48, v48, v50
    v_add_f32 v49, v49, v51
    v_add_f32 v52, v52, v54
    v_add_f32 v53, v53, v55
    v_add_f32 v56, v48, v52
    v_add_f32 v57, v49, v53
    v_mul_f32 v56, {fx(1.0/512)}, v56        ; mean
    v_mul_f32 v57, {fx(1.0/512)}, v57
    v_fma_f32 v57, -v56, v56, v57
    v_max_f32 v57, 0, v57
    v_add_f32 v57, {fx(1e-5)}, v57
    v_rsq_f32 v57, v57
    v_cmp_gt_u32 vcc, 8, v0
    v_mul_f32 v56, -v56, v57
    v_cvt_pk_bf16_f32 v56, v57, v56          ; (r, -mean*r)
    s_and_saveexec_b64 s[54:55], vcc
    s_cbranch_execz p_nostat
    global_store_dword v58, v56, s[22:23] sc1
    p_nostat:
    s_mov_b64 exec, s[54:55]
    """)
    for st in (1, 2, 4, 8):
        for i in range(0, 16, 2 * st): a(f"v_add_f32 v{20+i}, v{20+i}, v{20+i+st}")
    a(f"""
    v_cvt_pk_bf16_f32 v20, v20, v20
    v_lshlrev_b32 v20, 16, v20
    s_lshl_b32 s34, s33, 7
    s_add_u32 s34, s34, {WS_MODP}
    v_lshlrev_b32 v4, 2, v0
    v_add_u32 v4, s34, v4
    s_cmp_lt_u32 s7, 24
    s_cselect_b32 s34, 16, 0
    v_cmp_gt_u32 vcc, s34, v0
    s_and_saveexec_b64 s[54:55], vcc
    s_cbranch_execz p_nomod
    global_store_dword v4, v20, s[22:23] sc1
    p_nomod:
    s_mov_b64 exec, s[54:55]
    """)
    a(f"""
    s_cmp_eq_u32 s2, 0
    s_cbranch_scc0 p_nozero
    s_cmp_eq_u32 s26, 1
    s_cbranch_scc0 p_nozero
    v_lshlrev_b32 v60, 7, v1
    v_add_u32 v60, {WS_CNT}, v60
    v_mov_b32 v62, 0
    v_mov_b32 v63, 0
    v_mov_b32 v64, 0
    v_mov_b32 v65, 0
    global_store_dwordx4 v60, v[62:65], s[22:23] sc1
    p_nozero:
    """)
    a("s_waitcnt vmcnt(0)")
    lds_arrive(a, 1, 36)
    if SET == 1: a.stamp(3)
    a(f"""
    s_cmp_eq_u32 s26, 0
    s_cbranch_scc0 p_noentry
    """)
    if os.environ.get("FORCE_RACE"):
        a("s_cmp_eq_u32 s2, 5\ns_cbranch_scc0 fr_skip\nv_add_u32 v96, 1, v96\nfr_skip:")
    a(f"""
    v_and_b32 v60, 1, v1
    v_lshlrev_b32 v60, 3, v60
    v_add_u32 v60, {GOE}, v60
    s_mov_b64 exec, 3
    ds_write_b64 v60, v[96:97]
    s_mov_b64 exec, -1
    """)
    lds_arrive(a, 6, 36)
    lds_wait(a, 1, 4, 36, "p2")
    grid_arrive(a, "p", 36)
    a("p_noentry:")
    h_addr(a, 256)
    a(f"""
    s_cmp_lt_u32 s2, {NW1}
    s_cbranch_scc0 p_now1
    v_lshrrev_b32 v18, 1, v0                 ; rg
    v_and_b32 v19, 1, v0                     ; cc
    v_mul_u32_u24 v16, {4*2752}, v18
    v_lshl_add_u32 v16, v19, 4, v16
    s_lshl_b32 s12, s2, 5
    v_add_u32 v16, s12, v16
    """)
    for i in range(4):
        if i: a("v_add_u32 v16, 2752, v16")
        a(f"global_load_dwordx4 v[{100+4*i}:{103+4*i}], v16, s[8:9]")
    a(f"""
    v_and_b32 v17, 15, v0
    v_lshlrev_b32 v17, 1, v17
    v_add_u32 v17, s12, v17
    global_load_ushort v56, v17, s[10:11]
    v_mov_b32 v57, 0x3f803f80
    v_lshrrev_b32 v58, 2, v18
    v_lshlrev_b32 v58, 9, v58
    v_bfe_u32 v59, v18, 1, 1
    v_lshl_add_u32 v58, v59, 8, v58
    v_lshl_add_u32 v58, v19, 7, v58
    v_and_b32 v59, 1, v18
    v_lshl_add_u32 v58, v59, 3, v58
    v_add_u32 v58, {IMG}, v58
    s_waitcnt vmcnt(1)
    """)
    for i in range(4):
        for e in range(8):
            src = 100 + 4 * i + e // 2
            a(f"v_lshlrev_b32 v{24+8*i+e}, 16, v{src}" if e % 2 == 0 else f"v_and_b32 v{24+8*i+e}, 0xffff0000, v{src}")
    a("p_now1:\ns_setprio 0")
    a(f"""
    v_lshrrev_b32 v16, 3, v0
    v_lshlrev_b32 v16, 7, v16
    v_bfe_u32 v17, v0, 1, 2
    v_lshl_add_u32 v16, v17, 4, v16
    v_add_u32 v16, {WS_MODP + 96*128}, v16
    v_add_u32 v17, 4096, v16
    """)
    lds_wait(a, 4, 1, 60, "p3", 1)
    if SET == 1: a.stamp(4)
    a(f"s_cmp_lt_u32 s2, {NW1}\ns_cbranch_scc0 p_hplain")
    h_body(a, lambda: a("global_load_dwordx4 v[100:103], v16, s[22:23] sc1\nglobal_load_dwordx4 v[104:107], v17, s[22:23] sc1"), 2)
    a("s_branch p_hdone\np_hplain:")
    h_body(a)
    a("p_hdone:")
    if SET == 1: a.stamp(5)
    a("s_barrier")
    if int(os.environ.get("WPRIO", 0)): a(f"s_setprio {os.environ['WPRIO']}")
    a(f"""
    s_lshr_b32 s47, s2, 3
    s_mul_i32 s47, s47, 44032
    v_lshlrev_b32 v20, 6, v0
    v_add_u32 v20, s47, v20
    global_load_dword v21, v20, s[48:49]
    v_add_u32 v20, 16384, v20
    global_load_dword v22, v20, s[48:49]
    s_add_u32 s47, s47, {32768 + 175*64}
    v_add_u32 v20, 16384, v20
    v_min_u32 v20, s47, v20
    global_load_dword v23, v20, s[48:49]
    s_cmp_lt_u32 s2, {NW1}
    s_cbranch_scc0 p_done
    s_waitcnt vmcnt(3)
    """)
    for i in range(4): a(f"v_add_f32 v{12+i}, 1.0, v{104+i}")
    a("v_cvt_pk_bf16_f32 v16, v12, v13\nv_cvt_pk_bf16_f32 v17, v14, v15")
    a("v_lshlrev_b32 v12, 16, v16\nv_and_b32 v13, 0xffff0000, v16\nv_lshlrev_b32 v14, 16, v17\nv_and_b32 v15, 0xffff0000, v17")
    for e in range(8): a(f"v_mul_f32 v{72+e}, v100, v{24+e}")
    for i in range(1, 4):
        for e in range(8): a(f"v_fmac_f32 v{72+e}, v{100+i}, v{24+8*i+e}")
    for i in range(4):
        for e in range(8): a(f"v_mul_f32 v{24+8*i+e}, v{12+i}, v{24+8*i+e}")
    for e in range(8):
        a(f"v_cvt_pk_bf16_f32 v{80+2*e}, v{24+e}, v{32+e}")
        a(f"v_cvt_pk_bf16_f32 v{81+2*e}, v{40+e}, v{48+e}")
    for e in range(8): a(f"ds_write_b64 v58, v[{80+2*e}:{81+2*e}] offset:{16*e}")
    for e in range(8): a(f"v_dot2_f32_bf16 v{64+e}, v{80+2*e}, v57, 0")
    for e in range(8): a(f"v_dot2_f32_bf16 v{64+e}, v{81+2*e}, v57, v{64+e}")
    a("s_nop 2")
    for d in ["row_shr:2", "row_shr:4", "row_shr:8"]:
        for r in range(64, 80): a(f"v_add_f32_dpp v{r}, v{r}, v{r} {d} row_mask:0xf bank_mask:0xf")
    a(f"""
    v_lshrrev_b32 v5, 4, v0                  ; part
    v_mul_u32_u24 v5, 144, v5
    v_lshl_add_u32 v5, v19, 5, v5
    v_add_u32 v5, {RED2}, v5
    v_and_b32 v6, 15, v0
    v_cmp_lt_u32 vcc, 13, v6
    s_and_saveexec_b64 s[54:55], vcc
    ds_write_b128 v5, v[64:67]
    ds_write_b128 v5, v[68:71] offset:16
    ds_write_b128 v5, v[72:75] offset:64
    ds_write_b128 v5, v[76:79] offset:80
    s_mov_b64 exec, s[54:55]
    """)
    lds_arrive(a, 7, 60)
    a(f"""
    v_lshlrev_b32 v7, 4, v0
    v_add_u32 v7, {IMG}, v7
    s_lshr_b32 s13, s2, 1
    s_lshl_b32 s13, s13, 15
    s_and_b32 s14, s2, 1
    s_lshl_b32 s14, s14, 8
    s_add_u32 s13, s13, s14
    s_add_u32 s13, s13, {WS_W1F}
    v_lshrrev_b32 v8, 4, v0
    v_lshlrev_b32 v8, 9, v8
    v_lshl_add_u32 v8, v6, 4, v8
    v_add_u32 v8, s13, v8
    v_lshlrev_b32 v9, 2, v6
    v_bfe_u32 v10, v0, 4, 1
    v_lshl_add_u32 v9, v10, 6, v9            ; (t&15)*4 + ((t>>4)&1)*64
    v_add_u32 v9, {RED2}, v9
    """)
    lds_wait(a, 7, 4, 60, "p7", 1)
    for k in range(4): a(f"ds_read_b128 v[{24+4*k}:{27+4*k}], v7 offset:{4096*k}")
    for p in range(16): a(f"ds_read_b32 v{40+p}, v9 offset:{144*p}")
    a("s_waitcnt lgkmcnt(0)")
    for k in range(4):
        a(f"global_store_dwordx4 v8, v[{24+4*k}:{27+4*k}], s[22:23]{W1SC}")
        if k < 3: a(f"v_add_u32 v8, {16*512}, v8")
    for st in (1, 2, 4, 8):
        for p in range(0, 16, 2 * st): a(f"v_add_f32 v{40+p}, v{40+p}, v{40+p+st}")
    a(f"""
    v_lshlrev_b32 v56, 16, v56
    v_cmp_eq_u32 vcc, 1, v10
    s_nop 1
    v_cndmask_b32 v56, 0, v56, vcc
    v_add_f32 v40, v40, v56
    s_lshl_b32 s13, s2, 6
    v_lshl_add_u32 v11, v6, 2, s13
    v_mov_b32 v12, {WS_CS}
    v_mov_b32 v13, {WS_B1P}
    v_cndmask_b32 v12, v12, v13, vcc
    v_add_u32 v11, v11, v12
    v_cmp_gt_u32 vcc, 32, v0
    s_and_saveexec_b64 s[54:55], vcc
    s_cbranch_execz p_done
    global_store_dword v11, v40, s[22:23]{" sc1" if MEGA else SC}
    p_done:
    """)
    if MEGA: a("s_mov_b64 exec, -1\nv_add_u32 v0, 256, v0\ns_waitcnt vmcnt(0)\ns_branch mega_next")
    else: a("s_endpgm")

def gen_AB(a):
    a(f"""
    s_cmp_ge_u32 s2, {NMAIN}
    s_cbranch_scc1 ab_other
    v_lshrrev_b32 v3, 6, v0
    v_and_b32 v1, 63, v0
    s_and_b32 s6, s2, 7
    s_lshr_b32 s7, s2, 3
    v_readfirstlane_b32 s26, v3              ; wave
    v_lshlrev_b32 v4, 2, v0
    v_add_u32 v4, {CNT}, v4
    v_mov_b32 v5, 0
    v_cmp_gt_u32 vcc, 8, v0
    s_and_saveexec_b64 s[54:55], vcc
    ds_write_b32 v4, v5
    s_mov_b64 exec, s[54:55]
    s_lshl_b32 s29, s6, 6
    s_lshl_b32 s30, s7, 1
    s_add_u32 s29, s29, s30
    s_waitcnt lgkmcnt(0)
    s_barrier
    s_cmp_lt_u32 s26, 4
    s_cbranch_scc1 kwaves
    """)
    gen_pwaves(a)
    gen_kwaves(a)
    if not MEGA:
        a("ab_other:\ns_endpgm")
        a.l.append(idx_table())

if __name__ == "__main__":
    ks = [("convab_kernel", gen_AB, 128, AB_GRID, 512, AB_LDS),
          ("gemm1_kernel", gen_C, 176, C_GRID, 512, C_LDS),
          ("gemm2_kernel", gen_D, 128, D_GRID, 512, D_LDS)]
    s = build(ks)
    path = sys.argv[1] if len(sys.argv) > 1 else "out.s"
    open(path, "w").write(s)
    print("wrote", path, len(s))
```

```python
import sys, os
os.environ["MODP"] = "1"
import g3
from g3 import *
import g3b
from g3b import gen_C, gen_D, C_GRID, C_LDS, D_GRID, D_LDS, KCP, KCHL

NMAIN, NW1 = 256, 43
TCH = 57 * TROW
H_OFF = 2 * KCHL
HCH = 4608
XR_OFF = H_OFF + 2 * HCH
RED_OFF = XR_OFF + 8192
LNT = 62016
KC2 = LNT + 4 * 2560
KCS = 776 * 4
MODS = KC2 + 2 * KCS
STP = MODS + 16 * 80
FLG = STP + 256
CNT = FLG + 16
NW1 = 86
IMG = 80128
RED2 = IMG + 16384
GOE = RED2 + 2304
AB_LDS = GOE + 16
assert CNT + 32 <= IMG
AB_GRID = NMAIN
XBS = 8192
WS_MODP = 0x10000
WS_CNT = 0x28000
WS_B1 = WS_CNT + 192 * 128
WS_GO = 0x20000
WS_XB = WS_XT
SET = int(os.environ.get("STAMPSET", 0))
PPRIO = int(os.environ.get("PPRIO", 1))
X2SC = os.environ.get("X2SC", " sc1" if os.environ.get("MEGA") == "1" else "")
X2W = bool(os.environ.get("X2W")) or os.environ.get("MEGA") == "1"
W1SC = os.environ.get("W1SC", " sc1")
KP0 = int(os.environ.get("KP0", 3))
KP1 = int(os.environ.get("KP1", 0))
MEGA = os.environ.get("MEGA") == "1"
SPIN_MAX = 0x20000

def lds_arrive(a, k, v):
    a(f"""
    v_mov_b32 v{v}, {CNT + 4*k}
    v_mov_b32 v{v+1}, 1
    s_mov_b64 exec, 1
    ds_add_u32 v{v}, v{v+1}
    s_mov_b64 exec, -1
    """)
def lds_wait(a, k, n, v, tag, slp=1):
    a(f"""
    v_mov_b32 v{v}, {CNT + 4*k}
    lw_{tag}:
    ds_read_b32 v{v+1}, v{v}
    s_waitcnt lgkmcnt(0)
    v_readfirstlane_b32 s62, v{v+1}
    s_cmp_ge_u32 s62, {n}
    s_cbranch_scc1 lw_{tag}_done
    s_sleep {slp}
    s_branch lw_{tag}
    lw_{tag}_done:
    """)

def h_addr(a, toff):
    a(f"""
    v_add_u32 v11, {toff}, v0
    v_lshrrev_b32 v12, 1, v11                ; block
    v_and_b32 v10, 1, v11                    ; ch
    v_lshlrev_b32 v4, 13, v12
    v_lshl_add_u32 v4, v10, 4, v4
    s_lshl_b32 s38, s29, 4
    s_add_u32 s38, s38, {WS_XB}
    v_add_u32 v4, s38, v4
    v_lshlrev_b32 v5, 5, v12
    v_add_u32 v5, {WS_ST1}, v5               ; statistics
    s_lshr_b32 s38, s29, 4
    s_lshl_b32 s38, s38, 7
    s_and_b32 s39, s29, 15
    s_lshl_b32 s39, s39, 2
    s_add_u32 s38, s38, s39
    s_add_u32 s38, s38, {WS_MODP}
    v_lshl_add_u32 v6, v10, 2, s38
    v_mul_u32_u24 v7, {HCH}, v10
    v_lshl_add_u32 v7, v12, 4, v7
    v_add_u32 v7, {H_OFF + 512}, v7          ; h (LDS)
    v_lshlrev_b32 v8, 12, v10
    v_lshl_add_u32 v8, v12, 4, v8
    v_add_u32 v8, {XR_OFF}, v8
    v_lshlrev_b32 v9, 2, v10
    v_add_u32 v9, {MODS}, v9
    v_add_u32 v13, 4096, v6
    v_add_u32 v14, 4096, v13
    """)
def h_body(a, extra=None, nextra=0):
    a(f"""
    global_load_dwordx4 v[64:67], v4, s[22:23] sc1
    global_load_dwordx4 v[68:71], v5, s[22:23] sc1
    global_load_dwordx4 v[72:75], v5, s[22:23] offset:16 sc1
    global_load_dword v76, v6, s[22:23] sc1
    global_load_dword v77, v13, s[22:23] sc1
    global_load_dword v78, v14, s[22:23] sc1
    """)
    if extra: extra()
    a(f"""
    s_waitcnt vmcnt({5 + nextra})
    ds_write_b128 v8, v[64:67]
    """)
    for e in range(8):
        src = 64 + e // 2
        a(f"v_lshlrev_b32 v{80+e}, 16, v{src}" if e % 2 == 0 else f"v_and_b32 v{80+e}, 0xffff0000, v{src}")
    a(f"s_waitcnt vmcnt({3 + nextra})")
    for e in range(8):
        a(f"v_lshlrev_b32 v{12+(e%4)}, 16, v{68+e}")
        a(f"v_and_b32 v{68+e}, 0xffff0000, v{68+e}")
        a(f"v_fma_f32 v{80+e}, v{80+e}, v{12+(e%4)}, v{68+e}")
    a(f"""
    s_waitcnt vmcnt({nextra})
    v_add_f32 v77, 1.0, v77
    v_cvt_pk_bf16_f32 v77, v77, v77
    ds_write_b32 v9, v78                     ; ga
    v_lshlrev_b32 v77, 16, v77               ; gamma
    """)
    for e in range(8): a(f"v_fma_f32 v{80+e}, v{80+e}, v77, v76")
    for p in range(4): a(f"v_cvt_pk_bf16_f32 v{88+p}, v{80+2*p}, v{81+2*p}")
    a("ds_write_b128 v7, v[88:91]")
    a("s_waitcnt lgkmcnt(0)")

IDX0 = 62428
def idx_table():
    import numpy as np
    def bf16_round_int(l):
        u = int(np.float32(l).view(np.uint32))
        r = (u + 0x7FFF + ((u >> 16) & 1)) >> 16
        return r
    rows = []
    for t in range(256):
        vals = []
        for e in range(12):
            l = 2047 - 8 * t - e
            if e == 11: vals.append(0); continue
            if l < 0: idx = 768
            elif l < 128: idx = l
            else: idx = bf16_round_int(l) - 0x4300 + 128
            vals.append(4 * idx + KC2 - IDX0)
        rows.append(vals)
    out = ".p2align 4\n.type kidx_table,@object\nkidx_table:\n"
    for r in rows: out += "    .short " + ", ".join(str(v) for v in r) + "\n"
    out += ".size kidx_table, 6144\n"
    return out
def idx_load(a, tag, d):
    a(f"""
    s_getpc_b64 s[56:57]
    idx_pc_{tag}:
    s_add_u32 s56, s56, kidx_table-idx_pc_{tag}
    s_addc_u32 s57, s57, 0
    v_mul_u32_u24 v{d+6}, 24, v0
    global_load_dwordx4 v[{d}:{d+3}], v{d+6}, s[56:57]
    global_load_dwordx2 v[{d+4}:{d+5}], v{d+6}, s[56:57] offset:16
    """)
def idx_unpack(a, d, o):
    for e in range(11):
        a(f"v_and_b32 v{o+e}, 0xffff, v{d+e//2}" if e % 2 == 0 else f"v_lshrrev_b32 v{o+e}, 16, v{d+e//2}")

def gen_kwaves(a):
    VA, VB, VY = 32, 64, 96
    a(f"""
    kwaves:
    s_setprio {KP0}
    s_load_dwordx4 s[8:11], s[0:1], 8
    s_load_dwordx4 s[12:15], s[0:1], 24
    s_load_dwordx4 s[16:19], s[0:1], 40
    s_load_dwordx4 s[40:43], s[0:1], 56
    s_load_dwordx4 s[20:23], s[0:1], 136
    s_lshr_b32 s27, s26, 1                   ; ch
    s_and_b32 s28, s26, 1                    ; hf
    s_add_u32 s30, s29, s27                  ; d
    s_lshl_b32 s34, s30, 8
    s_lshl_b32 s35, s28, 7
    s_add_u32 s34, s34, s35
    v_lshl_add_u32 v36, v1, 1, s34
    s_lshl_b32 s35, s29, 1
    s_waitcnt lgkmcnt(0)
    """)
    if SET in (0, 3): a.stamp(0)
    a(f"""
    s_cmp_eq_u32 s2, 0
    s_cselect_b32 s62, s26, 0
    s_cmp_eq_u32 s62, 3
    s_cbranch_scc0 k_nozero
    v_lshlrev_b32 v60, 7, v1
    v_add_u32 v60, {WS_B1}, v60
    v_mov_b32 v62, 0
    v_mov_b32 v63, 0
    v_mov_b32 v64, 0
    v_mov_b32 v65, 0
    global_store_dwordx4 v60, v[62:65], s[22:23] sc1
    v_add_u32 v60, 8192, v60
    global_store_dwordx4 v60, v[62:65], s[22:23] sc1
    k_nozero:
    """)
    for i, sp in enumerate((8, 10, 12, 14, 16, 18)):
        a(f"global_load_ushort v{40+i}, v36, s[{sp}:{sp+1}]")
    a("s_load_dword s24, s[40:41], s35\ns_load_dword s25, s[42:43], s35")
    idx_load(a, "k", 104)
    a(f"s_setprio {KP1}")
    if SET == 3: a.stamp(1)
    a(f"""
    s_waitcnt lgkmcnt(0)
    s_lshl_b32 s36, s27, 4
    s_lshr_b32 s24, s24, s36
    s_lshl_b32 s24, s24, 16                  ; log_dt[d]
    s_lshr_b32 s25, s25, s36
    s_lshl_b32 s25, s25, 16                  ; Dskip[d]
    v_mov_b32 v5, s24
    v_mul_f32 v6, 0x3fb8aa3b, v5
    s_mov_b32 s36, 0x3fb8aa3b
    v_fma_f32 v7, v5, s36, -v6
    v_fmac_f32 v7, 0x32a5705f, v5
    v_exp_f32 v6, v6
    v_mul_f32 v7, {fx(0.6931471805599453)}, v7
    v_fmac_f32 v6, v6, v7
    v_cvt_pk_bf16_f32 v6, v6, v6
    v_lshlrev_b32 v6, 16, v6                 ; dt
    s_mul_i32 s36, s27, {TCH}
    s_lshl_b32 s37, s28, 8
    s_add_u32 s36, s36, s37
    v_lshl_add_u32 v2, v1, 2, s36
    v_mov_b32 v4, 0
    v_mov_b32 v5, {KC2 + 768*4}
    ds_write_b32 v5, v4
    ds_write_b32 v5, v4 offset:{KCS}
    s_waitcnt vmcnt(6)
    v_lshlrev_b32 v40, 16, v40
    v_lshlrev_b32 v41, 16, v41
    v_mul_f32 v10, v6, v40
    v_mul_f32 v11, v6, v41
    v_mul_f32 v10, 0x3fb8aa3b, v10
    v_mul_f32 v11, {fx(0.15915494309189535)}, v11
    """)
    if SET == 0: a.stamp(1)
    if SET == 3: a.stamp(2)
    def direct(dst, l, t):
        a(f"""
        v_mul_f32 v{t}, {fx(float(l))}, v10
        v_mul_f32 v{t+1}, {fx(float(l))}, v11
        v_exp_f32 v{t}, v{t}
        v_fract_f32 v{t+1}, v{t+1}
        v_cos_f32 v{dst}, v{t+1}
        v_sin_f32 v{dst+1}, v{t+1}
        s_nop 0
        v_mul_f32 v{dst}, v{t}, v{dst}
        v_mul_f32 v{dst+1}, v{t}, v{dst+1}
        """)
    tmpw = [0]
    def wr(row, src, neg=False):
        tmp = 62 + (tmpw[0] % 2); tmpw[0] += 1
        a(f"v_cvt_pk_bf16_f32 v{tmp}, v{src}, {'-' if neg else ''}v{src+1}")
        a(f"ds_write_b32 v2, v{tmp} offset:{row*TROW}")
    E = [None, 64, 66, 68, 70, 72, 74, 76]
    E8, E128, X, Y2, Q, R = 78, 80, 82, 84, 86, 88
    S = [12, 14, 16, 18]
    T0, T1, T2 = 28, 30, 32
    direct(E[1], 1, 28); direct(E128, 128, 30)
    a("""
    s_waitcnt vmcnt(2)
    v_lshlrev_b32 v42, 16, v42
    v_lshlrev_b32 v43, 16, v43
    v_lshlrev_b32 v44, 16, v44
    v_lshlrev_b32 v45, 16, v45
    v_mul_f32 v42, v6, v42
    v_mul_f32 v43, v6, v43
    s_cmp_eq_u32 s2, 0
    s_cselect_b32 s62, s26, 0
    s_cmp_eq_u32 s62, 3
    s_cbranch_scc0 k_noflag
    v_lshlrev_b32 v60, 6, v1
    v_add_u32 v60, 4, v60
    v_mov_b32 v61, 1
    s_mov_b64 exec, 15
    global_atomic_add v60, v61, s[20:21] sc1
    s_mov_b64 exec, -1
    k_noflag:
    """)
    cmul(a, Q, 44, 42, T2)
    a("v_mov_b32 v62, 0x3f80\nds_write_b32 v2, v62 offset:0"); tmpw[0] = 1
    cmul(a, E[2], E[1], E[1], T0); cmul(a, X, E128, E128, T1)
    wr(1, E[1]); wr(8, E128); wr(QROW, Q, True)
    cmul(a, E[4], E[2], E[2], T0); cmul(a, E[3], E[2], E[1], T1); cmul(a, R, X, X, T2)
    wr(2, E[2]); wr(16, X)
    cmul(a, E8, E[4], E[4], T0); cmul(a, E[5], E[4], E[1], T1); cmul(a, E[6], E[3], E[3], T2)
    wr(3, E[3]); wr(4, E[4]); wr(24, R)
    cmul(a, E[7], E[4], E[3], T0); cmul(a, Y2, R, E[4], T1)
    cmul(a, S[1], X, E[2], T2); cmul(a, S[2], X, E[4], T0); cmul(a, S[3], X, E[6], T1)
    wr(5, E[5]); wr(6, E[6]); wr(7, E[7]); wr(25, Y2)
    cmul(a, S[0], X, E128, T2)
    a(f"v_mov_b64 v[{X}:{X+1}], v[{R}:{R+1}]")
    cmul(a, R, R, R, T0)
    wr(17, S[1]); wr(18, S[2]); wr(19, S[3]); wr(20, S[0])
    for r in range(1, 4): cmul(a, S[r], S[r], E128, (T0, T1, T2)[r % 3])
    for r in range(1, 4): wr(20 + r, S[r])
    wr(32, R)
    Z = S[0]
    for i in range(1, 16):
        cmul(a, Q, Q, E8, T0)
        if i <= 8: cmul(a, R, R, E128, T1)
        if i <= 7: cmul(a, Z, E128, E[i], T2)
        if i <= 3:
            cmul(a, X, X, E128, 34); cmul(a, Y2, Y2, E128, 36)
        wr(QROW + i, Q, True)
        if i <= 8: wr(32 + i, R)
        if i <= 7: wr(8 + i, Z)
        if i <= 3:
            wr(24 + 2 * i, X); wr(25 + 2 * i, Y2)
    a(f"""
    v_and_b32 v4, 15, v0
    v_bfe_u32 v5, v0, 4, 2
    v_lshlrev_b32 v7, 4, v5
    v_mul_u32_u24 v8, {TROW}, v4
    v_add_u32 v8, v8, v7
    s_mul_i32 s36, s27, {TCH}
    v_add_u32 v8, s36, v8
    v_add_u32 v9, {QROW*TROW}, v8            ; B address
    s_mul_i32 s37, s28, {32*TROW}
    v_add_u32 v12, s37, v8
    s_mul_i32 s37, s28, {16*TROW}
    s_add_u32 s37, s37, {16*TROW}
    v_add_u32 v13, s37, v8
    """)
    for r in range(20, 36): a(f"v_mov_b32 v{r}, 0")
    a(f"""
    s_mul_i32 s36, s27, {KCS}
    s_add_u32 s36, s36, {KC2}
    s_cmp_eq_u32 s28, 1
    s_cbranch_scc1 k_t2
    v_and_b32 v7, 1, v5
    v_lshlrev_b32 v7, 2, v7
    v_lshrrev_b32 v14, 1, v5
    v_lshl_add_u32 v7, v14, 7, v7
    v_lshl_add_u32 v7, v4, 3, v7
    v_lshl_add_u32 v14, v7, 2, s36
    v_add_u32 v15, 4, v14
    v_add_u32 v16, 8, v14
    v_add_u32 v17, 12, v14
    v_cmp_gt_u32 vcc, 2, v5
    v_lshlrev_b32 v7, 6, v5
    v_add_u32 v7, 256, v7
    v_lshlrev_b32 v40, 2, v4
    v_lshlrev_b32 v41, 1, v4
    v_cndmask_b32 v40, v41, v40, vcc
    v_add_u32 v7, v7, v40
    v_lshl_add_u32 v40, v7, 2, s36
    v_add_u32 v41, 4, v40
    v_mov_b32 v42, 128
    v_cndmask_b32 v42, v42, 8, vcc
    v_add_u32 v42, v40, v42
    v_add_u32 v43, 4, v42
    s_branch k_addr
    k_t2:
    v_lshl_add_u32 v7, v5, 6, v4
    v_lshl_add_u32 v14, v7, 2, s36
    v_add_u32 v14, {512*4}, v14
    v_add_u32 v15, 64, v14
    v_add_u32 v16, 128, v14
    v_add_u32 v17, 192, v14
    v_mov_b32 v40, v14
    v_mov_b32 v41, v15
    v_mov_b32 v42, v16
    v_mov_b32 v43, v17
    k_addr:
    v_cmp_eq_u32 vcc, 0, v1
    s_cmp_eq_u32 s28, 0
    s_cselect_b32 s25, s25, 0
    v_mov_b32 v7, s25
    v_cndmask_b32 v7, 0, v7, vcc
    s_waitcnt lgkmcnt(0)
    """)
    a("s_waitcnt vmcnt(0)")
    idx_unpack(a, 104, 112)
    if SET == 0: a.stamp(2)
    if SET == 3: a.stamp(3)
    lds_arrive(a, 2, 38); lds_wait(a, 2, 4, 38, "k1")
    def rd(s):
        o = 64 + 12 * (s % 4)
        a(f"ds_read_b128 v[{o}:{o+3}], v9 offset:{64*s}")
        a(f"ds_read_b128 v[{o+4}:{o+7}], v12 offset:{64*s}")
        a(f"ds_read_b128 v[{o+8}:{o+11}], v13 offset:{64*s}")
    for s in range(4): rd(s)
    for s in range(8):
        o = 64 + 12 * (s % 4); p = s % 2
        a(f"s_waitcnt lgkmcnt({9 if s < 5 else 3*(7-s)})")
        a(f"v_mfma_f32_16x16x32_bf16 v[{20+8*p}:{23+8*p}], v[{o+4}:{o+7}], v[{o}:{o+3}], v[{20+8*p}:{23+8*p}]")
        a(f"v_mfma_f32_16x16x32_bf16 v[{24+8*p}:{27+8*p}], v[{o+8}:{o+11}], v[{o}:{o+3}], v[{24+8*p}:{27+8*p}]")
        if s < 4: rd(s + 4)
    a("s_nop 7")
    for r in range(8): a(f"v_add_f32 v{20+r}, v{20+r}, v{28+r}")
    a(f"""
    v_add_f32 v20, v20, v7
    ds_write_b32 v14, v20
    ds_write_b32 v15, v21
    ds_write_b32 v16, v22
    ds_write_b32 v17, v23
    ds_write_b32 v40, v24
    ds_write_b32 v41, v25
    ds_write_b32 v42, v26
    ds_write_b32 v43, v27
    """)
    lds_arrive(a, 3, 38); lds_wait(a, 3, 4, 38, "k2")
    if SET == 0: a.stamp(3)
    for ch in range(2):
        for e in range(11): a(f"ds_read_b32 v{64+12*ch+e}, v{112+e} offset:{IDX0 + ch*KCS}")
    a(f"""
    v_lshlrev_b32 v4, 4, v0                  ; tid*16
    v_mov_b32 v56, 0
    v_mov_b32 v57, 0
    v_mov_b32 v58, 0
    v_mov_b32 v59, 0
    v_lshrrev_b32 v60, 1, v0
    v_mul_u32_u24 v60, {KCP}, v60
    v_and_b32 v61, 1, v0
    v_lshl_add_u32 v60, v61, 4, v60
    v_add_u32 v60, 4096, v60
    v_bfe_u32 v61, v0, 5, 1
    v_mul_u32_u24 v61, {HCH}, v61
    v_and_b32 v62, 31, v0
    v_lshl_add_u32 v61, v62, 4, v61
    v_add_u32 v61, {H_OFF}, v61
    v_cmp_gt_u32 vcc, 16, v0
    s_cmp_eq_u32 s26, 1
    s_cbranch_scc1 k_padh
    s_cmp_eq_u32 s26, 0
    s_cbranch_scc0 k_pad_done
    s_and_saveexec_b64 s[54:55], vcc
    ds_write_b128 v60, v[56:59]
    s_mov_b64 exec, s[54:55]
    s_branch k_pad_done
    k_padh:
    ds_write_b128 v61, v[56:59]
    k_pad_done:
    s_waitcnt lgkmcnt(0)
    """)
    for ch in range(2):
        for c in range(4):
            o = 96 + 4 * (c % 2)
            for k in range(4): a(f"v_cvt_pk_bf16_f32 v{o+k}, v{64+12*ch+c+2*k}, v{64+12*ch+c+2*k+1}")
            a(f"ds_write_b128 v4, v[{o}:{o+3}] offset:{ch*KCHL + c*KCP}")
    a(f"""
    v_and_b32 v7, 15, v1
    v_lshrrev_b32 v2, 4, v1
    v_sub_u32 v60, 3, v7
    v_and_b32 v60, 3, v60
    v_mul_u32_u24 v61, {KCP - 2}, v60
    v_lshlrev_b32 v62, 1, v7
    v_sub_u32 v61, v61, v62
    v_lshl_add_u32 v61, v2, 4, v61
    s_mul_i32 s38, s27, {KCHL}
    s_lshl_b32 s39, s28, 8
    s_sub_u32 s38, s38, s39
    s_add_u32 s38, s38, {2*(2031 - 32*59)}
    v_add_u32 v20, s38, v61                  ; A base
    v_lshlrev_b32 v21, 5, v7
    v_lshl_add_u32 v21, v2, 4, v21
    s_mul_i32 s38, s27, {HCH}
    s_sub_u32 s38, s38, s39
    s_add_u32 s38, s38, {H_OFF + 2*(240 - 96)}
    v_add_u32 v21, s38, v21                  ; B base
    v_lshlrev_b32 v22, 5, v7
    v_lshl_add_u32 v22, v2, 3, v22
    s_lshl_b32 s38, s27, 12
    s_lshl_b32 s39, s28, 11
    s_add_u32 s38, s38, s39
    s_add_u32 s38, s38, {XR_OFF}
    v_add_u32 v23, s38, v22
    s_lshl_b32 s38, s30, 12
    s_lshl_b32 s39, s28, 11
    s_add_u32 s38, s38, s39
    s_add_u32 s38, s38, {WS_X2T}
    s_add_u32 s50, s22, s38
    s_addc_u32 s51, s23, 0
    s_lshl_b32 s43, s26, 12
    s_add_u32 s43, s43, {RED_OFF}
    v_lshlrev_b32 v24, 4, v1
    v_add_u32 v25, s43, v24
    s_xor_b32 s43, s26, 1
    s_lshl_b32 s43, s43, 12
    s_add_u32 s43, s43, {RED_OFF}
    v_add_u32 v26, s43, v24
    s_lshl_b32 s43, s27, 2
    s_add_u32 s43, s43, {MODS}
    v_mov_b32 v27, s43
    s_lshl_b32 s43, s26, 2
    s_add_u32 s43, s43, {FLG}
    v_mov_b32 v29, s43
    s_xor_b32 s43, s43, 4
    v_mov_b32 v30, s43
    v_mov_b32 v31, 0
    ds_write_b32 v29, v31
    v_lshlrev_b32 v24, 5, v7
    v_lshrrev_b32 v60, 1, v2
    v_lshl_add_u32 v24, v60, 4, v24
    v_and_b32 v60, 1, v2
    v_lshl_add_u32 v24, v60, 9, v24
    """)
    for t in range(8):
        for r in range(4): a(f"v_mov_b32 v{VY+4*t+r}, 0")
    lds_arrive(a, 5, 36);
    h_addr(a, 0)
    lds_wait(a, 5, 4, 36, "k3")
    T = LdsTracker(a)
    def ldA(p, r):
        off = 512 * (7 - p) + 64 * (3 - r)
        T.issue(f"ds_read_b64 v[{VA+4*p}:{VA+4*p+1}], v20 offset:{off}", [f"A{p}"])
        T.issue(f"ds_read_b64 v[{VA+4*p+2}:{VA+4*p+3}], v20 offset:{off+8}", [f"A{p}"])
    def ldB(k, r):
        off = 512 * k + 64 * (3 - r)
        T.issue(f"ds_read_b128 v[{VB+4*k}:{VB+4*k+3}], v21 offset:{off}", [f"B{k}"])
    for p in range(8): ldA(p, 0)
    if SET == 0: a.stamp(4)
    a("s_cmp_eq_u32 s26, 0\ns_cbranch_scc0 k_waitrel")
    lds_wait(a, 6, 1, 16, "k6", 1)
    a(f"""
    s_lshr_b32 s34, s2, 3
    s_and_b32 s34, s34, 15
    s_lshl_b32 s34, s34, 7
    s_add_u32 s34, s34, {WS_B1}
    v_and_b32 v80, 7, v1
    v_lshl_add_u32 v80, v80, 11, s34         ; shard (lane) of replica (id>>3)&15
    v_mov_b32 v81, 0
    s_mov_b32 s60, 0
    k_poll:
    s_mov_b64 exec, 0xff
    global_atomic_add v82, v80, v81, s[20:21+2] sc0 sc1
    s_waitcnt vmcnt(0)
    v_cmp_ne_u32 vcc, 32, v82
    s_mov_b64 exec, -1
    s_cbranch_vccz k_go
    s_add_u32 s60, s60, 1
    s_sleep 1
    s_cmp_lt_u32 s60, {SPIN_MAX}
    s_cbranch_scc1 k_poll
    k_go:
    """.replace("s[20:21+2]", "s[22:23]"))
    lds_arrive(a, 4, 16)
    a("k_waitrel:")
    lds_wait(a, 4, 1, 16, "k4", 1)
    T.done = T.issued
    h_body(a)
    a("s_barrier")
    if int(os.environ.get("KPRIO", 0)): a(f"s_setprio {os.environ['KPRIO']}")
    if SET == 0: a.stamp(5)
    for k in range(7, -1, -1): ldB(k, 0)
    T.issue("ds_read_b32 v28, v27", ["ga"])
    for r in range(4):
        for p in range(8):
            for t in range(7, p - 1, -1):
                k = t - p
                T.need([f"A{p}", f"B{k}"])
                a(f"v_mfma_f32_16x16x32_bf16 v[{VY+4*t}:{VY+4*t+3}], v[{VA+4*p}:{VA+4*p+3}], v[{VB+4*k}:{VB+4*k+3}], v[{VY+4*t}:{VY+4*t+3}]")
                if t == 7 and r < 3: ldB(7 - p, r + 1)
            if r < 3: ldA(p, r + 1)
            if r == 3 and p == 4:
                for i in range(4): T.issue(f"ds_read_b64 v[{4+2*i}:{5+2*i}], v23 offset:{512*i}", ["xr"])
    T.need(["xr", "ga"])
    for i in range(4):
        a(f"v_lshlrev_b32 v{32+4*i}, 16, v{4+2*i}")
        a(f"v_and_b32 v{33+4*i}, 0xffff0000, v{4+2*i}")
        a(f"v_lshlrev_b32 v{34+4*i}, 16, v{5+2*i}")
        a(f"v_and_b32 v{35+4*i}, 0xffff0000, v{5+2*i}")
    a("s_cmp_eq_u32 s28, 1\ns_cbranch_scc1 k_hf1")
    def tail(hf):
        keep, send = 4 * hf, 4 * (1 - hf)
        for i in range(4):
            t = send + i
            a(f"ds_write_b128 v25, v[{VY+4*t}:{VY+4*t+3}] offset:{1024*i}")
        a("v_mov_b32 v31, 1\nds_write_b32 v29, v31")
        for i in range(4):
            for r in range(4): a(f"v_fma_f32 v{32+4*i+r}, v28, v{VY+4*(keep+i)+r}, v{32+4*i+r}")
        a(f"""
        k_hs{hf}:
        ds_read_b32 v31, v30
        s_waitcnt lgkmcnt(0)
        v_readfirstlane_b32 s43, v31
        s_cmp_eq_u32 s43, 1
        s_cbranch_scc0 k_hs{hf}
        """)
        for i in range(4): a(f"ds_read_b128 v[{64+4*i}:{67+4*i}], v26 offset:{1024*i}")
        for i in range(4):
            a(f"s_waitcnt lgkmcnt({3-i})")
            for r in range(4): a(f"v_fma_f32 v{32+4*i+r}, v28, v{64+4*i+r}, v{32+4*i+r}")
            a(f"v_cvt_pk_bf16_f32 v{12+2*i}, v{32+4*i}, v{33+4*i}")
            a(f"v_cvt_pk_bf16_f32 v{13+2*i}, v{34+4*i}, v{35+4*i}")
            if not X2W:
                a(f"global_store_dwordx2 v22, v[{12+2*i}:{13+2*i}], s[50:51] offset:{512*i}{X2SC}")
            elif i % 2 == 1:
                o = 12 + 2 * (i - 1)
                a("s_nop 1")
                a(f"v_permlane16_swap_b32 v{o}, v{o+2}")
                a(f"v_permlane16_swap_b32 v{o+1}, v{o+3}")
                a(f"global_store_dwordx4 v24, v[{o}:{o+3}], s[50:51] offset:{512*(i-1)}{X2SC}")
        a("s_waitcnt vmcnt(0)\ns_branch mega_next" if MEGA else "s_endpgm")
    tail(0)
    a("k_hf1:")
    tail(1)

NGO = int(os.environ.get('NGO', 32))
NSH = 4
def go_addr(a, o):
    a(f"""
    v_and_b32 v92, {NGO-1}, v1
    v_lshlrev_b32 v92, 7, v92
    s_and_b32 s34, s2, {NSH-1}
    s_lshl_b32 s34, s34, 2
    s_add_u32 s34, s34, {WS_GO}
    v_add_u32 v92, s34, v92
    s_lshr_b32 s34, s2, 2
    s_and_b32 s34, s34, {NGO-1}
    s_lshl_b32 s34, s34, 7
    s_add_u32 s34, s34, {WS_GO}
    v_and_b32 v94, 1, v1
    v_lshl_add_u32 v94, v94, 3, s34
    v_mov_b32 v{o+2}, 0
    v_mov_b32 v{o+3}, 0
    """)
def go_load(a, o):
    a(f"""
    s_mov_b64 exec, 3
    global_atomic_add_x2 v[{o}:{o+1}], v94, v[{o+2}:{o+3}], s[22:23] sc0 sc1
    s_mov_b64 exec, -1
    """)
def grid_arrive(a, tag, t):
    assert AB_GRID % 2 == 0
    n = [len(range(k, AB_GRID, NSH)) for k in range(NSH)]
    assert n[0] == n[-1] and n[0] & (n[0] - 1) == 0
    BUMP = f"s_mov_b32 exec_hi, 0\n    s_mov_b32 exec_lo, {hex((1 << NGO) - 1)}\n    global_atomic_add v92, v{t+1}, s[22:23] sc1"
    a(f"""
    s_and_b32 s34, s2, {NSH-1}
    s_lshl_b32 s36, s34, 6
    v_mov_b32 v{t}, s36
    v_mov_b32 v{t+1}, 1
    s_mov_b64 exec, 1
    global_atomic_add v{t+2}, v{t}, v{t+1}, s[20:21] sc0 sc1
    s_waitcnt vmcnt(0)
    v_readfirstlane_b32 s36, v{t+2}
    s_mov_b64 exec, -1
    s_and_b32 s36, s36, {n[0] - 1}
    s_cmp_eq_u32 s36, {n[0] - 1}
    s_cbranch_scc0 {tag}_arrived
    {BUMP}
    s_mov_b64 exec, -1
    {tag}_arrived:
    """)
def grid_wait(a, tag, t, o, slp=1, nmax=None):
    n = [len(range(k, AB_GRID, NSH)) for k in range(NSH)]
    cut = AB_GRID % NSH
    a(f"""
    s_mov_b32 s60, 0
    {tag}_poll_loop:
    s_mov_b64 exec, 3
    global_atomic_add_x2 v[{t}:{t+1}], v94, v[{o+2}:{o+3}], s[22:23] sc0 sc1
    s_waitcnt vmcnt(0)
    v_cmp_eq_u32 vcc, v{t}, v{o}
    v_cmp_eq_u32 s[58:59], v{t+1}, v{o+1}
    s_mov_b64 exec, -1
    s_or_b64 vcc, vcc, s[58:59]
    s_cbranch_scc0 {tag}_go
    s_add_u32 s60, s60, 1
    s_and_b32 s61, s60, 31
    s_cbranch_scc1 {tag}_next
    v_and_b32 v{t}, {NSH-1}, v1
    v_lshlrev_b32 v{t+1}, 6, v{t}
    s_mov_b64 exec, {(1 << NSH) - 1}
    global_atomic_add v{t+2}, v{t+1}, v{o+2}, s[20:21] sc0 sc1
    s_waitcnt vmcnt(0)
    v_cmp_ne_u32 vcc, {n[0]}, v{t+2}
    s_mov_b64 exec, -1
    s_cbranch_vccz {tag}_go
    {tag}_next:
    s_sleep {slp}
    s_cmp_lt_u32 s60, {nmax or SPIN_MAX}
    s_cbranch_scc1 {tag}_poll_loop
    {tag}_go:
    """)

def gen_pwaves(a):
    a(f"""
    pwaves:
    s_load_dwordx2 s[4:5], s[0:1], 0         ; x
    s_load_dwordx4 s[44:47], s[0:1], 112     ; c, w_mod
    s_load_dwordx4 s[20:23], s[0:1], 136
    s_load_dwordx4 s[8:11], s[0:1], 80       ; w1, b1
    s_load_dwordx2 s[48:49], s[0:1], 96
    s_setprio {PPRIO}
    v_subrev_u32 v0, 256, v0
    s_sub_u32 s26, s26, 4
    v_lshrrev_b32 v3, 6, v0
    v_lshrrev_b32 v8, 4, v1                  ; row (0..3)
    v_and_b32 v9, 15, v1                     ; 16 B chunk
    v_lshlrev_b32 v4, 10, v8
    v_lshl_add_u32 v4, v9, 4, v4
    v_lshl_add_u32 v4, v3, 8, v4
    s_lshl_b32 s31, s2, 13
    v_add_u32 v4, s31, v4
    v_add_u32 v44, 4096, v4
    s_min_u32 s32, s7, 23
    s_mul_i32 s33, s6, 24
    s_add_u32 s33, s33, s32
    v_lshrrev_b32 v5, 1, v0                  ; rg
    v_and_b32 v6, 1, v0                      ; cc
    v_mul_u32_u24 v7, {4*6144}, v5
    v_lshl_add_u32 v7, v6, 4, v7
    s_lshl_b32 s34, s33, 5
    v_add_u32 v7, s34, v7
    v_lshlrev_b32 v2, 3, v5                  ; c offset
    """)
    a(f"""
    s_and_b32 s34, s2, 3
    s_lshl_b32 s34, s34, 6
    s_add_u32 s34, s34, 4
    v_mov_b32 v94, s34
    v_mov_b32 v95, 0
    s_and_b32 s34, s2, 7
    s_lshl_b32 s34, s34, 11
    s_add_u32 s34, s34, {WS_B1}
    v_and_b32 v92, 15, v1
    v_lshl_add_u32 v92, v92, 7, s34
    v_mov_b32 v93, 1
    """)
    a("s_waitcnt lgkmcnt(0)")
    if SET == 1: a.stamp(0)
    a(f"""
    global_load_dwordx4 v[8:11], v4, s[4:5]
    global_load_dwordx4 v[12:15], v44, s[4:5]
    global_load_dwordx2 v[16:17], v2, s[44:45]
    """)
    for i in range(4):
        if i: a("v_add_u32 v7, 6144, v7")
        a(f"global_load_dwordx4 v[{20+4*i}:{23+4*i}], v7, s[46:47]")
    a(f"""
    v_mov_b32 v38, 0x3f803f80
    v_lshrrev_b32 v40, 4, v1
    v_mul_u32_u24 v39, 320, v40
    v_and_b32 v41, 15, v1
    v_lshl_add_u32 v39, v41, 4, v39
    s_mul_i32 s34, s26, 2560
    s_add_u32 s34, s34, {LNT}
    v_add_u32 v39, s34, v39
    v_lshrrev_b32 v47, 2, v41
    v_mul_u32_u24 v47, 320, v47
    v_and_b32 v46, 3, v41
    v_lshl_add_u32 v47, v46, 3, v47
    v_lshl_add_u32 v47, v40, 5, v47
    v_add_u32 v47, s34, v47
    v_lshl_add_u32 v46, v3, 7, v1
    v_lshlrev_b32 v46, 4, v46
    s_mul_i32 s34, s2, {XBS}
    s_add_u32 s34, s34, {WS_XB}
    v_add_u32 v46, s34, v46
    v_lshlrev_b32 v45, 3, v40
    s_lshl_b32 s34, s26, 6
    s_add_u32 s34, s34, {STP}
    v_add_u32 v45, s34, v45
    """)
    for r in range(2):
        b = 8 + 4 * r
        a(f"s_waitcnt vmcnt({6 - r})")
        a(f"ds_write_b128 v39, v[{b}:{b+3}] offset:{1280*r}")
        a(f"v_dot2_f32_bf16 v{72+2*r}, v{b}, v38, 0")
        a(f"v_dot2_f32_bf16 v{73+2*r}, v{b}, v{b}, 0")
        for k in range(1, 4):
            a(f"v_dot2_f32_bf16 v{72+2*r}, v{b+k}, v38, v{72+2*r}")
            a(f"v_dot2_f32_bf16 v{73+2*r}, v{b+k}, v{b+k}, v{73+2*r}")
    a("""
    s_waitcnt lgkmcnt(0)
    ds_read_b64_tr_b16 v[48:49], v47
    ds_read_b64_tr_b16 v[50:51], v47 offset:1280
    ds_read_b64_tr_b16 v[52:53], v47 offset:128
    ds_read_b64_tr_b16 v[54:55], v47 offset:1408
    """)
    if SET == 1: a.stamp(1)
    a("s_waitcnt vmcnt(4)")
    for i in range(4):
        src = 16 + i // 2
        a(f"v_lshlrev_b32 v{56+i}, 16, v{src}" if i % 2 == 0 else f"v_and_b32 v{56+i}, 0xffff0000, v{src}")
    for i in range(4): a(f"v_mul_f32 v{60+i}, {fx(-1.4426950408889634)}, v{56+i}")
    for i in range(4): a(f"v_exp_f32 v{60+i}, v{60+i}")
    dpps = ["row_shr:1", "row_shr:2", "row_shr:4", "row_shr:8", "row_bcast:15 row_mask:0xa", "row_bcast:31 row_mask:0xc"]
    def dpp4(d):
        m = "" if "row_mask" in d else " row_mask:0xf"
        for r in range(72, 76): a(f"v_add_f32_dpp v{r}, v{r}, v{r} {d}{m} bank_mask:0xf")
    dpp4(dpps[0])
    for i in range(4): a(f"v_add_f32 v{60+i}, 1.0, v{60+i}")
    dpp4(dpps[1])
    for i in range(4): a(f"v_rcp_f32 v{60+i}, v{60+i}")
    dpp4(dpps[2])
    for i in range(4): a(f"v_mul_f32 v{56+i}, v{56+i}, v{60+i}")
    dpp4(dpps[3])
    for i in range(4):
        a(f"v_cvt_pk_bf16_f32 v{60+i}, v{56+i}, 0")
        a(f"v_cvt_pk_bf16_f32 v{76+i}, 0, v{56+i}")
    a(f"""
    s_waitcnt lgkmcnt(0)
    global_store_dwordx4 v46, v[48:51], s[22:23] sc1
    global_store_dwordx4 v46, v[52:55], s[22:23] offset:1024 sc1
    v_cmp_eq_u32 vcc, 15, v41
    s_and_saveexec_b64 s[54:55], vcc
    ds_write_b64 v45, v[72:73]
    ds_write_b64 v45, v[74:75] offset:32
    s_mov_b64 exec, s[54:55]
    """)
    for i in range(4):
        a(f"s_waitcnt vmcnt({5 - i})")
        for m in range(4):
            c0 = "0" if i == 0 else f"v{64+2*m}"; c1 = "0" if i == 0 else f"v{65+2*m}"
            a(f"v_dot2_f32_bf16 v{64+2*m}, v{20+4*i+m}, v{60+i}, {c0}")
            a(f"v_dot2_f32_bf16 v{65+2*m}, v{20+4*i+m}, v{76+i}, {c1}")
    a("s_nop 2")
    for d in ["row_shr:2", "row_shr:4", "row_shr:8"]:
        for r in range(64, 72): a(f"v_add_f32_dpp v{r}, v{r}, v{r} {d} row_mask:0xf bank_mask:0xf")
    a(f"""
    v_lshrrev_b32 v4, 4, v0
    v_mul_u32_u24 v4, 80, v4
    v_lshl_add_u32 v4, v6, 5, v4
    v_add_u32 v4, {MODS}, v4
    v_and_b32 v5, 15, v0
    v_cmp_lt_u32 vcc, 13, v5
    v_lshlrev_b32 v5, 2, v5
    v_add_u32 v5, {MODS}, v5
    s_and_saveexec_b64 s[54:55], vcc
    ds_write_b128 v4, v[64:67]
    ds_write_b128 v4, v[68:71] offset:16
    s_mov_b64 exec, s[54:55]
    s_waitcnt lgkmcnt(0)
    """)
    if SET == 1: a.stamp(2)
    a("""
    s_cmp_eq_u32 s26, 0
    s_cbranch_scc0 p_nogo
    """)
    a("""
    s_mov_b64 exec, 1
    global_atomic_add v96, v94, v95, s[20:21] sc0 sc1
    s_mov_b64 exec, -1
    p_nogo:
    """)
    lds_arrive(a, 0, 36); lds_wait(a, 0, 4, 36, "p1")
    for i in range(16): a(f"ds_read_b32 v{20+i}, v5 offset:{80*i}")
    a(f"""
    v_and_b32 v58, 7, v0
    v_lshlrev_b32 v59, 3, v58
    v_add_u32 v59, {STP}, v59
    ds_read_b64 v[48:49], v59
    ds_read_b64 v[50:51], v59 offset:64
    ds_read_b64 v[52:53], v59 offset:128
    ds_read_b64 v[54:55], v59 offset:192
    v_lshlrev_b32 v58, 2, v58
    s_lshl_b32 s34, s2, 5
    s_add_u32 s34, s34, {WS_ST1}
    v_add_u32 v58, s34, v58
    s_waitcnt lgkmcnt(0)
    v_add_f32 v48, v48, v50
    v_add_f32 v49, v49, v51
    v_add_f32 v52, v52, v54
    v_add_f32 v53, v53, v55
    v_add_f32 v56, v48, v52
    v_add_f32 v57, v49, v53
    v_mul_f32 v56, {fx(1.0/512)}, v56        ; mean
    v_mul_f32 v57, {fx(1.0/512)}, v57
    v_fma_f32 v57, -v56, v56, v57
    v_max_f32 v57, 0, v57
    v_add_f32 v57, {fx(1e-5)}, v57
    v_rsq_f32 v57, v57
    v_cmp_gt_u32 vcc, 8, v0
    v_mul_f32 v56, -v56, v57
    v_cvt_pk_bf16_f32 v56, v57, v56          ; (r, -mean*r)
    s_and_saveexec_b64 s[54:55], vcc
    s_cbranch_execz p_nostat
    global_store_dword v58, v56, s[22:23] sc1
    p_nostat:
    s_mov_b64 exec, s[54:55]
    """)
    for st in (1, 2, 4, 8):
        for i in range(0, 16, 2 * st): a(f"v_add_f32 v{20+i}, v{20+i}, v{20+i+st}")
    a(f"""
    v_cvt_pk_bf16_f32 v20, v20, v20
    v_lshlrev_b32 v20, 16, v20
    s_lshl_b32 s34, s33, 7
    s_add_u32 s34, s34, {WS_MODP}
    v_lshlrev_b32 v4, 2, v0
    v_add_u32 v4, s34, v4
    s_cmp_lt_u32 s7, 24
    s_cselect_b32 s34, 16, 0
    v_cmp_gt_u32 vcc, s34, v0
    s_and_saveexec_b64 s[54:55], vcc
    s_cbranch_execz p_nomod
    global_store_dword v4, v20, s[22:23] sc1
    p_nomod:
    s_mov_b64 exec, s[54:55]
    """)
    a(f"""
    s_cmp_eq_u32 s2, 0
    s_cbranch_scc0 p_nozero
    s_cmp_eq_u32 s26, 1
    s_cbranch_scc0 p_nozero
    v_lshlrev_b32 v60, 7, v1
    v_add_u32 v60, {WS_CNT}, v60
    v_mov_b32 v62, 0
    v_mov_b32 v63, 0
    v_mov_b32 v64, 0
    v_mov_b32 v65, 0
    global_store_dwordx4 v60, v[62:65], s[22:23] sc1
    v_add_u32 v60, 8192, v60
    global_store_dwordx4 v60, v[62:65], s[22:23] sc1
    v_add_u32 v60, 8192, v60
    global_store_dwordx4 v60, v[62:65], s[22:23] sc1
    p_nozero:
    """)
    a("s_waitcnt vmcnt(0)")
    lds_arrive(a, 1, 36)
    if SET == 1: a.stamp(3)
    a(f"""
    s_cmp_eq_u32 s26, 0
    s_cbranch_scc0 p_noentry
    """)
    lds_wait(a, 1, 4, 36, "p2")
    a(f"""
    s_mov_b32 s60, 0
    p_flag:
    v_readfirstlane_b32 s36, v96
    s_nop 0
    s_cmp_lg_u32 s36, 0
    s_cbranch_scc1 p_flag_ok
    s_mov_b64 exec, 1
    global_atomic_add v96, v94, v95, s[20:21] sc0 sc1
    s_waitcnt vmcnt(0)
    s_mov_b64 exec, -1
    s_add_u32 s60, s60, 1
    s_cmp_lt_u32 s60, {SPIN_MAX}
    s_cbranch_scc1 p_flag
    p_flag_ok:
    s_mov_b64 exec, 0xffff
    global_atomic_add v92, v93, s[22:23] sc1
    s_mov_b64 exec, -1
    """)
    lds_arrive(a, 6, 36)
    a("p_noentry:")
    h_addr(a, 256)
    a(f"""
    s_cmp_lt_u32 s2, {NW1}
    s_cbranch_scc0 p_now1
    v_lshrrev_b32 v18, 1, v0                 ; rg
    v_and_b32 v19, 1, v0                     ; cc
    v_mul_u32_u24 v16, {4*2752}, v18
    v_lshl_add_u32 v16, v19, 4, v16
    s_lshl_b32 s12, s2, 5
    v_add_u32 v16, s12, v16
    """)
    for i in range(4):
        if i: a("v_add_u32 v16, 2752, v16")
        a(f"global_load_dwordx4 v[{100+4*i}:{103+4*i}], v16, s[8:9]")
    a(f"""
    v_and_b32 v17, 15, v0
    v_lshlrev_b32 v17, 1, v17
    v_add_u32 v17, s12, v17
    global_load_ushort v56, v17, s[10:11]
    v_mov_b32 v57, 0x3f803f80
    v_lshrrev_b32 v58, 2, v18
    v_lshlrev_b32 v58, 9, v58
    v_bfe_u32 v59, v18, 1, 1
    v_lshl_add_u32 v58, v59, 8, v58
    v_lshl_add_u32 v58, v19, 7, v58
    v_and_b32 v59, 1, v18
    v_lshl_add_u32 v58, v59, 3, v58
    v_add_u32 v58, {IMG}, v58
    s_waitcnt vmcnt(1)
    """)
    for i in range(4):
        for e in range(8):
            src = 100 + 4 * i + e // 2
            a(f"v_lshlrev_b32 v{24+8*i+e}, 16, v{src}" if e % 2 == 0 else f"v_and_b32 v{24+8*i+e}, 0xffff0000, v{src}")
    a("p_now1:\ns_setprio 0")
    a(f"""
    v_lshrrev_b32 v16, 3, v0
    v_lshlrev_b32 v16, 7, v16
    v_bfe_u32 v17, v0, 1, 2
    v_lshl_add_u32 v16, v17, 4, v16
    v_add_u32 v16, {WS_MODP + 96*128}, v16
    v_add_u32 v17, 4096, v16
    """)
    lds_wait(a, 4, 1, 60, "p3", 1)
    if SET == 1: a.stamp(4)
    a(f"s_cmp_lt_u32 s2, {NW1}\ns_cbranch_scc0 p_hplain")
    h_body(a, lambda: a("global_load_dwordx4 v[100:103], v16, s[22:23] sc1\nglobal_load_dwordx4 v[104:107], v17, s[22:23] sc1"), 2)
    a("s_branch p_hdone\np_hplain:")
    h_body(a)
    a("p_hdone:")
    if SET == 1: a.stamp(5)
    a("s_barrier")
    if int(os.environ.get("WPRIO", 0)): a(f"s_setprio {os.environ['WPRIO']}")
    a(f"""
    s_lshr_b32 s47, s2, 3
    s_mul_i32 s47, s47, 44032
    v_lshlrev_b32 v20, 6, v0
    v_add_u32 v20, s47, v20
    global_load_dword v21, v20, s[48:49]
    v_add_u32 v20, 16384, v20
    global_load_dword v22, v20, s[48:49]
    s_add_u32 s47, s47, {32768 + 175*64}
    v_add_u32 v20, 16384, v20
    v_min_u32 v20, s47, v20
    global_load_dword v23, v20, s[48:49]
    s_cmp_lt_u32 s2, {NW1}
    s_cbranch_scc0 p_done
    s_waitcnt vmcnt(3)
    """)
    for i in range(4): a(f"v_add_f32 v{12+i}, 1.0, v{104+i}")
    a("v_cvt_pk_bf16_f32 v16, v12, v13\nv_cvt_pk_bf16_f32 v17, v14, v15")
    a("v_lshlrev_b32 v12, 16, v16\nv_and_b32 v13, 0xffff0000, v16\nv_lshlrev_b32 v14, 16, v17\nv_and_b32 v15, 0xffff0000, v17")
    for e in range(8): a(f"v_mul_f32 v{72+e}, v100, v{24+e}")
    for i in range(1, 4):
        for e in range(8): a(f"v_fmac_f32 v{72+e}, v{100+i}, v{24+8*i+e}")
    for i in range(4):
        for e in range(8): a(f"v_mul_f32 v{24+8*i+e}, v{12+i}, v{24+8*i+e}")
    for e in range(8):
        a(f"v_cvt_pk_bf16_f32 v{80+2*e}, v{24+e}, v{32+e}")
        a(f"v_cvt_pk_bf16_f32 v{81+2*e}, v{40+e}, v{48+e}")
    for e in range(8): a(f"ds_write_b64 v58, v[{80+2*e}:{81+2*e}] offset:{16*e}")
    for e in range(8): a(f"v_dot2_f32_bf16 v{64+e}, v{80+2*e}, v57, 0")
    for e in range(8): a(f"v_dot2_f32_bf16 v{64+e}, v{81+2*e}, v57, v{64+e}")
    a("s_nop 2")
    for d in ["row_shr:2", "row_shr:4", "row_shr:8"]:
        for r in range(64, 80): a(f"v_add_f32_dpp v{r}, v{r}, v{r} {d} row_mask:0xf bank_mask:0xf")
    a(f"""
    v_lshrrev_b32 v5, 4, v0                  ; part
    v_mul_u32_u24 v5, 144, v5
    v_lshl_add_u32 v5, v19, 5, v5
    v_add_u32 v5, {RED2}, v5
    v_and_b32 v6, 15, v0
    v_cmp_lt_u32 vcc, 13, v6
    s_and_saveexec_b64 s[54:55], vcc
    ds_write_b128 v5, v[64:67]
    ds_write_b128 v5, v[68:71] offset:16
    ds_write_b128 v5, v[72:75] offset:64
    ds_write_b128 v5, v[76:79] offset:80
    s_mov_b64 exec, s[54:55]
    """)
    lds_arrive(a, 7, 60)
    a(f"""
    v_lshlrev_b32 v7, 4, v0
    v_add_u32 v7, {IMG}, v7
    s_lshr_b32 s13, s2, 1
    s_lshl_b32 s13, s13, 15
    s_and_b32 s14, s2, 1
    s_lshl_b32 s14, s14, 8
    s_add_u32 s13, s13, s14
    s_add_u32 s13, s13, {WS_W1F}
    v_lshrrev_b32 v8, 4, v0
    v_lshlrev_b32 v8, 9, v8
    v_lshl_add_u32 v8, v6, 4, v8
    v_add_u32 v8, s13, v8
    v_lshlrev_b32 v9, 2, v6
    v_bfe_u32 v10, v0, 4, 1
    v_lshl_add_u32 v9, v10, 6, v9            ; (t&15)*4 + ((t>>4)&1)*64
    v_add_u32 v9, {RED2}, v9
    """)
    lds_wait(a, 7, 4, 60, "p7", 1)
    for k in range(4): a(f"ds_read_b128 v[{24+4*k}:{27+4*k}], v7 offset:{4096*k}")
    for p in range(16): a(f"ds_read_b32 v{40+p}, v9 offset:{144*p}")
    a("s_waitcnt lgkmcnt(0)")
    for k in range(4):
        a(f"global_store_dwordx4 v8, v[{24+4*k}:{27+4*k}], s[22:23]{W1SC}")
        if k < 3: a(f"v_add_u32 v8, {16*512}, v8")
    for st in (1, 2, 4, 8):
        for p in range(0, 16, 2 * st): a(f"v_add_f32 v{40+p}, v{40+p}, v{40+p+st}")
    a(f"""
    v_lshlrev_b32 v56, 16, v56
    v_cmp_eq_u32 vcc, 1, v10
    s_nop 1
    v_cndmask_b32 v56, 0, v56, vcc
    v_add_f32 v40, v40, v56
    s_lshl_b32 s13, s2, 6
    v_lshl_add_u32 v11, v6, 2, s13
    v_mov_b32 v12, {WS_CS}
    v_mov_b32 v13, {WS_B1P}
    v_cndmask_b32 v12, v12, v13, vcc
    v_add_u32 v11, v11, v12
    v_cmp_gt_u32 vcc, 32, v0
    s_and_saveexec_b64 s[54:55], vcc
    s_cbranch_execz p_done
    global_store_dword v11, v40, s[22:23]{" sc1" if MEGA else SC}
    p_done:
    """)
    if MEGA: a("s_mov_b64 exec, -1\nv_add_u32 v0, 256, v0\ns_waitcnt vmcnt(0)\ns_branch mega_next")
    else: a("s_endpgm")

def gen_AB(a):
    a(f"""
    s_cmp_ge_u32 s2, {NMAIN}
    s_cbranch_scc1 ab_other
    v_lshrrev_b32 v3, 6, v0
    v_and_b32 v1, 63, v0
    s_and_b32 s6, s2, 7
    s_lshr_b32 s7, s2, 3
    v_readfirstlane_b32 s26, v3              ; wave
    v_lshlrev_b32 v4, 2, v0
    v_add_u32 v4, {CNT}, v4
    v_mov_b32 v5, 0
    v_cmp_gt_u32 vcc, 8, v0
    s_and_saveexec_b64 s[54:55], vcc
    ds_write_b32 v4, v5
    s_mov_b64 exec, s[54:55]
    s_lshl_b32 s29, s6, 6
    s_lshl_b32 s30, s7, 1
    s_add_u32 s29, s29, s30
    s_waitcnt lgkmcnt(0)
    s_barrier
    s_cmp_lt_u32 s26, 4
    s_cbranch_scc1 kwaves
    """)
    gen_pwaves(a)
    gen_kwaves(a)
    if not MEGA:
        a("ab_other:\ns_endpgm")
        a.l.append(idx_table())

if __name__ == "__main__":
    ks = [("convab_kernel", gen_AB, 128, AB_GRID, 512, AB_LDS),
          ("gemm1_kernel", gen_C, 176, C_GRID, 512, C_LDS),
          ("gemm2_kernel", gen_D, 128, D_GRID, 512, D_LDS)]
    s = build(ks)
    path = sys.argv[1] if len(sys.argv) > 1 else "out.s"
    open(path, "w").write(s)
    print("wrote", path, len(s))
```

```python
import sys, os
os.environ["MODP"] = "1"
import g7 as g5
from g7 import *
from g3b import HIDSC, OUTSC, HS

CD_GRID = 256
C_SLOT, C_NS = 28672, 4
C_TAB = C_NS * C_SLOT
D_NCH = 11
NW = int(os.environ.get("CD_NW", 6)); NH = 3
D_HID = NW * 16384
D_X2 = D_HID + NH * 16384
D_TAB = D_X2 + 8192
D_FLG = D_TAB + 512
CD_LDS = D_FLG + 16
assert D_X2 >= C_TAB + 768 and CD_LDS <= 163840
WS_CNT = g5.WS_CNT
CSET = int(os.environ.get("CSET", 0))
NODMA = bool(os.environ.get("CD_NODMA"))
PATOM = os.environ.get("PATOM", "1") == "1"
POLL = ("s_mov_b64 exec, 1\n    global_atomic_add v27, v21, v26, s[20:21] sc0 sc1\n    s_mov_b64 exec, -1" if PATOM else
        "global_load_dword v27, v21, s[20:21] " + os.environ.get("PSC", "sc1"))

def mega_sync(a, poller):
    B2 = WS_CNT + 16 * 128
    if poller:
        a(f"""
        s_cmp_eq_u32 s26, 0
        s_cbranch_scc0 mg_wait
        s_and_b32 s12, s2, 7
        s_lshl_b32 s12, s12, 11
        s_add_u32 s12, s12, {B2}
        v_and_b32 v30, 15, v1
        v_lshl_add_u32 v30, v30, 7, s12
        v_mov_b32 v31, 1
        s_mov_b64 exec, 0xffff
        global_atomic_add v30, v31, s[20:21] sc1
        s_mov_b64 exec, -1
        s_lshr_b32 s12, s2, 3
        s_and_b32 s12, s12, 15
        s_lshl_b32 s12, s12, 7
        s_add_u32 s12, s12, {B2}
        v_and_b32 v30, 7, v1
        v_lshl_add_u32 v30, v30, 11, s12
        v_mov_b32 v34, 0
        s_mov_b32 s60, 0
        mg_poll:
        s_mov_b64 exec, 0xff
        global_atomic_add v32, v30, v34, s[20:21] sc0 sc1
        s_waitcnt vmcnt(0)
        v_cmp_ne_u32 vcc, 32, v32
        s_mov_b64 exec, -1
        s_cbranch_vccz mg_wait
        s_add_u32 s60, s60, 1
        s_sleep 1
        s_cmp_lt_u32 s60, {SPIN_MAX}
        s_cbranch_scc1 mg_poll
        mg_wait:
        """)
    a("s_barrier")

def gen_CD(a):
    ACC, AQ, AS, FB = 64, 112, 120, 128
    st = lambda k, i: a.stamp(i) if CSET == k else None
    a(f"""
    s_cmp_ge_u32 s2, {CD_GRID}
    s_cbranch_scc1 cd_exit
    s_load_dwordx2 s[20:21], s[0:1], 144     ; ws
    s_load_dwordx4 s[44:47], s[0:1], 96      ; w2, b2
    s_load_dwordx2 s[48:49], s[0:1], 128     ; out
    s_and_b32 s6, s2, 7
    s_lshr_b32 s7, s2, 3                     ; j
    s_and_b32 s4, s6, 3
    s_lshl_b32 s4, s4, 2
    s_and_b32 s12, s7, 3
    s_add_u32 s4, s4, s12                    ; lt = 4(k&3) + (j&3)
    s_lshr_b32 s5, s6, 2
    s_lshl_b32 s5, s5, 3
    s_lshr_b32 s13, s7, 2
    s_add_u32 s5, s5, s13
    s_lshl_b32 s52, s6, 2
    s_add_u32 s52, s52, s12                  ; lt64 = 4k + (j&3)
    s_mov_b32 s53, s13                       ; dt = j>>2
    v_lshrrev_b32 v3, 6, v0
    v_and_b32 v1, 63, v0
    v_lshlrev_b32 v4, 4, v1                  ; lane*16
    v_readfirstlane_b32 s26, v3              ; wave
    s_cmp_lt_u32 s26, 4
    s_cbranch_scc1 cd_compute
    s_sub_u32 s26, s26, 4
    v_lshrrev_b32 v5, 4, v1
    v_lshlrev_b32 v6, 2, v5
    v_and_b32 v7, 15, v1
    v_xor_b32 v6, v6, v7
    v_lshlrev_b32 v6, 4, v6
    v_lshl_add_u32 v5, v5, 12, v6
    s_mul_i32 s6, s5, {3*32*1024}
    s_add_u32 s6, s6, {WS_W1F}
    s_mul_i32 s7, s26, 3
    """)
    for i in range(3):
        a(f"""
        s_add_u32 s12, s7, {i}
        s_lshr_b32 s13, s12, 2
        s_and_b32 s12, s12, 3
        s_lshl_b32 s13, s13, 15
        s_lshl_b32 s12, s12, 10
        s_add_u32 s12, s12, s13
        s_add_u32 s{30+i}, s12, s6
        """)
    a(f"""
    s_lshl_b32 s12, s26, 16
    s_lshl_b32 s13, s4, 8
    s_add_u32 s12, s12, s13
    s_add_u32 s33, s12, {WS_X2T}
    s_mul_i32 s34, s26, 3072
    s_lshl_b32 s35, s26, 12
    s_add_u32 s35, s35, 12288
    s_lshl_b32 s12, s4, 7
    s_add_u32 s12, s12, {WS_CNT}
    v_mov_b32 v20, s12
    s_lshr_b32 s12, s52, 1
    s_lshl_b32 s12, s12, 7
    s_add_u32 s12, s12, {WS_CNT}
    v_mov_b32 v21, s12
    s_waitcnt lgkmcnt(0)
    """)
    srd(a, 8, 20, WS_SIZE)
    if MEGA: mega_sync(a, True)
    st(1, 0); st(3, 2)
    def dmaC(c):
        slot = (c % C_NS) * C_SLOT
        a(f"s_and_b32 s37, {c}, 7\ns_lshl_b32 s38, s37, 18\ns_lshl_b32 s37, s37, 12\ns_add_u32 s38, s38, s33")
        for j in range(4):
            a(f"s_add_u32 m0, s35, {slot + 1024*j}")
            a(f"s_add_u32 s38, s38, 16384" if j else "s_nop 0")
            a(f"buffer_load_dwordx4 v5, s[8:11], s38 offen lds")
        for i in range(3):
            a(f"s_add_u32 m0, s34, {slot + 1024*i}")
            a(f"s_add_u32 s12, s{30+i}, s37")
            a(f"buffer_load_dwordx4 v4, s[8:11], s12 offen lds")
    a("s_cmp_ge_u32 s5, 15\ns_cbranch_scc1 cd_ld_noC")
    dmaC(0); dmaC(1)
    for c in range(8):
        last = min(7, c + 1)
        n = 7 * (last - c)
        a(f"s_waitcnt vmcnt({n})")
        a("s_barrier")
        if c == 0: st(1, 1)
        if c + 2 <= 7: dmaC(c + 2)
    a("s_barrier")
    a("s_branch cd_ld2")
    a("cd_ld_noC:")
    a("cd_ld2:")
    st(1, 2)
    a(f"""
    s_and_b32 s27, s26, 1
    s_lshr_b32 s28, s26, 1
    s_and_b32 s6, s52, 3
    s_lshl_b32 s6, s6, 1
    s_add_u32 s36, s6, s53
    s_and_b32 s36, s36, {((8 - 8 // int(os.environ.get("D_ROT", 4))) & 7)}
    s_mul_i32 s36, s36, 11
    s_lshr_b32 s36, s36, 3
    v_lshrrev_b32 v5, 3, v1
    v_bfe_u32 v6, v1, 4, 1
    v_lshlrev_b32 v6, 2, v6
    v_and_b32 v7, 7, v1
    v_xor_b32 v6, v6, v7
    v_lshlrev_b32 v6, 4, v6
    v_lshl_add_u32 v5, v5, 10, v6
    v_lshrrev_b32 v9, 3, v1
    v_lshl_add_u32 v9, v9, 12, v6
    s_lshl_b32 s31, s27, 13
    """)
    def dmaD(c, fl=""):
        slot = (c % NW) * 16384 if not fl else D_HID + (c % NH) * 16384
        a(f"""
        s_add_u32 s34, s36, {c}
        s_sub_u32 s35, s34, 11
        s_cmp_ge_u32 s34, 11
        s_cselect_b32 s34, s35, s34
        s_mul_i32 s34, s34, s33
        s_add_u32 s34, s34, s30
        """)
        for i in range(8):
            a(f"s_add_u32 m0, s31, {slot + 1024*i}")
            a(f"s_add_u32 s34, s34, s32" if i else "s_nop 0")
            a(f"buffer_load_dwordx4 v8, s[8:11], s34 offen{fl} lds")
    a(f"""
    s_cmp_eq_u32 s28, 0
    s_cbranch_scc0 cd_hid
    s_mov_b32 s8, s44
    s_mov_b32 s9, s45
    s_mov_b32 s10, {1376*512*2}
    s_mov_b32 s11, 0x00020000
    s_lshl_b32 s30, s27, 16
    s_lshl_b32 s12, s53, 7
    s_add_u32 s30, s30, s12
    s_mov_b32 s32, 8192
    s_mov_b32 s33, 131072
    v_mov_b32 v8, v5
    """)
    srd(a, 40, 20, WS_SIZE)
    NPRE = NW
    W2LATE = os.environ.get("W2LATE") == "1"
    if W2LATE: a("s_barrier")
    dmaD(0)
    a(f"""
    s_lshl_b32 s12, s53, 6
    s_lshl_b32 s13, s27, 5
    s_add_u32 s12, s12, s13
    s_lshl_b32 s12, s12, 12
    s_lshl_b32 s13, s52, 7
    s_add_u32 s12, s12, s13
    s_add_u32 s12, s12, {WS_X2T}
    s_lshl_b32 s13, s27, 12
    s_add_u32 s13, s13, {D_X2}
    """)
    for i in range(4):
        a(f"s_add_u32 m0, s13, {1024*i}")
        a(f"s_add_u32 s14, s12, {8*4096*i}")
        a("buffer_load_dwordx4 v9, s[40:43], s14 offen lds")
    for c in range(1, NPRE): dmaD(c)
    if not W2LATE:
        a(f"s_waitcnt vmcnt({8*(NPRE-1)})")
        a("s_barrier")
    issued = NPRE - 1
    for c in range(D_NCH):
        a(f"s_waitcnt vmcnt({8*(issued - c)})")
        a("s_barrier")
        k = c + NPRE - 1
        if c >= 1 and k < D_NCH and not NODMA:
            dmaD(k); issued = k
    a("s_endpgm")
    a(f"""
    cd_hid:
    s_mov_b32 s8, s20
    s_mov_b32 s9, s21
    s_mov_b32 s10, {WS_SIZE}
    s_mov_b32 s11, 0x00020000
    s_lshl_b32 s30, s52, 1
    s_add_u32 s30, s30, s27
    s_mul_i32 s30, s30, {HS*1024}
    s_add_u32 s30, s30, {WS_HID}
    s_mov_b32 s32, 1024
    s_mov_b32 s33, 8192
    v_mov_b32 v8, v4
    v_mov_b32 v24, {D_FLG}
    s_barrier
    """)
    st(1, 3)
    a(f"""
    s_cmp_eq_u32 s27, 0
    s_cbranch_scc0 cd_relay
    s_cmp_ge_u32 s5, 15
    s_cbranch_scc1 cd_noarr
    v_mov_b32 v26, 1
    s_mov_b64 exec, 1
    global_atomic_add v20, v26, s[20:21] sc1
    s_mov_b64 exec, -1
    cd_noarr:
    s_mov_b32 s60, 0
    v_mov_b32 v26, 0
    cd_poll:
    {POLL}
    s_waitcnt vmcnt(0)
    v_readfirstlane_b32 s12, v27
    s_nop 0
    s_cmp_eq_u32 s12, 15
    s_cbranch_scc1 cd_go
    s_add_u32 s60, s60, 1
    s_sleep 1
    s_cmp_lt_u32 s60, {SPIN_MAX}
    s_cbranch_scc1 cd_poll
    cd_go:
    v_mov_b32 v25, 1
    ds_write_b32 v24, v25
    s_branch cd_released
    cd_relay:
    ds_read_b32 v25, v24
    s_waitcnt lgkmcnt(0)
    v_readfirstlane_b32 s12, v25
    s_cmp_eq_u32 s12, 1
    s_cbranch_scc1 cd_released
    s_sleep 1
    s_branch cd_relay
    cd_released:
    """)
    st(1, 4)
    dmaD(0, " sc1"); dmaD(1, " sc1")
    for c in range(D_NCH):
        last = min(D_NCH - 1, c + 1)
        a(f"s_waitcnt vmcnt({8*(last - c)})")
        a("s_barrier")
        if c == 0: st(1, 5)
        if c + 2 < D_NCH and not NODMA: dmaD(c + 2, " sc1")
    a("s_endpgm")

    a(f"""
    cd_compute:
    v_lshlrev_b32 v8, 2, v0
    s_mul_i32 s12, s5, 384
    s_add_u32 s13, s12, {WS_CS}
    s_add_u32 s12, s12, {WS_B1P}
    v_and_b32 v6, 15, v1
    v_lshrrev_b32 v7, 2, v6                  ; r
    v_and_b32 v6, 3, v6                      ; c
    v_lshrrev_b32 v9, 5, v1                  ; g
    v_lshl_add_u32 v12, v9, 3, v7
    v_lshlrev_b32 v12, 8, v12
    v_bfe_u32 v13, v1, 4, 1
    v_lshlrev_b32 v13, 1, v13
    v_lshl_add_u32 v13, v3, 2, v13
    v_lshrrev_b32 v14, 1, v6
    v_add_u32 v13, v13, v14
    v_lshlrev_b32 v14, 2, v7
    v_xor_b32 v13, v13, v14
    v_lshl_add_u32 v12, v13, 4, v12
    v_and_b32 v6, 1, v6
    v_lshl_add_u32 v12, v6, 3, v12
    v_add_u32 v16, 12288, v12
    v_add_u32 v17, {2*C_SLOT}, v16
    v_mov_b32 v19, v4
    v_add_u32 v20, {2*C_SLOT}, v4
    v_mov_b32 v22, 0x3f803f80
    v_mov_b32 v23, 0x3f803f80
    v_add_u32 v9, {C_TAB}, v8
    v_lshrrev_b32 v14, 4, v0
    v_lshlrev_b32 v14, 7, v14
    v_and_b32 v21, 15, v0
    v_lshl_add_u32 v14, v21, 2, v14
    s_lshl_b32 s16, s53, 9
    s_add_u32 s16, s16, {WS_MODP + 160*128}
    v_lshlrev_b32 v15, 1, v0
    s_lshl_b32 s17, s53, 7
    v_add_u32 v15, s17, v15
    v_min_u32 v15, 1022, v15
    v_add_u32 v18, {D_TAB}, v8
    v_mov_b32 v24, 0
    v_mov_b32 v25, {D_FLG}
    ds_write_b32 v25, v24
    s_waitcnt lgkmcnt(0)
    """)
    srd(a, 8, 20, WS_SIZE)
    if MEGA: mega_sync(a, False)
    st(0, 0); st(3, 2)
    a(f"""
    buffer_load_dword v10, v8, s[8:11], s13 offen
    buffer_load_dword v11, v8, s[8:11], s12 offen
    buffer_load_dword v14, v14, s[8:11], s16 offen
    global_load_ushort v15, v15, s[46:47]
    """)
    def tables():
        a(f"""
        s_waitcnt vmcnt(0)
        v_lshlrev_b32 v15, 16, v15
        v_cmp_gt_u32 vcc, 96, v0
        s_and_saveexec_b64 s[14:15], vcc
        ds_write_b32 v9, v10
        ds_write_b32 v9, v11 offset:384
        s_mov_b64 exec, s[14:15]
        v_cmp_gt_u32 vcc, 64, v0
        s_and_saveexec_b64 s[14:15], vcc
        ds_write_b32 v18, v14
        ds_write_b32 v18, v15 offset:256
        s_mov_b64 exec, s[14:15]
        """)
    a("s_cmp_ge_u32 s5, 15\ns_cbranch_scc0 cd_doC")
    tables()
    a("s_waitcnt lgkmcnt(0)\ns_branch cd_cmp2\ncd_doC:")
    for r in range(ACC, FB): a(f"v_mov_b32 v{r}, 0")
    T = LdsTracker(a)
    def read_list(c, s):
        slot = c % C_NS
        grp = slot // 2; so = (slot % 2) * C_SLOT
        buf = (4 * c + s) % 3
        fb = FB + 16 * buf
        L = [(f"ds_read_b64_tr_b16 v[{fb+12}:{fb+13}], v{16+grp} offset:{so + s*4096}", [f"x{buf}"]),
             (f"ds_read_b64_tr_b16 v[{fb+14}:{fb+15}], v{16+grp} offset:{so + s*4096 + 1024}", [f"x{buf}"])]
        for b in range(3):
            L.append((f"ds_read_b128 v[{fb+4*b}:{fb+4*b+3}], v{19+grp} offset:{so + (b*4+s)*1024}", [f"w{buf}{b}"]))
        return L
    def mfmas(c, s, rd=()):
        rd = list(rd)
        def pop(n):
            for _ in range(n):
                if rd: T.issue(*rd.pop(0))
        buf = (4 * c + s) % 3; fb = FB + 16 * buf
        T.need([f"x{buf}", f"w{buf}0", f"w{buf}1", f"w{buf}2"])
        per = (len(rd) + 2) // 3
        for b in range(3):
            a(f"v_mfma_f32_32x32x16_bf16 v[{ACC+16*b}:{ACC+16*b+15}], v[{fb+4*b}:{fb+4*b+3}], v[{fb+12}:{fb+15}], v[{ACC+16*b}:{ACC+16*b+15}]")
            pop(per)
            if b == 0:
                a(f"v_mfma_f32_4x4x4_16b_bf16 v[{AQ}:{AQ+3}], v[{fb+12}:{fb+13}], v[{fb+12}:{fb+13}], v[{AQ}:{AQ+3}]")
                a(f"v_mfma_f32_4x4x4_16b_bf16 v[{AS}:{AS+3}], v[22:23], v[{fb+12}:{fb+13}], v[{AS}:{AS+3}]")
            if b == 1:
                a(f"v_mfma_f32_4x4x4_16b_bf16 v[{AQ+4}:{AQ+7}], v[{fb+14}:{fb+15}], v[{fb+14}:{fb+15}], v[{AQ+4}:{AQ+7}]")
                a(f"v_mfma_f32_4x4x4_16b_bf16 v[{AS+4}:{AS+7}], v[22:23], v[{fb+14}:{fb+15}], v[{AS+4}:{AS+7}]")
        pop(99)
    for c in range(8):
        if c == 1:
            tables()
            T.issued += 4
        T.drain()
        a("s_barrier")
        if c == 0: st(0, 1)
        if c > 0: mfmas(c - 1, 3, read_list(c, 0) + read_list(c, 1))
        else:
            for x in read_list(c, 0) + read_list(c, 1): T.issue(*x)
        mfmas(c, 0, read_list(c, 2))
        mfmas(c, 1, read_list(c, 3))
        mfmas(c, 2)
    T.drain()
    a("s_barrier")
    mfmas(7, 3)
    st(0, 2)
    a(f"""
    v_and_b32 v6, 3, v1
    v_cmp_eq_u32 s[12:13], 1, v6
    v_cmp_eq_u32 s[14:15], 2, v6
    v_cmp_eq_u32 s[16:17], 3, v6
    v_lshrrev_b32 v6, 5, v1
    v_lshlrev_b32 v6, 4, v6
    v_add_u32 v6, {C_TAB}, v6
    """)
    for q in range(4):
        a(f"ds_read_b128 v[{28+4*q}:{31+4*q}], v6 offset:{(8*q)*4}")
        a(f"ds_read_b128 v[{44+4*q}:{47+4*q}], v6 offset:{384 + (8*q)*4}")
    a(f"""
    v_add_f32 v{AQ}, v{AQ}, v{AQ+4}
    v_add_f32 v{AQ+1}, v{AQ+1}, v{AQ+5}
    v_add_f32 v{AQ+2}, v{AQ+2}, v{AQ+6}
    v_add_f32 v{AQ+3}, v{AQ+3}, v{AQ+7}
    v_add_f32 v{AS}, v{AS}, v{AS+4}
    v_cndmask_b32 v{AQ}, v{AQ}, v{AQ+1}, s[12:13]
    v_cndmask_b32 v{AQ}, v{AQ}, v{AQ+2}, s[14:15]
    v_cndmask_b32 v{AQ}, v{AQ}, v{AQ+3}, s[16:17]
    v_mov_b32 v25, v{AS}
    v_mov_b32 v24, v{AQ}
    s_nop 1
    v_permlane32_swap_b32 v25, v{AS}
    v_permlane32_swap_b32 v24, v{AQ}
    s_nop 1
    v_add_f32 v25, v25, v{AS}
    v_add_f32 v24, v24, v{AQ}
    v_mul_f32 v25, {fx(1.0/512)}, v25
    v_mul_f32 v24, {fx(1.0/512)}, v24
    v_fma_f32 v24, -v25, v25, v24
    v_max_f32 v24, 0, v24
    v_add_f32 v24, {fx(1e-5)}, v24
    v_rsq_f32 v24, v24                       ; r
    s_lshl_b32 s12, s4, 2
    v_mul_f32 v26, -v25, v24                 ; -mean*r
    s_add_u32 s12, s12, s26
    s_mul_i32 s12, s12, {HS}
    v_mov_b32 v25, v24
    v_mov_b32 v27, v26
    s_mul_i32 s13, s5, 6
    s_add_u32 s12, s12, s13
    s_lshl_b32 s12, s12, 10
    s_add_u32 s12, s12, {WS_HID}
    """)
    for b in range(3):
        cs, bb = (28, 44) if b % 2 == 0 else (144, 160)
        a("s_waitcnt lgkmcnt(0)")
        if b < 2:
            cs2, bb2 = (144, 160) if b % 2 == 0 else (28, 44)
            for q in range(4):
                a(f"ds_read_b128 v[{cs2+4*q}:{cs2+4*q+3}], v6 offset:{(32*(b+1) + 8*q)*4}")
                a(f"ds_read_b128 v[{bb2+4*q}:{bb2+4*q+3}], v6 offset:{384 + (32*(b+1) + 8*q)*4}")
        for j in range(8):
            a(f"v_pk_fma_f32 v[{bb+2*j}:{bb+2*j+1}], v[26:27], v[{cs+2*j}:{cs+2*j+1}], v[{bb+2*j}:{bb+2*j+1}]")
        for j in range(8):
            a(f"v_pk_fma_f32 v[{bb+2*j}:{bb+2*j+1}], v[24:25], v[{ACC+16*b+2*j}:{ACC+16*b+2*j+1}], v[{bb+2*j}:{bb+2*j+1}]")
        for j in range(16): a(f"v_max_f32 v{bb+j}, 0, v{bb+j}")
        for j in range(8): a(f"v_pk_mul_f32 v[{bb+2*j}:{bb+2*j+1}], v[{bb+2*j}:{bb+2*j+1}], v[{bb+2*j}:{bb+2*j+1}]")
        o = ACC + 16 * b
        for j in range(8): a(f"v_cvt_pk_bf16_f32 v{o+j}, v{bb+2*j}, v{bb+2*j+1}")
        a("s_nop 1")
        a(f"v_permlane32_swap_b32 v{o}, v{o+2}")
        a(f"v_permlane32_swap_b32 v{o+1}, v{o+3}")
        a(f"v_permlane32_swap_b32 v{o+4}, v{o+6}")
        a(f"v_permlane32_swap_b32 v{o+5}, v{o+7}")
        a(f"buffer_store_dwordx4 v[{o}:{o+3}], v4, s[8:11], s12 offen sc1")
        a(f"buffer_store_dwordx4 v[{o+4}:{o+7}], v4, s[8:11], s12 offen offset:1024 sc1")
        a("s_add_u32 s12, s12, 2048")
        if b == 0:
            a(f"""
            s_cmp_eq_u32 s5, 14
            s_cbranch_scc0 cd_more
            s_waitcnt lgkmcnt(0)
            v_mov_b32 v28, 0
            v_mov_b32 v29, 0
            v_mov_b32 v30, 0
            v_mov_b32 v31, 0
            buffer_store_dwordx4 v[28:31], v4, s[8:11], s12 offen sc1
            buffer_store_dwordx4 v[28:31], v4, s[8:11], s12 offen offset:1024 sc1
            s_branch cd_cmp2
            cd_more:
            """)
    ACC, FB = 64, 80
    a(f"""
    cd_cmp2:
    s_and_b32 s27, s26, 1                    ; wm
    s_lshr_b32 s28, s26, 1                   ; wn
    v_and_b32 v6, 15, v1
    v_lshrrev_b32 v7, 2, v6                  ; r
    v_and_b32 v6, 3, v6                      ; c
    v_lshrrev_b32 v12, 5, v1                 ; g
    v_lshl_add_u32 v12, v12, 3, v7
    v_lshlrev_b32 v12, 7, v12
    v_bfe_u32 v13, v1, 4, 1
    v_lshlrev_b32 v13, 1, v13
    s_lshl_b32 s12, s27, 2
    v_add_u32 v13, s12, v13
    v_lshrrev_b32 v16, 1, v6
    v_add_u32 v13, v13, v16
    v_lshrrev_b32 v7, 1, v7
    v_lshlrev_b32 v7, 2, v7
    v_xor_b32 v13, v13, v7
    v_lshl_add_u32 v12, v13, 4, v12
    v_and_b32 v6, 1, v6
    v_lshl_add_u32 v16, v6, 3, v12
    v_add_u32 v17, 65536, v16
    s_lshl_b32 s12, s28, 13
    s_add_u32 s12, s12, {D_HID}
    v_add_u32 v18, s12, v4
    s_waitcnt vmcnt(0)
    """)
    st(0, 3)
    a("s_barrier")
    for r in range(16): a(f"v_mov_b32 v{ACC+r}, 0")
    T = LdsTracker(a)
    NB = 5
    def reads(c, s):
        wo = (c % NW) * 16384; grp = wo // 65536; wo %= 65536
        ho = (c % NH) * 16384
        g = (8 * c + s) % NB
        fb = FB + 8 * g
        T.issue(f"ds_read_b64_tr_b16 v[{fb}:{fb+1}], v{16+grp} offset:{wo + s*2048}", [f"a{g}"])
        T.issue(f"ds_read_b64_tr_b16 v[{fb+2}:{fb+3}], v{16+grp} offset:{wo + s*2048 + 512}", [f"a{g}"])
        T.issue(f"ds_read_b128 v[{fb+4}:{fb+7}], v{18} offset:{ho + s*1024}", [f"b{g}"])
    def mfma(c, s):
        g = (8 * c + s) % NB; fb = FB + 8 * g
        T.need([f"a{g}", f"b{g}"])
        a(f"v_mfma_f32_32x32x16_bf16 v[{ACC}:{ACC+15}], v[{fb}:{fb+3}], v[{fb+4}:{fb+7}], v[{ACC}:{ACC+15}]")
    def epi_prepare():
        a(f"""
        v_and_b32 v6, 15, v1
        v_lshrrev_b32 v7, 2, v6
        v_and_b32 v6, 3, v6
        v_lshrrev_b32 v12, 5, v1                 ; h
        v_lshl_add_u32 v13, v12, 2, v7
        s_lshl_b32 s12, s27, 5
        v_add_u32 v13, s12, v13
        v_lshlrev_b32 v13, 7, v13
        v_bfe_u32 v14, v1, 4, 1
        v_lshlrev_b32 v14, 1, v14
        s_lshl_b32 s12, s28, 2
        v_add_u32 v14, s12, v14
        v_lshrrev_b32 v15, 1, v6
        v_add_u32 v14, v14, v15
        v_lshrrev_b32 v7, 1, v7
        v_lshlrev_b32 v7, 2, v7
        v_xor_b32 v14, v14, v7
        v_lshl_add_u32 v13, v14, 4, v13
        v_and_b32 v6, 1, v6
        v_lshl_add_u32 v13, v6, 3, v13
        v_add_u32 v13, {D_X2}, v13
        v_lshlrev_b32 v14, 4, v12
        s_lshl_b32 s12, s27, 7
        s_add_u32 s12, s12, {D_TAB}
        v_add_u32 v14, s12, v14
        """)
        for q in range(4):
            T.issue(f"ds_read_b64_tr_b16 v[{24+2*q}:{25+2*q}], v13 offset:{1024*q}", ["epi"])
            T.issue(f"ds_read_b128 v[{32+4*q}:{35+4*q}], v14 offset:{32*q}", ["epi"])
            T.issue(f"ds_read_b128 v[{48+4*q}:{51+4*q}], v14 offset:{256+32*q}", ["epi"])
        a(f"""
        v_and_b32 v5, 31, v1
        v_lshlrev_b32 v20, 10, v5
        v_lshl_add_u32 v20, v12, 4, v20
        s_lshl_b32 s12, s52, 1
        s_add_u32 s12, s12, s28
        s_lshl_b32 s12, s12, 15
        s_lshl_b32 s13, s53, 1
        s_add_u32 s13, s13, s27
        s_lshl_b32 s13, s13, 6
        s_add_u32 s12, s12, s13
        v_add_u32 v20, s12, v20
        """)
    def epi_finish():
        T.need(["epi"])
        for q in range(4):
            a(f"v_lshlrev_b32 v8, 16, v{24+2*q}")
            a(f"v_and_b32 v9, 0xffff0000, v{24+2*q}")
            a(f"v_lshlrev_b32 v10, 16, v{25+2*q}")
            a(f"v_and_b32 v11, 0xffff0000, v{25+2*q}")
            for r in range(4): a(f"v_fma_f32 v{48+4*q+r}, v{48+4*q+r}, v{32+4*q+r}, v{8+r}")
    epi_prepare(); epi_finish()
    EPC = -5
    for c in range(D_NCH):
        T.drain()
        a("s_barrier")
        if c == 0: st(0, 4)
        if c in (0, 2, 4, 6, 8, 10): st(2, c // 2)
        reads(c, 0); reads(c, 1); reads(c, 2); reads(c, 3)
        if c > 0: mfma(c - 1, 7)
        for s in range(7):
            if s + 4 < 8: reads(c, s + 4)
            mfma(c, s)
            if c == EPC and s == 1: epi_prepare()
            if c == EPC + 1 and s == 2: epi_finish()
    mfma(D_NCH - 1, 7)
    st(0, 5)
    a("s_nop 7\ns_nop 3")
    for q in range(4):
        for r in range(4): a(f"v_fma_f32 v{48+4*q+r}, v{ACC+4*q+r}, v{32+4*q+r}, v{48+4*q+r}")
        a(f"v_cvt_pk_bf16_f32 v{FB+2*q}, v{48+4*q}, v{49+4*q}")
        a(f"v_cvt_pk_bf16_f32 v{FB+2*q+1}, v{50+4*q}, v{51+4*q}")
    a(f"""
    s_nop 1
    v_permlane32_swap_b32 v{FB}, v{FB+2}
    v_permlane32_swap_b32 v{FB+1}, v{FB+3}
    v_permlane32_swap_b32 v{FB+4}, v{FB+6}
    v_permlane32_swap_b32 v{FB+5}, v{FB+7}
    global_store_dwordx4 v20, v[{FB}:{FB+3}], s[48:49]{OUTSC}
    global_store_dwordx4 v20, v[{FB+4}:{FB+7}], s[48:49] offset:32{OUTSC}
    cd_exit:
    s_endpgm
    """)

def gen_MEGA(a):
    gen_AB(a)
    a("mega_next:\ns_setprio 0")
    if CSET == 3: a.stamp(0)
    a("s_barrier")
    if CSET == 3: a.stamp(1)
    gen_CD(a)
    a("ab_other:\ns_endpgm")
    a.l.append(idx_table())

if __name__ == "__main__":
    if MEGA:
        ks = [(NAME + "_kernel", gen_MEGA, 176, 256, 512, max(AB_LDS, CD_LDS))]
    else:
        ks = [("convab_kernel", gen_AB, 128, AB_GRID, 512, AB_LDS),
              ("mlp_kernel", gen_CD, 176, CD_GRID, 512, CD_LDS)]
    s = build(ks)
    path = sys.argv[1] if len(sys.argv) > 1 else "out.s"
    open(path, "w").write(s)
    print("wrote", path, len(s))
```

```python
import sys, os
os.environ["MODP"] = "1"
import g7 as g5
from g7 import *
from g3b import HIDSC, OUTSC, HS

CD_GRID = 256
C_SLOT, C_NS = 28672, 4
C_TAB = C_NS * C_SLOT
D_NCH = 11
NW = int(os.environ.get("CD_NW", 6)); NH = 3
D_HID = NW * 16384
D_X2 = D_HID + NH * 16384
D_TAB = D_X2 + 8192
D_FLG = D_TAB + 512
CD_LDS = D_FLG + 16
assert D_X2 >= C_TAB + 768 and CD_LDS <= 163840
WS_CNT = g5.WS_CNT
CSET = int(os.environ.get("CSET", 0))
NODMA = bool(os.environ.get("CD_NODMA"))
PATOM = os.environ.get("PATOM", "1") == "1"
POLL = ("s_mov_b64 exec, 1\n    global_atomic_add v27, v21, v26, s[20:21] sc0 sc1\n    s_mov_b64 exec, -1" if PATOM else
        "global_load_dword v27, v21, s[20:21] " + os.environ.get("PSC", "sc1"))

def mega_sync(a, poller):
    B2 = WS_CNT + 16 * 128
    if poller:
        a(f"""
        s_cmp_eq_u32 s26, 0
        s_cbranch_scc0 mg_wait
        s_lshr_b32 s12, s2, 3
        s_and_b32 s12, s12, 15
        s_lshl_b32 s12, s12, 7
        s_add_u32 s12, s12, {B2}
        v_and_b32 v30, 7, v1
        v_lshl_add_u32 v30, v30, 11, s12
        v_mov_b32 v34, 0
        s_mov_b32 s60, 0
        mg_poll:
        s_mov_b64 exec, 0xff
        global_atomic_add v32, v30, v34, s[20:21] sc0 sc1
        s_waitcnt vmcnt(0)
        v_cmp_ne_u32 vcc, 32, v32
        s_mov_b64 exec, -1
        s_cbranch_vccz mg_wait
        s_add_u32 s60, s60, 1
        {"s_sleep 1" if RSLP else ""}
        s_cmp_lt_u32 s60, {SPIN_MAX}
        s_cbranch_scc1 mg_poll
        mg_wait:
        """)
    a("s_barrier")

def gen_CD(a):
    ACC, AQ, AS, FB = 64, 112, 120, 128
    st = lambda k, i: a.stamp(i) if CSET == k else None
    a(f"""
    s_cmp_ge_u32 s2, {CD_GRID}
    s_cbranch_scc1 cd_exit
    s_load_dwordx2 s[20:21], s[0:1], 144     ; ws
    s_load_dwordx4 s[44:47], s[0:1], 96      ; w2, b2
    s_load_dwordx2 s[48:49], s[0:1], 128     ; out
    s_and_b32 s6, s2, 7
    s_lshr_b32 s7, s2, 3                     ; j
    s_and_b32 s4, s6, 3
    s_lshl_b32 s4, s4, 2
    s_and_b32 s12, s7, 3
    s_add_u32 s4, s4, s12                    ; lt = 4(k&3) + (j&3)
    s_lshr_b32 s5, s6, 2
    s_lshl_b32 s5, s5, 3
    s_lshr_b32 s13, s7, 2
    s_add_u32 s5, s5, s13
    s_lshl_b32 s52, s6, 2
    s_add_u32 s52, s52, s12                  ; lt64 = 4k + (j&3)
    s_mov_b32 s53, s13                       ; dt = j>>2
    v_lshrrev_b32 v3, 6, v0
    v_and_b32 v1, 63, v0
    v_lshlrev_b32 v4, 4, v1                  ; lane*16
    v_readfirstlane_b32 s26, v3              ; wave
    s_cmp_lt_u32 s26, 4
    s_cbranch_scc1 cd_compute
    s_sub_u32 s26, s26, 4
    v_lshrrev_b32 v5, 4, v1
    v_lshlrev_b32 v6, 2, v5
    v_and_b32 v7, 15, v1
    v_xor_b32 v6, v6, v7
    v_lshlrev_b32 v6, 4, v6
    v_lshl_add_u32 v5, v5, 12, v6
    s_mul_i32 s6, s5, {3*32*1024}
    s_add_u32 s6, s6, {WS_W1F}
    s_mul_i32 s7, s26, 3
    """)
    for i in range(3):
        a(f"""
        s_add_u32 s12, s7, {i}
        s_lshr_b32 s13, s12, 2
        s_and_b32 s12, s12, 3
        s_lshl_b32 s13, s13, 15
        s_lshl_b32 s12, s12, 10
        s_add_u32 s12, s12, s13
        s_add_u32 s{30+i}, s12, s6
        """)
    a(f"""
    s_lshl_b32 s12, s26, 16
    s_lshl_b32 s13, s4, 8
    s_add_u32 s12, s12, s13
    s_add_u32 s33, s12, {WS_X2T}
    s_mul_i32 s34, s26, 3072
    s_lshl_b32 s35, s26, 12
    s_add_u32 s35, s35, 12288
    s_lshl_b32 s12, s4, 7
    s_add_u32 s12, s12, {WS_CNT}
    v_mov_b32 v20, s12
    s_lshr_b32 s12, s52, 1
    s_lshl_b32 s12, s12, 7
    s_add_u32 s12, s12, {WS_CNT}
    v_mov_b32 v21, s12
    s_waitcnt lgkmcnt(0)
    """)
    srd(a, 8, 20, WS_SIZE)
    if MEGA: mega_sync(a, True)
    st(1, 0); st(3, 2)
    def dmaC(c):
        slot = (c % C_NS) * C_SLOT
        a(f"s_and_b32 s37, {c}, 7\ns_lshl_b32 s38, s37, 18\ns_lshl_b32 s37, s37, 12\ns_add_u32 s38, s38, s33")
        for j in range(4):
            a(f"s_add_u32 m0, s35, {slot + 1024*j}")
            a(f"s_add_u32 s38, s38, 16384" if j else "s_nop 0")
            a(f"buffer_load_dwordx4 v5, s[8:11], s38 offen lds")
        for i in range(3):
            a(f"s_add_u32 m0, s34, {slot + 1024*i}")
            a(f"s_add_u32 s12, s{30+i}, s37")
            a(f"buffer_load_dwordx4 v4, s[8:11], s12 offen lds")
    a("s_cmp_ge_u32 s5, 15\ns_cbranch_scc1 cd_ld_noC")
    dmaC(0); dmaC(1)
    for c in range(8):
        last = min(7, c + 1)
        n = 7 * (last - c)
        a(f"s_waitcnt vmcnt({n})")
        a("s_barrier")
        if c == 0: st(1, 1)
        if c + 2 <= 7: dmaC(c + 2)
    a("s_barrier")
    a("s_branch cd_ld2")
    a("cd_ld_noC:")
    a("cd_ld2:")
    st(1, 2)
    a(f"""
    s_and_b32 s27, s26, 1
    s_lshr_b32 s28, s26, 1
    s_and_b32 s6, s52, 3
    s_lshl_b32 s6, s6, 1
    s_add_u32 s36, s6, s53
    s_and_b32 s36, s36, {((8 - 8 // int(os.environ.get("D_ROT", 4))) & 7)}
    s_mul_i32 s36, s36, 11
    s_lshr_b32 s36, s36, 3
    v_lshrrev_b32 v5, 3, v1
    v_bfe_u32 v6, v1, 4, 1
    v_lshlrev_b32 v6, 2, v6
    v_and_b32 v7, 7, v1
    v_xor_b32 v6, v6, v7
    v_lshlrev_b32 v6, 4, v6
    v_lshl_add_u32 v5, v5, 10, v6
    v_lshrrev_b32 v9, 3, v1
    v_lshl_add_u32 v9, v9, 12, v6
    s_lshl_b32 s31, s27, 13
    """)
    def dmaD(c, fl=""):
        slot = (c % NW) * 16384 if not fl else D_HID + (c % NH) * 16384
        a(f"""
        s_add_u32 s34, s36, {c}
        s_sub_u32 s35, s34, 11
        s_cmp_ge_u32 s34, 11
        s_cselect_b32 s34, s35, s34
        s_mul_i32 s34, s34, s33
        s_add_u32 s34, s34, s30
        """)
        for i in range(8):
            a(f"s_add_u32 m0, s31, {slot + 1024*i}")
            a(f"s_add_u32 s34, s34, s32" if i else "s_nop 0")
            a(f"buffer_load_dwordx4 v8, s[8:11], s34 offen{fl} lds")
    a(f"""
    s_cmp_eq_u32 s28, 0
    s_cbranch_scc0 cd_hid
    s_mov_b32 s8, s44
    s_mov_b32 s9, s45
    s_mov_b32 s10, {1376*512*2}
    s_mov_b32 s11, 0x00020000
    s_lshl_b32 s30, s27, 16
    s_lshl_b32 s12, s53, 7
    s_add_u32 s30, s30, s12
    s_mov_b32 s32, 8192
    s_mov_b32 s33, 131072
    v_mov_b32 v8, v5
    """)
    srd(a, 40, 20, WS_SIZE)
    NPRE = NW
    W2LATE = os.environ.get("W2LATE") == "1"
    if W2LATE: a("s_barrier")
    dmaD(0)
    a(f"""
    s_lshl_b32 s12, s53, 6
    s_lshl_b32 s13, s27, 5
    s_add_u32 s12, s12, s13
    s_lshl_b32 s12, s12, 12
    s_lshl_b32 s13, s52, 7
    s_add_u32 s12, s12, s13
    s_add_u32 s12, s12, {WS_X2T}
    s_lshl_b32 s13, s27, 12
    s_add_u32 s13, s13, {D_X2}
    """)
    for i in range(4):
        a(f"s_add_u32 m0, s13, {1024*i}")
        a(f"s_add_u32 s14, s12, {8*4096*i}")
        a("buffer_load_dwordx4 v9, s[40:43], s14 offen lds")
    for c in range(1, NPRE): dmaD(c)
    if not W2LATE:
        a(f"s_waitcnt vmcnt({8*(NPRE-1)})")
        a("s_barrier")
    issued = NPRE - 1
    for c in range(D_NCH):
        a(f"s_waitcnt vmcnt({8*(issued - c)})")
        a("s_barrier")
        k = c + NPRE - 1
        if c >= 1 and k < D_NCH and not NODMA:
            dmaD(k); issued = k
    a("s_endpgm")
    a(f"""
    cd_hid:
    s_mov_b32 s8, s20
    s_mov_b32 s9, s21
    s_mov_b32 s10, {WS_SIZE}
    s_mov_b32 s11, 0x00020000
    s_lshl_b32 s30, s52, 1
    s_add_u32 s30, s30, s27
    s_mul_i32 s30, s30, {HS*1024}
    s_add_u32 s30, s30, {WS_HID}
    s_mov_b32 s32, 1024
    s_mov_b32 s33, 8192
    v_mov_b32 v8, v4
    v_mov_b32 v24, {D_FLG}
    s_barrier
    """)
    st(1, 3)
    a(f"""
    s_cmp_eq_u32 s27, 0
    s_cbranch_scc0 cd_relay
    s_cmp_ge_u32 s5, 15
    s_cbranch_scc1 cd_noarr
    v_mov_b32 v26, 1
    s_mov_b64 exec, 1
    global_atomic_add v20, v26, s[20:21] sc1
    s_mov_b64 exec, -1
    cd_noarr:
    s_mov_b32 s60, 0
    v_mov_b32 v26, 0
    cd_poll:
    {POLL}
    s_waitcnt vmcnt(0)
    v_readfirstlane_b32 s12, v27
    s_nop 0
    s_cmp_eq_u32 s12, 15
    s_cbranch_scc1 cd_go
    s_add_u32 s60, s60, 1
    {"s_sleep 1" if RSLP else ""}
    s_cmp_lt_u32 s60, {SPIN_MAX}
    s_cbranch_scc1 cd_poll
    cd_go:
    v_mov_b32 v25, 1
    ds_write_b32 v24, v25
    s_branch cd_released
    cd_relay:
    ds_read_b32 v25, v24
    s_waitcnt lgkmcnt(0)
    v_readfirstlane_b32 s12, v25
    s_cmp_eq_u32 s12, 1
    s_cbranch_scc1 cd_released
    {"s_sleep 1" if RSLP else ""}
    s_branch cd_relay
    cd_released:
    """)
    st(1, 4)
    dmaD(0, " sc1"); dmaD(1, " sc1")
    for c in range(D_NCH):
        last = min(D_NCH - 1, c + 1)
        a(f"s_waitcnt vmcnt({8*(last - c)})")
        a("s_barrier")
        if c == 0: st(1, 5)
        if c + 2 < D_NCH and not NODMA: dmaD(c + 2, " sc1")
    a("s_endpgm")

    a(f"""
    cd_compute:
    v_lshlrev_b32 v8, 2, v0
    s_mul_i32 s12, s5, 384
    s_add_u32 s13, s12, {WS_CS}
    s_add_u32 s12, s12, {WS_B1P}
    v_and_b32 v6, 15, v1
    v_lshrrev_b32 v7, 2, v6                  ; r
    v_and_b32 v6, 3, v6                      ; c
    v_lshrrev_b32 v9, 5, v1                  ; g
    v_lshl_add_u32 v12, v9, 3, v7
    v_lshlrev_b32 v12, 8, v12
    v_bfe_u32 v13, v1, 4, 1
    v_lshlrev_b32 v13, 1, v13
    v_lshl_add_u32 v13, v3, 2, v13
    v_lshrrev_b32 v14, 1, v6
    v_add_u32 v13, v13, v14
    v_lshlrev_b32 v14, 2, v7
    v_xor_b32 v13, v13, v14
    v_lshl_add_u32 v12, v13, 4, v12
    v_and_b32 v6, 1, v6
    v_lshl_add_u32 v12, v6, 3, v12
    v_add_u32 v16, 12288, v12
    v_add_u32 v17, {2*C_SLOT}, v16
    v_mov_b32 v19, v4
    v_add_u32 v20, {2*C_SLOT}, v4
    v_mov_b32 v22, 0x3f803f80
    v_mov_b32 v23, 0x3f803f80
    v_add_u32 v9, {C_TAB}, v8
    v_lshrrev_b32 v14, 4, v0
    v_lshlrev_b32 v14, 7, v14
    v_and_b32 v21, 15, v0
    v_lshl_add_u32 v14, v21, 2, v14
    s_lshl_b32 s16, s53, 9
    s_add_u32 s16, s16, {WS_MODP + 160*128}
    v_lshlrev_b32 v15, 1, v0
    s_lshl_b32 s17, s53, 7
    v_add_u32 v15, s17, v15
    v_min_u32 v15, 1022, v15
    v_add_u32 v18, {D_TAB}, v8
    v_mov_b32 v24, 0
    v_mov_b32 v25, {D_FLG}
    ds_write_b32 v25, v24
    s_waitcnt lgkmcnt(0)
    """)
    srd(a, 8, 20, WS_SIZE)
    if MEGA: mega_sync(a, False)
    st(0, 0); st(3, 2)
    a(f"""
    buffer_load_dword v10, v8, s[8:11], s13 offen
    buffer_load_dword v11, v8, s[8:11], s12 offen
    buffer_load_dword v14, v14, s[8:11], s16 offen
    global_load_ushort v15, v15, s[46:47]
    """)
    def tables():
        a(f"""
        s_waitcnt vmcnt(0)
        v_lshlrev_b32 v15, 16, v15
        v_cmp_gt_u32 vcc, 96, v0
        s_and_saveexec_b64 s[14:15], vcc
        ds_write_b32 v9, v10
        ds_write_b32 v9, v11 offset:384
        s_mov_b64 exec, s[14:15]
        v_cmp_gt_u32 vcc, 64, v0
        s_and_saveexec_b64 s[14:15], vcc
        ds_write_b32 v18, v14
        ds_write_b32 v18, v15 offset:256
        s_mov_b64 exec, s[14:15]
        """)
    a("s_cmp_ge_u32 s5, 15\ns_cbranch_scc0 cd_doC")
    tables()
    a("s_waitcnt lgkmcnt(0)\ns_branch cd_cmp2\ncd_doC:")
    for r in range(ACC, FB): a(f"v_mov_b32 v{r}, 0")
    T = LdsTracker(a)
    def read_list(c, s):
        slot = c % C_NS
        grp = slot // 2; so = (slot % 2) * C_SLOT
        buf = (4 * c + s) % 3
        fb = FB + 16 * buf
        L = [(f"ds_read_b64_tr_b16 v[{fb+12}:{fb+13}], v{16+grp} offset:{so + s*4096}", [f"x{buf}"]),
             (f"ds_read_b64_tr_b16 v[{fb+14}:{fb+15}], v{16+grp} offset:{so + s*4096 + 1024}", [f"x{buf}"])]
        for b in range(3):
            L.append((f"ds_read_b128 v[{fb+4*b}:{fb+4*b+3}], v{19+grp} offset:{so + (b*4+s)*1024}", [f"w{buf}{b}"]))
        return L
    def mfmas(c, s, rd=()):
        rd = list(rd)
        def pop(n):
            for _ in range(n):
                if rd: T.issue(*rd.pop(0))
        buf = (4 * c + s) % 3; fb = FB + 16 * buf
        T.need([f"x{buf}", f"w{buf}0", f"w{buf}1", f"w{buf}2"])
        per = (len(rd) + 2) // 3
        for b in range(3):
            a(f"v_mfma_f32_32x32x16_bf16 v[{ACC+16*b}:{ACC+16*b+15}], v[{fb+4*b}:{fb+4*b+3}], v[{fb+12}:{fb+15}], v[{ACC+16*b}:{ACC+16*b+15}]")
            pop(per)
            if b == 0:
                a(f"v_mfma_f32_4x4x4_16b_bf16 v[{AQ}:{AQ+3}], v[{fb+12}:{fb+13}], v[{fb+12}:{fb+13}], v[{AQ}:{AQ+3}]")
                a(f"v_mfma_f32_4x4x4_16b_bf16 v[{AS}:{AS+3}], v[22:23], v[{fb+12}:{fb+13}], v[{AS}:{AS+3}]")
            if b == 1:
                a(f"v_mfma_f32_4x4x4_16b_bf16 v[{AQ+4}:{AQ+7}], v[{fb+14}:{fb+15}], v[{fb+14}:{fb+15}], v[{AQ+4}:{AQ+7}]")
                a(f"v_mfma_f32_4x4x4_16b_bf16 v[{AS+4}:{AS+7}], v[22:23], v[{fb+14}:{fb+15}], v[{AS+4}:{AS+7}]")
        pop(99)
    for c in range(8):
        if c == 1:
            tables()
            T.issued += 4
        T.drain()
        a("s_barrier")
        if c == 0: st(0, 1)
        if c > 0: mfmas(c - 1, 3, read_list(c, 0) + read_list(c, 1))
        else:
            for x in read_list(c, 0) + read_list(c, 1): T.issue(*x)
        mfmas(c, 0, read_list(c, 2))
        mfmas(c, 1, read_list(c, 3))
        mfmas(c, 2)
    T.drain()
    a("s_barrier")
    mfmas(7, 3)
    st(0, 2)
    a(f"""
    v_and_b32 v6, 3, v1
    v_cmp_eq_u32 s[12:13], 1, v6
    v_cmp_eq_u32 s[14:15], 2, v6
    v_cmp_eq_u32 s[16:17], 3, v6
    v_lshrrev_b32 v6, 5, v1
    v_lshlrev_b32 v6, 4, v6
    v_add_u32 v6, {C_TAB}, v6
    """)
    for q in range(4):
        a(f"ds_read_b128 v[{28+4*q}:{31+4*q}], v6 offset:{(8*q)*4}")
        a(f"ds_read_b128 v[{44+4*q}:{47+4*q}], v6 offset:{384 + (8*q)*4}")
    a(f"""
    v_add_f32 v{AQ}, v{AQ}, v{AQ+4}
    v_add_f32 v{AQ+1}, v{AQ+1}, v{AQ+5}
    v_add_f32 v{AQ+2}, v{AQ+2}, v{AQ+6}
    v_add_f32 v{AQ+3}, v{AQ+3}, v{AQ+7}
    v_add_f32 v{AS}, v{AS}, v{AS+4}
    v_cndmask_b32 v{AQ}, v{AQ}, v{AQ+1}, s[12:13]
    v_cndmask_b32 v{AQ}, v{AQ}, v{AQ+2}, s[14:15]
    v_cndmask_b32 v{AQ}, v{AQ}, v{AQ+3}, s[16:17]
    v_mov_b32 v25, v{AS}
    v_mov_b32 v24, v{AQ}
    s_nop 1
    v_permlane32_swap_b32 v25, v{AS}
    v_permlane32_swap_b32 v24, v{AQ}
    s_nop 1
    v_add_f32 v25, v25, v{AS}
    v_add_f32 v24, v24, v{AQ}
    v_mul_f32 v25, {fx(1.0/512)}, v25
    v_mul_f32 v24, {fx(1.0/512)}, v24
    v_fma_f32 v24, -v25, v25, v24
    v_max_f32 v24, 0, v24
    v_add_f32 v24, {fx(1e-5)}, v24
    v_rsq_f32 v24, v24                       ; r
    s_lshl_b32 s12, s4, 2
    v_mul_f32 v26, -v25, v24                 ; -mean*r
    s_add_u32 s12, s12, s26
    s_mul_i32 s12, s12, {HS}
    v_mov_b32 v25, v24
    v_mov_b32 v27, v26
    s_mul_i32 s13, s5, 6
    s_add_u32 s12, s12, s13
    s_lshl_b32 s12, s12, 10
    s_add_u32 s12, s12, {WS_HID}
    """)
    for b in range(3):
        cs, bb = (28, 44) if b % 2 == 0 else (144, 160)
        a("s_waitcnt lgkmcnt(0)")
        if b < 2:
            cs2, bb2 = (144, 160) if b % 2 == 0 else (28, 44)
            for q in range(4):
                a(f"ds_read_b128 v[{cs2+4*q}:{cs2+4*q+3}], v6 offset:{(32*(b+1) + 8*q)*4}")
                a(f"ds_read_b128 v[{bb2+4*q}:{bb2+4*q+3}], v6 offset:{384 + (32*(b+1) + 8*q)*4}")
        for j in range(8):
            a(f"v_pk_fma_f32 v[{bb+2*j}:{bb+2*j+1}], v[26:27], v[{cs+2*j}:{cs+2*j+1}], v[{bb+2*j}:{bb+2*j+1}]")
        for j in range(8):
            a(f"v_pk_fma_f32 v[{bb+2*j}:{bb+2*j+1}], v[24:25], v[{ACC+16*b+2*j}:{ACC+16*b+2*j+1}], v[{bb+2*j}:{bb+2*j+1}]")
        for j in range(16): a(f"v_max_f32 v{bb+j}, 0, v{bb+j}")
        for j in range(8): a(f"v_pk_mul_f32 v[{bb+2*j}:{bb+2*j+1}], v[{bb+2*j}:{bb+2*j+1}], v[{bb+2*j}:{bb+2*j+1}]")
        o = ACC + 16 * b
        for j in range(8): a(f"v_cvt_pk_bf16_f32 v{o+j}, v{bb+2*j}, v{bb+2*j+1}")
        a("s_nop 1")
        a(f"v_permlane32_swap_b32 v{o}, v{o+2}")
        a(f"v_permlane32_swap_b32 v{o+1}, v{o+3}")
        a(f"v_permlane32_swap_b32 v{o+4}, v{o+6}")
        a(f"v_permlane32_swap_b32 v{o+5}, v{o+7}")
        a(f"buffer_store_dwordx4 v[{o}:{o+3}], v4, s[8:11], s12 offen sc1")
        a(f"buffer_store_dwordx4 v[{o+4}:{o+7}], v4, s[8:11], s12 offen offset:1024 sc1")
        a("s_add_u32 s12, s12, 2048")
        if b == 0:
            a(f"""
            s_cmp_eq_u32 s5, 14
            s_cbranch_scc0 cd_more
            s_waitcnt lgkmcnt(0)
            v_mov_b32 v28, 0
            v_mov_b32 v29, 0
            v_mov_b32 v30, 0
            v_mov_b32 v31, 0
            buffer_store_dwordx4 v[28:31], v4, s[8:11], s12 offen sc1
            buffer_store_dwordx4 v[28:31], v4, s[8:11], s12 offen offset:1024 sc1
            s_branch cd_cmp2
            cd_more:
            """)
    ACC, FB = 64, 80
    a(f"""
    cd_cmp2:
    s_and_b32 s27, s26, 1                    ; wm
    s_lshr_b32 s28, s26, 1                   ; wn
    v_and_b32 v6, 15, v1
    v_lshrrev_b32 v7, 2, v6                  ; r
    v_and_b32 v6, 3, v6                      ; c
    v_lshrrev_b32 v12, 5, v1                 ; g
    v_lshl_add_u32 v12, v12, 3, v7
    v_lshlrev_b32 v12, 7, v12
    v_bfe_u32 v13, v1, 4, 1
    v_lshlrev_b32 v13, 1, v13
    s_lshl_b32 s12, s27, 2
    v_add_u32 v13, s12, v13
    v_lshrrev_b32 v16, 1, v6
    v_add_u32 v13, v13, v16
    v_lshrrev_b32 v7, 1, v7
    v_lshlrev_b32 v7, 2, v7
    v_xor_b32 v13, v13, v7
    v_lshl_add_u32 v12, v13, 4, v12
    v_and_b32 v6, 1, v6
    v_lshl_add_u32 v16, v6, 3, v12
    v_add_u32 v17, 65536, v16
    s_lshl_b32 s12, s28, 13
    s_add_u32 s12, s12, {D_HID}
    v_add_u32 v18, s12, v4
    s_waitcnt vmcnt(0)
    """)
    st(0, 3)
    a("s_barrier")
    for r in range(16): a(f"v_mov_b32 v{ACC+r}, 0")
    T = LdsTracker(a)
    NB = 5
    def reads(c, s):
        wo = (c % NW) * 16384; grp = wo // 65536; wo %= 65536
        ho = (c % NH) * 16384
        g = (8 * c + s) % NB
        fb = FB + 8 * g
        T.issue(f"ds_read_b64_tr_b16 v[{fb}:{fb+1}], v{16+grp} offset:{wo + s*2048}", [f"a{g}"])
        T.issue(f"ds_read_b64_tr_b16 v[{fb+2}:{fb+3}], v{16+grp} offset:{wo + s*2048 + 512}", [f"a{g}"])
        T.issue(f"ds_read_b128 v[{fb+4}:{fb+7}], v{18} offset:{ho + s*1024}", [f"b{g}"])
    def mfma(c, s):
        g = (8 * c + s) % NB; fb = FB + 8 * g
        T.need([f"a{g}", f"b{g}"])
        a(f"v_mfma_f32_32x32x16_bf16 v[{ACC}:{ACC+15}], v[{fb}:{fb+3}], v[{fb+4}:{fb+7}], v[{ACC}:{ACC+15}]")
    def epi_prepare():
        a(f"""
        v_and_b32 v6, 15, v1
        v_lshrrev_b32 v7, 2, v6
        v_and_b32 v6, 3, v6
        v_lshrrev_b32 v12, 5, v1                 ; h
        v_lshl_add_u32 v13, v12, 2, v7
        s_lshl_b32 s12, s27, 5
        v_add_u32 v13, s12, v13
        v_lshlrev_b32 v13, 7, v13
        v_bfe_u32 v14, v1, 4, 1
        v_lshlrev_b32 v14, 1, v14
        s_lshl_b32 s12, s28, 2
        v_add_u32 v14, s12, v14
        v_lshrrev_b32 v15, 1, v6
        v_add_u32 v14, v14, v15
        v_lshrrev_b32 v7, 1, v7
        v_lshlrev_b32 v7, 2, v7
        v_xor_b32 v14, v14, v7
        v_lshl_add_u32 v13, v14, 4, v13
        v_and_b32 v6, 1, v6
        v_lshl_add_u32 v13, v6, 3, v13
        v_add_u32 v13, {D_X2}, v13
        v_lshlrev_b32 v14, 4, v12
        s_lshl_b32 s12, s27, 7
        s_add_u32 s12, s12, {D_TAB}
        v_add_u32 v14, s12, v14
        """)
        for q in range(4):
            T.issue(f"ds_read_b64_tr_b16 v[{24+2*q}:{25+2*q}], v13 offset:{1024*q}", ["epi"])
            T.issue(f"ds_read_b128 v[{32+4*q}:{35+4*q}], v14 offset:{32*q}", ["epi"])
            T.issue(f"ds_read_b128 v[{48+4*q}:{51+4*q}], v14 offset:{256+32*q}", ["epi"])
        a(f"""
        v_and_b32 v5, 31, v1
        v_lshlrev_b32 v20, 10, v5
        v_lshl_add_u32 v20, v12, 4, v20
        s_lshl_b32 s12, s52, 1
        s_add_u32 s12, s12, s28
        s_lshl_b32 s12, s12, 15
        s_lshl_b32 s13, s53, 1
        s_add_u32 s13, s13, s27
        s_lshl_b32 s13, s13, 6
        s_add_u32 s12, s12, s13
        v_add_u32 v20, s12, v20
        """)
    def epi_finish():
        T.need(["epi"])
        for q in range(4):
            a(f"v_lshlrev_b32 v8, 16, v{24+2*q}")
            a(f"v_and_b32 v9, 0xffff0000, v{24+2*q}")
            a(f"v_lshlrev_b32 v10, 16, v{25+2*q}")
            a(f"v_and_b32 v11, 0xffff0000, v{25+2*q}")
            for r in range(4): a(f"v_fma_f32 v{48+4*q+r}, v{48+4*q+r}, v{32+4*q+r}, v{8+r}")
    epi_prepare(); epi_finish()
    EPC = -5
    for c in range(D_NCH):
        T.drain()
        a("s_barrier")
        if c == 0: st(0, 4)
        if c in (0, 2, 4, 6, 8, 10): st(2, c // 2)
        reads(c, 0); reads(c, 1); reads(c, 2); reads(c, 3)
        if c > 0: mfma(c - 1, 7)
        for s in range(7):
            if s + 4 < 8: reads(c, s + 4)
            mfma(c, s)
            if c == EPC and s == 1: epi_prepare()
            if c == EPC + 1 and s == 2: epi_finish()
    mfma(D_NCH - 1, 7)
    st(0, 5)
    a("s_nop 7\ns_nop 3")
    for q in range(4):
        for r in range(4): a(f"v_fma_f32 v{48+4*q+r}, v{ACC+4*q+r}, v{32+4*q+r}, v{48+4*q+r}")
        a(f"v_cvt_pk_bf16_f32 v{FB+2*q}, v{48+4*q}, v{49+4*q}")
        a(f"v_cvt_pk_bf16_f32 v{FB+2*q+1}, v{50+4*q}, v{51+4*q}")
    a(f"""
    s_nop 1
    v_permlane32_swap_b32 v{FB}, v{FB+2}
    v_permlane32_swap_b32 v{FB+1}, v{FB+3}
    v_permlane32_swap_b32 v{FB+4}, v{FB+6}
    v_permlane32_swap_b32 v{FB+5}, v{FB+7}
    global_store_dwordx4 v20, v[{FB}:{FB+3}], s[48:49]{OUTSC}
    global_store_dwordx4 v20, v[{FB+4}:{FB+7}], s[48:49] offset:32{OUTSC}
    cd_exit:
    s_endpgm
    """)

def gen_MEGA(a):
    gen_AB(a)
    a("mega_next:\ns_setprio 0")
    if CSET == 3: a.stamp(0)
    B2 = WS_CNT + 16 * 128
    a(f"""
    v_lshrrev_b32 v28, 6, v0
    s_and_b32 s12, s2, 7
    v_readfirstlane_b32 s13, v28
    s_lshl_b32 s12, s12, 11
    s_add_u32 s12, s12, {B2}
    v_and_b32 v30, 15, v0
    v_lshl_add_u32 v30, v30, 7, s12
    v_mov_b32 v31, 1
    s_barrier
    s_cmp_eq_u32 s13, 4
    s_cbranch_scc0 mega_arrived
    s_mov_b64 exec, 0xffff
    global_atomic_add v30, v31, s[22:23] sc1
    s_mov_b64 exec, -1
    mega_arrived:
    """)
    if CSET == 3: a.stamp(1)
    gen_CD(a)
    a("ab_other:\ns_endpgm")
    a.l.append(idx_table())

if __name__ == "__main__":
    if MEGA:
        ks = [(NAME + "_kernel", gen_MEGA, 176, 256, 512, max(AB_LDS, CD_LDS))]
    else:
        ks = [("convab_kernel", gen_AB, 128, AB_GRID, 512, AB_LDS),
              ("mlp_kernel", gen_CD, 176, CD_GRID, 512, CD_LDS)]
    s = build(ks)
    path = sys.argv[1] if len(sys.argv) > 1 else "out.s"
    open(path, "w").write(s)
    print("wrote", path, len(s))
```

```python
import sys, os
os.environ["MODP"] = "1"
import g3
from g3 import *
import g3b
from g3b import gen_C, gen_D, C_GRID, C_LDS, D_GRID, D_LDS, KCP, KCHL

NMAIN, NW1 = 256, 43
TCH = 57 * TROW
H_OFF = 2 * KCHL
HCH = 4608
XR_OFF = H_OFF + 2 * HCH
RED_OFF = XR_OFF + 8192
LNT = 62016
KC2 = LNT + 4 * 2560
KCS = 776 * 4
MODS = KC2 + 2 * KCS
STP = MODS + 16 * 80
FLG = STP + 256
CNT = FLG + 16
NW1 = 86
IMG = 80128
RED2 = IMG + 16384
GOE = RED2 + 2304
AB_LDS = GOE + 16
assert CNT + 32 <= IMG
AB_GRID = NMAIN
XBS = 8192
WS_MODP = 0x10000
WS_CNT = 0x28000
WS_B1 = WS_CNT + 192 * 128
WS_GO = 0x20000
WS_XB = WS_XT
SET = int(os.environ.get("STAMPSET", 0))
PPRIO = int(os.environ.get("PPRIO", 1))
X2SC = os.environ.get("X2SC", " sc1" if os.environ.get("MEGA") == "1" else "")
X2W = bool(os.environ.get("X2W")) or os.environ.get("MEGA") == "1"
W1SC = os.environ.get("W1SC", " sc1")
KP0 = int(os.environ.get("KP0", 3))
KP1 = int(os.environ.get("KP1", 0))
MEGA = os.environ.get("MEGA") == "1"
RSLP = int(os.environ.get("RSLP", 0))
SPIN_MAX = 0x20000

def lds_arrive(a, k, v):
    a(f"""
    v_mov_b32 v{v}, {CNT + 4*k}
    v_mov_b32 v{v+1}, 1
    s_mov_b64 exec, 1
    ds_add_u32 v{v}, v{v+1}
    s_mov_b64 exec, -1
    """)
def lds_wait(a, k, n, v, tag, slp=1):
    a(f"""
    v_mov_b32 v{v}, {CNT + 4*k}
    lw_{tag}:
    ds_read_b32 v{v+1}, v{v}
    s_waitcnt lgkmcnt(0)
    v_readfirstlane_b32 s62, v{v+1}
    s_cmp_ge_u32 s62, {n}
    s_cbranch_scc1 lw_{tag}_done
    {("s_sleep %d" % slp) if slp else ""}
    s_branch lw_{tag}
    lw_{tag}_done:
    """)

def h_addr(a, toff):
    a(f"""
    v_add_u32 v11, {toff}, v0
    v_lshrrev_b32 v12, 1, v11                ; block
    v_and_b32 v10, 1, v11                    ; ch
    v_lshlrev_b32 v4, 13, v12
    v_lshl_add_u32 v4, v10, 4, v4
    s_lshl_b32 s38, s29, 4
    s_add_u32 s38, s38, {WS_XB}
    v_add_u32 v4, s38, v4
    v_lshlrev_b32 v5, 5, v12
    v_add_u32 v5, {WS_ST1}, v5               ; statistics
    s_lshr_b32 s38, s29, 4
    s_lshl_b32 s38, s38, 7
    s_and_b32 s39, s29, 15
    s_lshl_b32 s39, s39, 2
    s_add_u32 s38, s38, s39
    s_add_u32 s38, s38, {WS_MODP}
    v_lshl_add_u32 v6, v10, 2, s38
    v_mul_u32_u24 v7, {HCH}, v10
    v_lshl_add_u32 v7, v12, 4, v7
    v_add_u32 v7, {H_OFF + 512}, v7          ; h (LDS)
    v_lshlrev_b32 v8, 12, v10
    v_lshl_add_u32 v8, v12, 4, v8
    v_add_u32 v8, {XR_OFF}, v8
    v_lshlrev_b32 v9, 2, v10
    v_add_u32 v9, {MODS}, v9
    v_add_u32 v13, 4096, v6
    v_add_u32 v14, 4096, v13
    """)
def h_body(a, extra=None, nextra=0):
    a(f"""
    global_load_dwordx4 v[64:67], v4, s[22:23] sc1
    global_load_dwordx4 v[68:71], v5, s[22:23] sc1
    global_load_dwordx4 v[72:75], v5, s[22:23] offset:16 sc1
    global_load_dword v76, v6, s[22:23] sc1
    global_load_dword v77, v13, s[22:23] sc1
    global_load_dword v78, v14, s[22:23] sc1
    """)
    if extra: extra()
    a(f"""
    s_waitcnt vmcnt({5 + nextra})
    ds_write_b128 v8, v[64:67]
    """)
    for e in range(8):
        src = 64 + e // 2
        a(f"v_lshlrev_b32 v{80+e}, 16, v{src}" if e % 2 == 0 else f"v_and_b32 v{80+e}, 0xffff0000, v{src}")
    a(f"s_waitcnt vmcnt({3 + nextra})")
    for e in range(8):
        a(f"v_lshlrev_b32 v{12+(e%4)}, 16, v{68+e}")
        a(f"v_and_b32 v{68+e}, 0xffff0000, v{68+e}")
        a(f"v_fma_f32 v{80+e}, v{80+e}, v{12+(e%4)}, v{68+e}")
    a(f"""
    s_waitcnt vmcnt({nextra})
    v_add_f32 v77, 1.0, v77
    v_cvt_pk_bf16_f32 v77, v77, v77
    ds_write_b32 v9, v78                     ; ga
    v_lshlrev_b32 v77, 16, v77               ; gamma
    """)
    for e in range(8): a(f"v_fma_f32 v{80+e}, v{80+e}, v77, v76")
    for p in range(4): a(f"v_cvt_pk_bf16_f32 v{88+p}, v{80+2*p}, v{81+2*p}")
    a("ds_write_b128 v7, v[88:91]")
    a("s_waitcnt lgkmcnt(0)")

IDX0 = 62428
def idx_table():
    import numpy as np
    def bf16_round_int(l):
        u = int(np.float32(l).view(np.uint32))
        r = (u + 0x7FFF + ((u >> 16) & 1)) >> 16
        return r
    rows = []
    for t in range(256):
        vals = []
        for e in range(12):
            l = 2047 - 8 * t - e
            if e == 11: vals.append(0); continue
            if l < 0: idx = 768
            elif l < 128: idx = l
            else: idx = bf16_round_int(l) - 0x4300 + 128
            vals.append(4 * idx + KC2 - IDX0)
        rows.append(vals)
    out = ".p2align 4\n.type kidx_table,@object\nkidx_table:\n"
    for r in rows: out += "    .short " + ", ".join(str(v) for v in r) + "\n"
    out += ".size kidx_table, 6144\n"
    return out
def idx_load(a, tag, d):
    a(f"""
    s_getpc_b64 s[56:57]
    idx_pc_{tag}:
    s_add_u32 s56, s56, kidx_table-idx_pc_{tag}
    s_addc_u32 s57, s57, 0
    v_mul_u32_u24 v{d+6}, 24, v0
    global_load_dwordx4 v[{d}:{d+3}], v{d+6}, s[56:57]
    global_load_dwordx2 v[{d+4}:{d+5}], v{d+6}, s[56:57] offset:16
    """)
def idx_unpack(a, d, o):
    for e in range(11):
        a(f"v_and_b32 v{o+e}, 0xffff, v{d+e//2}" if e % 2 == 0 else f"v_lshrrev_b32 v{o+e}, 16, v{d+e//2}")

def gen_kwaves(a):
    VA, VB, VY = 32, 64, 96
    a(f"""
    kwaves:
    s_setprio {KP0}
    s_load_dwordx4 s[8:11], s[0:1], 8
    s_load_dwordx4 s[12:15], s[0:1], 24
    s_load_dwordx4 s[16:19], s[0:1], 40
    s_load_dwordx4 s[40:43], s[0:1], 56
    s_load_dwordx4 s[20:23], s[0:1], 136
    s_lshr_b32 s27, s26, 1                   ; ch
    s_and_b32 s28, s26, 1                    ; hf
    s_add_u32 s30, s29, s27                  ; d
    s_lshl_b32 s34, s30, 8
    s_lshl_b32 s35, s28, 7
    s_add_u32 s34, s34, s35
    v_lshl_add_u32 v36, v1, 1, s34
    s_lshl_b32 s35, s29, 1
    s_waitcnt lgkmcnt(0)
    """)
    if SET in (0, 3): a.stamp(0)
    a(f"""
    s_cmp_eq_u32 s2, 0
    s_cselect_b32 s62, s26, 0
    s_cmp_eq_u32 s62, 3
    s_cbranch_scc0 k_nozero
    v_lshlrev_b32 v60, 7, v1
    v_add_u32 v60, {WS_B1}, v60
    v_mov_b32 v62, 0
    v_mov_b32 v63, 0
    v_mov_b32 v64, 0
    v_mov_b32 v65, 0
    global_store_dwordx4 v60, v[62:65], s[22:23] sc1
    v_add_u32 v60, 8192, v60
    global_store_dwordx4 v60, v[62:65], s[22:23] sc1
    k_nozero:
    """)
    for i, sp in enumerate((8, 10, 12, 14, 16, 18)):
        a(f"global_load_ushort v{40+i}, v36, s[{sp}:{sp+1}]")
    a("s_load_dword s24, s[40:41], s35\ns_load_dword s25, s[42:43], s35")
    idx_load(a, "k", 104)
    a(f"s_setprio {KP1}")
    if SET == 3: a.stamp(1)
    a(f"""
    s_waitcnt lgkmcnt(0)
    s_lshl_b32 s36, s27, 4
    s_lshr_b32 s24, s24, s36
    s_lshl_b32 s24, s24, 16                  ; log_dt[d]
    s_lshr_b32 s25, s25, s36
    s_lshl_b32 s25, s25, 16                  ; Dskip[d]
    v_mov_b32 v5, s24
    v_mul_f32 v6, 0x3fb8aa3b, v5
    s_mov_b32 s36, 0x3fb8aa3b
    v_fma_f32 v7, v5, s36, -v6
    v_fmac_f32 v7, 0x32a5705f, v5
    v_exp_f32 v6, v6
    v_mul_f32 v7, {fx(0.6931471805599453)}, v7
    v_fmac_f32 v6, v6, v7
    v_cvt_pk_bf16_f32 v6, v6, v6
    v_lshlrev_b32 v6, 16, v6                 ; dt
    s_mul_i32 s36, s27, {TCH}
    s_lshl_b32 s37, s28, 8
    s_add_u32 s36, s36, s37
    v_lshl_add_u32 v2, v1, 2, s36
    v_mov_b32 v4, 0
    v_mov_b32 v5, {KC2 + 768*4}
    ds_write_b32 v5, v4
    ds_write_b32 v5, v4 offset:{KCS}
    s_waitcnt vmcnt(6)
    v_lshlrev_b32 v40, 16, v40
    v_lshlrev_b32 v41, 16, v41
    v_mul_f32 v10, v6, v40
    v_mul_f32 v11, v6, v41
    v_mul_f32 v10, 0x3fb8aa3b, v10
    v_mul_f32 v11, {fx(0.15915494309189535)}, v11
    """)
    if SET == 0: a.stamp(1)
    if SET == 3: a.stamp(2)
    def direct(dst, l, t):
        a(f"""
        v_mul_f32 v{t}, {fx(float(l))}, v10
        v_mul_f32 v{t+1}, {fx(float(l))}, v11
        v_exp_f32 v{t}, v{t}
        v_fract_f32 v{t+1}, v{t+1}
        v_cos_f32 v{dst}, v{t+1}
        v_sin_f32 v{dst+1}, v{t+1}
        s_nop 0
        v_mul_f32 v{dst}, v{t}, v{dst}
        v_mul_f32 v{dst+1}, v{t}, v{dst+1}
        """)
    tmpw = [0]
    def wr(row, src, neg=False):
        tmp = 62 + (tmpw[0] % 2); tmpw[0] += 1
        a(f"v_cvt_pk_bf16_f32 v{tmp}, v{src}, {'-' if neg else ''}v{src+1}")
        a(f"ds_write_b32 v2, v{tmp} offset:{row*TROW}")
    E = [None, 64, 66, 68, 70, 72, 74, 76]
    E8, E128, X, Y2, Q, R = 78, 80, 82, 84, 86, 88
    S = [12, 14, 16, 18]
    T0, T1, T2 = 28, 30, 32
    direct(E[1], 1, 28); direct(E128, 128, 30)
    a("""
    s_waitcnt vmcnt(2)
    v_lshlrev_b32 v42, 16, v42
    v_lshlrev_b32 v43, 16, v43
    v_lshlrev_b32 v44, 16, v44
    v_lshlrev_b32 v45, 16, v45
    v_mul_f32 v42, v6, v42
    v_mul_f32 v43, v6, v43
    s_cmp_eq_u32 s2, 0
    s_cselect_b32 s62, s26, 0
    s_cmp_eq_u32 s62, 3
    s_cbranch_scc0 k_noflag
    v_lshlrev_b32 v60, 6, v1
    v_add_u32 v60, 4, v60
    v_mov_b32 v61, 1
    s_mov_b64 exec, 15
    global_atomic_add v60, v61, s[20:21] sc1
    s_mov_b64 exec, -1
    k_noflag:
    """)
    cmul(a, Q, 44, 42, T2)
    a("v_mov_b32 v62, 0x3f80\nds_write_b32 v2, v62 offset:0"); tmpw[0] = 1
    cmul(a, E[2], E[1], E[1], T0); cmul(a, X, E128, E128, T1)
    wr(1, E[1]); wr(8, E128); wr(QROW, Q, True)
    cmul(a, E[4], E[2], E[2], T0); cmul(a, E[3], E[2], E[1], T1); cmul(a, R, X, X, T2)
    wr(2, E[2]); wr(16, X)
    cmul(a, E8, E[4], E[4], T0); cmul(a, E[5], E[4], E[1], T1); cmul(a, E[6], E[3], E[3], T2)
    wr(3, E[3]); wr(4, E[4]); wr(24, R)
    cmul(a, E[7], E[4], E[3], T0); cmul(a, Y2, R, E[4], T1)
    cmul(a, S[1], X, E[2], T2); cmul(a, S[2], X, E[4], T0); cmul(a, S[3], X, E[6], T1)
    wr(5, E[5]); wr(6, E[6]); wr(7, E[7]); wr(25, Y2)
    cmul(a, S[0], X, E128, T2)
    a(f"v_mov_b64 v[{X}:{X+1}], v[{R}:{R+1}]")
    cmul(a, R, R, R, T0)
    wr(17, S[1]); wr(18, S[2]); wr(19, S[3]); wr(20, S[0])
    for r in range(1, 4): cmul(a, S[r], S[r], E128, (T0, T1, T2)[r % 3])
    for r in range(1, 4): wr(20 + r, S[r])
    wr(32, R)
    Z = S[0]
    for i in range(1, 16):
        cmul(a, Q, Q, E8, T0)
        if i <= 8: cmul(a, R, R, E128, T1)
        if i <= 7: cmul(a, Z, E128, E[i], T2)
        if i <= 3:
            cmul(a, X, X, E128, 34); cmul(a, Y2, Y2, E128, 36)
        wr(QROW + i, Q, True)
        if i <= 8: wr(32 + i, R)
        if i <= 7: wr(8 + i, Z)
        if i <= 3:
            wr(24 + 2 * i, X); wr(25 + 2 * i, Y2)
    a(f"""
    v_and_b32 v4, 15, v0
    v_bfe_u32 v5, v0, 4, 2
    v_lshlrev_b32 v7, 4, v5
    v_mul_u32_u24 v8, {TROW}, v4
    v_add_u32 v8, v8, v7
    s_mul_i32 s36, s27, {TCH}
    v_add_u32 v8, s36, v8
    v_add_u32 v9, {QROW*TROW}, v8            ; B address
    s_mul_i32 s37, s28, {32*TROW}
    v_add_u32 v12, s37, v8
    s_mul_i32 s37, s28, {16*TROW}
    s_add_u32 s37, s37, {16*TROW}
    v_add_u32 v13, s37, v8
    """)
    for r in range(20, 36): a(f"v_mov_b32 v{r}, 0")
    a(f"""
    s_mul_i32 s36, s27, {KCS}
    s_add_u32 s36, s36, {KC2}
    s_cmp_eq_u32 s28, 1
    s_cbranch_scc1 k_t2
    v_and_b32 v7, 1, v5
    v_lshlrev_b32 v7, 2, v7
    v_lshrrev_b32 v14, 1, v5
    v_lshl_add_u32 v7, v14, 7, v7
    v_lshl_add_u32 v7, v4, 3, v7
    v_lshl_add_u32 v14, v7, 2, s36
    v_add_u32 v15, 4, v14
    v_add_u32 v16, 8, v14
    v_add_u32 v17, 12, v14
    v_cmp_gt_u32 vcc, 2, v5
    v_lshlrev_b32 v7, 6, v5
    v_add_u32 v7, 256, v7
    v_lshlrev_b32 v40, 2, v4
    v_lshlrev_b32 v41, 1, v4
    v_cndmask_b32 v40, v41, v40, vcc
    v_add_u32 v7, v7, v40
    v_lshl_add_u32 v40, v7, 2, s36
    v_add_u32 v41, 4, v40
    v_mov_b32 v42, 128
    v_cndmask_b32 v42, v42, 8, vcc
    v_add_u32 v42, v40, v42
    v_add_u32 v43, 4, v42
    s_branch k_addr
    k_t2:
    v_lshl_add_u32 v7, v5, 6, v4
    v_lshl_add_u32 v14, v7, 2, s36
    v_add_u32 v14, {512*4}, v14
    v_add_u32 v15, 64, v14
    v_add_u32 v16, 128, v14
    v_add_u32 v17, 192, v14
    v_mov_b32 v40, v14
    v_mov_b32 v41, v15
    v_mov_b32 v42, v16
    v_mov_b32 v43, v17
    k_addr:
    v_cmp_eq_u32 vcc, 0, v1
    s_cmp_eq_u32 s28, 0
    s_cselect_b32 s25, s25, 0
    v_mov_b32 v7, s25
    v_cndmask_b32 v7, 0, v7, vcc
    s_waitcnt lgkmcnt(0)
    """)
    a("s_waitcnt vmcnt(0)")
    idx_unpack(a, 104, 112)
    if SET == 0: a.stamp(2)
    if SET == 3: a.stamp(3)
    lds_arrive(a, 2, 38); lds_wait(a, 2, 4, 38, "k1")
    def rd(s):
        o = 64 + 12 * (s % 4)
        a(f"ds_read_b128 v[{o}:{o+3}], v9 offset:{64*s}")
        a(f"ds_read_b128 v[{o+4}:{o+7}], v12 offset:{64*s}")
        a(f"ds_read_b128 v[{o+8}:{o+11}], v13 offset:{64*s}")
    for s in range(4): rd(s)
    for s in range(8):
        o = 64 + 12 * (s % 4); p = s % 2
        a(f"s_waitcnt lgkmcnt({9 if s < 5 else 3*(7-s)})")
        a(f"v_mfma_f32_16x16x32_bf16 v[{20+8*p}:{23+8*p}], v[{o+4}:{o+7}], v[{o}:{o+3}], v[{20+8*p}:{23+8*p}]")
        a(f"v_mfma_f32_16x16x32_bf16 v[{24+8*p}:{27+8*p}], v[{o+8}:{o+11}], v[{o}:{o+3}], v[{24+8*p}:{27+8*p}]")
        if s < 4: rd(s + 4)
    a("s_nop 7")
    for r in range(8): a(f"v_add_f32 v{20+r}, v{20+r}, v{28+r}")
    a(f"""
    v_add_f32 v20, v20, v7
    ds_write_b32 v14, v20
    ds_write_b32 v15, v21
    ds_write_b32 v16, v22
    ds_write_b32 v17, v23
    ds_write_b32 v40, v24
    ds_write_b32 v41, v25
    ds_write_b32 v42, v26
    ds_write_b32 v43, v27
    """)
    lds_arrive(a, 3, 38); lds_wait(a, 3, 4, 38, "k2")
    if SET == 0: a.stamp(3)
    for ch in range(2):
        for e in range(11): a(f"ds_read_b32 v{64+12*ch+e}, v{112+e} offset:{IDX0 + ch*KCS}")
    a(f"""
    v_lshlrev_b32 v4, 4, v0                  ; tid*16
    v_mov_b32 v56, 0
    v_mov_b32 v57, 0
    v_mov_b32 v58, 0
    v_mov_b32 v59, 0
    v_lshrrev_b32 v60, 1, v0
    v_mul_u32_u24 v60, {KCP}, v60
    v_and_b32 v61, 1, v0
    v_lshl_add_u32 v60, v61, 4, v60
    v_add_u32 v60, 4096, v60
    v_bfe_u32 v61, v0, 5, 1
    v_mul_u32_u24 v61, {HCH}, v61
    v_and_b32 v62, 31, v0
    v_lshl_add_u32 v61, v62, 4, v61
    v_add_u32 v61, {H_OFF}, v61
    v_cmp_gt_u32 vcc, 16, v0
    s_cmp_eq_u32 s26, 1
    s_cbranch_scc1 k_padh
    s_cmp_eq_u32 s26, 0
    s_cbranch_scc0 k_pad_done
    s_and_saveexec_b64 s[54:55], vcc
    ds_write_b128 v60, v[56:59]
    s_mov_b64 exec, s[54:55]
    s_branch k_pad_done
    k_padh:
    ds_write_b128 v61, v[56:59]
    k_pad_done:
    s_waitcnt lgkmcnt(0)
    """)
    for ch in range(2):
        for c in range(4):
            o = 96 + 4 * (c % 2)
            for k in range(4): a(f"v_cvt_pk_bf16_f32 v{o+k}, v{64+12*ch+c+2*k}, v{64+12*ch+c+2*k+1}")
            a(f"ds_write_b128 v4, v[{o}:{o+3}] offset:{ch*KCHL + c*KCP}")
    a(f"""
    v_and_b32 v7, 15, v1
    v_lshrrev_b32 v2, 4, v1
    v_sub_u32 v60, 3, v7
    v_and_b32 v60, 3, v60
    v_mul_u32_u24 v61, {KCP - 2}, v60
    v_lshlrev_b32 v62, 1, v7
    v_sub_u32 v61, v61, v62
    v_lshl_add_u32 v61, v2, 4, v61
    s_mul_i32 s38, s27, {KCHL}
    s_lshl_b32 s39, s28, 8
    s_sub_u32 s38, s38, s39
    s_add_u32 s38, s38, {2*(2031 - 32*59)}
    v_add_u32 v20, s38, v61                  ; A base
    v_lshlrev_b32 v21, 5, v7
    v_lshl_add_u32 v21, v2, 4, v21
    s_mul_i32 s38, s27, {HCH}
    s_sub_u32 s38, s38, s39
    s_add_u32 s38, s38, {H_OFF + 2*(240 - 96)}
    v_add_u32 v21, s38, v21                  ; B base
    v_lshlrev_b32 v22, 5, v7
    v_lshl_add_u32 v22, v2, 3, v22
    s_lshl_b32 s38, s27, 12
    s_lshl_b32 s39, s28, 11
    s_add_u32 s38, s38, s39
    s_add_u32 s38, s38, {XR_OFF}
    v_add_u32 v23, s38, v22
    s_lshl_b32 s38, s30, 12
    s_lshl_b32 s39, s28, 11
    s_add_u32 s38, s38, s39
    s_add_u32 s38, s38, {WS_X2T}
    s_add_u32 s50, s22, s38
    s_addc_u32 s51, s23, 0
    s_lshl_b32 s43, s26, 12
    s_add_u32 s43, s43, {RED_OFF}
    v_lshlrev_b32 v24, 4, v1
    v_add_u32 v25, s43, v24
    s_xor_b32 s43, s26, 1
    s_lshl_b32 s43, s43, 12
    s_add_u32 s43, s43, {RED_OFF}
    v_add_u32 v26, s43, v24
    s_lshl_b32 s43, s27, 2
    s_add_u32 s43, s43, {MODS}
    v_mov_b32 v27, s43
    s_lshl_b32 s43, s26, 2
    s_add_u32 s43, s43, {FLG}
    v_mov_b32 v29, s43
    s_xor_b32 s43, s43, 4
    v_mov_b32 v30, s43
    v_mov_b32 v31, 0
    ds_write_b32 v29, v31
    v_lshlrev_b32 v24, 5, v7
    v_lshrrev_b32 v60, 1, v2
    v_lshl_add_u32 v24, v60, 4, v24
    v_and_b32 v60, 1, v2
    v_lshl_add_u32 v24, v60, 9, v24
    """)
    for t in range(8):
        for r in range(4): a(f"v_mov_b32 v{VY+4*t+r}, 0")
    lds_arrive(a, 5, 36);
    h_addr(a, 0)
    lds_wait(a, 5, 4, 36, "k3")
    T = LdsTracker(a)
    def ldA(p, r):
        off = 512 * (7 - p) + 64 * (3 - r)
        T.issue(f"ds_read_b64 v[{VA+4*p}:{VA+4*p+1}], v20 offset:{off}", [f"A{p}"])
        T.issue(f"ds_read_b64 v[{VA+4*p+2}:{VA+4*p+3}], v20 offset:{off+8}", [f"A{p}"])
    def ldB(k, r):
        off = 512 * k + 64 * (3 - r)
        T.issue(f"ds_read_b128 v[{VB+4*k}:{VB+4*k+3}], v21 offset:{off}", [f"B{k}"])
    for p in range(8): ldA(p, 0)
    if SET == 0: a.stamp(4)
    a("s_cmp_eq_u32 s26, 0\ns_cbranch_scc0 k_waitrel")
    lds_wait(a, 6, 1, 16, "k6", 1)
    a(f"""
    s_lshr_b32 s34, s2, 3
    s_and_b32 s34, s34, 15
    s_lshl_b32 s34, s34, 7
    s_add_u32 s34, s34, {WS_B1}
    v_and_b32 v80, 7, v1
    v_lshl_add_u32 v80, v80, 11, s34         ; shard (lane) of replica (id>>3)&15
    v_mov_b32 v81, 0
    s_mov_b32 s60, 0
    k_poll:
    s_mov_b64 exec, 0xff
    global_atomic_add v82, v80, v81, s[20:21+2] sc0 sc1
    s_waitcnt vmcnt(0)
    v_cmp_ne_u32 vcc, 32, v82
    s_mov_b64 exec, -1
    s_cbranch_vccz k_go
    s_add_u32 s60, s60, 1
    {"s_sleep 1" if RSLP else ""}
    s_cmp_lt_u32 s60, {SPIN_MAX}
    s_cbranch_scc1 k_poll
    k_go:
    """.replace("s[20:21+2]", "s[22:23]"))
    lds_arrive(a, 4, 16)
    a("k_waitrel:")
    lds_wait(a, 4, 1, 16, "k4", RSLP)
    T.done = T.issued
    h_body(a)
    a("s_barrier")
    if int(os.environ.get("KPRIO", 0)): a(f"s_setprio {os.environ['KPRIO']}")
    if SET == 0: a.stamp(5)
    for k in range(7, -1, -1): ldB(k, 0)
    T.issue("ds_read_b32 v28, v27", ["ga"])
    for r in range(4):
        for p in range(8):
            for t in range(7, p - 1, -1):
                k = t - p
                T.need([f"A{p}", f"B{k}"])
                a(f"v_mfma_f32_16x16x32_bf16 v[{VY+4*t}:{VY+4*t+3}], v[{VA+4*p}:{VA+4*p+3}], v[{VB+4*k}:{VB+4*k+3}], v[{VY+4*t}:{VY+4*t+3}]")
                if t == 7 and r < 3: ldB(7 - p, r + 1)
            if r < 3: ldA(p, r + 1)
            if r == 3 and p == 4:
                for i in range(4): T.issue(f"ds_read_b64 v[{4+2*i}:{5+2*i}], v23 offset:{512*i}", ["xr"])
    T.need(["xr", "ga"])
    for i in range(4):
        a(f"v_lshlrev_b32 v{32+4*i}, 16, v{4+2*i}")
        a(f"v_and_b32 v{33+4*i}, 0xffff0000, v{4+2*i}")
        a(f"v_lshlrev_b32 v{34+4*i}, 16, v{5+2*i}")
        a(f"v_and_b32 v{35+4*i}, 0xffff0000, v{5+2*i}")
    a("s_cmp_eq_u32 s28, 1\ns_cbranch_scc1 k_hf1")
    def tail(hf):
        keep, send = 4 * hf, 4 * (1 - hf)
        for i in range(4):
            t = send + i
            a(f"ds_write_b128 v25, v[{VY+4*t}:{VY+4*t+3}] offset:{1024*i}")
        a("v_mov_b32 v31, 1\nds_write_b32 v29, v31")
        for i in range(4):
            for r in range(4): a(f"v_fma_f32 v{32+4*i+r}, v28, v{VY+4*(keep+i)+r}, v{32+4*i+r}")
        a(f"""
        k_hs{hf}:
        ds_read_b32 v31, v30
        s_waitcnt lgkmcnt(0)
        v_readfirstlane_b32 s43, v31
        s_cmp_eq_u32 s43, 1
        s_cbranch_scc0 k_hs{hf}
        """)
        for i in range(4): a(f"ds_read_b128 v[{64+4*i}:{67+4*i}], v26 offset:{1024*i}")
        for i in range(4):
            a(f"s_waitcnt lgkmcnt({3-i})")
            for r in range(4): a(f"v_fma_f32 v{32+4*i+r}, v28, v{64+4*i+r}, v{32+4*i+r}")
            a(f"v_cvt_pk_bf16_f32 v{12+2*i}, v{32+4*i}, v{33+4*i}")
            a(f"v_cvt_pk_bf16_f32 v{13+2*i}, v{34+4*i}, v{35+4*i}")
            if not X2W:
                a(f"global_store_dwordx2 v22, v[{12+2*i}:{13+2*i}], s[50:51] offset:{512*i}{X2SC}")
            elif i % 2 == 1:
                o = 12 + 2 * (i - 1)
                a("s_nop 1")
                a(f"v_permlane16_swap_b32 v{o}, v{o+2}")
                a(f"v_permlane16_swap_b32 v{o+1}, v{o+3}")
                a(f"global_store_dwordx4 v24, v[{o}:{o+3}], s[50:51] offset:{512*(i-1)}{X2SC}")
        a("s_waitcnt vmcnt(0)\ns_branch mega_next" if MEGA else "s_endpgm")
    tail(0)
    a("k_hf1:")
    tail(1)

NGO = int(os.environ.get('NGO', 32))
NSH = 4
def go_addr(a, o):
    a(f"""
    v_and_b32 v92, {NGO-1}, v1
    v_lshlrev_b32 v92, 7, v92
    s_and_b32 s34, s2, {NSH-1}
    s_lshl_b32 s34, s34, 2
    s_add_u32 s34, s34, {WS_GO}
    v_add_u32 v92, s34, v92
    s_lshr_b32 s34, s2, 2
    s_and_b32 s34, s34, {NGO-1}
    s_lshl_b32 s34, s34, 7
    s_add_u32 s34, s34, {WS_GO}
    v_and_b32 v94, 1, v1
    v_lshl_add_u32 v94, v94, 3, s34
    v_mov_b32 v{o+2}, 0
    v_mov_b32 v{o+3}, 0
    """)
def go_load(a, o):
    a(f"""
    s_mov_b64 exec, 3
    global_atomic_add_x2 v[{o}:{o+1}], v94, v[{o+2}:{o+3}], s[22:23] sc0 sc1
    s_mov_b64 exec, -1
    """)
def grid_arrive(a, tag, t):
    assert AB_GRID % 2 == 0
    n = [len(range(k, AB_GRID, NSH)) for k in range(NSH)]
    assert n[0] == n[-1] and n[0] & (n[0] - 1) == 0
    BUMP = f"s_mov_b32 exec_hi, 0\n    s_mov_b32 exec_lo, {hex((1 << NGO) - 1)}\n    global_atomic_add v92, v{t+1}, s[22:23] sc1"
    a(f"""
    s_and_b32 s34, s2, {NSH-1}
    s_lshl_b32 s36, s34, 6
    v_mov_b32 v{t}, s36
    v_mov_b32 v{t+1}, 1
    s_mov_b64 exec, 1
    global_atomic_add v{t+2}, v{t}, v{t+1}, s[20:21] sc0 sc1
    s_waitcnt vmcnt(0)
    v_readfirstlane_b32 s36, v{t+2}
    s_mov_b64 exec, -1
    s_and_b32 s36, s36, {n[0] - 1}
    s_cmp_eq_u32 s36, {n[0] - 1}
    s_cbranch_scc0 {tag}_arrived
    {BUMP}
    s_mov_b64 exec, -1
    {tag}_arrived:
    """)
def grid_wait(a, tag, t, o, slp=1, nmax=None):
    n = [len(range(k, AB_GRID, NSH)) for k in range(NSH)]
    cut = AB_GRID % NSH
    a(f"""
    s_mov_b32 s60, 0
    {tag}_poll_loop:
    s_mov_b64 exec, 3
    global_atomic_add_x2 v[{t}:{t+1}], v94, v[{o+2}:{o+3}], s[22:23] sc0 sc1
    s_waitcnt vmcnt(0)
    v_cmp_eq_u32 vcc, v{t}, v{o}
    v_cmp_eq_u32 s[58:59], v{t+1}, v{o+1}
    s_mov_b64 exec, -1
    s_or_b64 vcc, vcc, s[58:59]
    s_cbranch_scc0 {tag}_go
    s_add_u32 s60, s60, 1
    s_and_b32 s61, s60, 31
    s_cbranch_scc1 {tag}_next
    v_and_b32 v{t}, {NSH-1}, v1
    v_lshlrev_b32 v{t+1}, 6, v{t}
    s_mov_b64 exec, {(1 << NSH) - 1}
    global_atomic_add v{t+2}, v{t+1}, v{o+2}, s[20:21] sc0 sc1
    s_waitcnt vmcnt(0)
    v_cmp_ne_u32 vcc, {n[0]}, v{t+2}
    s_mov_b64 exec, -1
    s_cbranch_vccz {tag}_go
    {tag}_next:
    s_sleep {slp}
    s_cmp_lt_u32 s60, {nmax or SPIN_MAX}
    s_cbranch_scc1 {tag}_poll_loop
    {tag}_go:
    """)

def gen_pwaves(a):
    a(f"""
    pwaves:
    s_load_dwordx2 s[4:5], s[0:1], 0         ; x
    s_load_dwordx4 s[44:47], s[0:1], 112     ; c, w_mod
    s_load_dwordx4 s[20:23], s[0:1], 136
    s_load_dwordx4 s[8:11], s[0:1], 80       ; w1, b1
    s_load_dwordx2 s[48:49], s[0:1], 96
    s_setprio {PPRIO}
    v_subrev_u32 v0, 256, v0
    s_sub_u32 s26, s26, 4
    v_lshrrev_b32 v3, 6, v0
    v_lshrrev_b32 v8, 4, v1                  ; row (0..3)
    v_and_b32 v9, 15, v1                     ; 16 B chunk
    v_lshlrev_b32 v4, 10, v8
    v_lshl_add_u32 v4, v9, 4, v4
    v_lshl_add_u32 v4, v3, 8, v4
    s_lshl_b32 s31, s2, 13
    v_add_u32 v4, s31, v4
    v_add_u32 v44, 4096, v4
    s_min_u32 s32, s7, 23
    s_mul_i32 s33, s6, 24
    s_add_u32 s33, s33, s32
    v_lshrrev_b32 v5, 1, v0                  ; rg
    v_and_b32 v6, 1, v0                      ; cc
    v_mul_u32_u24 v7, {4*6144}, v5
    v_lshl_add_u32 v7, v6, 4, v7
    s_lshl_b32 s34, s33, 5
    v_add_u32 v7, s34, v7
    v_lshlrev_b32 v2, 3, v5                  ; c offset
    """)
    a(f"""
    s_and_b32 s34, s2, 3
    s_lshl_b32 s34, s34, 6
    s_add_u32 s34, s34, 4
    v_mov_b32 v94, s34
    v_mov_b32 v95, 0
    s_and_b32 s34, s2, 7
    s_lshl_b32 s34, s34, 11
    s_add_u32 s34, s34, {WS_B1}
    v_and_b32 v92, 15, v1
    v_lshl_add_u32 v92, v92, 7, s34
    v_mov_b32 v93, 1
    """)
    a("s_waitcnt lgkmcnt(0)")
    if SET == 1: a.stamp(0)
    a(f"""
    global_load_dwordx4 v[8:11], v4, s[4:5]
    global_load_dwordx4 v[12:15], v44, s[4:5]
    global_load_dwordx2 v[16:17], v2, s[44:45]
    """)
    for i in range(4):
        if i: a("v_add_u32 v7, 6144, v7")
        a(f"global_load_dwordx4 v[{20+4*i}:{23+4*i}], v7, s[46:47]")
    a(f"""
    v_mov_b32 v38, 0x3f803f80
    v_lshrrev_b32 v40, 4, v1
    v_mul_u32_u24 v39, 320, v40
    v_and_b32 v41, 15, v1
    v_lshl_add_u32 v39, v41, 4, v39
    s_mul_i32 s34, s26, 2560
    s_add_u32 s34, s34, {LNT}
    v_add_u32 v39, s34, v39
    v_lshrrev_b32 v47, 2, v41
    v_mul_u32_u24 v47, 320, v47
    v_and_b32 v46, 3, v41
    v_lshl_add_u32 v47, v46, 3, v47
    v_lshl_add_u32 v47, v40, 5, v47
    v_add_u32 v47, s34, v47
    v_lshl_add_u32 v46, v3, 7, v1
    v_lshlrev_b32 v46, 4, v46
    s_mul_i32 s34, s2, {XBS}
    s_add_u32 s34, s34, {WS_XB}
    v_add_u32 v46, s34, v46
    v_lshlrev_b32 v45, 3, v40
    s_lshl_b32 s34, s26, 6
    s_add_u32 s34, s34, {STP}
    v_add_u32 v45, s34, v45
    """)
    for r in range(2):
        b = 8 + 4 * r
        a(f"s_waitcnt vmcnt({6 - r})")
        a(f"ds_write_b128 v39, v[{b}:{b+3}] offset:{1280*r}")
        a(f"v_dot2_f32_bf16 v{72+2*r}, v{b}, v38, 0")
        a(f"v_dot2_f32_bf16 v{73+2*r}, v{b}, v{b}, 0")
        for k in range(1, 4):
            a(f"v_dot2_f32_bf16 v{72+2*r}, v{b+k}, v38, v{72+2*r}")
            a(f"v_dot2_f32_bf16 v{73+2*r}, v{b+k}, v{b+k}, v{73+2*r}")
    a("""
    s_waitcnt lgkmcnt(0)
    ds_read_b64_tr_b16 v[48:49], v47
    ds_read_b64_tr_b16 v[50:51], v47 offset:1280
    ds_read_b64_tr_b16 v[52:53], v47 offset:128
    ds_read_b64_tr_b16 v[54:55], v47 offset:1408
    """)
    if SET == 1: a.stamp(1)
    a("s_waitcnt vmcnt(4)")
    for i in range(4):
        src = 16 + i // 2
        a(f"v_lshlrev_b32 v{56+i}, 16, v{src}" if i % 2 == 0 else f"v_and_b32 v{56+i}, 0xffff0000, v{src}")
    for i in range(4): a(f"v_mul_f32 v{60+i}, {fx(-1.4426950408889634)}, v{56+i}")
    for i in range(4): a(f"v_exp_f32 v{60+i}, v{60+i}")
    dpps = ["row_shr:1", "row_shr:2", "row_shr:4", "row_shr:8", "row_bcast:15 row_mask:0xa", "row_bcast:31 row_mask:0xc"]
    def dpp4(d):
        m = "" if "row_mask" in d else " row_mask:0xf"
        for r in range(72, 76): a(f"v_add_f32_dpp v{r}, v{r}, v{r} {d}{m} bank_mask:0xf")
    dpp4(dpps[0])
    for i in range(4): a(f"v_add_f32 v{60+i}, 1.0, v{60+i}")
    dpp4(dpps[1])
    for i in range(4): a(f"v_rcp_f32 v{60+i}, v{60+i}")
    dpp4(dpps[2])
    for i in range(4): a(f"v_mul_f32 v{56+i}, v{56+i}, v{60+i}")
    dpp4(dpps[3])
    for i in range(4):
        a(f"v_cvt_pk_bf16_f32 v{60+i}, v{56+i}, 0")
        a(f"v_cvt_pk_bf16_f32 v{76+i}, 0, v{56+i}")
    a(f"""
    s_waitcnt lgkmcnt(0)
    global_store_dwordx4 v46, v[48:51], s[22:23] sc1
    global_store_dwordx4 v46, v[52:55], s[22:23] offset:1024 sc1
    v_cmp_eq_u32 vcc, 15, v41
    s_and_saveexec_b64 s[54:55], vcc
    ds_write_b64 v45, v[72:73]
    ds_write_b64 v45, v[74:75] offset:32
    s_mov_b64 exec, s[54:55]
    """)
    for i in range(4):
        a(f"s_waitcnt vmcnt({5 - i})")
        for m in range(4):
            c0 = "0" if i == 0 else f"v{64+2*m}"; c1 = "0" if i == 0 else f"v{65+2*m}"
            a(f"v_dot2_f32_bf16 v{64+2*m}, v{20+4*i+m}, v{60+i}, {c0}")
            a(f"v_dot2_f32_bf16 v{65+2*m}, v{20+4*i+m}, v{76+i}, {c1}")
    a("s_nop 2")
    for d in ["row_shr:2", "row_shr:4", "row_shr:8"]:
        for r in range(64, 72): a(f"v_add_f32_dpp v{r}, v{r}, v{r} {d} row_mask:0xf bank_mask:0xf")
    a(f"""
    v_lshrrev_b32 v4, 4, v0
    v_mul_u32_u24 v4, 80, v4
    v_lshl_add_u32 v4, v6, 5, v4
    v_add_u32 v4, {MODS}, v4
    v_and_b32 v5, 15, v0
    v_cmp_lt_u32 vcc, 13, v5
    v_lshlrev_b32 v5, 2, v5
    v_add_u32 v5, {MODS}, v5
    s_and_saveexec_b64 s[54:55], vcc
    ds_write_b128 v4, v[64:67]
    ds_write_b128 v4, v[68:71] offset:16
    s_mov_b64 exec, s[54:55]
    s_waitcnt lgkmcnt(0)
    """)
    if SET == 1: a.stamp(2)
    a("""
    s_cmp_eq_u32 s26, 0
    s_cbranch_scc0 p_nogo
    """)
    a("""
    s_mov_b64 exec, 1
    global_atomic_add v96, v94, v95, s[20:21] sc0 sc1
    s_mov_b64 exec, -1
    p_nogo:
    """)
    lds_arrive(a, 0, 36); lds_wait(a, 0, 4, 36, "p1")
    for i in range(16): a(f"ds_read_b32 v{20+i}, v5 offset:{80*i}")
    a(f"""
    v_and_b32 v58, 7, v0
    v_lshlrev_b32 v59, 3, v58
    v_add_u32 v59, {STP}, v59
    ds_read_b64 v[48:49], v59
    ds_read_b64 v[50:51], v59 offset:64
    ds_read_b64 v[52:53], v59 offset:128
    ds_read_b64 v[54:55], v59 offset:192
    v_lshlrev_b32 v58, 2, v58
    s_lshl_b32 s34, s2, 5
    s_add_u32 s34, s34, {WS_ST1}
    v_add_u32 v58, s34, v58
    s_waitcnt lgkmcnt(0)
    v_add_f32 v48, v48, v50
    v_add_f32 v49, v49, v51
    v_add_f32 v52, v52, v54
    v_add_f32 v53, v53, v55
    v_add_f32 v56, v48, v52
    v_add_f32 v57, v49, v53
    v_mul_f32 v56, {fx(1.0/512)}, v56        ; mean
    v_mul_f32 v57, {fx(1.0/512)}, v57
    v_fma_f32 v57, -v56, v56, v57
    v_max_f32 v57, 0, v57
    v_add_f32 v57, {fx(1e-5)}, v57
    v_rsq_f32 v57, v57
    v_cmp_gt_u32 vcc, 8, v0
    v_mul_f32 v56, -v56, v57
    v_cvt_pk_bf16_f32 v56, v57, v56          ; (r, -mean*r)
    s_and_saveexec_b64 s[54:55], vcc
    s_cbranch_execz p_nostat
    global_store_dword v58, v56, s[22:23] sc1
    p_nostat:
    s_mov_b64 exec, s[54:55]
    """)
    for st in (1, 2, 4, 8):
        for i in range(0, 16, 2 * st): a(f"v_add_f32 v{20+i}, v{20+i}, v{20+i+st}")
    a(f"""
    v_cvt_pk_bf16_f32 v20, v20, v20
    v_lshlrev_b32 v20, 16, v20
    s_lshl_b32 s34, s33, 7
    s_add_u32 s34, s34, {WS_MODP}
    v_lshlrev_b32 v4, 2, v0
    v_add_u32 v4, s34, v4
    s_cmp_lt_u32 s7, 24
    s_cselect_b32 s34, 16, 0
    v_cmp_gt_u32 vcc, s34, v0
    s_and_saveexec_b64 s[54:55], vcc
    s_cbranch_execz p_nomod
    global_store_dword v4, v20, s[22:23] sc1
    p_nomod:
    s_mov_b64 exec, s[54:55]
    """)
    a(f"""
    s_cmp_eq_u32 s2, 0
    s_cbranch_scc0 p_nozero
    s_cmp_eq_u32 s26, 1
    s_cbranch_scc0 p_nozero
    v_lshlrev_b32 v60, 7, v1
    v_add_u32 v60, {WS_CNT}, v60
    v_mov_b32 v62, 0
    v_mov_b32 v63, 0
    v_mov_b32 v64, 0
    v_mov_b32 v65, 0
    global_store_dwordx4 v60, v[62:65], s[22:23] sc1
    v_add_u32 v60, 8192, v60
    global_store_dwordx4 v60, v[62:65], s[22:23] sc1
    v_add_u32 v60, 8192, v60
    global_store_dwordx4 v60, v[62:65], s[22:23] sc1
    p_nozero:
    """)
    a("s_waitcnt vmcnt(0)")
    lds_arrive(a, 1, 36)
    if SET == 1: a.stamp(3)
    a(f"""
    s_cmp_eq_u32 s26, 0
    s_cbranch_scc0 p_noentry
    """)
    lds_wait(a, 1, 4, 36, "p2")
    a(f"""
    s_mov_b32 s60, 0
    p_flag:
    v_readfirstlane_b32 s36, v96
    s_nop 0
    s_cmp_lg_u32 s36, 0
    s_cbranch_scc1 p_flag_ok
    s_mov_b64 exec, 1
    global_atomic_add v96, v94, v95, s[20:21] sc0 sc1
    s_waitcnt vmcnt(0)
    s_mov_b64 exec, -1
    s_add_u32 s60, s60, 1
    s_cmp_lt_u32 s60, {SPIN_MAX}
    s_cbranch_scc1 p_flag
    p_flag_ok:
    s_mov_b64 exec, 0xffff
    global_atomic_add v92, v93, s[22:23] sc1
    s_mov_b64 exec, -1
    """)
    lds_arrive(a, 6, 36)
    a("p_noentry:")
    h_addr(a, 256)
    a(f"""
    s_cmp_lt_u32 s2, {NW1}
    s_cbranch_scc0 p_now1
    v_lshrrev_b32 v18, 1, v0                 ; rg
    v_and_b32 v19, 1, v0                     ; cc
    v_mul_u32_u24 v16, {4*2752}, v18
    v_lshl_add_u32 v16, v19, 4, v16
    s_lshl_b32 s12, s2, 5
    v_add_u32 v16, s12, v16
    """)
    for i in range(4):
        if i: a("v_add_u32 v16, 2752, v16")
        a(f"global_load_dwordx4 v[{100+4*i}:{103+4*i}], v16, s[8:9]")
    a(f"""
    v_and_b32 v17, 15, v0
    v_lshlrev_b32 v17, 1, v17
    v_add_u32 v17, s12, v17
    global_load_ushort v56, v17, s[10:11]
    v_mov_b32 v57, 0x3f803f80
    v_lshrrev_b32 v58, 2, v18
    v_lshlrev_b32 v58, 9, v58
    v_bfe_u32 v59, v18, 1, 1
    v_lshl_add_u32 v58, v59, 8, v58
    v_lshl_add_u32 v58, v19, 7, v58
    v_and_b32 v59, 1, v18
    v_lshl_add_u32 v58, v59, 3, v58
    v_add_u32 v58, {IMG}, v58
    s_waitcnt vmcnt(1)
    """)
    for i in range(4):
        for e in range(8):
            src = 100 + 4 * i + e // 2
            a(f"v_lshlrev_b32 v{24+8*i+e}, 16, v{src}" if e % 2 == 0 else f"v_and_b32 v{24+8*i+e}, 0xffff0000, v{src}")
    a("p_now1:\ns_setprio 0")
    a(f"""
    v_lshrrev_b32 v16, 3, v0
    v_lshlrev_b32 v16, 7, v16
    v_bfe_u32 v17, v0, 1, 2
    v_lshl_add_u32 v16, v17, 4, v16
    v_add_u32 v16, {WS_MODP + 96*128}, v16
    v_add_u32 v17, 4096, v16
    """)
    lds_wait(a, 4, 1, 60, "p3", RSLP)
    if SET == 1: a.stamp(4)
    a(f"s_cmp_lt_u32 s2, {NW1}\ns_cbranch_scc0 p_hplain")
    h_body(a, lambda: a("global_load_dwordx4 v[100:103], v16, s[22:23] sc1\nglobal_load_dwordx4 v[104:107], v17, s[22:23] sc1"), 2)
    a("s_branch p_hdone\np_hplain:")
    h_body(a)
    a("p_hdone:")
    if SET == 1: a.stamp(5)
    a("s_barrier")
    if int(os.environ.get("WPRIO", 0)): a(f"s_setprio {os.environ['WPRIO']}")
    a(f"""
    s_lshr_b32 s47, s2, 3
    s_mul_i32 s47, s47, 44032
    v_lshlrev_b32 v20, 6, v0
    v_add_u32 v20, s47, v20
    global_load_dword v21, v20, s[48:49]
    v_add_u32 v20, 16384, v20
    global_load_dword v22, v20, s[48:49]
    s_add_u32 s47, s47, {32768 + 175*64}
    v_add_u32 v20, 16384, v20
    v_min_u32 v20, s47, v20
    global_load_dword v23, v20, s[48:49]
    s_cmp_lt_u32 s2, {NW1}
    s_cbranch_scc0 p_done
    s_waitcnt vmcnt(3)
    """)
    for i in range(4): a(f"v_add_f32 v{12+i}, 1.0, v{104+i}")
    a("v_cvt_pk_bf16_f32 v16, v12, v13\nv_cvt_pk_bf16_f32 v17, v14, v15")
    a("v_lshlrev_b32 v12, 16, v16\nv_and_b32 v13, 0xffff0000, v16\nv_lshlrev_b32 v14, 16, v17\nv_and_b32 v15, 0xffff0000, v17")
    for e in range(8): a(f"v_mul_f32 v{72+e}, v100, v{24+e}")
    for i in range(1, 4):
        for e in range(8): a(f"v_fmac_f32 v{72+e}, v{100+i}, v{24+8*i+e}")
    for i in range(4):
        for e in range(8): a(f"v_mul_f32 v{24+8*i+e}, v{12+i}, v{24+8*i+e}")
    for e in range(8):
        a(f"v_cvt_pk_bf16_f32 v{80+2*e}, v{24+e}, v{32+e}")
        a(f"v_cvt_pk_bf16_f32 v{81+2*e}, v{40+e}, v{48+e}")
    for e in range(8): a(f"ds_write_b64 v58, v[{80+2*e}:{81+2*e}] offset:{16*e}")
    for e in range(8): a(f"v_dot2_f32_bf16 v{64+e}, v{80+2*e}, v57, 0")
    for e in range(8): a(f"v_dot2_f32_bf16 v{64+e}, v{81+2*e}, v57, v{64+e}")
    a("s_nop 2")
    for d in ["row_shr:2", "row_shr:4", "row_shr:8"]:
        for r in range(64, 80): a(f"v_add_f32_dpp v{r}, v{r}, v{r} {d} row_mask:0xf bank_mask:0xf")
    a(f"""
    v_lshrrev_b32 v5, 4, v0                  ; part
    v_mul_u32_u24 v5, 144, v5
    v_lshl_add_u32 v5, v19, 5, v5
    v_add_u32 v5, {RED2}, v5
    v_and_b32 v6, 15, v0
    v_cmp_lt_u32 vcc, 13, v6
    s_and_saveexec_b64 s[54:55], vcc
    ds_write_b128 v5, v[64:67]
    ds_write_b128 v5, v[68:71] offset:16
    ds_write_b128 v5, v[72:75] offset:64
    ds_write_b128 v5, v[76:79] offset:80
    s_mov_b64 exec, s[54:55]
    """)
    lds_arrive(a, 7, 60)
    a(f"""
    v_lshlrev_b32 v7, 4, v0
    v_add_u32 v7, {IMG}, v7
    s_lshr_b32 s13, s2, 1
    s_lshl_b32 s13, s13, 15
    s_and_b32 s14, s2, 1
    s_lshl_b32 s14, s14, 8
    s_add_u32 s13, s13, s14
    s_add_u32 s13, s13, {WS_W1F}
    v_lshrrev_b32 v8, 4, v0
    v_lshlrev_b32 v8, 9, v8
    v_lshl_add_u32 v8, v6, 4, v8
    v_add_u32 v8, s13, v8
    v_lshlrev_b32 v9, 2, v6
    v_bfe_u32 v10, v0, 4, 1
    v_lshl_add_u32 v9, v10, 6, v9            ; (t&15)*4 + ((t>>4)&1)*64
    v_add_u32 v9, {RED2}, v9
    """)
    lds_wait(a, 7, 4, 60, "p7", 1)
    for k in range(4): a(f"ds_read_b128 v[{24+4*k}:{27+4*k}], v7 offset:{4096*k}")
    for p in range(16): a(f"ds_read_b32 v{40+p}, v9 offset:{144*p}")
    a("s_waitcnt lgkmcnt(0)")
    for k in range(4):
        a(f"global_store_dwordx4 v8, v[{24+4*k}:{27+4*k}], s[22:23]{W1SC}")
        if k < 3: a(f"v_add_u32 v8, {16*512}, v8")
    for st in (1, 2, 4, 8):
        for p in range(0, 16, 2 * st): a(f"v_add_f32 v{40+p}, v{40+p}, v{40+p+st}")
    a(f"""
    v_lshlrev_b32 v56, 16, v56
    v_cmp_eq_u32 vcc, 1, v10
    s_nop 1
    v_cndmask_b32 v56, 0, v56, vcc
    v_add_f32 v40, v40, v56
    s_lshl_b32 s13, s2, 6
    v_lshl_add_u32 v11, v6, 2, s13
    v_mov_b32 v12, {WS_CS}
    v_mov_b32 v13, {WS_B1P}
    v_cndmask_b32 v12, v12, v13, vcc
    v_add_u32 v11, v11, v12
    v_cmp_gt_u32 vcc, 32, v0
    s_and_saveexec_b64 s[54:55], vcc
    s_cbranch_execz p_done
    global_store_dword v11, v40, s[22:23]{" sc1" if MEGA else SC}
    p_done:
    """)
    if MEGA: a("s_mov_b64 exec, -1\nv_add_u32 v0, 256, v0\ns_waitcnt vmcnt(0)\ns_branch mega_next")
    else: a("s_endpgm")

def gen_AB(a):
    a(f"""
    s_cmp_ge_u32 s2, {NMAIN}
    s_cbranch_scc1 ab_other
    v_lshrrev_b32 v3, 6, v0
    v_and_b32 v1, 63, v0
    s_and_b32 s6, s2, 7
    s_lshr_b32 s7, s2, 3
    v_readfirstlane_b32 s26, v3              ; wave
    v_lshlrev_b32 v4, 2, v0
    v_add_u32 v4, {CNT}, v4
    v_mov_b32 v5, 0
    v_cmp_gt_u32 vcc, 8, v0
    s_and_saveexec_b64 s[54:55], vcc
    ds_write_b32 v4, v5
    s_mov_b64 exec, s[54:55]
    s_lshl_b32 s29, s6, 6
    s_lshl_b32 s30, s7, 1
    s_add_u32 s29, s29, s30
    s_waitcnt lgkmcnt(0)
    s_barrier
    s_cmp_lt_u32 s26, 4
    s_cbranch_scc1 kwaves
    """)
    gen_pwaves(a)
    gen_kwaves(a)
    if not MEGA:
        a("ab_other:\ns_endpgm")
        a.l.append(idx_table())

if __name__ == "__main__":
    ks = [("convab_kernel", gen_AB, 128, AB_GRID, 512, AB_LDS),
          ("gemm1_kernel", gen_C, 176, C_GRID, 512, C_LDS),
          ("gemm2_kernel", gen_D, 128, D_GRID, 512, D_LDS)]
    s = build(ks)
    path = sys.argv[1] if len(sys.argv) > 1 else "out.s"
    open(path, "w").write(s)
    print("wrote", path, len(s))
```
